```python
import torch

def _softmax(x, axis=-1):
    return torch.softmax(x, dim=axis)

def _gelu(x):
    return torch.nn.functional.gelu(x, approximate='tanh')

def _silu(x):
    return torch.nn.functional.silu(x)

def _sigmoid(x):
    return torch.sigmoid(x)

def _layernorm(x, axis=-1, eps=1e-05):
    m = x.mean(dim=axis, keepdim=True)
    v = x.var(dim=axis, keepdim=True, unbiased=False)
    return (x - m) / torch.sqrt(v + eps)

def _scatter_add(tgt, idx, src, axis=0):
    return tgt.clone().index_add_(axis, idx, src)

def _segment_sum(src, seg, n):
    out = torch.zeros((n,) + src.shape[1:], dtype=src.dtype)
    return out.index_add_(0, seg, src)

def _pad(x, pw):
    flat = tuple((v for pair in reversed(pw) for v in pair))
    return torch.nn.functional.pad(x, flat)
kernel_name = 'adaLN_cond__sliding_block_cached__glu_gated_reglu__decode'

def setup_inputs():

    _w = lambda a: (lambda t: t.to(torch.bfloat16) if t.is_floating_point() else t)(torch.as_tensor(a))

    def _A_setup():
        B, Sq, D = (8, 1, 640)
        Hq, Hkv, Sk, Dh = (32, 32, 4096, 128)
        assert Hq % Hkv == 0, (Hq, Hkv)
        return {'x': _w((lambda *s: torch.randn(*s, dtype=torch.bfloat16) * 0.05)(B, Sq, D)), 'k_cache': _w((lambda *s: torch.randn(*s, dtype=torch.bfloat16) * 3.2)(B, Hkv, Sk, Dh)), 'v_cache': _w((lambda *s: torch.randn(*s, dtype=torch.bfloat16) * 3.2)(B, Hkv, Sk, Dh)), 'wq': _w((lambda *s: torch.randn(*s, dtype=torch.bfloat16) * 3.2)(D, Hq * Dh) * D ** (-0.5)), 'wo': _w((lambda *s: torch.randn(*s, dtype=torch.bfloat16) * 3.2)(Hq * Dh, D) * (Hq * Dh) ** (-0.5))}
    _A_in = _A_setup()

    def _B_setup():
        B, S, D, F = (8, 1, 640, 1728)
        return {'x': _w((lambda *s: torch.randn(*s, dtype=torch.bfloat16) * 0.05)(B, S, D)), 'W_gate': _w((lambda *s: torch.randn(*s, dtype=torch.bfloat16) * 1.6)(D, F) * (2.0 / D) ** 0.5), 'W_up': _w((lambda *s: torch.randn(*s, dtype=torch.bfloat16) * 1.6)(D, F) * (2.0 / D) ** 0.5), 'W_down': _w((lambda *s: torch.randn(*s, dtype=torch.bfloat16) * 1.6)(F, D) * (1.0 / F) ** 0.5)}
    _B_in = _B_setup()
    return {'A_x': _A_in['x'], 'A_k_cache': _A_in['k_cache'], 'A_v_cache': _A_in['v_cache'], 'A_wq': _A_in['wq'], 'A_wo': _A_in['wo'], 'B_x': _B_in['x'], 'B_W_gate': _B_in['W_gate'], 'B_W_up': _B_in['W_up'], 'B_W_down': _B_in['W_down'], 'c': _w((lambda *s: torch.randn(*s, dtype=torch.bfloat16) * 0.2)(8, 640) * 8.0), 'w_mod': _w((lambda *s: torch.randn(*s, dtype=torch.bfloat16) * 0.2)(640, 6 * 640) * 640 ** (-0.5) * 8.0)}

def reference(A_x, A_k_cache, A_v_cache, A_wq, A_wo, B_x, B_W_gate, B_W_up, B_W_down, c, w_mod):

    def _A_ref(x, k_cache, v_cache, wq, wo):
        B, Sq, D = x.shape
        Hq, Dh = (32, 128)
        Hkv, Sk = (k_cache.shape[1], k_cache.shape[2])
        W = min(4096, max(256, Sk // 4))
        rep = Hq // Hkv
        q = (lambda x, *d: x.permute(*d))((x @ wq).reshape(B, Sq, Hq, Dh), 0, 2, 1, 3)
        k = (lambda x, n, axis: torch.repeat_interleave(x, n, dim=axis))(k_cache[:, :, Sk - W:, :], rep, axis=1)
        v = (lambda x, n, axis: torch.repeat_interleave(x, n, dim=axis))(v_cache[:, :, Sk - W:, :], rep, axis=1)
        scores = torch.einsum('bhqd,bhkd->bhqk', q, k) * Dh ** (-0.5)
        p = _softmax(scores, axis=-1)
        o = torch.einsum('bhqk,bhkd->bhqd', p, v)
        return (lambda x, *d: x.permute(*d))(o, 0, 2, 1, 3).reshape(B, Sq, Hq * Dh) @ wo

    def _B_ref(x, W_gate, W_up, W_down):
        gate = torch.einsum('bsd,df->bsf', x, W_gate)
        up = torch.einsum('bsd,df->bsf', x, W_up)
        gate = gate * (lambda x, dt: x.to(dt))(gate > 0, gate.dtype)
        h = gate * up
        return torch.einsum('bsf,fd->bsd', h, W_down)
    x = A_x
    mod = (_silu(c) @ w_mod).reshape(c.shape[0], 6, 1, -1)
    sa, ca, ga, sb, cb, gb = (mod[:, 0].clone(), mod[:, 1].clone(), mod[:, 2].clone(), mod[:, 3].clone(), mod[:, 4].clone(), mod[:, 5].clone())
    h = _layernorm(x, axis=-1) * (1 + ca) + sa
    x = x + ga * _A_ref(h, A_k_cache, A_v_cache, A_wq, A_wo)
    h = _layernorm(x, axis=-1) * (1 + cb) + sb
    x = x + gb * _B_ref(h, B_W_gate, B_W_up, B_W_down)
    return x
```

```python
NAME = 'adaLN_cond__sliding_block_cached__glu_gated_reglu__decode'

class Asm:
    def __init__(self):
        self.l = []
        self.uid = 0
    def __call__(self, s):
        for line in s.split('\n'):
            line = line.strip()
            if not line: continue
            if line.endswith(':') or line.startswith('.') or line.startswith(';'):
                self.l.append(line)
            else:
                self.l.append('    ' + line)
    def label(self, base='L'):
        self.uid += 1
        return f'{base}_{self.uid}'
    def text(self):
        return '\n'.join(self.l) + '\n'

def header(launch_lines):
    return ''.join(l + '\n' for l in launch_lines) + '.amdgcn_target "amdgcn-amd-amdhsa--gfx950"\n.text\n'

def kernel_start(name):
    return f'.globl {name}\n.p2align 8\n.type {name},@function\n{name}:\n'

def descriptor(name, vgpr=256, sgpr=102, accum=256):
    return f'''.p2align 6
.amdhsa_kernel {name}
  .amdhsa_next_free_vgpr {vgpr}
  .amdhsa_next_free_sgpr {sgpr}
  .amdhsa_accum_offset {accum}
  .amdhsa_group_segment_fixed_size 0
  .amdhsa_kernarg_size 112
  .amdhsa_user_sgpr_count 2
  .amdhsa_user_sgpr_kernarg_segment_ptr 1
  .amdhsa_system_sgpr_workgroup_id_x 1
  .amdhsa_float_denorm_mode_32 3
  .amdhsa_float_denorm_mode_16_64 3
.end_amdhsa_kernel
'''

import re
_REG = re.compile(r'\b([vsa])(\d+)\b|\b([vsa])\[(\d+):(\d+)\]|\b(vcc|exec|m0)\b')

def _regs(tok):
    out = set()
    for m in _REG.finditer(tok):
        if m.group(1): out.add((m.group(1), int(m.group(2))))
        elif m.group(3): out.update((m.group(3), i) for i in range(int(m.group(4)), int(m.group(5)) + 1))
        else: out.add((m.group(6), 0))
    return out

def _split_ops(s):
    ops, depth, cur = [], 0, ''
    for ch in s:
        if ch in '[(': depth += 1
        if ch in '])': depth -= 1
        if ch == ',' and depth == 0:
            ops.append(cur); cur = ''
        else: cur += ch
    if cur.strip(): ops.append(cur)
    return [o.strip() for o in ops]

TRANS = ('v_exp_f32', 'v_rcp_f32', 'v_sqrt_f32', 'v_rsq_f32', 'v_log_f32')

class Ins:
    def __init__(self, line):
        self.line = line
        t = line.split(';')[0].strip()
        p = t.split(None, 1)
        self.op = p[0]
        ops = _split_ops(p[1]) if len(p) > 1 else []
        self.ops = ops
        op = self.op
        self.mfma = op.startswith('v_mfma') or op.startswith('v_smfmac')
        self.valu = op.startswith('v_') and not self.mfma
        self.trans = any(op.startswith(x) for x in TRANS)
        self.dot = op.startswith('v_dot')
        self.vmem = op.startswith('buffer_') or op.startswith('global_')
        self.ds = op.startswith('ds_')
        self.salu = op.startswith('s_')
        self.dpp = ('row_' in t.replace('row_mask', '') or 'quad_perm' in t) and self.valu
        self.lds_dma = self.vmem and (t.endswith(' lds') or ' lds ' in t or 'load_lds' in op)
        self.rdlane = op.startswith('v_readlane') or op.startswith('v_readfirstlane')
        self.permlane = op.startswith('v_permlane')
        self.w = set(); self.r = set()
        R = [_regs(o.split(' ')[0]) if i == len(ops) - 1 else _regs(o) for i, o in enumerate(ops)]
        if self.valu or self.mfma:
            self.w = set(R[0]) if R else set()
            for x in R[1:]: self.r |= x
            if op.startswith('v_fmac') or op.startswith('v_dot2c') or self.permlane or (self.dpp and 'bank_mask:0xf' not in t) or (self.dpp and 'row_mask:0xf' not in t):
                self.r |= self.w
            if self.permlane: self.w |= R[1]
            if op.startswith('v_cndmask') and len(ops) == 3: self.r.add(('vcc', 0))
            if '_co_' in op: self.w |= R[1]
        elif self.vmem:
            if 'store' in op or 'atomic' in op or self.lds_dma:
                for x in R: self.r |= x
            else:
                self.w = set(R[0])
                for x in R[1:]: self.r |= x
            if self.lds_dma: self.r.add(('m0', 0))
        elif self.ds:
            if 'read' in op or 'rtn' in op or 'permute' in op or 'swizzle' in op:
                self.w = set(R[0])
                for x in R[1:]: self.r |= x
            else:
                for x in R: self.r |= x
        elif self.salu:
            if op.startswith('s_cmp') or op.startswith('s_bitcmp') or op.startswith('s_cbranch') or op in ('s_branch', 's_waitcnt', 's_nop', 's_sleep', 's_barrier', 's_endpgm', 's_setprio'):
                for x in R: self.r |= x
            else:
                self.w = set(R[0]) if R else set()
                for x in R[1:]: self.r |= x
        self.wide_store = self.vmem and 'store' in op and ('x4' in op or 'x3' in op)
        self.store_data = set(R[0]) if (self.wide_store and op.startswith('buffer')) else set()
        if self.mfma:
            self.srcc = R[3] if len(R) > 3 else set()
            self.srcab = R[1] | R[2]
            if op.startswith('v_smfmac'):
                self.srcab = R[1] | R[2] | R[3]; self.srcc = set(R[0]); self.r |= R[0]
    def states(self):
        if self.op == 's_nop': return int(self.ops[0], 0) + 1
        return 1

def need(p, c):
    n = 0
    vw = {x for x in p.w if x[0] in 'va'}
    sw = {x for x in p.w if x[0] == 's' or x[0] == 'vcc'}
    if p.valu:
        if vw & c.r:
            if c.dpp: n = max(n, 2)
            if c.rdlane: n = max(n, 1)
            if c.permlane: n = max(n, 2)
            if c.mfma: n = max(n, 2)
            if p.trans and c.valu and not c.trans: n = max(n, 1)
            if p.trans and (c.vmem or c.ds or c.mfma): n = max(n, 1)
        if p.dot:
            if vw & (c.r | c.w):
                if c.op == p.op:
                    ab = set()
                    for o in c.ops[1:3]: ab |= _regs(o)
                    if vw & ab: n = max(n, 3)
                else: n = max(n, 3)
        if sw & c.r:
            if c.valu: n = max(n, 4 if c.rdlane else 2)
            if c.vmem: n = max(n, 5)
            if c.salu and not c.op.startswith('s_cbranch'): n = max(n, 1)
    if p.salu and ('m0', 0) in p.w and c.lds_dma: n = max(n, 1)
    if p.wide_store and (p.store_data & c.w): n = max(n, 2)
    if p.mfma:
        if c.mfma:
            if vw & c.srcab: n = max(n, 8)
            if vw & c.srcc and vw != c.srcc: n = max(n, 6)
        elif vw & (c.r | c.w): n = max(n, 8)
        if c.valu and (p.srcc & c.w): n = max(n, 3)
    return n

def fix_hazards(lines):
    out = []
    hist = []
    added = 0
    for line in lines:
        t = line.strip()
        if not t or t.startswith(';') or t.startswith('.') or t.split(';')[0].strip().endswith(':'):
            out.append(line); continue
        c = Ins(t)
        dist = 0; req = 0
        for p in reversed(hist):
            nd = need(p, c)
            if nd > dist: req = max(req, nd - dist)
            dist += p.states()
            if dist >= 10: break
        if req > 0:
            nop = f'    s_nop {req-1}'
            out.append(nop); hist.append(Ins(nop.strip())); added += 1
        out.append(line); hist.append(c)
        if c.op in ('s_branch', 's_endpgm'): hist = []
        hist = hist[-12:]
    return out
```

```python
import sys
from asmlib import *

WS_E = 0
WS_H1 = 0x1000
SB = 0x8000
WS_Q = SB
WS_O = SB + 0x10000
WS_HID = SB + 0x20000
WS_X1 = SB + 0x27000
WS_SC = SB + 0x2A000
WS_STAMP = 0x100000
WS_SIZE = 0x200000
LW_MOD = 0x0000; LW_Q = 0x5000; LW_GU = 0xA000; LW_O = 0xF000; LW_D = 0x1F000; LM = 0x26000
LDS_SIZE = 0x28000
C_MOD, C_Q, C_O, C_D, C_SM, C_PV, C_H2, C_GU, C_GUW, C_PROG = [4 * i for i in range(10)]
L_STAT = 0x40; L_MODRES = 0x100; L_X1 = 0x600; L_SM = 0x800
L_OP = 0x0000; L_H2 = 0x1000; H2S = 1344; L_GUP = 0x5000
LOG2E = 0x3fb8aa3b
SPIN_LIMIT = 1 << 16

def bitrev4(x): return ((x & 1) << 3) | ((x & 2) << 1) | ((x & 4) >> 1) | ((x & 8) >> 3)

class G:
    def __init__(self, stamp=False, WK=3, WV=3, rot=3, rotw=1, qpos=25, prog_t=22):
        self.a = Asm(); self.stamp_on = stamp
        self.WK = WK; self.WV = WV; self.rot = rot; self.rotw = rotw; self.qpos = qpos; self.prog_t = prog_t

    def stamp(self, i):
        if self.stamp_on:
            self.a(f's_memrealtime s[100:101]\ns_waitcnt lgkmcnt(0)\nv_writelane_b32 v15, s100, {i}')

    def stamp_flush(self):
        if self.stamp_on:
            self.a(f'''
            s_mov_b64 exec, 0xffff
            s_mul_i32 s98, s2, 12
            s_add_u32 s98, s98, s3
            s_lshl_b32 s98, s98, 6
            s_add_u32 s98, s98, {WS_STAMP}
            v_lshlrev_b32 v14, 2, v2
            buffer_store_dword v15, v14, s[44:47], s98 offen
            s_waitcnt vmcnt(0)
            ''')

    def srd(self, d, base, size):
        self.a(f's_mov_b32 s{d}, s{base}\ns_mov_b32 s{d+1}, s{base+1}\ns_mov_b32 s{d+2}, {size}\ns_mov_b32 s{d+3}, 0x20000')

    def unpack(self, dst, src):
        self.a(f'v_lshlrev_b32 v{dst}, 16, v{src}\nv_and_b32 v{dst+1}, s84, v{src}')

    def wave_red(self, v, op='add'):
        a = self.a
        for r in (8, 4, 2, 1):
            a(f'v_{op}_f32_dpp v{v}, v{v}, v{v} row_ror:{r} row_mask:0xf bank_mask:0xf')
        a(f'v_{op}_f32_dpp v{v}, v{v}, v{v} row_bcast:15 row_mask:0xa bank_mask:0xf')
        a(f'v_{op}_f32_dpp v{v}, v{v}, v{v} row_bcast:31 row_mask:0xc bank_mask:0xf')

    def bf1(self, v):
        self.a(f'v_cvt_pk_bf16_f32 v{v}, v{v}, v{v}\nv_lshlrev_b32 v{v}, 16, v{v}')

    def ln_stats(self, X, U, T, s_m, s_rs):
        a = self.a
        for i in range(5): self.unpack(U + 2 * i, X + i)
        a(f'v_pk_add_f32 v[{T}:{T+1}], v[{U}:{U+1}], v[{U+2}:{U+3}]')
        a(f'v_pk_add_f32 v[{T+2}:{T+3}], v[{U+4}:{U+5}], v[{U+6}:{U+7}]')
        a(f'v_pk_add_f32 v[{T}:{T+1}], v[{T}:{T+1}], v[{U+8}:{U+9}]')
        a(f'v_pk_add_f32 v[{T}:{T+1}], v[{T}:{T+1}], v[{T+2}:{T+3}]')
        a(f'v_add_f32 v{T}, v{T}, v{T+1}')
        self.wave_red(T)
        a(f'v_mul_f32 v{T}, 0x3acccccd, v{T}')
        a(f'v_readlane_b32 s86, v{T}, 63')
        self.bf1(T)
        a(f'v_readlane_b32 s{s_m}, v{T}, 63')
        for i in range(5):
            a(f'v_pk_add_f32 v[{T+2}:{T+3}], v[{U+2*i}:{U+2*i+1}], s[86:87] op_sel_hi:[1,0] neg_lo:[0,1] neg_hi:[0,1]')
            if i == 0: a(f'v_pk_mul_f32 v[{T}:{T+1}], v[{T+2}:{T+3}], v[{T+2}:{T+3}]')
            else: a(f'v_pk_fma_f32 v[{T}:{T+1}], v[{T+2}:{T+3}], v[{T+2}:{T+3}], v[{T}:{T+1}]')
        a(f'v_add_f32 v{T}, v{T}, v{T+1}')
        self.wave_red(T)
        a(f'v_mul_f32 v{T}, 0x3acccccd, v{T}')
        self.bf1(T)
        a(f'v_add_f32 v{T}, 0x3727c5ac, v{T}')
        self.bf1(T)
        a(f'v_sqrt_f32 v{T}, v{T}')
        self.bf1(T)
        a(f'v_rcp_f32 v{T}, v{T}')
        a(f's_nop 0\nv_readlane_b32 s{s_rs}, v{T}, 63')

    def arrive(self, cnt, last, skip):
        self.a(f'''
        s_waitcnt lgkmcnt(0)
        s_mov_b64 exec, 1
        v_mov_b32 v14, 1
        ds_add_rtn_u32 v14, v13, v14 offset:{cnt}
        s_mov_b64 exec, -1
        s_waitcnt lgkmcnt(0)
        v_readfirstlane_b32 s88, v14
        s_cmp_lg_u32 s88, {last}
        s_cbranch_scc1 {skip}
        ''')

    def signal(self, cnt):
        self.a(f'''
        s_waitcnt lgkmcnt(0)
        s_mov_b64 exec, 1
        v_mov_b32 v14, 1
        ds_add_u32 v13, v14 offset:{cnt}
        s_mov_b64 exec, -1
        ''')

    def lds_wait(self, cnt, target, sleep=0):
        L = self.a.label('L_lw'); D = self.a.label('L_lwd')
        self.a(f'''
        s_mov_b32 s89, {SPIN_LIMIT * 16}
        {L}:
        ds_read_b32 v14, v13 offset:{cnt}
        s_waitcnt lgkmcnt(0)
        v_readfirstlane_b32 s88, v14
        s_cmp_ge_u32 s88, {target}
        s_cbranch_scc1 {D}
        {"s_sleep %d" % sleep if sleep else ""}
        s_sub_u32 s89, s89, 1
        s_cbranch_scc0 {L}
        {D}:
        ''')

    def sum_partials(self, dst, regs):
        a = self.a
        regs = list(regs)
        while len(regs) > 1:
            nxt = []
            for i in range(0, len(regs) - 1, 2):
                x, y = regs[i], regs[i + 1]
                a(f'v_pk_add_f32 v[{x}:{x+1}], v[{x}:{x+1}], v[{y}:{y+1}]')
                a(f'v_pk_add_f32 v[{x+2}:{x+3}], v[{x+2}:{x+3}], v[{y+2}:{y+3}]')
                nxt.append(x)
            if len(regs) & 1: nxt.append(regs[-1])
            regs = nxt
        assert regs[0] == dst

    def pack4(self, d, s):
        self.a(f'v_cvt_pk_bf16_f32 v{d}, v{s}, v{s+1}\nv_cvt_pk_bf16_f32 v{d+1}, v{s+2}, v{s+3}')
    def unpack4(self, d, s):
        self.unpack(d, s); self.unpack(d + 2, s + 1)
    def round4(self, v, t):
        self.pack4(t, v); self.unpack4(v, t)
    def sanitize(self, regs):
        for r in regs: self.a(f'v_min_u32 v{r}, -2, v{r}')

    def prologue(self):
        a = self.a
        a(f'''
        s_cmp_ge_u32 s2, 256
        s_cbranch_scc1 L_end
        s_load_dwordx16 s[16:31], s[0:1], 0
        s_load_dwordx8 s[32:39], s[0:1], 64
        s_load_dwordx4 s[40:43], s[0:1], 96
        v_lshrrev_b32 v1, 6, v0
        v_and_b32 v2, 63, v0
        v_readfirstlane_b32 s3, v1
        v_mov_b32 v13, {LM}
        s_mov_b32 s84, 0xffff0000
        v_mov_b32 v15, 0
        ''')
        self.stamp(0)
        a(f'''
        s_and_b32 s4, s2, 7              ; x
        s_bfe_u32 s5, s2, 0x30003        ; i8
        s_lshr_b32 s6, s2, 6             ; v
        s_lshl_b32 s11, s6, 3
        s_add_u32 s11, s11, s4           ; sigma
        s_sub_u32 s12, s11, 5
        s_lshl_b32 s12, s12, 3
        s_add_u32 s12, s12, s5
        s_lshr_b32 s13, s2, 5            ; b
        s_and_b32 s14, s2, 31            ; h
        s_cmp_lt_u32 s3, 4
        s_cbranch_scc0 L_stream
        ''')

    def control(self):
        a = self.a
        a(f'''
        s_setprio 3
        v_lshl_add_u32 v14, v2, 2, v13
        v_mov_b32 v16, 0
        s_mov_b64 exec, 0xffff
        ds_write_b32 v14, v16
        s_mov_b64 exec, -1
        s_lshl_b32 s9, s4, 1
        s_lshr_b32 s7, 0x11BB, s9
        s_and_b32 s7, s7, 3
        s_bfe_u32 s8, s4, 0x10001
        s_add_u32 s8, s8, 8
        s_lshl_b32 s9, s6, 1
        s_lshr_b32 s10, 0x27, s9
        s_and_b32 s10, s10, 3
        s_cmp_eq_u32 s6, 3
        s_cselect_b32 s7, s7, s10        ; group
        s_cselect_b32 s8, s8, s4         ; line
        s_lshl_b32 s8, s8, 3
        s_add_u32 s8, s8, s5             ; r
        s_cmp_eq_u32 s7, 2
        s_cselect_b32 s9, 3840, 0
        s_cmp_eq_u32 s7, 3
        s_cselect_b32 s9, 2560, s9
        s_movk_i32 s10, 1280
        s_cselect_b32 s10, 3840, s10
        v_lshrrev_b32 v16, 1, v2
        v_and_b32 v17, 1, v2
        v_mul_u32_u24 v3, 7680, v16
        v_mul_lo_u32 v18, s10, v17
        v_add_u32 v3, v3, v18
        v_lshlrev_b32 v4, 13, v16
        v_lshl_add_u32 v4, v17, 4, v4
        v_lshrrev_b32 v16, 4, v2         ; s
        v_bfe_u32 v17, v2, 2, 2          ; r4
        v_and_b32 v18, 3, v2             ; c
        v_lshl_add_u32 v19, v16, 3, v17  ; 8s+r4
        v_lshlrev_b32 v5, 5, v19
        v_lshl_add_u32 v5, v18, 3, v5
        s_mul_i32 s85, s3, 5120
        v_add_u32 v5, s85, v5
        v_lshlrev_b32 v9, 4, v19         ; (8s+r4)*16
        v_lshrrev_b32 v19, 1, v18
        v_lshl_add_u32 v9, v19, 9, v9    ; + (c>>1)*512
        v_and_b32 v19, 1, v18
        v_lshl_add_u32 v9, v19, 3, v9
        v_and_b32 v17, 7, v2
        v_mul_u32_u24 v17, 1280, v17     ; (l&7)*1280
        v_lshl_add_u32 v6, v16, 4, v17
        v_and_b32 v18, 1, v16
        v_lshl_add_u32 v8, v18, 3, v17
        v_lshlrev_b32 v7, 4, v2          ; lane*16
        v_mul_u32_u24 v10, 1280, v2
        v_mul_u32_u24 v11, 3456, v2
        v_lshlrev_b32 v12, 2, v2         ; lane*4
        v_mov_b32 v20, 0
        s_waitcnt lgkmcnt(0)
        ''')
        self.srd(44, 42, WS_SIZE); self.srd(48, 36, 640 * 7680); self.srd(56, 34, 10240)
        a(f'''
        s_mul_i32 s85, s3, 320
        ''')
        for n in range(5):
            a(f'buffer_load_dwordx4 v[{104+4*n}:{107+4*n}], v6, s[56:59], s85 offen offset:{64*n}')
        a(f'''
        s_mul_i32 s85, s3, {5*32*7680}
        s_add_u32 s85, s85, s9
        s_lshl_b32 s86, s8, 4
        s_add_u32 s85, s85, s86
        s_mul_i32 s87, s3, 5120
        ''')
        for n in range(5):
            a(f's_add_u32 m0, s87, {LW_MOD + 1024*n}')
            a(f'buffer_load_dwordx4 v3, s[48:51], s85 offen nt lds')
            if n < 4: a(f's_add_u32 s85, s85, {32*7680}')
        self.srd(60, 16, 10240); self.srd(52, 22, 640 * 8192)
        a(f'''
        buffer_load_dword v136, v20, s[44:47], 0 offen sc1
        s_mul_i32 s85, s3, 2560
        ''')
        for n in range(10):
            a(f'buffer_load_dword v{124+n}, v12, s[60:63], s85 offen offset:{256*n}')
        a(f'''
        buffer_load_dwordx2 v[134:135], v8, s[60:63], s86 offen
        s_mul_i32 s85, s3, {5*32*8192}
        s_lshl_b32 s88, s14, 8
        s_add_u32 s85, s85, s88
        s_lshl_b32 s88, s13, 5
        s_add_u32 s85, s85, s88
        ''')
        for n in range(5):
            a(f's_add_u32 m0, s87, {LW_Q + 1024*n}')
            a(f'buffer_load_dwordx4 v4, s[52:55], s85 offen nt lds')
            if n < 4: a(f's_add_u32 s85, s85, {32*8192}')
        a(f'''
        s_cmp_lg_u32 s7, 1
        s_cbranch_scc1 L_noclear
        s_cmp_ge_u32 s3, 3
        s_cbranch_scc1 L_noclear
        s_mul_i32 s85, s8, 3
        s_add_u32 s85, s85, s3
        s_lshl_b32 s85, s85, 10
        s_add_u32 s85, s85, {SB}
        v_mov_b32 v36, -1
        v_mov_b32 v37, -1
        v_mov_b32 v38, -1
        v_mov_b32 v39, -1
        buffer_store_dwordx4 v[36:39], v7, s[44:47], s85 offen sc1
        L_noclear:
        s_barrier
        s_waitcnt vmcnt(22)
        ''')
        self.stamp(1)
        a(f's_mov_b32 s85, {LOG2E | 0x80000000}')
        for n in range(5):
            b = 104 + 4 * n
            for i in range(4): self.unpack(20 + 2 * i, b + i)
            for i in range(8): a(f'v_mul_f32 v{28+i}, s85, v{20+i}')
            for i in range(8): a(f'v_exp_f32 v{28+i}, v{28+i}')
            for i in range(8): a(f'v_add_f32 v{28+i}, 1.0, v{28+i}')
            for i in range(8): a(f'v_rcp_f32 v{28+i}, v{28+i}')
            for i in range(8): a(f'v_mul_f32 v{20+i}, v{20+i}, v{28+i}')
            for i in range(4): a(f'v_cvt_pk_bf16_f32 v{b+i}, v{20+2*i}, v{21+2*i}')
        a('s_waitcnt vmcnt(17)')
        self.stamp(2)
        for n in range(5):
            a(f'ds_read_b64_tr_b16 v[{40+4*n}:{41+4*n}], v5 offset:{LW_MOD + 1024*n}')
            a(f'ds_read_b64_tr_b16 v[{42+4*n}:{43+4*n}], v5 offset:{LW_MOD + 1024*n + 128}')
        a('s_waitcnt lgkmcnt(0)')
        for n in range(5):
            a(f'v_mfma_f32_16x16x32_bf16 v[16:19], v[{40+4*n}:{43+4*n}], v[{104+4*n}:{107+4*n}], {"0" if n == 0 else "v[16:19]"}')
        a(f'''
        v_add_u32 v21, s87, v7
        s_waitcnt vmcnt(5)
        s_cmp_lg_u32 s7, 1
        s_cbranch_scc1 L_nostat
        ''')
        for rr in range(2):
            self.ln_stats(124 + 5 * rr, 24, 36, 90, 92)
            a(f'''
            v_mov_b32 v36, s90
            v_mov_b32 v37, s92
            s_lshl_b32 s85, s3, 4
            v_add_u32 v38, s85, v13
            ds_write_b64 v38, v[36:37] offset:{L_STAT + 8*rr}
            ''')
        a(f'''
        L_nostat:
        s_nop 7
        ds_write_b128 v21, v[16:19] offset:{LW_MOD}
        ; tag = E*1664525 + 1013904223
        s_mov_b32 s85, 1664525
        v_mul_lo_u32 v136, s85, v136
        v_add_u32 v136, 1013904223, v136
        s_nop 0
        v_readfirstlane_b32 s94, v136
        s_waitcnt vmcnt(0)
        ''')
        for n in range(5):
            a(f'ds_read_b64_tr_b16 v[{60+4*n}:{61+4*n}], v5 offset:{LW_Q + 1024*n}')
            a(f'ds_read_b64_tr_b16 v[{62+4*n}:{63+4*n}], v5 offset:{LW_Q + 1024*n + 128}')
        self.arrive(C_MOD, 3, 'L_mod_done')
        for w in range(4):
            a(f'ds_read_b128 v[{104+4*w}:{107+4*w}], v7 offset:{LW_MOD + 5120*w}')
            a(f'ds_read_b128 v[{140+4*w}:{143+4*w}], v7 offset:{LW_MOD + 5120*w + 512}')
        a(f'''
        v_and_b32 v22, 7, v2
        v_lshl_add_u32 v22, v22, 3, v13
        ds_read_b64 v[36:37], v22 offset:{L_STAT}
        v_add_u32 v23, v13, v7
        s_waitcnt lgkmcnt(0)
        ''')
        self.sum_partials(104, [104, 108, 112, 116]); self.sum_partials(140, [140, 144, 148, 152])
        self.pack4(24, 104); self.pack4(26, 140)
        a('s_cmp_eq_u32 s7, 3\ns_cbranch_scc1 L_modres')
        self.unpack4(140, 26)
        a('v_pk_add_f32 v[140:141], v[140:141], 1.0 op_sel_hi:[1,0]\nv_pk_add_f32 v[142:143], v[142:143], 1.0 op_sel_hi:[1,0]')
        self.pack4(26, 140)
        a('s_cmp_eq_u32 s7, 1\ns_cbranch_scc1 L_g1epi')
        a(f'''
        L_modres:
        s_mov_b32 exec_hi, 0
        ds_write_b128 v23, v[24:27] offset:{L_MODRES}
        s_mov_b64 exec, -1
        s_branch L_mod_done
        L_g1epi:
        ''')
        self.unpack4(140, 26)
        self.unpack4(104, 24)
        self.unpack4(108, 134)
        for i in range(4): a(f'v_sub_f32 v{108+i}, v{108+i}, v36')
        self.round4(108, 28)
        for i in range(4): a(f'v_mul_f32 v{108+i}, v{108+i}, v37')
        self.round4(108, 28)
        a('v_pk_mul_f32 v[108:109], v[108:109], v[140:141]\nv_pk_mul_f32 v[110:111], v[110:111], v[142:143]')
        self.round4(108, 28)
        a('v_pk_add_f32 v[108:109], v[108:109], v[104:105]\nv_pk_add_f32 v[110:111], v[110:111], v[106:107]')
        a(f'''
        v_cvt_pk_bf16_f32 v28, v108, v109
        v_cvt_pk_bf16_f32 v30, v110, v111
        v_mov_b32 v29, s94
        v_mov_b32 v31, s94
        v_and_b32 v22, 7, v2
        v_lshlrev_b32 v22, 4, v22
        v_lshrrev_b32 v23, 4, v2
        v_lshl_add_u32 v22, v23, 7, v22         ; (s'*8+b)*16
        s_lshl_b32 s85, s8, 8
        s_add_u32 s85, s85, {WS_H1}
        s_mov_b64 exec, 0x00ff00ff
        buffer_store_dwordx4 v[28:31], v22, s[44:47], s85 offen sc1
        s_mov_b64 exec, -1
        L_mod_done:
        ''')
        self.stamp(3)
        a(f'''
        s_add_u32 s85, s87, {WS_H1}
        s_add_u32 s86, s85, 4096
        s_mov_b32 s89, {SPIN_LIMIT}
        L_h1_poll:
        ''')
        for n in range(5):
            if n < 4: a(f'buffer_load_dwordx4 v[{104+4*n}:{107+4*n}], v7, s[44:47], s85 offen offset:{1024*n} sc1')
            else: a(f'buffer_load_dwordx4 v[{104+4*n}:{107+4*n}], v7, s[44:47], s86 offen sc1')
        a('s_waitcnt vmcnt(0)')
        for n in range(5):
            b = 104 + 4 * n
            a(f'v_xor_b32 v20, s94, v{b+1}\nv_xor_b32 v21, s94, v{b+3}')
            a(f'v_or_b32 v22, v20, v21' if n == 0 else f'v_or3_b32 v22, v22, v20, v21')
        a(f'''
        v_cmp_ne_u32 vcc, 0, v22
        s_cbranch_vccz L_h1_ok
        s_sleep 4
        s_sub_u32 s89, s89, 1
        s_cbranch_scc0 L_h1_poll
        L_h1_ok:
        ''')
        self.stamp(4)
        for n in range(5):
            b = 104 + 4 * n
            a(f'v_mov_b32_dpp v{b+3}, v{b+2} row_ror:8 row_mask:0xf bank_mask:0xf')
            a(f'v_mov_b32 v{b+1}, v{b+2}')
            a(f'v_mov_b32_dpp v{b+2}, v{b} row_ror:8 row_mask:0xf bank_mask:0xf')
        for n in range(5):
            a(f'v_mfma_f32_16x16x32_bf16 v[16:19], v[{60+4*n}:{63+4*n}], v[{104+4*n}:{107+4*n}], {"0" if n == 0 else "v[16:19]"}')
        a(f'v_add_u32 v21, s87, v7\nds_write_b128 v21, v[16:19] offset:{LW_Q}')
        self.arrive(C_Q, 3, 'L_q_done')
        for w in range(4):
            a(f'ds_read_b128 v[{104+4*w}:{107+4*w}], v7 offset:{LW_Q + 5120*w}')
        a(f'''
        v_add_u32 v23, v13, v7
        ds_read_b128 v[24:27], v23 offset:{L_MODRES}
        v_and_b32 v22, 7, v2
        v_lshlrev_b32 v22, 13, v22              ; b'*32*256
        v_lshrrev_b32 v23, 4, v2
        v_lshl_add_u32 v22, v23, 3, v22         ; + s'*8
        s_lshl_b32 s85, s14, 8
        s_lshl_b32 s86, s13, 5
        s_add_u32 s85, s85, s86
        s_add_u32 s85, s85, {WS_Q}
        s_waitcnt lgkmcnt(0)
        ''')
        self.sum_partials(104, [104, 108, 112, 116])
        self.pack4(28, 104); self.sanitize([28, 29])
        a(f'''
        s_mov_b32 exec_lo, 0x00ff00ff
        s_mov_b32 exec_hi, 0x00ff00ff
        buffer_store_dwordx2 v[28:29], v22, s[44:47], s85 offen sc1
        s_mov_b64 exec, -1
        s_cmp_lg_u32 s7, 2
        s_cbranch_scc1 L_q_done
        ''')
        self.sanitize([24, 25, 26, 27])
        a(f'''
        s_lshl_b32 s85, s8, 4
        s_add_u32 s85, s85, {WS_SC}
        s_add_u32 s86, s85, 10240
        s_mov_b64 exec, 0x00ff00ff
        buffer_store_dwordx2 v[26:27], v8, s[44:47], s85 offen sc1
        buffer_store_dwordx2 v[24:25], v8, s[44:47], s86 offen sc1
        s_mov_b64 exec, -1
        L_q_done:
        ''')
        self.stamp(5)
        a(f'''
        s_cmp_lt_u32 s11, 5
        s_cbranch_scc1 L_nogu
        s_cmp_lt_u32 s3, 2
        s_cselect_b32 s64, s28, s30
        s_cselect_b32 s65, s29, s31
        s_mov_b32 s66, {640*3456}
        s_mov_b32 s67, 0x20000
        s_and_b32 s86, s3, 1
        s_mul_i32 s85, s86, {5*64*3456}
        s_lshl_b32 s88, s12, 4
        s_add_u32 s85, s85, s88
        s_mul_i32 s86, s86, {5*2048}
        s_lshr_b32 s88, s3, 1
        s_lshl_b32 s88, s88, 10
        s_add_u32 s86, s86, s88
        ''')
        for n in range(5):
            a(f's_add_u32 m0, s86, {LW_GU + 2048*n}')
            a(f'buffer_load_dwordx4 v11, s[64:67], s85 offen nt lds')
            if n < 4: a(f's_add_u32 s85, s85, {64*3456}')
        a('s_waitcnt vmcnt(0)')
        self.signal(C_GUW)
        a(f'''
        L_nogu:
        s_cmp_lg_u32 s7, 3
        s_cbranch_scc1 L_ctrl_end
        ''')
        self.srd(68, 24, 4096 * 1280); self.srd(72, 32, 1728 * 1280); self.srd(80, 38, 10240)
        a(f'''
        s_add_u32 s76, s42, {WS_HID}
        s_addc_u32 s77, s43, 0
        s_mov_b32 s78, {27*1024}
        s_mov_b32 s79, 0x20000
        s_lshl_b32 s88, s8, 4
        s_mul_i32 s85, s3, {16*64*1280}
        s_add_u32 s85, s85, s88
        s_lshl_b32 s86, s3, 14
        ''')
        for n in range(16):
            a(f's_add_u32 m0, s86, {LW_O + 1024*n}')
            a(f'buffer_load_dwordx4 v10, s[68:71], s85 offen nt lds')
            a(f's_add_u32 s85, s85, {64*1280}')
            if n >= 1: a('s_waitcnt vmcnt(1)')
        a(f'''
        s_mul_i32 s85, s3, {7*64*1280}
        s_add_u32 s85, s85, s88
        s_mul_i32 s87, s3, 7168
        ''')
        for n in range(7):
            a(f's_add_u32 m0, s87, {LW_D + 1024*n}')
            a(f'buffer_load_dwordx4 v10, s[72:75], s85 offen nt lds')
            a(f's_add_u32 s85, s85, {64*1280}')
            a('s_waitcnt vmcnt(1)')
        a(f'''
        s_waitcnt vmcnt(0)
        v_add_u32 v5, s86, v9
        v_add_u32 v5, {LW_O}, v5
        ''')
        for n in range(16):
            a(f'ds_read_b64_tr_b16 v[{40+4*n}:{41+4*n}], v5 offset:{1024*n}')
            a(f'ds_read_b64_tr_b16 v[{42+4*n}:{43+4*n}], v5 offset:{1024*n + 64}')
            if n % 4 == 3: a('s_waitcnt lgkmcnt(0)')
        a(f'''
        v_mov_b32 v16, 0
        v_mov_b32 v17, 0
        v_mov_b32 v18, 0
        v_mov_b32 v19, 0
        v_mov_b32 v32, v134
        v_mov_b32 v33, v135
        v_add_u32 v4, s86, v7
        v_add_u32 v3, {WS_O}, v4
        v_add_u32 v4, {LW_O}, v4
        v_add_u32 v6, {LW_O}, v7
        v_add_u32 v12, v13, v7
        ''')
        self.stamp(6)
        self.lds_wait(C_PROG, 1, sleep=8)
        self.stamp(7)
        a(f'''
        s_mov_b32 s90, 0xff
        s_mov_b32 s89, {SPIN_LIMIT}
        L_o_poll:
        ''')
        for g in range(8):
            a(f's_bitcmp1_b32 s90, {g}\ns_cbranch_scc0 L_o_sk{g}')
            a(f's_mov_b32 s85, {2048*g}')
            a(f'buffer_load_dwordx4 v[{104+8*g}:{107+8*g}], v3, s[44:47], s85 offen sc1')
            a(f'buffer_load_dwordx4 v[{108+8*g}:{111+8*g}], v3, s[44:47], s85 offen offset:1024 sc1')
            a(f'L_o_sk{g}:')
        a('s_waitcnt vmcnt(0)')
        for g in range(8):
            b = 104 + 8 * g
            a(f'''
            s_bitcmp1_b32 s90, {g}
            s_cbranch_scc0 L_o_ck{g}
            v_max3_u32 v20, v{b}, v{b+1}, v{b+2}
            v_max3_u32 v21, v{b+3}, v{b+4}, v{b+5}
            v_max3_u32 v20, v20, v{b+6}, v{b+7}
            v_max_u32 v20, v20, v21
            v_cmp_eq_u32 vcc, -1, v20
            s_cbranch_vccnz L_o_ck{g}
            s_bitset0_b32 s90, {g}
            v_mfma_f32_16x16x32_bf16 v[16:19], v[{40+8*g}:{43+8*g}], v[{b}:{b+3}], v[16:19]
            v_mfma_f32_16x16x32_bf16 v[16:19], v[{44+8*g}:{47+8*g}], v[{b+4}:{b+7}], v[16:19]
            L_o_ck{g}:
            ''')
        a(f'''
        s_cmp_eq_u32 s90, 0
        s_cbranch_scc1 L_o_ok
        s_sleep 2
        s_sub_u32 s89, s89, 1
        s_cbranch_scc0 L_o_poll
        L_o_ok:
        s_nop 7
        ds_write_b128 v4, v[16:19]
        ''')
        self.stamp(8)
        self.arrive(C_O, 3, 'L_o_done')
        for w in range(4):
            a(f'ds_read_b128 v[{104+8*w}:{107+8*w}], v6 offset:{16384*w}')
            a(f'ds_read_b128 v[{108+8*w}:{111+8*w}], v6 offset:{16384*w + 640}')
        a(f'ds_read_b128 v[24:27], v12 offset:{L_MODRES}')
        self.unpack4(140, 32)
        a(f'''
        s_lshl_b32 s85, s8, 4
        s_add_u32 s85, s85, {WS_X1}
        s_waitcnt lgkmcnt(0)
        ''')
        self.sum_partials(104, [104 + 4 * i for i in range(8)])
        self.unpack4(144, 24)
        self.round4(104, 28)
        a('v_pk_mul_f32 v[104:105], v[104:105], v[144:145]\nv_pk_mul_f32 v[106:107], v[106:107], v[146:147]')
        self.round4(104, 28)
        a('v_pk_add_f32 v[104:105], v[104:105], v[140:141]\nv_pk_add_f32 v[106:107], v[106:107], v[142:143]')
        self.pack4(28, 104); self.sanitize([28, 29])
        a(f'''
        s_mov_b64 exec, 0x00ff00ff
        buffer_store_dwordx2 v[28:29], v8, s[44:47], s85 offen sc1
        ds_write_b64 v12, v[28:29] offset:{L_X1}
        s_mov_b64 exec, -1
        L_o_done:
        ''')
        self.stamp(9)
        a(f'''
        v_add_u32 v5, s87, v9
        v_add_u32 v5, {LW_D}, v5
        ''')
        for n in range(7):
            a(f'ds_read_b64_tr_b16 v[{40+4*n}:{41+4*n}], v5 offset:{1024*n}')
            a(f'ds_read_b64_tr_b16 v[{42+4*n}:{43+4*n}], v5 offset:{1024*n + 64}')
        a(f'''
        v_add_u32 v3, s87, v7
        v_add_u32 v4, {LW_D}, v3
        v_add_u32 v6, {LW_D}, v7
        s_mov_b32 s85, 4096
        s_mov_b32 s89, {SPIN_LIMIT}
        L_hid_poll:
        ''')
        for n in range(7):
            if n < 4: a(f'buffer_load_dwordx4 v[{104+4*n}:{107+4*n}], v3, s[76:79], 0 offen offset:{1024*n} sc1')
            else: a(f'buffer_load_dwordx4 v[{104+4*n}:{107+4*n}], v3, s[76:79], s85 offen offset:{1024*(n-4)} sc1')
        a('s_waitcnt vmcnt(0)')
        a('v_max_u32 v20, v104, v105')
        for i in range(106, 132, 2): a(f'v_max3_u32 v20, v20, v{i}, v{i+1}')
        a(f'''
        v_cmp_eq_u32 vcc, -1, v20
        s_cbranch_vccz L_hid_ok
        s_sleep 1
        s_sub_u32 s89, s89, 1
        s_cbranch_scc0 L_hid_poll
        L_hid_ok:
        s_waitcnt lgkmcnt(0)
        ''')
        self.stamp(10)
        for n in range(7):
            a(f'v_mfma_f32_16x16x32_bf16 v[16:19], v[{40+4*n}:{43+4*n}], v[{104+4*n}:{107+4*n}], {"0" if n == 0 else "v[16:19]"}')
        a('ds_write_b128 v4, v[16:19]')
        self.arrive(C_D, 3, 'L_ctrl_end')
        for w in range(4):
            a(f'ds_read_b128 v[{104+8*w}:{107+8*w}], v6 offset:{7168*w}')
            a(f'ds_read_b128 v[{108+8*w}:{111+8*w}], v6 offset:{7168*w + 640}')
        a(f'''
        ds_read_b128 v[24:27], v12 offset:{L_MODRES}
        ds_read_b64 v[32:33], v12 offset:{L_X1}
        s_lshl_b32 s85, s8, 4
        s_waitcnt lgkmcnt(0)
        ''')
        self.sum_partials(104, [104 + 4 * i for i in range(8)])
        self.unpack4(144, 26)
        self.unpack4(140, 32)
        self.round4(104, 28)
        a('v_pk_mul_f32 v[104:105], v[104:105], v[144:145]\nv_pk_mul_f32 v[106:107], v[106:107], v[146:147]')
        self.round4(104, 28)
        a('v_pk_add_f32 v[104:105], v[104:105], v[140:141]\nv_pk_add_f32 v[106:107], v[106:107], v[142:143]')
        self.pack4(28, 104)
        a(f'''
        s_mov_b64 exec, 0x00ff00ff
        buffer_store_dwordx2 v[28:29], v8, s[80:83], s85 offen
        s_cmp_lg_u32 s8, 0
        s_cbranch_scc1 L_noepoch
        s_mov_b64 exec, 1
        v_mov_b32 v20, 0
        v_mov_b32 v21, s94
        buffer_store_dword v21, v20, s[44:47], 0 offen sc1
        L_noepoch:
        s_mov_b64 exec, -1
        L_ctrl_end:
        ''')
        self.stamp(11)
        self.stamp_flush()
        a('s_endpgm')

    def stream(self):
        a = self.a
        WK, WV = self.WK, self.WV
        KV = lambda t: 40 + 4 * t
        a(f'''
        L_stream:
        s_sub_u32 s15, s3, 4             ; sw
        v_lshlrev_b32 v7, 4, v2          ; lane*16
        s_lshl_b32 s85, s15, 15
        v_add_u32 v1, s85, v7
        s_mul_i32 s91, s2, {self.rot}
        s_mul_i32 s85, s15, {self.rotw}
        s_add_u32 s91, s91, s85
        s_and_b32 s91, s91, 31
        s_lshl_b32 s91, s91, 10          ; rotation
        s_lshl_b32 s85, s2, 20
        s_add_u32 s85, s85, 0xC0000
        s_waitcnt lgkmcnt(0)
        s_add_u32 s48, s18, s85
        s_addc_u32 s49, s19, 0
        s_mov_b32 s50, 0x40000
        s_mov_b32 s51, 0x20000
        s_add_u32 s52, s20, s85
        s_addc_u32 s53, s21, 0
        s_mov_b32 s54, 0x40000
        s_mov_b32 s55, 0x20000
        ''')
        self.srd(44, 42, WS_SIZE)
        def ld(t, srd):
            a(f's_add_u32 s92, s91, {t*1024}\ns_and_b32 s92, s92, 0x7fff')
            a(f'buffer_load_dwordx4 v[{KV(t)}:{KV(t)+3}], v1, {srd}, s92 offen nt')
        for t in range(32):
            if t >= WK: a(f's_waitcnt vmcnt({WK-1})')
            ld(t, 's[48:51]')
            if t == WK - 1:
                a(f'''
                v_and_b32 v3, 15, v2
                v_lshlrev_b32 v12, 4, v3             ; Q voffset
                s_lshl_b32 s93, s2, 8
                s_add_u32 s93, s93, {WS_Q}
                v_mov_b32 v16, 0xffff
                v_mov_b32 v17, s84
                ''')
                for r in range(4):
                    a(f'''
                    v_cmp_eq_u32 vcc, {2*r}, v3
                    v_cndmask_b32 v{8+r}, 0, v16, vcc
                    v_cmp_eq_u32 vcc, {2*r+1}, v3
                    v_cndmask_b32 v{8+r}, v{8+r}, v17, vcc
                    ''')
                a(f'''
                s_mov_b32 s94, 0xcccccccc
                s_mov_b32 s95, 0xcccccccc
                s_mov_b32 s96, 0xaaaaaaaa
                s_mov_b32 s97, 0xaaaaaaaa
                s_barrier
                ''')
            if t == self.qpos:
                a(f'buffer_load_dwordx4 v[4:7], v12, s[44:47], s93 offen sc1')
        self.stamp(1)
        a(f'''
        s_waitcnt vmcnt({min(31 - self.qpos, WK)})
        s_mov_b32 s89, {SPIN_LIMIT}
        L_q_chk:
        v_max3_u32 v20, v4, v5, v6
        v_max_u32 v20, v20, v7
        v_cmp_eq_u32 vcc, -1, v20
        s_cbranch_vccz L_q_ok
        s_sleep 4
        buffer_load_dwordx4 v[4:7], v12, s[44:47], s93 offen sc1
        s_waitcnt vmcnt(0)
        s_sub_u32 s89, s89, 1
        s_cbranch_scc0 L_q_chk
        L_q_ok:
        ''')
        self.stamp(2)
        D = 20
        for g in range(8):
            a(f's_waitcnt vmcnt({31 - (4*g+3) + g})')
            for i in range(4):
                for k in range(4):
                    t = 4 * g + k
                    a(f'v_dot2_f32_bf16 v{D+k}, v{KV(t)+i}, v{4+i}, {"0" if i == 0 else "v%d" % (D+k)}')
            ld(g, 's[52:55]')
            a(f'v_add_f32_dpp v24, v{D}, v{D} row_ror:8 row_mask:0xf bank_mask:0x3')
            a(f'v_add_f32_dpp v25, v{D+2}, v{D+2} row_ror:8 row_mask:0xf bank_mask:0x3')
            a(f'v_add_f32_dpp v24, v{D+1}, v{D+1} row_ror:8 row_mask:0xf bank_mask:0xc')
            a(f'v_add_f32_dpp v25, v{D+3}, v{D+3} row_ror:8 row_mask:0xf bank_mask:0xc')
            r2 = 26 + (g & 1)
            a(f'v_add_f32_dpp v{r2}, v24, v24 row_shl:4 row_mask:0xf bank_mask:0x5')
            a(f'v_add_f32_dpp v{r2}, v25, v25 row_shr:4 row_mask:0xf bank_mask:0xa')
            if g & 1:
                r3 = 28 + ((g >> 1) & 1)
                a(f'v_add_f32_dpp v30, v26, v26 quad_perm:[2,3,0,1] row_mask:0xf bank_mask:0xf')
                a(f'v_add_f32_dpp v31, v27, v27 quad_perm:[2,3,0,1] row_mask:0xf bank_mask:0xf')
                a(f'v_cndmask_b32 v{r3}, v30, v31, s[94:95]')
            if (g & 3) == 3:
                a(f'v_add_f32_dpp v30, v28, v28 quad_perm:[1,0,3,2] row_mask:0xf bank_mask:0xf')
                a(f'v_add_f32_dpp v31, v29, v29 quad_perm:[1,0,3,2] row_mask:0xf bank_mask:0xf')
                a(f'v_cndmask_b32 v{32 + (g >> 2)}, v30, v31, s[96:97]')
        a(f'''
        v_cvt_pk_bf16_f32 v20, v32, v33
        s_mov_b32 s86, 0x3db504f3
        ''')
        self.unpack(32, 20)
        a('v_pk_mul_f32 v[32:33], v[32:33], s[86:87] op_sel_hi:[1,0]\nv_cvt_pk_bf16_f32 v20, v32, v33')
        self.unpack(32, 20)
        a('v_max_f32 v20, v32, v33')
        self.wave_red(20, 'max')
        a(f'''
        v_readlane_b32 s86, v20, 63              ; m_w
        s_mov_b32 s90, {LOG2E}
        v_subrev_f32 v20, s86, v32
        v_subrev_f32 v21, s86, v33
        v_mul_f32 v20, s90, v20
        v_mul_f32 v21, s90, v21
        v_exp_f32 v20, v20
        v_exp_f32 v21, v21
        v_add_f32 v21, v20, v21
        ''')
        self.wave_red(21)
        a(f'''
        v_mov_b32 v20, s86
        s_lshl_b32 s85, s15, 3
        v_add_u32 v22, s85, v13
        s_mov_b32 exec_lo, 0
        s_mov_b32 exec_hi, 0x80000000
        ds_write_b64 v22, v[20:21] offset:{L_SM}
        s_mov_b64 exec, -1
        ''')
        self.stamp(3)
        self.signal(C_SM)
        self.lds_wait(C_SM, 8)
        self.stamp(4)
        a(f'''
        v_and_b32 v22, 7, v2
        v_lshl_add_u32 v22, v22, 3, v13
        ds_read_b64 v[20:21], v22 offset:{L_SM}
        s_waitcnt lgkmcnt(0)
        v_max_f32_dpp v22, v20, v20 row_ror:4 row_mask:0xf bank_mask:0xf
        v_max_f32_dpp v22, v22, v22 row_ror:2 row_mask:0xf bank_mask:0xf
        v_max_f32_dpp v22, v22, v22 row_ror:1 row_mask:0xf bank_mask:0xf
        v_sub_f32 v20, v20, v22
        v_mul_f32 v20, s90, v20
        v_exp_f32 v20, v20
        v_sub_f32 v32, v32, v22
        v_sub_f32 v33, v33, v22
        v_mul_f32 v21, v21, v20
        v_mul_f32 v32, s90, v32
        v_mul_f32 v33, s90, v33
        v_add_f32_dpp v21, v21, v21 row_ror:4 row_mask:0xf bank_mask:0xf
        v_exp_f32 v32, v32
        v_exp_f32 v33, v33
        v_add_f32_dpp v21, v21, v21 row_ror:2 row_mask:0xf bank_mask:0xf
        v_add_f32_dpp v21, v21, v21 row_ror:1 row_mask:0xf bank_mask:0xf
        v_rcp_f32 v21, v21
        v_mul_f32 v32, v32, v21
        v_mul_f32 v33, v33, v21
        v_cvt_pk_bf16_f32 v32, v32, v32
        v_cvt_pk_bf16_f32 v33, v33, v33
        ''')
        issued = 8
        extra = 0
        for t in range(32):
            A = 20 + 4 * (t & 1)
            for r in range(4):
                a(f'v_and_b32_dpp v{A+r}, v{32 + (t >> 4)}, v{8+r} row_newbcast:{bitrev4(t & 15)} row_mask:0xf bank_mask:0xf')
            a(f's_waitcnt vmcnt({issued - t - 1 + extra})')
            a(f'v_mfma_f32_16x16x32_bf16 v[16:19], v[{A}:{A+3}], v[{KV(t)}:{KV(t)+3}], {"0" if t == 0 else "v[16:19]"}')
            if t + WV >= issued and issued < 32:
                ld(issued, 's[52:55]'); issued += 1
                if issued == 32:
                    a(f'''
                    v_lshlrev_b32 v12, 2, v2
                    s_mul_i32 s93, s15, 1280
                    s_add_u32 s85, s93, {WS_SC}
                    s_add_u32 s86, s85, 10240
                    ''')
                    for n in range(5): a(f'buffer_load_dword v{40+n}, v12, s[44:47], s85 offen offset:{256*n} sc1')
                    for n in range(5): a(f'buffer_load_dword v{45+n}, v12, s[44:47], s86 offen offset:{256*n} sc1')
                    extra = 10
            if t == self.prog_t:
                self.signal(C_PROG)
        a(f'''
        v_lshlrev_b32 v7, 4, v2
        s_lshl_b32 s87, s15, 9
        v_add_u32 v22, s87, v7
        s_mov_b32 exec_hi, 0
        ds_write_b128 v22, v[16:19] offset:{L_OP}
        s_mov_b64 exec, -1
        ''')
        self.stamp(5)
        self.arrive(C_PV, 7, 'L_pv_done')
        for w in range(8):
            a(f'ds_read_b128 v[{64+4*w}:{67+4*w}], v7 offset:{L_OP + 512*w}')
        a(f'''
        ; O address: (j>>3)*1024 + (8*((j>>2)&1) + 16*(j&3))*16 + s'*8 ; + h*2048 + b*16
        v_bfe_u32 v22, v2, 3, 1
        v_lshlrev_b32 v22, 10, v22
        v_bfe_u32 v23, v2, 2, 1
        v_lshl_add_u32 v22, v23, 7, v22
        v_and_b32 v23, 3, v2
        v_lshl_add_u32 v22, v23, 8, v22
        v_bfe_u32 v23, v2, 4, 1
        v_lshl_add_u32 v22, v23, 3, v22
        s_lshl_b32 s87, s14, 11
        s_lshl_b32 s88, s13, 4
        s_add_u32 s87, s87, s88
        s_add_u32 s87, s87, {WS_O}
        s_waitcnt lgkmcnt(0)
        ''')
        self.sum_partials(64, [64 + 4 * i for i in range(8)])
        self.pack4(28, 64); self.sanitize([28, 29])
        a(f'''
        s_mov_b32 exec_hi, 0
        buffer_store_dwordx2 v[28:29], v22, s[44:47], s87 offen sc1
        s_mov_b64 exec, -1
        L_pv_done:
        ''')
        self.stamp(6)
        a(f'''
        s_cmp_lt_u32 s11, 5
        s_cbranch_scc1 L_stream_end
        ''')
        self.lds_wait(C_GUW, 4, sleep=1)
        a(f'''
        v_lshrrev_b32 v16, 4, v2         ; s
        v_bfe_u32 v17, v2, 2, 2          ; r4
        v_lshl_add_u32 v19, v16, 3, v17
        v_lshlrev_b32 v9, 4, v19
        v_bfe_u32 v19, v2, 1, 1
        v_lshl_add_u32 v9, v19, 10, v9
        v_and_b32 v19, 1, v2
        v_lshl_add_u32 v9, v19, 3, v9
        s_lshr_b32 s87, s15, 1
        s_lshl_b32 s87, s87, 11
        s_and_b32 s88, s15, 1
        s_lshl_b32 s88, s88, 9
        s_add_u32 s87, s87, s88
        s_add_u32 s87, s87, {LW_GU}
        v_add_u32 v9, s87, v9
        ''')
        for n in range(3):
            a(f'ds_read_b64_tr_b16 v[{52+4*n}:{53+4*n}], v9 offset:{8192*n}')
            a(f'ds_read_b64_tr_b16 v[{54+4*n}:{55+4*n}], v9 offset:{8192*n + 64}')
        a(f'''
        s_mov_b32 s89, {SPIN_LIMIT}
        L_sc_chk:
        s_waitcnt vmcnt(0)
        v_max_u32 v20, v40, v41
        ''')
        for i in range(42, 50, 2): a(f'v_max3_u32 v20, v20, v{i}, v{i+1}')
        a(f'''
        v_cmp_eq_u32 vcc, -1, v20
        s_cbranch_vccz L_sc_ok
        s_sleep 4
        ''')
        for n in range(5): a(f'buffer_load_dword v{40+n}, v12, s[44:47], s85 offen offset:{256*n} sc1')
        for n in range(5): a(f'buffer_load_dword v{45+n}, v12, s[44:47], s86 offen offset:{256*n} sc1')
        a(f'''
        s_sub_u32 s89, s89, 1
        s_cbranch_scc0 L_sc_chk
        L_sc_ok:
        ''')
        for n in range(10): self.unpack(100 + 2 * n, 40 + n)
        a(f'''
        s_add_u32 s85, s93, {WS_X1}
        s_mul_i32 s87, s15, {H2S}
        v_add_u32 v10, s87, v12
        v_and_b32 v19, 7, v2
        v_mul_u32_u24 v11, {H2S}, v19
        v_lshl_add_u32 v11, v16, 4, v11
        s_lshl_b32 s87, s15, 6
        v_add_u32 v11, s87, v11
        s_lshl_b32 s87, s15, 10
        v_add_u32 v8, s87, v7
        v_lshlrev_b32 v6, 4, v19
        v_lshl_add_u32 v6, v16, 3, v6
        s_lshr_b32 s92, s12, 3
        s_lshl_b32 s92, s92, 10
        s_bfe_u32 s87, s12, 0x10002
        s_lshl_b32 s87, s87, 7
        s_add_u32 s92, s92, s87
        s_and_b32 s87, s12, 3
        s_lshl_b32 s87, s87, 8
        s_add_u32 s92, s92, s87
        s_add_u32 s92, s92, {WS_HID}
        s_mov_b32 s89, {SPIN_LIMIT}
        ''')
        self.stamp(7)
        a('L_x1_poll:')
        for n in range(5): a(f'buffer_load_dword v{64+n}, v12, s[44:47], s85 offen offset:{256*n} sc1')
        a(f'''
        s_waitcnt vmcnt(0)
        v_max3_u32 v20, v64, v65, v66
        v_max3_u32 v20, v20, v67, v68
        v_cmp_eq_u32 vcc, -1, v20
        s_cbranch_vccz L_x1_ok
        s_sleep 2
        s_sub_u32 s89, s89, 1
        s_cbranch_scc0 L_x1_poll
        L_x1_ok:
        ''')
        self.stamp(8)
        self.ln_stats(64, 70, 80, 94, 96)
        U = 70
        for i in range(5): a(f'v_pk_add_f32 v[{U+2*i}:{U+2*i+1}], v[{U+2*i}:{U+2*i+1}], s[94:95] op_sel_hi:[1,0] neg_lo:[0,1] neg_hi:[0,1]')
        def rnd():
            for i in range(5): a(f'v_cvt_pk_bf16_f32 v{64+i}, v{U+2*i}, v{U+2*i+1}')
            for i in range(5): self.unpack(U + 2 * i, 64 + i)
        rnd()
        for i in range(5): a(f'v_pk_mul_f32 v[{U+2*i}:{U+2*i+1}], v[{U+2*i}:{U+2*i+1}], s[96:97] op_sel_hi:[1,0]')
        rnd()
        for i in range(5): a(f'v_pk_mul_f32 v[{U+2*i}:{U+2*i+1}], v[{U+2*i}:{U+2*i+1}], v[{100+2*i}:{101+2*i}]')
        rnd()
        for i in range(5): a(f'v_pk_add_f32 v[{U+2*i}:{U+2*i+1}], v[{U+2*i}:{U+2*i+1}], v[{110+2*i}:{111+2*i}]')
        for i in range(5):
            a(f'v_cvt_pk_bf16_f32 v{64+i}, v{U+2*i}, v{U+2*i+1}')
        for i in range(5):
            a(f'ds_write_b32 v10, v{64+i} offset:{L_H2 + 256*i}')
        self.signal(C_H2)
        self.lds_wait(C_H2, 8)
        self.stamp(9)
        for n in range(3):
            a(f'ds_read_b128 v[{84+4*n}:{87+4*n}], v11 offset:{L_H2 + 512*n}')
        a(f'''
        s_waitcnt lgkmcnt(1)
        v_mfma_f32_16x16x32_bf16 v[16:19], v[52:55], v[84:87], 0
        v_mfma_f32_16x16x32_bf16 v[16:19], v[56:59], v[88:91], v[16:19]
        s_cmp_ge_u32 s15, 4
        s_cbranch_scc1 L_gu2
        s_waitcnt lgkmcnt(0)
        v_mfma_f32_16x16x32_bf16 v[16:19], v[60:63], v[92:95], v[16:19]
        L_gu2:
        s_nop 7
        ds_write_b128 v8, v[16:19] offset:{L_GUP}
        ''')
        self.arrive(C_GU, 7, 'L_stream_end')
        for w in range(8):
            a(f'ds_read_b128 v[{64+4*w}:{67+4*w}], v7 offset:{L_GUP + 1024*w}')
            a(f'ds_read_b128 v[{100+4*w}:{103+4*w}], v7 offset:{L_GUP + 1024*w + 512}')
        a('s_waitcnt lgkmcnt(0)')
        self.sum_partials(64, [64 + 4 * i for i in range(8)])
        self.sum_partials(100, [100 + 4 * i for i in range(8)])
        self.round4(64, 28); self.round4(100, 30)
        for i in range(4):
            a(f'v_cmp_lt_f32 vcc, 0, v{64+i}\nv_cndmask_b32 v{20+i}, 0, 1.0, vcc')
        a('v_pk_mul_f32 v[64:65], v[64:65], v[20:21]\nv_pk_mul_f32 v[66:67], v[66:67], v[22:23]')
        a('v_pk_mul_f32 v[64:65], v[64:65], v[100:101]\nv_pk_mul_f32 v[66:67], v[66:67], v[102:103]')
        self.pack4(28, 64); self.sanitize([28, 29])
        a(f'''
        s_mov_b64 exec, 0x00ff00ff
        buffer_store_dwordx2 v[28:29], v6, s[44:47], s92 offen sc1
        s_mov_b64 exec, -1
        L_stream_end:
        ''')
        self.stamp(10)
        self.stamp_flush()
        a('L_end:\ns_endpgm')

    def build(self):
        self.prologue(); self.control(); self.stream()
        kn = NAME + '_kernel'
        body = '\n'.join(fix_hazards(self.a.l)) + '\n'
        hdr = open('cdna_kernels/' + NAME + '.s.ref').read().split('; Override launch')[0]
        return hdr + header([f'; @launch grid=(256,1,1) block=(768,1,1) lds={LDS_SIZE}']) + kernel_start(kn) + body + '.section .rodata,"a"\n' + descriptor(kn, vgpr=168, sgpr=102, accum=168)

if __name__ == '__main__':
    import argparse
    ap = argparse.ArgumentParser()
    ap.add_argument('-o', default='k.s'); ap.add_argument('--stamp', action='store_true')
    for p, d in (('WK', 3), ('WV', 3), ('rot', 3), ('rotw', 1), ('qpos', 25), ('prog_t', 22)):
        ap.add_argument('--' + p, type=int, default=d)
    args = ap.parse_args()
    kw = dict(vars(args)); o = kw.pop('o')
    open(o, 'w').write(G(**kw).build())
```

```python
import sys
from asmlib import *
import gen as G1mod
from gen import bitrev4, LOG2E, SPIN_LIMIT

WS_E = 0
WS_H1 = 0x1000
WS_Q = 0x8000
SB2 = 0x28000
WS_H2 = SB2; WS_X1 = SB2 + 0x3000; WS_HID = SB2 + 0x6000; WS_MODO = SB2 + 0xD000
WS_P = 0x50000
WS_STAMP = 0x100000
WS_SIZE = 0x200000
LW = 0; L_OP = 0x14000; L_WP = 0x15000; LM = 0x1A000; LDS_SIZE = 0x1B000
C_A, C_SM, C_PV, C_WO, C_QOK, C_PROG, C_PROGW = [4 * i for i in range(7)]
L_STAT = 0x40; L_SM = 0x100
R_G1, R_DOWN, R_FFN, R_Q, R_MOD, R_RED = 1, 2, 3, 4, 5, 6

def role_of(wg):
    x = wg & 7; u = wg >> 3
    if u < 2: return R_G1, 2 * x + u
    if u < 6:
        k = u - 2
        e = EXTRA.get((x, k >> 1))
        if e is None: return 0, 0
        return e[0], e[0] * 16 + 2 * e[1] + (k & 1)
    if u < 14: return R_Q, (x + 8 * ((u - 6) >> 1)) * 2 + ((u - 6) & 1)
    if u < 19: return R_MOD, 5 * x + u - 14
    if u < 25: return R_FFN, 6 * x + u - 19
    if u < 29: return R_DOWN, 4 * x + u - 25
    if u == 29: return R_RED, x
    return 0, 0
EXTRA = {(0, 0): (R_DOWN, 0), (0, 1): (R_DOWN, 1), (2, 0): (R_DOWN, 2), (2, 1): (R_DOWN, 3),
         (4, 0): (R_FFN, 0), (4, 1): (R_FFN, 1), (6, 0): (R_G1, 0), (6, 1): (R_FFN, 2), (1, 0): (R_G1, 1)}

class G(G1mod.G):
    def __init__(self, stamp=False, WK=3, WV=3, rot=3, rotw=1, qpos=25, prog_t=22, progw_t=-1, WD=4, wo_start=0, wo_per=1):
        self.a = Asm(); self.stamp_on = stamp
        self.WK = WK; self.WV = WV; self.rot = rot; self.rotw = rotw; self.qpos = qpos; self.prog_t = prog_t
        self.progw_t = progw_t; self.WD = WD; self.wo_start = wo_start; self.wo_per = wo_per

    def tag_from(self, v):
        self.a(f'''
        s_mov_b32 s85, 1664525
        v_mul_lo_u32 v{v}, s85, v{v}
        v_add_u32 v{v}, 1013904223, v{v}
        v_readfirstlane_b32 s94, v{v}
        ''')

    def poll(self, name, loads, check, sleep, tagged=False):
        a = self.a
        a(f's_mov_b32 s89, {SPIN_LIMIT}\nL_{name}_poll:')
        for l in loads: a(l)
        a('s_waitcnt vmcnt(0)')
        if tagged:
            for i in range(0, len(check), 2):
                a(f'v_xor_b32 v36, s94, v{check[i]}\nv_xor_b32 v37, s94, v{check[i+1]}')
                a('v_or_b32 v38, v36, v37' if i == 0 else 'v_or3_b32 v38, v38, v36, v37')
            a('v_cmp_ne_u32 vcc, 0, v38')
        else:
            c = list(check)
            if len(c) % 2 == 0:
                a(f'v_max_u32 v38, v{c[0]}, v{c[1]}'); c = c[2:]
            else:
                a(f'v_max3_u32 v38, v{c[0]}, v{c[1]}, v{c[2]}'); c = c[3:]
            for i in range(0, len(c), 2): a(f'v_max3_u32 v38, v38, v{c[i]}, v{c[i+1]}')
            a('v_cmp_eq_u32 vcc, -1, v38')
        a(f'''
        s_cbranch_vccz L_{name}_ok
        {"s_sleep %d" % sleep if sleep else ""}
        s_sub_u32 s89, s89, 1
        s_cbranch_scc0 L_{name}_poll
        L_{name}_ok:
        ''')

    def prologue(self):
        a = self.a
        a(f'''
        s_cmp_ge_u32 s2, 256
        s_cbranch_scc1 L_end
        s_load_dwordx16 s[16:31], s[0:1], 0
        s_load_dwordx8 s[32:39], s[0:1], 64
        s_load_dwordx4 s[40:43], s[0:1], 96
        v_lshrrev_b32 v1, 6, v0
        v_and_b32 v2, 63, v0
        v_readfirstlane_b32 s3, v1
        v_mov_b32 v13, {LM}
        s_mov_b32 s84, 0xffff0000
        v_mov_b32 v15, 0
        v_lshl_add_u32 v14, v2, 2, v13
        ds_write_b32 v14, v15
        s_lshr_b32 s13, s2, 5            ; b
        s_and_b32 s14, s2, 31            ; h
        v_lshlrev_b32 v7, 4, v2          ; lane*16
        s_waitcnt lgkmcnt(0)
        s_barrier
        ''')
        self.srd(44, 42, WS_SIZE)
        self.stamp(0)
        a(f'''
        s_cmp_lt_u32 s3, 4
        s_cbranch_scc0 L_stream
        ''')

    def decode(self):
        a = self.a
        ext = 0
        for (x, kh), (r, idx) in EXTRA.items(): ext |= (r | idx << 2) << (4 * (2 * x + kh))
        a(f'''
        s_and_b32 s4, s2, 7              ; x
        s_lshr_b32 s5, s2, 3             ; u
        s_mov_b32 s7, 0
        s_mov_b32 s8, 0
        ''')
        for lo, hi, role, mul in ((0, 2, R_G1, 2), (14, 19, R_MOD, 5), (19, 25, R_FFN, 6), (25, 29, R_DOWN, 4), (29, 30, R_RED, 1)):
            a(f'''
            s_sub_u32 s9, s5, {lo}
            s_mul_i32 s10, s4, {mul}
            s_add_u32 s10, s10, s9
            s_cmp_lt_u32 s9, {hi-lo}
            s_cselect_b32 s7, {role}, s7
            s_cselect_b32 s8, s10, s8
            ''')
        a(f'''
        s_sub_u32 s9, s5, 6              ; Q: (x + 8*(k>>1))*2 + (k&1)
        s_lshr_b32 s10, s9, 1
        s_lshl_b32 s10, s10, 3
        s_add_u32 s10, s10, s4
        s_lshl_b32 s10, s10, 1
        s_and_b32 s11, s9, 1
        s_add_u32 s10, s10, s11
        s_cmp_lt_u32 s9, 8
        s_cselect_b32 s7, {R_Q}, s7
        s_cselect_b32 s8, s10, s8
        s_sub_u32 s9, s5, 2              ; extras
        s_lshr_b32 s10, s9, 1
        s_and_b32 s10, s10, 1
        s_lshl_b32 s11, s4, 1
        s_add_u32 s10, s10, s11
        s_lshl_b32 s10, s10, 2
        s_mov_b32 s86, {ext & 0xffffffff}
        s_mov_b32 s87, {ext >> 32}
        s_lshr_b64 s[86:87], s[86:87], s10
        s_and_b32 s10, s86, 3            ; role
        s_bfe_u32 s11, s86, 0x20002      ; idx
        s_lshl_b32 s11, s11, 1
        s_lshl_b32 s12, s10, 4
        s_add_u32 s11, s11, s12
        s_and_b32 s12, s9, 1
        s_add_u32 s11, s11, s12
        s_cmp_lt_u32 s9, 4
        s_cselect_b32 s7, s10, s7
        s_cselect_b32 s8, s11, s8
        ''')

    def dma640(self):
        a = self.a
        a(f'''
        v_lshrrev_b32 v16, 3, v2
        s_mul_i32 s85, s3, 160
        v_add_u32 v16, s85, v16
        v_mul_lo_u32 v16, s52, v16
        v_and_b32 v17, 3, v2
        v_lshl_add_u32 v16, v17, 4, v16
        v_mov_b32 v17, 0
        v_mov_b32 v18, s48
        v_mov_b32 v19, s49
        v_mov_b32 v20, s50
        v_mov_b32 v21, s51
        v_and_b32 v22, 4, v2
        v_cmp_ne_u32 vcc, 0, v22
        v_cndmask_b32 v18, v18, v20, vcc
        v_cndmask_b32 v19, v19, v21, vcc
        v_lshl_add_u64 v[4:5], v[16:17], 0, v[18:19]
        s_lshl_b32 s54, s52, 3
        s_mov_b32 s55, 0
        ''')
        for n in range(20):
            a(f's_add_u32 m0, s87, {LW + 1024*n}')
            if n >= self.WD: a(f's_waitcnt vmcnt({self.WD-1})')
            a(f'global_load_lds_dwordx4 v[4:5], off nt')
            if n < 19: a('v_lshl_add_u64 v[4:5], v[4:5], 0, s[54:55]')

    def wfrags640(self):
        a = self.a
        for n in range(5):
            for T in range(4):
                b = 40 + 16 * n + 4 * T
                a(f'ds_read_b64_tr_b16 v[{b}:{b+1}], v9 offset:{LW + 4096*n + 32*T}')
                a(f'ds_read_b64_tr_b16 v[{b+2}:{b+3}], v9 offset:{LW + 4096*n + 32*T + 512}')
            a('s_waitcnt lgkmcnt(0)')

    def mfma640(self, skip):
        a = self.a
        for n in range(5):
            for T in range(4):
                b = 40 + 16 * n + 4 * T; d = 16 + 4 * T
                a(f'v_mfma_f32_16x16x32_bf16 v[{d}:{d+3}], v[{b}:{b+3}], v[{120+4*n}:{123+4*n}], {"0" if n == 0 else "v[%d:%d]" % (d, d+3)}')
        for T in range(4):
            a(f'ds_write_b128 v10, v[{16+4*T}:{19+4*T}] offset:{LW + 1024*T}')
        self.arrive(C_A, 3, skip)
        for w in range(4):
            a(f'ds_read_b128 v[{40+4*w}:{43+4*w}], v11 offset:{LW + 20480*w}')
            a(f'ds_read_b128 v[{56+4*w}:{59+4*w}], v11 offset:{LW + 20480*w + 2048}')

    def red640(self):
        self.a('s_waitcnt lgkmcnt(0)')
        self.sum_partials(40, [40, 44, 48, 52]); self.sum_partials(56, [56, 60, 64, 68])

    def silu(self):
        a = self.a
        a(f's_mov_b32 s85, {LOG2E | 0x80000000}')
        for n in range(5):
            b = 120 + 4 * n
            for i in range(4): self.unpack(16 + 2 * i, b + i)
            for i in range(8): a(f'v_mul_f32 v{24+i}, s85, v{16+i}')
            for i in range(8): a(f'v_exp_f32 v{24+i}, v{24+i}')
            for i in range(8): a(f'v_add_f32 v{24+i}, 1.0, v{24+i}')
            for i in range(8): a(f'v_rcp_f32 v{24+i}, v{24+i}')
            for i in range(8): a(f'v_mul_f32 v{16+i}, v{16+i}, v{24+i}')
            for i in range(4): a(f'v_cvt_pk_bf16_f32 v{b+i}, v{16+2*i}, v{17+2*i}')

    def add64(self, d, base, off):
        self.a(f's_add_u32 s{d}, s{base}, {off}\ns_addc_u32 s{d+1}, s{base+1}, 0')

    def control(self):
        a = self.a
        a('s_setprio 3')
        self.decode()
        a(f'''
        s_cmp_eq_u32 s7, 0
        s_cbranch_scc1 L_ctrl_end
        v_mov_b32 v3, 0
        buffer_load_dword v167, v3, s[44:47], 0 offen sc1
        s_mul_i32 s87, s3, 20480
        v_lshrrev_b32 v16, 4, v2         ; s
        v_bfe_u32 v17, v2, 2, 2          ; r4
        v_and_b32 v18, 3, v2             ; c
        v_lshl_add_u32 v19, v16, 3, v17  ; 8s+r4
        v_lshlrev_b32 v9, 7, v19
        v_lshl_add_u32 v9, v18, 3, v9
        v_add_u32 v9, s87, v9
        v_add_u32 v10, s87, v7
        v_and_b32 v17, 7, v2             ; b
        v_bfe_u32 v18, v2, 3, 1          ; t
        v_lshlrev_b32 v11, 8, v16
        v_lshl_add_u32 v11, v17, 4, v11
        v_lshl_add_u32 v11, v18, 10, v11
        v_mul_u32_u24 v19, 1280, v17
        v_lshl_add_u32 v6, v16, 4, v19
        v_lshlrev_b32 v8, 5, v18
        v_lshl_add_u32 v8, v16, 3, v8    ; (16t+4s')*2 bytes
        v_lshlrev_b32 v12, 2, v2         ; lane*4
        s_cmp_eq_u32 s7, {R_Q}
        s_cbranch_scc1 L_role_q
        s_cmp_eq_u32 s7, {R_FFN}
        s_cbranch_scc1 L_role_ffn
        s_cmp_eq_u32 s7, {R_DOWN}
        s_cbranch_scc1 L_role_down
        s_cmp_eq_u32 s7, {R_RED}
        s_cbranch_scc1 L_role_red
        ''')
        self.srd(56, 34, 10240); self.srd(60, 16, 10240)
        a('s_mul_i32 s85, s3, 320')
        for n in range(5):
            a(f'buffer_load_dwordx4 v[{120+4*n}:{123+4*n}], v6, s[56:59], s85 offen offset:{64*n}')
        a(f'''
        s_lshl_b32 s9, s8, 6
        s_lshl_b32 s10, s8, 7
        s_add_u32 s10, s10, 2560
        s_cmp_eq_u32 s7, {R_G1}
        s_cselect_b32 s9, s9, s10
        s_cselect_b32 s10, 1280, 64
        s_add_u32 s48, s36, s9
        s_addc_u32 s49, s37, 0
        s_add_u32 s50, s48, s10
        s_addc_u32 s51, s49, 0
        s_movk_i32 s52, 7680
        s_cmp_lg_u32 s7, {R_G1}
        s_cbranch_scc1 L_mod_dma
        s_mul_i32 s85, s3, 2560
        ''')
        for n in range(10):
            a(f'buffer_load_dword v{140+n}, v12, s[60:63], s85 offen offset:{256*n}')
        a(f'''
        v_add_u32 v19, v19, v8
        buffer_load_dwordx2 v[150:151], v19, s[60:63], s9 offen
        s_lshl_b32 s85, s8, 2
        s_add_u32 s85, s85, s3
        s_lshl_b32 s85, s85, 11
        s_add_u32 s85, s85, {SB2}
        v_mov_b32 v152, -1
        v_mov_b32 v153, -1
        v_mov_b32 v154, -1
        v_mov_b32 v155, -1
        buffer_store_dwordx4 v[152:155], v7, s[44:47], s85 offen sc1
        buffer_store_dwordx4 v[152:155], v7, s[44:47], s85 offen offset:1024 sc1
        L_mod_dma:
        ''')
        wd = self.WD; self.WD = 20
        self.dma640()
        self.WD = wd
        a('s_waitcnt vmcnt(20)')
        self.stamp(1)
        self.silu()
        self.tag_from(167)
        a(f'''
        s_cmp_lg_u32 s7, {R_G1}
        s_cbranch_scc1 L_nostat
        ''')
        for rr in range(2):
            self.ln_stats(140 + 5 * rr, 16, 28, 90, 92)
            a(f'''
            v_mov_b32 v28, s90
            v_mov_b32 v29, s92
            s_lshl_b32 s85, s3, 4
            v_add_u32 v30, s85, v13
            ds_write_b64 v30, v[28:29] offset:{L_STAT + 8*rr}
            ''')
        a('L_nostat:\ns_waitcnt vmcnt(0)')
        self.stamp(2)
        self.wfrags640()
        self.mfma640('L_ctrl_end')
        a(f'''
        v_and_b32 v22, 7, v2
        v_lshl_add_u32 v23, v22, 3, v13
        ds_read_b64 v[36:37], v23 offset:{L_STAT}
        ''')
        self.red640()
        self.pack4(24, 40); self.pack4(26, 56)
        a(f's_cmp_eq_u32 s7, {R_G1}\ns_cbranch_scc1 L_g1epi')
        self.sanitize([24, 25, 26, 27])
        a(f'''
        v_mul_u32_u24 v22, 5120, v22
        v_add_u32 v22, v22, v8
        s_lshl_b32 s90, s8, 7
        s_add_u32 s90, s90, {WS_MODO}
        ''')
        self.lds_wait(C_QOK, 1, sleep=8)
        a(f'''
        buffer_store_dwordx2 v[24:25], v22, s[44:47], s90 offen sc1
        buffer_store_dwordx2 v[26:27], v22, s[44:47], s90 offen offset:64 sc1
        s_branch L_ctrl_end
        L_g1epi:
        ''')
        self.unpack4(56, 26)
        a('v_pk_add_f32 v[56:57], v[56:57], 1.0 op_sel_hi:[1,0]\nv_pk_add_f32 v[58:59], v[58:59], 1.0 op_sel_hi:[1,0]')
        self.round4(56, 26)
        self.unpack4(40, 24)
        self.unpack4(44, 150)
        for i in range(4): a(f'v_sub_f32 v{44+i}, v{44+i}, v36')
        self.round4(44, 28)
        for i in range(4): a(f'v_mul_f32 v{44+i}, v{44+i}, v37')
        self.round4(44, 28)
        a('v_pk_mul_f32 v[44:45], v[44:45], v[56:57]\nv_pk_mul_f32 v[46:47], v[46:47], v[58:59]')
        self.round4(44, 28)
        a('v_pk_add_f32 v[44:45], v[44:45], v[40:41]\nv_pk_add_f32 v[46:47], v[46:47], v[42:43]')
        a(f'''
        v_cvt_pk_bf16_f32 v28, v44, v45
        v_cvt_pk_bf16_f32 v30, v46, v47
        v_mov_b32 v29, s94
        v_mov_b32 v31, s94
        v_lshlrev_b32 v22, 4, v22               ; b*16
        v_lshl_add_u32 v22, v8, 4, v22          ; + (16t+4s')*32 = t*512 + s'*128
        s_lshl_b32 s85, s8, 10
        s_add_u32 s85, s85, {WS_H1}
        buffer_store_dwordx4 v[28:31], v22, s[44:47], s85 offen sc1
        s_branch L_ctrl_end
        ''')
        a(f'''
        L_role_q:
        s_lshl_b32 s9, s8, 7
        s_add_u32 s48, s22, s9
        s_addc_u32 s49, s23, 0
        s_add_u32 s50, s48, 64
        s_addc_u32 s51, s49, 0
        s_movk_i32 s52, 8192
        s_and_b32 s85, s8, 1
        s_lshl_b32 s85, s85, 2
        s_add_u32 s85, s85, s3
        s_lshl_b32 s85, s85, 5
        s_lshr_b32 s86, s8, 1
        s_add_u32 s85, s85, s86
        s_mul_i32 s85, s85, 2560
        s_add_u32 s85, s85, {WS_P}
        v_mov_b32 v152, -1
        v_mov_b32 v153, -1
        v_mov_b32 v154, -1
        v_mov_b32 v155, -1
        v_lshlrev_b32 v19, 3, v2
        buffer_store_dwordx4 v[152:155], v7, s[44:47], s85 offen sc1
        buffer_store_dwordx4 v[152:155], v7, s[44:47], s85 offen offset:1024 sc1
        buffer_store_dwordx2 v[152:153], v19, s[44:47], s85 offen offset:2048 sc1
        ''')
        self.dma640()
        a('s_waitcnt vmcnt(0)')
        self.stamp(2)
        self.tag_from(167)
        self.wfrags640()
        a(f'''
        s_mul_i32 s90, s3, 5120
        s_add_u32 s90, s90, {WS_H1}
        s_add_u32 s91, s90, 4096
        ''')
        self.stamp(3)
        loads = [f'buffer_load_dwordx4 v[{120+4*n}:{123+4*n}], v7, s[44:47], s{90 if n < 4 else 91} offen offset:{1024*(n%4)} sc1' for n in range(5)]
        self.poll('h1', loads, [121 + 2 * i for i in range(10)], 4, tagged=True)
        self.stamp(4)
        for n in range(5):
            b = 120 + 4 * n
            a(f'v_mov_b32_dpp v{b+3}, v{b+2} row_ror:8 row_mask:0xf bank_mask:0xf')
            a(f'v_mov_b32 v{b+1}, v{b+2}')
            a(f'v_mov_b32_dpp v{b+2}, v{b} row_ror:8 row_mask:0xf bank_mask:0xf')
        self.mfma640('L_ctrl_end')
        a(f'''
        v_and_b32 v22, 7, v2
        v_lshlrev_b32 v22, 14, v22              ; b*32*512
        v_lshl_add_u32 v22, v8, 1, v22          ; + col*4
        s_lshl_b32 s85, s8, 8                   ; h*512 + half*256
        s_add_u32 s85, s85, {WS_Q}
        v_mov_b32 v29, s94
        v_mov_b32 v31, s94
        v_mov_b32 v33, s94
        v_mov_b32 v35, s94
        ''')
        self.red640()
        a(f'''
        v_cvt_pk_bf16_f32 v28, v40, v41
        v_cvt_pk_bf16_f32 v30, v42, v43
        v_cvt_pk_bf16_f32 v32, v56, v57
        v_cvt_pk_bf16_f32 v34, v58, v59
        buffer_store_dwordx4 v[28:31], v22, s[44:47], s85 offen sc1
        buffer_store_dwordx4 v[32:35], v22, s[44:47], s85 offen offset:128 sc1
        s_branch L_ctrl_end
        ''')
        a(f'''
        L_role_ffn:
        s_lshl_b32 s9, s8, 6
        s_add_u32 s48, s28, s9
        s_addc_u32 s49, s29, 0
        s_add_u32 s50, s30, s9
        s_addc_u32 s51, s31, 0
        s_movk_i32 s52, 3456
        ''')
        if self.progw_t >= 0: self.lds_wait(C_PROGW, 1, sleep=8)
        self.dma640()
        a('s_waitcnt vmcnt(0)')
        self.stamp(2)
        self.wfrags640()
        a(f'''
        s_mul_i32 s90, s3, 320
        s_add_u32 s90, s90, {WS_H2}
        v_and_b32 v32, 7, v2
        v_lshlrev_b32 v32, 4, v32
        v_bfe_u32 v33, v2, 3, 1
        v_lshl_add_u32 v32, v33, 8, v32
        v_bfe_u32 v33, v2, 5, 1
        v_lshl_add_u32 v32, v33, 7, v32
        v_bfe_u32 v33, v2, 4, 1
        v_lshl_add_u32 v32, v33, 3, v32
        s_lshl_b32 s91, s8, 9
        s_add_u32 s91, s91, {WS_HID}
        ''')
        self.lds_wait(C_WO, 8, sleep=4)
        self.stamp(3)
        loads = [f'buffer_load_dwordx4 v[{120+4*n}:{123+4*n}], v6, s[44:47], s90 offen offset:{64*n} sc1' for n in range(5)]
        self.poll('h2', loads, list(range(120, 140)), 2)
        self.stamp(4)
        self.mfma640('L_ctrl_end')
        self.red640()
        self.round4(40, 28); self.round4(56, 30)
        for i in range(4):
            a(f'v_cmp_lt_f32 vcc, 0, v{40+i}\nv_cndmask_b32 v{20+i}, 0, 1.0, vcc')
        a('v_pk_mul_f32 v[40:41], v[40:41], v[20:21]\nv_pk_mul_f32 v[42:43], v[42:43], v[22:23]')
        a('v_pk_mul_f32 v[40:41], v[40:41], v[56:57]\nv_pk_mul_f32 v[42:43], v[42:43], v[58:59]')
        self.pack4(28, 40); self.sanitize([28, 29])
        a(f'''
        buffer_store_dwordx2 v[28:29], v32, s[44:47], s91 offen sc1
        s_branch L_ctrl_end
        ''')
        a('L_role_down:')
        self.srd(72, 32, 1728 * 1280); self.srd(80, 38, 10240)
        a(f'''
        s_add_u32 s76, s42, {WS_HID}
        s_addc_u32 s77, s43, 0
        s_mov_b32 s78, {27*1024}
        s_mov_b32 s79, 0x20000
        v_lshrrev_b32 v16, 1, v2
        v_mul_u32_u24 v4, 1280, v16
        v_and_b32 v16, 1, v2
        v_lshl_add_u32 v4, v16, 4, v4
        s_mul_i32 s85, s3, {7*64*1280}
        s_lshl_b32 s9, s8, 5
        s_add_u32 s85, s85, s9
        s_mul_i32 s87, s3, 14336
        ''')
        if self.progw_t >= 0: self.lds_wait(C_PROGW, 1, sleep=8)
        for n in range(14):
            a(f's_add_u32 m0, s87, {LW + 1024*n}')
            if n >= 2: a(f's_waitcnt vmcnt(1)')
            a(f'buffer_load_dwordx4 v4, s[72:75], s85 offen nt lds')
            a(f's_add_u32 s85, s85, {32*1280}')
        a(f'''
        v_lshrrev_b32 v16, 4, v2         ; s
        v_bfe_u32 v17, v2, 2, 2          ; r4
        v_lshl_add_u32 v19, v16, 3, v17
        v_lshlrev_b32 v9, 5, v19
        v_bfe_u32 v17, v2, 1, 1
        v_lshl_add_u32 v9, v17, 10, v9
        v_and_b32 v17, 1, v2
        v_lshl_add_u32 v9, v17, 3, v9
        v_add_u32 v9, s87, v9
        v_add_u32 v10, s87, v7
        v_and_b32 v17, 7, v2             ; b
        v_bfe_u32 v18, v2, 3, 1          ; a / half
        v_lshlrev_b32 v3, 7, v16
        v_lshl_add_u32 v3, v17, 4, v3
        v_lshl_add_u32 v3, v18, 9, v3
        s_mul_i32 s86, s3, 7168
        v_add_u32 v3, s86, v3
        v_and_b32 v16, 1, v16            ; s'
        v_lshlrev_b32 v11, 8, v16
        v_lshl_add_u32 v11, v17, 4, v11
        v_lshl_add_u32 v11, v18, 10, v11
        v_lshlrev_b32 v8, 4, v18
        v_lshl_add_u32 v8, v16, 3, v8    ; (8a+4s')*2
        v_mul_u32_u24 v5, 5120, v17
        v_add_u32 v5, v5, v8
        v_mul_u32_u24 v6, 1280, v17
        v_add_u32 v6, v6, v8
        s_add_u32 s90, s9, {WS_MODO + 3840}
        s_add_u32 s91, s9, {WS_X1}
        s_movk_i32 s92, 4096
        s_waitcnt vmcnt(0)
        ''')
        self.stamp(2)
        self.tag_from(167)
        for n in range(7):
            for ac in range(2):
                b = 40 + 8 * n + 4 * ac
                a(f'ds_read_b64_tr_b16 v[{b}:{b+1}], v9 offset:{LW + 2048*n + 16*ac}')
                a(f'ds_read_b64_tr_b16 v[{b+2}:{b+3}], v9 offset:{LW + 2048*n + 16*ac + 128}')
            if n % 2: a('s_waitcnt lgkmcnt(0)')
        self.lds_wait(C_WO, 8, sleep=4)
        self.poll('gb', ['buffer_load_dwordx2 v[32:33], v5, s[44:47], s90 offen sc1'], [32, 33], 4)
        self.unpack4(140, 32)
        self.stamp(3)
        self.poll('x1', ['buffer_load_dwordx2 v[32:33], v6, s[44:47], s91 offen sc1'], [32, 33], 4)
        self.unpack4(144, 32)
        self.stamp(5)
        loads = [f'buffer_load_dwordx4 v[{104+4*n}:{107+4*n}], v3, s[76:79], {"0" if n < 4 else "s92"} offen offset:{1024*(n%4)} sc1' for n in range(7)]
        self.poll('hid', loads, list(range(104, 132)), 1)
        self.stamp(4)
        for n in range(7):
            for ac in range(2):
                b = 40 + 8 * n + 4 * ac; d = 16 + 4 * ac
                a(f'v_mfma_f32_16x16x32_bf16 v[{d}:{d+3}], v[{b}:{b+3}], v[{104+4*n}:{107+4*n}], {"0" if n == 0 else "v[%d:%d]" % (d, d+3)}')
        a(f'ds_write_b128 v10, v[16:19] offset:{LW}\nds_write_b128 v10, v[20:23] offset:{LW + 1024}')
        self.arrive(C_A, 3, 'L_ctrl_end')
        for w in range(4):
            a(f'ds_read_b128 v[{40+8*w}:{43+8*w}], v11 offset:{LW + 14336*w}')
            a(f'ds_read_b128 v[{44+8*w}:{47+8*w}], v11 offset:{LW + 14336*w + 640}')
        a('s_waitcnt lgkmcnt(0)')
        self.sum_partials(40, [40 + 4 * i for i in range(8)])
        self.round4(40, 28)
        a('v_pk_mul_f32 v[40:41], v[40:41], v[140:141]\nv_pk_mul_f32 v[42:43], v[42:43], v[142:143]')
        self.round4(40, 28)
        a('v_pk_add_f32 v[40:41], v[40:41], v[144:145]\nv_pk_add_f32 v[42:43], v[42:43], v[146:147]')
        self.pack4(28, 40)
        a(f'''
        s_mov_b32 exec_hi, 0
        buffer_store_dwordx2 v[28:29], v6, s[80:83], s9 offen
        s_cmp_lg_u32 s8, 0
        s_cbranch_scc1 L_noepoch
        s_mov_b64 exec, 1
        v_mov_b32 v20, 0
        v_mov_b32 v21, s94
        buffer_store_dword v21, v20, s[44:47], 0 offen sc1
        L_noepoch:
        s_mov_b64 exec, -1
        s_branch L_ctrl_end
        ''')
        a('L_role_red:')
        self.srd(60, 16, 10240)
        a(f'''
        v_lshlrev_b32 v8, 3, v2          ; lane*8
        s_mul_i32 s9, s8, 1280
        buffer_load_dwordx2 v[26:27], v8, s[60:63], s9 offen
        buffer_load_dwordx2 v[28:29], v8, s[60:63], s9 offen offset:512
        buffer_load_dword v30, v12, s[60:63], s9 offen offset:1024
        s_lshl_b32 s90, s8, 14
        s_lshl_b32 s85, s3, 12
        s_add_u32 s90, s90, s85
        s_add_u32 s90, s90, {WS_Q}
        s_waitcnt vmcnt(0)
        ''')
        self.tag_from(167)
        for i in range(5): self.unpack(120 + 2 * i, 26 + i)
        self.lds_wait(C_QOK, 1, sleep=8)
        loads = [f'buffer_load_dwordx4 v[{40+4*n}:{43+4*n}], v7, s[44:47], s90 offen offset:{1024*n} sc1' for n in range(4)]
        self.poll('qall', loads, [41 + 2 * i for i in range(8)], 8, tagged=True)
        a(f'''
        s_mul_i32 s90, s8, 5120
        s_add_u32 s90, s90, {WS_MODO}
        ''')
        loads = []
        for ch in range(3):
            b = 40 + 6 * ch
            loads += [f'buffer_load_dwordx2 v[{b}:{b+1}], v8, s[44:47], s90 offen offset:{1280*ch} sc1',
                      f'buffer_load_dwordx2 v[{b+2}:{b+3}], v8, s[44:47], s90 offen offset:{1280*ch + 512} sc1',
                      f'buffer_load_dword v{b+4}, v12, s[44:47], s90 offen offset:{1280*ch + 1024} sc1']
        self.poll('modo', loads, [40 + 6 * ch + i for ch in range(3) for i in range(5)], 8)
        for ch in range(3):
            for i in range(5): self.unpack(130 + 10 * ch + 2 * i, 40 + 6 * ch + i)
        for i in range(5):
            a(f'v_pk_add_f32 v[{150+2*i}:{151+2*i}], v[{150+2*i}:{151+2*i}], 1.0 op_sel_hi:[1,0]')
            a(f'v_cvt_pk_bf16_f32 v26, v{150+2*i}, v{151+2*i}')
            self.unpack(150 + 2 * i, 26)
        for i in range(10): a(f'v_mov_b32 v{16+i}, 0')
        a(f'''
        s_lshl_b32 s91, s8, 5
        s_lshl_b32 s85, s3, 3
        s_add_u32 s91, s91, s85
        s_mul_i32 s91, s91, 2560
        s_add_u32 s91, s91, {WS_P}
        s_mul_i32 s87, s3, 2560
        v_add_u32 v10, s87, v7
        v_add_u32 v11, s87, v8
        s_add_u32 s92, s9, {WS_H2}
        s_add_u32 s93, s9, {WS_X1}
        ''')
        self.stamp(2)
        self.lds_wait(C_PROG, 1, sleep=8)
        self.stamp(3)
        a(f'''
        s_mov_b32 s90, 0xff
        s_mov_b32 s89, {SPIN_LIMIT}
        L_p_poll:
        ''')
        for g in range(8):
            b = 40 + 10 * g
            a(f'''
            s_bitcmp1_b32 s90, {g}
            s_cbranch_scc0 L_p_sk{g}
            s_add_u32 s85, s91, {2560*g}
            buffer_load_dwordx4 v[{b}:{b+3}], v7, s[44:47], s85 offen sc1
            buffer_load_dwordx4 v[{b+4}:{b+7}], v7, s[44:47], s85 offen offset:1024 sc1
            buffer_load_dwordx2 v[{b+8}:{b+9}], v8, s[44:47], s85 offen offset:2048 sc1
            L_p_sk{g}:
            ''')
        a('s_waitcnt vmcnt(0)')
        for g in range(8):
            b = 40 + 10 * g
            a(f'''
            s_bitcmp1_b32 s90, {g}
            s_cbranch_scc0 L_p_ck{g}
            v_max3_u32 v36, v{b}, v{b+1}, v{b+2}
            v_max3_u32 v37, v{b+3}, v{b+4}, v{b+5}
            v_max3_u32 v36, v36, v{b+6}, v{b+7}
            v_max3_u32 v37, v37, v{b+8}, v{b+9}
            v_max_u32 v36, v36, v37
            v_cmp_eq_u32 vcc, -1, v36
            s_cbranch_vccnz L_p_ck{g}
            s_bitset0_b32 s90, {g}
            ''')
            for i in range(5): a(f'v_pk_add_f32 v[{16+2*i}:{17+2*i}], v[{16+2*i}:{17+2*i}], v[{b+2*i}:{b+2*i+1}]')
            a(f'L_p_ck{g}:')
        a(f'''
        s_cmp_eq_u32 s90, 0
        s_cbranch_scc1 L_p_ok
        s_sleep 2
        s_sub_u32 s89, s89, 1
        s_cbranch_scc0 L_p_poll
        L_p_ok:
        ''')
        self.stamp(4)
        a(f'''
        ds_write_b128 v10, v[16:19] offset:{LW}
        ds_write_b128 v10, v[20:23] offset:{LW + 1024}
        ds_write_b64 v11, v[24:25] offset:{LW + 2048}
        ''')
        self.arrive(C_A, 3, 'L_ctrl_end')
        for w in range(4):
            b = 40 + 10 * w
            a(f'ds_read_b128 v[{b}:{b+3}], v7 offset:{LW + 2560*w}')
            a(f'ds_read_b128 v[{b+4}:{b+7}], v7 offset:{LW + 2560*w + 1024}')
            a(f'ds_read_b64 v[{b+8}:{b+9}], v8 offset:{LW + 2560*w + 2048}')
        a('s_waitcnt lgkmcnt(0)')
        U = 40
        def P(r, i): return f'v[{r+2*i}:{r+2*i+1}]'
        for i in range(5): a(f'v_pk_add_f32 {P(40,i)}, {P(40,i)}, {P(50,i)}')
        for i in range(5): a(f'v_pk_add_f32 {P(60,i)}, {P(60,i)}, {P(70,i)}')
        for i in range(5): a(f'v_pk_add_f32 {P(40,i)}, {P(40,i)}, {P(60,i)}')
        def pk():
            for i in range(5): a(f'v_cvt_pk_bf16_f32 v{26+i}, v{U+2*i}, v{U+2*i+1}')
        def rnd():
            pk()
            for i in range(5): self.unpack(U + 2 * i, 26 + i)
        rnd()
        for i in range(5): a(f'v_pk_mul_f32 {P(U,i)}, {P(U,i)}, {P(130,i)}')
        rnd()
        for i in range(5): a(f'v_pk_add_f32 {P(U,i)}, {P(U,i)}, {P(120,i)}')
        for i in range(5): a(f'v_cvt_pk_bf16_f32 v{160+i}, v{U+2*i}, v{U+2*i+1}')
        self.sanitize(range(160, 165))
        self.ln_stats(160, U, 32, 96, 98)
        for i in range(5): a(f'v_pk_add_f32 {P(U,i)}, {P(U,i)}, s[96:97] op_sel_hi:[1,0] neg_lo:[0,1] neg_hi:[0,1]')
        rnd()
        for i in range(5): a(f'v_pk_mul_f32 {P(U,i)}, {P(U,i)}, s[98:99] op_sel_hi:[1,0]')
        rnd()
        for i in range(5): a(f'v_pk_mul_f32 {P(U,i)}, {P(U,i)}, {P(150,i)}')
        rnd()
        for i in range(5): a(f'v_pk_add_f32 {P(U,i)}, {P(U,i)}, {P(140,i)}')
        pk()
        self.sanitize(range(26, 31))
        a(f'''
        buffer_store_dwordx2 v[26:27], v8, s[44:47], s92 offen sc1
        buffer_store_dwordx2 v[28:29], v8, s[44:47], s92 offen offset:512 sc1
        buffer_store_dword v30, v12, s[44:47], s92 offen offset:1024 sc1
        buffer_store_dwordx2 v[160:161], v8, s[44:47], s93 offen sc1
        buffer_store_dwordx2 v[162:163], v8, s[44:47], s93 offen offset:512 sc1
        buffer_store_dword v164, v12, s[44:47], s93 offen offset:1024 sc1
        L_ctrl_end:
        ''')
        self.stamp(11)
        self.stamp_flush()
        a('s_endpgm')

    def stream(self):
        a = self.a
        WK, WV = self.WK, self.WV
        NV = 12
        KV = lambda t: 40 + 4 * t
        a(f'''
        L_stream:
        s_sub_u32 s15, s3, 4             ; sw
        s_lshl_b32 s85, s15, 15
        v_add_u32 v1, s85, v7
        s_mul_i32 s91, s2, {self.rot}
        s_mul_i32 s85, s15, {self.rotw}
        s_add_u32 s91, s91, s85
        s_and_b32 s91, s91, 31
        s_lshl_b32 s91, s91, 10          ; rotation
        s_lshl_b32 s85, s2, 20
        s_add_u32 s85, s85, 0xC0000
        s_add_u32 s48, s18, s85
        s_addc_u32 s49, s19, 0
        s_mov_b32 s50, 0x40000
        s_mov_b32 s51, 0x20000
        s_add_u32 s52, s20, s85
        s_addc_u32 s53, s21, 0
        s_mov_b32 s54, 0x40000
        s_mov_b32 s55, 0x20000
        ''')
        q = []
        def wait_for(name):
            i = len(q) - 1 - q[::-1].index(name)
            n = len(q) - 1 - i
            a(f's_waitcnt vmcnt({min(n, 63)})')
        def ld(t, slot, srd, nm):
            a(f's_add_u32 s92, s91, {t*1024}\ns_and_b32 s92, s92, 0x7fff')
            a(f'buffer_load_dwordx4 v[{KV(slot)}:{KV(slot)+3}], v1, {srd}, s92 offen nt')
            q.append(nm)
        qloads = ['buffer_load_dwordx4 v[4:7], v12, s[44:47], s93 offen sc1', 'buffer_load_dwordx4 v[16:19], v12, s[44:47], s93 offen offset:16 sc1']
        for t in range(32):
            if t >= WK: a(f's_waitcnt vmcnt({WK-1})')
            ld(t, t, 's[48:51]', f'K{t}')
            if t == WK - 1:
                a(f'''
                v_mov_b32 v3, 0
                buffer_load_dword v35, v3, s[44:47], 0 offen sc1
                v_and_b32 v3, 15, v2
                v_lshlrev_b32 v12, 5, v3             ; Q voffset
                s_lshl_b32 s93, s2, 9
                s_add_u32 s93, s93, {WS_Q}
                v_mov_b32 v16, 0xffff
                v_mov_b32 v17, s84
                ''')
                q.append('E')
                for r in range(4):
                    a(f'''
                    v_cmp_eq_u32 vcc, {2*r}, v3
                    v_cndmask_b32 v{8+r}, 0, v16, vcc
                    v_cmp_eq_u32 vcc, {2*r+1}, v3
                    v_cndmask_b32 v{8+r}, v{8+r}, v17, vcc
                    ''')
                a(f'''
                s_mov_b32 s96, 0xcccccccc
                s_mov_b32 s97, 0xcccccccc
                s_mov_b32 s98, 0xaaaaaaaa
                s_mov_b32 s99, 0xaaaaaaaa
                s_mul_i32 s85, s14, 163840
                s_add_u32 s56, s24, s85
                s_addc_u32 s57, s25, 0
                s_mov_b32 s58, 163840
                s_mov_b32 s59, 0x20000
                v_lshrrev_b32 v34, 4, v2
                v_mul_u32_u24 v34, 5120, v34
                v_lshl_add_u32 v34, v3, 4, v34
                s_mul_i32 s85, s15, 20480
                v_add_u32 v34, s85, v34
                ''')
            if t == 12:
                self.tag_from(35)
            if t == self.qpos:
                for l in qloads: a(l)
                q.append('Q0'); q.append('Q1')
        self.stamp(1)
        wait_for('Q1')
        a(f'''
        s_mov_b32 s89, {SPIN_LIMIT}
        L_q_chk:
        v_xor_b32 v20, s94, v5
        v_xor_b32 v21, s94, v7
        v_xor_b32 v22, s94, v17
        v_xor_b32 v23, s94, v19
        v_or_b32 v20, v20, v21
        v_or3_b32 v20, v20, v22, v23
        v_cmp_ne_u32 vcc, 0, v20
        s_cbranch_vccz L_q_ok
        s_sleep 4
        {qloads[0]}
        {qloads[1]}
        s_waitcnt vmcnt(0)
        s_sub_u32 s89, s89, 1
        s_cbranch_scc0 L_q_chk
        L_q_ok:
        v_mov_b32 v5, v6
        v_mov_b32 v6, v16
        v_mov_b32 v7, v18
        ''')
        self.signal(C_QOK)
        self.stamp(2)
        D = 20
        for g in range(8):
            wait_for(f'K{4*g+3}')
            for i in range(4):
                for k in range(4):
                    t = 4 * g + k
                    a(f'v_dot2_f32_bf16 v{D+k}, v{KV(t)+i}, v{4+i}, {"0" if i == 0 else "v%d" % (D+k)}')
            ld(g, g, 's[52:55]', f'V{g}')
            a(f'v_add_f32_dpp v24, v{D}, v{D} row_ror:8 row_mask:0xf bank_mask:0x3')
            a(f'v_add_f32_dpp v25, v{D+2}, v{D+2} row_ror:8 row_mask:0xf bank_mask:0x3')
            a(f'v_add_f32_dpp v24, v{D+1}, v{D+1} row_ror:8 row_mask:0xf bank_mask:0xc')
            a(f'v_add_f32_dpp v25, v{D+3}, v{D+3} row_ror:8 row_mask:0xf bank_mask:0xc')
            r2 = 26 + (g & 1)
            a(f'v_add_f32_dpp v{r2}, v24, v24 row_shl:4 row_mask:0xf bank_mask:0x5')
            a(f'v_add_f32_dpp v{r2}, v25, v25 row_shr:4 row_mask:0xf bank_mask:0xa')
            if g & 1:
                r3 = 28 + ((g >> 1) & 1)
                a(f'v_add_f32_dpp v30, v26, v26 quad_perm:[2,3,0,1] row_mask:0xf bank_mask:0xf')
                a(f'v_add_f32_dpp v31, v27, v27 quad_perm:[2,3,0,1] row_mask:0xf bank_mask:0xf')
                a(f'v_cndmask_b32 v{r3}, v30, v31, s[96:97]')
            if (g & 3) == 3:
                a(f'v_add_f32_dpp v30, v28, v28 quad_perm:[1,0,3,2] row_mask:0xf bank_mask:0xf')
                a(f'v_add_f32_dpp v31, v29, v29 quad_perm:[1,0,3,2] row_mask:0xf bank_mask:0xf')
                a(f'v_cndmask_b32 v{32 + (g >> 2)}, v30, v31, s[98:99]')
        a(f'''
        v_cvt_pk_bf16_f32 v20, v32, v33
        s_mov_b32 s86, 0x3db504f3
        ''')
        self.unpack(32, 20)
        a('v_pk_mul_f32 v[32:33], v[32:33], s[86:87] op_sel_hi:[1,0]\nv_cvt_pk_bf16_f32 v20, v32, v33')
        self.unpack(32, 20)
        a('v_max_f32 v20, v32, v33')
        self.wave_red(20, 'max')
        a(f'''
        v_readlane_b32 s86, v20, 63              ; m_w
        s_mov_b32 s90, {LOG2E}
        v_subrev_f32 v20, s86, v32
        v_subrev_f32 v21, s86, v33
        v_mul_f32 v20, s90, v20
        v_mul_f32 v21, s90, v21
        v_exp_f32 v20, v20
        v_exp_f32 v21, v21
        v_add_f32 v21, v20, v21
        ''')
        self.wave_red(21)
        a(f'''
        v_mov_b32 v20, s86
        s_lshl_b32 s85, s15, 3
        v_add_u32 v22, s85, v13
        s_mov_b32 exec_lo, 0
        s_mov_b32 exec_hi, 0x80000000
        ds_write_b64 v22, v[20:21] offset:{L_SM}
        s_mov_b64 exec, -1
        ''')
        self.stamp(3)
        self.signal(C_SM)
        self.lds_wait(C_SM, 8)
        self.stamp(4)
        a(f'''
        v_and_b32 v22, 7, v2
        v_lshl_add_u32 v22, v22, 3, v13
        ds_read_b64 v[20:21], v22 offset:{L_SM}
        s_waitcnt lgkmcnt(0)
        v_max_f32_dpp v22, v20, v20 row_ror:4 row_mask:0xf bank_mask:0xf
        v_max_f32_dpp v22, v22, v22 row_ror:2 row_mask:0xf bank_mask:0xf
        v_max_f32_dpp v22, v22, v22 row_ror:1 row_mask:0xf bank_mask:0xf
        v_sub_f32 v20, v20, v22
        v_mul_f32 v20, s90, v20
        v_exp_f32 v20, v20
        v_sub_f32 v32, v32, v22
        v_sub_f32 v33, v33, v22
        v_mul_f32 v21, v21, v20
        v_mul_f32 v32, s90, v32
        v_mul_f32 v33, s90, v33
        v_add_f32_dpp v21, v21, v21 row_ror:4 row_mask:0xf bank_mask:0xf
        v_exp_f32 v32, v32
        v_exp_f32 v33, v33
        v_add_f32_dpp v21, v21, v21 row_ror:2 row_mask:0xf bank_mask:0xf
        v_add_f32_dpp v21, v21, v21 row_ror:1 row_mask:0xf bank_mask:0xf
        v_rcp_f32 v21, v21
        v_mul_f32 v32, v32, v21
        v_mul_f32 v33, v33, v21
        v_cvt_pk_bf16_f32 v32, v32, v32
        v_cvt_pk_bf16_f32 v33, v33, v33
        s_movk_i32 s93, 1280
        s_movk_i32 s95, 2560
        s_movk_i32 s90, 3840
        ''')
        issued = 8; nwo = 0
        def ldwo(n):
            tp, c = n // 5, n % 5
            so = ['0', 's93', 's95', 's90'][tp]
            a(f'buffer_load_dwordx4 v[{KV(NV+n)}:{KV(NV+n)+3}], v34, s[56:59], {so} offen offset:{256*c} nt')
            q.append(f'W{n}')
        for t in range(32):
            A = 20 + 4 * (t & 1)
            for r in range(4):
                a(f'v_and_b32_dpp v{A+r}, v{32 + (t >> 4)}, v{8+r} row_newbcast:{bitrev4(t & 15)} row_mask:0xf bank_mask:0xf')
            wait_for(f'V{t}')
            a(f'v_mfma_f32_16x16x32_bf16 v[16:19], v[{A}:{A+3}], v[{KV(t % NV)}:{KV(t % NV)+3}], {"0" if t == 0 else "v[16:19]"}')
            if t + WV >= issued and issued < 32:
                ld(issued, issued % NV, 's[52:55]', f'V{issued}'); issued += 1
            if t >= self.wo_start:
                for _ in range(self.wo_per):
                    if nwo < 20: ldwo(nwo); nwo += 1
            if t == self.prog_t: self.signal(C_PROG)
            if t == self.progw_t: self.signal(C_PROGW)
            if t == 28:
                a(f'''
                v_lshlrev_b32 v7, 4, v2
                v_and_b32 v3, 15, v2
                v_lshrrev_b32 v4, 4, v2
                v_lshlrev_b32 v5, 5, v3
                v_lshl_add_u32 v5, v4, 4, v5          ; (8j+4s')*4
                s_lshl_b32 s85, s15, 9
                s_add_u32 s85, s85, {L_OP}
                v_add_u32 v6, s85, v5
                s_mul_i32 s85, s15, 2560
                s_add_u32 s85, s85, {L_WP}
                v_add_u32 v5, s85, v5
                s_lshl_b32 s85, s15, 6
                s_add_u32 s85, s85, {L_OP}
                v_lshl_add_u32 v4, v4, 4, s85
                v_add_u32 v35, {L_WP}, v7
                v_lshlrev_b32 v12, 3, v2
                v_add_u32 v36, {L_WP}, v12
                s_mul_i32 s87, s2, 2560
                s_add_u32 s87, s87, {WS_P}
                ''')
        assert nwo == 20
        a(f'''
        s_mov_b32 exec_hi, 0
        ds_write_b128 v6, v[16:19]
        s_mov_b64 exec, -1
        ''')
        self.stamp(5)
        self.signal(C_PV)
        self.lds_wait(C_PV, 8)
        for w in range(8):
            a(f'ds_read_b128 v[{40+4*w}:{43+4*w}], v4 offset:{512*w}')
        a('s_waitcnt lgkmcnt(0)')
        self.sum_partials(40, [40 + 4 * i for i in range(8)])
        for r in range(4): a(f'v_cvt_pk_bf16_f32 v{40+r}, v{40+r}, v{40+r}')
        for tp in range(4):
            for r in range(4): a(f'v_and_b32 v{44+4*tp+r}, v{40+tp}, v{8+r}')
        a('s_waitcnt vmcnt(0)')
        self.stamp(6)
        for tp in range(4):
            for c in range(5):
                d = 60 + 4 * c; b = KV(NV + 5 * tp + c)
                a(f'v_mfma_f32_16x16x32_bf16 v[{d}:{d+3}], v[{44+4*tp}:{47+4*tp}], v[{b}:{b+3}], {"0" if tp == 0 else "v[%d:%d]" % (d, d+3)}')
        a('s_mov_b32 exec_hi, 0')
        for c in range(5): a(f'ds_write_b128 v5, v[{60+4*c}:{63+4*c}] offset:{512*c}')
        a('s_mov_b64 exec, -1')
        self.arrive(C_WO, 7, 'L_stream_end')
        self.stamp(7)
        for w in range(8):
            b = 40 + 10 * w
            a(f'ds_read_b128 v[{b}:{b+3}], v35 offset:{2560*w}')
            a(f'ds_read_b128 v[{b+4}:{b+7}], v35 offset:{2560*w + 1024}')
            a(f'ds_read_b64 v[{b+8}:{b+9}], v36 offset:{2560*w + 2048}')
            if w == 3: a('s_waitcnt lgkmcnt(0)')
        def P(r, i): return f'v[{r+2*i}:{r+2*i+1}]'
        for x, y in ((40, 50), (60, 70), (40, 60)):
            for i in range(5): a(f'v_pk_add_f32 {P(x,i)}, {P(x,i)}, {P(y,i)}')
        a('s_waitcnt lgkmcnt(0)')
        for x, y in ((80, 90), (100, 110), (80, 100), (40, 80)):
            for i in range(5): a(f'v_pk_add_f32 {P(x,i)}, {P(x,i)}, {P(y,i)}')
        self.sanitize(range(40, 50))
        a(f'''
        buffer_store_dwordx4 v[40:43], v7, s[44:47], s87 offen sc1
        buffer_store_dwordx4 v[44:47], v7, s[44:47], s87 offen offset:1024 sc1
        buffer_store_dwordx2 v[48:49], v12, s[44:47], s87 offen offset:2048 sc1
        L_stream_end:
        ''')
        self.stamp(10)
        self.stamp_flush()
        a('L_end:\ns_endpgm')

    def build(self):
        self.prologue(); self.control(); self.stream()
        kn = NAME + '_kernel'
        body = '\n'.join(fix_hazards(self.a.l)) + '\n'
        hdr = open('cdna_kernels/' + NAME + '.s.ref').read().split('; Override launch')[0]
        return hdr + header([f'; @launch grid=(256,1,1) block=(768,1,1) lds={LDS_SIZE}']) + kernel_start(kn) + body + '.section .rodata,"a"\n' + descriptor(kn, vgpr=168, sgpr=102, accum=168)

if __name__ == '__main__':
    import argparse
    from collections import Counter
    rs = [role_of(w) for w in range(256)]
    for r, n in ((R_G1, 20), (R_DOWN, 40), (R_FFN, 54), (R_Q, 64), (R_MOD, 40), (R_RED, 8)):
        assert sorted(i for rr, i in rs if rr == r) == list(range(n)), r
    ap = argparse.ArgumentParser()
    ap.add_argument('-o', default='k.s'); ap.add_argument('--stamp', action='store_true')
    for p, d in (('WK', 3), ('WV', 3), ('rot', 3), ('rotw', 1), ('qpos', 25), ('prog_t', 22), ('progw_t', -1), ('WD', 4), ('wo_start', 0), ('wo_per', 1)):
        ap.add_argument('--' + p, type=int, default=d)
    args = ap.parse_args()
    kw = dict(vars(args)); o = kw.pop('o')
    open(o, 'w').write(G(**kw).build())
```

```python
import sys
from asmlib import *
import gen as G1mod
from gen import bitrev4, LOG2E, SPIN_LIMIT

WS_E = 0
WS_H1 = 0x1000
WS_Q = 0x8000
SB2 = 0x28000
WS_H2 = SB2; WS_X1 = SB2 + 0x3000; WS_HID = SB2 + 0x6000; WS_MODO = SB2 + 0xD000
WS_P = 0x50000
WS_STAMP = 0x100000
WS_SIZE = 0x200000
LW = 0; L_OP = 0x14000; L_WP = 0x15000; LM = 0x1A000; LDS_SIZE = 0x1B000
C_A, C_SM, C_PV, C_WO, C_QOK, C_PROG, C_PROGW, C_GO, C_DONE, C_K2, C_ACT, C_PF, C_PF2 = [4 * i for i in range(13)]
L_STAT = 0x40; L_SM = 0x100
L_ACT = L_WP; ACTS = 1344
R_G1, R_DOWN, R_FFN, R_Q, R_MOD, R_RED = 1, 2, 3, 4, 5, 6

def role_of(wg):
    x = wg & 7; u = wg >> 3
    if u < 2: return R_G1, 2 * x + u
    if u < 6:
        k = u - 2
        e = EXTRA.get((x, k >> 1))
        if e is None: return 0, 0
        return e[0], e[0] * 16 + 2 * e[1] + (k & 1)
    if u < 14: return R_Q, (x + 8 * ((u - 6) >> 1)) * 2 + ((u - 6) & 1)
    if u < 19: return R_MOD, 5 * x + u - 14
    if u < 25: return R_FFN, 6 * x + u - 19
    if u < 29: return R_DOWN, 4 * x + u - 25
    if u == 29: return R_RED, x
    return 0, 0
EXTRA = {(0, 0): (R_DOWN, 0), (0, 1): (R_DOWN, 1), (2, 0): (R_DOWN, 2), (2, 1): (R_DOWN, 3),
         (4, 0): (R_FFN, 0), (4, 1): (R_FFN, 1), (6, 0): (R_G1, 0), (6, 1): (R_FFN, 2), (1, 0): (R_G1, 1)}

class G(G1mod.G):
    def __init__(self, stamp=False, WK=3, WV=3, rot=3, rotw=1, qpos=25, prog_t=22, progw_t=-1, WD=4, wo_start=0, wo_per=1, sdelay=0, WK0=2, wk_sw=16, k2_t=6, WV2=6, wv_sw=16, hold=1, pf=1, WKL=6, wkl_sw=6, lagmask=0x72, pfb=1, nEf=8, nEd=6, late=0, WDM=2, k2_n=8, pre='V,V,VV,VW,VWW,VWW,VVW,VWW,VVWW'):
        self.sdelay = sdelay; self.WK0 = WK0; self.wk_sw = wk_sw; self.k2_t = k2_t; self.WV2 = WV2; self.wv_sw = wv_sw; self.hold = hold; self.pf = pf; self.late = late; self.pfb = pfb; self.nEf = nEf; self.nEd = nEd; self.WKL = WKL; self.wkl_sw = wkl_sw; self.lagmask = lagmask; self.WDM = WDM; self.k2_n = k2_n; self.pre = pre.split(',')
        self.a = Asm(); self.stamp_on = stamp
        self.WK = WK; self.WV = WV; self.rot = rot; self.rotw = rotw; self.qpos = qpos; self.prog_t = prog_t
        self.progw_t = progw_t; self.WD = WD; self.wo_start = wo_start; self.wo_per = wo_per

    def tag_from(self, v):
        self.a(f'''
        s_mov_b32 s85, 1664525
        v_mul_lo_u32 v{v}, s85, v{v}
        v_add_u32 v{v}, 1013904223, v{v}
        v_readfirstlane_b32 s94, v{v}
        ''')

    def poll(self, name, loads, check, sleep, tagged=False):
        a = self.a
        a(f's_mov_b32 s89, {SPIN_LIMIT}\nL_{name}_poll:')
        for l in loads: a(l)
        a('s_waitcnt vmcnt(0)')
        if tagged:
            for i in range(0, len(check), 2):
                a(f'v_xor_b32 v36, s94, v{check[i]}\nv_xor_b32 v37, s94, v{check[i+1]}')
                a('v_or_b32 v38, v36, v37' if i == 0 else 'v_or3_b32 v38, v38, v36, v37')
            a('v_cmp_ne_u32 vcc, 0, v38')
        else:
            c = list(check)
            if len(c) % 2 == 0:
                a(f'v_max_u32 v38, v{c[0]}, v{c[1]}'); c = c[2:]
            else:
                a(f'v_max3_u32 v38, v{c[0]}, v{c[1]}, v{c[2]}'); c = c[3:]
            for i in range(0, len(c), 2): a(f'v_max3_u32 v38, v38, v{c[i]}, v{c[i+1]}')
            a('v_cmp_eq_u32 vcc, -1, v38')
        a(f'''
        s_cbranch_vccz L_{name}_ok
        {"s_sleep %d" % sleep if sleep else ""}
        s_sub_u32 s89, s89, 1
        s_cbranch_scc0 L_{name}_poll
        L_{name}_ok:
        ''')

    def prologue(self):
        a = self.a
        a(f'''
        s_cmp_ge_u32 s2, 256
        s_cbranch_scc1 L_end
        s_load_dwordx16 s[16:31], s[0:1], 0
        s_load_dwordx8 s[32:39], s[0:1], 64
        s_load_dwordx4 s[40:43], s[0:1], 96
        v_lshrrev_b32 v1, 6, v0
        v_and_b32 v2, 63, v0
        v_readfirstlane_b32 s3, v1
        v_mov_b32 v13, {LM}
        s_mov_b32 s84, 0xffff0000
        v_mov_b32 v15, 0
        v_lshl_add_u32 v14, v2, 2, v13
        ds_write_b32 v14, v15
        s_lshr_b32 s13, s2, 5            ; b
        s_and_b32 s14, s2, 31            ; h
        v_lshlrev_b32 v7, 4, v2          ; lane*16
        ''')
        self.decode()
        a('''
        s_waitcnt lgkmcnt(0)
        s_barrier
        ''')
        self.srd(44, 42, WS_SIZE)
        self.stamp(0)
        a(f'''
        s_cmp_lt_u32 s3, 4
        s_cbranch_scc0 L_stream
        ''')

    def decode(self):
        a = self.a
        ext = 0
        for (x, kh), (r, idx) in EXTRA.items(): ext |= (r | idx << 2) << (4 * (2 * x + kh))
        a(f'''
        s_and_b32 s4, s2, 7              ; x
        s_lshr_b32 s5, s2, 3             ; u
        s_mov_b32 s7, 0
        s_mov_b32 s8, 0
        ''')
        for lo, hi, role, mul in ((0, 2, R_G1, 2), (14, 19, R_MOD, 5), (19, 25, R_FFN, 6), (25, 29, R_DOWN, 4), (29, 30, R_RED, 1)):
            a(f'''
            s_sub_u32 s9, s5, {lo}
            s_mul_i32 s10, s4, {mul}
            s_add_u32 s10, s10, s9
            s_cmp_lt_u32 s9, {hi-lo}
            s_cselect_b32 s7, {role}, s7
            s_cselect_b32 s8, s10, s8
            ''')
        a(f'''
        s_sub_u32 s9, s5, 6              ; Q: (x + 8*(k>>1))*2 + (k&1)
        s_lshr_b32 s10, s9, 1
        s_lshl_b32 s10, s10, 3
        s_add_u32 s10, s10, s4
        s_lshl_b32 s10, s10, 1
        s_and_b32 s11, s9, 1
        s_add_u32 s10, s10, s11
        s_cmp_lt_u32 s9, 8
        s_cselect_b32 s7, {R_Q}, s7
        s_cselect_b32 s8, s10, s8
        s_sub_u32 s9, s5, 2              ; extras
        s_lshr_b32 s10, s9, 1
        s_and_b32 s10, s10, 1
        s_lshl_b32 s11, s4, 1
        s_add_u32 s10, s10, s11
        s_lshl_b32 s10, s10, 2
        s_mov_b32 s86, {ext & 0xffffffff}
        s_mov_b32 s87, {ext >> 32}
        s_lshr_b64 s[86:87], s[86:87], s10
        s_and_b32 s10, s86, 3            ; role
        s_bfe_u32 s11, s86, 0x20002      ; idx
        s_lshl_b32 s11, s11, 1
        s_lshl_b32 s12, s10, 4
        s_add_u32 s11, s11, s12
        s_and_b32 s12, s9, 1
        s_add_u32 s11, s11, s12
        s_cmp_lt_u32 s9, 4
        s_cselect_b32 s7, s10, s7
        s_cselect_b32 s8, s11, s8
        ''')

    def pfld(self, v, srd, so): self.a(f'buffer_load_dword v160, v{v}, {srd}, {so} offen nt')

    def prefetch(self):
        a = self.a
        self.srd(64, 36, 640 * 7680)
        a(f'''
        s_sub_u32 s90, s5, 14
        s_cmp_ge_u32 s90, 16
        s_cbranch_scc1 L_pf_done
        s_lshl_b32 s92, s4, 7
        s_cmp_lt_u32 s3, 2
        s_cbranch_scc1 L_pfA
        s_cmp_eq_u32 s4, 6
        s_cselect_b32 s92, 1024, 0
        s_cmp_eq_u32 s4, 1
        s_cselect_b32 s92, 1152, s92
        s_cmp_eq_u32 s92, 0
        s_cbranch_scc1 L_pf_done
        L_pfA:
        s_lshl_b32 s90, s90, 1
        s_and_b32 s91, s3, 1
        s_add_u32 s90, s90, s91
        s_mul_i32 s91, s90, {20*7680}
        s_add_u32 s92, s92, s91
        v_lshrrev_b32 v16, 1, v2
        v_min_u32 v16, 19, v16
        v_mul_u32_u24 v16, 7680, v16
        v_and_b32 v17, 1, v2
        v_mul_u32_u24 v17, 1280, v17
        v_add_u32 v16, v16, v17
        ''')
        self.pfld(16, 's[64:67]', 's92')
        a('L_pf_done:')

    def prefetch_b(self, sfx):
        a = self.a
        a(f'''
        s_cmp_lt_u32 s3, 2
        s_cbranch_scc1 L_pb_done{sfx}
        s_mul_i32 s90, s5, 20
        v_lshrrev_b32 v16, 3, v2
        s_cmp_eq_u32 s3, 3
        s_cbranch_scc1 L_pb3{sfx}
        ''')
        self.srd(64, 22, 640 * 8192)
        a(f'''
        v_bfe_u32 v17, v2, 1, 2
        v_lshlrev_b32 v17, 11, v17
        v_and_b32 v18, 1, v2
        v_lshl_add_u32 v17, v18, 7, v17
        v_lshl_add_u32 v18, v16, 13, v17
        v_and_b32 v16, 3, v16
        v_lshl_add_u32 v19, v16, 13, v17
        s_lshl_b32 s91, s90, 13
        s_lshl_b32 s92, s4, 8
        s_add_u32 s92, s92, s91
        ''')
        self.pfld(18, 's[64:67]', 's92'); a(f's_add_u32 s92, s92, {8*8192}')
        self.pfld(18, 's[64:67]', 's92'); a(f's_add_u32 s92, s92, {8*8192}')
        self.pfld(19, 's[64:67]', 's92')
        if sfx == '':
            a('s_waitcnt vmcnt(0)')
            self.signal(C_PF)
        a(f's_branch L_pb_done{sfx}\nL_pb3{sfx}:')
        self.srd(64, 36, 640 * 7680)
        a(f'''
        v_and_b32 v17, 7, v2
        v_min_u32 v17, 4, v17
        v_lshlrev_b32 v17, 7, v17
        v_mul_u32_u24 v18, 7680, v16
        v_add_u32 v18, v18, v17
        v_and_b32 v16, 3, v16
        v_mul_u32_u24 v19, 7680, v16
        v_add_u32 v19, v19, v17
        s_mul_i32 s91, s90, 7680
        s_mul_i32 s92, s4, 640
        s_add_u32 s92, s92, 2560
        s_add_u32 s92, s92, s91
        ''')
        if sfx == '': self.lds_wait(C_PF, 1, sleep=2)
        self.pfld(18, 's[64:67]', 's92'); a(f's_add_u32 s92, s92, {8*7680}')
        self.pfld(18, 's[64:67]', 's92'); a(f's_add_u32 s92, s92, {8*7680}')
        self.pfld(19, 's[64:67]', 's92')
        if sfx == '':
            a(f's_cmp_lg_u32 s7, {R_MOD}\ns_cbranch_scc1 L_pb_done{sfx}\ns_waitcnt vmcnt(0)')
            self.signal(C_PF2)
        a(f'L_pb_done{sfx}:')

    def prefetch_late(self, sfx):
        a = self.a
        a(f's_cmp_lg_u32 s3, 0\ns_cbranch_scc1 L_pl1{sfx}')
        self.srd(68, 32, 1728 * 1280)
        a(f'''
        v_min_u32 v16, 53, v2
        v_mul_u32_u24 v16, 1280, v16
        s_mul_i32 s91, s5, {54*1280}
        s_lshl_b32 s92, s4, 7
        s_add_u32 s92, s92, s91
        s_lshl_b32 s93, s4, 6
        s_add_u32 s93, s93, 1024
        s_add_u32 s93, s93, s91
        ''')
        self.lds_wait(C_PROGW if self.progw_t >= 0 else C_DONE, 1, sleep=4)
        self.pfld(16, 's[68:71]', 's92')
        a(f'''
        s_and_b32 s92, s4, 5
        s_cmp_lg_u32 s92, 0
        s_cbranch_scc1 L_pl_done{sfx}
        ''')
        self.pfld(16, 's[68:71]', 's93')
        a(f's_branch L_pl_done{sfx}\nL_pl1{sfx}:')
        self.srd(64, 28, 640 * 3456); self.srd(68, 30, 640 * 3456)
        a(f'''
        s_mul_i32 s92, s4, 3
        s_mov_b32 s91, s92
        s_mov_b32 s93, s92
        s_cmp_eq_u32 s4, 4
        s_cselect_b32 s91, 24, s91
        s_cselect_b32 s93, 25, s93
        s_cmp_eq_u32 s4, 6
        s_cselect_b32 s91, 26, s91
        v_and_b32 v17, 7, v2
        v_min_u32 v18, 2, v17
        v_add_u32 v18, s92, v18
        v_mov_b32 v19, s91
        v_cmp_eq_u32 vcc, 3, v17
        v_cndmask_b32 v18, v18, v19, vcc
        v_mov_b32 v19, s93
        v_cmp_eq_u32 vcc, 4, v17
        v_cndmask_b32 v18, v18, v19, vcc
        v_lshlrev_b32 v17, 7, v18
        v_lshrrev_b32 v16, 3, v2
        s_lshl_b32 s92, s3, 3
        s_sub_u32 s92, s92, 8
        v_add_u32 v16, s92, v16
        v_min_u32 v16, 19, v16
        v_mul_u32_u24 v18, 3456, v16
        v_add_u32 v18, v18, v17
        s_mul_i32 s92, s5, {20*3456}
        ''')
        self.lds_wait(C_PROGW if self.progw_t >= 0 else C_DONE, 1, sleep=4)
        self.pfld(18, 's[64:67]', 's92'); self.pfld(18, 's[68:71]', 's92')
        a(f'L_pl_done{sfx}:')

    def dma640_setup(self):
        a = self.a
        a(f'''
        v_lshrrev_b32 v16, 3, v2
        s_mul_i32 s85, s3, 160
        v_add_u32 v16, s85, v16
        v_mul_lo_u32 v16, s52, v16
        v_and_b32 v17, 3, v2
        v_lshl_add_u32 v16, v17, 4, v16
        v_mov_b32 v17, 0
        v_mov_b32 v18, s48
        v_mov_b32 v19, s49
        v_mov_b32 v20, s50
        v_mov_b32 v21, s51
        v_and_b32 v22, 4, v2
        v_cmp_ne_u32 vcc, 0, v22
        v_cndmask_b32 v18, v18, v20, vcc
        v_cndmask_b32 v19, v19, v21, vcc
        v_lshl_add_u64 v[4:5], v[16:17], 0, v[18:19]
        s_lshl_b32 s54, s52, 3
        s_mov_b32 s55, 0
        ''')
    def dma640_issue(self, lo, hi, WD=99):
        a = self.a
        for n in range(lo, hi):
            a(f's_add_u32 m0, s87, {LW + 1024*n}')
            if n >= WD: a(f's_waitcnt vmcnt({WD-1})')
            a(f'global_load_lds_dwordx4 v[4:5], off nt')
            if n < 19: a('v_lshl_add_u64 v[4:5], v[4:5], 0, s[54:55]')
    def dma640(self, WD):
        self.dma640_setup(); self.dma640_issue(0, 20, WD)

    def wfrags640(self, younger=None):
        a = self.a
        for n in range(5):
            if younger is not None: a(f's_waitcnt vmcnt({younger + 4 * (4 - n)})')
            for T in range(4):
                b = 40 + 16 * n + 4 * T
                a(f'ds_read_b64_tr_b16 v[{b}:{b+1}], v9 offset:{LW + 4096*n + 32*T}')
                a(f'ds_read_b64_tr_b16 v[{b+2}:{b+3}], v9 offset:{LW + 4096*n + 32*T + 512}')
            a('s_waitcnt lgkmcnt(0)')

    def mfma640(self, skip):
        a = self.a
        for n in range(5):
            for T in range(4):
                b = 40 + 16 * n + 4 * T; d = 16 + 4 * T
                a(f'v_mfma_f32_16x16x32_bf16 v[{d}:{d+3}], v[{b}:{b+3}], v[{120+4*n}:{123+4*n}], {"0" if n == 0 else "v[%d:%d]" % (d, d+3)}')
        for T in range(4):
            a(f'ds_write_b128 v10, v[{16+4*T}:{19+4*T}] offset:{LW + 1024*T}')
        self.arrive(C_A, 3, skip)
        for w in range(4):
            a(f'ds_read_b128 v[{40+4*w}:{43+4*w}], v11 offset:{LW + 20480*w}')
            a(f'ds_read_b128 v[{56+4*w}:{59+4*w}], v11 offset:{LW + 20480*w + 2048}')

    def red640(self):
        self.a('s_waitcnt lgkmcnt(0)')
        self.sum_partials(40, [40, 44, 48, 52]); self.sum_partials(56, [56, 60, 64, 68])

    def silu(self, ns=range(5)):
        a = self.a
        a(f's_mov_b32 s85, {LOG2E | 0x80000000}')
        for n in ns:
            b = 120 + 4 * n
            for i in range(4): self.unpack(16 + 2 * i, b + i)
            for i in range(8): a(f'v_mul_f32 v{24+i}, s85, v{16+i}')
            for i in range(8): a(f'v_exp_f32 v{24+i}, v{24+i}')
            for i in range(8): a(f'v_add_f32 v{24+i}, 1.0, v{24+i}')
            for i in range(8): a(f'v_rcp_f32 v{24+i}, v{24+i}')
            for i in range(8): a(f'v_mul_f32 v{16+i}, v{16+i}, v{24+i}')
            for i in range(4): a(f'v_cvt_pk_bf16_f32 v{b+i}, v{16+2*i}, v{17+2*i}')

    def add64(self, d, base, off):
        self.a(f's_add_u32 s{d}, s{base}, {off}\ns_addc_u32 s{d+1}, s{base+1}, 0')

    def control(self):
        a = self.a
        a('s_setprio 3')
        if self.pf: self.prefetch()
        if self.pfb:
            a(f's_cmp_eq_u32 s7, {R_G1}\ns_cbranch_scc1 L_pb_done')
            self.prefetch_b('')
        a(f'''
        s_cmp_eq_u32 s7, 0
        s_cbranch_scc1 L_ctrl_end
        v_mov_b32 v3, 0
        buffer_load_dword v167, v3, s[44:47], 0 offen sc1
        s_mul_i32 s87, s3, 20480
        v_lshrrev_b32 v16, 4, v2         ; s
        v_bfe_u32 v17, v2, 2, 2          ; r4
        v_and_b32 v18, 3, v2             ; c
        v_lshl_add_u32 v19, v16, 3, v17  ; 8s+r4
        v_lshlrev_b32 v9, 7, v19
        v_lshl_add_u32 v9, v18, 3, v9
        v_add_u32 v9, s87, v9
        v_add_u32 v10, s87, v7
        v_and_b32 v17, 7, v2             ; b
        v_bfe_u32 v18, v2, 3, 1          ; t
        v_lshlrev_b32 v11, 8, v16
        v_lshl_add_u32 v11, v17, 4, v11
        v_lshl_add_u32 v11, v18, 10, v11
        v_mul_u32_u24 v19, 1280, v17
        v_lshl_add_u32 v6, v16, 4, v19
        v_lshlrev_b32 v8, 5, v18
        v_lshl_add_u32 v8, v16, 3, v8    ; (16t+4s')*2 bytes
        v_lshlrev_b32 v12, 2, v2         ; lane*4
        s_cmp_eq_u32 s7, {R_Q}
        s_cbranch_scc1 L_role_q
        s_cmp_eq_u32 s7, {R_FFN}
        s_cbranch_scc1 L_role_ffn
        s_cmp_eq_u32 s7, {R_DOWN}
        s_cbranch_scc1 L_role_down
        s_cmp_eq_u32 s7, {R_RED}
        s_cbranch_scc1 L_role_red
        ''')
        a(f'''
        s_movk_i32 s52, 7680
        s_cmp_eq_u32 s7, {R_G1}
        s_cbranch_scc1 L_role_g1
        ''')
        self.srd(56, 34, 10240)
        a('s_mul_i32 s85, s3, 320')
        for n in range(5):
            a(f'buffer_load_dwordx4 v[{120+4*n}:{123+4*n}], v6, s[56:59], s85 offen offset:{64*n}')
        a(f'''
        s_lshl_b32 s9, s8, 7
        s_add_u32 s9, s9, 2560
        s_add_u32 s48, s36, s9
        s_addc_u32 s49, s37, 0
        s_add_u32 s50, s48, 64
        s_addc_u32 s51, s49, 0
        s_waitcnt vmcnt(0)
        ''')
        self.silu()
        if self.pfb: self.lds_wait(C_PF2, 1, sleep=2)
        self.dma640(self.WDM)
        a('s_waitcnt vmcnt(0)')
        self.stamp(2)
        self.wfrags640()
        self.mfma640('L_ctrl_end')
        a(f'''
        v_and_b32 v22, 7, v2
        v_mul_u32_u24 v22, 5120, v22
        v_add_u32 v22, v22, v8
        s_lshl_b32 s90, s8, 7
        s_add_u32 s90, s90, {WS_MODO}
        ''')
        self.red640()
        self.pack4(24, 40); self.pack4(26, 56)
        self.sanitize([24, 25, 26, 27])
        self.lds_wait(C_QOK, 1, sleep=8)
        a(f'''
        buffer_store_dwordx2 v[24:25], v22, s[44:47], s90 offen sc1
        buffer_store_dwordx2 v[26:27], v22, s[44:47], s90 offen offset:64 sc1
        s_branch L_ctrl_end
        L_role_g1:
        s_lshl_b32 s9, s8, 6
        s_add_u32 s48, s36, s9
        s_addc_u32 s49, s37, 0
        s_add_u32 s50, s48, 1280
        s_addc_u32 s51, s49, 0
        v_add_u32 v34, v19, v8
        ''')
        self.dma640(99)
        self.srd(60, 16, 10240)
        a(f'''
        buffer_load_dwordx2 v[150:151], v34, s[60:63], s9 offen
        s_lshl_b32 s85, s8, 2
        s_add_u32 s85, s85, s3
        s_lshl_b32 s85, s85, 11
        s_add_u32 s85, s85, {SB2}
        v_mov_b32 v152, -1
        v_mov_b32 v153, -1
        v_mov_b32 v154, -1
        v_mov_b32 v155, -1
        buffer_store_dwordx4 v[152:155], v7, s[44:47], s85 offen sc1
        buffer_store_dwordx4 v[152:155], v7, s[44:47], s85 offen offset:1024 sc1
        v_and_b32 v16, 7, v2
        v_mul_u32_u24 v16, {ACTS}, v16
        v_lshrrev_b32 v17, 4, v2
        v_lshl_add_u32 v16, v17, 4, v16
        s_mul_i32 s85, s3, 320
        s_add_u32 s85, s85, {L_ACT}
        v_add_u32 v35, s85, v16
        ''')
        self.signal(C_GO)
        self.stamp(1)
        self.lds_wait(C_ACT, 8)
        for n in range(5): a(f'ds_read_b128 v[{120+4*n}:{123+4*n}], v35 offset:{64*n}')
        self.stamp(3)
        self.wfrags640(younger=3)
        self.tag_from(167)
        a('s_waitcnt vmcnt(0)')
        self.stamp(2)
        self.mfma640('L_ctrl_end')
        a(f'''
        v_and_b32 v22, 7, v2
        v_lshl_add_u32 v23, v22, 3, v13
        ds_read_b64 v[36:37], v23 offset:{L_STAT}
        ''')
        self.red640()
        self.pack4(24, 40); self.pack4(26, 56)
        self.unpack4(56, 26)
        a('v_pk_add_f32 v[56:57], v[56:57], 1.0 op_sel_hi:[1,0]\nv_pk_add_f32 v[58:59], v[58:59], 1.0 op_sel_hi:[1,0]')
        self.round4(56, 26)
        self.unpack4(40, 24)
        self.unpack4(44, 150)
        for i in range(4): a(f'v_sub_f32 v{44+i}, v{44+i}, v36')
        self.round4(44, 28)
        for i in range(4): a(f'v_mul_f32 v{44+i}, v{44+i}, v37')
        self.round4(44, 28)
        a('v_pk_mul_f32 v[44:45], v[44:45], v[56:57]\nv_pk_mul_f32 v[46:47], v[46:47], v[58:59]')
        self.round4(44, 28)
        a('v_pk_add_f32 v[44:45], v[44:45], v[40:41]\nv_pk_add_f32 v[46:47], v[46:47], v[42:43]')
        a(f'''
        v_cvt_pk_bf16_f32 v28, v44, v45
        v_cvt_pk_bf16_f32 v30, v46, v47
        v_mov_b32 v29, s94
        v_mov_b32 v31, s94
        v_lshlrev_b32 v22, 4, v22               ; b*16
        v_lshl_add_u32 v22, v8, 4, v22          ; + (16t+4s')*32 = t*512 + s'*128
        s_lshl_b32 s85, s8, 10
        s_add_u32 s85, s85, {WS_H1}
        buffer_store_dwordx4 v[28:31], v22, s[44:47], s85 offen sc1
        s_branch L_ctrl_end
        ''')
        a(f'''
        L_role_q:
        s_lshl_b32 s9, s8, 7
        s_add_u32 s48, s22, s9
        s_addc_u32 s49, s23, 0
        s_add_u32 s50, s48, 64
        s_addc_u32 s51, s49, 0
        s_movk_i32 s52, 8192
        ''')
        if self.pfb: self.lds_wait(C_PF, 1, sleep=2)
        self.dma640(99)
        a(f'''
        s_and_b32 s85, s8, 1
        s_lshl_b32 s85, s85, 2
        s_add_u32 s85, s85, s3
        s_lshl_b32 s85, s85, 5
        s_lshr_b32 s86, s8, 1
        s_add_u32 s85, s85, s86
        s_mul_i32 s85, s85, 2560
        s_add_u32 s85, s85, {WS_P}
        v_mov_b32 v152, -1
        v_mov_b32 v153, -1
        v_mov_b32 v154, -1
        v_mov_b32 v155, -1
        v_lshlrev_b32 v19, 3, v2
        buffer_store_dwordx4 v[152:155], v7, s[44:47], s85 offen sc1
        buffer_store_dwordx4 v[152:155], v7, s[44:47], s85 offen offset:1024 sc1
        buffer_store_dwordx2 v[152:153], v19, s[44:47], s85 offen offset:2048 sc1
        ''')
        self.signal(C_GO)
        a('s_waitcnt vmcnt(0)')
        self.stamp(2)
        self.tag_from(167)
        self.wfrags640()
        a(f'''
        s_mul_i32 s90, s3, 5120
        s_add_u32 s90, s90, {WS_H1}
        s_add_u32 s91, s90, 4096
        ''')
        self.stamp(3)
        loads = [f'buffer_load_dwordx4 v[{120+4*n}:{123+4*n}], v7, s[44:47], s{90 if n < 4 else 91} offen offset:{1024*(n%4)} sc1' for n in range(5)]
        self.poll('h1', loads, [121 + 2 * i for i in range(10)], 4, tagged=True)
        self.stamp(4)
        for n in range(5):
            b = 120 + 4 * n
            a(f'v_mov_b32_dpp v{b+3}, v{b+2} row_ror:8 row_mask:0xf bank_mask:0xf')
            a(f'v_mov_b32 v{b+1}, v{b+2}')
            a(f'v_mov_b32_dpp v{b+2}, v{b} row_ror:8 row_mask:0xf bank_mask:0xf')
        self.mfma640('L_ctrl_end')
        a(f'''
        v_and_b32 v22, 7, v2
        v_lshlrev_b32 v22, 14, v22              ; b*32*512
        v_lshl_add_u32 v22, v8, 1, v22          ; + col*4
        s_lshl_b32 s85, s8, 8                   ; h*512 + half*256
        s_add_u32 s85, s85, {WS_Q}
        v_mov_b32 v29, s94
        v_mov_b32 v31, s94
        v_mov_b32 v33, s94
        v_mov_b32 v35, s94
        ''')
        self.red640()
        a(f'''
        v_cvt_pk_bf16_f32 v28, v40, v41
        v_cvt_pk_bf16_f32 v30, v42, v43
        v_cvt_pk_bf16_f32 v32, v56, v57
        v_cvt_pk_bf16_f32 v34, v58, v59
        buffer_store_dwordx4 v[28:31], v22, s[44:47], s85 offen sc1
        buffer_store_dwordx4 v[32:35], v22, s[44:47], s85 offen offset:128 sc1
        s_branch L_ctrl_end
        ''')
        a(f'''
        L_role_ffn:
        s_lshl_b32 s9, s8, 6
        s_add_u32 s48, s28, s9
        s_addc_u32 s49, s29, 0
        s_add_u32 s50, s30, s9
        s_addc_u32 s51, s31, 0
        s_movk_i32 s52, 3456
        ''')
        self.dma640_setup()
        self.dma640_issue(0, self.nEf, 1)
        self.lds_wait(C_DONE, 1, sleep=4)
        self.dma640_issue(self.nEf, 20)
        self.wfrags640(younger=0)
        self.stamp(2)
        a(f'''
        s_mul_i32 s90, s3, 320
        s_add_u32 s90, s90, {WS_H2}
        v_and_b32 v32, 7, v2
        v_lshlrev_b32 v32, 4, v32
        v_bfe_u32 v33, v2, 3, 1
        v_lshl_add_u32 v32, v33, 8, v32
        v_bfe_u32 v33, v2, 5, 1
        v_lshl_add_u32 v32, v33, 7, v32
        v_bfe_u32 v33, v2, 4, 1
        v_lshl_add_u32 v32, v33, 3, v32
        s_lshl_b32 s91, s8, 9
        s_add_u32 s91, s91, {WS_HID}
        ''')
        self.lds_wait(C_WO, 8, sleep=4)
        self.stamp(3)
        loads = [f'buffer_load_dwordx4 v[{120+4*n}:{123+4*n}], v6, s[44:47], s90 offen offset:{64*n} sc1' for n in range(5)]
        self.poll('h2', loads, list(range(120, 140)), 2)
        self.stamp(4)
        self.mfma640('L_ctrl_end')
        self.red640()
        self.round4(40, 28); self.round4(56, 30)
        for i in range(4):
            a(f'v_cmp_lt_f32 vcc, 0, v{40+i}\nv_cndmask_b32 v{20+i}, 0, 1.0, vcc')
        a('v_pk_mul_f32 v[40:41], v[40:41], v[20:21]\nv_pk_mul_f32 v[42:43], v[42:43], v[22:23]')
        a('v_pk_mul_f32 v[40:41], v[40:41], v[56:57]\nv_pk_mul_f32 v[42:43], v[42:43], v[58:59]')
        self.pack4(28, 40); self.sanitize([28, 29])
        a(f'''
        buffer_store_dwordx2 v[28:29], v32, s[44:47], s91 offen sc1
        s_branch L_ctrl_end
        ''')
        a('L_role_down:')
        self.srd(72, 32, 1728 * 1280); self.srd(80, 38, 10240)
        a(f'''
        s_add_u32 s76, s42, {WS_HID}
        s_addc_u32 s77, s43, 0
        s_mov_b32 s78, {27*1024}
        s_mov_b32 s79, 0x20000
        v_lshrrev_b32 v16, 1, v2
        v_mul_u32_u24 v4, 1280, v16
        v_and_b32 v16, 1, v2
        v_lshl_add_u32 v4, v16, 4, v4
        s_mul_i32 s85, s3, {7*64*1280}
        s_lshl_b32 s9, s8, 5
        s_add_u32 s85, s85, s9
        s_mul_i32 s87, s3, 14336
        ''')
        for n in range(14):
            if n == self.nEd: self.lds_wait(C_DONE, 1, sleep=4)
            a(f's_add_u32 m0, s87, {LW + 1024*n}')
            if n < self.nEd: a(f's_waitcnt vmcnt(0)')
            a(f'buffer_load_dwordx4 v4, s[72:75], s85 offen nt lds')
            a(f's_add_u32 s85, s85, {32*1280}')
        a(f'''
        v_lshrrev_b32 v16, 4, v2         ; s
        v_bfe_u32 v17, v2, 2, 2          ; r4
        v_lshl_add_u32 v19, v16, 3, v17
        v_lshlrev_b32 v9, 5, v19
        v_bfe_u32 v17, v2, 1, 1
        v_lshl_add_u32 v9, v17, 10, v9
        v_and_b32 v17, 1, v2
        v_lshl_add_u32 v9, v17, 3, v9
        v_add_u32 v9, s87, v9
        v_add_u32 v10, s87, v7
        v_and_b32 v17, 7, v2             ; b
        v_bfe_u32 v18, v2, 3, 1          ; a / half
        v_lshlrev_b32 v3, 7, v16
        v_lshl_add_u32 v3, v17, 4, v3
        v_lshl_add_u32 v3, v18, 9, v3
        s_mul_i32 s86, s3, 7168
        v_add_u32 v3, s86, v3
        v_and_b32 v16, 1, v16            ; s'
        v_lshlrev_b32 v11, 8, v16
        v_lshl_add_u32 v11, v17, 4, v11
        v_lshl_add_u32 v11, v18, 10, v11
        v_lshlrev_b32 v8, 4, v18
        v_lshl_add_u32 v8, v16, 3, v8    ; (8a+4s')*2
        v_mul_u32_u24 v5, 5120, v17
        v_add_u32 v5, v5, v8
        v_mul_u32_u24 v6, 1280, v17
        v_add_u32 v6, v6, v8
        s_add_u32 s90, s9, {WS_MODO + 3840}
        s_add_u32 s91, s9, {WS_X1}
        s_movk_i32 s92, 4096
        s_waitcnt vmcnt(0)
        ''')
        self.stamp(2)
        self.tag_from(167)
        for n in range(7):
            for ac in range(2):
                b = 40 + 8 * n + 4 * ac
                a(f'ds_read_b64_tr_b16 v[{b}:{b+1}], v9 offset:{LW + 2048*n + 16*ac}')
                a(f'ds_read_b64_tr_b16 v[{b+2}:{b+3}], v9 offset:{LW + 2048*n + 16*ac + 128}')
            if n % 2: a('s_waitcnt lgkmcnt(0)')
        self.lds_wait(C_WO, 8, sleep=4)
        self.poll('gb', ['buffer_load_dwordx2 v[32:33], v5, s[44:47], s90 offen sc1'], [32, 33], 4)
        self.unpack4(140, 32)
        self.stamp(3)
        self.poll('x1', ['buffer_load_dwordx2 v[32:33], v6, s[44:47], s91 offen sc1'], [32, 33], 4)
        self.unpack4(144, 32)
        self.stamp(5)
        loads = [f'buffer_load_dwordx4 v[{104+4*n}:{107+4*n}], v3, s[76:79], {"0" if n < 4 else "s92"} offen offset:{1024*(n%4)} sc1' for n in range(7)]
        self.poll('hid', loads, list(range(104, 132)), 1)
        self.stamp(4)
        for n in range(7):
            for ac in range(2):
                b = 40 + 8 * n + 4 * ac; d = 16 + 4 * ac
                a(f'v_mfma_f32_16x16x32_bf16 v[{d}:{d+3}], v[{b}:{b+3}], v[{104+4*n}:{107+4*n}], {"0" if n == 0 else "v[%d:%d]" % (d, d+3)}')
        a(f'ds_write_b128 v10, v[16:19] offset:{LW}\nds_write_b128 v10, v[20:23] offset:{LW + 1024}')
        self.arrive(C_A, 3, 'L_ctrl_end')
        for w in range(4):
            a(f'ds_read_b128 v[{40+8*w}:{43+8*w}], v11 offset:{LW + 14336*w}')
            a(f'ds_read_b128 v[{44+8*w}:{47+8*w}], v11 offset:{LW + 14336*w + 640}')
        a('s_waitcnt lgkmcnt(0)')
        self.sum_partials(40, [40 + 4 * i for i in range(8)])
        self.round4(40, 28)
        a('v_pk_mul_f32 v[40:41], v[40:41], v[140:141]\nv_pk_mul_f32 v[42:43], v[42:43], v[142:143]')
        self.round4(40, 28)
        a('v_pk_add_f32 v[40:41], v[40:41], v[144:145]\nv_pk_add_f32 v[42:43], v[42:43], v[146:147]')
        self.pack4(28, 40)
        a(f'''
        s_mov_b32 exec_hi, 0
        buffer_store_dwordx2 v[28:29], v6, s[80:83], s9 offen
        s_cmp_lg_u32 s8, 0
        s_cbranch_scc1 L_noepoch
        s_mov_b64 exec, 1
        v_mov_b32 v20, 0
        v_mov_b32 v21, s94
        buffer_store_dword v21, v20, s[44:47], 0 offen sc1
        L_noepoch:
        s_mov_b64 exec, -1
        s_branch L_ctrl_end
        ''')
        a('L_role_red:')
        self.srd(60, 16, 10240)
        a(f'''
        v_lshlrev_b32 v8, 3, v2          ; lane*8
        s_mul_i32 s9, s8, 1280
        buffer_load_dwordx2 v[26:27], v8, s[60:63], s9 offen
        buffer_load_dwordx2 v[28:29], v8, s[60:63], s9 offen offset:512
        buffer_load_dword v30, v12, s[60:63], s9 offen offset:1024
        s_lshl_b32 s90, s8, 14
        s_lshl_b32 s85, s3, 12
        s_add_u32 s90, s90, s85
        s_add_u32 s90, s90, {WS_Q}
        s_waitcnt vmcnt(0)
        ''')
        self.tag_from(167)
        for i in range(5): self.unpack(120 + 2 * i, 26 + i)
        self.lds_wait(C_QOK, 1, sleep=8)
        loads = [f'buffer_load_dwordx4 v[{40+4*n}:{43+4*n}], v7, s[44:47], s90 offen offset:{1024*n} sc1' for n in range(4)]
        self.poll('qall', loads, [41 + 2 * i for i in range(8)], 8, tagged=True)
        a(f'''
        s_mul_i32 s90, s8, 5120
        s_add_u32 s90, s90, {WS_MODO}
        ''')
        loads = []
        for ch in range(3):
            b = 40 + 6 * ch
            loads += [f'buffer_load_dwordx2 v[{b}:{b+1}], v8, s[44:47], s90 offen offset:{1280*ch} sc1',
                      f'buffer_load_dwordx2 v[{b+2}:{b+3}], v8, s[44:47], s90 offen offset:{1280*ch + 512} sc1',
                      f'buffer_load_dword v{b+4}, v12, s[44:47], s90 offen offset:{1280*ch + 1024} sc1']
        self.poll('modo', loads, [40 + 6 * ch + i for ch in range(3) for i in range(5)], 8)
        for ch in range(3):
            for i in range(5): self.unpack(130 + 10 * ch + 2 * i, 40 + 6 * ch + i)
        for i in range(5):
            a(f'v_pk_add_f32 v[{150+2*i}:{151+2*i}], v[{150+2*i}:{151+2*i}], 1.0 op_sel_hi:[1,0]')
            a(f'v_cvt_pk_bf16_f32 v26, v{150+2*i}, v{151+2*i}')
            self.unpack(150 + 2 * i, 26)
        for i in range(10): a(f'v_mov_b32 v{16+i}, 0')
        a(f'''
        s_lshl_b32 s91, s8, 5
        s_lshl_b32 s85, s3, 3
        s_add_u32 s91, s91, s85
        s_mul_i32 s91, s91, 2560
        s_add_u32 s91, s91, {WS_P}
        s_mul_i32 s87, s3, 2560
        v_add_u32 v10, s87, v7
        v_add_u32 v11, s87, v8
        s_add_u32 s92, s9, {WS_H2}
        s_add_u32 s93, s9, {WS_X1}
        ''')
        self.stamp(2)
        self.lds_wait(C_PROG, 1, sleep=8)
        self.stamp(3)
        a(f'''
        s_mov_b32 s90, 0xff
        s_mov_b32 s89, {SPIN_LIMIT}
        v_and_b32 v34, 7, v2
        v_mul_u32_u24 v34, 2560, v34
        L_p_poll:
        s_mov_b32 s95, s90
        ds_read_b32 v14, v13 offset:{C_WO}
        s_waitcnt lgkmcnt(0)
        v_readfirstlane_b32 s88, v14
        s_cmp_ge_u32 s88, 8
        s_cbranch_scc1 L_p_fetch
        s_sleep 6
        buffer_load_dword v35, v34, s[44:47], s91 offen offset:2556 sc1
        s_waitcnt vmcnt(0)
        v_cmp_ne_u32 vcc, -1, v35
        s_nop 1
        s_and_b32 s95, s90, vcc_lo
        s_cbranch_scc0 L_p_next
        L_p_fetch:
        ''')
        for g in range(8):
            b = 40 + 10 * g
            a(f'''
            s_bitcmp1_b32 s95, {g}
            s_cbranch_scc0 L_p_sk{g}
            s_add_u32 s85, s91, {2560*g}
            buffer_load_dwordx4 v[{b}:{b+3}], v7, s[44:47], s85 offen sc1
            buffer_load_dwordx4 v[{b+4}:{b+7}], v7, s[44:47], s85 offen offset:1024 sc1
            buffer_load_dwordx2 v[{b+8}:{b+9}], v8, s[44:47], s85 offen offset:2048 sc1
            L_p_sk{g}:
            ''')
        a('s_waitcnt vmcnt(0)')
        for g in range(8):
            b = 40 + 10 * g
            a(f'''
            s_bitcmp1_b32 s95, {g}
            s_cbranch_scc0 L_p_ck{g}
            v_max3_u32 v36, v{b}, v{b+1}, v{b+2}
            v_max3_u32 v37, v{b+3}, v{b+4}, v{b+5}
            v_max3_u32 v36, v36, v{b+6}, v{b+7}
            v_max3_u32 v37, v37, v{b+8}, v{b+9}
            v_max_u32 v36, v36, v37
            v_cmp_eq_u32 vcc, -1, v36
            s_cbranch_vccnz L_p_ck{g}
            s_bitset0_b32 s90, {g}
            ''')
            for i in range(5): a(f'v_pk_add_f32 v[{16+2*i}:{17+2*i}], v[{16+2*i}:{17+2*i}], v[{b+2*i}:{b+2*i+1}]')
            a(f'L_p_ck{g}:')
        a(f'''
        s_cmp_eq_u32 s90, 0
        s_cbranch_scc1 L_p_ok
        L_p_next:
        s_sub_u32 s89, s89, 1
        s_cbranch_scc0 L_p_poll
        L_p_ok:
        ''')
        self.stamp(4)
        a(f'''
        ds_write_b128 v10, v[16:19] offset:{LW}
        ds_write_b128 v10, v[20:23] offset:{LW + 1024}
        ds_write_b64 v11, v[24:25] offset:{LW + 2048}
        ''')
        self.arrive(C_A, 3, 'L_ctrl_end')
        for w in range(4):
            b = 40 + 10 * w
            a(f'ds_read_b128 v[{b}:{b+3}], v7 offset:{LW + 2560*w}')
            a(f'ds_read_b128 v[{b+4}:{b+7}], v7 offset:{LW + 2560*w + 1024}')
            a(f'ds_read_b64 v[{b+8}:{b+9}], v8 offset:{LW + 2560*w + 2048}')
        a('s_waitcnt lgkmcnt(0)')
        U = 40
        def P(r, i): return f'v[{r+2*i}:{r+2*i+1}]'
        for i in range(5): a(f'v_pk_add_f32 {P(40,i)}, {P(40,i)}, {P(50,i)}')
        for i in range(5): a(f'v_pk_add_f32 {P(60,i)}, {P(60,i)}, {P(70,i)}')
        for i in range(5): a(f'v_pk_add_f32 {P(40,i)}, {P(40,i)}, {P(60,i)}')
        def pk():
            for i in range(5): a(f'v_cvt_pk_bf16_f32 v{26+i}, v{U+2*i}, v{U+2*i+1}')
        def rnd():
            pk()
            for i in range(5): self.unpack(U + 2 * i, 26 + i)
        rnd()
        for i in range(5): a(f'v_pk_mul_f32 {P(U,i)}, {P(U,i)}, {P(130,i)}')
        rnd()
        for i in range(5): a(f'v_pk_add_f32 {P(U,i)}, {P(U,i)}, {P(120,i)}')
        for i in range(5): a(f'v_cvt_pk_bf16_f32 v{160+i}, v{U+2*i}, v{U+2*i+1}')
        self.sanitize(range(160, 165))
        self.ln_stats(160, U, 32, 96, 98)
        for i in range(5): a(f'v_pk_add_f32 {P(U,i)}, {P(U,i)}, s[96:97] op_sel_hi:[1,0] neg_lo:[0,1] neg_hi:[0,1]')
        rnd()
        for i in range(5): a(f'v_pk_mul_f32 {P(U,i)}, {P(U,i)}, s[98:99] op_sel_hi:[1,0]')
        rnd()
        for i in range(5): a(f'v_pk_mul_f32 {P(U,i)}, {P(U,i)}, {P(150,i)}')
        rnd()
        for i in range(5): a(f'v_pk_add_f32 {P(U,i)}, {P(U,i)}, {P(140,i)}')
        pk()
        self.sanitize(range(26, 31))
        a(f'''
        buffer_store_dwordx2 v[26:27], v8, s[44:47], s92 offen sc1
        buffer_store_dwordx2 v[28:29], v8, s[44:47], s92 offen offset:512 sc1
        buffer_store_dword v30, v12, s[44:47], s92 offen offset:1024 sc1
        buffer_store_dwordx2 v[160:161], v8, s[44:47], s93 offen sc1
        buffer_store_dwordx2 v[162:163], v8, s[44:47], s93 offen offset:512 sc1
        buffer_store_dword v164, v12, s[44:47], s93 offen offset:1024 sc1
        L_ctrl_end:
        ''')
        self.stamp(11)
        if self.late:
            a(f's_cmp_eq_u32 s7, {R_DOWN}\ns_cbranch_scc1 L_ctrl_fin\ns_cmp_eq_u32 s7, {R_FFN}\ns_cbranch_scc1 L_ctrl_fin\ns_cmp_eq_u32 s7, {R_RED}\ns_cbranch_scc1 L_ctrl_fin')
            self.prefetch_late('e')
            a('L_ctrl_fin:')
        self.stamp_flush()
        a('s_endpgm')

    def stream(self):
        a = self.a
        WK, WV = self.WK, self.WV
        NV = 12
        KV = lambda t: 40 + 4 * t
        a(f'''
        L_stream:
        s_sub_u32 s15, s3, 4             ; sw
        s_lshl_b32 s85, s15, 15
        v_add_u32 v1, s85, v7
        s_mul_i32 s91, s2, {self.rot}
        s_mul_i32 s85, s15, {self.rotw}
        s_add_u32 s91, s91, s85
        s_and_b32 s91, s91, 31
        s_lshl_b32 s91, s91, 10          ; rotation
        s_lshl_b32 s85, s2, 20
        s_add_u32 s85, s85, 0xC0000
        s_add_u32 s48, s18, s85
        s_addc_u32 s49, s19, 0
        s_mov_b32 s50, 0x40000
        s_mov_b32 s51, 0x20000
        s_add_u32 s52, s20, s85
        s_addc_u32 s53, s21, 0
        s_mov_b32 s54, 0x40000
        s_mov_b32 s55, 0x20000
        ''')
        for _ in range(self.sdelay): a('s_sleep 32')
        if self.hold > 1: a(f's_cmp_eq_u32 s7, {R_Q}\ns_cbranch_scc1 L_hold')
        a(f's_cmp_lg_u32 s7, {R_G1}\ns_cbranch_scc1 L_nohold')
        self.srd(56, 34, 10240); self.srd(60, 16, 10240)
        a('s_mul_i32 s90, s15, 1280\nv_lshlrev_b32 v12, 2, v2')
        for n in range(5): a(f'buffer_load_dword v{40+n}, v12, s[56:59], s90 offen offset:{256*n}')
        for n in range(5): a(f'buffer_load_dword v{46+n}, v12, s[60:63], s90 offen offset:{256*n}')
        a(f'''
        s_mul_i32 s90, s15, {ACTS}
        s_add_u32 s90, s90, {L_ACT}
        v_add_u32 v12, s90, v12
        s_mov_b32 s85, {LOG2E | 0x80000000}
        s_waitcnt vmcnt(5)
        ''')
        for i in range(5): self.unpack(52 + 2 * i, 40 + i)
        for i in range(10): a(f'v_mul_f32 v{64+i}, s85, v{52+i}')
        for i in range(10): a(f'v_exp_f32 v{64+i}, v{64+i}')
        for i in range(10): a(f'v_add_f32 v{64+i}, 1.0, v{64+i}')
        for i in range(10): a(f'v_rcp_f32 v{64+i}, v{64+i}')
        for i in range(10): a(f'v_mul_f32 v{52+i}, v{52+i}, v{64+i}')
        for i in range(5): a(f'v_cvt_pk_bf16_f32 v{40+i}, v{52+2*i}, v{53+2*i}')
        for i in range(5): a(f'ds_write_b32 v12, v{40+i} offset:{256*i}')
        a('s_waitcnt vmcnt(0)')
        self.ln_stats(46, 52, 64, 90, 92)
        a(f'''
        v_mov_b32 v28, s90
        v_mov_b32 v29, s92
        s_lshl_b32 s85, s15, 3
        v_add_u32 v30, s85, v13
        ds_write_b64 v30, v[28:29] offset:{L_STAT}
        ''')
        self.signal(C_ACT)
        a('L_hold:')
        if self.hold: self.lds_wait(C_GO, 4, sleep=2)
        a('L_nohold:')
        q = []
        def wait_for(name):
            i = len(q) - 1 - q[::-1].index(name)
            n = len(q) - 1 - i
            a(f's_waitcnt vmcnt({min(n, 63)})')
        def ld(t, slot, srd, nm):
            a(f's_add_u32 s92, s91, {t*1024}\ns_and_b32 s92, s92, 0x7fff')
            a(f'buffer_load_dwordx4 v[{KV(slot)}:{KV(slot)+3}], v1, {srd}, s92 offen nt')
            q.append(nm)
        qloads = ['buffer_load_dwordx4 v[4:7], v12, s[44:47], s93 offen sc1', 'buffer_load_dwordx4 v[16:19], v12, s[44:47], s93 offen offset:16 sc1']
        for t in range(32):
            wk = WK if t >= self.wk_sw else self.WK0
            if t >= wk:
                if self.WKL > wk and t >= self.wkl_sw:
                    L = a.label('L_kw')
                    a(f's_waitcnt vmcnt({self.WKL-1})\ns_cbranch_vccnz {L}\ns_waitcnt vmcnt({wk-1})\n{L}:')
                else: a(f's_waitcnt vmcnt({wk-1})')
            if t == self.WK0: self.stamp(8)
            ld(t, t, 's[48:51]', f'K{t}')
            if t == self.WK0 - 1:
                a(f'''
                v_mov_b32 v3, 0
                buffer_load_dword v35, v3, s[44:47], 0 offen sc1
                v_and_b32 v3, 15, v2
                v_lshlrev_b32 v12, 5, v3             ; Q voffset
                s_lshl_b32 s93, s2, 9
                s_add_u32 s93, s93, {WS_Q}
                v_mov_b32 v16, 0xffff
                v_mov_b32 v17, s84
                ''')
                q.append('E')
                for r in range(4):
                    a(f'''
                    v_cmp_eq_u32 vcc, {2*r}, v3
                    v_cndmask_b32 v{8+r}, 0, v16, vcc
                    v_cmp_eq_u32 vcc, {2*r+1}, v3
                    v_cndmask_b32 v{8+r}, v{8+r}, v17, vcc
                    ''')
                a(f'''
                s_mov_b32 s96, 0xcccccccc
                s_mov_b32 s97, 0xcccccccc
                s_mov_b32 s98, 0xaaaaaaaa
                s_mov_b32 s99, 0xaaaaaaaa
                s_mul_i32 s85, s14, 163840
                s_add_u32 s56, s24, s85
                s_addc_u32 s57, s25, 0
                s_mov_b32 s58, 163840
                s_mov_b32 s59, 0x20000
                v_lshrrev_b32 v34, 4, v2
                v_mul_u32_u24 v34, 5120, v34
                v_lshl_add_u32 v34, v3, 4, v34
                s_mul_i32 s85, s15, 20480
                v_add_u32 v34, s85, v34
                s_lshr_b32 s85, {self.lagmask}, s7
                s_bitcmp1_b32 s85, 0
                s_cselect_b64 vcc, -1, 0
                ''')
            if t == 12:
                self.tag_from(35)
            if t == self.qpos:
                for l in qloads: a(l)
                q.append('Q0'); q.append('Q1')
        self.stamp(1)
        wait_for('Q1')
        a(f'''
        s_mov_b32 s89, {SPIN_LIMIT}
        L_q_chk:
        v_xor_b32 v20, s94, v5
        v_xor_b32 v21, s94, v7
        v_xor_b32 v22, s94, v17
        v_xor_b32 v23, s94, v19
        v_or_b32 v20, v20, v21
        v_or3_b32 v20, v20, v22, v23
        v_cmp_ne_u32 vcc, 0, v20
        s_cbranch_vccz L_q_ok
        s_sleep 4
        {qloads[0]}
        {qloads[1]}
        s_waitcnt vmcnt(0)
        s_sub_u32 s89, s89, 1
        s_cbranch_scc0 L_q_chk
        L_q_ok:
        v_mov_b32 v5, v6
        v_mov_b32 v6, v16
        v_mov_b32 v7, v18
        ''')
        self.signal(C_QOK)
        self.stamp(2)
        D = 20
        st = dict(V=0, W=0)
        def ldwo(n):
            tp, c = n // 5, n % 5
            so = ['0', 's60', 's61', 's62'][tp]
            a(f'buffer_load_dwordx4 v[{KV(NV+n)}:{KV(NV+n)+3}], v34, s[56:59], {so} offen offset:{256*c} nt')
            q.append(f'W{n}')
        def pre(g, free):
            for ch in self.pre[g]:
                if ch == 'V':
                    assert st['V'] < NV and st['V'] <= free
                    ld(st['V'], st['V'], 's[52:55]', f"V{st['V']}"); st['V'] += 1
                else:
                    assert NV + st['W'] <= free
                    ldwo(st['W']); st['W'] += 1
        a('s_movk_i32 s60, 1280\ns_movk_i32 s61, 2560\ns_movk_i32 s62, 3840')
        for g in range(8):
            wait_for(f'K{4*g+3}')
            for i in range(4):
                for k in range(4):
                    t = 4 * g + k
                    a(f'v_dot2_f32_bf16 v{D+k}, v{KV(t)+i}, v{4+i}, {"0" if i == 0 else "v%d" % (D+k)}')
            pre(g, 4 * g + 3)
            a(f'v_add_f32_dpp v24, v{D}, v{D} row_ror:8 row_mask:0xf bank_mask:0x3')
            a(f'v_add_f32_dpp v25, v{D+2}, v{D+2} row_ror:8 row_mask:0xf bank_mask:0x3')
            a(f'v_add_f32_dpp v24, v{D+1}, v{D+1} row_ror:8 row_mask:0xf bank_mask:0xc')
            a(f'v_add_f32_dpp v25, v{D+3}, v{D+3} row_ror:8 row_mask:0xf bank_mask:0xc')
            r2 = 26 + (g & 1)
            a(f'v_add_f32_dpp v{r2}, v24, v24 row_shl:4 row_mask:0xf bank_mask:0x5')
            a(f'v_add_f32_dpp v{r2}, v25, v25 row_shr:4 row_mask:0xf bank_mask:0xa')
            if g & 1:
                r3 = 28 + ((g >> 1) & 1)
                a(f'v_add_f32_dpp v30, v26, v26 quad_perm:[2,3,0,1] row_mask:0xf bank_mask:0xf')
                a(f'v_add_f32_dpp v31, v27, v27 quad_perm:[2,3,0,1] row_mask:0xf bank_mask:0xf')
                a(f'v_cndmask_b32 v{r3}, v30, v31, s[96:97]')
            if (g & 3) == 3:
                a(f'v_add_f32_dpp v30, v28, v28 quad_perm:[1,0,3,2] row_mask:0xf bank_mask:0xf')
                a(f'v_add_f32_dpp v31, v29, v29 quad_perm:[1,0,3,2] row_mask:0xf bank_mask:0xf')
                a(f'v_cndmask_b32 v{32 + (g >> 2)}, v30, v31, s[98:99]')
        a(f'''
        v_cvt_pk_bf16_f32 v20, v32, v33
        s_mov_b32 s86, 0x3db504f3
        ''')
        self.unpack(32, 20)
        a('v_pk_mul_f32 v[32:33], v[32:33], s[86:87] op_sel_hi:[1,0]\nv_cvt_pk_bf16_f32 v20, v32, v33')
        self.unpack(32, 20)
        a('v_max_f32 v20, v32, v33')
        self.wave_red(20, 'max')
        a(f'''
        v_readlane_b32 s86, v20, 63              ; m_w
        s_mov_b32 s90, {LOG2E}
        v_subrev_f32 v20, s86, v32
        v_subrev_f32 v21, s86, v33
        v_mul_f32 v20, s90, v20
        v_mul_f32 v21, s90, v21
        v_exp_f32 v20, v20
        v_exp_f32 v21, v21
        v_add_f32 v21, v20, v21
        ''')
        self.wave_red(21)
        a(f'''
        v_mov_b32 v20, s86
        s_lshl_b32 s85, s15, 3
        v_add_u32 v22, s85, v13
        s_mov_b32 exec_lo, 0
        s_mov_b32 exec_hi, 0x80000000
        ds_write_b64 v22, v[20:21] offset:{L_SM}
        s_mov_b64 exec, -1
        ''')
        self.stamp(3)
        self.signal(C_SM)
        pre(8, 31)
        self.lds_wait(C_SM, 8)
        self.stamp(4)
        a(f'''
        v_and_b32 v22, 7, v2
        v_lshl_add_u32 v22, v22, 3, v13
        ds_read_b64 v[20:21], v22 offset:{L_SM}
        s_waitcnt lgkmcnt(0)
        v_max_f32_dpp v22, v20, v20 row_ror:4 row_mask:0xf bank_mask:0xf
        v_max_f32_dpp v22, v22, v22 row_ror:2 row_mask:0xf bank_mask:0xf
        v_max_f32_dpp v22, v22, v22 row_ror:1 row_mask:0xf bank_mask:0xf
        v_sub_f32 v20, v20, v22
        v_mul_f32 v20, s90, v20
        v_exp_f32 v20, v20
        v_sub_f32 v32, v32, v22
        v_sub_f32 v33, v33, v22
        v_mul_f32 v21, v21, v20
        v_mul_f32 v32, s90, v32
        v_mul_f32 v33, s90, v33
        v_add_f32_dpp v21, v21, v21 row_ror:4 row_mask:0xf bank_mask:0xf
        v_exp_f32 v32, v32
        v_exp_f32 v33, v33
        v_add_f32_dpp v21, v21, v21 row_ror:2 row_mask:0xf bank_mask:0xf
        v_add_f32_dpp v21, v21, v21 row_ror:1 row_mask:0xf bank_mask:0xf
        v_rcp_f32 v21, v21
        v_mul_f32 v32, v32, v21
        v_mul_f32 v33, v33, v21
        v_cvt_pk_bf16_f32 v32, v32, v32
        v_cvt_pk_bf16_f32 v33, v33, v33
        ''')
        issued = st['V']; nwo = st['W']
        for t in range(32):
            A = 20 + 4 * (t & 1)
            for r in range(4):
                a(f'v_and_b32_dpp v{A+r}, v{32 + (t >> 4)}, v{8+r} row_newbcast:{bitrev4(t & 15)} row_mask:0xf bank_mask:0xf')
            wait_for(f'V{t}')
            a(f'v_mfma_f32_16x16x32_bf16 v[16:19], v[{A}:{A+3}], v[{KV(t % NV)}:{KV(t % NV)+3}], {"0" if t == 0 else "v[16:19]"}')
            while t + (WV if t < self.wv_sw else self.WV2) >= issued and issued < 32:
                ld(issued, issued % NV, 's[52:55]', f'V{issued}'); issued += 1
            if t >= self.wo_start:
                for _ in range(self.wo_per):
                    if nwo < 20: ldwo(nwo); nwo += 1
            if t == self.prog_t: self.signal(C_PROG)
            if t == self.progw_t: self.signal(C_PROGW)
            if t == self.k2_t: self.signal(C_K2)
            if t == 28:
                a(f'''
                v_lshlrev_b32 v7, 4, v2
                v_and_b32 v3, 15, v2
                v_lshrrev_b32 v4, 4, v2
                v_lshlrev_b32 v5, 5, v3
                v_lshl_add_u32 v5, v4, 4, v5          ; (8j+4s')*4
                s_lshl_b32 s85, s15, 9
                s_add_u32 s85, s85, {L_OP}
                v_add_u32 v6, s85, v5
                s_mul_i32 s85, s15, 2560
                s_add_u32 s85, s85, {L_WP}
                v_add_u32 v5, s85, v5
                s_lshl_b32 s85, s15, 6
                s_add_u32 s85, s85, {L_OP}
                v_lshl_add_u32 v4, v4, 4, s85
                v_add_u32 v35, {L_WP}, v7
                v_lshlrev_b32 v12, 3, v2
                v_add_u32 v36, {L_WP}, v12
                s_mul_i32 s87, s2, 2560
                s_add_u32 s87, s87, {WS_P}
                ''')
        assert nwo == 20
        a(f'''
        s_mov_b32 exec_hi, 0
        ds_write_b128 v6, v[16:19]
        s_mov_b64 exec, -1
        ''')
        self.stamp(5)
        self.signal(C_PV)
        self.lds_wait(C_PV, 8)
        for w in range(8):
            a(f'ds_read_b128 v[{40+4*w}:{43+4*w}], v4 offset:{512*w}')
        a('s_waitcnt lgkmcnt(0)')
        self.sum_partials(40, [40 + 4 * i for i in range(8)])
        for r in range(4): a(f'v_cvt_pk_bf16_f32 v{40+r}, v{40+r}, v{40+r}')
        for tp in range(4):
            for r in range(4): a(f'v_and_b32 v{44+4*tp+r}, v{40+tp}, v{8+r}')
        a('s_waitcnt vmcnt(0)')
        self.stamp(6)
        for tp in range(4):
            for c in range(5):
                d = 60 + 4 * c; b = KV(NV + 5 * tp + c)
                a(f'v_mfma_f32_16x16x32_bf16 v[{d}:{d+3}], v[{44+4*tp}:{47+4*tp}], v[{b}:{b+3}], {"0" if tp == 0 else "v[%d:%d]" % (d, d+3)}')
        a('s_mov_b32 exec_hi, 0')
        for c in range(5): a(f'ds_write_b128 v5, v[{60+4*c}:{63+4*c}] offset:{512*c}')
        a('s_mov_b64 exec, -1')
        self.arrive(C_WO, 7, 'L_stream_end')
        self.stamp(7)
        for w in range(8):
            b = 40 + 10 * w
            a(f'ds_read_b128 v[{b}:{b+3}], v35 offset:{2560*w}')
            a(f'ds_read_b128 v[{b+4}:{b+7}], v35 offset:{2560*w + 1024}')
            a(f'ds_read_b64 v[{b+8}:{b+9}], v36 offset:{2560*w + 2048}')
            if w == 3: a('s_waitcnt lgkmcnt(0)')
        def P(r, i): return f'v[{r+2*i}:{r+2*i+1}]'
        for x, y in ((40, 50), (60, 70), (40, 60)):
            for i in range(5): a(f'v_pk_add_f32 {P(x,i)}, {P(x,i)}, {P(y,i)}')
        a('s_waitcnt lgkmcnt(0)')
        for x, y in ((80, 90), (100, 110), (80, 100), (40, 80)):
            for i in range(5): a(f'v_pk_add_f32 {P(x,i)}, {P(x,i)}, {P(y,i)}')
        self.sanitize(range(40, 50))
        a(f'''
        buffer_store_dwordx4 v[40:43], v7, s[44:47], s87 offen sc1
        buffer_store_dwordx4 v[44:47], v7, s[44:47], s87 offen offset:1024 sc1
        buffer_store_dwordx2 v[48:49], v12, s[44:47], s87 offen offset:2048 sc1
        ''')
        self.signal(C_DONE)
        a('L_stream_end:')
        self.stamp(10)
        self.stamp_flush()
        a('L_end:\ns_endpgm')

    def build(self):
        self.prologue(); self.control(); self.stream()
        kn = NAME + '_kernel'
        body = '\n'.join(fix_hazards(self.a.l)) + '\n'
        hdr = open('cdna_kernels/' + NAME + '.s.ref').read().split('; Override launch')[0]
        return hdr + header([f'; @launch grid=(256,1,1) block=(768,1,1) lds={LDS_SIZE}']) + kernel_start(kn) + body + '.section .rodata,"a"\n' + descriptor(kn, vgpr=168, sgpr=102, accum=168)

if __name__ == '__main__':
    import argparse
    from collections import Counter
    rs = [role_of(w) for w in range(256)]
    for r, n in ((R_G1, 20), (R_DOWN, 40), (R_FFN, 54), (R_Q, 64), (R_MOD, 40), (R_RED, 8)):
        assert sorted(i for rr, i in rs if rr == r) == list(range(n)), r
    ap = argparse.ArgumentParser()
    ap.add_argument('-o', default='k.s'); ap.add_argument('--stamp', action='store_true')
    for p, d in (('WK', 3), ('WV', 3), ('rot', 3), ('rotw', 1), ('qpos', 25), ('prog_t', 22), ('progw_t', -1), ('WD', 20), ('wo_start', 0), ('wo_per', 1), ('sdelay', 0), ('WK0', 2), ('wk_sw', 16), ('k2_t', -1), ('WV2', 6), ('wv_sw', 16), ('hold', 1), ('pf', 1), ('WKL', 4), ('wkl_sw', 6), ('lagmask', 0x32), ('pfb', 1), ('nEf', 8), ('nEd', 6), ('late', 0), ('WDM', 20), ('k2_n', 8)):
        ap.add_argument('--' + p, type=int, default=d)
    ap.add_argument('--pre', default='V,V,V,V,V,V,V,V,W')
    args = ap.parse_args()
    kw = dict(vars(args)); o = kw.pop('o')
    open(o, 'w').write(G(**kw).build())
```

```python
import sys
from asmlib import *
import gen as G1mod
from gen import bitrev4, LOG2E, SPIN_LIMIT

WS_E = 0
WS_H1 = 0x1000
WS_Q = 0x8000
SB2 = 0x28000
WS_H2 = SB2; WS_X1 = SB2 + 0x3000; WS_HID = SB2 + 0x6000; WS_MODO = SB2 + 0xD000
WS_P = 0x50000
WS_STAMP = 0x100000
WS_SIZE = 0x200000
LW = 0; L_OP = 0x14000; L_WP = 0x15000; LM = 0x1A000; LDS_SIZE = 0x1B000
C_A, C_SM, C_PV, C_WO, C_QOK, C_PROG, C_PROGW, C_GO, C_DONE, C_K2, C_ACT, C_PF, C_PF2 = [4 * i for i in range(13)]
L_STAT = 0x40; L_SM = 0x100
L_ACT = L_WP; ACTS = 1344
R_G1, R_DOWN, R_FFN, R_Q, R_MOD, R_RED = 1, 2, 3, 4, 5, 6

def role_of(wg):
    x = wg & 7; u = wg >> 3
    if u < 2: return R_G1, 2 * x + u
    if u < 6:
        k = u - 2
        e = EXTRA.get((x, k >> 1))
        if e is None: return 0, 0
        return e[0], e[0] * 16 + 2 * e[1] + (k & 1)
    if u < 14: return R_Q, (x + 8 * ((u - 6) >> 1)) * 2 + ((u - 6) & 1)
    if u < 19: return R_MOD, 5 * x + u - 14
    if u < 25: return R_FFN, 6 * x + u - 19
    if u < 29: return R_DOWN, 4 * x + u - 25
    if u == 29: return R_RED, x
    return 0, 0
EXTRA = {(0, 0): (R_DOWN, 0), (0, 1): (R_DOWN, 1), (2, 0): (R_DOWN, 2), (2, 1): (R_DOWN, 3),
         (4, 0): (R_FFN, 0), (4, 1): (R_FFN, 1), (6, 0): (R_G1, 0), (6, 1): (R_FFN, 2), (1, 0): (R_G1, 1)}

class G(G1mod.G):
    def __init__(self, stamp=False, WK=3, WV=3, rot=3, rotw=1, qpos=25, prog_t=22, progw_t=-1, WD=4, wo_start=0, wo_per=1, sdelay=0, WK0=2, wk_sw=16, k2_t=6, WV2=6, wv_sw=16, hold=1, pf=1, WKL=6, wkl_sw=6, lagmask=0x72, diag_until=0, pfb=1, nEf=8, nEd=6, late=0, WDM=2, k2_n=8, pre='V,V,VV,VW,VWW,VWW,VVW,VWW,VVWW'):
        self.sdelay = sdelay; self.WK0 = WK0; self.wk_sw = wk_sw; self.k2_t = k2_t; self.WV2 = WV2; self.wv_sw = wv_sw; self.hold = hold; self.pf = pf; self.late = late; self.pfb = pfb; self.diag_until = diag_until; self.nEf = nEf; self.nEd = nEd; self.WKL = WKL; self.wkl_sw = wkl_sw; self.lagmask = lagmask; self.WDM = WDM; self.k2_n = k2_n; self.pre = pre.split(',')
        self.a = Asm(); self.stamp_on = stamp
        self.WK = WK; self.WV = WV; self.rot = rot; self.rotw = rotw; self.qpos = qpos; self.prog_t = prog_t
        self.progw_t = progw_t; self.WD = WD; self.wo_start = wo_start; self.wo_per = wo_per

    def tag_from(self, v):
        self.a(f'''
        s_mov_b32 s85, 1664525
        v_mul_lo_u32 v{v}, s85, v{v}
        v_add_u32 v{v}, 1013904223, v{v}
        v_readfirstlane_b32 s94, v{v}
        ''')

    def poll(self, name, loads, check, sleep, tagged=False):
        a = self.a
        a(f's_mov_b32 s89, {SPIN_LIMIT}\nL_{name}_poll:')
        for l in loads: a(l)
        a('s_waitcnt vmcnt(0)')
        if tagged:
            for i in range(0, len(check), 2):
                a(f'v_xor_b32 v36, s94, v{check[i]}\nv_xor_b32 v37, s94, v{check[i+1]}')
                a('v_or_b32 v38, v36, v37' if i == 0 else 'v_or3_b32 v38, v38, v36, v37')
            a('v_cmp_ne_u32 vcc, 0, v38')
        else:
            c = list(check)
            if len(c) % 2 == 0:
                a(f'v_max_u32 v38, v{c[0]}, v{c[1]}'); c = c[2:]
            else:
                a(f'v_max3_u32 v38, v{c[0]}, v{c[1]}, v{c[2]}'); c = c[3:]
            for i in range(0, len(c), 2): a(f'v_max3_u32 v38, v38, v{c[i]}, v{c[i+1]}')
            a('v_cmp_eq_u32 vcc, -1, v38')
        a(f'''
        s_cbranch_vccz L_{name}_ok
        {"s_sleep %d" % sleep if sleep else ""}
        s_sub_u32 s89, s89, 1
        s_cbranch_scc0 L_{name}_poll
        L_{name}_ok:
        ''')

    def prologue(self):
        a = self.a
        a(f'''
        s_cmp_ge_u32 s2, 256
        s_cbranch_scc1 L_end
        {'s_memrealtime s[100:101]' if self.diag_until else ''}
        s_load_dwordx16 s[16:31], s[0:1], 0
        s_load_dwordx8 s[32:39], s[0:1], 64
        s_load_dwordx4 s[40:43], s[0:1], 96
        v_lshrrev_b32 v1, 6, v0
        v_and_b32 v2, 63, v0
        v_readfirstlane_b32 s3, v1
        v_mov_b32 v13, {LM}
        s_mov_b32 s84, 0xffff0000
        v_mov_b32 v15, 0
        v_lshl_add_u32 v14, v2, 2, v13
        ds_write_b32 v14, v15
        s_lshr_b32 s13, s2, 5            ; b
        s_and_b32 s14, s2, 31            ; h
        v_lshlrev_b32 v7, 4, v2          ; lane*16
        ''')
        self.decode()
        a('''
        s_waitcnt lgkmcnt(0)
        s_barrier
        ''')
        self.srd(44, 42, WS_SIZE)
        self.stamp(0)
        a(f'''
        s_cmp_lt_u32 s3, 4
        s_cbranch_scc0 L_stream
        ''')

    def decode(self):
        a = self.a
        ext = 0
        for (x, kh), (r, idx) in EXTRA.items(): ext |= (r | idx << 2) << (4 * (2 * x + kh))
        a(f'''
        s_and_b32 s4, s2, 7              ; x
        s_lshr_b32 s5, s2, 3             ; u
        s_mov_b32 s7, 0
        s_mov_b32 s8, 0
        ''')
        for lo, hi, role, mul in ((0, 2, R_G1, 2), (14, 19, R_MOD, 5), (19, 25, R_FFN, 6), (25, 29, R_DOWN, 4), (29, 30, R_RED, 1)):
            a(f'''
            s_sub_u32 s9, s5, {lo}
            s_mul_i32 s10, s4, {mul}
            s_add_u32 s10, s10, s9
            s_cmp_lt_u32 s9, {hi-lo}
            s_cselect_b32 s7, {role}, s7
            s_cselect_b32 s8, s10, s8
            ''')
        a(f'''
        s_sub_u32 s9, s5, 6              ; Q: (x + 8*(k>>1))*2 + (k&1)
        s_lshr_b32 s10, s9, 1
        s_lshl_b32 s10, s10, 3
        s_add_u32 s10, s10, s4
        s_lshl_b32 s10, s10, 1
        s_and_b32 s11, s9, 1
        s_add_u32 s10, s10, s11
        s_cmp_lt_u32 s9, 8
        s_cselect_b32 s7, {R_Q}, s7
        s_cselect_b32 s8, s10, s8
        s_sub_u32 s9, s5, 2              ; extras
        s_lshr_b32 s10, s9, 1
        s_and_b32 s10, s10, 1
        s_lshl_b32 s11, s4, 1
        s_add_u32 s10, s10, s11
        s_lshl_b32 s10, s10, 2
        s_mov_b32 s86, {ext & 0xffffffff}
        s_mov_b32 s87, {ext >> 32}
        s_lshr_b64 s[86:87], s[86:87], s10
        s_and_b32 s10, s86, 3            ; role
        s_bfe_u32 s11, s86, 0x20002      ; idx
        s_lshl_b32 s11, s11, 1
        s_lshl_b32 s12, s10, 4
        s_add_u32 s11, s11, s12
        s_and_b32 s12, s9, 1
        s_add_u32 s11, s11, s12
        s_cmp_lt_u32 s9, 4
        s_cselect_b32 s7, s10, s7
        s_cselect_b32 s8, s11, s8
        ''')

    def pfld(self, v, srd, so): self.a(f'buffer_load_dword v160, v{v}, {srd}, {so} offen nt')

    def prefetch(self):
        a = self.a
        self.srd(64, 36, 640 * 7680)
        a(f'''
        s_sub_u32 s90, s5, 14
        s_cmp_ge_u32 s90, 16
        s_cbranch_scc1 L_pf_done
        s_lshl_b32 s92, s4, 7
        s_cmp_lt_u32 s3, 2
        s_cbranch_scc1 L_pfA
        s_cmp_eq_u32 s4, 6
        s_cselect_b32 s92, 1024, 0
        s_cmp_eq_u32 s4, 1
        s_cselect_b32 s92, 1152, s92
        s_cmp_eq_u32 s92, 0
        s_cbranch_scc1 L_pf_done
        L_pfA:
        s_lshl_b32 s90, s90, 1
        s_and_b32 s91, s3, 1
        s_add_u32 s90, s90, s91
        s_mul_i32 s91, s90, {20*7680}
        s_add_u32 s92, s92, s91
        v_lshrrev_b32 v16, 1, v2
        v_min_u32 v16, 19, v16
        v_mul_u32_u24 v16, 7680, v16
        v_and_b32 v17, 1, v2
        v_mul_u32_u24 v17, 1280, v17
        v_add_u32 v16, v16, v17
        ''')
        self.pfld(16, 's[64:67]', 's92')
        a('L_pf_done:')

    def prefetch_b(self, sfx):
        a = self.a
        a(f'''
        s_cmp_lt_u32 s3, 2
        s_cbranch_scc1 L_pb_done{sfx}
        s_mul_i32 s90, s5, 20
        v_lshrrev_b32 v16, 3, v2
        s_cmp_eq_u32 s3, 3
        s_cbranch_scc1 L_pb3{sfx}
        ''')
        self.srd(64, 22, 640 * 8192)
        a(f'''
        v_bfe_u32 v17, v2, 1, 2
        v_lshlrev_b32 v17, 11, v17
        v_and_b32 v18, 1, v2
        v_lshl_add_u32 v17, v18, 7, v17
        v_lshl_add_u32 v18, v16, 13, v17
        v_and_b32 v16, 3, v16
        v_lshl_add_u32 v19, v16, 13, v17
        s_lshl_b32 s91, s90, 13
        s_lshl_b32 s92, s4, 8
        s_add_u32 s92, s92, s91
        ''')
        self.pfld(18, 's[64:67]', 's92'); a(f's_add_u32 s92, s92, {8*8192}')
        self.pfld(18, 's[64:67]', 's92'); a(f's_add_u32 s92, s92, {8*8192}')
        self.pfld(19, 's[64:67]', 's92')
        if sfx == '':
            a('s_waitcnt vmcnt(0)')
            self.signal(C_PF)
        a(f's_branch L_pb_done{sfx}\nL_pb3{sfx}:')
        self.srd(64, 36, 640 * 7680)
        a(f'''
        v_and_b32 v17, 7, v2
        v_min_u32 v17, 4, v17
        v_lshlrev_b32 v17, 7, v17
        v_mul_u32_u24 v18, 7680, v16
        v_add_u32 v18, v18, v17
        v_and_b32 v16, 3, v16
        v_mul_u32_u24 v19, 7680, v16
        v_add_u32 v19, v19, v17
        s_mul_i32 s91, s90, 7680
        s_mul_i32 s92, s4, 640
        s_add_u32 s92, s92, 2560
        s_add_u32 s92, s92, s91
        ''')
        if sfx == '': self.lds_wait(C_PF, 1, sleep=2)
        self.pfld(18, 's[64:67]', 's92'); a(f's_add_u32 s92, s92, {8*7680}')
        self.pfld(18, 's[64:67]', 's92'); a(f's_add_u32 s92, s92, {8*7680}')
        self.pfld(19, 's[64:67]', 's92')
        if sfx == '':
            a(f's_cmp_lg_u32 s7, {R_MOD}\ns_cbranch_scc1 L_pb_done{sfx}\ns_waitcnt vmcnt(0)')
            self.signal(C_PF2)
        a(f'L_pb_done{sfx}:')

    def prefetch_late(self, sfx):
        a = self.a
        a(f's_cmp_lg_u32 s3, 0\ns_cbranch_scc1 L_pl1{sfx}')
        self.srd(68, 32, 1728 * 1280)
        a(f'''
        v_min_u32 v16, 53, v2
        v_mul_u32_u24 v16, 1280, v16
        s_mul_i32 s91, s5, {54*1280}
        s_lshl_b32 s92, s4, 7
        s_add_u32 s92, s92, s91
        s_lshl_b32 s93, s4, 6
        s_add_u32 s93, s93, 1024
        s_add_u32 s93, s93, s91
        ''')
        self.lds_wait(C_PROGW if self.progw_t >= 0 else C_DONE, 1, sleep=4)
        self.pfld(16, 's[68:71]', 's92')
        a(f'''
        s_and_b32 s92, s4, 5
        s_cmp_lg_u32 s92, 0
        s_cbranch_scc1 L_pl_done{sfx}
        ''')
        self.pfld(16, 's[68:71]', 's93')
        a(f's_branch L_pl_done{sfx}\nL_pl1{sfx}:')
        self.srd(64, 28, 640 * 3456); self.srd(68, 30, 640 * 3456)
        a(f'''
        s_mul_i32 s92, s4, 3
        s_mov_b32 s91, s92
        s_mov_b32 s93, s92
        s_cmp_eq_u32 s4, 4
        s_cselect_b32 s91, 24, s91
        s_cselect_b32 s93, 25, s93
        s_cmp_eq_u32 s4, 6
        s_cselect_b32 s91, 26, s91
        v_and_b32 v17, 7, v2
        v_min_u32 v18, 2, v17
        v_add_u32 v18, s92, v18
        v_mov_b32 v19, s91
        v_cmp_eq_u32 vcc, 3, v17
        v_cndmask_b32 v18, v18, v19, vcc
        v_mov_b32 v19, s93
        v_cmp_eq_u32 vcc, 4, v17
        v_cndmask_b32 v18, v18, v19, vcc
        v_lshlrev_b32 v17, 7, v18
        v_lshrrev_b32 v16, 3, v2
        s_lshl_b32 s92, s3, 3
        s_sub_u32 s92, s92, 8
        v_add_u32 v16, s92, v16
        v_min_u32 v16, 19, v16
        v_mul_u32_u24 v18, 3456, v16
        v_add_u32 v18, v18, v17
        s_mul_i32 s92, s5, {20*3456}
        ''')
        self.lds_wait(C_PROGW if self.progw_t >= 0 else C_DONE, 1, sleep=4)
        self.pfld(18, 's[64:67]', 's92'); self.pfld(18, 's[68:71]', 's92')
        a(f'L_pl_done{sfx}:')

    def dma640_setup(self):
        a = self.a
        a(f'''
        v_lshrrev_b32 v16, 3, v2
        s_mul_i32 s85, s3, 160
        v_add_u32 v16, s85, v16
        v_mul_lo_u32 v16, s52, v16
        v_and_b32 v17, 3, v2
        v_lshl_add_u32 v16, v17, 4, v16
        v_mov_b32 v17, 0
        v_mov_b32 v18, s48
        v_mov_b32 v19, s49
        v_mov_b32 v20, s50
        v_mov_b32 v21, s51
        v_and_b32 v22, 4, v2
        v_cmp_ne_u32 vcc, 0, v22
        v_cndmask_b32 v18, v18, v20, vcc
        v_cndmask_b32 v19, v19, v21, vcc
        v_lshl_add_u64 v[4:5], v[16:17], 0, v[18:19]
        s_lshl_b32 s54, s52, 3
        s_mov_b32 s55, 0
        ''')
    def dma640_issue(self, lo, hi, WD=99):
        a = self.a
        for n in range(lo, hi):
            a(f's_add_u32 m0, s87, {LW + 1024*n}')
            if n >= WD: a(f's_waitcnt vmcnt({WD-1})')
            a(f'global_load_lds_dwordx4 v[4:5], off nt')
            if n < 19: a('v_lshl_add_u64 v[4:5], v[4:5], 0, s[54:55]')
    def dma640(self, WD):
        self.dma640_setup(); self.dma640_issue(0, 20, WD)

    def wfrags640(self, younger=None):
        a = self.a
        for n in range(5):
            if younger is not None: a(f's_waitcnt vmcnt({younger + 4 * (4 - n)})')
            for T in range(4):
                b = 40 + 16 * n + 4 * T
                a(f'ds_read_b64_tr_b16 v[{b}:{b+1}], v9 offset:{LW + 4096*n + 32*T}')
                a(f'ds_read_b64_tr_b16 v[{b+2}:{b+3}], v9 offset:{LW + 4096*n + 32*T + 512}')
            a('s_waitcnt lgkmcnt(0)')

    def mfma640(self, skip):
        a = self.a
        for n in range(5):
            for T in range(4):
                b = 40 + 16 * n + 4 * T; d = 16 + 4 * T
                a(f'v_mfma_f32_16x16x32_bf16 v[{d}:{d+3}], v[{b}:{b+3}], v[{120+4*n}:{123+4*n}], {"0" if n == 0 else "v[%d:%d]" % (d, d+3)}')
        for T in range(4):
            a(f'ds_write_b128 v10, v[{16+4*T}:{19+4*T}] offset:{LW + 1024*T}')
        self.arrive(C_A, 3, skip)
        for w in range(4):
            a(f'ds_read_b128 v[{40+4*w}:{43+4*w}], v11 offset:{LW + 20480*w}')
            a(f'ds_read_b128 v[{56+4*w}:{59+4*w}], v11 offset:{LW + 20480*w + 2048}')

    def red640(self):
        self.a('s_waitcnt lgkmcnt(0)')
        self.sum_partials(40, [40, 44, 48, 52]); self.sum_partials(56, [56, 60, 64, 68])

    def silu(self, ns=range(5)):
        a = self.a
        a(f's_mov_b32 s85, {LOG2E | 0x80000000}')
        for n in ns:
            b = 120 + 4 * n
            for i in range(4): self.unpack(16 + 2 * i, b + i)
            for i in range(8): a(f'v_mul_f32 v{24+i}, s85, v{16+i}')
            for i in range(8): a(f'v_exp_f32 v{24+i}, v{24+i}')
            for i in range(8): a(f'v_add_f32 v{24+i}, 1.0, v{24+i}')
            for i in range(8): a(f'v_rcp_f32 v{24+i}, v{24+i}')
            for i in range(8): a(f'v_mul_f32 v{16+i}, v{16+i}, v{24+i}')
            for i in range(4): a(f'v_cvt_pk_bf16_f32 v{b+i}, v{16+2*i}, v{17+2*i}')

    def add64(self, d, base, off):
        self.a(f's_add_u32 s{d}, s{base}, {off}\ns_addc_u32 s{d+1}, s{base+1}, 0')

    def control(self):
        a = self.a
        a('s_setprio 3')
        if self.pf: self.prefetch()
        if self.pfb:
            a(f's_cmp_eq_u32 s7, {R_G1}\ns_cbranch_scc1 L_pb_done')
            self.prefetch_b('')
        a(f'''
        s_cmp_eq_u32 s7, 0
        s_cbranch_scc1 L_ctrl_end
        v_mov_b32 v3, 0
        buffer_load_dword v167, v3, s[44:47], 0 offen sc1
        s_mul_i32 s87, s3, 20480
        v_lshrrev_b32 v16, 4, v2         ; s
        v_bfe_u32 v17, v2, 2, 2          ; r4
        v_and_b32 v18, 3, v2             ; c
        v_lshl_add_u32 v19, v16, 3, v17  ; 8s+r4
        v_lshlrev_b32 v9, 7, v19
        v_lshl_add_u32 v9, v18, 3, v9
        v_add_u32 v9, s87, v9
        v_add_u32 v10, s87, v7
        v_and_b32 v17, 7, v2             ; b
        v_bfe_u32 v18, v2, 3, 1          ; t
        v_lshlrev_b32 v11, 8, v16
        v_lshl_add_u32 v11, v17, 4, v11
        v_lshl_add_u32 v11, v18, 10, v11
        v_mul_u32_u24 v19, 1280, v17
        v_lshl_add_u32 v6, v16, 4, v19
        v_lshlrev_b32 v8, 5, v18
        v_lshl_add_u32 v8, v16, 3, v8    ; (16t+4s')*2 bytes
        v_lshlrev_b32 v12, 2, v2         ; lane*4
        s_cmp_eq_u32 s7, {R_Q}
        s_cbranch_scc1 L_role_q
        s_cmp_eq_u32 s7, {R_FFN}
        s_cbranch_scc1 L_role_ffn
        s_cmp_eq_u32 s7, {R_DOWN}
        s_cbranch_scc1 L_role_down
        s_cmp_eq_u32 s7, {R_RED}
        s_cbranch_scc1 L_role_red
        ''')
        a(f'''
        s_movk_i32 s52, 7680
        s_cmp_eq_u32 s7, {R_G1}
        s_cbranch_scc1 L_role_g1
        ''')
        self.srd(56, 34, 10240)
        a('s_mul_i32 s85, s3, 320')
        for n in range(5):
            a(f'buffer_load_dwordx4 v[{120+4*n}:{123+4*n}], v6, s[56:59], s85 offen offset:{64*n}')
        a(f'''
        s_lshl_b32 s9, s8, 7
        s_add_u32 s9, s9, 2560
        s_add_u32 s48, s36, s9
        s_addc_u32 s49, s37, 0
        s_add_u32 s50, s48, 64
        s_addc_u32 s51, s49, 0
        s_waitcnt vmcnt(0)
        ''')
        self.silu()
        if self.pfb: self.lds_wait(C_PF2, 1, sleep=2)
        self.dma640(self.WDM)
        a('s_waitcnt vmcnt(0)')
        self.stamp(2)
        self.wfrags640()
        self.mfma640('L_ctrl_end')
        a(f'''
        v_and_b32 v22, 7, v2
        v_mul_u32_u24 v22, 5120, v22
        v_add_u32 v22, v22, v8
        s_lshl_b32 s90, s8, 7
        s_add_u32 s90, s90, {WS_MODO}
        ''')
        self.red640()
        self.pack4(24, 40); self.pack4(26, 56)
        self.sanitize([24, 25, 26, 27])
        self.lds_wait(C_QOK, 1, sleep=8)
        a(f'''
        buffer_store_dwordx2 v[24:25], v22, s[44:47], s90 offen sc1
        buffer_store_dwordx2 v[26:27], v22, s[44:47], s90 offen offset:64 sc1
        s_branch L_ctrl_end
        L_role_g1:
        s_lshl_b32 s9, s8, 6
        s_add_u32 s48, s36, s9
        s_addc_u32 s49, s37, 0
        s_add_u32 s50, s48, 1280
        s_addc_u32 s51, s49, 0
        v_add_u32 v34, v19, v8
        ''')
        self.dma640(99)
        self.srd(60, 16, 10240)
        a(f'''
        buffer_load_dwordx2 v[150:151], v34, s[60:63], s9 offen
        s_lshl_b32 s85, s8, 2
        s_add_u32 s85, s85, s3
        s_lshl_b32 s85, s85, 11
        s_add_u32 s85, s85, {SB2}
        v_mov_b32 v152, -1
        v_mov_b32 v153, -1
        v_mov_b32 v154, -1
        v_mov_b32 v155, -1
        buffer_store_dwordx4 v[152:155], v7, s[44:47], s85 offen sc1
        buffer_store_dwordx4 v[152:155], v7, s[44:47], s85 offen offset:1024 sc1
        v_and_b32 v16, 7, v2
        v_mul_u32_u24 v16, {ACTS}, v16
        v_lshrrev_b32 v17, 4, v2
        v_lshl_add_u32 v16, v17, 4, v16
        s_mul_i32 s85, s3, 320
        s_add_u32 s85, s85, {L_ACT}
        v_add_u32 v35, s85, v16
        ''')
        self.signal(C_GO)
        self.stamp(1)
        self.lds_wait(C_ACT, 8)
        for n in range(5): a(f'ds_read_b128 v[{120+4*n}:{123+4*n}], v35 offset:{64*n}')
        self.stamp(3)
        self.wfrags640(younger=3)
        self.tag_from(167)
        a('s_waitcnt vmcnt(0)')
        self.stamp(2)
        self.mfma640('L_ctrl_end')
        a(f'''
        v_and_b32 v22, 7, v2
        v_lshl_add_u32 v23, v22, 3, v13
        ds_read_b64 v[36:37], v23 offset:{L_STAT}
        ''')
        self.red640()
        self.pack4(24, 40); self.pack4(26, 56)
        self.unpack4(56, 26)
        a('v_pk_add_f32 v[56:57], v[56:57], 1.0 op_sel_hi:[1,0]\nv_pk_add_f32 v[58:59], v[58:59], 1.0 op_sel_hi:[1,0]')
        self.round4(56, 26)
        self.unpack4(40, 24)
        self.unpack4(44, 150)
        for i in range(4): a(f'v_sub_f32 v{44+i}, v{44+i}, v36')
        self.round4(44, 28)
        for i in range(4): a(f'v_mul_f32 v{44+i}, v{44+i}, v37')
        self.round4(44, 28)
        a('v_pk_mul_f32 v[44:45], v[44:45], v[56:57]\nv_pk_mul_f32 v[46:47], v[46:47], v[58:59]')
        self.round4(44, 28)
        a('v_pk_add_f32 v[44:45], v[44:45], v[40:41]\nv_pk_add_f32 v[46:47], v[46:47], v[42:43]')
        a(f'''
        v_cvt_pk_bf16_f32 v28, v44, v45
        v_cvt_pk_bf16_f32 v30, v46, v47
        v_mov_b32 v29, s94
        v_mov_b32 v31, s94
        v_lshlrev_b32 v22, 4, v22               ; b*16
        v_lshl_add_u32 v22, v8, 4, v22          ; + (16t+4s')*32 = t*512 + s'*128
        s_lshl_b32 s85, s8, 10
        s_add_u32 s85, s85, {WS_H1}
        buffer_store_dwordx4 v[28:31], v22, s[44:47], s85 offen sc1
        s_branch L_ctrl_end
        ''')
        a(f'''
        L_role_q:
        s_lshl_b32 s9, s8, 7
        s_add_u32 s48, s22, s9
        s_addc_u32 s49, s23, 0
        s_add_u32 s50, s48, 64
        s_addc_u32 s51, s49, 0
        s_movk_i32 s52, 8192
        ''')
        if self.pfb: self.lds_wait(C_PF, 1, sleep=2)
        self.dma640(99)
        a(f'''
        s_and_b32 s85, s8, 1
        s_lshl_b32 s85, s85, 2
        s_add_u32 s85, s85, s3
        s_lshl_b32 s85, s85, 5
        s_lshr_b32 s86, s8, 1
        s_add_u32 s85, s85, s86
        s_mul_i32 s85, s85, 2560
        s_add_u32 s85, s85, {WS_P}
        v_mov_b32 v152, -1
        v_mov_b32 v153, -1
        v_mov_b32 v154, -1
        v_mov_b32 v155, -1
        v_lshlrev_b32 v19, 3, v2
        buffer_store_dwordx4 v[152:155], v7, s[44:47], s85 offen sc1
        buffer_store_dwordx4 v[152:155], v7, s[44:47], s85 offen offset:1024 sc1
        buffer_store_dwordx2 v[152:153], v19, s[44:47], s85 offen offset:2048 sc1
        ''')
        self.signal(C_GO)
        a('s_waitcnt vmcnt(0)')
        self.stamp(2)
        self.tag_from(167)
        self.wfrags640()
        a(f'''
        s_mul_i32 s90, s3, 5120
        s_add_u32 s90, s90, {WS_H1}
        s_add_u32 s91, s90, 4096
        ''')
        self.stamp(3)
        loads = [f'buffer_load_dwordx4 v[{120+4*n}:{123+4*n}], v7, s[44:47], s{90 if n < 4 else 91} offen offset:{1024*(n%4)} sc1' for n in range(5)]
        self.poll('h1', loads, [121 + 2 * i for i in range(10)], 4, tagged=True)
        self.stamp(4)
        for n in range(5):
            b = 120 + 4 * n
            a(f'v_mov_b32_dpp v{b+3}, v{b+2} row_ror:8 row_mask:0xf bank_mask:0xf')
            a(f'v_mov_b32 v{b+1}, v{b+2}')
            a(f'v_mov_b32_dpp v{b+2}, v{b} row_ror:8 row_mask:0xf bank_mask:0xf')
        self.mfma640('L_ctrl_end')
        a(f'''
        v_and_b32 v22, 7, v2
        v_lshlrev_b32 v22, 14, v22              ; b*32*512
        v_lshl_add_u32 v22, v8, 1, v22          ; + col*4
        s_lshl_b32 s85, s8, 8                   ; h*512 + half*256
        s_add_u32 s85, s85, {WS_Q}
        v_mov_b32 v29, s94
        v_mov_b32 v31, s94
        v_mov_b32 v33, s94
        v_mov_b32 v35, s94
        ''')
        self.red640()
        a(f'''
        v_cvt_pk_bf16_f32 v28, v40, v41
        v_cvt_pk_bf16_f32 v30, v42, v43
        v_cvt_pk_bf16_f32 v32, v56, v57
        v_cvt_pk_bf16_f32 v34, v58, v59
        buffer_store_dwordx4 v[28:31], v22, s[44:47], s85 offen sc1
        buffer_store_dwordx4 v[32:35], v22, s[44:47], s85 offen offset:128 sc1
        s_branch L_ctrl_end
        ''')
        a(f'''
        L_role_ffn:
        s_lshl_b32 s9, s8, 6
        s_add_u32 s48, s28, s9
        s_addc_u32 s49, s29, 0
        s_add_u32 s50, s30, s9
        s_addc_u32 s51, s31, 0
        s_movk_i32 s52, 3456
        ''')
        self.dma640_setup()
        self.dma640_issue(0, self.nEf, 1)
        self.lds_wait(C_DONE, 1, sleep=4)
        self.dma640_issue(self.nEf, 20)
        self.wfrags640(younger=0)
        self.stamp(2)
        a(f'''
        s_mul_i32 s90, s3, 320
        s_add_u32 s90, s90, {WS_H2}
        v_and_b32 v32, 7, v2
        v_lshlrev_b32 v32, 4, v32
        v_bfe_u32 v33, v2, 3, 1
        v_lshl_add_u32 v32, v33, 8, v32
        v_bfe_u32 v33, v2, 5, 1
        v_lshl_add_u32 v32, v33, 7, v32
        v_bfe_u32 v33, v2, 4, 1
        v_lshl_add_u32 v32, v33, 3, v32
        s_lshl_b32 s91, s8, 9
        s_add_u32 s91, s91, {WS_HID}
        ''')
        self.lds_wait(C_WO, 8, sleep=4)
        self.stamp(3)
        loads = [f'buffer_load_dwordx4 v[{120+4*n}:{123+4*n}], v6, s[44:47], s90 offen offset:{64*n} sc1' for n in range(5)]
        self.poll('h2', loads, list(range(120, 140)), 2)
        self.stamp(4)
        self.mfma640('L_ctrl_end')
        self.red640()
        self.round4(40, 28); self.round4(56, 30)
        for i in range(4):
            a(f'v_cmp_lt_f32 vcc, 0, v{40+i}\nv_cndmask_b32 v{20+i}, 0, 1.0, vcc')
        a('v_pk_mul_f32 v[40:41], v[40:41], v[20:21]\nv_pk_mul_f32 v[42:43], v[42:43], v[22:23]')
        a('v_pk_mul_f32 v[40:41], v[40:41], v[56:57]\nv_pk_mul_f32 v[42:43], v[42:43], v[58:59]')
        self.pack4(28, 40); self.sanitize([28, 29])
        a(f'''
        buffer_store_dwordx2 v[28:29], v32, s[44:47], s91 offen sc1
        s_branch L_ctrl_end
        ''')
        a('L_role_down:')
        self.srd(72, 32, 1728 * 1280); self.srd(80, 38, 10240)
        a(f'''
        s_add_u32 s76, s42, {WS_HID}
        s_addc_u32 s77, s43, 0
        s_mov_b32 s78, {27*1024}
        s_mov_b32 s79, 0x20000
        v_lshrrev_b32 v16, 1, v2
        v_mul_u32_u24 v4, 1280, v16
        v_and_b32 v16, 1, v2
        v_lshl_add_u32 v4, v16, 4, v4
        s_mul_i32 s85, s3, {7*64*1280}
        s_lshl_b32 s9, s8, 5
        s_add_u32 s85, s85, s9
        s_mul_i32 s87, s3, 14336
        ''')
        for n in range(14):
            if n == self.nEd: self.lds_wait(C_DONE, 1, sleep=4)
            a(f's_add_u32 m0, s87, {LW + 1024*n}')
            if n < self.nEd: a(f's_waitcnt vmcnt(0)')
            a(f'buffer_load_dwordx4 v4, s[72:75], s85 offen nt lds')
            a(f's_add_u32 s85, s85, {32*1280}')
        a(f'''
        v_lshrrev_b32 v16, 4, v2         ; s
        v_bfe_u32 v17, v2, 2, 2          ; r4
        v_lshl_add_u32 v19, v16, 3, v17
        v_lshlrev_b32 v9, 5, v19
        v_bfe_u32 v17, v2, 1, 1
        v_lshl_add_u32 v9, v17, 10, v9
        v_and_b32 v17, 1, v2
        v_lshl_add_u32 v9, v17, 3, v9
        v_add_u32 v9, s87, v9
        v_add_u32 v10, s87, v7
        v_and_b32 v17, 7, v2             ; b
        v_bfe_u32 v18, v2, 3, 1          ; a / half
        v_lshlrev_b32 v3, 7, v16
        v_lshl_add_u32 v3, v17, 4, v3
        v_lshl_add_u32 v3, v18, 9, v3
        s_mul_i32 s86, s3, 7168
        v_add_u32 v3, s86, v3
        v_and_b32 v16, 1, v16            ; s'
        v_lshlrev_b32 v11, 8, v16
        v_lshl_add_u32 v11, v17, 4, v11
        v_lshl_add_u32 v11, v18, 10, v11
        v_lshlrev_b32 v8, 4, v18
        v_lshl_add_u32 v8, v16, 3, v8    ; (8a+4s')*2
        v_mul_u32_u24 v5, 5120, v17
        v_add_u32 v5, v5, v8
        v_mul_u32_u24 v6, 1280, v17
        v_add_u32 v6, v6, v8
        s_add_u32 s90, s9, {WS_MODO + 3840}
        s_add_u32 s91, s9, {WS_X1}
        s_movk_i32 s92, 4096
        s_waitcnt vmcnt(0)
        ''')
        self.stamp(2)
        self.tag_from(167)
        for n in range(7):
            for ac in range(2):
                b = 40 + 8 * n + 4 * ac
                a(f'ds_read_b64_tr_b16 v[{b}:{b+1}], v9 offset:{LW + 2048*n + 16*ac}')
                a(f'ds_read_b64_tr_b16 v[{b+2}:{b+3}], v9 offset:{LW + 2048*n + 16*ac + 128}')
            if n % 2: a('s_waitcnt lgkmcnt(0)')
        self.lds_wait(C_WO, 8, sleep=4)
        self.poll('gb', ['buffer_load_dwordx2 v[32:33], v5, s[44:47], s90 offen sc1'], [32, 33], 4)
        self.unpack4(140, 32)
        self.stamp(3)
        self.poll('x1', ['buffer_load_dwordx2 v[32:33], v6, s[44:47], s91 offen sc1'], [32, 33], 4)
        self.unpack4(144, 32)
        self.stamp(5)
        loads = [f'buffer_load_dwordx4 v[{104+4*n}:{107+4*n}], v3, s[76:79], {"0" if n < 4 else "s92"} offen offset:{1024*(n%4)} sc1' for n in range(7)]
        self.poll('hid', loads, list(range(104, 132)), 1)
        self.stamp(4)
        for n in range(7):
            for ac in range(2):
                b = 40 + 8 * n + 4 * ac; d = 16 + 4 * ac
                a(f'v_mfma_f32_16x16x32_bf16 v[{d}:{d+3}], v[{b}:{b+3}], v[{104+4*n}:{107+4*n}], {"0" if n == 0 else "v[%d:%d]" % (d, d+3)}')
        a(f'ds_write_b128 v10, v[16:19] offset:{LW}\nds_write_b128 v10, v[20:23] offset:{LW + 1024}')
        self.arrive(C_A, 3, 'L_ctrl_end')
        for w in range(4):
            a(f'ds_read_b128 v[{40+8*w}:{43+8*w}], v11 offset:{LW + 14336*w}')
            a(f'ds_read_b128 v[{44+8*w}:{47+8*w}], v11 offset:{LW + 14336*w + 640}')
        a('s_waitcnt lgkmcnt(0)')
        self.sum_partials(40, [40 + 4 * i for i in range(8)])
        self.round4(40, 28)
        a('v_pk_mul_f32 v[40:41], v[40:41], v[140:141]\nv_pk_mul_f32 v[42:43], v[42:43], v[142:143]')
        self.round4(40, 28)
        a('v_pk_add_f32 v[40:41], v[40:41], v[144:145]\nv_pk_add_f32 v[42:43], v[42:43], v[146:147]')
        self.pack4(28, 40)
        a(f'''
        s_mov_b32 exec_hi, 0
        buffer_store_dwordx2 v[28:29], v6, s[80:83], s9 offen
        s_cmp_lg_u32 s8, 0
        s_cbranch_scc1 L_noepoch
        s_mov_b64 exec, 1
        v_mov_b32 v20, 0
        v_mov_b32 v21, s94
        buffer_store_dword v21, v20, s[44:47], 0 offen sc1
        L_noepoch:
        s_mov_b64 exec, -1
        s_branch L_ctrl_end
        ''')
        a('L_role_red:')
        self.srd(60, 16, 10240)
        a(f'''
        v_lshlrev_b32 v8, 3, v2          ; lane*8
        s_mul_i32 s9, s8, 1280
        buffer_load_dwordx2 v[26:27], v8, s[60:63], s9 offen
        buffer_load_dwordx2 v[28:29], v8, s[60:63], s9 offen offset:512
        buffer_load_dword v30, v12, s[60:63], s9 offen offset:1024
        s_lshl_b32 s90, s8, 14
        s_lshl_b32 s85, s3, 12
        s_add_u32 s90, s90, s85
        s_add_u32 s90, s90, {WS_Q}
        s_waitcnt vmcnt(0)
        ''')
        self.tag_from(167)
        for i in range(5): self.unpack(120 + 2 * i, 26 + i)
        self.lds_wait(C_QOK, 1, sleep=8)
        loads = [f'buffer_load_dwordx4 v[{40+4*n}:{43+4*n}], v7, s[44:47], s90 offen offset:{1024*n} sc1' for n in range(4)]
        self.poll('qall', loads, [41 + 2 * i for i in range(8)], 8, tagged=True)
        a(f'''
        s_mul_i32 s90, s8, 5120
        s_add_u32 s90, s90, {WS_MODO}
        ''')
        loads = []
        for ch in range(3):
            b = 40 + 6 * ch
            loads += [f'buffer_load_dwordx2 v[{b}:{b+1}], v8, s[44:47], s90 offen offset:{1280*ch} sc1',
                      f'buffer_load_dwordx2 v[{b+2}:{b+3}], v8, s[44:47], s90 offen offset:{1280*ch + 512} sc1',
                      f'buffer_load_dword v{b+4}, v12, s[44:47], s90 offen offset:{1280*ch + 1024} sc1']
        self.poll('modo', loads, [40 + 6 * ch + i for ch in range(3) for i in range(5)], 8)
        for ch in range(3):
            for i in range(5): self.unpack(130 + 10 * ch + 2 * i, 40 + 6 * ch + i)
        for i in range(5):
            a(f'v_pk_add_f32 v[{150+2*i}:{151+2*i}], v[{150+2*i}:{151+2*i}], 1.0 op_sel_hi:[1,0]')
            a(f'v_cvt_pk_bf16_f32 v26, v{150+2*i}, v{151+2*i}')
            self.unpack(150 + 2 * i, 26)
        for i in range(10): a(f'v_mov_b32 v{16+i}, 0')
        a(f'''
        s_lshl_b32 s91, s8, 5
        s_lshl_b32 s85, s3, 3
        s_add_u32 s91, s91, s85
        s_mul_i32 s91, s91, 2560
        s_add_u32 s91, s91, {WS_P}
        s_mul_i32 s87, s3, 2560
        v_add_u32 v10, s87, v7
        v_add_u32 v11, s87, v8
        s_add_u32 s92, s9, {WS_H2}
        s_add_u32 s93, s9, {WS_X1}
        ''')
        self.stamp(2)
        self.lds_wait(C_PROG, 1, sleep=8)
        self.stamp(3)
        a(f'''
        s_mov_b32 s90, 0xff
        s_mov_b32 s89, {SPIN_LIMIT}
        v_and_b32 v34, 7, v2
        v_mul_u32_u24 v34, 2560, v34
        L_p_poll:
        s_mov_b32 s95, s90
        ds_read_b32 v14, v13 offset:{C_WO}
        s_waitcnt lgkmcnt(0)
        v_readfirstlane_b32 s88, v14
        s_cmp_ge_u32 s88, 8
        s_cbranch_scc1 L_p_fetch
        s_sleep 6
        buffer_load_dword v35, v34, s[44:47], s91 offen offset:2556 sc1
        s_waitcnt vmcnt(0)
        v_cmp_ne_u32 vcc, -1, v35
        s_nop 1
        s_and_b32 s95, s90, vcc_lo
        s_cbranch_scc0 L_p_next
        L_p_fetch:
        ''')
        for g in range(8):
            b = 40 + 10 * g
            a(f'''
            s_bitcmp1_b32 s95, {g}
            s_cbranch_scc0 L_p_sk{g}
            s_add_u32 s85, s91, {2560*g}
            buffer_load_dwordx4 v[{b}:{b+3}], v7, s[44:47], s85 offen sc1
            buffer_load_dwordx4 v[{b+4}:{b+7}], v7, s[44:47], s85 offen offset:1024 sc1
            buffer_load_dwordx2 v[{b+8}:{b+9}], v8, s[44:47], s85 offen offset:2048 sc1
            L_p_sk{g}:
            ''')
        a('s_waitcnt vmcnt(0)')
        for g in range(8):
            b = 40 + 10 * g
            a(f'''
            s_bitcmp1_b32 s95, {g}
            s_cbranch_scc0 L_p_ck{g}
            v_max3_u32 v36, v{b}, v{b+1}, v{b+2}
            v_max3_u32 v37, v{b+3}, v{b+4}, v{b+5}
            v_max3_u32 v36, v36, v{b+6}, v{b+7}
            v_max3_u32 v37, v37, v{b+8}, v{b+9}
            v_max_u32 v36, v36, v37
            v_cmp_eq_u32 vcc, -1, v36
            s_cbranch_vccnz L_p_ck{g}
            s_bitset0_b32 s90, {g}
            ''')
            for i in range(5): a(f'v_pk_add_f32 v[{16+2*i}:{17+2*i}], v[{16+2*i}:{17+2*i}], v[{b+2*i}:{b+2*i+1}]')
            a(f'L_p_ck{g}:')
        a(f'''
        s_cmp_eq_u32 s90, 0
        s_cbranch_scc1 L_p_ok
        L_p_next:
        s_sub_u32 s89, s89, 1
        s_cbranch_scc0 L_p_poll
        L_p_ok:
        ''')
        self.stamp(4)
        a(f'''
        ds_write_b128 v10, v[16:19] offset:{LW}
        ds_write_b128 v10, v[20:23] offset:{LW + 1024}
        ds_write_b64 v11, v[24:25] offset:{LW + 2048}
        ''')
        self.arrive(C_A, 3, 'L_ctrl_end')
        for w in range(4):
            b = 40 + 10 * w
            a(f'ds_read_b128 v[{b}:{b+3}], v7 offset:{LW + 2560*w}')
            a(f'ds_read_b128 v[{b+4}:{b+7}], v7 offset:{LW + 2560*w + 1024}')
            a(f'ds_read_b64 v[{b+8}:{b+9}], v8 offset:{LW + 2560*w + 2048}')
        a('s_waitcnt lgkmcnt(0)')
        U = 40
        def P(r, i): return f'v[{r+2*i}:{r+2*i+1}]'
        for i in range(5): a(f'v_pk_add_f32 {P(40,i)}, {P(40,i)}, {P(50,i)}')
        for i in range(5): a(f'v_pk_add_f32 {P(60,i)}, {P(60,i)}, {P(70,i)}')
        for i in range(5): a(f'v_pk_add_f32 {P(40,i)}, {P(40,i)}, {P(60,i)}')
        def pk():
            for i in range(5): a(f'v_cvt_pk_bf16_f32 v{26+i}, v{U+2*i}, v{U+2*i+1}')
        def rnd():
            pk()
            for i in range(5): self.unpack(U + 2 * i, 26 + i)
        rnd()
        for i in range(5): a(f'v_pk_mul_f32 {P(U,i)}, {P(U,i)}, {P(130,i)}')
        rnd()
        for i in range(5): a(f'v_pk_add_f32 {P(U,i)}, {P(U,i)}, {P(120,i)}')
        for i in range(5): a(f'v_cvt_pk_bf16_f32 v{160+i}, v{U+2*i}, v{U+2*i+1}')
        self.sanitize(range(160, 165))
        self.ln_stats(160, U, 32, 96, 98)
        for i in range(5): a(f'v_pk_add_f32 {P(U,i)}, {P(U,i)}, s[96:97] op_sel_hi:[1,0] neg_lo:[0,1] neg_hi:[0,1]')
        rnd()
        for i in range(5): a(f'v_pk_mul_f32 {P(U,i)}, {P(U,i)}, s[98:99] op_sel_hi:[1,0]')
        rnd()
        for i in range(5): a(f'v_pk_mul_f32 {P(U,i)}, {P(U,i)}, {P(150,i)}')
        rnd()
        for i in range(5): a(f'v_pk_add_f32 {P(U,i)}, {P(U,i)}, {P(140,i)}')
        pk()
        self.sanitize(range(26, 31))
        a(f'''
        buffer_store_dwordx2 v[26:27], v8, s[44:47], s92 offen sc1
        buffer_store_dwordx2 v[28:29], v8, s[44:47], s92 offen offset:512 sc1
        buffer_store_dword v30, v12, s[44:47], s92 offen offset:1024 sc1
        buffer_store_dwordx2 v[160:161], v8, s[44:47], s93 offen sc1
        buffer_store_dwordx2 v[162:163], v8, s[44:47], s93 offen offset:512 sc1
        buffer_store_dword v164, v12, s[44:47], s93 offen offset:1024 sc1
        L_ctrl_end:
        ''')
        self.stamp(11)
        if self.late:
            a(f's_cmp_eq_u32 s7, {R_DOWN}\ns_cbranch_scc1 L_ctrl_fin\ns_cmp_eq_u32 s7, {R_FFN}\ns_cbranch_scc1 L_ctrl_fin\ns_cmp_eq_u32 s7, {R_RED}\ns_cbranch_scc1 L_ctrl_fin')
            self.prefetch_late('e')
            a('L_ctrl_fin:')
        self.stamp_flush()
        if self.diag_until:
            a(f'L_diag:\ns_sleep 1\ns_memrealtime s[98:99]\ns_waitcnt lgkmcnt(0)\ns_sub_u32 s98, s98, s100\ns_cmp_lt_u32 s98, {self.diag_until*100}\ns_cbranch_scc1 L_diag')
        a('s_endpgm')

    def stream(self):
        a = self.a
        WK, WV = self.WK, self.WV
        NV = 12
        KV = lambda t: 40 + 4 * t
        a(f'''
        L_stream:
        s_sub_u32 s15, s3, 4             ; sw
        s_lshl_b32 s85, s15, 15
        v_add_u32 v1, s85, v7
        s_mul_i32 s91, s2, {self.rot}
        s_mul_i32 s85, s15, {self.rotw}
        s_add_u32 s91, s91, s85
        s_and_b32 s91, s91, 31
        s_lshl_b32 s91, s91, 10          ; rotation
        s_lshl_b32 s85, s2, 20
        s_add_u32 s85, s85, 0xC0000
        s_add_u32 s48, s18, s85
        s_addc_u32 s49, s19, 0
        s_mov_b32 s50, 0x40000
        s_mov_b32 s51, 0x20000
        s_add_u32 s52, s20, s85
        s_addc_u32 s53, s21, 0
        s_mov_b32 s54, 0x40000
        s_mov_b32 s55, 0x20000
        ''')
        for _ in range(self.sdelay): a('s_sleep 32')
        if self.hold > 1: a(f's_cmp_eq_u32 s7, {R_Q}\ns_cbranch_scc1 L_hold')
        a(f's_cmp_lg_u32 s7, {R_G1}\ns_cbranch_scc1 L_nohold')
        self.srd(56, 34, 10240); self.srd(60, 16, 10240)
        a('s_mul_i32 s90, s15, 1280\nv_lshlrev_b32 v12, 2, v2')
        for n in range(5): a(f'buffer_load_dword v{40+n}, v12, s[56:59], s90 offen offset:{256*n}')
        for n in range(5): a(f'buffer_load_dword v{46+n}, v12, s[60:63], s90 offen offset:{256*n}')
        a(f'''
        s_mul_i32 s90, s15, {ACTS}
        s_add_u32 s90, s90, {L_ACT}
        v_add_u32 v12, s90, v12
        s_mov_b32 s85, {LOG2E | 0x80000000}
        s_waitcnt vmcnt(5)
        ''')
        for i in range(5): self.unpack(52 + 2 * i, 40 + i)
        for i in range(10): a(f'v_mul_f32 v{64+i}, s85, v{52+i}')
        for i in range(10): a(f'v_exp_f32 v{64+i}, v{64+i}')
        for i in range(10): a(f'v_add_f32 v{64+i}, 1.0, v{64+i}')
        for i in range(10): a(f'v_rcp_f32 v{64+i}, v{64+i}')
        for i in range(10): a(f'v_mul_f32 v{52+i}, v{52+i}, v{64+i}')
        for i in range(5): a(f'v_cvt_pk_bf16_f32 v{40+i}, v{52+2*i}, v{53+2*i}')
        for i in range(5): a(f'ds_write_b32 v12, v{40+i} offset:{256*i}')
        a('s_waitcnt vmcnt(0)')
        self.ln_stats(46, 52, 64, 90, 92)
        a(f'''
        v_mov_b32 v28, s90
        v_mov_b32 v29, s92
        s_lshl_b32 s85, s15, 3
        v_add_u32 v30, s85, v13
        ds_write_b64 v30, v[28:29] offset:{L_STAT}
        ''')
        self.signal(C_ACT)
        a('L_hold:')
        if self.hold: self.lds_wait(C_GO, 4, sleep=2)
        a('L_nohold:')
        q = []
        def wait_for(name):
            i = len(q) - 1 - q[::-1].index(name)
            n = len(q) - 1 - i
            a(f's_waitcnt vmcnt({min(n, 63)})')
        def ld(t, slot, srd, nm):
            a(f's_add_u32 s92, s91, {t*1024}\ns_and_b32 s92, s92, 0x7fff')
            a(f'buffer_load_dwordx4 v[{KV(slot)}:{KV(slot)+3}], v1, {srd}, s92 offen nt')
            q.append(nm)
        qloads = ['buffer_load_dwordx4 v[4:7], v12, s[44:47], s93 offen sc1', 'buffer_load_dwordx4 v[16:19], v12, s[44:47], s93 offen offset:16 sc1']
        for t in range(32):
            wk = WK if t >= self.wk_sw else self.WK0
            if t >= wk:
                if self.WKL > wk and t >= self.wkl_sw:
                    L = a.label('L_kw')
                    a(f's_waitcnt vmcnt({self.WKL-1})\ns_cbranch_vccnz {L}\ns_waitcnt vmcnt({wk-1})\n{L}:')
                else: a(f's_waitcnt vmcnt({wk-1})')
            if t == self.WK0: self.stamp(8)
            ld(t, t, 's[48:51]', f'K{t}')
            if t == self.WK0 - 1:
                a(f'''
                v_mov_b32 v3, 0
                buffer_load_dword v35, v3, s[44:47], 0 offen sc1
                v_and_b32 v3, 15, v2
                v_lshlrev_b32 v12, 5, v3             ; Q voffset
                s_lshl_b32 s93, s2, 9
                s_add_u32 s93, s93, {WS_Q}
                v_mov_b32 v16, 0xffff
                v_mov_b32 v17, s84
                ''')
                q.append('E')
                for r in range(4):
                    a(f'''
                    v_cmp_eq_u32 vcc, {2*r}, v3
                    v_cndmask_b32 v{8+r}, 0, v16, vcc
                    v_cmp_eq_u32 vcc, {2*r+1}, v3
                    v_cndmask_b32 v{8+r}, v{8+r}, v17, vcc
                    ''')
                a(f'''
                s_mov_b32 s96, 0xcccccccc
                s_mov_b32 s97, 0xcccccccc
                s_mov_b32 s98, 0xaaaaaaaa
                s_mov_b32 s99, 0xaaaaaaaa
                s_mul_i32 s85, s14, 163840
                s_add_u32 s56, s24, s85
                s_addc_u32 s57, s25, 0
                s_mov_b32 s58, 163840
                s_mov_b32 s59, 0x20000
                v_lshrrev_b32 v34, 4, v2
                v_mul_u32_u24 v34, 5120, v34
                v_lshl_add_u32 v34, v3, 4, v34
                s_mul_i32 s85, s15, 20480
                v_add_u32 v34, s85, v34
                s_lshr_b32 s85, {self.lagmask}, s7
                s_bitcmp1_b32 s85, 0
                s_cselect_b64 vcc, -1, 0
                ''')
            if t == 12:
                self.tag_from(35)
            if t == self.qpos:
                for l in qloads: a(l)
                q.append('Q0'); q.append('Q1')
        self.stamp(1)
        wait_for('Q1')
        a(f'''
        s_mov_b32 s89, {SPIN_LIMIT}
        L_q_chk:
        v_xor_b32 v20, s94, v5
        v_xor_b32 v21, s94, v7
        v_xor_b32 v22, s94, v17
        v_xor_b32 v23, s94, v19
        v_or_b32 v20, v20, v21
        v_or3_b32 v20, v20, v22, v23
        v_cmp_ne_u32 vcc, 0, v20
        s_cbranch_vccz L_q_ok
        s_sleep 4
        {qloads[0]}
        {qloads[1]}
        s_waitcnt vmcnt(0)
        s_sub_u32 s89, s89, 1
        s_cbranch_scc0 L_q_chk
        L_q_ok:
        v_mov_b32 v5, v6
        v_mov_b32 v6, v16
        v_mov_b32 v7, v18
        ''')
        self.signal(C_QOK)
        self.stamp(2)
        D = 20
        st = dict(V=0, W=0)
        def ldwo(n):
            tp, c = n // 5, n % 5
            so = ['0', 's60', 's61', 's62'][tp]
            a(f'buffer_load_dwordx4 v[{KV(NV+n)}:{KV(NV+n)+3}], v34, s[56:59], {so} offen offset:{256*c} nt')
            q.append(f'W{n}')
        def pre(g, free):
            for ch in self.pre[g]:
                if ch == 'V':
                    assert st['V'] < NV and st['V'] <= free
                    ld(st['V'], st['V'], 's[52:55]', f"V{st['V']}"); st['V'] += 1
                else:
                    assert NV + st['W'] <= free
                    ldwo(st['W']); st['W'] += 1
        a('s_movk_i32 s60, 1280\ns_movk_i32 s61, 2560\ns_movk_i32 s62, 3840')
        for g in range(8):
            wait_for(f'K{4*g+3}')
            for i in range(4):
                for k in range(4):
                    t = 4 * g + k
                    a(f'v_dot2_f32_bf16 v{D+k}, v{KV(t)+i}, v{4+i}, {"0" if i == 0 else "v%d" % (D+k)}')
            pre(g, 4 * g + 3)
            a(f'v_add_f32_dpp v24, v{D}, v{D} row_ror:8 row_mask:0xf bank_mask:0x3')
            a(f'v_add_f32_dpp v25, v{D+2}, v{D+2} row_ror:8 row_mask:0xf bank_mask:0x3')
            a(f'v_add_f32_dpp v24, v{D+1}, v{D+1} row_ror:8 row_mask:0xf bank_mask:0xc')
            a(f'v_add_f32_dpp v25, v{D+3}, v{D+3} row_ror:8 row_mask:0xf bank_mask:0xc')
            r2 = 26 + (g & 1)
            a(f'v_add_f32_dpp v{r2}, v24, v24 row_shl:4 row_mask:0xf bank_mask:0x5')
            a(f'v_add_f32_dpp v{r2}, v25, v25 row_shr:4 row_mask:0xf bank_mask:0xa')
            if g & 1:
                r3 = 28 + ((g >> 1) & 1)
                a(f'v_add_f32_dpp v30, v26, v26 quad_perm:[2,3,0,1] row_mask:0xf bank_mask:0xf')
                a(f'v_add_f32_dpp v31, v27, v27 quad_perm:[2,3,0,1] row_mask:0xf bank_mask:0xf')
                a(f'v_cndmask_b32 v{r3}, v30, v31, s[96:97]')
            if (g & 3) == 3:
                a(f'v_add_f32_dpp v30, v28, v28 quad_perm:[1,0,3,2] row_mask:0xf bank_mask:0xf')
                a(f'v_add_f32_dpp v31, v29, v29 quad_perm:[1,0,3,2] row_mask:0xf bank_mask:0xf')
                a(f'v_cndmask_b32 v{32 + (g >> 2)}, v30, v31, s[98:99]')
        a(f'''
        v_cvt_pk_bf16_f32 v20, v32, v33
        s_mov_b32 s86, 0x3db504f3
        ''')
        self.unpack(32, 20)
        a('v_pk_mul_f32 v[32:33], v[32:33], s[86:87] op_sel_hi:[1,0]\nv_cvt_pk_bf16_f32 v20, v32, v33')
        self.unpack(32, 20)
        a('v_max_f32 v20, v32, v33')
        self.wave_red(20, 'max')
        a(f'''
        v_readlane_b32 s86, v20, 63              ; m_w
        s_mov_b32 s90, {LOG2E}
        v_subrev_f32 v20, s86, v32
        v_subrev_f32 v21, s86, v33
        v_mul_f32 v20, s90, v20
        v_mul_f32 v21, s90, v21
        v_exp_f32 v20, v20
        v_exp_f32 v21, v21
        v_add_f32 v21, v20, v21
        ''')
        self.wave_red(21)
        a(f'''
        v_mov_b32 v20, s86
        s_lshl_b32 s85, s15, 3
        v_add_u32 v22, s85, v13
        s_mov_b32 exec_lo, 0
        s_mov_b32 exec_hi, 0x80000000
        ds_write_b64 v22, v[20:21] offset:{L_SM}
        s_mov_b64 exec, -1
        ''')
        self.stamp(3)
        self.signal(C_SM)
        pre(8, 31)
        self.lds_wait(C_SM, 8)
        self.stamp(4)
        a(f'''
        v_and_b32 v22, 7, v2
        v_lshl_add_u32 v22, v22, 3, v13
        ds_read_b64 v[20:21], v22 offset:{L_SM}
        s_waitcnt lgkmcnt(0)
        v_max_f32_dpp v22, v20, v20 row_ror:4 row_mask:0xf bank_mask:0xf
        v_max_f32_dpp v22, v22, v22 row_ror:2 row_mask:0xf bank_mask:0xf
        v_max_f32_dpp v22, v22, v22 row_ror:1 row_mask:0xf bank_mask:0xf
        v_sub_f32 v20, v20, v22
        v_mul_f32 v20, s90, v20
        v_exp_f32 v20, v20
        v_sub_f32 v32, v32, v22
        v_sub_f32 v33, v33, v22
        v_mul_f32 v21, v21, v20
        v_mul_f32 v32, s90, v32
        v_mul_f32 v33, s90, v33
        v_add_f32_dpp v21, v21, v21 row_ror:4 row_mask:0xf bank_mask:0xf
        v_exp_f32 v32, v32
        v_exp_f32 v33, v33
        v_add_f32_dpp v21, v21, v21 row_ror:2 row_mask:0xf bank_mask:0xf
        v_add_f32_dpp v21, v21, v21 row_ror:1 row_mask:0xf bank_mask:0xf
        v_rcp_f32 v21, v21
        v_mul_f32 v32, v32, v21
        v_mul_f32 v33, v33, v21
        v_cvt_pk_bf16_f32 v32, v32, v32
        v_cvt_pk_bf16_f32 v33, v33, v33
        ''')
        issued = st['V']; nwo = st['W']
        for t in range(32):
            A = 20 + 4 * (t & 1)
            for r in range(4):
                a(f'v_and_b32_dpp v{A+r}, v{32 + (t >> 4)}, v{8+r} row_newbcast:{bitrev4(t & 15)} row_mask:0xf bank_mask:0xf')
            wait_for(f'V{t}')
            a(f'v_mfma_f32_16x16x32_bf16 v[16:19], v[{A}:{A+3}], v[{KV(t % NV)}:{KV(t % NV)+3}], {"0" if t == 0 else "v[16:19]"}')
            while t + (WV if t < self.wv_sw else self.WV2) >= issued and issued < 32:
                ld(issued, issued % NV, 's[52:55]', f'V{issued}'); issued += 1
            if t >= self.wo_start:
                for _ in range(self.wo_per):
                    if nwo < 20: ldwo(nwo); nwo += 1
            if t == self.prog_t: self.signal(C_PROG)
            if t == self.progw_t: self.signal(C_PROGW)
            if t == self.k2_t: self.signal(C_K2)
            if t == 28:
                a(f'''
                v_lshlrev_b32 v7, 4, v2
                v_and_b32 v3, 15, v2
                v_lshrrev_b32 v4, 4, v2
                v_lshlrev_b32 v5, 5, v3
                v_lshl_add_u32 v5, v4, 4, v5          ; (8j+4s')*4
                s_lshl_b32 s85, s15, 9
                s_add_u32 s85, s85, {L_OP}
                v_add_u32 v6, s85, v5
                s_mul_i32 s85, s15, 2560
                s_add_u32 s85, s85, {L_WP}
                v_add_u32 v5, s85, v5
                s_lshl_b32 s85, s15, 6
                s_add_u32 s85, s85, {L_OP}
                v_lshl_add_u32 v4, v4, 4, s85
                v_add_u32 v35, {L_WP}, v7
                v_lshlrev_b32 v12, 3, v2
                v_add_u32 v36, {L_WP}, v12
                s_mul_i32 s87, s2, 2560
                s_add_u32 s87, s87, {WS_P}
                ''')
        assert nwo == 20
        a(f'''
        s_mov_b32 exec_hi, 0
        ds_write_b128 v6, v[16:19]
        s_mov_b64 exec, -1
        ''')
        self.stamp(5)
        self.signal(C_PV)
        self.lds_wait(C_PV, 8)
        for w in range(8):
            a(f'ds_read_b128 v[{40+4*w}:{43+4*w}], v4 offset:{512*w}')
        a('s_waitcnt lgkmcnt(0)')
        self.sum_partials(40, [40 + 4 * i for i in range(8)])
        for r in range(4): a(f'v_cvt_pk_bf16_f32 v{40+r}, v{40+r}, v{40+r}')
        for tp in range(4):
            for r in range(4): a(f'v_and_b32 v{44+4*tp+r}, v{40+tp}, v{8+r}')
        a('s_waitcnt vmcnt(0)')
        self.stamp(6)
        for tp in range(4):
            for c in range(5):
                d = 60 + 4 * c; b = KV(NV + 5 * tp + c)
                a(f'v_mfma_f32_16x16x32_bf16 v[{d}:{d+3}], v[{44+4*tp}:{47+4*tp}], v[{b}:{b+3}], {"0" if tp == 0 else "v[%d:%d]" % (d, d+3)}')
        a('s_mov_b32 exec_hi, 0')
        for c in range(5): a(f'ds_write_b128 v5, v[{60+4*c}:{63+4*c}] offset:{512*c}')
        a('s_mov_b64 exec, -1')
        self.arrive(C_WO, 7, 'L_stream_end')
        self.stamp(7)
        for w in range(8):
            b = 40 + 10 * w
            a(f'ds_read_b128 v[{b}:{b+3}], v35 offset:{2560*w}')
            a(f'ds_read_b128 v[{b+4}:{b+7}], v35 offset:{2560*w + 1024}')
            a(f'ds_read_b64 v[{b+8}:{b+9}], v36 offset:{2560*w + 2048}')
            if w == 3: a('s_waitcnt lgkmcnt(0)')
        def P(r, i): return f'v[{r+2*i}:{r+2*i+1}]'
        for x, y in ((40, 50), (60, 70), (40, 60)):
            for i in range(5): a(f'v_pk_add_f32 {P(x,i)}, {P(x,i)}, {P(y,i)}')
        a('s_waitcnt lgkmcnt(0)')
        for x, y in ((80, 90), (100, 110), (80, 100), (40, 80)):
            for i in range(5): a(f'v_pk_add_f32 {P(x,i)}, {P(x,i)}, {P(y,i)}')
        self.sanitize(range(40, 50))
        a(f'''
        buffer_store_dwordx4 v[40:43], v7, s[44:47], s87 offen sc1
        buffer_store_dwordx4 v[44:47], v7, s[44:47], s87 offen offset:1024 sc1
        buffer_store_dwordx2 v[48:49], v12, s[44:47], s87 offen offset:2048 sc1
        ''')
        self.signal(C_DONE)
        a('L_stream_end:')
        self.stamp(10)
        self.stamp_flush()
        a('L_end:\ns_endpgm')

    def build(self):
        self.prologue(); self.control(); self.stream()
        kn = NAME + '_kernel'
        body = '\n'.join(fix_hazards(self.a.l)) + '\n'
        hdr = open('cdna_kernels/' + NAME + '.s.ref').read().split('; Override launch')[0]
        return hdr + header([f'; @launch grid=(256,1,1) block=(768,1,1) lds={LDS_SIZE}']) + kernel_start(kn) + body + '.section .rodata,"a"\n' + descriptor(kn, vgpr=168, sgpr=102, accum=168)

if __name__ == '__main__':
    import argparse
    from collections import Counter
    rs = [role_of(w) for w in range(256)]
    for r, n in ((R_G1, 20), (R_DOWN, 40), (R_FFN, 54), (R_Q, 64), (R_MOD, 40), (R_RED, 8)):
        assert sorted(i for rr, i in rs if rr == r) == list(range(n)), r
    ap = argparse.ArgumentParser()
    ap.add_argument('-o', default='k.s'); ap.add_argument('--stamp', action='store_true')
    for p, d in (('WK', 3), ('WV', 3), ('rot', 3), ('rotw', 1), ('qpos', 25), ('prog_t', 22), ('progw_t', -1), ('WD', 20), ('wo_start', 0), ('wo_per', 1), ('sdelay', 0), ('WK0', 2), ('wk_sw', 16), ('k2_t', -1), ('WV2', 6), ('wv_sw', 16), ('hold', 1), ('pf', 1), ('WKL', 4), ('wkl_sw', 6), ('lagmask', 0x32), ('pfb', 1), ('diag_until', 0), ('nEf', 8), ('nEd', 6), ('late', 0), ('WDM', 20), ('k2_n', 8)):
        ap.add_argument('--' + p, type=int, default=d)
    ap.add_argument('--pre', default='V,V,V,V,V,V,V,V,W')
    args = ap.parse_args()
    kw = dict(vars(args)); o = kw.pop('o')
    open(o, 'w').write(G(**kw).build())
```

```python
import sys
from asmlib import *
import gen as G1mod
from gen import bitrev4, LOG2E, SPIN_LIMIT

WS_E = 0
WS_H1 = 0x1000
WS_Q = 0x8000
SB2 = 0x28000
WS_H2 = SB2; WS_X1 = SB2 + 0x3000; WS_HID = SB2 + 0x6000; WS_MODO = SB2 + 0xD000
WS_P = 0x50000
WS_STAMP = 0x100000
WS_SIZE = 0x200000
LW = 0; L_OP = 0x14000; L_WP = 0x15000; LM = 0x1A000; LDS_SIZE = 0x1B000
C_A, C_SM, C_PV, C_WO, C_QOK, C_PROG, C_PROGW, C_GO, C_DONE, C_K2, C_ACT, C_PF, C_PF2 = [4 * i for i in range(13)]
L_STAT = 0x40; L_SM = 0x100
L_ACT = L_WP; ACTS = 1344
R_G1, R_DOWN, R_FFN, R_Q, R_MOD, R_RED = 1, 2, 3, 4, 5, 6

def role_of(wg):
    x = wg & 7; u = wg >> 3
    if u < 2: return R_G1, 2 * x + u
    if u < 6:
        k = u - 2
        e = EXTRA.get((x, k >> 1))
        if e is None: return 0, 0
        return e[0], e[0] * 16 + 2 * e[1] + (k & 1)
    if u < 14: return R_Q, (x + 8 * ((u - 6) >> 1)) * 2 + ((u - 6) & 1)
    if u < 19: return R_MOD, 5 * x + u - 14
    if u < 25: return R_FFN, 6 * x + u - 19
    if u < 29: return R_DOWN, 4 * x + u - 25
    if u == 29: return R_RED, x
    return 0, 0
EXTRA = {(0, 0): (R_DOWN, 0), (0, 1): (R_DOWN, 1), (2, 0): (R_DOWN, 2), (2, 1): (R_DOWN, 3),
         (4, 0): (R_FFN, 0), (4, 1): (R_FFN, 1), (6, 0): (R_G1, 0), (6, 1): (R_FFN, 2), (1, 0): (R_G1, 1)}

class G(G1mod.G):
    def __init__(self, stamp=False, WK=3, WV=3, rot=3, rotw=1, qpos=25, prog_t=22, progw_t=-1, WD=4, wo_start=0, wo_per=1, sdelay=0, WK0=2, wk_sw=16, k2_t=6, WV2=6, wv_sw=16, hold=1, pf=1, WKL=6, wkl_sw=6, lagmask=0x72, diag_until=0, diag_cls=-1, diag_idx=-1, pfb=1, nEf=8, nEd=6, late=0, WDM=2, k2_n=8, pre='V,V,VV,VW,VWW,VWW,VVW,VWW,VVWW'):
        self.sdelay = sdelay; self.WK0 = WK0; self.wk_sw = wk_sw; self.k2_t = k2_t; self.WV2 = WV2; self.wv_sw = wv_sw; self.hold = hold; self.pf = pf; self.late = late; self.pfb = pfb; self.diag_until = diag_until; self.diag_cls = diag_cls; self.diag_idx = diag_idx; self.cur_cls = -1; self.nEf = nEf; self.nEd = nEd; self.WKL = WKL; self.wkl_sw = wkl_sw; self.lagmask = lagmask; self.WDM = WDM; self.k2_n = k2_n; self.pre = pre.split(',')
        self.a = Asm(); self.stamp_on = stamp
        self.WK = WK; self.WV = WV; self.rot = rot; self.rotw = rotw; self.qpos = qpos; self.prog_t = prog_t
        self.progw_t = progw_t; self.WD = WD; self.wo_start = wo_start; self.wo_per = wo_per

    def stamp(self, i):
        if self.diag_until and i == self.diag_idx and (self.cur_cls == self.diag_cls or (self.cur_cls == 99 and self.diag_cls > 0)):
            if self.cur_cls == 99:
                L = self.a.label('L_ds')
                self.a(f's_cmp_lg_u32 s7, {self.diag_cls}\ns_cbranch_scc1 {L}\ns_memrealtime s[100:101]\ns_waitcnt lgkmcnt(0)\n{L}:')
            else:
                self.a('s_memrealtime s[100:101]\ns_waitcnt lgkmcnt(0)')
        super().stamp(i)

    def diag_end(self):
        if self.diag_until:
            L = self.a.label('L_diag')
            self.a(f'{L}:\ns_sleep 1\ns_memrealtime s[98:99]\ns_waitcnt lgkmcnt(0)\ns_sub_u32 s98, s98, s100\ns_cmp_lt_u32 s98, {self.diag_until*100}\ns_cbranch_scc1 {L}')

    def tag_from(self, v):
        self.a(f'''
        s_mov_b32 s85, 1664525
        v_mul_lo_u32 v{v}, s85, v{v}
        v_add_u32 v{v}, 1013904223, v{v}
        v_readfirstlane_b32 s94, v{v}
        ''')

    def poll(self, name, loads, check, sleep, tagged=False):
        a = self.a
        a(f's_mov_b32 s89, {SPIN_LIMIT}\nL_{name}_poll:')
        for l in loads: a(l)
        a('s_waitcnt vmcnt(0)')
        if tagged:
            for i in range(0, len(check), 2):
                a(f'v_xor_b32 v36, s94, v{check[i]}\nv_xor_b32 v37, s94, v{check[i+1]}')
                a('v_or_b32 v38, v36, v37' if i == 0 else 'v_or3_b32 v38, v38, v36, v37')
            a('v_cmp_ne_u32 vcc, 0, v38')
        else:
            c = list(check)
            if len(c) % 2 == 0:
                a(f'v_max_u32 v38, v{c[0]}, v{c[1]}'); c = c[2:]
            else:
                a(f'v_max3_u32 v38, v{c[0]}, v{c[1]}, v{c[2]}'); c = c[3:]
            for i in range(0, len(c), 2): a(f'v_max3_u32 v38, v38, v{c[i]}, v{c[i+1]}')
            a('v_cmp_eq_u32 vcc, -1, v38')
        a(f'''
        s_cbranch_vccz L_{name}_ok
        {"s_sleep %d" % sleep if sleep else ""}
        s_sub_u32 s89, s89, 1
        s_cbranch_scc0 L_{name}_poll
        L_{name}_ok:
        ''')

    def prologue(self):
        a = self.a
        a(f'''
        s_cmp_ge_u32 s2, 256
        s_cbranch_scc1 L_end
        {'s_memrealtime s[100:101]' if self.diag_until else ''}
        s_load_dwordx16 s[16:31], s[0:1], 0
        s_load_dwordx8 s[32:39], s[0:1], 64
        s_load_dwordx4 s[40:43], s[0:1], 96
        v_lshrrev_b32 v1, 6, v0
        v_and_b32 v2, 63, v0
        v_readfirstlane_b32 s3, v1
        v_mov_b32 v13, {LM}
        s_mov_b32 s84, 0xffff0000
        v_mov_b32 v15, 0
        v_lshl_add_u32 v14, v2, 2, v13
        ds_write_b32 v14, v15
        s_lshr_b32 s13, s2, 5            ; b
        s_and_b32 s14, s2, 31            ; h
        v_lshlrev_b32 v7, 4, v2          ; lane*16
        ''')
        self.decode()
        a('''
        s_waitcnt lgkmcnt(0)
        s_barrier
        ''')
        self.srd(44, 42, WS_SIZE)
        self.stamp(0)
        a(f'''
        s_cmp_lt_u32 s3, 4
        s_cbranch_scc0 L_stream
        ''')

    def decode(self):
        a = self.a
        ext = 0
        for (x, kh), (r, idx) in EXTRA.items(): ext |= (r | idx << 2) << (4 * (2 * x + kh))
        a(f'''
        s_and_b32 s4, s2, 7              ; x
        s_lshr_b32 s5, s2, 3             ; u
        s_mov_b32 s7, 0
        s_mov_b32 s8, 0
        ''')
        for lo, hi, role, mul in ((0, 2, R_G1, 2), (14, 19, R_MOD, 5), (19, 25, R_FFN, 6), (25, 29, R_DOWN, 4), (29, 30, R_RED, 1)):
            a(f'''
            s_sub_u32 s9, s5, {lo}
            s_mul_i32 s10, s4, {mul}
            s_add_u32 s10, s10, s9
            s_cmp_lt_u32 s9, {hi-lo}
            s_cselect_b32 s7, {role}, s7
            s_cselect_b32 s8, s10, s8
            ''')
        a(f'''
        s_sub_u32 s9, s5, 6              ; Q: (x + 8*(k>>1))*2 + (k&1)
        s_lshr_b32 s10, s9, 1
        s_lshl_b32 s10, s10, 3
        s_add_u32 s10, s10, s4
        s_lshl_b32 s10, s10, 1
        s_and_b32 s11, s9, 1
        s_add_u32 s10, s10, s11
        s_cmp_lt_u32 s9, 8
        s_cselect_b32 s7, {R_Q}, s7
        s_cselect_b32 s8, s10, s8
        s_sub_u32 s9, s5, 2              ; extras
        s_lshr_b32 s10, s9, 1
        s_and_b32 s10, s10, 1
        s_lshl_b32 s11, s4, 1
        s_add_u32 s10, s10, s11
        s_lshl_b32 s10, s10, 2
        s_mov_b32 s86, {ext & 0xffffffff}
        s_mov_b32 s87, {ext >> 32}
        s_lshr_b64 s[86:87], s[86:87], s10
        s_and_b32 s10, s86, 3            ; role
        s_bfe_u32 s11, s86, 0x20002      ; idx
        s_lshl_b32 s11, s11, 1
        s_lshl_b32 s12, s10, 4
        s_add_u32 s11, s11, s12
        s_and_b32 s12, s9, 1
        s_add_u32 s11, s11, s12
        s_cmp_lt_u32 s9, 4
        s_cselect_b32 s7, s10, s7
        s_cselect_b32 s8, s11, s8
        ''')

    def pfld(self, v, srd, so): self.a(f'buffer_load_dword v160, v{v}, {srd}, {so} offen nt')

    def prefetch(self):
        a = self.a
        self.srd(64, 36, 640 * 7680)
        a(f'''
        s_sub_u32 s90, s5, 14
        s_cmp_ge_u32 s90, 16
        s_cbranch_scc1 L_pf_done
        s_lshl_b32 s92, s4, 7
        s_cmp_lt_u32 s3, 2
        s_cbranch_scc1 L_pfA
        s_cmp_eq_u32 s4, 6
        s_cselect_b32 s92, 1024, 0
        s_cmp_eq_u32 s4, 1
        s_cselect_b32 s92, 1152, s92
        s_cmp_eq_u32 s92, 0
        s_cbranch_scc1 L_pf_done
        L_pfA:
        s_lshl_b32 s90, s90, 1
        s_and_b32 s91, s3, 1
        s_add_u32 s90, s90, s91
        s_mul_i32 s91, s90, {20*7680}
        s_add_u32 s92, s92, s91
        v_lshrrev_b32 v16, 1, v2
        v_min_u32 v16, 19, v16
        v_mul_u32_u24 v16, 7680, v16
        v_and_b32 v17, 1, v2
        v_mul_u32_u24 v17, 1280, v17
        v_add_u32 v16, v16, v17
        ''')
        self.pfld(16, 's[64:67]', 's92')
        a('L_pf_done:')

    def prefetch_b(self, sfx):
        a = self.a
        a(f'''
        s_cmp_lt_u32 s3, 2
        s_cbranch_scc1 L_pb_done{sfx}
        s_mul_i32 s90, s5, 20
        v_lshrrev_b32 v16, 3, v2
        s_cmp_eq_u32 s3, 3
        s_cbranch_scc1 L_pb3{sfx}
        ''')
        self.srd(64, 22, 640 * 8192)
        a(f'''
        v_bfe_u32 v17, v2, 1, 2
        v_lshlrev_b32 v17, 11, v17
        v_and_b32 v18, 1, v2
        v_lshl_add_u32 v17, v18, 7, v17
        v_lshl_add_u32 v18, v16, 13, v17
        v_and_b32 v16, 3, v16
        v_lshl_add_u32 v19, v16, 13, v17
        s_lshl_b32 s91, s90, 13
        s_lshl_b32 s92, s4, 8
        s_add_u32 s92, s92, s91
        ''')
        self.pfld(18, 's[64:67]', 's92'); a(f's_add_u32 s92, s92, {8*8192}')
        self.pfld(18, 's[64:67]', 's92'); a(f's_add_u32 s92, s92, {8*8192}')
        self.pfld(19, 's[64:67]', 's92')
        if sfx == '':
            a('s_waitcnt vmcnt(0)')
            self.signal(C_PF)
        a(f's_branch L_pb_done{sfx}\nL_pb3{sfx}:')
        self.srd(64, 36, 640 * 7680)
        a(f'''
        v_and_b32 v17, 7, v2
        v_min_u32 v17, 4, v17
        v_lshlrev_b32 v17, 7, v17
        v_mul_u32_u24 v18, 7680, v16
        v_add_u32 v18, v18, v17
        v_and_b32 v16, 3, v16
        v_mul_u32_u24 v19, 7680, v16
        v_add_u32 v19, v19, v17
        s_mul_i32 s91, s90, 7680
        s_mul_i32 s92, s4, 640
        s_add_u32 s92, s92, 2560
        s_add_u32 s92, s92, s91
        ''')
        if sfx == '': self.lds_wait(C_PF, 1, sleep=2)
        self.pfld(18, 's[64:67]', 's92'); a(f's_add_u32 s92, s92, {8*7680}')
        self.pfld(18, 's[64:67]', 's92'); a(f's_add_u32 s92, s92, {8*7680}')
        self.pfld(19, 's[64:67]', 's92')
        if sfx == '':
            a(f's_cmp_lg_u32 s7, {R_MOD}\ns_cbranch_scc1 L_pb_done{sfx}\ns_waitcnt vmcnt(0)')
            self.signal(C_PF2)
        a(f'L_pb_done{sfx}:')

    def prefetch_late(self, sfx):
        a = self.a
        a(f's_cmp_lg_u32 s3, 0\ns_cbranch_scc1 L_pl1{sfx}')
        self.srd(68, 32, 1728 * 1280)
        a(f'''
        v_min_u32 v16, 53, v2
        v_mul_u32_u24 v16, 1280, v16
        s_mul_i32 s91, s5, {54*1280}
        s_lshl_b32 s92, s4, 7
        s_add_u32 s92, s92, s91
        s_lshl_b32 s93, s4, 6
        s_add_u32 s93, s93, 1024
        s_add_u32 s93, s93, s91
        ''')
        self.lds_wait(C_PROGW if self.progw_t >= 0 else C_DONE, 1, sleep=4)
        self.pfld(16, 's[68:71]', 's92')
        a(f'''
        s_and_b32 s92, s4, 5
        s_cmp_lg_u32 s92, 0
        s_cbranch_scc1 L_pl_done{sfx}
        ''')
        self.pfld(16, 's[68:71]', 's93')
        a(f's_branch L_pl_done{sfx}\nL_pl1{sfx}:')
        self.srd(64, 28, 640 * 3456); self.srd(68, 30, 640 * 3456)
        a(f'''
        s_mul_i32 s92, s4, 3
        s_mov_b32 s91, s92
        s_mov_b32 s93, s92
        s_cmp_eq_u32 s4, 4
        s_cselect_b32 s91, 24, s91
        s_cselect_b32 s93, 25, s93
        s_cmp_eq_u32 s4, 6
        s_cselect_b32 s91, 26, s91
        v_and_b32 v17, 7, v2
        v_min_u32 v18, 2, v17
        v_add_u32 v18, s92, v18
        v_mov_b32 v19, s91
        v_cmp_eq_u32 vcc, 3, v17
        v_cndmask_b32 v18, v18, v19, vcc
        v_mov_b32 v19, s93
        v_cmp_eq_u32 vcc, 4, v17
        v_cndmask_b32 v18, v18, v19, vcc
        v_lshlrev_b32 v17, 7, v18
        v_lshrrev_b32 v16, 3, v2
        s_lshl_b32 s92, s3, 3
        s_sub_u32 s92, s92, 8
        v_add_u32 v16, s92, v16
        v_min_u32 v16, 19, v16
        v_mul_u32_u24 v18, 3456, v16
        v_add_u32 v18, v18, v17
        s_mul_i32 s92, s5, {20*3456}
        ''')
        self.lds_wait(C_PROGW if self.progw_t >= 0 else C_DONE, 1, sleep=4)
        self.pfld(18, 's[64:67]', 's92'); self.pfld(18, 's[68:71]', 's92')
        a(f'L_pl_done{sfx}:')

    def dma640_setup(self):
        a = self.a
        a(f'''
        v_lshrrev_b32 v16, 3, v2
        s_mul_i32 s85, s3, 160
        v_add_u32 v16, s85, v16
        v_mul_lo_u32 v16, s52, v16
        v_and_b32 v17, 3, v2
        v_lshl_add_u32 v16, v17, 4, v16
        v_mov_b32 v17, 0
        v_mov_b32 v18, s48
        v_mov_b32 v19, s49
        v_mov_b32 v20, s50
        v_mov_b32 v21, s51
        v_and_b32 v22, 4, v2
        v_cmp_ne_u32 vcc, 0, v22
        v_cndmask_b32 v18, v18, v20, vcc
        v_cndmask_b32 v19, v19, v21, vcc
        v_lshl_add_u64 v[4:5], v[16:17], 0, v[18:19]
        s_lshl_b32 s54, s52, 3
        s_mov_b32 s55, 0
        ''')
    def dma640_issue(self, lo, hi, WD=99):
        a = self.a
        for n in range(lo, hi):
            a(f's_add_u32 m0, s87, {LW + 1024*n}')
            if n >= WD: a(f's_waitcnt vmcnt({WD-1})')
            a(f'global_load_lds_dwordx4 v[4:5], off nt')
            if n < 19: a('v_lshl_add_u64 v[4:5], v[4:5], 0, s[54:55]')
    def dma640(self, WD):
        self.dma640_setup(); self.dma640_issue(0, 20, WD)

    def wfrags640(self, younger=None):
        a = self.a
        for n in range(5):
            if younger is not None: a(f's_waitcnt vmcnt({younger + 4 * (4 - n)})')
            for T in range(4):
                b = 40 + 16 * n + 4 * T
                a(f'ds_read_b64_tr_b16 v[{b}:{b+1}], v9 offset:{LW + 4096*n + 32*T}')
                a(f'ds_read_b64_tr_b16 v[{b+2}:{b+3}], v9 offset:{LW + 4096*n + 32*T + 512}')
            a('s_waitcnt lgkmcnt(0)')

    def mfma640(self, skip):
        a = self.a
        for n in range(5):
            for T in range(4):
                b = 40 + 16 * n + 4 * T; d = 16 + 4 * T
                a(f'v_mfma_f32_16x16x32_bf16 v[{d}:{d+3}], v[{b}:{b+3}], v[{120+4*n}:{123+4*n}], {"0" if n == 0 else "v[%d:%d]" % (d, d+3)}')
        for T in range(4):
            a(f'ds_write_b128 v10, v[{16+4*T}:{19+4*T}] offset:{LW + 1024*T}')
        self.arrive(C_A, 3, skip)
        for w in range(4):
            a(f'ds_read_b128 v[{40+4*w}:{43+4*w}], v11 offset:{LW + 20480*w}')
            a(f'ds_read_b128 v[{56+4*w}:{59+4*w}], v11 offset:{LW + 20480*w + 2048}')

    def red640(self):
        self.a('s_waitcnt lgkmcnt(0)')
        self.sum_partials(40, [40, 44, 48, 52]); self.sum_partials(56, [56, 60, 64, 68])

    def silu(self, ns=range(5)):
        a = self.a
        a(f's_mov_b32 s85, {LOG2E | 0x80000000}')
        for n in ns:
            b = 120 + 4 * n
            for i in range(4): self.unpack(16 + 2 * i, b + i)
            for i in range(8): a(f'v_mul_f32 v{24+i}, s85, v{16+i}')
            for i in range(8): a(f'v_exp_f32 v{24+i}, v{24+i}')
            for i in range(8): a(f'v_add_f32 v{24+i}, 1.0, v{24+i}')
            for i in range(8): a(f'v_rcp_f32 v{24+i}, v{24+i}')
            for i in range(8): a(f'v_mul_f32 v{16+i}, v{16+i}, v{24+i}')
            for i in range(4): a(f'v_cvt_pk_bf16_f32 v{b+i}, v{16+2*i}, v{17+2*i}')

    def add64(self, d, base, off):
        self.a(f's_add_u32 s{d}, s{base}, {off}\ns_addc_u32 s{d+1}, s{base+1}, 0')

    def control(self):
        a = self.a
        self.cur_cls = 99
        a('s_setprio 3')
        if self.pf: self.prefetch()
        if self.pfb:
            a(f's_cmp_eq_u32 s7, {R_G1}\ns_cbranch_scc1 L_pb_done')
            self.prefetch_b('')
        a(f'''
        s_cmp_eq_u32 s7, 0
        s_cbranch_scc1 L_ctrl_end
        v_mov_b32 v3, 0
        buffer_load_dword v167, v3, s[44:47], 0 offen sc1
        s_mul_i32 s87, s3, 20480
        v_lshrrev_b32 v16, 4, v2         ; s
        v_bfe_u32 v17, v2, 2, 2          ; r4
        v_and_b32 v18, 3, v2             ; c
        v_lshl_add_u32 v19, v16, 3, v17  ; 8s+r4
        v_lshlrev_b32 v9, 7, v19
        v_lshl_add_u32 v9, v18, 3, v9
        v_add_u32 v9, s87, v9
        v_add_u32 v10, s87, v7
        v_and_b32 v17, 7, v2             ; b
        v_bfe_u32 v18, v2, 3, 1          ; t
        v_lshlrev_b32 v11, 8, v16
        v_lshl_add_u32 v11, v17, 4, v11
        v_lshl_add_u32 v11, v18, 10, v11
        v_mul_u32_u24 v19, 1280, v17
        v_lshl_add_u32 v6, v16, 4, v19
        v_lshlrev_b32 v8, 5, v18
        v_lshl_add_u32 v8, v16, 3, v8    ; (16t+4s')*2 bytes
        v_lshlrev_b32 v12, 2, v2         ; lane*4
        s_cmp_eq_u32 s7, {R_Q}
        s_cbranch_scc1 L_role_q
        s_cmp_eq_u32 s7, {R_FFN}
        s_cbranch_scc1 L_role_ffn
        s_cmp_eq_u32 s7, {R_DOWN}
        s_cbranch_scc1 L_role_down
        s_cmp_eq_u32 s7, {R_RED}
        s_cbranch_scc1 L_role_red
        ''')
        a(f'''
        s_movk_i32 s52, 7680
        s_cmp_eq_u32 s7, {R_G1}
        s_cbranch_scc1 L_role_g1
        ''')
        self.srd(56, 34, 10240)
        a('s_mul_i32 s85, s3, 320')
        for n in range(5):
            a(f'buffer_load_dwordx4 v[{120+4*n}:{123+4*n}], v6, s[56:59], s85 offen offset:{64*n}')
        a(f'''
        s_lshl_b32 s9, s8, 7
        s_add_u32 s9, s9, 2560
        s_add_u32 s48, s36, s9
        s_addc_u32 s49, s37, 0
        s_add_u32 s50, s48, 64
        s_addc_u32 s51, s49, 0
        s_waitcnt vmcnt(0)
        ''')
        self.silu()
        if self.pfb: self.lds_wait(C_PF2, 1, sleep=2)
        self.dma640(self.WDM)
        a('s_waitcnt vmcnt(0)')
        self.stamp(2)
        self.wfrags640()
        self.mfma640('L_ctrl_end')
        a(f'''
        v_and_b32 v22, 7, v2
        v_mul_u32_u24 v22, 5120, v22
        v_add_u32 v22, v22, v8
        s_lshl_b32 s90, s8, 7
        s_add_u32 s90, s90, {WS_MODO}
        ''')
        self.red640()
        self.pack4(24, 40); self.pack4(26, 56)
        self.sanitize([24, 25, 26, 27])
        self.lds_wait(C_QOK, 1, sleep=8)
        a(f'''
        buffer_store_dwordx2 v[24:25], v22, s[44:47], s90 offen sc1
        buffer_store_dwordx2 v[26:27], v22, s[44:47], s90 offen offset:64 sc1
        s_branch L_ctrl_end
        L_role_g1:
        s_lshl_b32 s9, s8, 6
        s_add_u32 s48, s36, s9
        s_addc_u32 s49, s37, 0
        s_add_u32 s50, s48, 1280
        s_addc_u32 s51, s49, 0
        v_add_u32 v34, v19, v8
        ''')
        self.dma640(99)
        self.srd(60, 16, 10240)
        a(f'''
        buffer_load_dwordx2 v[150:151], v34, s[60:63], s9 offen
        s_lshl_b32 s85, s8, 2
        s_add_u32 s85, s85, s3
        s_lshl_b32 s85, s85, 11
        s_add_u32 s85, s85, {SB2}
        v_mov_b32 v152, -1
        v_mov_b32 v153, -1
        v_mov_b32 v154, -1
        v_mov_b32 v155, -1
        buffer_store_dwordx4 v[152:155], v7, s[44:47], s85 offen sc1
        buffer_store_dwordx4 v[152:155], v7, s[44:47], s85 offen offset:1024 sc1
        v_and_b32 v16, 7, v2
        v_mul_u32_u24 v16, {ACTS}, v16
        v_lshrrev_b32 v17, 4, v2
        v_lshl_add_u32 v16, v17, 4, v16
        s_mul_i32 s85, s3, 320
        s_add_u32 s85, s85, {L_ACT}
        v_add_u32 v35, s85, v16
        ''')
        self.signal(C_GO)
        self.stamp(1)
        self.lds_wait(C_ACT, 8)
        for n in range(5): a(f'ds_read_b128 v[{120+4*n}:{123+4*n}], v35 offset:{64*n}')
        self.stamp(3)
        self.wfrags640(younger=3)
        self.tag_from(167)
        a('s_waitcnt vmcnt(0)')
        self.stamp(2)
        self.mfma640('L_ctrl_end')
        a(f'''
        v_and_b32 v22, 7, v2
        v_lshl_add_u32 v23, v22, 3, v13
        ds_read_b64 v[36:37], v23 offset:{L_STAT}
        ''')
        self.red640()
        self.pack4(24, 40); self.pack4(26, 56)
        self.unpack4(56, 26)
        a('v_pk_add_f32 v[56:57], v[56:57], 1.0 op_sel_hi:[1,0]\nv_pk_add_f32 v[58:59], v[58:59], 1.0 op_sel_hi:[1,0]')
        self.round4(56, 26)
        self.unpack4(40, 24)
        self.unpack4(44, 150)
        for i in range(4): a(f'v_sub_f32 v{44+i}, v{44+i}, v36')
        self.round4(44, 28)
        for i in range(4): a(f'v_mul_f32 v{44+i}, v{44+i}, v37')
        self.round4(44, 28)
        a('v_pk_mul_f32 v[44:45], v[44:45], v[56:57]\nv_pk_mul_f32 v[46:47], v[46:47], v[58:59]')
        self.round4(44, 28)
        a('v_pk_add_f32 v[44:45], v[44:45], v[40:41]\nv_pk_add_f32 v[46:47], v[46:47], v[42:43]')
        a(f'''
        v_cvt_pk_bf16_f32 v28, v44, v45
        v_cvt_pk_bf16_f32 v30, v46, v47
        v_mov_b32 v29, s94
        v_mov_b32 v31, s94
        v_lshlrev_b32 v22, 4, v22               ; b*16
        v_lshl_add_u32 v22, v8, 4, v22          ; + (16t+4s')*32 = t*512 + s'*128
        s_lshl_b32 s85, s8, 10
        s_add_u32 s85, s85, {WS_H1}
        buffer_store_dwordx4 v[28:31], v22, s[44:47], s85 offen sc1
        s_branch L_ctrl_end
        ''')
        a(f'''
        L_role_q:
        s_lshl_b32 s9, s8, 7
        s_add_u32 s48, s22, s9
        s_addc_u32 s49, s23, 0
        s_add_u32 s50, s48, 64
        s_addc_u32 s51, s49, 0
        s_movk_i32 s52, 8192
        ''')
        if self.pfb: self.lds_wait(C_PF, 1, sleep=2)
        self.dma640(99)
        a(f'''
        s_and_b32 s85, s8, 1
        s_lshl_b32 s85, s85, 2
        s_add_u32 s85, s85, s3
        s_lshl_b32 s85, s85, 5
        s_lshr_b32 s86, s8, 1
        s_add_u32 s85, s85, s86
        s_mul_i32 s85, s85, 2560
        s_add_u32 s85, s85, {WS_P}
        v_mov_b32 v152, -1
        v_mov_b32 v153, -1
        v_mov_b32 v154, -1
        v_mov_b32 v155, -1
        v_lshlrev_b32 v19, 3, v2
        buffer_store_dwordx4 v[152:155], v7, s[44:47], s85 offen sc1
        buffer_store_dwordx4 v[152:155], v7, s[44:47], s85 offen offset:1024 sc1
        buffer_store_dwordx2 v[152:153], v19, s[44:47], s85 offen offset:2048 sc1
        ''')
        self.signal(C_GO)
        a('s_waitcnt vmcnt(0)')
        self.stamp(2)
        self.tag_from(167)
        self.wfrags640()
        a(f'''
        s_mul_i32 s90, s3, 5120
        s_add_u32 s90, s90, {WS_H1}
        s_add_u32 s91, s90, 4096
        ''')
        self.stamp(3)
        loads = [f'buffer_load_dwordx4 v[{120+4*n}:{123+4*n}], v7, s[44:47], s{90 if n < 4 else 91} offen offset:{1024*(n%4)} sc1' for n in range(5)]
        self.poll('h1', loads, [121 + 2 * i for i in range(10)], 4, tagged=True)
        self.stamp(4)
        for n in range(5):
            b = 120 + 4 * n
            a(f'v_mov_b32_dpp v{b+3}, v{b+2} row_ror:8 row_mask:0xf bank_mask:0xf')
            a(f'v_mov_b32 v{b+1}, v{b+2}')
            a(f'v_mov_b32_dpp v{b+2}, v{b} row_ror:8 row_mask:0xf bank_mask:0xf')
        self.mfma640('L_ctrl_end')
        a(f'''
        v_and_b32 v22, 7, v2
        v_lshlrev_b32 v22, 14, v22              ; b*32*512
        v_lshl_add_u32 v22, v8, 1, v22          ; + col*4
        s_lshl_b32 s85, s8, 8                   ; h*512 + half*256
        s_add_u32 s85, s85, {WS_Q}
        v_mov_b32 v29, s94
        v_mov_b32 v31, s94
        v_mov_b32 v33, s94
        v_mov_b32 v35, s94
        ''')
        self.red640()
        a(f'''
        v_cvt_pk_bf16_f32 v28, v40, v41
        v_cvt_pk_bf16_f32 v30, v42, v43
        v_cvt_pk_bf16_f32 v32, v56, v57
        v_cvt_pk_bf16_f32 v34, v58, v59
        buffer_store_dwordx4 v[28:31], v22, s[44:47], s85 offen sc1
        buffer_store_dwordx4 v[32:35], v22, s[44:47], s85 offen offset:128 sc1
        s_branch L_ctrl_end
        ''')
        a(f'''
        L_role_ffn:
        s_lshl_b32 s9, s8, 6
        s_add_u32 s48, s28, s9
        s_addc_u32 s49, s29, 0
        s_add_u32 s50, s30, s9
        s_addc_u32 s51, s31, 0
        s_movk_i32 s52, 3456
        ''')
        self.dma640_setup()
        self.dma640_issue(0, self.nEf, 1)
        self.lds_wait(C_DONE, 1, sleep=4)
        self.dma640_issue(self.nEf, 20)
        self.wfrags640(younger=0)
        self.stamp(2)
        a(f'''
        s_mul_i32 s90, s3, 320
        s_add_u32 s90, s90, {WS_H2}
        v_and_b32 v32, 7, v2
        v_lshlrev_b32 v32, 4, v32
        v_bfe_u32 v33, v2, 3, 1
        v_lshl_add_u32 v32, v33, 8, v32
        v_bfe_u32 v33, v2, 5, 1
        v_lshl_add_u32 v32, v33, 7, v32
        v_bfe_u32 v33, v2, 4, 1
        v_lshl_add_u32 v32, v33, 3, v32
        s_lshl_b32 s91, s8, 9
        s_add_u32 s91, s91, {WS_HID}
        ''')
        self.lds_wait(C_WO, 8, sleep=4)
        self.stamp(3)
        loads = [f'buffer_load_dwordx4 v[{120+4*n}:{123+4*n}], v6, s[44:47], s90 offen offset:{64*n} sc1' for n in range(5)]
        self.poll('h2', loads, list(range(120, 140)), 2)
        self.stamp(4)
        self.mfma640('L_ctrl_end')
        self.red640()
        self.round4(40, 28); self.round4(56, 30)
        for i in range(4):
            a(f'v_cmp_lt_f32 vcc, 0, v{40+i}\nv_cndmask_b32 v{20+i}, 0, 1.0, vcc')
        a('v_pk_mul_f32 v[40:41], v[40:41], v[20:21]\nv_pk_mul_f32 v[42:43], v[42:43], v[22:23]')
        a('v_pk_mul_f32 v[40:41], v[40:41], v[56:57]\nv_pk_mul_f32 v[42:43], v[42:43], v[58:59]')
        self.pack4(28, 40); self.sanitize([28, 29])
        a(f'''
        buffer_store_dwordx2 v[28:29], v32, s[44:47], s91 offen sc1
        s_branch L_ctrl_end
        ''')
        a('L_role_down:')
        self.srd(72, 32, 1728 * 1280); self.srd(80, 38, 10240)
        a(f'''
        s_add_u32 s76, s42, {WS_HID}
        s_addc_u32 s77, s43, 0
        s_mov_b32 s78, {27*1024}
        s_mov_b32 s79, 0x20000
        v_lshrrev_b32 v16, 1, v2
        v_mul_u32_u24 v4, 1280, v16
        v_and_b32 v16, 1, v2
        v_lshl_add_u32 v4, v16, 4, v4
        s_mul_i32 s85, s3, {7*64*1280}
        s_lshl_b32 s9, s8, 5
        s_add_u32 s85, s85, s9
        s_mul_i32 s87, s3, 14336
        ''')
        for n in range(14):
            if n == self.nEd: self.lds_wait(C_DONE, 1, sleep=4)
            a(f's_add_u32 m0, s87, {LW + 1024*n}')
            if n < self.nEd: a(f's_waitcnt vmcnt(0)')
            a(f'buffer_load_dwordx4 v4, s[72:75], s85 offen nt lds')
            a(f's_add_u32 s85, s85, {32*1280}')
        a(f'''
        v_lshrrev_b32 v16, 4, v2         ; s
        v_bfe_u32 v17, v2, 2, 2          ; r4
        v_lshl_add_u32 v19, v16, 3, v17
        v_lshlrev_b32 v9, 5, v19
        v_bfe_u32 v17, v2, 1, 1
        v_lshl_add_u32 v9, v17, 10, v9
        v_and_b32 v17, 1, v2
        v_lshl_add_u32 v9, v17, 3, v9
        v_add_u32 v9, s87, v9
        v_add_u32 v10, s87, v7
        v_and_b32 v17, 7, v2             ; b
        v_bfe_u32 v18, v2, 3, 1          ; a / half
        v_lshlrev_b32 v3, 7, v16
        v_lshl_add_u32 v3, v17, 4, v3
        v_lshl_add_u32 v3, v18, 9, v3
        s_mul_i32 s86, s3, 7168
        v_add_u32 v3, s86, v3
        v_and_b32 v16, 1, v16            ; s'
        v_lshlrev_b32 v11, 8, v16
        v_lshl_add_u32 v11, v17, 4, v11
        v_lshl_add_u32 v11, v18, 10, v11
        v_lshlrev_b32 v8, 4, v18
        v_lshl_add_u32 v8, v16, 3, v8    ; (8a+4s')*2
        v_mul_u32_u24 v5, 5120, v17
        v_add_u32 v5, v5, v8
        v_mul_u32_u24 v6, 1280, v17
        v_add_u32 v6, v6, v8
        s_add_u32 s90, s9, {WS_MODO + 3840}
        s_add_u32 s91, s9, {WS_X1}
        s_movk_i32 s92, 4096
        s_waitcnt vmcnt(0)
        ''')
        self.stamp(2)
        self.tag_from(167)
        for n in range(7):
            for ac in range(2):
                b = 40 + 8 * n + 4 * ac
                a(f'ds_read_b64_tr_b16 v[{b}:{b+1}], v9 offset:{LW + 2048*n + 16*ac}')
                a(f'ds_read_b64_tr_b16 v[{b+2}:{b+3}], v9 offset:{LW + 2048*n + 16*ac + 128}')
            if n % 2: a('s_waitcnt lgkmcnt(0)')
        self.lds_wait(C_WO, 8, sleep=4)
        self.poll('gb', ['buffer_load_dwordx2 v[32:33], v5, s[44:47], s90 offen sc1'], [32, 33], 4)
        self.unpack4(140, 32)
        self.stamp(3)
        self.poll('x1', ['buffer_load_dwordx2 v[32:33], v6, s[44:47], s91 offen sc1'], [32, 33], 4)
        self.unpack4(144, 32)
        self.stamp(5)
        loads = [f'buffer_load_dwordx4 v[{104+4*n}:{107+4*n}], v3, s[76:79], {"0" if n < 4 else "s92"} offen offset:{1024*(n%4)} sc1' for n in range(7)]
        self.poll('hid', loads, list(range(104, 132)), 1)
        self.stamp(4)
        for n in range(7):
            for ac in range(2):
                b = 40 + 8 * n + 4 * ac; d = 16 + 4 * ac
                a(f'v_mfma_f32_16x16x32_bf16 v[{d}:{d+3}], v[{b}:{b+3}], v[{104+4*n}:{107+4*n}], {"0" if n == 0 else "v[%d:%d]" % (d, d+3)}')
        a(f'ds_write_b128 v10, v[16:19] offset:{LW}\nds_write_b128 v10, v[20:23] offset:{LW + 1024}')
        self.arrive(C_A, 3, 'L_ctrl_end')
        for w in range(4):
            a(f'ds_read_b128 v[{40+8*w}:{43+8*w}], v11 offset:{LW + 14336*w}')
            a(f'ds_read_b128 v[{44+8*w}:{47+8*w}], v11 offset:{LW + 14336*w + 640}')
        a('s_waitcnt lgkmcnt(0)')
        self.sum_partials(40, [40 + 4 * i for i in range(8)])
        self.round4(40, 28)
        a('v_pk_mul_f32 v[40:41], v[40:41], v[140:141]\nv_pk_mul_f32 v[42:43], v[42:43], v[142:143]')
        self.round4(40, 28)
        a('v_pk_add_f32 v[40:41], v[40:41], v[144:145]\nv_pk_add_f32 v[42:43], v[42:43], v[146:147]')
        self.pack4(28, 40)
        a(f'''
        s_mov_b32 exec_hi, 0
        buffer_store_dwordx2 v[28:29], v6, s[80:83], s9 offen
        s_cmp_lg_u32 s8, 0
        s_cbranch_scc1 L_noepoch
        s_mov_b64 exec, 1
        v_mov_b32 v20, 0
        v_mov_b32 v21, s94
        buffer_store_dword v21, v20, s[44:47], 0 offen sc1
        L_noepoch:
        s_mov_b64 exec, -1
        s_branch L_ctrl_end
        ''')
        a('L_role_red:')
        self.srd(60, 16, 10240)
        a(f'''
        v_lshlrev_b32 v8, 3, v2          ; lane*8
        s_mul_i32 s9, s8, 1280
        buffer_load_dwordx2 v[26:27], v8, s[60:63], s9 offen
        buffer_load_dwordx2 v[28:29], v8, s[60:63], s9 offen offset:512
        buffer_load_dword v30, v12, s[60:63], s9 offen offset:1024
        s_lshl_b32 s90, s8, 14
        s_lshl_b32 s85, s3, 12
        s_add_u32 s90, s90, s85
        s_add_u32 s90, s90, {WS_Q}
        s_waitcnt vmcnt(0)
        ''')
        self.tag_from(167)
        for i in range(5): self.unpack(120 + 2 * i, 26 + i)
        self.lds_wait(C_QOK, 1, sleep=8)
        loads = [f'buffer_load_dwordx4 v[{40+4*n}:{43+4*n}], v7, s[44:47], s90 offen offset:{1024*n} sc1' for n in range(4)]
        self.poll('qall', loads, [41 + 2 * i for i in range(8)], 8, tagged=True)
        a(f'''
        s_mul_i32 s90, s8, 5120
        s_add_u32 s90, s90, {WS_MODO}
        ''')
        loads = []
        for ch in range(3):
            b = 40 + 6 * ch
            loads += [f'buffer_load_dwordx2 v[{b}:{b+1}], v8, s[44:47], s90 offen offset:{1280*ch} sc1',
                      f'buffer_load_dwordx2 v[{b+2}:{b+3}], v8, s[44:47], s90 offen offset:{1280*ch + 512} sc1',
                      f'buffer_load_dword v{b+4}, v12, s[44:47], s90 offen offset:{1280*ch + 1024} sc1']
        self.poll('modo', loads, [40 + 6 * ch + i for ch in range(3) for i in range(5)], 8)
        for ch in range(3):
            for i in range(5): self.unpack(130 + 10 * ch + 2 * i, 40 + 6 * ch + i)
        for i in range(5):
            a(f'v_pk_add_f32 v[{150+2*i}:{151+2*i}], v[{150+2*i}:{151+2*i}], 1.0 op_sel_hi:[1,0]')
            a(f'v_cvt_pk_bf16_f32 v26, v{150+2*i}, v{151+2*i}')
            self.unpack(150 + 2 * i, 26)
        for i in range(10): a(f'v_mov_b32 v{16+i}, 0')
        a(f'''
        s_lshl_b32 s91, s8, 5
        s_lshl_b32 s85, s3, 3
        s_add_u32 s91, s91, s85
        s_mul_i32 s91, s91, 2560
        s_add_u32 s91, s91, {WS_P}
        s_mul_i32 s87, s3, 2560
        v_add_u32 v10, s87, v7
        v_add_u32 v11, s87, v8
        s_add_u32 s92, s9, {WS_H2}
        s_add_u32 s93, s9, {WS_X1}
        ''')
        self.stamp(2)
        self.lds_wait(C_PROG, 1, sleep=8)
        self.stamp(3)
        a(f'''
        s_mov_b32 s90, 0xff
        s_mov_b32 s89, {SPIN_LIMIT}
        v_and_b32 v34, 7, v2
        v_mul_u32_u24 v34, 2560, v34
        L_p_poll:
        s_mov_b32 s95, s90
        ds_read_b32 v14, v13 offset:{C_WO}
        s_waitcnt lgkmcnt(0)
        v_readfirstlane_b32 s88, v14
        s_cmp_ge_u32 s88, 8
        s_cbranch_scc1 L_p_fetch
        s_sleep 6
        buffer_load_dword v35, v34, s[44:47], s91 offen offset:2556 sc1
        s_waitcnt vmcnt(0)
        v_cmp_ne_u32 vcc, -1, v35
        s_nop 1
        s_and_b32 s95, s90, vcc_lo
        s_cbranch_scc0 L_p_next
        L_p_fetch:
        ''')
        for g in range(8):
            b = 40 + 10 * g
            a(f'''
            s_bitcmp1_b32 s95, {g}
            s_cbranch_scc0 L_p_sk{g}
            s_add_u32 s85, s91, {2560*g}
            buffer_load_dwordx4 v[{b}:{b+3}], v7, s[44:47], s85 offen sc1
            buffer_load_dwordx4 v[{b+4}:{b+7}], v7, s[44:47], s85 offen offset:1024 sc1
            buffer_load_dwordx2 v[{b+8}:{b+9}], v8, s[44:47], s85 offen offset:2048 sc1
            L_p_sk{g}:
            ''')
        a('s_waitcnt vmcnt(0)')
        for g in range(8):
            b = 40 + 10 * g
            a(f'''
            s_bitcmp1_b32 s95, {g}
            s_cbranch_scc0 L_p_ck{g}
            v_max3_u32 v36, v{b}, v{b+1}, v{b+2}
            v_max3_u32 v37, v{b+3}, v{b+4}, v{b+5}
            v_max3_u32 v36, v36, v{b+6}, v{b+7}
            v_max3_u32 v37, v37, v{b+8}, v{b+9}
            v_max_u32 v36, v36, v37
            v_cmp_eq_u32 vcc, -1, v36
            s_cbranch_vccnz L_p_ck{g}
            s_bitset0_b32 s90, {g}
            ''')
            for i in range(5): a(f'v_pk_add_f32 v[{16+2*i}:{17+2*i}], v[{16+2*i}:{17+2*i}], v[{b+2*i}:{b+2*i+1}]')
            a(f'L_p_ck{g}:')
        a(f'''
        s_cmp_eq_u32 s90, 0
        s_cbranch_scc1 L_p_ok
        L_p_next:
        s_sub_u32 s89, s89, 1
        s_cbranch_scc0 L_p_poll
        L_p_ok:
        ''')
        self.stamp(4)
        a(f'''
        ds_write_b128 v10, v[16:19] offset:{LW}
        ds_write_b128 v10, v[20:23] offset:{LW + 1024}
        ds_write_b64 v11, v[24:25] offset:{LW + 2048}
        ''')
        self.arrive(C_A, 3, 'L_ctrl_end')
        for w in range(4):
            b = 40 + 10 * w
            a(f'ds_read_b128 v[{b}:{b+3}], v7 offset:{LW + 2560*w}')
            a(f'ds_read_b128 v[{b+4}:{b+7}], v7 offset:{LW + 2560*w + 1024}')
            a(f'ds_read_b64 v[{b+8}:{b+9}], v8 offset:{LW + 2560*w + 2048}')
        a('s_waitcnt lgkmcnt(0)')
        U = 40
        def P(r, i): return f'v[{r+2*i}:{r+2*i+1}]'
        for i in range(5): a(f'v_pk_add_f32 {P(40,i)}, {P(40,i)}, {P(50,i)}')
        for i in range(5): a(f'v_pk_add_f32 {P(60,i)}, {P(60,i)}, {P(70,i)}')
        for i in range(5): a(f'v_pk_add_f32 {P(40,i)}, {P(40,i)}, {P(60,i)}')
        def pk():
            for i in range(5): a(f'v_cvt_pk_bf16_f32 v{26+i}, v{U+2*i}, v{U+2*i+1}')
        def rnd():
            pk()
            for i in range(5): self.unpack(U + 2 * i, 26 + i)
        rnd()
        for i in range(5): a(f'v_pk_mul_f32 {P(U,i)}, {P(U,i)}, {P(130,i)}')
        rnd()
        for i in range(5): a(f'v_pk_add_f32 {P(U,i)}, {P(U,i)}, {P(120,i)}')
        for i in range(5): a(f'v_cvt_pk_bf16_f32 v{160+i}, v{U+2*i}, v{U+2*i+1}')
        self.sanitize(range(160, 165))
        self.ln_stats(160, U, 32, 96, 98)
        for i in range(5): a(f'v_pk_add_f32 {P(U,i)}, {P(U,i)}, s[96:97] op_sel_hi:[1,0] neg_lo:[0,1] neg_hi:[0,1]')
        rnd()
        for i in range(5): a(f'v_pk_mul_f32 {P(U,i)}, {P(U,i)}, s[98:99] op_sel_hi:[1,0]')
        rnd()
        for i in range(5): a(f'v_pk_mul_f32 {P(U,i)}, {P(U,i)}, {P(150,i)}')
        rnd()
        for i in range(5): a(f'v_pk_add_f32 {P(U,i)}, {P(U,i)}, {P(140,i)}')
        pk()
        self.sanitize(range(26, 31))
        a(f'''
        buffer_store_dwordx2 v[26:27], v8, s[44:47], s92 offen sc1
        buffer_store_dwordx2 v[28:29], v8, s[44:47], s92 offen offset:512 sc1
        buffer_store_dword v30, v12, s[44:47], s92 offen offset:1024 sc1
        buffer_store_dwordx2 v[160:161], v8, s[44:47], s93 offen sc1
        buffer_store_dwordx2 v[162:163], v8, s[44:47], s93 offen offset:512 sc1
        buffer_store_dword v164, v12, s[44:47], s93 offen offset:1024 sc1
        L_ctrl_end:
        ''')
        self.stamp(11)
        if self.late:
            a(f's_cmp_eq_u32 s7, {R_DOWN}\ns_cbranch_scc1 L_ctrl_fin\ns_cmp_eq_u32 s7, {R_FFN}\ns_cbranch_scc1 L_ctrl_fin\ns_cmp_eq_u32 s7, {R_RED}\ns_cbranch_scc1 L_ctrl_fin')
            self.prefetch_late('e')
            a('L_ctrl_fin:')
        self.stamp_flush()
        self.diag_end()
        a('s_endpgm')

    def stream(self):
        a = self.a
        self.cur_cls = 0
        WK, WV = self.WK, self.WV
        NV = 12
        KV = lambda t: 40 + 4 * t
        a(f'''
        L_stream:
        s_sub_u32 s15, s3, 4             ; sw
        s_lshl_b32 s85, s15, 15
        v_add_u32 v1, s85, v7
        s_mul_i32 s91, s2, {self.rot}
        s_mul_i32 s85, s15, {self.rotw}
        s_add_u32 s91, s91, s85
        s_and_b32 s91, s91, 31
        s_lshl_b32 s91, s91, 10          ; rotation
        s_lshl_b32 s85, s2, 20
        s_add_u32 s85, s85, 0xC0000
        s_add_u32 s48, s18, s85
        s_addc_u32 s49, s19, 0
        s_mov_b32 s50, 0x40000
        s_mov_b32 s51, 0x20000
        s_add_u32 s52, s20, s85
        s_addc_u32 s53, s21, 0
        s_mov_b32 s54, 0x40000
        s_mov_b32 s55, 0x20000
        ''')
        for _ in range(self.sdelay): a('s_sleep 32')
        if self.hold > 1: a(f's_cmp_eq_u32 s7, {R_Q}\ns_cbranch_scc1 L_hold')
        a(f's_cmp_lg_u32 s7, {R_G1}\ns_cbranch_scc1 L_nohold')
        self.srd(56, 34, 10240); self.srd(60, 16, 10240)
        a('s_mul_i32 s90, s15, 1280\nv_lshlrev_b32 v12, 2, v2')
        for n in range(5): a(f'buffer_load_dword v{40+n}, v12, s[56:59], s90 offen offset:{256*n}')
        for n in range(5): a(f'buffer_load_dword v{46+n}, v12, s[60:63], s90 offen offset:{256*n}')
        a(f'''
        s_mul_i32 s90, s15, {ACTS}
        s_add_u32 s90, s90, {L_ACT}
        v_add_u32 v12, s90, v12
        s_mov_b32 s85, {LOG2E | 0x80000000}
        s_waitcnt vmcnt(5)
        ''')
        for i in range(5): self.unpack(52 + 2 * i, 40 + i)
        for i in range(10): a(f'v_mul_f32 v{64+i}, s85, v{52+i}')
        for i in range(10): a(f'v_exp_f32 v{64+i}, v{64+i}')
        for i in range(10): a(f'v_add_f32 v{64+i}, 1.0, v{64+i}')
        for i in range(10): a(f'v_rcp_f32 v{64+i}, v{64+i}')
        for i in range(10): a(f'v_mul_f32 v{52+i}, v{52+i}, v{64+i}')
        for i in range(5): a(f'v_cvt_pk_bf16_f32 v{40+i}, v{52+2*i}, v{53+2*i}')
        for i in range(5): a(f'ds_write_b32 v12, v{40+i} offset:{256*i}')
        a('s_waitcnt vmcnt(0)')
        self.ln_stats(46, 52, 64, 90, 92)
        a(f'''
        v_mov_b32 v28, s90
        v_mov_b32 v29, s92
        s_lshl_b32 s85, s15, 3
        v_add_u32 v30, s85, v13
        ds_write_b64 v30, v[28:29] offset:{L_STAT}
        ''')
        self.signal(C_ACT)
        a('L_hold:')
        if self.hold: self.lds_wait(C_GO, 4, sleep=2)
        a('L_nohold:')
        q = []
        def wait_for(name):
            i = len(q) - 1 - q[::-1].index(name)
            n = len(q) - 1 - i
            a(f's_waitcnt vmcnt({min(n, 63)})')
        def ld(t, slot, srd, nm):
            a(f's_add_u32 s92, s91, {t*1024}\ns_and_b32 s92, s92, 0x7fff')
            a(f'buffer_load_dwordx4 v[{KV(slot)}:{KV(slot)+3}], v1, {srd}, s92 offen nt')
            q.append(nm)
        qloads = ['buffer_load_dwordx4 v[4:7], v12, s[44:47], s93 offen sc1', 'buffer_load_dwordx4 v[16:19], v12, s[44:47], s93 offen offset:16 sc1']
        for t in range(32):
            wk = WK if t >= self.wk_sw else self.WK0
            if t >= wk:
                if self.WKL > wk and t >= self.wkl_sw:
                    L = a.label('L_kw')
                    a(f's_waitcnt vmcnt({self.WKL-1})\ns_cbranch_vccnz {L}\ns_waitcnt vmcnt({wk-1})\n{L}:')
                else: a(f's_waitcnt vmcnt({wk-1})')
            if t == self.WK0: self.stamp(8)
            ld(t, t, 's[48:51]', f'K{t}')
            if t == self.WK0 - 1:
                a(f'''
                v_mov_b32 v3, 0
                buffer_load_dword v35, v3, s[44:47], 0 offen sc1
                v_and_b32 v3, 15, v2
                v_lshlrev_b32 v12, 5, v3             ; Q voffset
                s_lshl_b32 s93, s2, 9
                s_add_u32 s93, s93, {WS_Q}
                v_mov_b32 v16, 0xffff
                v_mov_b32 v17, s84
                ''')
                q.append('E')
                for r in range(4):
                    a(f'''
                    v_cmp_eq_u32 vcc, {2*r}, v3
                    v_cndmask_b32 v{8+r}, 0, v16, vcc
                    v_cmp_eq_u32 vcc, {2*r+1}, v3
                    v_cndmask_b32 v{8+r}, v{8+r}, v17, vcc
                    ''')
                a(f'''
                s_mov_b32 s96, 0xcccccccc
                s_mov_b32 s97, 0xcccccccc
                s_mov_b32 s98, 0xaaaaaaaa
                s_mov_b32 s99, 0xaaaaaaaa
                s_mul_i32 s85, s14, 163840
                s_add_u32 s56, s24, s85
                s_addc_u32 s57, s25, 0
                s_mov_b32 s58, 163840
                s_mov_b32 s59, 0x20000
                v_lshrrev_b32 v34, 4, v2
                v_mul_u32_u24 v34, 5120, v34
                v_lshl_add_u32 v34, v3, 4, v34
                s_mul_i32 s85, s15, 20480
                v_add_u32 v34, s85, v34
                s_lshr_b32 s85, {self.lagmask}, s7
                s_bitcmp1_b32 s85, 0
                s_cselect_b64 vcc, -1, 0
                ''')
            if t == 12:
                self.tag_from(35)
            if t == self.qpos:
                for l in qloads: a(l)
                q.append('Q0'); q.append('Q1')
        self.stamp(1)
        wait_for('Q1')
        a(f'''
        s_mov_b32 s89, {SPIN_LIMIT}
        L_q_chk:
        v_xor_b32 v20, s94, v5
        v_xor_b32 v21, s94, v7
        v_xor_b32 v22, s94, v17
        v_xor_b32 v23, s94, v19
        v_or_b32 v20, v20, v21
        v_or3_b32 v20, v20, v22, v23
        v_cmp_ne_u32 vcc, 0, v20
        s_cbranch_vccz L_q_ok
        s_sleep 4
        {qloads[0]}
        {qloads[1]}
        s_waitcnt vmcnt(0)
        s_sub_u32 s89, s89, 1
        s_cbranch_scc0 L_q_chk
        L_q_ok:
        v_mov_b32 v5, v6
        v_mov_b32 v6, v16
        v_mov_b32 v7, v18
        ''')
        self.signal(C_QOK)
        self.stamp(2)
        D = 20
        st = dict(V=0, W=0)
        def ldwo(n):
            tp, c = n // 5, n % 5
            so = ['0', 's60', 's61', 's62'][tp]
            a(f'buffer_load_dwordx4 v[{KV(NV+n)}:{KV(NV+n)+3}], v34, s[56:59], {so} offen offset:{256*c} nt')
            q.append(f'W{n}')
        def pre(g, free):
            for ch in self.pre[g]:
                if ch == 'V':
                    assert st['V'] < NV and st['V'] <= free
                    ld(st['V'], st['V'], 's[52:55]', f"V{st['V']}"); st['V'] += 1
                else:
                    assert NV + st['W'] <= free
                    ldwo(st['W']); st['W'] += 1
        a('s_movk_i32 s60, 1280\ns_movk_i32 s61, 2560\ns_movk_i32 s62, 3840')
        for g in range(8):
            wait_for(f'K{4*g+3}')
            for i in range(4):
                for k in range(4):
                    t = 4 * g + k
                    a(f'v_dot2_f32_bf16 v{D+k}, v{KV(t)+i}, v{4+i}, {"0" if i == 0 else "v%d" % (D+k)}')
            pre(g, 4 * g + 3)
            a(f'v_add_f32_dpp v24, v{D}, v{D} row_ror:8 row_mask:0xf bank_mask:0x3')
            a(f'v_add_f32_dpp v25, v{D+2}, v{D+2} row_ror:8 row_mask:0xf bank_mask:0x3')
            a(f'v_add_f32_dpp v24, v{D+1}, v{D+1} row_ror:8 row_mask:0xf bank_mask:0xc')
            a(f'v_add_f32_dpp v25, v{D+3}, v{D+3} row_ror:8 row_mask:0xf bank_mask:0xc')
            r2 = 26 + (g & 1)
            a(f'v_add_f32_dpp v{r2}, v24, v24 row_shl:4 row_mask:0xf bank_mask:0x5')
            a(f'v_add_f32_dpp v{r2}, v25, v25 row_shr:4 row_mask:0xf bank_mask:0xa')
            if g & 1:
                r3 = 28 + ((g >> 1) & 1)
                a(f'v_add_f32_dpp v30, v26, v26 quad_perm:[2,3,0,1] row_mask:0xf bank_mask:0xf')
                a(f'v_add_f32_dpp v31, v27, v27 quad_perm:[2,3,0,1] row_mask:0xf bank_mask:0xf')
                a(f'v_cndmask_b32 v{r3}, v30, v31, s[96:97]')
            if (g & 3) == 3:
                a(f'v_add_f32_dpp v30, v28, v28 quad_perm:[1,0,3,2] row_mask:0xf bank_mask:0xf')
                a(f'v_add_f32_dpp v31, v29, v29 quad_perm:[1,0,3,2] row_mask:0xf bank_mask:0xf')
                a(f'v_cndmask_b32 v{32 + (g >> 2)}, v30, v31, s[98:99]')
        a(f'''
        v_cvt_pk_bf16_f32 v20, v32, v33
        s_mov_b32 s86, 0x3db504f3
        ''')
        self.unpack(32, 20)
        a('v_pk_mul_f32 v[32:33], v[32:33], s[86:87] op_sel_hi:[1,0]\nv_cvt_pk_bf16_f32 v20, v32, v33')
        self.unpack(32, 20)
        a('v_max_f32 v20, v32, v33')
        self.wave_red(20, 'max')
        a(f'''
        v_readlane_b32 s86, v20, 63              ; m_w
        s_mov_b32 s90, {LOG2E}
        v_subrev_f32 v20, s86, v32
        v_subrev_f32 v21, s86, v33
        v_mul_f32 v20, s90, v20
        v_mul_f32 v21, s90, v21
        v_exp_f32 v20, v20
        v_exp_f32 v21, v21
        v_add_f32 v21, v20, v21
        ''')
        self.wave_red(21)
        a(f'''
        v_mov_b32 v20, s86
        s_lshl_b32 s85, s15, 3
        v_add_u32 v22, s85, v13
        s_mov_b32 exec_lo, 0
        s_mov_b32 exec_hi, 0x80000000
        ds_write_b64 v22, v[20:21] offset:{L_SM}
        s_mov_b64 exec, -1
        ''')
        self.stamp(3)
        self.signal(C_SM)
        pre(8, 31)
        self.lds_wait(C_SM, 8)
        self.stamp(4)
        a(f'''
        v_and_b32 v22, 7, v2
        v_lshl_add_u32 v22, v22, 3, v13
        ds_read_b64 v[20:21], v22 offset:{L_SM}
        s_waitcnt lgkmcnt(0)
        v_max_f32_dpp v22, v20, v20 row_ror:4 row_mask:0xf bank_mask:0xf
        v_max_f32_dpp v22, v22, v22 row_ror:2 row_mask:0xf bank_mask:0xf
        v_max_f32_dpp v22, v22, v22 row_ror:1 row_mask:0xf bank_mask:0xf
        v_sub_f32 v20, v20, v22
        v_mul_f32 v20, s90, v20
        v_exp_f32 v20, v20
        v_sub_f32 v32, v32, v22
        v_sub_f32 v33, v33, v22
        v_mul_f32 v21, v21, v20
        v_mul_f32 v32, s90, v32
        v_mul_f32 v33, s90, v33
        v_add_f32_dpp v21, v21, v21 row_ror:4 row_mask:0xf bank_mask:0xf
        v_exp_f32 v32, v32
        v_exp_f32 v33, v33
        v_add_f32_dpp v21, v21, v21 row_ror:2 row_mask:0xf bank_mask:0xf
        v_add_f32_dpp v21, v21, v21 row_ror:1 row_mask:0xf bank_mask:0xf
        v_rcp_f32 v21, v21
        v_mul_f32 v32, v32, v21
        v_mul_f32 v33, v33, v21
        v_cvt_pk_bf16_f32 v32, v32, v32
        v_cvt_pk_bf16_f32 v33, v33, v33
        ''')
        issued = st['V']; nwo = st['W']
        for t in range(32):
            A = 20 + 4 * (t & 1)
            for r in range(4):
                a(f'v_and_b32_dpp v{A+r}, v{32 + (t >> 4)}, v{8+r} row_newbcast:{bitrev4(t & 15)} row_mask:0xf bank_mask:0xf')
            wait_for(f'V{t}')
            a(f'v_mfma_f32_16x16x32_bf16 v[16:19], v[{A}:{A+3}], v[{KV(t % NV)}:{KV(t % NV)+3}], {"0" if t == 0 else "v[16:19]"}')
            while t + (WV if t < self.wv_sw else self.WV2) >= issued and issued < 32:
                ld(issued, issued % NV, 's[52:55]', f'V{issued}'); issued += 1
            if t >= self.wo_start:
                for _ in range(self.wo_per):
                    if nwo < 20: ldwo(nwo); nwo += 1
            if t == self.prog_t: self.signal(C_PROG)
            if t == self.progw_t: self.signal(C_PROGW)
            if t == self.k2_t: self.signal(C_K2)
            if t == 28:
                a(f'''
                v_lshlrev_b32 v7, 4, v2
                v_and_b32 v3, 15, v2
                v_lshrrev_b32 v4, 4, v2
                v_lshlrev_b32 v5, 5, v3
                v_lshl_add_u32 v5, v4, 4, v5          ; (8j+4s')*4
                s_lshl_b32 s85, s15, 9
                s_add_u32 s85, s85, {L_OP}
                v_add_u32 v6, s85, v5
                s_mul_i32 s85, s15, 2560
                s_add_u32 s85, s85, {L_WP}
                v_add_u32 v5, s85, v5
                s_lshl_b32 s85, s15, 6
                s_add_u32 s85, s85, {L_OP}
                v_lshl_add_u32 v4, v4, 4, s85
                v_add_u32 v35, {L_WP}, v7
                v_lshlrev_b32 v12, 3, v2
                v_add_u32 v36, {L_WP}, v12
                s_mul_i32 s87, s2, 2560
                s_add_u32 s87, s87, {WS_P}
                ''')
        assert nwo == 20
        a(f'''
        s_mov_b32 exec_hi, 0
        ds_write_b128 v6, v[16:19]
        s_mov_b64 exec, -1
        ''')
        self.stamp(5)
        self.signal(C_PV)
        self.lds_wait(C_PV, 8)
        for w in range(8):
            a(f'ds_read_b128 v[{40+4*w}:{43+4*w}], v4 offset:{512*w}')
        a('s_waitcnt lgkmcnt(0)')
        self.sum_partials(40, [40 + 4 * i for i in range(8)])
        for r in range(4): a(f'v_cvt_pk_bf16_f32 v{40+r}, v{40+r}, v{40+r}')
        for tp in range(4):
            for r in range(4): a(f'v_and_b32 v{44+4*tp+r}, v{40+tp}, v{8+r}')
        a('s_waitcnt vmcnt(0)')
        self.stamp(6)
        for tp in range(4):
            for c in range(5):
                d = 60 + 4 * c; b = KV(NV + 5 * tp + c)
                a(f'v_mfma_f32_16x16x32_bf16 v[{d}:{d+3}], v[{44+4*tp}:{47+4*tp}], v[{b}:{b+3}], {"0" if tp == 0 else "v[%d:%d]" % (d, d+3)}')
        a('s_mov_b32 exec_hi, 0')
        for c in range(5): a(f'ds_write_b128 v5, v[{60+4*c}:{63+4*c}] offset:{512*c}')
        a('s_mov_b64 exec, -1')
        self.arrive(C_WO, 7, 'L_stream_end')
        self.stamp(7)
        for w in range(8):
            b = 40 + 10 * w
            a(f'ds_read_b128 v[{b}:{b+3}], v35 offset:{2560*w}')
            a(f'ds_read_b128 v[{b+4}:{b+7}], v35 offset:{2560*w + 1024}')
            a(f'ds_read_b64 v[{b+8}:{b+9}], v36 offset:{2560*w + 2048}')
            if w == 3: a('s_waitcnt lgkmcnt(0)')
        def P(r, i): return f'v[{r+2*i}:{r+2*i+1}]'
        for x, y in ((40, 50), (60, 70), (40, 60)):
            for i in range(5): a(f'v_pk_add_f32 {P(x,i)}, {P(x,i)}, {P(y,i)}')
        a('s_waitcnt lgkmcnt(0)')
        for x, y in ((80, 90), (100, 110), (80, 100), (40, 80)):
            for i in range(5): a(f'v_pk_add_f32 {P(x,i)}, {P(x,i)}, {P(y,i)}')
        self.sanitize(range(40, 50))
        a(f'''
        buffer_store_dwordx4 v[40:43], v7, s[44:47], s87 offen sc1
        buffer_store_dwordx4 v[44:47], v7, s[44:47], s87 offen offset:1024 sc1
        buffer_store_dwordx2 v[48:49], v12, s[44:47], s87 offen offset:2048 sc1
        ''')
        self.signal(C_DONE)
        a('L_stream_end:')
        self.stamp(10)
        self.stamp_flush()
        self.diag_end()
        a('L_end:\ns_endpgm')

    def build(self):
        self.prologue(); self.control(); self.stream()
        kn = NAME + '_kernel'
        body = '\n'.join(fix_hazards(self.a.l)) + '\n'
        hdr = open('cdna_kernels/' + NAME + '.s.ref').read().split('; Override launch')[0]
        return hdr + header([f'; @launch grid=(256,1,1) block=(768,1,1) lds={LDS_SIZE}']) + kernel_start(kn) + body + '.section .rodata,"a"\n' + descriptor(kn, vgpr=168, sgpr=102, accum=168)

if __name__ == '__main__':
    import argparse
    from collections import Counter
    rs = [role_of(w) for w in range(256)]
    for r, n in ((R_G1, 20), (R_DOWN, 40), (R_FFN, 54), (R_Q, 64), (R_MOD, 40), (R_RED, 8)):
        assert sorted(i for rr, i in rs if rr == r) == list(range(n)), r
    ap = argparse.ArgumentParser()
    ap.add_argument('-o', default='k.s'); ap.add_argument('--stamp', action='store_true')
    for p, d in (('WK', 3), ('WV', 3), ('rot', 3), ('rotw', 1), ('qpos', 25), ('prog_t', 22), ('progw_t', -1), ('WD', 20), ('wo_start', 0), ('wo_per', 1), ('sdelay', 0), ('WK0', 2), ('wk_sw', 16), ('k2_t', -1), ('WV2', 6), ('wv_sw', 16), ('hold', 1), ('pf', 1), ('WKL', 4), ('wkl_sw', 6), ('lagmask', 0x32), ('pfb', 1), ('diag_until', 0), ('diag_cls', -1), ('diag_idx', -1), ('nEf', 8), ('nEd', 6), ('late', 0), ('WDM', 20), ('k2_n', 8)):
        ap.add_argument('--' + p, type=int, default=d)
    ap.add_argument('--pre', default='V,V,V,V,V,V,V,V,W')
    args = ap.parse_args()
    kw = dict(vars(args)); o = kw.pop('o')
    open(o, 'w').write(G(**kw).build())
```

```python
import sys
from asmlib import *
import gen as G1mod
from gen import bitrev4, LOG2E, SPIN_LIMIT

WS_E = 0
WS_H1 = 0x1000
WS_Q = 0x8000
SB2 = 0x28000
WS_H2 = SB2; WS_X1 = SB2 + 0x3000; WS_HID = SB2 + 0x6000; WS_MODO = SB2 + 0xD000
WS_P = 0x50000
WS_STAMP = 0x100000
WS_SIZE = 0x200000
LW = 0; L_OP = 0x14000; L_WP = 0x15000; LM = 0x1A000; LDS_SIZE = 0x1B000
C_A, C_SM, C_PV, C_WO, C_QOK, C_PROG, C_PROGW, C_GO, C_DONE, C_K2, C_ACT, C_PF, C_PF2 = [4 * i for i in range(13)]
L_STAT = 0x40; L_SM = 0x100
L_ACT = L_WP; ACTS = 1344
R_G1, R_DOWN, R_FFN, R_Q, R_MOD, R_RED = 1, 2, 3, 4, 5, 6

def role_of(wg):
    x = wg & 7; u = wg >> 3
    if u < 2: return R_G1, 2 * x + u
    if u < 6:
        k = u - 2
        e = EXTRA.get((x, k >> 1))
        if e is None: return 0, 0
        return e[0], e[0] * 16 + 2 * e[1] + (k & 1)
    if u < 14: return R_Q, (x + 8 * ((u - 6) >> 1)) * 2 + ((u - 6) & 1)
    if u < 19: return R_MOD, 5 * x + u - 14
    if u < 25: return R_FFN, 6 * x + u - 19
    if u < 29: return R_DOWN, 4 * x + u - 25
    if u == 29: return R_RED, x
    return 0, 0
EXTRA = {(0, 0): (R_DOWN, 0), (0, 1): (R_DOWN, 1), (2, 0): (R_DOWN, 2), (2, 1): (R_DOWN, 3),
         (4, 0): (R_FFN, 0), (4, 1): (R_FFN, 1), (6, 0): (R_G1, 0), (6, 1): (R_FFN, 2), (1, 0): (R_G1, 1)}

class G(G1mod.G):
    def __init__(self, stamp=False, WK=3, WV=3, rot=3, rotw=1, qpos=25, prog_t=22, progw_t=-1, WD=4, wo_start=0, wo_per=1, sdelay=0, WK0=2, wk_sw=16, k2_t=6, WV2=6, wv_sw=16, hold=1, pf=1, WKL=6, wkl_sw=6, lagmask=0x72, diag_until=0, diag_cls=-1, diag_idx=-1, cpf=1, pfb=1, nEf=8, nEd=6, late=0, WDM=2, k2_n=8, pre='V,V,VV,VW,VWW,VWW,VVW,VWW,VVWW'):
        self.sdelay = sdelay; self.WK0 = WK0; self.wk_sw = wk_sw; self.k2_t = k2_t; self.WV2 = WV2; self.wv_sw = wv_sw; self.hold = hold; self.pf = pf; self.late = late; self.pfb = pfb; self.cpf = cpf; self.diag_until = diag_until; self.diag_cls = diag_cls; self.diag_idx = diag_idx; self.cur_cls = -1; self.nEf = nEf; self.nEd = nEd; self.WKL = WKL; self.wkl_sw = wkl_sw; self.lagmask = lagmask; self.WDM = WDM; self.k2_n = k2_n; self.pre = pre.split(',')
        self.a = Asm(); self.stamp_on = stamp
        self.WK = WK; self.WV = WV; self.rot = rot; self.rotw = rotw; self.qpos = qpos; self.prog_t = prog_t
        self.progw_t = progw_t; self.WD = WD; self.wo_start = wo_start; self.wo_per = wo_per

    def stamp(self, i):
        if self.diag_until and i == self.diag_idx and (self.cur_cls == self.diag_cls or (self.cur_cls == 99 and self.diag_cls > 0)):
            if self.cur_cls == 99:
                L = self.a.label('L_ds')
                self.a(f's_cmp_lg_u32 s7, {self.diag_cls}\ns_cbranch_scc1 {L}\ns_memrealtime s[100:101]\ns_waitcnt lgkmcnt(0)\n{L}:')
            else:
                self.a('s_memrealtime s[100:101]\ns_waitcnt lgkmcnt(0)')
        super().stamp(i)

    def diag_end(self):
        if self.diag_until:
            L = self.a.label('L_diag')
            self.a(f'{L}:\ns_sleep 1\ns_memrealtime s[98:99]\ns_waitcnt lgkmcnt(0)\ns_sub_u32 s98, s98, s100\ns_cmp_lt_u32 s98, {self.diag_until*100}\ns_cbranch_scc1 {L}')

    def tag_from(self, v):
        self.a(f'''
        s_mov_b32 s85, 1664525
        v_mul_lo_u32 v{v}, s85, v{v}
        v_add_u32 v{v}, 1013904223, v{v}
        v_readfirstlane_b32 s94, v{v}
        ''')

    def poll(self, name, loads, check, sleep, tagged=False):
        a = self.a
        a(f's_mov_b32 s89, {SPIN_LIMIT}\nL_{name}_poll:')
        for l in loads: a(l)
        a('s_waitcnt vmcnt(0)')
        if tagged:
            for i in range(0, len(check), 2):
                a(f'v_xor_b32 v36, s94, v{check[i]}\nv_xor_b32 v37, s94, v{check[i+1]}')
                a('v_or_b32 v38, v36, v37' if i == 0 else 'v_or3_b32 v38, v38, v36, v37')
            a('v_cmp_ne_u32 vcc, 0, v38')
        else:
            c = list(check)
            if len(c) % 2 == 0:
                a(f'v_max_u32 v38, v{c[0]}, v{c[1]}'); c = c[2:]
            else:
                a(f'v_max3_u32 v38, v{c[0]}, v{c[1]}, v{c[2]}'); c = c[3:]
            for i in range(0, len(c), 2): a(f'v_max3_u32 v38, v38, v{c[i]}, v{c[i+1]}')
            a('v_cmp_eq_u32 vcc, -1, v38')
        a(f'''
        s_cbranch_vccz L_{name}_ok
        {"s_sleep %d" % sleep if sleep else ""}
        s_sub_u32 s89, s89, 1
        s_cbranch_scc0 L_{name}_poll
        L_{name}_ok:
        ''')

    def prologue(self):
        a = self.a
        a(f'''
        s_cmp_ge_u32 s2, 256
        s_cbranch_scc1 L_end
        {'s_memrealtime s[100:101]' if self.diag_until else ''}
        s_getpc_b64 s[86:87]
        L_pc0:
        v_lshlrev_b32 v3, 7, v0
        v_min_u32 v3, L_code_end-L_pc0-4, v3
        {'global_load_dword v161, v3, s[86:87]' if self.cpf else ''}
        s_load_dwordx16 s[16:31], s[0:1], 0
        s_load_dwordx8 s[32:39], s[0:1], 64
        s_load_dwordx4 s[40:43], s[0:1], 96
        v_lshrrev_b32 v1, 6, v0
        v_and_b32 v2, 63, v0
        v_readfirstlane_b32 s3, v1
        v_mov_b32 v13, {LM}
        s_mov_b32 s84, 0xffff0000
        v_mov_b32 v15, 0
        v_lshl_add_u32 v14, v2, 2, v13
        ds_write_b32 v14, v15
        s_lshr_b32 s13, s2, 5            ; b
        s_and_b32 s14, s2, 31            ; h
        v_lshlrev_b32 v7, 4, v2          ; lane*16
        ''')
        self.decode()
        a('''
        s_waitcnt lgkmcnt(0)
        s_barrier
        ''')
        self.srd(44, 42, WS_SIZE)
        self.stamp(0)
        a(f'''
        s_cmp_lt_u32 s3, 4
        s_cbranch_scc0 L_stream
        ''')

    def decode(self):
        a = self.a
        ext = 0
        for (x, kh), (r, idx) in EXTRA.items(): ext |= (r | idx << 2) << (4 * (2 * x + kh))
        a(f'''
        s_and_b32 s4, s2, 7              ; x
        s_lshr_b32 s5, s2, 3             ; u
        s_mov_b32 s7, 0
        s_mov_b32 s8, 0
        ''')
        for lo, hi, role, mul in ((0, 2, R_G1, 2), (14, 19, R_MOD, 5), (19, 25, R_FFN, 6), (25, 29, R_DOWN, 4), (29, 30, R_RED, 1)):
            a(f'''
            s_sub_u32 s9, s5, {lo}
            s_mul_i32 s10, s4, {mul}
            s_add_u32 s10, s10, s9
            s_cmp_lt_u32 s9, {hi-lo}
            s_cselect_b32 s7, {role}, s7
            s_cselect_b32 s8, s10, s8
            ''')
        a(f'''
        s_sub_u32 s9, s5, 6              ; Q: (x + 8*(k>>1))*2 + (k&1)
        s_lshr_b32 s10, s9, 1
        s_lshl_b32 s10, s10, 3
        s_add_u32 s10, s10, s4
        s_lshl_b32 s10, s10, 1
        s_and_b32 s11, s9, 1
        s_add_u32 s10, s10, s11
        s_cmp_lt_u32 s9, 8
        s_cselect_b32 s7, {R_Q}, s7
        s_cselect_b32 s8, s10, s8
        s_sub_u32 s9, s5, 2              ; extras
        s_lshr_b32 s10, s9, 1
        s_and_b32 s10, s10, 1
        s_lshl_b32 s11, s4, 1
        s_add_u32 s10, s10, s11
        s_lshl_b32 s10, s10, 2
        s_mov_b32 s86, {ext & 0xffffffff}
        s_mov_b32 s87, {ext >> 32}
        s_lshr_b64 s[86:87], s[86:87], s10
        s_and_b32 s10, s86, 3            ; role
        s_bfe_u32 s11, s86, 0x20002      ; idx
        s_lshl_b32 s11, s11, 1
        s_lshl_b32 s12, s10, 4
        s_add_u32 s11, s11, s12
        s_and_b32 s12, s9, 1
        s_add_u32 s11, s11, s12
        s_cmp_lt_u32 s9, 4
        s_cselect_b32 s7, s10, s7
        s_cselect_b32 s8, s11, s8
        ''')

    def pfld(self, v, srd, so): self.a(f'buffer_load_dword v160, v{v}, {srd}, {so} offen nt')

    def prefetch(self):
        a = self.a
        self.srd(64, 36, 640 * 7680)
        a(f'''
        s_sub_u32 s90, s5, 14
        s_cmp_ge_u32 s90, 16
        s_cbranch_scc1 L_pf_done
        s_lshl_b32 s92, s4, 7
        s_cmp_lt_u32 s3, 2
        s_cbranch_scc1 L_pfA
        s_cmp_eq_u32 s4, 6
        s_cselect_b32 s92, 1024, 0
        s_cmp_eq_u32 s4, 1
        s_cselect_b32 s92, 1152, s92
        s_cmp_eq_u32 s92, 0
        s_cbranch_scc1 L_pf_done
        L_pfA:
        s_lshl_b32 s90, s90, 1
        s_and_b32 s91, s3, 1
        s_add_u32 s90, s90, s91
        s_mul_i32 s91, s90, {20*7680}
        s_add_u32 s92, s92, s91
        v_lshrrev_b32 v16, 1, v2
        v_min_u32 v16, 19, v16
        v_mul_u32_u24 v16, 7680, v16
        v_and_b32 v17, 1, v2
        v_mul_u32_u24 v17, 1280, v17
        v_add_u32 v16, v16, v17
        ''')
        self.pfld(16, 's[64:67]', 's92')
        a('L_pf_done:')

    def prefetch_b(self, sfx):
        a = self.a
        a(f'''
        s_cmp_lt_u32 s3, 2
        s_cbranch_scc1 L_pb_done{sfx}
        s_mul_i32 s90, s5, 20
        v_lshrrev_b32 v16, 3, v2
        s_cmp_eq_u32 s3, 3
        s_cbranch_scc1 L_pb3{sfx}
        ''')
        self.srd(64, 22, 640 * 8192)
        a(f'''
        v_bfe_u32 v17, v2, 1, 2
        v_lshlrev_b32 v17, 11, v17
        v_and_b32 v18, 1, v2
        v_lshl_add_u32 v17, v18, 7, v17
        v_lshl_add_u32 v18, v16, 13, v17
        v_and_b32 v16, 3, v16
        v_lshl_add_u32 v19, v16, 13, v17
        s_lshl_b32 s91, s90, 13
        s_lshl_b32 s92, s4, 8
        s_add_u32 s92, s92, s91
        ''')
        self.pfld(18, 's[64:67]', 's92'); a(f's_add_u32 s92, s92, {8*8192}')
        self.pfld(18, 's[64:67]', 's92'); a(f's_add_u32 s92, s92, {8*8192}')
        self.pfld(19, 's[64:67]', 's92')
        if sfx == '':
            a('s_waitcnt vmcnt(0)')
            self.signal(C_PF)
        a(f's_branch L_pb_done{sfx}\nL_pb3{sfx}:')
        self.srd(64, 36, 640 * 7680)
        a(f'''
        v_and_b32 v17, 7, v2
        v_min_u32 v17, 4, v17
        v_lshlrev_b32 v17, 7, v17
        v_mul_u32_u24 v18, 7680, v16
        v_add_u32 v18, v18, v17
        v_and_b32 v16, 3, v16
        v_mul_u32_u24 v19, 7680, v16
        v_add_u32 v19, v19, v17
        s_mul_i32 s91, s90, 7680
        s_mul_i32 s92, s4, 640
        s_add_u32 s92, s92, 2560
        s_add_u32 s92, s92, s91
        ''')
        if sfx == '': self.lds_wait(C_PF, 1, sleep=2)
        self.pfld(18, 's[64:67]', 's92'); a(f's_add_u32 s92, s92, {8*7680}')
        self.pfld(18, 's[64:67]', 's92'); a(f's_add_u32 s92, s92, {8*7680}')
        self.pfld(19, 's[64:67]', 's92')
        if sfx == '':
            a(f's_cmp_lg_u32 s7, {R_MOD}\ns_cbranch_scc1 L_pb_done{sfx}\ns_waitcnt vmcnt(0)')
            self.signal(C_PF2)
        a(f'L_pb_done{sfx}:')

    def prefetch_late(self, sfx):
        a = self.a
        a(f's_cmp_lg_u32 s3, 0\ns_cbranch_scc1 L_pl1{sfx}')
        self.srd(68, 32, 1728 * 1280)
        a(f'''
        v_min_u32 v16, 53, v2
        v_mul_u32_u24 v16, 1280, v16
        s_mul_i32 s91, s5, {54*1280}
        s_lshl_b32 s92, s4, 7
        s_add_u32 s92, s92, s91
        s_lshl_b32 s93, s4, 6
        s_add_u32 s93, s93, 1024
        s_add_u32 s93, s93, s91
        ''')
        self.lds_wait(C_PROGW if self.progw_t >= 0 else C_DONE, 1, sleep=4)
        self.pfld(16, 's[68:71]', 's92')
        a(f'''
        s_and_b32 s92, s4, 5
        s_cmp_lg_u32 s92, 0
        s_cbranch_scc1 L_pl_done{sfx}
        ''')
        self.pfld(16, 's[68:71]', 's93')
        a(f's_branch L_pl_done{sfx}\nL_pl1{sfx}:')
        self.srd(64, 28, 640 * 3456); self.srd(68, 30, 640 * 3456)
        a(f'''
        s_mul_i32 s92, s4, 3
        s_mov_b32 s91, s92
        s_mov_b32 s93, s92
        s_cmp_eq_u32 s4, 4
        s_cselect_b32 s91, 24, s91
        s_cselect_b32 s93, 25, s93
        s_cmp_eq_u32 s4, 6
        s_cselect_b32 s91, 26, s91
        v_and_b32 v17, 7, v2
        v_min_u32 v18, 2, v17
        v_add_u32 v18, s92, v18
        v_mov_b32 v19, s91
        v_cmp_eq_u32 vcc, 3, v17
        v_cndmask_b32 v18, v18, v19, vcc
        v_mov_b32 v19, s93
        v_cmp_eq_u32 vcc, 4, v17
        v_cndmask_b32 v18, v18, v19, vcc
        v_lshlrev_b32 v17, 7, v18
        v_lshrrev_b32 v16, 3, v2
        s_lshl_b32 s92, s3, 3
        s_sub_u32 s92, s92, 8
        v_add_u32 v16, s92, v16
        v_min_u32 v16, 19, v16
        v_mul_u32_u24 v18, 3456, v16
        v_add_u32 v18, v18, v17
        s_mul_i32 s92, s5, {20*3456}
        ''')
        self.lds_wait(C_PROGW if self.progw_t >= 0 else C_DONE, 1, sleep=4)
        self.pfld(18, 's[64:67]', 's92'); self.pfld(18, 's[68:71]', 's92')
        a(f'L_pl_done{sfx}:')

    def dma640_setup(self):
        a = self.a
        a(f'''
        v_lshrrev_b32 v16, 3, v2
        s_mul_i32 s85, s3, 160
        v_add_u32 v16, s85, v16
        v_mul_lo_u32 v16, s52, v16
        v_and_b32 v17, 3, v2
        v_lshl_add_u32 v16, v17, 4, v16
        v_mov_b32 v17, 0
        v_mov_b32 v18, s48
        v_mov_b32 v19, s49
        v_mov_b32 v20, s50
        v_mov_b32 v21, s51
        v_and_b32 v22, 4, v2
        v_cmp_ne_u32 vcc, 0, v22
        v_cndmask_b32 v18, v18, v20, vcc
        v_cndmask_b32 v19, v19, v21, vcc
        v_lshl_add_u64 v[4:5], v[16:17], 0, v[18:19]
        s_lshl_b32 s54, s52, 3
        s_mov_b32 s55, 0
        ''')
    def dma640_issue(self, lo, hi, WD=99):
        a = self.a
        for n in range(lo, hi):
            a(f's_add_u32 m0, s87, {LW + 1024*n}')
            if n >= WD: a(f's_waitcnt vmcnt({WD-1})')
            a(f'global_load_lds_dwordx4 v[4:5], off nt')
            if n < 19: a('v_lshl_add_u64 v[4:5], v[4:5], 0, s[54:55]')
    def dma640(self, WD):
        self.dma640_setup(); self.dma640_issue(0, 20, WD)

    def wfrags640(self, younger=None):
        a = self.a
        for n in range(5):
            if younger is not None: a(f's_waitcnt vmcnt({younger + 4 * (4 - n)})')
            for T in range(4):
                b = 40 + 16 * n + 4 * T
                a(f'ds_read_b64_tr_b16 v[{b}:{b+1}], v9 offset:{LW + 4096*n + 32*T}')
                a(f'ds_read_b64_tr_b16 v[{b+2}:{b+3}], v9 offset:{LW + 4096*n + 32*T + 512}')
            a('s_waitcnt lgkmcnt(0)')

    def mfma640(self, skip):
        a = self.a
        for n in range(5):
            for T in range(4):
                b = 40 + 16 * n + 4 * T; d = 16 + 4 * T
                a(f'v_mfma_f32_16x16x32_bf16 v[{d}:{d+3}], v[{b}:{b+3}], v[{120+4*n}:{123+4*n}], {"0" if n == 0 else "v[%d:%d]" % (d, d+3)}')
        for T in range(4):
            a(f'ds_write_b128 v10, v[{16+4*T}:{19+4*T}] offset:{LW + 1024*T}')
        self.arrive(C_A, 3, skip)
        for w in range(4):
            a(f'ds_read_b128 v[{40+4*w}:{43+4*w}], v11 offset:{LW + 20480*w}')
            a(f'ds_read_b128 v[{56+4*w}:{59+4*w}], v11 offset:{LW + 20480*w + 2048}')

    def red640(self):
        self.a('s_waitcnt lgkmcnt(0)')
        self.sum_partials(40, [40, 44, 48, 52]); self.sum_partials(56, [56, 60, 64, 68])

    def silu(self, ns=range(5)):
        a = self.a
        a(f's_mov_b32 s85, {LOG2E | 0x80000000}')
        for n in ns:
            b = 120 + 4 * n
            for i in range(4): self.unpack(16 + 2 * i, b + i)
            for i in range(8): a(f'v_mul_f32 v{24+i}, s85, v{16+i}')
            for i in range(8): a(f'v_exp_f32 v{24+i}, v{24+i}')
            for i in range(8): a(f'v_add_f32 v{24+i}, 1.0, v{24+i}')
            for i in range(8): a(f'v_rcp_f32 v{24+i}, v{24+i}')
            for i in range(8): a(f'v_mul_f32 v{16+i}, v{16+i}, v{24+i}')
            for i in range(4): a(f'v_cvt_pk_bf16_f32 v{b+i}, v{16+2*i}, v{17+2*i}')

    def add64(self, d, base, off):
        self.a(f's_add_u32 s{d}, s{base}, {off}\ns_addc_u32 s{d+1}, s{base+1}, 0')

    def control(self):
        a = self.a
        self.cur_cls = 99
        a('s_setprio 3')
        if self.pf: self.prefetch()
        if self.pfb:
            a(f's_cmp_eq_u32 s7, {R_G1}\ns_cbranch_scc1 L_pb_done')
            self.prefetch_b('')
        a(f'''
        s_cmp_eq_u32 s7, 0
        s_cbranch_scc1 L_ctrl_end
        v_mov_b32 v3, 0
        buffer_load_dword v167, v3, s[44:47], 0 offen sc1
        s_mul_i32 s87, s3, 20480
        v_lshrrev_b32 v16, 4, v2         ; s
        v_bfe_u32 v17, v2, 2, 2          ; r4
        v_and_b32 v18, 3, v2             ; c
        v_lshl_add_u32 v19, v16, 3, v17  ; 8s+r4
        v_lshlrev_b32 v9, 7, v19
        v_lshl_add_u32 v9, v18, 3, v9
        v_add_u32 v9, s87, v9
        v_add_u32 v10, s87, v7
        v_and_b32 v17, 7, v2             ; b
        v_bfe_u32 v18, v2, 3, 1          ; t
        v_lshlrev_b32 v11, 8, v16
        v_lshl_add_u32 v11, v17, 4, v11
        v_lshl_add_u32 v11, v18, 10, v11
        v_mul_u32_u24 v19, 1280, v17
        v_lshl_add_u32 v6, v16, 4, v19
        v_lshlrev_b32 v8, 5, v18
        v_lshl_add_u32 v8, v16, 3, v8    ; (16t+4s')*2 bytes
        v_lshlrev_b32 v12, 2, v2         ; lane*4
        s_cmp_eq_u32 s7, {R_Q}
        s_cbranch_scc1 L_role_q
        s_cmp_eq_u32 s7, {R_FFN}
        s_cbranch_scc1 L_role_ffn
        s_cmp_eq_u32 s7, {R_DOWN}
        s_cbranch_scc1 L_role_down
        s_cmp_eq_u32 s7, {R_RED}
        s_cbranch_scc1 L_role_red
        ''')
        a(f'''
        s_movk_i32 s52, 7680
        s_cmp_eq_u32 s7, {R_G1}
        s_cbranch_scc1 L_role_g1
        ''')
        self.srd(56, 34, 10240)
        a('s_mul_i32 s85, s3, 320')
        for n in range(5):
            a(f'buffer_load_dwordx4 v[{120+4*n}:{123+4*n}], v6, s[56:59], s85 offen offset:{64*n}')
        a(f'''
        s_lshl_b32 s9, s8, 7
        s_add_u32 s9, s9, 2560
        s_add_u32 s48, s36, s9
        s_addc_u32 s49, s37, 0
        s_add_u32 s50, s48, 64
        s_addc_u32 s51, s49, 0
        s_waitcnt vmcnt(0)
        ''')
        self.silu()
        if self.pfb: self.lds_wait(C_PF2, 1, sleep=2)
        self.dma640(self.WDM)
        a('s_waitcnt vmcnt(0)')
        self.stamp(2)
        self.wfrags640()
        self.mfma640('L_ctrl_end')
        a(f'''
        v_and_b32 v22, 7, v2
        v_mul_u32_u24 v22, 5120, v22
        v_add_u32 v22, v22, v8
        s_lshl_b32 s90, s8, 7
        s_add_u32 s90, s90, {WS_MODO}
        ''')
        self.red640()
        self.pack4(24, 40); self.pack4(26, 56)
        self.sanitize([24, 25, 26, 27])
        self.lds_wait(C_QOK, 1, sleep=8)
        a(f'''
        buffer_store_dwordx2 v[24:25], v22, s[44:47], s90 offen sc1
        buffer_store_dwordx2 v[26:27], v22, s[44:47], s90 offen offset:64 sc1
        s_branch L_ctrl_end
        L_role_g1:
        s_lshl_b32 s9, s8, 6
        s_add_u32 s48, s36, s9
        s_addc_u32 s49, s37, 0
        s_add_u32 s50, s48, 1280
        s_addc_u32 s51, s49, 0
        v_add_u32 v34, v19, v8
        ''')
        self.dma640(99)
        self.srd(60, 16, 10240)
        a(f'''
        buffer_load_dwordx2 v[150:151], v34, s[60:63], s9 offen
        s_lshl_b32 s85, s8, 2
        s_add_u32 s85, s85, s3
        s_lshl_b32 s85, s85, 11
        s_add_u32 s85, s85, {SB2}
        v_mov_b32 v152, -1
        v_mov_b32 v153, -1
        v_mov_b32 v154, -1
        v_mov_b32 v155, -1
        buffer_store_dwordx4 v[152:155], v7, s[44:47], s85 offen sc1
        buffer_store_dwordx4 v[152:155], v7, s[44:47], s85 offen offset:1024 sc1
        v_and_b32 v16, 7, v2
        v_mul_u32_u24 v16, {ACTS}, v16
        v_lshrrev_b32 v17, 4, v2
        v_lshl_add_u32 v16, v17, 4, v16
        s_mul_i32 s85, s3, 320
        s_add_u32 s85, s85, {L_ACT}
        v_add_u32 v35, s85, v16
        ''')
        self.signal(C_GO)
        self.stamp(1)
        self.lds_wait(C_ACT, 8)
        for n in range(5): a(f'ds_read_b128 v[{120+4*n}:{123+4*n}], v35 offset:{64*n}')
        self.stamp(3)
        self.wfrags640(younger=3)
        self.tag_from(167)
        a('s_waitcnt vmcnt(0)')
        self.stamp(2)
        self.mfma640('L_ctrl_end')
        a(f'''
        v_and_b32 v22, 7, v2
        v_lshl_add_u32 v23, v22, 3, v13
        ds_read_b64 v[36:37], v23 offset:{L_STAT}
        ''')
        self.red640()
        self.pack4(24, 40); self.pack4(26, 56)
        self.unpack4(56, 26)
        a('v_pk_add_f32 v[56:57], v[56:57], 1.0 op_sel_hi:[1,0]\nv_pk_add_f32 v[58:59], v[58:59], 1.0 op_sel_hi:[1,0]')
        self.round4(56, 26)
        self.unpack4(40, 24)
        self.unpack4(44, 150)
        for i in range(4): a(f'v_sub_f32 v{44+i}, v{44+i}, v36')
        self.round4(44, 28)
        for i in range(4): a(f'v_mul_f32 v{44+i}, v{44+i}, v37')
        self.round4(44, 28)
        a('v_pk_mul_f32 v[44:45], v[44:45], v[56:57]\nv_pk_mul_f32 v[46:47], v[46:47], v[58:59]')
        self.round4(44, 28)
        a('v_pk_add_f32 v[44:45], v[44:45], v[40:41]\nv_pk_add_f32 v[46:47], v[46:47], v[42:43]')
        a(f'''
        v_cvt_pk_bf16_f32 v28, v44, v45
        v_cvt_pk_bf16_f32 v30, v46, v47
        v_mov_b32 v29, s94
        v_mov_b32 v31, s94
        v_lshlrev_b32 v22, 4, v22               ; b*16
        v_lshl_add_u32 v22, v8, 4, v22          ; + (16t+4s')*32 = t*512 + s'*128
        s_lshl_b32 s85, s8, 10
        s_add_u32 s85, s85, {WS_H1}
        buffer_store_dwordx4 v[28:31], v22, s[44:47], s85 offen sc1
        s_branch L_ctrl_end
        ''')
        a(f'''
        L_role_q:
        s_lshl_b32 s9, s8, 7
        s_add_u32 s48, s22, s9
        s_addc_u32 s49, s23, 0
        s_add_u32 s50, s48, 64
        s_addc_u32 s51, s49, 0
        s_movk_i32 s52, 8192
        ''')
        if self.pfb: self.lds_wait(C_PF, 1, sleep=2)
        self.dma640(99)
        a(f'''
        s_and_b32 s85, s8, 1
        s_lshl_b32 s85, s85, 2
        s_add_u32 s85, s85, s3
        s_lshl_b32 s85, s85, 5
        s_lshr_b32 s86, s8, 1
        s_add_u32 s85, s85, s86
        s_mul_i32 s85, s85, 2560
        s_add_u32 s85, s85, {WS_P}
        v_mov_b32 v152, -1
        v_mov_b32 v153, -1
        v_mov_b32 v154, -1
        v_mov_b32 v155, -1
        v_lshlrev_b32 v19, 3, v2
        buffer_store_dwordx4 v[152:155], v7, s[44:47], s85 offen sc1
        buffer_store_dwordx4 v[152:155], v7, s[44:47], s85 offen offset:1024 sc1
        buffer_store_dwordx2 v[152:153], v19, s[44:47], s85 offen offset:2048 sc1
        ''')
        self.signal(C_GO)
        a('s_waitcnt vmcnt(0)')
        self.stamp(2)
        self.tag_from(167)
        self.wfrags640()
        a(f'''
        s_mul_i32 s90, s3, 5120
        s_add_u32 s90, s90, {WS_H1}
        s_add_u32 s91, s90, 4096
        ''')
        self.stamp(3)
        loads = [f'buffer_load_dwordx4 v[{120+4*n}:{123+4*n}], v7, s[44:47], s{90 if n < 4 else 91} offen offset:{1024*(n%4)} sc1' for n in range(5)]
        self.poll('h1', loads, [121 + 2 * i for i in range(10)], 4, tagged=True)
        self.stamp(4)
        for n in range(5):
            b = 120 + 4 * n
            a(f'v_mov_b32_dpp v{b+3}, v{b+2} row_ror:8 row_mask:0xf bank_mask:0xf')
            a(f'v_mov_b32 v{b+1}, v{b+2}')
            a(f'v_mov_b32_dpp v{b+2}, v{b} row_ror:8 row_mask:0xf bank_mask:0xf')
        self.mfma640('L_ctrl_end')
        a(f'''
        v_and_b32 v22, 7, v2
        v_lshlrev_b32 v22, 14, v22              ; b*32*512
        v_lshl_add_u32 v22, v8, 1, v22          ; + col*4
        s_lshl_b32 s85, s8, 8                   ; h*512 + half*256
        s_add_u32 s85, s85, {WS_Q}
        v_mov_b32 v29, s94
        v_mov_b32 v31, s94
        v_mov_b32 v33, s94
        v_mov_b32 v35, s94
        ''')
        self.red640()
        a(f'''
        v_cvt_pk_bf16_f32 v28, v40, v41
        v_cvt_pk_bf16_f32 v30, v42, v43
        v_cvt_pk_bf16_f32 v32, v56, v57
        v_cvt_pk_bf16_f32 v34, v58, v59
        buffer_store_dwordx4 v[28:31], v22, s[44:47], s85 offen sc1
        buffer_store_dwordx4 v[32:35], v22, s[44:47], s85 offen offset:128 sc1
        s_branch L_ctrl_end
        ''')
        a(f'''
        L_role_ffn:
        s_lshl_b32 s9, s8, 6
        s_add_u32 s48, s28, s9
        s_addc_u32 s49, s29, 0
        s_add_u32 s50, s30, s9
        s_addc_u32 s51, s31, 0
        s_movk_i32 s52, 3456
        ''')
        self.dma640_setup()
        self.dma640_issue(0, self.nEf, 1)
        self.lds_wait(C_DONE, 1, sleep=4)
        self.dma640_issue(self.nEf, 20)
        self.wfrags640(younger=0)
        self.stamp(2)
        a(f'''
        s_mul_i32 s90, s3, 320
        s_add_u32 s90, s90, {WS_H2}
        v_and_b32 v32, 7, v2
        v_lshlrev_b32 v32, 4, v32
        v_bfe_u32 v33, v2, 3, 1
        v_lshl_add_u32 v32, v33, 8, v32
        v_bfe_u32 v33, v2, 5, 1
        v_lshl_add_u32 v32, v33, 7, v32
        v_bfe_u32 v33, v2, 4, 1
        v_lshl_add_u32 v32, v33, 3, v32
        s_lshl_b32 s91, s8, 9
        s_add_u32 s91, s91, {WS_HID}
        ''')
        self.lds_wait(C_WO, 8, sleep=4)
        self.stamp(3)
        loads = [f'buffer_load_dwordx4 v[{120+4*n}:{123+4*n}], v6, s[44:47], s90 offen offset:{64*n} sc1' for n in range(5)]
        self.poll('h2', loads, list(range(120, 140)), 2)
        self.stamp(4)
        self.mfma640('L_ctrl_end')
        self.red640()
        self.round4(40, 28); self.round4(56, 30)
        for i in range(4):
            a(f'v_cmp_lt_f32 vcc, 0, v{40+i}\nv_cndmask_b32 v{20+i}, 0, 1.0, vcc')
        a('v_pk_mul_f32 v[40:41], v[40:41], v[20:21]\nv_pk_mul_f32 v[42:43], v[42:43], v[22:23]')
        a('v_pk_mul_f32 v[40:41], v[40:41], v[56:57]\nv_pk_mul_f32 v[42:43], v[42:43], v[58:59]')
        self.pack4(28, 40); self.sanitize([28, 29])
        a(f'''
        buffer_store_dwordx2 v[28:29], v32, s[44:47], s91 offen sc1
        s_branch L_ctrl_end
        ''')
        a('L_role_down:')
        self.srd(72, 32, 1728 * 1280); self.srd(80, 38, 10240)
        a(f'''
        s_add_u32 s76, s42, {WS_HID}
        s_addc_u32 s77, s43, 0
        s_mov_b32 s78, {27*1024}
        s_mov_b32 s79, 0x20000
        v_lshrrev_b32 v16, 1, v2
        v_mul_u32_u24 v4, 1280, v16
        v_and_b32 v16, 1, v2
        v_lshl_add_u32 v4, v16, 4, v4
        s_mul_i32 s85, s3, {7*64*1280}
        s_lshl_b32 s9, s8, 5
        s_add_u32 s85, s85, s9
        s_mul_i32 s87, s3, 14336
        ''')
        for n in range(14):
            if n == self.nEd: self.lds_wait(C_DONE, 1, sleep=4)
            a(f's_add_u32 m0, s87, {LW + 1024*n}')
            if n < self.nEd: a(f's_waitcnt vmcnt(0)')
            a(f'buffer_load_dwordx4 v4, s[72:75], s85 offen nt lds')
            a(f's_add_u32 s85, s85, {32*1280}')
        a(f'''
        v_lshrrev_b32 v16, 4, v2         ; s
        v_bfe_u32 v17, v2, 2, 2          ; r4
        v_lshl_add_u32 v19, v16, 3, v17
        v_lshlrev_b32 v9, 5, v19
        v_bfe_u32 v17, v2, 1, 1
        v_lshl_add_u32 v9, v17, 10, v9
        v_and_b32 v17, 1, v2
        v_lshl_add_u32 v9, v17, 3, v9
        v_add_u32 v9, s87, v9
        v_add_u32 v10, s87, v7
        v_and_b32 v17, 7, v2             ; b
        v_bfe_u32 v18, v2, 3, 1          ; a / half
        v_lshlrev_b32 v3, 7, v16
        v_lshl_add_u32 v3, v17, 4, v3
        v_lshl_add_u32 v3, v18, 9, v3
        s_mul_i32 s86, s3, 7168
        v_add_u32 v3, s86, v3
        v_and_b32 v16, 1, v16            ; s'
        v_lshlrev_b32 v11, 8, v16
        v_lshl_add_u32 v11, v17, 4, v11
        v_lshl_add_u32 v11, v18, 10, v11
        v_lshlrev_b32 v8, 4, v18
        v_lshl_add_u32 v8, v16, 3, v8    ; (8a+4s')*2
        v_mul_u32_u24 v5, 5120, v17
        v_add_u32 v5, v5, v8
        v_mul_u32_u24 v6, 1280, v17
        v_add_u32 v6, v6, v8
        s_add_u32 s90, s9, {WS_MODO + 3840}
        s_add_u32 s91, s9, {WS_X1}
        s_movk_i32 s92, 4096
        s_waitcnt vmcnt(0)
        ''')
        self.stamp(2)
        self.tag_from(167)
        for n in range(7):
            for ac in range(2):
                b = 40 + 8 * n + 4 * ac
                a(f'ds_read_b64_tr_b16 v[{b}:{b+1}], v9 offset:{LW + 2048*n + 16*ac}')
                a(f'ds_read_b64_tr_b16 v[{b+2}:{b+3}], v9 offset:{LW + 2048*n + 16*ac + 128}')
            if n % 2: a('s_waitcnt lgkmcnt(0)')
        self.lds_wait(C_WO, 8, sleep=4)
        self.poll('gb', ['buffer_load_dwordx2 v[32:33], v5, s[44:47], s90 offen sc1'], [32, 33], 4)
        self.unpack4(140, 32)
        self.stamp(3)
        self.poll('x1', ['buffer_load_dwordx2 v[32:33], v6, s[44:47], s91 offen sc1'], [32, 33], 4)
        self.unpack4(144, 32)
        self.stamp(5)
        loads = [f'buffer_load_dwordx4 v[{104+4*n}:{107+4*n}], v3, s[76:79], {"0" if n < 4 else "s92"} offen offset:{1024*(n%4)} sc1' for n in range(7)]
        self.poll('hid', loads, list(range(104, 132)), 1)
        self.stamp(4)
        for n in range(7):
            for ac in range(2):
                b = 40 + 8 * n + 4 * ac; d = 16 + 4 * ac
                a(f'v_mfma_f32_16x16x32_bf16 v[{d}:{d+3}], v[{b}:{b+3}], v[{104+4*n}:{107+4*n}], {"0" if n == 0 else "v[%d:%d]" % (d, d+3)}')
        a(f'ds_write_b128 v10, v[16:19] offset:{LW}\nds_write_b128 v10, v[20:23] offset:{LW + 1024}')
        self.arrive(C_A, 3, 'L_ctrl_end')
        for w in range(4):
            a(f'ds_read_b128 v[{40+8*w}:{43+8*w}], v11 offset:{LW + 14336*w}')
            a(f'ds_read_b128 v[{44+8*w}:{47+8*w}], v11 offset:{LW + 14336*w + 640}')
        a('s_waitcnt lgkmcnt(0)')
        self.sum_partials(40, [40 + 4 * i for i in range(8)])
        self.round4(40, 28)
        a('v_pk_mul_f32 v[40:41], v[40:41], v[140:141]\nv_pk_mul_f32 v[42:43], v[42:43], v[142:143]')
        self.round4(40, 28)
        a('v_pk_add_f32 v[40:41], v[40:41], v[144:145]\nv_pk_add_f32 v[42:43], v[42:43], v[146:147]')
        self.pack4(28, 40)
        a(f'''
        s_mov_b32 exec_hi, 0
        buffer_store_dwordx2 v[28:29], v6, s[80:83], s9 offen
        s_cmp_lg_u32 s8, 0
        s_cbranch_scc1 L_noepoch
        s_mov_b64 exec, 1
        v_mov_b32 v20, 0
        v_mov_b32 v21, s94
        buffer_store_dword v21, v20, s[44:47], 0 offen sc1
        L_noepoch:
        s_mov_b64 exec, -1
        s_branch L_ctrl_end
        ''')
        a('L_role_red:')
        self.srd(60, 16, 10240)
        a(f'''
        v_lshlrev_b32 v8, 3, v2          ; lane*8
        s_mul_i32 s9, s8, 1280
        buffer_load_dwordx2 v[26:27], v8, s[60:63], s9 offen
        buffer_load_dwordx2 v[28:29], v8, s[60:63], s9 offen offset:512
        buffer_load_dword v30, v12, s[60:63], s9 offen offset:1024
        s_lshl_b32 s90, s8, 14
        s_lshl_b32 s85, s3, 12
        s_add_u32 s90, s90, s85
        s_add_u32 s90, s90, {WS_Q}
        s_waitcnt vmcnt(0)
        ''')
        self.tag_from(167)
        for i in range(5): self.unpack(120 + 2 * i, 26 + i)
        self.lds_wait(C_QOK, 1, sleep=8)
        loads = [f'buffer_load_dwordx4 v[{40+4*n}:{43+4*n}], v7, s[44:47], s90 offen offset:{1024*n} sc1' for n in range(4)]
        self.poll('qall', loads, [41 + 2 * i for i in range(8)], 8, tagged=True)
        a(f'''
        s_mul_i32 s90, s8, 5120
        s_add_u32 s90, s90, {WS_MODO}
        ''')
        loads = []
        for ch in range(3):
            b = 40 + 6 * ch
            loads += [f'buffer_load_dwordx2 v[{b}:{b+1}], v8, s[44:47], s90 offen offset:{1280*ch} sc1',
                      f'buffer_load_dwordx2 v[{b+2}:{b+3}], v8, s[44:47], s90 offen offset:{1280*ch + 512} sc1',
                      f'buffer_load_dword v{b+4}, v12, s[44:47], s90 offen offset:{1280*ch + 1024} sc1']
        self.poll('modo', loads, [40 + 6 * ch + i for ch in range(3) for i in range(5)], 8)
        for ch in range(3):
            for i in range(5): self.unpack(130 + 10 * ch + 2 * i, 40 + 6 * ch + i)
        for i in range(5):
            a(f'v_pk_add_f32 v[{150+2*i}:{151+2*i}], v[{150+2*i}:{151+2*i}], 1.0 op_sel_hi:[1,0]')
            a(f'v_cvt_pk_bf16_f32 v26, v{150+2*i}, v{151+2*i}')
            self.unpack(150 + 2 * i, 26)
        for i in range(10): a(f'v_mov_b32 v{16+i}, 0')
        a(f'''
        s_lshl_b32 s91, s8, 5
        s_lshl_b32 s85, s3, 3
        s_add_u32 s91, s91, s85
        s_mul_i32 s91, s91, 2560
        s_add_u32 s91, s91, {WS_P}
        s_mul_i32 s87, s3, 2560
        v_add_u32 v10, s87, v7
        v_add_u32 v11, s87, v8
        s_add_u32 s92, s9, {WS_H2}
        s_add_u32 s93, s9, {WS_X1}
        ''')
        self.stamp(2)
        self.lds_wait(C_PROG, 1, sleep=8)
        self.stamp(3)
        a(f'''
        s_mov_b32 s90, 0xff
        s_mov_b32 s89, {SPIN_LIMIT}
        v_and_b32 v34, 7, v2
        v_mul_u32_u24 v34, 2560, v34
        L_p_poll:
        s_mov_b32 s95, s90
        ds_read_b32 v14, v13 offset:{C_WO}
        s_waitcnt lgkmcnt(0)
        v_readfirstlane_b32 s88, v14
        s_cmp_ge_u32 s88, 8
        s_cbranch_scc1 L_p_fetch
        s_sleep 6
        buffer_load_dword v35, v34, s[44:47], s91 offen offset:2556 sc1
        s_waitcnt vmcnt(0)
        v_cmp_ne_u32 vcc, -1, v35
        s_nop 1
        s_and_b32 s95, s90, vcc_lo
        s_cbranch_scc0 L_p_next
        L_p_fetch:
        ''')
        for g in range(8):
            b = 40 + 10 * g
            a(f'''
            s_bitcmp1_b32 s95, {g}
            s_cbranch_scc0 L_p_sk{g}
            s_add_u32 s85, s91, {2560*g}
            buffer_load_dwordx4 v[{b}:{b+3}], v7, s[44:47], s85 offen sc1
            buffer_load_dwordx4 v[{b+4}:{b+7}], v7, s[44:47], s85 offen offset:1024 sc1
            buffer_load_dwordx2 v[{b+8}:{b+9}], v8, s[44:47], s85 offen offset:2048 sc1
            L_p_sk{g}:
            ''')
        a('s_waitcnt vmcnt(0)')
        for g in range(8):
            b = 40 + 10 * g
            a(f'''
            s_bitcmp1_b32 s95, {g}
            s_cbranch_scc0 L_p_ck{g}
            v_max3_u32 v36, v{b}, v{b+1}, v{b+2}
            v_max3_u32 v37, v{b+3}, v{b+4}, v{b+5}
            v_max3_u32 v36, v36, v{b+6}, v{b+7}
            v_max3_u32 v37, v37, v{b+8}, v{b+9}
            v_max_u32 v36, v36, v37
            v_cmp_eq_u32 vcc, -1, v36
            s_cbranch_vccnz L_p_ck{g}
            s_bitset0_b32 s90, {g}
            ''')
            for i in range(5): a(f'v_pk_add_f32 v[{16+2*i}:{17+2*i}], v[{16+2*i}:{17+2*i}], v[{b+2*i}:{b+2*i+1}]')
            a(f'L_p_ck{g}:')
        a(f'''
        s_cmp_eq_u32 s90, 0
        s_cbranch_scc1 L_p_ok
        L_p_next:
        s_sub_u32 s89, s89, 1
        s_cbranch_scc0 L_p_poll
        L_p_ok:
        ''')
        self.stamp(4)
        a(f'''
        ds_write_b128 v10, v[16:19] offset:{LW}
        ds_write_b128 v10, v[20:23] offset:{LW + 1024}
        ds_write_b64 v11, v[24:25] offset:{LW + 2048}
        ''')
        self.arrive(C_A, 3, 'L_ctrl_end')
        for w in range(4):
            b = 40 + 10 * w
            a(f'ds_read_b128 v[{b}:{b+3}], v7 offset:{LW + 2560*w}')
            a(f'ds_read_b128 v[{b+4}:{b+7}], v7 offset:{LW + 2560*w + 1024}')
            a(f'ds_read_b64 v[{b+8}:{b+9}], v8 offset:{LW + 2560*w + 2048}')
        a('s_waitcnt lgkmcnt(0)')
        U = 40
        def P(r, i): return f'v[{r+2*i}:{r+2*i+1}]'
        for i in range(5): a(f'v_pk_add_f32 {P(40,i)}, {P(40,i)}, {P(50,i)}')
        for i in range(5): a(f'v_pk_add_f32 {P(60,i)}, {P(60,i)}, {P(70,i)}')
        for i in range(5): a(f'v_pk_add_f32 {P(40,i)}, {P(40,i)}, {P(60,i)}')
        def pk():
            for i in range(5): a(f'v_cvt_pk_bf16_f32 v{26+i}, v{U+2*i}, v{U+2*i+1}')
        def rnd():
            pk()
            for i in range(5): self.unpack(U + 2 * i, 26 + i)
        rnd()
        for i in range(5): a(f'v_pk_mul_f32 {P(U,i)}, {P(U,i)}, {P(130,i)}')
        rnd()
        for i in range(5): a(f'v_pk_add_f32 {P(U,i)}, {P(U,i)}, {P(120,i)}')
        for i in range(5): a(f'v_cvt_pk_bf16_f32 v{160+i}, v{U+2*i}, v{U+2*i+1}')
        self.sanitize(range(160, 165))
        self.ln_stats(160, U, 32, 96, 98)
        for i in range(5): a(f'v_pk_add_f32 {P(U,i)}, {P(U,i)}, s[96:97] op_sel_hi:[1,0] neg_lo:[0,1] neg_hi:[0,1]')
        rnd()
        for i in range(5): a(f'v_pk_mul_f32 {P(U,i)}, {P(U,i)}, s[98:99] op_sel_hi:[1,0]')
        rnd()
        for i in range(5): a(f'v_pk_mul_f32 {P(U,i)}, {P(U,i)}, {P(150,i)}')
        rnd()
        for i in range(5): a(f'v_pk_add_f32 {P(U,i)}, {P(U,i)}, {P(140,i)}')
        pk()
        self.sanitize(range(26, 31))
        a(f'''
        buffer_store_dwordx2 v[26:27], v8, s[44:47], s92 offen sc1
        buffer_store_dwordx2 v[28:29], v8, s[44:47], s92 offen offset:512 sc1
        buffer_store_dword v30, v12, s[44:47], s92 offen offset:1024 sc1
        buffer_store_dwordx2 v[160:161], v8, s[44:47], s93 offen sc1
        buffer_store_dwordx2 v[162:163], v8, s[44:47], s93 offen offset:512 sc1
        buffer_store_dword v164, v12, s[44:47], s93 offen offset:1024 sc1
        L_ctrl_end:
        ''')
        self.stamp(11)
        if self.late:
            a(f's_cmp_eq_u32 s7, {R_DOWN}\ns_cbranch_scc1 L_ctrl_fin\ns_cmp_eq_u32 s7, {R_FFN}\ns_cbranch_scc1 L_ctrl_fin\ns_cmp_eq_u32 s7, {R_RED}\ns_cbranch_scc1 L_ctrl_fin')
            self.prefetch_late('e')
            a('L_ctrl_fin:')
        self.stamp_flush()
        self.diag_end()
        a('s_endpgm')

    def stream(self):
        a = self.a
        self.cur_cls = 0
        WK, WV = self.WK, self.WV
        NV = 12
        KV = lambda t: 40 + 4 * t
        a(f'''
        L_stream:
        s_sub_u32 s15, s3, 4             ; sw
        s_lshl_b32 s85, s15, 15
        v_add_u32 v1, s85, v7
        s_mul_i32 s91, s2, {self.rot}
        s_mul_i32 s85, s15, {self.rotw}
        s_add_u32 s91, s91, s85
        s_and_b32 s91, s91, 31
        s_lshl_b32 s91, s91, 10          ; rotation
        s_lshl_b32 s85, s2, 20
        s_add_u32 s85, s85, 0xC0000
        s_add_u32 s48, s18, s85
        s_addc_u32 s49, s19, 0
        s_mov_b32 s50, 0x40000
        s_mov_b32 s51, 0x20000
        s_add_u32 s52, s20, s85
        s_addc_u32 s53, s21, 0
        s_mov_b32 s54, 0x40000
        s_mov_b32 s55, 0x20000
        ''')
        for _ in range(self.sdelay): a('s_sleep 32')
        if self.hold > 1: a(f's_cmp_eq_u32 s7, {R_Q}\ns_cbranch_scc1 L_hold')
        a(f's_cmp_lg_u32 s7, {R_G1}\ns_cbranch_scc1 L_nohold')
        self.srd(56, 34, 10240); self.srd(60, 16, 10240)
        a('s_mul_i32 s90, s15, 1280\nv_lshlrev_b32 v12, 2, v2')
        for n in range(5): a(f'buffer_load_dword v{40+n}, v12, s[56:59], s90 offen offset:{256*n}')
        for n in range(5): a(f'buffer_load_dword v{46+n}, v12, s[60:63], s90 offen offset:{256*n}')
        a(f'''
        s_mul_i32 s90, s15, {ACTS}
        s_add_u32 s90, s90, {L_ACT}
        v_add_u32 v12, s90, v12
        s_mov_b32 s85, {LOG2E | 0x80000000}
        s_waitcnt vmcnt(5)
        ''')
        for i in range(5): self.unpack(52 + 2 * i, 40 + i)
        for i in range(10): a(f'v_mul_f32 v{64+i}, s85, v{52+i}')
        for i in range(10): a(f'v_exp_f32 v{64+i}, v{64+i}')
        for i in range(10): a(f'v_add_f32 v{64+i}, 1.0, v{64+i}')
        for i in range(10): a(f'v_rcp_f32 v{64+i}, v{64+i}')
        for i in range(10): a(f'v_mul_f32 v{52+i}, v{52+i}, v{64+i}')
        for i in range(5): a(f'v_cvt_pk_bf16_f32 v{40+i}, v{52+2*i}, v{53+2*i}')
        for i in range(5): a(f'ds_write_b32 v12, v{40+i} offset:{256*i}')
        a('s_waitcnt vmcnt(0)')
        self.ln_stats(46, 52, 64, 90, 92)
        a(f'''
        v_mov_b32 v28, s90
        v_mov_b32 v29, s92
        s_lshl_b32 s85, s15, 3
        v_add_u32 v30, s85, v13
        ds_write_b64 v30, v[28:29] offset:{L_STAT}
        ''')
        self.signal(C_ACT)
        a('L_hold:')
        if self.hold: self.lds_wait(C_GO, 4, sleep=2)
        a('L_nohold:')
        q = []
        def wait_for(name):
            i = len(q) - 1 - q[::-1].index(name)
            n = len(q) - 1 - i
            a(f's_waitcnt vmcnt({min(n, 63)})')
        def ld(t, slot, srd, nm):
            a(f's_add_u32 s92, s91, {t*1024}\ns_and_b32 s92, s92, 0x7fff')
            a(f'buffer_load_dwordx4 v[{KV(slot)}:{KV(slot)+3}], v1, {srd}, s92 offen nt')
            q.append(nm)
        qloads = ['buffer_load_dwordx4 v[4:7], v12, s[44:47], s93 offen sc1', 'buffer_load_dwordx4 v[16:19], v12, s[44:47], s93 offen offset:16 sc1']
        for t in range(32):
            wk = WK if t >= self.wk_sw else self.WK0
            if t >= wk:
                if self.WKL > wk and t >= self.wkl_sw:
                    L = a.label('L_kw')
                    a(f's_waitcnt vmcnt({self.WKL-1})\ns_cbranch_vccnz {L}\ns_waitcnt vmcnt({wk-1})\n{L}:')
                else: a(f's_waitcnt vmcnt({wk-1})')
            if t == self.WK0: self.stamp(8)
            ld(t, t, 's[48:51]', f'K{t}')
            if t == self.WK0 - 1:
                a(f'''
                v_mov_b32 v3, 0
                buffer_load_dword v35, v3, s[44:47], 0 offen sc1
                v_and_b32 v3, 15, v2
                v_lshlrev_b32 v12, 5, v3             ; Q voffset
                s_lshl_b32 s93, s2, 9
                s_add_u32 s93, s93, {WS_Q}
                v_mov_b32 v16, 0xffff
                v_mov_b32 v17, s84
                ''')
                q.append('E')
                for r in range(4):
                    a(f'''
                    v_cmp_eq_u32 vcc, {2*r}, v3
                    v_cndmask_b32 v{8+r}, 0, v16, vcc
                    v_cmp_eq_u32 vcc, {2*r+1}, v3
                    v_cndmask_b32 v{8+r}, v{8+r}, v17, vcc
                    ''')
                a(f'''
                s_mov_b32 s96, 0xcccccccc
                s_mov_b32 s97, 0xcccccccc
                s_mov_b32 s98, 0xaaaaaaaa
                s_mov_b32 s99, 0xaaaaaaaa
                s_mul_i32 s85, s14, 163840
                s_add_u32 s56, s24, s85
                s_addc_u32 s57, s25, 0
                s_mov_b32 s58, 163840
                s_mov_b32 s59, 0x20000
                v_lshrrev_b32 v34, 4, v2
                v_mul_u32_u24 v34, 5120, v34
                v_lshl_add_u32 v34, v3, 4, v34
                s_mul_i32 s85, s15, 20480
                v_add_u32 v34, s85, v34
                s_lshr_b32 s85, {self.lagmask}, s7
                s_bitcmp1_b32 s85, 0
                s_cselect_b64 vcc, -1, 0
                ''')
            if t == 12:
                self.tag_from(35)
            if t == self.qpos:
                for l in qloads: a(l)
                q.append('Q0'); q.append('Q1')
        self.stamp(1)
        wait_for('Q1')
        a(f'''
        s_mov_b32 s89, {SPIN_LIMIT}
        L_q_chk:
        v_xor_b32 v20, s94, v5
        v_xor_b32 v21, s94, v7
        v_xor_b32 v22, s94, v17
        v_xor_b32 v23, s94, v19
        v_or_b32 v20, v20, v21
        v_or3_b32 v20, v20, v22, v23
        v_cmp_ne_u32 vcc, 0, v20
        s_cbranch_vccz L_q_ok
        s_sleep 4
        {qloads[0]}
        {qloads[1]}
        s_waitcnt vmcnt(0)
        s_sub_u32 s89, s89, 1
        s_cbranch_scc0 L_q_chk
        L_q_ok:
        v_mov_b32 v5, v6
        v_mov_b32 v6, v16
        v_mov_b32 v7, v18
        ''')
        self.signal(C_QOK)
        self.stamp(2)
        D = 20
        st = dict(V=0, W=0)
        def ldwo(n):
            tp, c = n // 5, n % 5
            so = ['0', 's60', 's61', 's62'][tp]
            a(f'buffer_load_dwordx4 v[{KV(NV+n)}:{KV(NV+n)+3}], v34, s[56:59], {so} offen offset:{256*c} nt')
            q.append(f'W{n}')
        def pre(g, free):
            for ch in self.pre[g]:
                if ch == 'V':
                    assert st['V'] < NV and st['V'] <= free
                    ld(st['V'], st['V'], 's[52:55]', f"V{st['V']}"); st['V'] += 1
                else:
                    assert NV + st['W'] <= free
                    ldwo(st['W']); st['W'] += 1
        a('s_movk_i32 s60, 1280\ns_movk_i32 s61, 2560\ns_movk_i32 s62, 3840')
        for g in range(8):
            wait_for(f'K{4*g+3}')
            for i in range(4):
                for k in range(4):
                    t = 4 * g + k
                    a(f'v_dot2_f32_bf16 v{D+k}, v{KV(t)+i}, v{4+i}, {"0" if i == 0 else "v%d" % (D+k)}')
            pre(g, 4 * g + 3)
            a(f'v_add_f32_dpp v24, v{D}, v{D} row_ror:8 row_mask:0xf bank_mask:0x3')
            a(f'v_add_f32_dpp v25, v{D+2}, v{D+2} row_ror:8 row_mask:0xf bank_mask:0x3')
            a(f'v_add_f32_dpp v24, v{D+1}, v{D+1} row_ror:8 row_mask:0xf bank_mask:0xc')
            a(f'v_add_f32_dpp v25, v{D+3}, v{D+3} row_ror:8 row_mask:0xf bank_mask:0xc')
            r2 = 26 + (g & 1)
            a(f'v_add_f32_dpp v{r2}, v24, v24 row_shl:4 row_mask:0xf bank_mask:0x5')
            a(f'v_add_f32_dpp v{r2}, v25, v25 row_shr:4 row_mask:0xf bank_mask:0xa')
            if g & 1:
                r3 = 28 + ((g >> 1) & 1)
                a(f'v_add_f32_dpp v30, v26, v26 quad_perm:[2,3,0,1] row_mask:0xf bank_mask:0xf')
                a(f'v_add_f32_dpp v31, v27, v27 quad_perm:[2,3,0,1] row_mask:0xf bank_mask:0xf')
                a(f'v_cndmask_b32 v{r3}, v30, v31, s[96:97]')
            if (g & 3) == 3:
                a(f'v_add_f32_dpp v30, v28, v28 quad_perm:[1,0,3,2] row_mask:0xf bank_mask:0xf')
                a(f'v_add_f32_dpp v31, v29, v29 quad_perm:[1,0,3,2] row_mask:0xf bank_mask:0xf')
                a(f'v_cndmask_b32 v{32 + (g >> 2)}, v30, v31, s[98:99]')
        a(f'''
        v_cvt_pk_bf16_f32 v20, v32, v33
        s_mov_b32 s86, 0x3db504f3
        ''')
        self.unpack(32, 20)
        a('v_pk_mul_f32 v[32:33], v[32:33], s[86:87] op_sel_hi:[1,0]\nv_cvt_pk_bf16_f32 v20, v32, v33')
        self.unpack(32, 20)
        a('v_max_f32 v20, v32, v33')
        self.wave_red(20, 'max')
        a(f'''
        v_readlane_b32 s86, v20, 63              ; m_w
        s_mov_b32 s90, {LOG2E}
        v_subrev_f32 v20, s86, v32
        v_subrev_f32 v21, s86, v33
        v_mul_f32 v20, s90, v20
        v_mul_f32 v21, s90, v21
        v_exp_f32 v20, v20
        v_exp_f32 v21, v21
        v_add_f32 v21, v20, v21
        ''')
        self.wave_red(21)
        a(f'''
        v_mov_b32 v20, s86
        s_lshl_b32 s85, s15, 3
        v_add_u32 v22, s85, v13
        s_mov_b32 exec_lo, 0
        s_mov_b32 exec_hi, 0x80000000
        ds_write_b64 v22, v[20:21] offset:{L_SM}
        s_mov_b64 exec, -1
        ''')
        self.stamp(3)
        self.signal(C_SM)
        pre(8, 31)
        self.lds_wait(C_SM, 8)
        self.stamp(4)
        a(f'''
        v_and_b32 v22, 7, v2
        v_lshl_add_u32 v22, v22, 3, v13
        ds_read_b64 v[20:21], v22 offset:{L_SM}
        s_waitcnt lgkmcnt(0)
        v_max_f32_dpp v22, v20, v20 row_ror:4 row_mask:0xf bank_mask:0xf
        v_max_f32_dpp v22, v22, v22 row_ror:2 row_mask:0xf bank_mask:0xf
        v_max_f32_dpp v22, v22, v22 row_ror:1 row_mask:0xf bank_mask:0xf
        v_sub_f32 v20, v20, v22
        v_mul_f32 v20, s90, v20
        v_exp_f32 v20, v20
        v_sub_f32 v32, v32, v22
        v_sub_f32 v33, v33, v22
        v_mul_f32 v21, v21, v20
        v_mul_f32 v32, s90, v32
        v_mul_f32 v33, s90, v33
        v_add_f32_dpp v21, v21, v21 row_ror:4 row_mask:0xf bank_mask:0xf
        v_exp_f32 v32, v32
        v_exp_f32 v33, v33
        v_add_f32_dpp v21, v21, v21 row_ror:2 row_mask:0xf bank_mask:0xf
        v_add_f32_dpp v21, v21, v21 row_ror:1 row_mask:0xf bank_mask:0xf
        v_rcp_f32 v21, v21
        v_mul_f32 v32, v32, v21
        v_mul_f32 v33, v33, v21
        v_cvt_pk_bf16_f32 v32, v32, v32
        v_cvt_pk_bf16_f32 v33, v33, v33
        ''')
        issued = st['V']; nwo = st['W']
        for t in range(32):
            A = 20 + 4 * (t & 1)
            for r in range(4):
                a(f'v_and_b32_dpp v{A+r}, v{32 + (t >> 4)}, v{8+r} row_newbcast:{bitrev4(t & 15)} row_mask:0xf bank_mask:0xf')
            wait_for(f'V{t}')
            a(f'v_mfma_f32_16x16x32_bf16 v[16:19], v[{A}:{A+3}], v[{KV(t % NV)}:{KV(t % NV)+3}], {"0" if t == 0 else "v[16:19]"}')
            while t + (WV if t < self.wv_sw else self.WV2) >= issued and issued < 32:
                ld(issued, issued % NV, 's[52:55]', f'V{issued}'); issued += 1
            if t >= self.wo_start:
                for _ in range(self.wo_per):
                    if nwo < 20: ldwo(nwo); nwo += 1
            if t == self.prog_t: self.signal(C_PROG)
            if t == self.progw_t: self.signal(C_PROGW)
            if t == self.k2_t: self.signal(C_K2)
            if t == 28:
                a(f'''
                v_lshlrev_b32 v7, 4, v2
                v_and_b32 v3, 15, v2
                v_lshrrev_b32 v4, 4, v2
                v_lshlrev_b32 v5, 5, v3
                v_lshl_add_u32 v5, v4, 4, v5          ; (8j+4s')*4
                s_lshl_b32 s85, s15, 9
                s_add_u32 s85, s85, {L_OP}
                v_add_u32 v6, s85, v5
                s_mul_i32 s85, s15, 2560
                s_add_u32 s85, s85, {L_WP}
                v_add_u32 v5, s85, v5
                s_lshl_b32 s85, s15, 6
                s_add_u32 s85, s85, {L_OP}
                v_lshl_add_u32 v4, v4, 4, s85
                v_add_u32 v35, {L_WP}, v7
                v_lshlrev_b32 v12, 3, v2
                v_add_u32 v36, {L_WP}, v12
                s_mul_i32 s87, s2, 2560
                s_add_u32 s87, s87, {WS_P}
                ''')
        assert nwo == 20
        a(f'''
        s_mov_b32 exec_hi, 0
        ds_write_b128 v6, v[16:19]
        s_mov_b64 exec, -1
        ''')
        self.stamp(5)
        self.signal(C_PV)
        self.lds_wait(C_PV, 8)
        for w in range(8):
            a(f'ds_read_b128 v[{40+4*w}:{43+4*w}], v4 offset:{512*w}')
        a('s_waitcnt lgkmcnt(0)')
        self.sum_partials(40, [40 + 4 * i for i in range(8)])
        for r in range(4): a(f'v_cvt_pk_bf16_f32 v{40+r}, v{40+r}, v{40+r}')
        for tp in range(4):
            for r in range(4): a(f'v_and_b32 v{44+4*tp+r}, v{40+tp}, v{8+r}')
        a('s_waitcnt vmcnt(0)')
        self.stamp(6)
        for tp in range(4):
            for c in range(5):
                d = 60 + 4 * c; b = KV(NV + 5 * tp + c)
                a(f'v_mfma_f32_16x16x32_bf16 v[{d}:{d+3}], v[{44+4*tp}:{47+4*tp}], v[{b}:{b+3}], {"0" if tp == 0 else "v[%d:%d]" % (d, d+3)}')
        a('s_mov_b32 exec_hi, 0')
        for c in range(5): a(f'ds_write_b128 v5, v[{60+4*c}:{63+4*c}] offset:{512*c}')
        a('s_mov_b64 exec, -1')
        self.arrive(C_WO, 7, 'L_stream_end')
        self.stamp(7)
        for w in range(8):
            b = 40 + 10 * w
            a(f'ds_read_b128 v[{b}:{b+3}], v35 offset:{2560*w}')
            a(f'ds_read_b128 v[{b+4}:{b+7}], v35 offset:{2560*w + 1024}')
            a(f'ds_read_b64 v[{b+8}:{b+9}], v36 offset:{2560*w + 2048}')
            if w == 3: a('s_waitcnt lgkmcnt(0)')
        def P(r, i): return f'v[{r+2*i}:{r+2*i+1}]'
        for x, y in ((40, 50), (60, 70), (40, 60)):
            for i in range(5): a(f'v_pk_add_f32 {P(x,i)}, {P(x,i)}, {P(y,i)}')
        a('s_waitcnt lgkmcnt(0)')
        for x, y in ((80, 90), (100, 110), (80, 100), (40, 80)):
            for i in range(5): a(f'v_pk_add_f32 {P(x,i)}, {P(x,i)}, {P(y,i)}')
        self.sanitize(range(40, 50))
        a(f'''
        buffer_store_dwordx4 v[40:43], v7, s[44:47], s87 offen sc1
        buffer_store_dwordx4 v[44:47], v7, s[44:47], s87 offen offset:1024 sc1
        buffer_store_dwordx2 v[48:49], v12, s[44:47], s87 offen offset:2048 sc1
        ''')
        self.signal(C_DONE)
        a('L_stream_end:')
        self.stamp(10)
        self.stamp_flush()
        self.diag_end()
        a('L_end:\ns_endpgm\nL_code_end:')

    def build(self):
        self.prologue(); self.control(); self.stream()
        kn = NAME + '_kernel'
        body = '\n'.join(fix_hazards(self.a.l)) + '\n'
        hdr = open('cdna_kernels/' + NAME + '.s.ref').read().split('; Override launch')[0]
        return hdr + header([f'; @launch grid=(256,1,1) block=(768,1,1) lds={LDS_SIZE}']) + kernel_start(kn) + body + '.section .rodata,"a"\n' + descriptor(kn, vgpr=168, sgpr=102, accum=168)

if __name__ == '__main__':
    import argparse
    from collections import Counter
    rs = [role_of(w) for w in range(256)]
    for r, n in ((R_G1, 20), (R_DOWN, 40), (R_FFN, 54), (R_Q, 64), (R_MOD, 40), (R_RED, 8)):
        assert sorted(i for rr, i in rs if rr == r) == list(range(n)), r
    ap = argparse.ArgumentParser()
    ap.add_argument('-o', default='k.s'); ap.add_argument('--stamp', action='store_true')
    for p, d in (('WK', 3), ('WV', 3), ('rot', 3), ('rotw', 1), ('qpos', 25), ('prog_t', 22), ('progw_t', -1), ('WD', 20), ('wo_start', 0), ('wo_per', 1), ('sdelay', 0), ('WK0', 2), ('wk_sw', 16), ('k2_t', -1), ('WV2', 6), ('wv_sw', 16), ('hold', 1), ('pf', 1), ('WKL', 4), ('wkl_sw', 6), ('lagmask', 0x32), ('pfb', 1), ('cpf', 1), ('diag_until', 0), ('diag_cls', -1), ('diag_idx', -1), ('nEf', 8), ('nEd', 6), ('late', 0), ('WDM', 20), ('k2_n', 8)):
        ap.add_argument('--' + p, type=int, default=d)
    ap.add_argument('--pre', default='V,V,V,V,V,V,V,V,W')
    args = ap.parse_args()
    kw = dict(vars(args)); o = kw.pop('o')
    open(o, 'w').write(G(**kw).build())
```

```python
import sys
from asmlib import *
import gen as G1mod
from gen import bitrev4, LOG2E, SPIN_LIMIT

WS_E = 0
WS_H1 = 0x1000
WS_Q = 0x8000
SB2 = 0x28000
WS_H2 = SB2; WS_X1 = SB2 + 0x3000; WS_HID = SB2 + 0x6000; WS_MODO = SB2 + 0xD000
WS_P = 0x50000
WS_STAMP = 0x100000
WS_SIZE = 0x200000
LW = 0; L_OP = 0x14000; L_WP = 0x15000; LM = 0x1A000; LDS_SIZE = 0x1B000
C_A, C_SM, C_PV, C_WO, C_QOK, C_PROG, C_PROGW, C_GO, C_DONE, C_K2, C_ACT, C_PF, C_PF2 = [4 * i for i in range(13)]
L_STAT = 0x40; L_SM = 0x100
L_ACT = L_WP; ACTS = 1344
R_G1, R_DOWN, R_FFN, R_Q, R_MOD, R_RED = 1, 2, 3, 4, 5, 6

def role_of(wg):
    x = wg & 7; u = wg >> 3
    if u < 2: return R_G1, 2 * x + u
    if u < 6:
        k = u - 2
        e = EXTRA.get((x, k >> 1))
        if e is None: return 0, 0
        return e[0], e[0] * 16 + 2 * e[1] + (k & 1)
    if u < 14: return R_Q, (x + 8 * ((u - 6) >> 1)) * 2 + ((u - 6) & 1)
    if u < 19: return R_MOD, 5 * x + u - 14
    if u < 25: return R_FFN, 6 * x + u - 19
    if u < 29: return R_DOWN, 4 * x + u - 25
    if u == 29: return R_RED, x
    return 0, 0
EXTRA = {(0, 0): (R_DOWN, 0), (0, 1): (R_DOWN, 1), (2, 0): (R_DOWN, 2), (2, 1): (R_DOWN, 3),
         (4, 0): (R_FFN, 0), (4, 1): (R_FFN, 1), (6, 0): (R_G1, 0), (6, 1): (R_FFN, 2), (1, 0): (R_G1, 1)}

class G(G1mod.G):
    def __init__(self, stamp=False, WK=3, WV=3, rot=3, rotw=1, qpos=25, prog_t=22, progw_t=-1, WD=4, wo_start=0, wo_per=1, sdelay=0, WK0=2, wk_sw=16, k2_t=6, WV2=6, wv_sw=16, hold=1, pf=1, WKL=6, wkl_sw=6, lagmask=0x72, diag_xcc=0, diag_until=0, diag_cls=-1, diag_idx=-1, cpf=1, pfb=1, nEf=8, nEd=6, late=0, WDM=2, k2_n=8, pre='V,V,VV,VW,VWW,VWW,VVW,VWW,VVWW'):
        self.sdelay = sdelay; self.WK0 = WK0; self.wk_sw = wk_sw; self.k2_t = k2_t; self.WV2 = WV2; self.wv_sw = wv_sw; self.hold = hold; self.pf = pf; self.late = late; self.pfb = pfb; self.cpf = cpf; self.diag_until = diag_until; self.diag_xcc = diag_xcc; self.diag_cls = diag_cls; self.diag_idx = diag_idx; self.cur_cls = -1; self.nEf = nEf; self.nEd = nEd; self.WKL = WKL; self.wkl_sw = wkl_sw; self.lagmask = lagmask; self.WDM = WDM; self.k2_n = k2_n; self.pre = pre.split(',')
        self.a = Asm(); self.stamp_on = stamp
        self.WK = WK; self.WV = WV; self.rot = rot; self.rotw = rotw; self.qpos = qpos; self.prog_t = prog_t
        self.progw_t = progw_t; self.WD = WD; self.wo_start = wo_start; self.wo_per = wo_per

    def stamp(self, i):
        if self.diag_until and i == self.diag_idx and (self.cur_cls == self.diag_cls or (self.cur_cls == 99 and self.diag_cls > 0)):
            if self.cur_cls == 99:
                L = self.a.label('L_ds')
                self.a(f's_cmp_lg_u32 s7, {self.diag_cls}\ns_cbranch_scc1 {L}\ns_memrealtime s[100:101]\ns_waitcnt lgkmcnt(0)\n{L}:')
            else:
                self.a('s_memrealtime s[100:101]\ns_waitcnt lgkmcnt(0)')
        super().stamp(i)

    def diag_end(self):
        if self.diag_until:
            L = self.a.label('L_diag')
            if self.diag_xcc:
                self.a('s_getreg_b32 s97, hwreg(HW_REG_XCC_ID)\ns_sub_u32 s97, s97, s2\ns_and_b32 s97, s97, 7')
                if self.diag_xcc == 2: self.a('s_sub_u32 s97, 7, s97')
                self.a('s_mul_i32 s97, s97, 400\ns_add_u32 s100, s100, s97')
            self.a(f'{L}:\ns_sleep 1\ns_memrealtime s[98:99]\ns_waitcnt lgkmcnt(0)\ns_sub_u32 s98, s98, s100\ns_cmp_lt_i32 s98, {self.diag_until*100}\ns_cbranch_scc1 {L}')

    def tag_from(self, v):
        self.a(f'''
        s_mov_b32 s85, 1664525
        v_mul_lo_u32 v{v}, s85, v{v}
        v_add_u32 v{v}, 1013904223, v{v}
        v_readfirstlane_b32 s94, v{v}
        ''')

    def poll(self, name, loads, check, sleep, tagged=False):
        a = self.a
        a(f's_mov_b32 s89, {SPIN_LIMIT}\nL_{name}_poll:')
        for l in loads: a(l)
        a('s_waitcnt vmcnt(0)')
        if tagged:
            for i in range(0, len(check), 2):
                a(f'v_xor_b32 v36, s94, v{check[i]}\nv_xor_b32 v37, s94, v{check[i+1]}')
                a('v_or_b32 v38, v36, v37' if i == 0 else 'v_or3_b32 v38, v38, v36, v37')
            a('v_cmp_ne_u32 vcc, 0, v38')
        else:
            c = list(check)
            if len(c) % 2 == 0:
                a(f'v_max_u32 v38, v{c[0]}, v{c[1]}'); c = c[2:]
            else:
                a(f'v_max3_u32 v38, v{c[0]}, v{c[1]}, v{c[2]}'); c = c[3:]
            for i in range(0, len(c), 2): a(f'v_max3_u32 v38, v38, v{c[i]}, v{c[i+1]}')
            a('v_cmp_eq_u32 vcc, -1, v38')
        a(f'''
        s_cbranch_vccz L_{name}_ok
        {"s_sleep %d" % sleep if sleep else ""}
        s_sub_u32 s89, s89, 1
        s_cbranch_scc0 L_{name}_poll
        L_{name}_ok:
        ''')

    def prologue(self):
        a = self.a
        a(f'''
        s_cmp_ge_u32 s2, 256
        s_cbranch_scc1 L_end
        {'s_memrealtime s[100:101]' if self.diag_until else ''}
        s_getpc_b64 s[86:87]
        L_pc0:
        v_lshlrev_b32 v3, 7, v0
        v_min_u32 v3, L_code_end-L_pc0-4, v3
        {'global_load_dword v161, v3, s[86:87]' if self.cpf else ''}
        s_load_dwordx16 s[16:31], s[0:1], 0
        s_load_dwordx8 s[32:39], s[0:1], 64
        s_load_dwordx4 s[40:43], s[0:1], 96
        v_lshrrev_b32 v1, 6, v0
        v_and_b32 v2, 63, v0
        v_readfirstlane_b32 s3, v1
        v_mov_b32 v13, {LM}
        s_mov_b32 s84, 0xffff0000
        v_mov_b32 v15, 0
        v_lshl_add_u32 v14, v2, 2, v13
        ds_write_b32 v14, v15
        s_lshr_b32 s13, s2, 5            ; b
        s_and_b32 s14, s2, 31            ; h
        v_lshlrev_b32 v7, 4, v2          ; lane*16
        ''')
        self.decode()
        a('''
        s_waitcnt lgkmcnt(0)
        s_barrier
        ''')
        self.srd(44, 42, WS_SIZE)
        self.stamp(0)
        a(f'''
        s_cmp_lt_u32 s3, 4
        s_cbranch_scc0 L_stream
        ''')

    def decode(self):
        a = self.a
        ext = 0
        for (x, kh), (r, idx) in EXTRA.items(): ext |= (r | idx << 2) << (4 * (2 * x + kh))
        a(f'''
        s_and_b32 s4, s2, 7              ; x
        s_lshr_b32 s5, s2, 3             ; u
        s_mov_b32 s7, 0
        s_mov_b32 s8, 0
        ''')
        for lo, hi, role, mul in ((0, 2, R_G1, 2), (14, 19, R_MOD, 5), (19, 25, R_FFN, 6), (25, 29, R_DOWN, 4), (29, 30, R_RED, 1)):
            a(f'''
            s_sub_u32 s9, s5, {lo}
            s_mul_i32 s10, s4, {mul}
            s_add_u32 s10, s10, s9
            s_cmp_lt_u32 s9, {hi-lo}
            s_cselect_b32 s7, {role}, s7
            s_cselect_b32 s8, s10, s8
            ''')
        a(f'''
        s_sub_u32 s9, s5, 6              ; Q: (x + 8*(k>>1))*2 + (k&1)
        s_lshr_b32 s10, s9, 1
        s_lshl_b32 s10, s10, 3
        s_add_u32 s10, s10, s4
        s_lshl_b32 s10, s10, 1
        s_and_b32 s11, s9, 1
        s_add_u32 s10, s10, s11
        s_cmp_lt_u32 s9, 8
        s_cselect_b32 s7, {R_Q}, s7
        s_cselect_b32 s8, s10, s8
        s_sub_u32 s9, s5, 2              ; extras
        s_lshr_b32 s10, s9, 1
        s_and_b32 s10, s10, 1
        s_lshl_b32 s11, s4, 1
        s_add_u32 s10, s10, s11
        s_lshl_b32 s10, s10, 2
        s_mov_b32 s86, {ext & 0xffffffff}
        s_mov_b32 s87, {ext >> 32}
        s_lshr_b64 s[86:87], s[86:87], s10
        s_and_b32 s10, s86, 3            ; role
        s_bfe_u32 s11, s86, 0x20002      ; idx
        s_lshl_b32 s11, s11, 1
        s_lshl_b32 s12, s10, 4
        s_add_u32 s11, s11, s12
        s_and_b32 s12, s9, 1
        s_add_u32 s11, s11, s12
        s_cmp_lt_u32 s9, 4
        s_cselect_b32 s7, s10, s7
        s_cselect_b32 s8, s11, s8
        ''')

    def pfld(self, v, srd, so): self.a(f'buffer_load_dword v160, v{v}, {srd}, {so} offen nt')

    def prefetch(self):
        a = self.a
        self.srd(64, 36, 640 * 7680)
        a(f'''
        s_sub_u32 s90, s5, 14
        s_cmp_ge_u32 s90, 16
        s_cbranch_scc1 L_pf_done
        s_lshl_b32 s92, s4, 7
        s_cmp_lt_u32 s3, 2
        s_cbranch_scc1 L_pfA
        s_cmp_eq_u32 s4, 6
        s_cselect_b32 s92, 1024, 0
        s_cmp_eq_u32 s4, 1
        s_cselect_b32 s92, 1152, s92
        s_cmp_eq_u32 s92, 0
        s_cbranch_scc1 L_pf_done
        L_pfA:
        s_lshl_b32 s90, s90, 1
        s_and_b32 s91, s3, 1
        s_add_u32 s90, s90, s91
        s_mul_i32 s91, s90, {20*7680}
        s_add_u32 s92, s92, s91
        v_lshrrev_b32 v16, 1, v2
        v_min_u32 v16, 19, v16
        v_mul_u32_u24 v16, 7680, v16
        v_and_b32 v17, 1, v2
        v_mul_u32_u24 v17, 1280, v17
        v_add_u32 v16, v16, v17
        ''')
        self.pfld(16, 's[64:67]', 's92')
        a('L_pf_done:')

    def prefetch_b(self, sfx):
        a = self.a
        a(f'''
        s_cmp_lt_u32 s3, 2
        s_cbranch_scc1 L_pb_done{sfx}
        s_mul_i32 s90, s5, 20
        v_lshrrev_b32 v16, 3, v2
        s_cmp_eq_u32 s3, 3
        s_cbranch_scc1 L_pb3{sfx}
        ''')
        self.srd(64, 22, 640 * 8192)
        a(f'''
        v_bfe_u32 v17, v2, 1, 2
        v_lshlrev_b32 v17, 11, v17
        v_and_b32 v18, 1, v2
        v_lshl_add_u32 v17, v18, 7, v17
        v_lshl_add_u32 v18, v16, 13, v17
        v_and_b32 v16, 3, v16
        v_lshl_add_u32 v19, v16, 13, v17
        s_lshl_b32 s91, s90, 13
        s_lshl_b32 s92, s4, 8
        s_add_u32 s92, s92, s91
        ''')
        self.pfld(18, 's[64:67]', 's92'); a(f's_add_u32 s92, s92, {8*8192}')
        self.pfld(18, 's[64:67]', 's92'); a(f's_add_u32 s92, s92, {8*8192}')
        self.pfld(19, 's[64:67]', 's92')
        if sfx == '':
            a('s_waitcnt vmcnt(0)')
            self.signal(C_PF)
        a(f's_branch L_pb_done{sfx}\nL_pb3{sfx}:')
        self.srd(64, 36, 640 * 7680)
        a(f'''
        v_and_b32 v17, 7, v2
        v_min_u32 v17, 4, v17
        v_lshlrev_b32 v17, 7, v17
        v_mul_u32_u24 v18, 7680, v16
        v_add_u32 v18, v18, v17
        v_and_b32 v16, 3, v16
        v_mul_u32_u24 v19, 7680, v16
        v_add_u32 v19, v19, v17
        s_mul_i32 s91, s90, 7680
        s_mul_i32 s92, s4, 640
        s_add_u32 s92, s92, 2560
        s_add_u32 s92, s92, s91
        ''')
        if sfx == '': self.lds_wait(C_PF, 1, sleep=2)
        self.pfld(18, 's[64:67]', 's92'); a(f's_add_u32 s92, s92, {8*7680}')
        self.pfld(18, 's[64:67]', 's92'); a(f's_add_u32 s92, s92, {8*7680}')
        self.pfld(19, 's[64:67]', 's92')
        if sfx == '':
            a(f's_cmp_lg_u32 s7, {R_MOD}\ns_cbranch_scc1 L_pb_done{sfx}\ns_waitcnt vmcnt(0)')
            self.signal(C_PF2)
        a(f'L_pb_done{sfx}:')

    def prefetch_late(self, sfx):
        a = self.a
        a(f's_cmp_lg_u32 s3, 0\ns_cbranch_scc1 L_pl1{sfx}')
        self.srd(68, 32, 1728 * 1280)
        a(f'''
        v_min_u32 v16, 53, v2
        v_mul_u32_u24 v16, 1280, v16
        s_mul_i32 s91, s5, {54*1280}
        s_lshl_b32 s92, s4, 7
        s_add_u32 s92, s92, s91
        s_lshl_b32 s93, s4, 6
        s_add_u32 s93, s93, 1024
        s_add_u32 s93, s93, s91
        ''')
        self.lds_wait(C_PROGW if self.progw_t >= 0 else C_DONE, 1, sleep=4)
        self.pfld(16, 's[68:71]', 's92')
        a(f'''
        s_and_b32 s92, s4, 5
        s_cmp_lg_u32 s92, 0
        s_cbranch_scc1 L_pl_done{sfx}
        ''')
        self.pfld(16, 's[68:71]', 's93')
        a(f's_branch L_pl_done{sfx}\nL_pl1{sfx}:')
        self.srd(64, 28, 640 * 3456); self.srd(68, 30, 640 * 3456)
        a(f'''
        s_mul_i32 s92, s4, 3
        s_mov_b32 s91, s92
        s_mov_b32 s93, s92
        s_cmp_eq_u32 s4, 4
        s_cselect_b32 s91, 24, s91
        s_cselect_b32 s93, 25, s93
        s_cmp_eq_u32 s4, 6
        s_cselect_b32 s91, 26, s91
        v_and_b32 v17, 7, v2
        v_min_u32 v18, 2, v17
        v_add_u32 v18, s92, v18
        v_mov_b32 v19, s91
        v_cmp_eq_u32 vcc, 3, v17
        v_cndmask_b32 v18, v18, v19, vcc
        v_mov_b32 v19, s93
        v_cmp_eq_u32 vcc, 4, v17
        v_cndmask_b32 v18, v18, v19, vcc
        v_lshlrev_b32 v17, 7, v18
        v_lshrrev_b32 v16, 3, v2
        s_lshl_b32 s92, s3, 3
        s_sub_u32 s92, s92, 8
        v_add_u32 v16, s92, v16
        v_min_u32 v16, 19, v16
        v_mul_u32_u24 v18, 3456, v16
        v_add_u32 v18, v18, v17
        s_mul_i32 s92, s5, {20*3456}
        ''')
        self.lds_wait(C_PROGW if self.progw_t >= 0 else C_DONE, 1, sleep=4)
        self.pfld(18, 's[64:67]', 's92'); self.pfld(18, 's[68:71]', 's92')
        a(f'L_pl_done{sfx}:')

    def dma640_setup(self):
        a = self.a
        a(f'''
        v_lshrrev_b32 v16, 3, v2
        s_mul_i32 s85, s3, 160
        v_add_u32 v16, s85, v16
        v_mul_lo_u32 v16, s52, v16
        v_and_b32 v17, 3, v2
        v_lshl_add_u32 v16, v17, 4, v16
        v_mov_b32 v17, 0
        v_mov_b32 v18, s48
        v_mov_b32 v19, s49
        v_mov_b32 v20, s50
        v_mov_b32 v21, s51
        v_and_b32 v22, 4, v2
        v_cmp_ne_u32 vcc, 0, v22
        v_cndmask_b32 v18, v18, v20, vcc
        v_cndmask_b32 v19, v19, v21, vcc
        v_lshl_add_u64 v[4:5], v[16:17], 0, v[18:19]
        s_lshl_b32 s54, s52, 3
        s_mov_b32 s55, 0
        ''')
    def dma640_issue(self, lo, hi, WD=99):
        a = self.a
        for n in range(lo, hi):
            a(f's_add_u32 m0, s87, {LW + 1024*n}')
            if n >= WD: a(f's_waitcnt vmcnt({WD-1})')
            a(f'global_load_lds_dwordx4 v[4:5], off nt')
            if n < 19: a('v_lshl_add_u64 v[4:5], v[4:5], 0, s[54:55]')
    def dma640(self, WD):
        self.dma640_setup(); self.dma640_issue(0, 20, WD)

    def wfrags640(self, younger=None):
        a = self.a
        for n in range(5):
            if younger is not None: a(f's_waitcnt vmcnt({younger + 4 * (4 - n)})')
            for T in range(4):
                b = 40 + 16 * n + 4 * T
                a(f'ds_read_b64_tr_b16 v[{b}:{b+1}], v9 offset:{LW + 4096*n + 32*T}')
                a(f'ds_read_b64_tr_b16 v[{b+2}:{b+3}], v9 offset:{LW + 4096*n + 32*T + 512}')
            a('s_waitcnt lgkmcnt(0)')

    def mfma640(self, skip):
        a = self.a
        for n in range(5):
            for T in range(4):
                b = 40 + 16 * n + 4 * T; d = 16 + 4 * T
                a(f'v_mfma_f32_16x16x32_bf16 v[{d}:{d+3}], v[{b}:{b+3}], v[{120+4*n}:{123+4*n}], {"0" if n == 0 else "v[%d:%d]" % (d, d+3)}')
        for T in range(4):
            a(f'ds_write_b128 v10, v[{16+4*T}:{19+4*T}] offset:{LW + 1024*T}')
        self.arrive(C_A, 3, skip)
        for w in range(4):
            a(f'ds_read_b128 v[{40+4*w}:{43+4*w}], v11 offset:{LW + 20480*w}')
            a(f'ds_read_b128 v[{56+4*w}:{59+4*w}], v11 offset:{LW + 20480*w + 2048}')

    def red640(self):
        self.a('s_waitcnt lgkmcnt(0)')
        self.sum_partials(40, [40, 44, 48, 52]); self.sum_partials(56, [56, 60, 64, 68])

    def silu(self, ns=range(5)):
        a = self.a
        a(f's_mov_b32 s85, {LOG2E | 0x80000000}')
        for n in ns:
            b = 120 + 4 * n
            for i in range(4): self.unpack(16 + 2 * i, b + i)
            for i in range(8): a(f'v_mul_f32 v{24+i}, s85, v{16+i}')
            for i in range(8): a(f'v_exp_f32 v{24+i}, v{24+i}')
            for i in range(8): a(f'v_add_f32 v{24+i}, 1.0, v{24+i}')
            for i in range(8): a(f'v_rcp_f32 v{24+i}, v{24+i}')
            for i in range(8): a(f'v_mul_f32 v{16+i}, v{16+i}, v{24+i}')
            for i in range(4): a(f'v_cvt_pk_bf16_f32 v{b+i}, v{16+2*i}, v{17+2*i}')

    def add64(self, d, base, off):
        self.a(f's_add_u32 s{d}, s{base}, {off}\ns_addc_u32 s{d+1}, s{base+1}, 0')

    def control(self):
        a = self.a
        self.cur_cls = 99
        a('s_setprio 3')
        if self.pf: self.prefetch()
        if self.pfb:
            a(f's_cmp_eq_u32 s7, {R_G1}\ns_cbranch_scc1 L_pb_done')
            self.prefetch_b('')
        a(f'''
        s_cmp_eq_u32 s7, 0
        s_cbranch_scc1 L_ctrl_end
        v_mov_b32 v3, 0
        buffer_load_dword v167, v3, s[44:47], 0 offen sc1
        s_mul_i32 s87, s3, 20480
        v_lshrrev_b32 v16, 4, v2         ; s
        v_bfe_u32 v17, v2, 2, 2          ; r4
        v_and_b32 v18, 3, v2             ; c
        v_lshl_add_u32 v19, v16, 3, v17  ; 8s+r4
        v_lshlrev_b32 v9, 7, v19
        v_lshl_add_u32 v9, v18, 3, v9
        v_add_u32 v9, s87, v9
        v_add_u32 v10, s87, v7
        v_and_b32 v17, 7, v2             ; b
        v_bfe_u32 v18, v2, 3, 1          ; t
        v_lshlrev_b32 v11, 8, v16
        v_lshl_add_u32 v11, v17, 4, v11
        v_lshl_add_u32 v11, v18, 10, v11
        v_mul_u32_u24 v19, 1280, v17
        v_lshl_add_u32 v6, v16, 4, v19
        v_lshlrev_b32 v8, 5, v18
        v_lshl_add_u32 v8, v16, 3, v8    ; (16t+4s')*2 bytes
        v_lshlrev_b32 v12, 2, v2         ; lane*4
        s_cmp_eq_u32 s7, {R_Q}
        s_cbranch_scc1 L_role_q
        s_cmp_eq_u32 s7, {R_FFN}
        s_cbranch_scc1 L_role_ffn
        s_cmp_eq_u32 s7, {R_DOWN}
        s_cbranch_scc1 L_role_down
        s_cmp_eq_u32 s7, {R_RED}
        s_cbranch_scc1 L_role_red
        ''')
        a(f'''
        s_movk_i32 s52, 7680
        s_cmp_eq_u32 s7, {R_G1}
        s_cbranch_scc1 L_role_g1
        ''')
        self.srd(56, 34, 10240)
        a('s_mul_i32 s85, s3, 320')
        for n in range(5):
            a(f'buffer_load_dwordx4 v[{120+4*n}:{123+4*n}], v6, s[56:59], s85 offen offset:{64*n}')
        a(f'''
        s_lshl_b32 s9, s8, 7
        s_add_u32 s9, s9, 2560
        s_add_u32 s48, s36, s9
        s_addc_u32 s49, s37, 0
        s_add_u32 s50, s48, 64
        s_addc_u32 s51, s49, 0
        s_waitcnt vmcnt(0)
        ''')
        self.silu()
        if self.pfb: self.lds_wait(C_PF2, 1, sleep=2)
        self.dma640(self.WDM)
        a('s_waitcnt vmcnt(0)')
        self.stamp(2)
        self.wfrags640()
        self.mfma640('L_ctrl_end')
        a(f'''
        v_and_b32 v22, 7, v2
        v_mul_u32_u24 v22, 5120, v22
        v_add_u32 v22, v22, v8
        s_lshl_b32 s90, s8, 7
        s_add_u32 s90, s90, {WS_MODO}
        ''')
        self.red640()
        self.pack4(24, 40); self.pack4(26, 56)
        self.sanitize([24, 25, 26, 27])
        self.lds_wait(C_QOK, 1, sleep=8)
        a(f'''
        buffer_store_dwordx2 v[24:25], v22, s[44:47], s90 offen sc1
        buffer_store_dwordx2 v[26:27], v22, s[44:47], s90 offen offset:64 sc1
        s_branch L_ctrl_end
        L_role_g1:
        s_lshl_b32 s9, s8, 6
        s_add_u32 s48, s36, s9
        s_addc_u32 s49, s37, 0
        s_add_u32 s50, s48, 1280
        s_addc_u32 s51, s49, 0
        v_add_u32 v34, v19, v8
        ''')
        self.dma640(99)
        self.srd(60, 16, 10240)
        a(f'''
        buffer_load_dwordx2 v[150:151], v34, s[60:63], s9 offen
        s_lshl_b32 s85, s8, 2
        s_add_u32 s85, s85, s3
        s_lshl_b32 s85, s85, 11
        s_add_u32 s85, s85, {SB2}
        v_mov_b32 v152, -1
        v_mov_b32 v153, -1
        v_mov_b32 v154, -1
        v_mov_b32 v155, -1
        buffer_store_dwordx4 v[152:155], v7, s[44:47], s85 offen sc1
        buffer_store_dwordx4 v[152:155], v7, s[44:47], s85 offen offset:1024 sc1
        v_and_b32 v16, 7, v2
        v_mul_u32_u24 v16, {ACTS}, v16
        v_lshrrev_b32 v17, 4, v2
        v_lshl_add_u32 v16, v17, 4, v16
        s_mul_i32 s85, s3, 320
        s_add_u32 s85, s85, {L_ACT}
        v_add_u32 v35, s85, v16
        ''')
        self.signal(C_GO)
        self.stamp(1)
        self.lds_wait(C_ACT, 8)
        for n in range(5): a(f'ds_read_b128 v[{120+4*n}:{123+4*n}], v35 offset:{64*n}')
        self.stamp(3)
        self.wfrags640(younger=3)
        self.tag_from(167)
        a('s_waitcnt vmcnt(0)')
        self.stamp(2)
        self.mfma640('L_ctrl_end')
        a(f'''
        v_and_b32 v22, 7, v2
        v_lshl_add_u32 v23, v22, 3, v13
        ds_read_b64 v[36:37], v23 offset:{L_STAT}
        ''')
        self.red640()
        self.pack4(24, 40); self.pack4(26, 56)
        self.unpack4(56, 26)
        a('v_pk_add_f32 v[56:57], v[56:57], 1.0 op_sel_hi:[1,0]\nv_pk_add_f32 v[58:59], v[58:59], 1.0 op_sel_hi:[1,0]')
        self.round4(56, 26)
        self.unpack4(40, 24)
        self.unpack4(44, 150)
        for i in range(4): a(f'v_sub_f32 v{44+i}, v{44+i}, v36')
        self.round4(44, 28)
        for i in range(4): a(f'v_mul_f32 v{44+i}, v{44+i}, v37')
        self.round4(44, 28)
        a('v_pk_mul_f32 v[44:45], v[44:45], v[56:57]\nv_pk_mul_f32 v[46:47], v[46:47], v[58:59]')
        self.round4(44, 28)
        a('v_pk_add_f32 v[44:45], v[44:45], v[40:41]\nv_pk_add_f32 v[46:47], v[46:47], v[42:43]')
        a(f'''
        v_cvt_pk_bf16_f32 v28, v44, v45
        v_cvt_pk_bf16_f32 v30, v46, v47
        v_mov_b32 v29, s94
        v_mov_b32 v31, s94
        v_lshlrev_b32 v22, 4, v22               ; b*16
        v_lshl_add_u32 v22, v8, 4, v22          ; + (16t+4s')*32 = t*512 + s'*128
        s_lshl_b32 s85, s8, 10
        s_add_u32 s85, s85, {WS_H1}
        buffer_store_dwordx4 v[28:31], v22, s[44:47], s85 offen sc1
        s_branch L_ctrl_end
        ''')
        a(f'''
        L_role_q:
        s_lshl_b32 s9, s8, 7
        s_add_u32 s48, s22, s9
        s_addc_u32 s49, s23, 0
        s_add_u32 s50, s48, 64
        s_addc_u32 s51, s49, 0
        s_movk_i32 s52, 8192
        ''')
        if self.pfb: self.lds_wait(C_PF, 1, sleep=2)
        self.dma640(99)
        a(f'''
        s_and_b32 s85, s8, 1
        s_lshl_b32 s85, s85, 2
        s_add_u32 s85, s85, s3
        s_lshl_b32 s85, s85, 5
        s_lshr_b32 s86, s8, 1
        s_add_u32 s85, s85, s86
        s_mul_i32 s85, s85, 2560
        s_add_u32 s85, s85, {WS_P}
        v_mov_b32 v152, -1
        v_mov_b32 v153, -1
        v_mov_b32 v154, -1
        v_mov_b32 v155, -1
        v_lshlrev_b32 v19, 3, v2
        buffer_store_dwordx4 v[152:155], v7, s[44:47], s85 offen sc1
        buffer_store_dwordx4 v[152:155], v7, s[44:47], s85 offen offset:1024 sc1
        buffer_store_dwordx2 v[152:153], v19, s[44:47], s85 offen offset:2048 sc1
        ''')
        self.signal(C_GO)
        a('s_waitcnt vmcnt(0)')
        self.stamp(2)
        self.tag_from(167)
        self.wfrags640()
        a(f'''
        s_mul_i32 s90, s3, 5120
        s_add_u32 s90, s90, {WS_H1}
        s_add_u32 s91, s90, 4096
        ''')
        self.stamp(3)
        loads = [f'buffer_load_dwordx4 v[{120+4*n}:{123+4*n}], v7, s[44:47], s{90 if n < 4 else 91} offen offset:{1024*(n%4)} sc1' for n in range(5)]
        self.poll('h1', loads, [121 + 2 * i for i in range(10)], 4, tagged=True)
        self.stamp(4)
        for n in range(5):
            b = 120 + 4 * n
            a(f'v_mov_b32_dpp v{b+3}, v{b+2} row_ror:8 row_mask:0xf bank_mask:0xf')
            a(f'v_mov_b32 v{b+1}, v{b+2}')
            a(f'v_mov_b32_dpp v{b+2}, v{b} row_ror:8 row_mask:0xf bank_mask:0xf')
        self.mfma640('L_ctrl_end')
        a(f'''
        v_and_b32 v22, 7, v2
        v_lshlrev_b32 v22, 14, v22              ; b*32*512
        v_lshl_add_u32 v22, v8, 1, v22          ; + col*4
        s_lshl_b32 s85, s8, 8                   ; h*512 + half*256
        s_add_u32 s85, s85, {WS_Q}
        v_mov_b32 v29, s94
        v_mov_b32 v31, s94
        v_mov_b32 v33, s94
        v_mov_b32 v35, s94
        ''')
        self.red640()
        a(f'''
        v_cvt_pk_bf16_f32 v28, v40, v41
        v_cvt_pk_bf16_f32 v30, v42, v43
        v_cvt_pk_bf16_f32 v32, v56, v57
        v_cvt_pk_bf16_f32 v34, v58, v59
        buffer_store_dwordx4 v[28:31], v22, s[44:47], s85 offen sc1
        buffer_store_dwordx4 v[32:35], v22, s[44:47], s85 offen offset:128 sc1
        s_branch L_ctrl_end
        ''')
        a(f'''
        L_role_ffn:
        s_lshl_b32 s9, s8, 6
        s_add_u32 s48, s28, s9
        s_addc_u32 s49, s29, 0
        s_add_u32 s50, s30, s9
        s_addc_u32 s51, s31, 0
        s_movk_i32 s52, 3456
        ''')
        self.dma640_setup()
        self.dma640_issue(0, self.nEf, 1)
        self.lds_wait(C_DONE, 1, sleep=4)
        self.dma640_issue(self.nEf, 20)
        self.wfrags640(younger=0)
        self.stamp(2)
        a(f'''
        s_mul_i32 s90, s3, 320
        s_add_u32 s90, s90, {WS_H2}
        v_and_b32 v32, 7, v2
        v_lshlrev_b32 v32, 4, v32
        v_bfe_u32 v33, v2, 3, 1
        v_lshl_add_u32 v32, v33, 8, v32
        v_bfe_u32 v33, v2, 5, 1
        v_lshl_add_u32 v32, v33, 7, v32
        v_bfe_u32 v33, v2, 4, 1
        v_lshl_add_u32 v32, v33, 3, v32
        s_lshl_b32 s91, s8, 9
        s_add_u32 s91, s91, {WS_HID}
        ''')
        self.lds_wait(C_WO, 8, sleep=4)
        self.stamp(3)
        loads = [f'buffer_load_dwordx4 v[{120+4*n}:{123+4*n}], v6, s[44:47], s90 offen offset:{64*n} sc1' for n in range(5)]
        self.poll('h2', loads, list(range(120, 140)), 2)
        self.stamp(4)
        self.mfma640('L_ctrl_end')
        self.red640()
        self.round4(40, 28); self.round4(56, 30)
        for i in range(4):
            a(f'v_cmp_lt_f32 vcc, 0, v{40+i}\nv_cndmask_b32 v{20+i}, 0, 1.0, vcc')
        a('v_pk_mul_f32 v[40:41], v[40:41], v[20:21]\nv_pk_mul_f32 v[42:43], v[42:43], v[22:23]')
        a('v_pk_mul_f32 v[40:41], v[40:41], v[56:57]\nv_pk_mul_f32 v[42:43], v[42:43], v[58:59]')
        self.pack4(28, 40); self.sanitize([28, 29])
        a(f'''
        buffer_store_dwordx2 v[28:29], v32, s[44:47], s91 offen sc1
        s_branch L_ctrl_end
        ''')
        a('L_role_down:')
        self.srd(72, 32, 1728 * 1280); self.srd(80, 38, 10240)
        a(f'''
        s_add_u32 s76, s42, {WS_HID}
        s_addc_u32 s77, s43, 0
        s_mov_b32 s78, {27*1024}
        s_mov_b32 s79, 0x20000
        v_lshrrev_b32 v16, 1, v2
        v_mul_u32_u24 v4, 1280, v16
        v_and_b32 v16, 1, v2
        v_lshl_add_u32 v4, v16, 4, v4
        s_mul_i32 s85, s3, {7*64*1280}
        s_lshl_b32 s9, s8, 5
        s_add_u32 s85, s85, s9
        s_mul_i32 s87, s3, 14336
        ''')
        for n in range(14):
            if n == self.nEd: self.lds_wait(C_DONE, 1, sleep=4)
            a(f's_add_u32 m0, s87, {LW + 1024*n}')
            if n < self.nEd: a(f's_waitcnt vmcnt(0)')
            a(f'buffer_load_dwordx4 v4, s[72:75], s85 offen nt lds')
            a(f's_add_u32 s85, s85, {32*1280}')
        a(f'''
        v_lshrrev_b32 v16, 4, v2         ; s
        v_bfe_u32 v17, v2, 2, 2          ; r4
        v_lshl_add_u32 v19, v16, 3, v17
        v_lshlrev_b32 v9, 5, v19
        v_bfe_u32 v17, v2, 1, 1
        v_lshl_add_u32 v9, v17, 10, v9
        v_and_b32 v17, 1, v2
        v_lshl_add_u32 v9, v17, 3, v9
        v_add_u32 v9, s87, v9
        v_add_u32 v10, s87, v7
        v_and_b32 v17, 7, v2             ; b
        v_bfe_u32 v18, v2, 3, 1          ; a / half
        v_lshlrev_b32 v3, 7, v16
        v_lshl_add_u32 v3, v17, 4, v3
        v_lshl_add_u32 v3, v18, 9, v3
        s_mul_i32 s86, s3, 7168
        v_add_u32 v3, s86, v3
        v_and_b32 v16, 1, v16            ; s'
        v_lshlrev_b32 v11, 8, v16
        v_lshl_add_u32 v11, v17, 4, v11
        v_lshl_add_u32 v11, v18, 10, v11
        v_lshlrev_b32 v8, 4, v18
        v_lshl_add_u32 v8, v16, 3, v8    ; (8a+4s')*2
        v_mul_u32_u24 v5, 5120, v17
        v_add_u32 v5, v5, v8
        v_mul_u32_u24 v6, 1280, v17
        v_add_u32 v6, v6, v8
        s_add_u32 s90, s9, {WS_MODO + 3840}
        s_add_u32 s91, s9, {WS_X1}
        s_movk_i32 s92, 4096
        s_waitcnt vmcnt(0)
        ''')
        self.stamp(2)
        self.tag_from(167)
        for n in range(7):
            for ac in range(2):
                b = 40 + 8 * n + 4 * ac
                a(f'ds_read_b64_tr_b16 v[{b}:{b+1}], v9 offset:{LW + 2048*n + 16*ac}')
                a(f'ds_read_b64_tr_b16 v[{b+2}:{b+3}], v9 offset:{LW + 2048*n + 16*ac + 128}')
            if n % 2: a('s_waitcnt lgkmcnt(0)')
        self.lds_wait(C_WO, 8, sleep=4)
        self.poll('gb', ['buffer_load_dwordx2 v[32:33], v5, s[44:47], s90 offen sc1'], [32, 33], 4)
        self.unpack4(140, 32)
        self.stamp(3)
        self.poll('x1', ['buffer_load_dwordx2 v[32:33], v6, s[44:47], s91 offen sc1'], [32, 33], 4)
        self.unpack4(144, 32)
        self.stamp(5)
        loads = [f'buffer_load_dwordx4 v[{104+4*n}:{107+4*n}], v3, s[76:79], {"0" if n < 4 else "s92"} offen offset:{1024*(n%4)} sc1' for n in range(7)]
        self.poll('hid', loads, list(range(104, 132)), 1)
        self.stamp(4)
        for n in range(7):
            for ac in range(2):
                b = 40 + 8 * n + 4 * ac; d = 16 + 4 * ac
                a(f'v_mfma_f32_16x16x32_bf16 v[{d}:{d+3}], v[{b}:{b+3}], v[{104+4*n}:{107+4*n}], {"0" if n == 0 else "v[%d:%d]" % (d, d+3)}')
        a(f'ds_write_b128 v10, v[16:19] offset:{LW}\nds_write_b128 v10, v[20:23] offset:{LW + 1024}')
        self.arrive(C_A, 3, 'L_ctrl_end')
        for w in range(4):
            a(f'ds_read_b128 v[{40+8*w}:{43+8*w}], v11 offset:{LW + 14336*w}')
            a(f'ds_read_b128 v[{44+8*w}:{47+8*w}], v11 offset:{LW + 14336*w + 640}')
        a('s_waitcnt lgkmcnt(0)')
        self.sum_partials(40, [40 + 4 * i for i in range(8)])
        self.round4(40, 28)
        a('v_pk_mul_f32 v[40:41], v[40:41], v[140:141]\nv_pk_mul_f32 v[42:43], v[42:43], v[142:143]')
        self.round4(40, 28)
        a('v_pk_add_f32 v[40:41], v[40:41], v[144:145]\nv_pk_add_f32 v[42:43], v[42:43], v[146:147]')
        self.pack4(28, 40)
        a(f'''
        s_mov_b32 exec_hi, 0
        buffer_store_dwordx2 v[28:29], v6, s[80:83], s9 offen
        s_cmp_lg_u32 s8, 0
        s_cbranch_scc1 L_noepoch
        s_mov_b64 exec, 1
        v_mov_b32 v20, 0
        v_mov_b32 v21, s94
        buffer_store_dword v21, v20, s[44:47], 0 offen sc1
        L_noepoch:
        s_mov_b64 exec, -1
        s_branch L_ctrl_end
        ''')
        a('L_role_red:')
        self.srd(60, 16, 10240)
        a(f'''
        v_lshlrev_b32 v8, 3, v2          ; lane*8
        s_mul_i32 s9, s8, 1280
        buffer_load_dwordx2 v[26:27], v8, s[60:63], s9 offen
        buffer_load_dwordx2 v[28:29], v8, s[60:63], s9 offen offset:512
        buffer_load_dword v30, v12, s[60:63], s9 offen offset:1024
        s_lshl_b32 s90, s8, 14
        s_lshl_b32 s85, s3, 12
        s_add_u32 s90, s90, s85
        s_add_u32 s90, s90, {WS_Q}
        s_waitcnt vmcnt(0)
        ''')
        self.tag_from(167)
        for i in range(5): self.unpack(120 + 2 * i, 26 + i)
        self.lds_wait(C_QOK, 1, sleep=8)
        loads = [f'buffer_load_dwordx4 v[{40+4*n}:{43+4*n}], v7, s[44:47], s90 offen offset:{1024*n} sc1' for n in range(4)]
        self.poll('qall', loads, [41 + 2 * i for i in range(8)], 8, tagged=True)
        a(f'''
        s_mul_i32 s90, s8, 5120
        s_add_u32 s90, s90, {WS_MODO}
        ''')
        loads = []
        for ch in range(3):
            b = 40 + 6 * ch
            loads += [f'buffer_load_dwordx2 v[{b}:{b+1}], v8, s[44:47], s90 offen offset:{1280*ch} sc1',
                      f'buffer_load_dwordx2 v[{b+2}:{b+3}], v8, s[44:47], s90 offen offset:{1280*ch + 512} sc1',
                      f'buffer_load_dword v{b+4}, v12, s[44:47], s90 offen offset:{1280*ch + 1024} sc1']
        self.poll('modo', loads, [40 + 6 * ch + i for ch in range(3) for i in range(5)], 8)
        for ch in range(3):
            for i in range(5): self.unpack(130 + 10 * ch + 2 * i, 40 + 6 * ch + i)
        for i in range(5):
            a(f'v_pk_add_f32 v[{150+2*i}:{151+2*i}], v[{150+2*i}:{151+2*i}], 1.0 op_sel_hi:[1,0]')
            a(f'v_cvt_pk_bf16_f32 v26, v{150+2*i}, v{151+2*i}')
            self.unpack(150 + 2 * i, 26)
        for i in range(10): a(f'v_mov_b32 v{16+i}, 0')
        a(f'''
        s_lshl_b32 s91, s8, 5
        s_lshl_b32 s85, s3, 3
        s_add_u32 s91, s91, s85
        s_mul_i32 s91, s91, 2560
        s_add_u32 s91, s91, {WS_P}
        s_mul_i32 s87, s3, 2560
        v_add_u32 v10, s87, v7
        v_add_u32 v11, s87, v8
        s_add_u32 s92, s9, {WS_H2}
        s_add_u32 s93, s9, {WS_X1}
        ''')
        self.stamp(2)
        self.lds_wait(C_PROG, 1, sleep=8)
        self.stamp(3)
        a(f'''
        s_mov_b32 s90, 0xff
        s_mov_b32 s89, {SPIN_LIMIT}
        v_and_b32 v34, 7, v2
        v_mul_u32_u24 v34, 2560, v34
        L_p_poll:
        s_mov_b32 s95, s90
        ds_read_b32 v14, v13 offset:{C_WO}
        s_waitcnt lgkmcnt(0)
        v_readfirstlane_b32 s88, v14
        s_cmp_ge_u32 s88, 8
        s_cbranch_scc1 L_p_fetch
        s_sleep 6
        buffer_load_dword v35, v34, s[44:47], s91 offen offset:2556 sc1
        s_waitcnt vmcnt(0)
        v_cmp_ne_u32 vcc, -1, v35
        s_nop 1
        s_and_b32 s95, s90, vcc_lo
        s_cbranch_scc0 L_p_next
        L_p_fetch:
        ''')
        for g in range(8):
            b = 40 + 10 * g
            a(f'''
            s_bitcmp1_b32 s95, {g}
            s_cbranch_scc0 L_p_sk{g}
            s_add_u32 s85, s91, {2560*g}
            buffer_load_dwordx4 v[{b}:{b+3}], v7, s[44:47], s85 offen sc1
            buffer_load_dwordx4 v[{b+4}:{b+7}], v7, s[44:47], s85 offen offset:1024 sc1
            buffer_load_dwordx2 v[{b+8}:{b+9}], v8, s[44:47], s85 offen offset:2048 sc1
            L_p_sk{g}:
            ''')
        a('s_waitcnt vmcnt(0)')
        for g in range(8):
            b = 40 + 10 * g
            a(f'''
            s_bitcmp1_b32 s95, {g}
            s_cbranch_scc0 L_p_ck{g}
            v_max3_u32 v36, v{b}, v{b+1}, v{b+2}
            v_max3_u32 v37, v{b+3}, v{b+4}, v{b+5}
            v_max3_u32 v36, v36, v{b+6}, v{b+7}
            v_max3_u32 v37, v37, v{b+8}, v{b+9}
            v_max_u32 v36, v36, v37
            v_cmp_eq_u32 vcc, -1, v36
            s_cbranch_vccnz L_p_ck{g}
            s_bitset0_b32 s90, {g}
            ''')
            for i in range(5): a(f'v_pk_add_f32 v[{16+2*i}:{17+2*i}], v[{16+2*i}:{17+2*i}], v[{b+2*i}:{b+2*i+1}]')
            a(f'L_p_ck{g}:')
        a(f'''
        s_cmp_eq_u32 s90, 0
        s_cbranch_scc1 L_p_ok
        L_p_next:
        s_sub_u32 s89, s89, 1
        s_cbranch_scc0 L_p_poll
        L_p_ok:
        ''')
        self.stamp(4)
        a(f'''
        ds_write_b128 v10, v[16:19] offset:{LW}
        ds_write_b128 v10, v[20:23] offset:{LW + 1024}
        ds_write_b64 v11, v[24:25] offset:{LW + 2048}
        ''')
        self.arrive(C_A, 3, 'L_ctrl_end')
        for w in range(4):
            b = 40 + 10 * w
            a(f'ds_read_b128 v[{b}:{b+3}], v7 offset:{LW + 2560*w}')
            a(f'ds_read_b128 v[{b+4}:{b+7}], v7 offset:{LW + 2560*w + 1024}')
            a(f'ds_read_b64 v[{b+8}:{b+9}], v8 offset:{LW + 2560*w + 2048}')
        a('s_waitcnt lgkmcnt(0)')
        U = 40
        def P(r, i): return f'v[{r+2*i}:{r+2*i+1}]'
        for i in range(5): a(f'v_pk_add_f32 {P(40,i)}, {P(40,i)}, {P(50,i)}')
        for i in range(5): a(f'v_pk_add_f32 {P(60,i)}, {P(60,i)}, {P(70,i)}')
        for i in range(5): a(f'v_pk_add_f32 {P(40,i)}, {P(40,i)}, {P(60,i)}')
        def pk():
            for i in range(5): a(f'v_cvt_pk_bf16_f32 v{26+i}, v{U+2*i}, v{U+2*i+1}')
        def rnd():
            pk()
            for i in range(5): self.unpack(U + 2 * i, 26 + i)
        rnd()
        for i in range(5): a(f'v_pk_mul_f32 {P(U,i)}, {P(U,i)}, {P(130,i)}')
        rnd()
        for i in range(5): a(f'v_pk_add_f32 {P(U,i)}, {P(U,i)}, {P(120,i)}')
        for i in range(5): a(f'v_cvt_pk_bf16_f32 v{160+i}, v{U+2*i}, v{U+2*i+1}')
        self.sanitize(range(160, 165))
        self.ln_stats(160, U, 32, 96, 98)
        for i in range(5): a(f'v_pk_add_f32 {P(U,i)}, {P(U,i)}, s[96:97] op_sel_hi:[1,0] neg_lo:[0,1] neg_hi:[0,1]')
        rnd()
        for i in range(5): a(f'v_pk_mul_f32 {P(U,i)}, {P(U,i)}, s[98:99] op_sel_hi:[1,0]')
        rnd()
        for i in range(5): a(f'v_pk_mul_f32 {P(U,i)}, {P(U,i)}, {P(150,i)}')
        rnd()
        for i in range(5): a(f'v_pk_add_f32 {P(U,i)}, {P(U,i)}, {P(140,i)}')
        pk()
        self.sanitize(range(26, 31))
        a(f'''
        buffer_store_dwordx2 v[26:27], v8, s[44:47], s92 offen sc1
        buffer_store_dwordx2 v[28:29], v8, s[44:47], s92 offen offset:512 sc1
        buffer_store_dword v30, v12, s[44:47], s92 offen offset:1024 sc1
        buffer_store_dwordx2 v[160:161], v8, s[44:47], s93 offen sc1
        buffer_store_dwordx2 v[162:163], v8, s[44:47], s93 offen offset:512 sc1
        buffer_store_dword v164, v12, s[44:47], s93 offen offset:1024 sc1
        L_ctrl_end:
        ''')
        self.stamp(11)
        if self.late:
            a(f's_cmp_eq_u32 s7, {R_DOWN}\ns_cbranch_scc1 L_ctrl_fin\ns_cmp_eq_u32 s7, {R_FFN}\ns_cbranch_scc1 L_ctrl_fin\ns_cmp_eq_u32 s7, {R_RED}\ns_cbranch_scc1 L_ctrl_fin')
            self.prefetch_late('e')
            a('L_ctrl_fin:')
        self.stamp_flush()
        self.diag_end()
        a('s_endpgm')

    def stream(self):
        a = self.a
        self.cur_cls = 0
        WK, WV = self.WK, self.WV
        NV = 12
        KV = lambda t: 40 + 4 * t
        a(f'''
        L_stream:
        s_sub_u32 s15, s3, 4             ; sw
        s_lshl_b32 s85, s15, 15
        v_add_u32 v1, s85, v7
        s_mul_i32 s91, s2, {self.rot}
        s_mul_i32 s85, s15, {self.rotw}
        s_add_u32 s91, s91, s85
        s_and_b32 s91, s91, 31
        s_lshl_b32 s91, s91, 10          ; rotation
        s_lshl_b32 s85, s2, 20
        s_add_u32 s85, s85, 0xC0000
        s_add_u32 s48, s18, s85
        s_addc_u32 s49, s19, 0
        s_mov_b32 s50, 0x40000
        s_mov_b32 s51, 0x20000
        s_add_u32 s52, s20, s85
        s_addc_u32 s53, s21, 0
        s_mov_b32 s54, 0x40000
        s_mov_b32 s55, 0x20000
        ''')
        for _ in range(self.sdelay): a('s_sleep 32')
        if self.hold > 1: a(f's_cmp_eq_u32 s7, {R_Q}\ns_cbranch_scc1 L_hold')
        a(f's_cmp_lg_u32 s7, {R_G1}\ns_cbranch_scc1 L_nohold')
        self.srd(56, 34, 10240); self.srd(60, 16, 10240)
        a('s_mul_i32 s90, s15, 1280\nv_lshlrev_b32 v12, 2, v2')
        for n in range(5): a(f'buffer_load_dword v{40+n}, v12, s[56:59], s90 offen offset:{256*n}')
        for n in range(5): a(f'buffer_load_dword v{46+n}, v12, s[60:63], s90 offen offset:{256*n}')
        a(f'''
        s_mul_i32 s90, s15, {ACTS}
        s_add_u32 s90, s90, {L_ACT}
        v_add_u32 v12, s90, v12
        s_mov_b32 s85, {LOG2E | 0x80000000}
        s_waitcnt vmcnt(5)
        ''')
        for i in range(5): self.unpack(52 + 2 * i, 40 + i)
        for i in range(10): a(f'v_mul_f32 v{64+i}, s85, v{52+i}')
        for i in range(10): a(f'v_exp_f32 v{64+i}, v{64+i}')
        for i in range(10): a(f'v_add_f32 v{64+i}, 1.0, v{64+i}')
        for i in range(10): a(f'v_rcp_f32 v{64+i}, v{64+i}')
        for i in range(10): a(f'v_mul_f32 v{52+i}, v{52+i}, v{64+i}')
        for i in range(5): a(f'v_cvt_pk_bf16_f32 v{40+i}, v{52+2*i}, v{53+2*i}')
        for i in range(5): a(f'ds_write_b32 v12, v{40+i} offset:{256*i}')
        a('s_waitcnt vmcnt(0)')
        self.ln_stats(46, 52, 64, 90, 92)
        a(f'''
        v_mov_b32 v28, s90
        v_mov_b32 v29, s92
        s_lshl_b32 s85, s15, 3
        v_add_u32 v30, s85, v13
        ds_write_b64 v30, v[28:29] offset:{L_STAT}
        ''')
        self.signal(C_ACT)
        a('L_hold:')
        if self.hold: self.lds_wait(C_GO, 4, sleep=2)
        a('L_nohold:')
        q = []
        def wait_for(name):
            i = len(q) - 1 - q[::-1].index(name)
            n = len(q) - 1 - i
            a(f's_waitcnt vmcnt({min(n, 63)})')
        def ld(t, slot, srd, nm):
            a(f's_add_u32 s92, s91, {t*1024}\ns_and_b32 s92, s92, 0x7fff')
            a(f'buffer_load_dwordx4 v[{KV(slot)}:{KV(slot)+3}], v1, {srd}, s92 offen nt')
            q.append(nm)
        qloads = ['buffer_load_dwordx4 v[4:7], v12, s[44:47], s93 offen sc1', 'buffer_load_dwordx4 v[16:19], v12, s[44:47], s93 offen offset:16 sc1']
        for t in range(32):
            wk = WK if t >= self.wk_sw else self.WK0
            if t >= wk:
                if self.WKL > wk and t >= self.wkl_sw:
                    L = a.label('L_kw')
                    a(f's_waitcnt vmcnt({self.WKL-1})\ns_cbranch_vccnz {L}\ns_waitcnt vmcnt({wk-1})\n{L}:')
                else: a(f's_waitcnt vmcnt({wk-1})')
            if t == self.WK0: self.stamp(8)
            ld(t, t, 's[48:51]', f'K{t}')
            if t == self.WK0 - 1:
                a(f'''
                v_mov_b32 v3, 0
                buffer_load_dword v35, v3, s[44:47], 0 offen sc1
                v_and_b32 v3, 15, v2
                v_lshlrev_b32 v12, 5, v3             ; Q voffset
                s_lshl_b32 s93, s2, 9
                s_add_u32 s93, s93, {WS_Q}
                v_mov_b32 v16, 0xffff
                v_mov_b32 v17, s84
                ''')
                q.append('E')
                for r in range(4):
                    a(f'''
                    v_cmp_eq_u32 vcc, {2*r}, v3
                    v_cndmask_b32 v{8+r}, 0, v16, vcc
                    v_cmp_eq_u32 vcc, {2*r+1}, v3
                    v_cndmask_b32 v{8+r}, v{8+r}, v17, vcc
                    ''')
                a(f'''
                s_mov_b32 s96, 0xcccccccc
                s_mov_b32 s97, 0xcccccccc
                s_mov_b32 s98, 0xaaaaaaaa
                s_mov_b32 s99, 0xaaaaaaaa
                s_mul_i32 s85, s14, 163840
                s_add_u32 s56, s24, s85
                s_addc_u32 s57, s25, 0
                s_mov_b32 s58, 163840
                s_mov_b32 s59, 0x20000
                v_lshrrev_b32 v34, 4, v2
                v_mul_u32_u24 v34, 5120, v34
                v_lshl_add_u32 v34, v3, 4, v34
                s_mul_i32 s85, s15, 20480
                v_add_u32 v34, s85, v34
                s_lshr_b32 s85, {self.lagmask}, s7
                s_bitcmp1_b32 s85, 0
                s_cselect_b64 vcc, -1, 0
                ''')
            if t == 12:
                self.tag_from(35)
            if t == self.qpos:
                for l in qloads: a(l)
                q.append('Q0'); q.append('Q1')
        self.stamp(1)
        wait_for('Q1')
        a(f'''
        s_mov_b32 s89, {SPIN_LIMIT}
        L_q_chk:
        v_xor_b32 v20, s94, v5
        v_xor_b32 v21, s94, v7
        v_xor_b32 v22, s94, v17
        v_xor_b32 v23, s94, v19
        v_or_b32 v20, v20, v21
        v_or3_b32 v20, v20, v22, v23
        v_cmp_ne_u32 vcc, 0, v20
        s_cbranch_vccz L_q_ok
        s_sleep 4
        {qloads[0]}
        {qloads[1]}
        s_waitcnt vmcnt(0)
        s_sub_u32 s89, s89, 1
        s_cbranch_scc0 L_q_chk
        L_q_ok:
        v_mov_b32 v5, v6
        v_mov_b32 v6, v16
        v_mov_b32 v7, v18
        ''')
        self.signal(C_QOK)
        self.stamp(2)
        D = 20
        st = dict(V=0, W=0)
        def ldwo(n):
            tp, c = n // 5, n % 5
            so = ['0', 's60', 's61', 's62'][tp]
            a(f'buffer_load_dwordx4 v[{KV(NV+n)}:{KV(NV+n)+3}], v34, s[56:59], {so} offen offset:{256*c} nt')
            q.append(f'W{n}')
        def pre(g, free):
            for ch in self.pre[g]:
                if ch == 'V':
                    assert st['V'] < NV and st['V'] <= free
                    ld(st['V'], st['V'], 's[52:55]', f"V{st['V']}"); st['V'] += 1
                else:
                    assert NV + st['W'] <= free
                    ldwo(st['W']); st['W'] += 1
        a('s_movk_i32 s60, 1280\ns_movk_i32 s61, 2560\ns_movk_i32 s62, 3840')
        for g in range(8):
            wait_for(f'K{4*g+3}')
            for i in range(4):
                for k in range(4):
                    t = 4 * g + k
                    a(f'v_dot2_f32_bf16 v{D+k}, v{KV(t)+i}, v{4+i}, {"0" if i == 0 else "v%d" % (D+k)}')
            pre(g, 4 * g + 3)
            a(f'v_add_f32_dpp v24, v{D}, v{D} row_ror:8 row_mask:0xf bank_mask:0x3')
            a(f'v_add_f32_dpp v25, v{D+2}, v{D+2} row_ror:8 row_mask:0xf bank_mask:0x3')
            a(f'v_add_f32_dpp v24, v{D+1}, v{D+1} row_ror:8 row_mask:0xf bank_mask:0xc')
            a(f'v_add_f32_dpp v25, v{D+3}, v{D+3} row_ror:8 row_mask:0xf bank_mask:0xc')
            r2 = 26 + (g & 1)
            a(f'v_add_f32_dpp v{r2}, v24, v24 row_shl:4 row_mask:0xf bank_mask:0x5')
            a(f'v_add_f32_dpp v{r2}, v25, v25 row_shr:4 row_mask:0xf bank_mask:0xa')
            if g & 1:
                r3 = 28 + ((g >> 1) & 1)
                a(f'v_add_f32_dpp v30, v26, v26 quad_perm:[2,3,0,1] row_mask:0xf bank_mask:0xf')
                a(f'v_add_f32_dpp v31, v27, v27 quad_perm:[2,3,0,1] row_mask:0xf bank_mask:0xf')
                a(f'v_cndmask_b32 v{r3}, v30, v31, s[96:97]')
            if (g & 3) == 3:
                a(f'v_add_f32_dpp v30, v28, v28 quad_perm:[1,0,3,2] row_mask:0xf bank_mask:0xf')
                a(f'v_add_f32_dpp v31, v29, v29 quad_perm:[1,0,3,2] row_mask:0xf bank_mask:0xf')
                a(f'v_cndmask_b32 v{32 + (g >> 2)}, v30, v31, s[98:99]')
        a(f'''
        v_cvt_pk_bf16_f32 v20, v32, v33
        s_mov_b32 s86, 0x3db504f3
        ''')
        self.unpack(32, 20)
        a('v_pk_mul_f32 v[32:33], v[32:33], s[86:87] op_sel_hi:[1,0]\nv_cvt_pk_bf16_f32 v20, v32, v33')
        self.unpack(32, 20)
        a('v_max_f32 v20, v32, v33')
        self.wave_red(20, 'max')
        a(f'''
        v_readlane_b32 s86, v20, 63              ; m_w
        s_mov_b32 s90, {LOG2E}
        v_subrev_f32 v20, s86, v32
        v_subrev_f32 v21, s86, v33
        v_mul_f32 v20, s90, v20
        v_mul_f32 v21, s90, v21
        v_exp_f32 v20, v20
        v_exp_f32 v21, v21
        v_add_f32 v21, v20, v21
        ''')
        self.wave_red(21)
        a(f'''
        v_mov_b32 v20, s86
        s_lshl_b32 s85, s15, 3
        v_add_u32 v22, s85, v13
        s_mov_b32 exec_lo, 0
        s_mov_b32 exec_hi, 0x80000000
        ds_write_b64 v22, v[20:21] offset:{L_SM}
        s_mov_b64 exec, -1
        ''')
        self.stamp(3)
        self.signal(C_SM)
        pre(8, 31)
        self.lds_wait(C_SM, 8)
        self.stamp(4)
        a(f'''
        v_and_b32 v22, 7, v2
        v_lshl_add_u32 v22, v22, 3, v13
        ds_read_b64 v[20:21], v22 offset:{L_SM}
        s_waitcnt lgkmcnt(0)
        v_max_f32_dpp v22, v20, v20 row_ror:4 row_mask:0xf bank_mask:0xf
        v_max_f32_dpp v22, v22, v22 row_ror:2 row_mask:0xf bank_mask:0xf
        v_max_f32_dpp v22, v22, v22 row_ror:1 row_mask:0xf bank_mask:0xf
        v_sub_f32 v20, v20, v22
        v_mul_f32 v20, s90, v20
        v_exp_f32 v20, v20
        v_sub_f32 v32, v32, v22
        v_sub_f32 v33, v33, v22
        v_mul_f32 v21, v21, v20
        v_mul_f32 v32, s90, v32
        v_mul_f32 v33, s90, v33
        v_add_f32_dpp v21, v21, v21 row_ror:4 row_mask:0xf bank_mask:0xf
        v_exp_f32 v32, v32
        v_exp_f32 v33, v33
        v_add_f32_dpp v21, v21, v21 row_ror:2 row_mask:0xf bank_mask:0xf
        v_add_f32_dpp v21, v21, v21 row_ror:1 row_mask:0xf bank_mask:0xf
        v_rcp_f32 v21, v21
        v_mul_f32 v32, v32, v21
        v_mul_f32 v33, v33, v21
        v_cvt_pk_bf16_f32 v32, v32, v32
        v_cvt_pk_bf16_f32 v33, v33, v33
        ''')
        issued = st['V']; nwo = st['W']
        for t in range(32):
            A = 20 + 4 * (t & 1)
            for r in range(4):
                a(f'v_and_b32_dpp v{A+r}, v{32 + (t >> 4)}, v{8+r} row_newbcast:{bitrev4(t & 15)} row_mask:0xf bank_mask:0xf')
            wait_for(f'V{t}')
            a(f'v_mfma_f32_16x16x32_bf16 v[16:19], v[{A}:{A+3}], v[{KV(t % NV)}:{KV(t % NV)+3}], {"0" if t == 0 else "v[16:19]"}')
            while t + (WV if t < self.wv_sw else self.WV2) >= issued and issued < 32:
                ld(issued, issued % NV, 's[52:55]', f'V{issued}'); issued += 1
            if t >= self.wo_start:
                for _ in range(self.wo_per):
                    if nwo < 20: ldwo(nwo); nwo += 1
            if t == self.prog_t: self.signal(C_PROG)
            if t == self.progw_t: self.signal(C_PROGW)
            if t == self.k2_t: self.signal(C_K2)
            if t == 28:
                a(f'''
                v_lshlrev_b32 v7, 4, v2
                v_and_b32 v3, 15, v2
                v_lshrrev_b32 v4, 4, v2
                v_lshlrev_b32 v5, 5, v3
                v_lshl_add_u32 v5, v4, 4, v5          ; (8j+4s')*4
                s_lshl_b32 s85, s15, 9
                s_add_u32 s85, s85, {L_OP}
                v_add_u32 v6, s85, v5
                s_mul_i32 s85, s15, 2560
                s_add_u32 s85, s85, {L_WP}
                v_add_u32 v5, s85, v5
                s_lshl_b32 s85, s15, 6
                s_add_u32 s85, s85, {L_OP}
                v_lshl_add_u32 v4, v4, 4, s85
                v_add_u32 v35, {L_WP}, v7
                v_lshlrev_b32 v12, 3, v2
                v_add_u32 v36, {L_WP}, v12
                s_mul_i32 s87, s2, 2560
                s_add_u32 s87, s87, {WS_P}
                ''')
        assert nwo == 20
        a(f'''
        s_mov_b32 exec_hi, 0
        ds_write_b128 v6, v[16:19]
        s_mov_b64 exec, -1
        ''')
        self.stamp(5)
        self.signal(C_PV)
        self.lds_wait(C_PV, 8)
        for w in range(8):
            a(f'ds_read_b128 v[{40+4*w}:{43+4*w}], v4 offset:{512*w}')
        a('s_waitcnt lgkmcnt(0)')
        self.sum_partials(40, [40 + 4 * i for i in range(8)])
        for r in range(4): a(f'v_cvt_pk_bf16_f32 v{40+r}, v{40+r}, v{40+r}')
        for tp in range(4):
            for r in range(4): a(f'v_and_b32 v{44+4*tp+r}, v{40+tp}, v{8+r}')
        a('s_waitcnt vmcnt(0)')
        self.stamp(6)
        for tp in range(4):
            for c in range(5):
                d = 60 + 4 * c; b = KV(NV + 5 * tp + c)
                a(f'v_mfma_f32_16x16x32_bf16 v[{d}:{d+3}], v[{44+4*tp}:{47+4*tp}], v[{b}:{b+3}], {"0" if tp == 0 else "v[%d:%d]" % (d, d+3)}')
        a('s_mov_b32 exec_hi, 0')
        for c in range(5): a(f'ds_write_b128 v5, v[{60+4*c}:{63+4*c}] offset:{512*c}')
        a('s_mov_b64 exec, -1')
        self.arrive(C_WO, 7, 'L_stream_end')
        self.stamp(7)
        for w in range(8):
            b = 40 + 10 * w
            a(f'ds_read_b128 v[{b}:{b+3}], v35 offset:{2560*w}')
            a(f'ds_read_b128 v[{b+4}:{b+7}], v35 offset:{2560*w + 1024}')
            a(f'ds_read_b64 v[{b+8}:{b+9}], v36 offset:{2560*w + 2048}')
            if w == 3: a('s_waitcnt lgkmcnt(0)')
        def P(r, i): return f'v[{r+2*i}:{r+2*i+1}]'
        for x, y in ((40, 50), (60, 70), (40, 60)):
            for i in range(5): a(f'v_pk_add_f32 {P(x,i)}, {P(x,i)}, {P(y,i)}')
        a('s_waitcnt lgkmcnt(0)')
        for x, y in ((80, 90), (100, 110), (80, 100), (40, 80)):
            for i in range(5): a(f'v_pk_add_f32 {P(x,i)}, {P(x,i)}, {P(y,i)}')
        self.sanitize(range(40, 50))
        a(f'''
        buffer_store_dwordx4 v[40:43], v7, s[44:47], s87 offen sc1
        buffer_store_dwordx4 v[44:47], v7, s[44:47], s87 offen offset:1024 sc1
        buffer_store_dwordx2 v[48:49], v12, s[44:47], s87 offen offset:2048 sc1
        ''')
        self.signal(C_DONE)
        a('L_stream_end:')
        self.stamp(10)
        self.stamp_flush()
        self.diag_end()
        a('L_end:\ns_endpgm\nL_code_end:')

    def build(self):
        self.prologue(); self.control(); self.stream()
        kn = NAME + '_kernel'
        body = '\n'.join(fix_hazards(self.a.l)) + '\n'
        hdr = open('cdna_kernels/' + NAME + '.s.ref').read().split('; Override launch')[0]
        return hdr + header([f'; @launch grid=(256,1,1) block=(768,1,1) lds={LDS_SIZE}']) + kernel_start(kn) + body + '.section .rodata,"a"\n' + descriptor(kn, vgpr=168, sgpr=102, accum=168)

if __name__ == '__main__':
    import argparse
    from collections import Counter
    rs = [role_of(w) for w in range(256)]
    for r, n in ((R_G1, 20), (R_DOWN, 40), (R_FFN, 54), (R_Q, 64), (R_MOD, 40), (R_RED, 8)):
        assert sorted(i for rr, i in rs if rr == r) == list(range(n)), r
    ap = argparse.ArgumentParser()
    ap.add_argument('-o', default='k.s'); ap.add_argument('--stamp', action='store_true')
    for p, d in (('WK', 3), ('WV', 3), ('rot', 3), ('rotw', 1), ('qpos', 25), ('prog_t', 22), ('progw_t', -1), ('WD', 20), ('wo_start', 0), ('wo_per', 1), ('sdelay', 0), ('WK0', 2), ('wk_sw', 16), ('k2_t', -1), ('WV2', 6), ('wv_sw', 16), ('hold', 1), ('pf', 1), ('WKL', 4), ('wkl_sw', 6), ('lagmask', 0x32), ('pfb', 1), ('cpf', 1), ('diag_until', 0), ('diag_xcc', 0), ('diag_cls', -1), ('diag_idx', -1), ('nEf', 8), ('nEd', 6), ('late', 0), ('WDM', 20), ('k2_n', 8)):
        ap.add_argument('--' + p, type=int, default=d)
    ap.add_argument('--pre', default='V,V,V,V,V,V,V,V,W')
    args = ap.parse_args()
    kw = dict(vars(args)); o = kw.pop('o')
    open(o, 'w').write(G(**kw).build())
```

```python
import sys
from asmlib import *
import gen as G1mod
from gen import bitrev4, LOG2E, SPIN_LIMIT

WS_E = 0
WS_H1 = 0x1000
WS_Q = 0x8000
SB2 = 0x28000
WS_H2 = SB2; WS_X1 = SB2 + 0x3000; WS_HID = SB2 + 0x6000; WS_MODO = SB2 + 0xD000
WS_P = 0x50000
WS_STAMP = 0x100000
WS_SIZE = 0x200000
LW = 0; L_OP = 0x14000; L_WP = 0x15000; LM = 0x1A000; LDS_SIZE = 0x1B000
C_A, C_SM, C_PV, C_WO, C_QOK, C_PROG, C_PROGW, C_GO, C_DONE, C_K2, C_ACT, C_PF, C_PF2 = [4 * i for i in range(13)]
L_STAT = 0x40; L_SM = 0x100
L_ACT = L_WP; ACTS = 1344
R_G1, R_DOWN, R_FFN, R_Q, R_MOD, R_RED = 1, 2, 3, 4, 5, 6

def role_of(wg):
    x = wg & 7; u = wg >> 3
    if u < 2: return R_G1, 2 * x + u
    if u < 6:
        k = u - 2
        e = EXTRA.get((x, k >> 1))
        if e is None: return 0, 0
        return e[0], e[0] * 16 + 2 * e[1] + (k & 1)
    if u < 14: return R_Q, (x + 8 * ((u - 6) >> 1)) * 2 + ((u - 6) & 1)
    if u < 19: return R_MOD, 5 * x + u - 14
    if u < 25: return R_FFN, 6 * x + u - 19
    if u < 29: return R_DOWN, 4 * x + u - 25
    if u == 29: return R_RED, x
    return 0, 0
EXTRA = {(0, 0): (R_DOWN, 0), (0, 1): (R_DOWN, 1), (2, 0): (R_DOWN, 2), (2, 1): (R_DOWN, 3),
         (4, 0): (R_FFN, 0), (4, 1): (R_FFN, 1), (6, 0): (R_G1, 0), (6, 1): (R_FFN, 2), (1, 0): (R_G1, 1)}

class G(G1mod.G):
    def __init__(self, stamp=False, WK=3, WV=3, rot=3, rotw=1, qpos=25, prog_t=22, progw_t=-1, WD=4, wo_start=0, wo_per=1, sdelay=0, WK0=2, wk_sw=16, k2_t=6, WV2=6, wv_sw=16, hold=1, pf=1, WKL=6, wkl_sw=6, lagmask=0x72, diag_xcc=0, diag_role=-1, diag_until=0, diag_cls=-1, diag_idx=-1, cpf=1, pfb=1, nEf=8, nEd=6, late=0, WDM=2, k2_n=8, pre='V,V,VV,VW,VWW,VWW,VVW,VWW,VVWW'):
        self.sdelay = sdelay; self.WK0 = WK0; self.wk_sw = wk_sw; self.k2_t = k2_t; self.WV2 = WV2; self.wv_sw = wv_sw; self.hold = hold; self.pf = pf; self.late = late; self.pfb = pfb; self.cpf = cpf; self.diag_until = diag_until; self.diag_xcc = diag_xcc; self.diag_role = diag_role; self.diag_cls = diag_cls; self.diag_idx = diag_idx; self.cur_cls = -1; self.nEf = nEf; self.nEd = nEd; self.WKL = WKL; self.wkl_sw = wkl_sw; self.lagmask = lagmask; self.WDM = WDM; self.k2_n = k2_n; self.pre = pre.split(',')
        self.a = Asm(); self.stamp_on = stamp
        self.WK = WK; self.WV = WV; self.rot = rot; self.rotw = rotw; self.qpos = qpos; self.prog_t = prog_t
        self.progw_t = progw_t; self.WD = WD; self.wo_start = wo_start; self.wo_per = wo_per

    def stamp(self, i):
        if self.diag_until and i == self.diag_idx and (self.cur_cls == self.diag_cls or (self.cur_cls == 99 and self.diag_cls > 0)):
            if self.cur_cls == 99:
                L = self.a.label('L_ds')
                self.a(f's_cmp_lg_u32 s7, {self.diag_cls}\ns_cbranch_scc1 {L}\ns_memrealtime s[100:101]\ns_waitcnt lgkmcnt(0)\n{L}:')
            elif self.diag_role >= 0:
                L = self.a.label('L_ds')
                self.a(f's_cmp_lg_u32 s7, {self.diag_role}\ns_cbranch_scc1 {L}\ns_memrealtime s[100:101]\ns_waitcnt lgkmcnt(0)\n{L}:')
            else:
                self.a('s_memrealtime s[100:101]\ns_waitcnt lgkmcnt(0)')
        super().stamp(i)

    def diag_end(self):
        if self.diag_until:
            L = self.a.label('L_diag')
            if self.diag_xcc:
                self.a('s_getreg_b32 s97, hwreg(HW_REG_XCC_ID)\ns_sub_u32 s97, s97, s2\ns_and_b32 s97, s97, 7')
                if self.diag_xcc == 2: self.a('s_sub_u32 s97, 7, s97')
                self.a('s_mul_i32 s97, s97, 400\ns_add_u32 s100, s100, s97')
            self.a(f'{L}:\ns_sleep 1\ns_memrealtime s[98:99]\ns_waitcnt lgkmcnt(0)\ns_sub_u32 s98, s98, s100\ns_cmp_lt_i32 s98, {self.diag_until*100}\ns_cbranch_scc1 {L}')

    def tag_from(self, v):
        self.a(f'''
        s_mov_b32 s85, 1664525
        v_mul_lo_u32 v{v}, s85, v{v}
        v_add_u32 v{v}, 1013904223, v{v}
        v_readfirstlane_b32 s94, v{v}
        ''')

    def poll(self, name, loads, check, sleep, tagged=False):
        a = self.a
        a(f's_mov_b32 s89, {SPIN_LIMIT}\nL_{name}_poll:')
        for l in loads: a(l)
        a('s_waitcnt vmcnt(0)')
        if tagged:
            for i in range(0, len(check), 2):
                a(f'v_xor_b32 v36, s94, v{check[i]}\nv_xor_b32 v37, s94, v{check[i+1]}')
                a('v_or_b32 v38, v36, v37' if i == 0 else 'v_or3_b32 v38, v38, v36, v37')
            a('v_cmp_ne_u32 vcc, 0, v38')
        else:
            c = list(check)
            if len(c) % 2 == 0:
                a(f'v_max_u32 v38, v{c[0]}, v{c[1]}'); c = c[2:]
            else:
                a(f'v_max3_u32 v38, v{c[0]}, v{c[1]}, v{c[2]}'); c = c[3:]
            for i in range(0, len(c), 2): a(f'v_max3_u32 v38, v38, v{c[i]}, v{c[i+1]}')
            a('v_cmp_eq_u32 vcc, -1, v38')
        a(f'''
        s_cbranch_vccz L_{name}_ok
        {"s_sleep %d" % sleep if sleep else ""}
        s_sub_u32 s89, s89, 1
        s_cbranch_scc0 L_{name}_poll
        L_{name}_ok:
        ''')

    def prologue(self):
        a = self.a
        a(f'''
        s_cmp_ge_u32 s2, 256
        s_cbranch_scc1 L_end
        {'s_memrealtime s[100:101]' if self.diag_until else ''}
        s_getpc_b64 s[86:87]
        L_pc0:
        v_lshlrev_b32 v3, 7, v0
        v_min_u32 v3, L_code_end-L_pc0-4, v3
        {'global_load_dword v161, v3, s[86:87]' if self.cpf else ''}
        s_load_dwordx16 s[16:31], s[0:1], 0
        s_load_dwordx8 s[32:39], s[0:1], 64
        s_load_dwordx4 s[40:43], s[0:1], 96
        v_lshrrev_b32 v1, 6, v0
        v_and_b32 v2, 63, v0
        v_readfirstlane_b32 s3, v1
        v_mov_b32 v13, {LM}
        s_mov_b32 s84, 0xffff0000
        v_mov_b32 v15, 0
        v_lshl_add_u32 v14, v2, 2, v13
        ds_write_b32 v14, v15
        s_lshr_b32 s13, s2, 5            ; b
        s_and_b32 s14, s2, 31            ; h
        v_lshlrev_b32 v7, 4, v2          ; lane*16
        ''')
        self.decode()
        a('''
        s_waitcnt lgkmcnt(0)
        s_barrier
        ''')
        self.srd(44, 42, WS_SIZE)
        self.stamp(0)
        a(f'''
        s_cmp_lt_u32 s3, 4
        s_cbranch_scc0 L_stream
        ''')

    def decode(self):
        a = self.a
        ext = 0
        for (x, kh), (r, idx) in EXTRA.items(): ext |= (r | idx << 2) << (4 * (2 * x + kh))
        a(f'''
        s_and_b32 s4, s2, 7              ; x
        s_lshr_b32 s5, s2, 3             ; u
        s_mov_b32 s7, 0
        s_mov_b32 s8, 0
        ''')
        for lo, hi, role, mul in ((0, 2, R_G1, 2), (14, 19, R_MOD, 5), (19, 25, R_FFN, 6), (25, 29, R_DOWN, 4), (29, 30, R_RED, 1)):
            a(f'''
            s_sub_u32 s9, s5, {lo}
            s_mul_i32 s10, s4, {mul}
            s_add_u32 s10, s10, s9
            s_cmp_lt_u32 s9, {hi-lo}
            s_cselect_b32 s7, {role}, s7
            s_cselect_b32 s8, s10, s8
            ''')
        a(f'''
        s_sub_u32 s9, s5, 6              ; Q: (x + 8*(k>>1))*2 + (k&1)
        s_lshr_b32 s10, s9, 1
        s_lshl_b32 s10, s10, 3
        s_add_u32 s10, s10, s4
        s_lshl_b32 s10, s10, 1
        s_and_b32 s11, s9, 1
        s_add_u32 s10, s10, s11
        s_cmp_lt_u32 s9, 8
        s_cselect_b32 s7, {R_Q}, s7
        s_cselect_b32 s8, s10, s8
        s_sub_u32 s9, s5, 2              ; extras
        s_lshr_b32 s10, s9, 1
        s_and_b32 s10, s10, 1
        s_lshl_b32 s11, s4, 1
        s_add_u32 s10, s10, s11
        s_lshl_b32 s10, s10, 2
        s_mov_b32 s86, {ext & 0xffffffff}
        s_mov_b32 s87, {ext >> 32}
        s_lshr_b64 s[86:87], s[86:87], s10
        s_and_b32 s10, s86, 3            ; role
        s_bfe_u32 s11, s86, 0x20002      ; idx
        s_lshl_b32 s11, s11, 1
        s_lshl_b32 s12, s10, 4
        s_add_u32 s11, s11, s12
        s_and_b32 s12, s9, 1
        s_add_u32 s11, s11, s12
        s_cmp_lt_u32 s9, 4
        s_cselect_b32 s7, s10, s7
        s_cselect_b32 s8, s11, s8
        ''')

    def pfld(self, v, srd, so): self.a(f'buffer_load_dword v160, v{v}, {srd}, {so} offen nt')

    def prefetch(self):
        a = self.a
        self.srd(64, 36, 640 * 7680)
        a(f'''
        s_sub_u32 s90, s5, 14
        s_cmp_ge_u32 s90, 16
        s_cbranch_scc1 L_pf_done
        s_lshl_b32 s92, s4, 7
        s_cmp_lt_u32 s3, 2
        s_cbranch_scc1 L_pfA
        s_cmp_eq_u32 s4, 6
        s_cselect_b32 s92, 1024, 0
        s_cmp_eq_u32 s4, 1
        s_cselect_b32 s92, 1152, s92
        s_cmp_eq_u32 s92, 0
        s_cbranch_scc1 L_pf_done
        L_pfA:
        s_lshl_b32 s90, s90, 1
        s_and_b32 s91, s3, 1
        s_add_u32 s90, s90, s91
        s_mul_i32 s91, s90, {20*7680}
        s_add_u32 s92, s92, s91
        v_lshrrev_b32 v16, 1, v2
        v_min_u32 v16, 19, v16
        v_mul_u32_u24 v16, 7680, v16
        v_and_b32 v17, 1, v2
        v_mul_u32_u24 v17, 1280, v17
        v_add_u32 v16, v16, v17
        ''')
        self.pfld(16, 's[64:67]', 's92')
        a('L_pf_done:')

    def prefetch_b(self, sfx):
        a = self.a
        a(f'''
        s_cmp_lt_u32 s3, 2
        s_cbranch_scc1 L_pb_done{sfx}
        s_mul_i32 s90, s5, 20
        v_lshrrev_b32 v16, 3, v2
        s_cmp_eq_u32 s3, 3
        s_cbranch_scc1 L_pb3{sfx}
        ''')
        self.srd(64, 22, 640 * 8192)
        a(f'''
        v_bfe_u32 v17, v2, 1, 2
        v_lshlrev_b32 v17, 11, v17
        v_and_b32 v18, 1, v2
        v_lshl_add_u32 v17, v18, 7, v17
        v_lshl_add_u32 v18, v16, 13, v17
        v_and_b32 v16, 3, v16
        v_lshl_add_u32 v19, v16, 13, v17
        s_lshl_b32 s91, s90, 13
        s_lshl_b32 s92, s4, 8
        s_add_u32 s92, s92, s91
        ''')
        self.pfld(18, 's[64:67]', 's92'); a(f's_add_u32 s92, s92, {8*8192}')
        self.pfld(18, 's[64:67]', 's92'); a(f's_add_u32 s92, s92, {8*8192}')
        self.pfld(19, 's[64:67]', 's92')
        if sfx == '':
            a('s_waitcnt vmcnt(0)')
            self.signal(C_PF)
        a(f's_branch L_pb_done{sfx}\nL_pb3{sfx}:')
        self.srd(64, 36, 640 * 7680)
        a(f'''
        v_and_b32 v17, 7, v2
        v_min_u32 v17, 4, v17
        v_lshlrev_b32 v17, 7, v17
        v_mul_u32_u24 v18, 7680, v16
        v_add_u32 v18, v18, v17
        v_and_b32 v16, 3, v16
        v_mul_u32_u24 v19, 7680, v16
        v_add_u32 v19, v19, v17
        s_mul_i32 s91, s90, 7680
        s_mul_i32 s92, s4, 640
        s_add_u32 s92, s92, 2560
        s_add_u32 s92, s92, s91
        ''')
        if sfx == '': self.lds_wait(C_PF, 1, sleep=2)
        self.pfld(18, 's[64:67]', 's92'); a(f's_add_u32 s92, s92, {8*7680}')
        self.pfld(18, 's[64:67]', 's92'); a(f's_add_u32 s92, s92, {8*7680}')
        self.pfld(19, 's[64:67]', 's92')
        if sfx == '':
            a(f's_cmp_lg_u32 s7, {R_MOD}\ns_cbranch_scc1 L_pb_done{sfx}\ns_waitcnt vmcnt(0)')
            self.signal(C_PF2)
        a(f'L_pb_done{sfx}:')

    def prefetch_late(self, sfx):
        a = self.a
        a(f's_cmp_lg_u32 s3, 0\ns_cbranch_scc1 L_pl1{sfx}')
        self.srd(68, 32, 1728 * 1280)
        a(f'''
        v_min_u32 v16, 53, v2
        v_mul_u32_u24 v16, 1280, v16
        s_mul_i32 s91, s5, {54*1280}
        s_lshl_b32 s92, s4, 7
        s_add_u32 s92, s92, s91
        s_lshl_b32 s93, s4, 6
        s_add_u32 s93, s93, 1024
        s_add_u32 s93, s93, s91
        ''')
        self.lds_wait(C_PROGW if self.progw_t >= 0 else C_DONE, 1, sleep=4)
        self.pfld(16, 's[68:71]', 's92')
        a(f'''
        s_and_b32 s92, s4, 5
        s_cmp_lg_u32 s92, 0
        s_cbranch_scc1 L_pl_done{sfx}
        ''')
        self.pfld(16, 's[68:71]', 's93')
        a(f's_branch L_pl_done{sfx}\nL_pl1{sfx}:')
        self.srd(64, 28, 640 * 3456); self.srd(68, 30, 640 * 3456)
        a(f'''
        s_mul_i32 s92, s4, 3
        s_mov_b32 s91, s92
        s_mov_b32 s93, s92
        s_cmp_eq_u32 s4, 4
        s_cselect_b32 s91, 24, s91
        s_cselect_b32 s93, 25, s93
        s_cmp_eq_u32 s4, 6
        s_cselect_b32 s91, 26, s91
        v_and_b32 v17, 7, v2
        v_min_u32 v18, 2, v17
        v_add_u32 v18, s92, v18
        v_mov_b32 v19, s91
        v_cmp_eq_u32 vcc, 3, v17
        v_cndmask_b32 v18, v18, v19, vcc
        v_mov_b32 v19, s93
        v_cmp_eq_u32 vcc, 4, v17
        v_cndmask_b32 v18, v18, v19, vcc
        v_lshlrev_b32 v17, 7, v18
        v_lshrrev_b32 v16, 3, v2
        s_lshl_b32 s92, s3, 3
        s_sub_u32 s92, s92, 8
        v_add_u32 v16, s92, v16
        v_min_u32 v16, 19, v16
        v_mul_u32_u24 v18, 3456, v16
        v_add_u32 v18, v18, v17
        s_mul_i32 s92, s5, {20*3456}
        ''')
        self.lds_wait(C_PROGW if self.progw_t >= 0 else C_DONE, 1, sleep=4)
        self.pfld(18, 's[64:67]', 's92'); self.pfld(18, 's[68:71]', 's92')
        a(f'L_pl_done{sfx}:')

    def dma640_setup(self):
        a = self.a
        a(f'''
        v_lshrrev_b32 v16, 3, v2
        s_mul_i32 s85, s3, 160
        v_add_u32 v16, s85, v16
        v_mul_lo_u32 v16, s52, v16
        v_and_b32 v17, 3, v2
        v_lshl_add_u32 v16, v17, 4, v16
        v_mov_b32 v17, 0
        v_mov_b32 v18, s48
        v_mov_b32 v19, s49
        v_mov_b32 v20, s50
        v_mov_b32 v21, s51
        v_and_b32 v22, 4, v2
        v_cmp_ne_u32 vcc, 0, v22
        v_cndmask_b32 v18, v18, v20, vcc
        v_cndmask_b32 v19, v19, v21, vcc
        v_lshl_add_u64 v[4:5], v[16:17], 0, v[18:19]
        s_lshl_b32 s54, s52, 3
        s_mov_b32 s55, 0
        ''')
    def dma640_issue(self, lo, hi, WD=99):
        a = self.a
        for n in range(lo, hi):
            a(f's_add_u32 m0, s87, {LW + 1024*n}')
            if n >= WD: a(f's_waitcnt vmcnt({WD-1})')
            a(f'global_load_lds_dwordx4 v[4:5], off nt')
            if n < 19: a('v_lshl_add_u64 v[4:5], v[4:5], 0, s[54:55]')
    def dma640(self, WD):
        self.dma640_setup(); self.dma640_issue(0, 20, WD)

    def wfrags640(self, younger=None):
        a = self.a
        for n in range(5):
            if younger is not None: a(f's_waitcnt vmcnt({younger + 4 * (4 - n)})')
            for T in range(4):
                b = 40 + 16 * n + 4 * T
                a(f'ds_read_b64_tr_b16 v[{b}:{b+1}], v9 offset:{LW + 4096*n + 32*T}')
                a(f'ds_read_b64_tr_b16 v[{b+2}:{b+3}], v9 offset:{LW + 4096*n + 32*T + 512}')
            a('s_waitcnt lgkmcnt(0)')

    def mfma640(self, skip):
        a = self.a
        for n in range(5):
            for T in range(4):
                b = 40 + 16 * n + 4 * T; d = 16 + 4 * T
                a(f'v_mfma_f32_16x16x32_bf16 v[{d}:{d+3}], v[{b}:{b+3}], v[{120+4*n}:{123+4*n}], {"0" if n == 0 else "v[%d:%d]" % (d, d+3)}')
        for T in range(4):
            a(f'ds_write_b128 v10, v[{16+4*T}:{19+4*T}] offset:{LW + 1024*T}')
        self.arrive(C_A, 3, skip)
        for w in range(4):
            a(f'ds_read_b128 v[{40+4*w}:{43+4*w}], v11 offset:{LW + 20480*w}')
            a(f'ds_read_b128 v[{56+4*w}:{59+4*w}], v11 offset:{LW + 20480*w + 2048}')

    def red640(self):
        self.a('s_waitcnt lgkmcnt(0)')
        self.sum_partials(40, [40, 44, 48, 52]); self.sum_partials(56, [56, 60, 64, 68])

    def silu(self, ns=range(5)):
        a = self.a
        a(f's_mov_b32 s85, {LOG2E | 0x80000000}')
        for n in ns:
            b = 120 + 4 * n
            for i in range(4): self.unpack(16 + 2 * i, b + i)
            for i in range(8): a(f'v_mul_f32 v{24+i}, s85, v{16+i}')
            for i in range(8): a(f'v_exp_f32 v{24+i}, v{24+i}')
            for i in range(8): a(f'v_add_f32 v{24+i}, 1.0, v{24+i}')
            for i in range(8): a(f'v_rcp_f32 v{24+i}, v{24+i}')
            for i in range(8): a(f'v_mul_f32 v{16+i}, v{16+i}, v{24+i}')
            for i in range(4): a(f'v_cvt_pk_bf16_f32 v{b+i}, v{16+2*i}, v{17+2*i}')

    def add64(self, d, base, off):
        self.a(f's_add_u32 s{d}, s{base}, {off}\ns_addc_u32 s{d+1}, s{base+1}, 0')

    def control(self):
        a = self.a
        self.cur_cls = 99
        a('s_setprio 3')
        if self.pf: self.prefetch()
        if self.pfb:
            a(f's_cmp_eq_u32 s7, {R_G1}\ns_cbranch_scc1 L_pb_done')
            self.prefetch_b('')
        a(f'''
        s_cmp_eq_u32 s7, 0
        s_cbranch_scc1 L_ctrl_end
        v_mov_b32 v3, 0
        buffer_load_dword v167, v3, s[44:47], 0 offen sc1
        s_mul_i32 s87, s3, 20480
        v_lshrrev_b32 v16, 4, v2         ; s
        v_bfe_u32 v17, v2, 2, 2          ; r4
        v_and_b32 v18, 3, v2             ; c
        v_lshl_add_u32 v19, v16, 3, v17  ; 8s+r4
        v_lshlrev_b32 v9, 7, v19
        v_lshl_add_u32 v9, v18, 3, v9
        v_add_u32 v9, s87, v9
        v_add_u32 v10, s87, v7
        v_and_b32 v17, 7, v2             ; b
        v_bfe_u32 v18, v2, 3, 1          ; t
        v_lshlrev_b32 v11, 8, v16
        v_lshl_add_u32 v11, v17, 4, v11
        v_lshl_add_u32 v11, v18, 10, v11
        v_mul_u32_u24 v19, 1280, v17
        v_lshl_add_u32 v6, v16, 4, v19
        v_lshlrev_b32 v8, 5, v18
        v_lshl_add_u32 v8, v16, 3, v8    ; (16t+4s')*2 bytes
        v_lshlrev_b32 v12, 2, v2         ; lane*4
        s_cmp_eq_u32 s7, {R_Q}
        s_cbranch_scc1 L_role_q
        s_cmp_eq_u32 s7, {R_FFN}
        s_cbranch_scc1 L_role_ffn
        s_cmp_eq_u32 s7, {R_DOWN}
        s_cbranch_scc1 L_role_down
        s_cmp_eq_u32 s7, {R_RED}
        s_cbranch_scc1 L_role_red
        ''')
        a(f'''
        s_movk_i32 s52, 7680
        s_cmp_eq_u32 s7, {R_G1}
        s_cbranch_scc1 L_role_g1
        ''')
        self.srd(56, 34, 10240)
        a('s_mul_i32 s85, s3, 320')
        for n in range(5):
            a(f'buffer_load_dwordx4 v[{120+4*n}:{123+4*n}], v6, s[56:59], s85 offen offset:{64*n}')
        a(f'''
        s_lshl_b32 s9, s8, 7
        s_add_u32 s9, s9, 2560
        s_add_u32 s48, s36, s9
        s_addc_u32 s49, s37, 0
        s_add_u32 s50, s48, 64
        s_addc_u32 s51, s49, 0
        s_waitcnt vmcnt(0)
        ''')
        self.silu()
        if self.pfb: self.lds_wait(C_PF2, 1, sleep=2)
        self.dma640(self.WDM)
        a('s_waitcnt vmcnt(0)')
        self.stamp(2)
        self.wfrags640()
        self.mfma640('L_ctrl_end')
        a(f'''
        v_and_b32 v22, 7, v2
        v_mul_u32_u24 v22, 5120, v22
        v_add_u32 v22, v22, v8
        s_lshl_b32 s90, s8, 7
        s_add_u32 s90, s90, {WS_MODO}
        ''')
        self.red640()
        self.pack4(24, 40); self.pack4(26, 56)
        self.sanitize([24, 25, 26, 27])
        self.lds_wait(C_QOK, 1, sleep=8)
        a(f'''
        buffer_store_dwordx2 v[24:25], v22, s[44:47], s90 offen sc1
        buffer_store_dwordx2 v[26:27], v22, s[44:47], s90 offen offset:64 sc1
        s_branch L_ctrl_end
        L_role_g1:
        s_lshl_b32 s9, s8, 6
        s_add_u32 s48, s36, s9
        s_addc_u32 s49, s37, 0
        s_add_u32 s50, s48, 1280
        s_addc_u32 s51, s49, 0
        v_add_u32 v34, v19, v8
        ''')
        self.stamp(6)
        self.dma640(99)
        self.srd(60, 16, 10240)
        a(f'''
        buffer_load_dwordx2 v[150:151], v34, s[60:63], s9 offen
        s_lshl_b32 s85, s8, 2
        s_add_u32 s85, s85, s3
        s_lshl_b32 s85, s85, 11
        s_add_u32 s85, s85, {SB2}
        v_mov_b32 v152, -1
        v_mov_b32 v153, -1
        v_mov_b32 v154, -1
        v_mov_b32 v155, -1
        buffer_store_dwordx4 v[152:155], v7, s[44:47], s85 offen sc1
        buffer_store_dwordx4 v[152:155], v7, s[44:47], s85 offen offset:1024 sc1
        v_and_b32 v16, 7, v2
        v_mul_u32_u24 v16, {ACTS}, v16
        v_lshrrev_b32 v17, 4, v2
        v_lshl_add_u32 v16, v17, 4, v16
        s_mul_i32 s85, s3, 320
        s_add_u32 s85, s85, {L_ACT}
        v_add_u32 v35, s85, v16
        ''')
        self.signal(C_GO)
        self.stamp(1)
        self.lds_wait(C_ACT, 8)
        for n in range(5): a(f'ds_read_b128 v[{120+4*n}:{123+4*n}], v35 offset:{64*n}')
        self.stamp(3)
        self.wfrags640(younger=3)
        self.tag_from(167)
        a('s_waitcnt vmcnt(0)')
        self.stamp(2)
        self.mfma640('L_ctrl_end')
        a(f'''
        v_and_b32 v22, 7, v2
        v_lshl_add_u32 v23, v22, 3, v13
        ds_read_b64 v[36:37], v23 offset:{L_STAT}
        ''')
        self.red640()
        self.pack4(24, 40); self.pack4(26, 56)
        self.unpack4(56, 26)
        a('v_pk_add_f32 v[56:57], v[56:57], 1.0 op_sel_hi:[1,0]\nv_pk_add_f32 v[58:59], v[58:59], 1.0 op_sel_hi:[1,0]')
        self.round4(56, 26)
        self.unpack4(40, 24)
        self.unpack4(44, 150)
        for i in range(4): a(f'v_sub_f32 v{44+i}, v{44+i}, v36')
        self.round4(44, 28)
        for i in range(4): a(f'v_mul_f32 v{44+i}, v{44+i}, v37')
        self.round4(44, 28)
        a('v_pk_mul_f32 v[44:45], v[44:45], v[56:57]\nv_pk_mul_f32 v[46:47], v[46:47], v[58:59]')
        self.round4(44, 28)
        a('v_pk_add_f32 v[44:45], v[44:45], v[40:41]\nv_pk_add_f32 v[46:47], v[46:47], v[42:43]')
        a(f'''
        v_cvt_pk_bf16_f32 v28, v44, v45
        v_cvt_pk_bf16_f32 v30, v46, v47
        v_mov_b32 v29, s94
        v_mov_b32 v31, s94
        v_lshlrev_b32 v22, 4, v22               ; b*16
        v_lshl_add_u32 v22, v8, 4, v22          ; + (16t+4s')*32 = t*512 + s'*128
        s_lshl_b32 s85, s8, 10
        s_add_u32 s85, s85, {WS_H1}
        buffer_store_dwordx4 v[28:31], v22, s[44:47], s85 offen sc1
        s_branch L_ctrl_end
        ''')
        a(f'''
        L_role_q:
        s_lshl_b32 s9, s8, 7
        s_add_u32 s48, s22, s9
        s_addc_u32 s49, s23, 0
        s_add_u32 s50, s48, 64
        s_addc_u32 s51, s49, 0
        s_movk_i32 s52, 8192
        ''')
        if self.pfb: self.lds_wait(C_PF, 1, sleep=2)
        self.dma640(99)
        a(f'''
        s_and_b32 s85, s8, 1
        s_lshl_b32 s85, s85, 2
        s_add_u32 s85, s85, s3
        s_lshl_b32 s85, s85, 5
        s_lshr_b32 s86, s8, 1
        s_add_u32 s85, s85, s86
        s_mul_i32 s85, s85, 2560
        s_add_u32 s85, s85, {WS_P}
        v_mov_b32 v152, -1
        v_mov_b32 v153, -1
        v_mov_b32 v154, -1
        v_mov_b32 v155, -1
        v_lshlrev_b32 v19, 3, v2
        buffer_store_dwordx4 v[152:155], v7, s[44:47], s85 offen sc1
        buffer_store_dwordx4 v[152:155], v7, s[44:47], s85 offen offset:1024 sc1
        buffer_store_dwordx2 v[152:153], v19, s[44:47], s85 offen offset:2048 sc1
        ''')
        self.signal(C_GO)
        a('s_waitcnt vmcnt(0)')
        self.stamp(2)
        self.tag_from(167)
        self.wfrags640()
        a(f'''
        s_mul_i32 s90, s3, 5120
        s_add_u32 s90, s90, {WS_H1}
        s_add_u32 s91, s90, 4096
        ''')
        self.stamp(3)
        loads = [f'buffer_load_dwordx4 v[{120+4*n}:{123+4*n}], v7, s[44:47], s{90 if n < 4 else 91} offen offset:{1024*(n%4)} sc1' for n in range(5)]
        self.poll('h1', loads, [121 + 2 * i for i in range(10)], 4, tagged=True)
        self.stamp(4)
        for n in range(5):
            b = 120 + 4 * n
            a(f'v_mov_b32_dpp v{b+3}, v{b+2} row_ror:8 row_mask:0xf bank_mask:0xf')
            a(f'v_mov_b32 v{b+1}, v{b+2}')
            a(f'v_mov_b32_dpp v{b+2}, v{b} row_ror:8 row_mask:0xf bank_mask:0xf')
        self.mfma640('L_ctrl_end')
        a(f'''
        v_and_b32 v22, 7, v2
        v_lshlrev_b32 v22, 14, v22              ; b*32*512
        v_lshl_add_u32 v22, v8, 1, v22          ; + col*4
        s_lshl_b32 s85, s8, 8                   ; h*512 + half*256
        s_add_u32 s85, s85, {WS_Q}
        v_mov_b32 v29, s94
        v_mov_b32 v31, s94
        v_mov_b32 v33, s94
        v_mov_b32 v35, s94
        ''')
        self.red640()
        a(f'''
        v_cvt_pk_bf16_f32 v28, v40, v41
        v_cvt_pk_bf16_f32 v30, v42, v43
        v_cvt_pk_bf16_f32 v32, v56, v57
        v_cvt_pk_bf16_f32 v34, v58, v59
        buffer_store_dwordx4 v[28:31], v22, s[44:47], s85 offen sc1
        buffer_store_dwordx4 v[32:35], v22, s[44:47], s85 offen offset:128 sc1
        s_branch L_ctrl_end
        ''')
        a(f'''
        L_role_ffn:
        s_lshl_b32 s9, s8, 6
        s_add_u32 s48, s28, s9
        s_addc_u32 s49, s29, 0
        s_add_u32 s50, s30, s9
        s_addc_u32 s51, s31, 0
        s_movk_i32 s52, 3456
        ''')
        self.dma640_setup()
        self.dma640_issue(0, self.nEf, 1)
        self.lds_wait(C_DONE, 1, sleep=4)
        self.dma640_issue(self.nEf, 20)
        self.wfrags640(younger=0)
        self.stamp(2)
        a(f'''
        s_mul_i32 s90, s3, 320
        s_add_u32 s90, s90, {WS_H2}
        v_and_b32 v32, 7, v2
        v_lshlrev_b32 v32, 4, v32
        v_bfe_u32 v33, v2, 3, 1
        v_lshl_add_u32 v32, v33, 8, v32
        v_bfe_u32 v33, v2, 5, 1
        v_lshl_add_u32 v32, v33, 7, v32
        v_bfe_u32 v33, v2, 4, 1
        v_lshl_add_u32 v32, v33, 3, v32
        s_lshl_b32 s91, s8, 9
        s_add_u32 s91, s91, {WS_HID}
        ''')
        self.lds_wait(C_WO, 8, sleep=4)
        self.stamp(3)
        loads = [f'buffer_load_dwordx4 v[{120+4*n}:{123+4*n}], v6, s[44:47], s90 offen offset:{64*n} sc1' for n in range(5)]
        self.poll('h2', loads, list(range(120, 140)), 2)
        self.stamp(4)
        self.mfma640('L_ctrl_end')
        self.red640()
        self.round4(40, 28); self.round4(56, 30)
        for i in range(4):
            a(f'v_cmp_lt_f32 vcc, 0, v{40+i}\nv_cndmask_b32 v{20+i}, 0, 1.0, vcc')
        a('v_pk_mul_f32 v[40:41], v[40:41], v[20:21]\nv_pk_mul_f32 v[42:43], v[42:43], v[22:23]')
        a('v_pk_mul_f32 v[40:41], v[40:41], v[56:57]\nv_pk_mul_f32 v[42:43], v[42:43], v[58:59]')
        self.pack4(28, 40); self.sanitize([28, 29])
        a(f'''
        buffer_store_dwordx2 v[28:29], v32, s[44:47], s91 offen sc1
        s_branch L_ctrl_end
        ''')
        a('L_role_down:')
        self.srd(72, 32, 1728 * 1280); self.srd(80, 38, 10240)
        a(f'''
        s_add_u32 s76, s42, {WS_HID}
        s_addc_u32 s77, s43, 0
        s_mov_b32 s78, {27*1024}
        s_mov_b32 s79, 0x20000
        v_lshrrev_b32 v16, 1, v2
        v_mul_u32_u24 v4, 1280, v16
        v_and_b32 v16, 1, v2
        v_lshl_add_u32 v4, v16, 4, v4
        s_mul_i32 s85, s3, {7*64*1280}
        s_lshl_b32 s9, s8, 5
        s_add_u32 s85, s85, s9
        s_mul_i32 s87, s3, 14336
        ''')
        for n in range(14):
            if n == self.nEd: self.lds_wait(C_DONE, 1, sleep=4)
            a(f's_add_u32 m0, s87, {LW + 1024*n}')
            if n < self.nEd: a(f's_waitcnt vmcnt(0)')
            a(f'buffer_load_dwordx4 v4, s[72:75], s85 offen nt lds')
            a(f's_add_u32 s85, s85, {32*1280}')
        a(f'''
        v_lshrrev_b32 v16, 4, v2         ; s
        v_bfe_u32 v17, v2, 2, 2          ; r4
        v_lshl_add_u32 v19, v16, 3, v17
        v_lshlrev_b32 v9, 5, v19
        v_bfe_u32 v17, v2, 1, 1
        v_lshl_add_u32 v9, v17, 10, v9
        v_and_b32 v17, 1, v2
        v_lshl_add_u32 v9, v17, 3, v9
        v_add_u32 v9, s87, v9
        v_add_u32 v10, s87, v7
        v_and_b32 v17, 7, v2             ; b
        v_bfe_u32 v18, v2, 3, 1          ; a / half
        v_lshlrev_b32 v3, 7, v16
        v_lshl_add_u32 v3, v17, 4, v3
        v_lshl_add_u32 v3, v18, 9, v3
        s_mul_i32 s86, s3, 7168
        v_add_u32 v3, s86, v3
        v_and_b32 v16, 1, v16            ; s'
        v_lshlrev_b32 v11, 8, v16
        v_lshl_add_u32 v11, v17, 4, v11
        v_lshl_add_u32 v11, v18, 10, v11
        v_lshlrev_b32 v8, 4, v18
        v_lshl_add_u32 v8, v16, 3, v8    ; (8a+4s')*2
        v_mul_u32_u24 v5, 5120, v17
        v_add_u32 v5, v5, v8
        v_mul_u32_u24 v6, 1280, v17
        v_add_u32 v6, v6, v8
        s_add_u32 s90, s9, {WS_MODO + 3840}
        s_add_u32 s91, s9, {WS_X1}
        s_movk_i32 s92, 4096
        s_waitcnt vmcnt(0)
        ''')
        self.stamp(2)
        self.tag_from(167)
        for n in range(7):
            for ac in range(2):
                b = 40 + 8 * n + 4 * ac
                a(f'ds_read_b64_tr_b16 v[{b}:{b+1}], v9 offset:{LW + 2048*n + 16*ac}')
                a(f'ds_read_b64_tr_b16 v[{b+2}:{b+3}], v9 offset:{LW + 2048*n + 16*ac + 128}')
            if n % 2: a('s_waitcnt lgkmcnt(0)')
        self.lds_wait(C_WO, 8, sleep=4)
        self.poll('gb', ['buffer_load_dwordx2 v[32:33], v5, s[44:47], s90 offen sc1'], [32, 33], 4)
        self.unpack4(140, 32)
        self.stamp(3)
        self.poll('x1', ['buffer_load_dwordx2 v[32:33], v6, s[44:47], s91 offen sc1'], [32, 33], 4)
        self.unpack4(144, 32)
        self.stamp(5)
        loads = [f'buffer_load_dwordx4 v[{104+4*n}:{107+4*n}], v3, s[76:79], {"0" if n < 4 else "s92"} offen offset:{1024*(n%4)} sc1' for n in range(7)]
        self.poll('hid', loads, list(range(104, 132)), 1)
        self.stamp(4)
        for n in range(7):
            for ac in range(2):
                b = 40 + 8 * n + 4 * ac; d = 16 + 4 * ac
                a(f'v_mfma_f32_16x16x32_bf16 v[{d}:{d+3}], v[{b}:{b+3}], v[{104+4*n}:{107+4*n}], {"0" if n == 0 else "v[%d:%d]" % (d, d+3)}')
        a(f'ds_write_b128 v10, v[16:19] offset:{LW}\nds_write_b128 v10, v[20:23] offset:{LW + 1024}')
        self.arrive(C_A, 3, 'L_ctrl_end')
        for w in range(4):
            a(f'ds_read_b128 v[{40+8*w}:{43+8*w}], v11 offset:{LW + 14336*w}')
            a(f'ds_read_b128 v[{44+8*w}:{47+8*w}], v11 offset:{LW + 14336*w + 640}')
        a('s_waitcnt lgkmcnt(0)')
        self.sum_partials(40, [40 + 4 * i for i in range(8)])
        self.round4(40, 28)
        a('v_pk_mul_f32 v[40:41], v[40:41], v[140:141]\nv_pk_mul_f32 v[42:43], v[42:43], v[142:143]')
        self.round4(40, 28)
        a('v_pk_add_f32 v[40:41], v[40:41], v[144:145]\nv_pk_add_f32 v[42:43], v[42:43], v[146:147]')
        self.pack4(28, 40)
        a(f'''
        s_mov_b32 exec_hi, 0
        buffer_store_dwordx2 v[28:29], v6, s[80:83], s9 offen
        s_cmp_lg_u32 s8, 0
        s_cbranch_scc1 L_noepoch
        s_mov_b64 exec, 1
        v_mov_b32 v20, 0
        v_mov_b32 v21, s94
        buffer_store_dword v21, v20, s[44:47], 0 offen sc1
        L_noepoch:
        s_mov_b64 exec, -1
        s_branch L_ctrl_end
        ''')
        a('L_role_red:')
        self.srd(60, 16, 10240)
        a(f'''
        v_lshlrev_b32 v8, 3, v2          ; lane*8
        s_mul_i32 s9, s8, 1280
        buffer_load_dwordx2 v[26:27], v8, s[60:63], s9 offen
        buffer_load_dwordx2 v[28:29], v8, s[60:63], s9 offen offset:512
        buffer_load_dword v30, v12, s[60:63], s9 offen offset:1024
        s_lshl_b32 s90, s8, 14
        s_lshl_b32 s85, s3, 12
        s_add_u32 s90, s90, s85
        s_add_u32 s90, s90, {WS_Q}
        s_waitcnt vmcnt(0)
        ''')
        self.tag_from(167)
        for i in range(5): self.unpack(120 + 2 * i, 26 + i)
        self.lds_wait(C_QOK, 1, sleep=8)
        loads = [f'buffer_load_dwordx4 v[{40+4*n}:{43+4*n}], v7, s[44:47], s90 offen offset:{1024*n} sc1' for n in range(4)]
        self.poll('qall', loads, [41 + 2 * i for i in range(8)], 8, tagged=True)
        a(f'''
        s_mul_i32 s90, s8, 5120
        s_add_u32 s90, s90, {WS_MODO}
        ''')
        loads = []
        for ch in range(3):
            b = 40 + 6 * ch
            loads += [f'buffer_load_dwordx2 v[{b}:{b+1}], v8, s[44:47], s90 offen offset:{1280*ch} sc1',
                      f'buffer_load_dwordx2 v[{b+2}:{b+3}], v8, s[44:47], s90 offen offset:{1280*ch + 512} sc1',
                      f'buffer_load_dword v{b+4}, v12, s[44:47], s90 offen offset:{1280*ch + 1024} sc1']
        self.poll('modo', loads, [40 + 6 * ch + i for ch in range(3) for i in range(5)], 8)
        for ch in range(3):
            for i in range(5): self.unpack(130 + 10 * ch + 2 * i, 40 + 6 * ch + i)
        for i in range(5):
            a(f'v_pk_add_f32 v[{150+2*i}:{151+2*i}], v[{150+2*i}:{151+2*i}], 1.0 op_sel_hi:[1,0]')
            a(f'v_cvt_pk_bf16_f32 v26, v{150+2*i}, v{151+2*i}')
            self.unpack(150 + 2 * i, 26)
        for i in range(10): a(f'v_mov_b32 v{16+i}, 0')
        a(f'''
        s_lshl_b32 s91, s8, 5
        s_lshl_b32 s85, s3, 3
        s_add_u32 s91, s91, s85
        s_mul_i32 s91, s91, 2560
        s_add_u32 s91, s91, {WS_P}
        s_mul_i32 s87, s3, 2560
        v_add_u32 v10, s87, v7
        v_add_u32 v11, s87, v8
        s_add_u32 s92, s9, {WS_H2}
        s_add_u32 s93, s9, {WS_X1}
        ''')
        self.stamp(2)
        self.lds_wait(C_PROG, 1, sleep=8)
        self.stamp(3)
        a(f'''
        s_mov_b32 s90, 0xff
        s_mov_b32 s89, {SPIN_LIMIT}
        v_and_b32 v34, 7, v2
        v_mul_u32_u24 v34, 2560, v34
        L_p_poll:
        s_mov_b32 s95, s90
        ds_read_b32 v14, v13 offset:{C_WO}
        s_waitcnt lgkmcnt(0)
        v_readfirstlane_b32 s88, v14
        s_cmp_ge_u32 s88, 8
        s_cbranch_scc1 L_p_fetch
        s_sleep 6
        buffer_load_dword v35, v34, s[44:47], s91 offen offset:2556 sc1
        s_waitcnt vmcnt(0)
        v_cmp_ne_u32 vcc, -1, v35
        s_nop 1
        s_and_b32 s95, s90, vcc_lo
        s_cbranch_scc0 L_p_next
        L_p_fetch:
        ''')
        for g in range(8):
            b = 40 + 10 * g
            a(f'''
            s_bitcmp1_b32 s95, {g}
            s_cbranch_scc0 L_p_sk{g}
            s_add_u32 s85, s91, {2560*g}
            buffer_load_dwordx4 v[{b}:{b+3}], v7, s[44:47], s85 offen sc1
            buffer_load_dwordx4 v[{b+4}:{b+7}], v7, s[44:47], s85 offen offset:1024 sc1
            buffer_load_dwordx2 v[{b+8}:{b+9}], v8, s[44:47], s85 offen offset:2048 sc1
            L_p_sk{g}:
            ''')
        a('s_waitcnt vmcnt(0)')
        for g in range(8):
            b = 40 + 10 * g
            a(f'''
            s_bitcmp1_b32 s95, {g}
            s_cbranch_scc0 L_p_ck{g}
            v_max3_u32 v36, v{b}, v{b+1}, v{b+2}
            v_max3_u32 v37, v{b+3}, v{b+4}, v{b+5}
            v_max3_u32 v36, v36, v{b+6}, v{b+7}
            v_max3_u32 v37, v37, v{b+8}, v{b+9}
            v_max_u32 v36, v36, v37
            v_cmp_eq_u32 vcc, -1, v36
            s_cbranch_vccnz L_p_ck{g}
            s_bitset0_b32 s90, {g}
            ''')
            for i in range(5): a(f'v_pk_add_f32 v[{16+2*i}:{17+2*i}], v[{16+2*i}:{17+2*i}], v[{b+2*i}:{b+2*i+1}]')
            a(f'L_p_ck{g}:')
        a(f'''
        s_cmp_eq_u32 s90, 0
        s_cbranch_scc1 L_p_ok
        L_p_next:
        s_sub_u32 s89, s89, 1
        s_cbranch_scc0 L_p_poll
        L_p_ok:
        ''')
        self.stamp(4)
        a(f'''
        ds_write_b128 v10, v[16:19] offset:{LW}
        ds_write_b128 v10, v[20:23] offset:{LW + 1024}
        ds_write_b64 v11, v[24:25] offset:{LW + 2048}
        ''')
        self.arrive(C_A, 3, 'L_ctrl_end')
        for w in range(4):
            b = 40 + 10 * w
            a(f'ds_read_b128 v[{b}:{b+3}], v7 offset:{LW + 2560*w}')
            a(f'ds_read_b128 v[{b+4}:{b+7}], v7 offset:{LW + 2560*w + 1024}')
            a(f'ds_read_b64 v[{b+8}:{b+9}], v8 offset:{LW + 2560*w + 2048}')
        a('s_waitcnt lgkmcnt(0)')
        U = 40
        def P(r, i): return f'v[{r+2*i}:{r+2*i+1}]'
        for i in range(5): a(f'v_pk_add_f32 {P(40,i)}, {P(40,i)}, {P(50,i)}')
        for i in range(5): a(f'v_pk_add_f32 {P(60,i)}, {P(60,i)}, {P(70,i)}')
        for i in range(5): a(f'v_pk_add_f32 {P(40,i)}, {P(40,i)}, {P(60,i)}')
        def pk():
            for i in range(5): a(f'v_cvt_pk_bf16_f32 v{26+i}, v{U+2*i}, v{U+2*i+1}')
        def rnd():
            pk()
            for i in range(5): self.unpack(U + 2 * i, 26 + i)
        rnd()
        for i in range(5): a(f'v_pk_mul_f32 {P(U,i)}, {P(U,i)}, {P(130,i)}')
        rnd()
        for i in range(5): a(f'v_pk_add_f32 {P(U,i)}, {P(U,i)}, {P(120,i)}')
        for i in range(5): a(f'v_cvt_pk_bf16_f32 v{160+i}, v{U+2*i}, v{U+2*i+1}')
        self.sanitize(range(160, 165))
        self.ln_stats(160, U, 32, 96, 98)
        for i in range(5): a(f'v_pk_add_f32 {P(U,i)}, {P(U,i)}, s[96:97] op_sel_hi:[1,0] neg_lo:[0,1] neg_hi:[0,1]')
        rnd()
        for i in range(5): a(f'v_pk_mul_f32 {P(U,i)}, {P(U,i)}, s[98:99] op_sel_hi:[1,0]')
        rnd()
        for i in range(5): a(f'v_pk_mul_f32 {P(U,i)}, {P(U,i)}, {P(150,i)}')
        rnd()
        for i in range(5): a(f'v_pk_add_f32 {P(U,i)}, {P(U,i)}, {P(140,i)}')
        pk()
        self.sanitize(range(26, 31))
        a(f'''
        buffer_store_dwordx2 v[26:27], v8, s[44:47], s92 offen sc1
        buffer_store_dwordx2 v[28:29], v8, s[44:47], s92 offen offset:512 sc1
        buffer_store_dword v30, v12, s[44:47], s92 offen offset:1024 sc1
        buffer_store_dwordx2 v[160:161], v8, s[44:47], s93 offen sc1
        buffer_store_dwordx2 v[162:163], v8, s[44:47], s93 offen offset:512 sc1
        buffer_store_dword v164, v12, s[44:47], s93 offen offset:1024 sc1
        L_ctrl_end:
        ''')
        self.stamp(11)
        if self.late:
            a(f's_cmp_eq_u32 s7, {R_DOWN}\ns_cbranch_scc1 L_ctrl_fin\ns_cmp_eq_u32 s7, {R_FFN}\ns_cbranch_scc1 L_ctrl_fin\ns_cmp_eq_u32 s7, {R_RED}\ns_cbranch_scc1 L_ctrl_fin')
            self.prefetch_late('e')
            a('L_ctrl_fin:')
        self.stamp_flush()
        self.diag_end()
        a('s_endpgm')

    def stream(self):
        a = self.a
        self.cur_cls = 0
        WK, WV = self.WK, self.WV
        NV = 12
        KV = lambda t: 40 + 4 * t
        a(f'''
        L_stream:
        s_sub_u32 s15, s3, 4             ; sw
        s_lshl_b32 s85, s15, 15
        v_add_u32 v1, s85, v7
        s_mul_i32 s91, s2, {self.rot}
        s_mul_i32 s85, s15, {self.rotw}
        s_add_u32 s91, s91, s85
        s_and_b32 s91, s91, 31
        s_lshl_b32 s91, s91, 10          ; rotation
        s_lshl_b32 s85, s2, 20
        s_add_u32 s85, s85, 0xC0000
        s_add_u32 s48, s18, s85
        s_addc_u32 s49, s19, 0
        s_mov_b32 s50, 0x40000
        s_mov_b32 s51, 0x20000
        s_add_u32 s52, s20, s85
        s_addc_u32 s53, s21, 0
        s_mov_b32 s54, 0x40000
        s_mov_b32 s55, 0x20000
        ''')
        for _ in range(self.sdelay): a('s_sleep 32')
        if self.hold > 1: a(f's_cmp_eq_u32 s7, {R_Q}\ns_cbranch_scc1 L_hold')
        a(f's_cmp_lg_u32 s7, {R_G1}\ns_cbranch_scc1 L_nohold')
        self.srd(56, 34, 10240); self.srd(60, 16, 10240)
        a('s_mul_i32 s90, s15, 1280\nv_lshlrev_b32 v12, 2, v2')
        for n in range(5): a(f'buffer_load_dword v{40+n}, v12, s[56:59], s90 offen offset:{256*n}')
        for n in range(5): a(f'buffer_load_dword v{46+n}, v12, s[60:63], s90 offen offset:{256*n}')
        a(f'''
        s_mul_i32 s90, s15, {ACTS}
        s_add_u32 s90, s90, {L_ACT}
        v_add_u32 v12, s90, v12
        s_mov_b32 s85, {LOG2E | 0x80000000}
        s_waitcnt vmcnt(5)
        ''')
        self.stamp(9)
        for i in range(5): self.unpack(52 + 2 * i, 40 + i)
        for i in range(10): a(f'v_mul_f32 v{64+i}, s85, v{52+i}')
        for i in range(10): a(f'v_exp_f32 v{64+i}, v{64+i}')
        for i in range(10): a(f'v_add_f32 v{64+i}, 1.0, v{64+i}')
        for i in range(10): a(f'v_rcp_f32 v{64+i}, v{64+i}')
        for i in range(10): a(f'v_mul_f32 v{52+i}, v{52+i}, v{64+i}')
        for i in range(5): a(f'v_cvt_pk_bf16_f32 v{40+i}, v{52+2*i}, v{53+2*i}')
        for i in range(5): a(f'ds_write_b32 v12, v{40+i} offset:{256*i}')
        a('s_waitcnt vmcnt(0)')
        self.ln_stats(46, 52, 64, 90, 92)
        a(f'''
        v_mov_b32 v28, s90
        v_mov_b32 v29, s92
        s_lshl_b32 s85, s15, 3
        v_add_u32 v30, s85, v13
        ds_write_b64 v30, v[28:29] offset:{L_STAT}
        ''')
        self.signal(C_ACT)
        a('L_hold:')
        if self.hold: self.lds_wait(C_GO, 4, sleep=2)
        a('L_nohold:')
        q = []
        def wait_for(name):
            i = len(q) - 1 - q[::-1].index(name)
            n = len(q) - 1 - i
            a(f's_waitcnt vmcnt({min(n, 63)})')
        def ld(t, slot, srd, nm):
            a(f's_add_u32 s92, s91, {t*1024}\ns_and_b32 s92, s92, 0x7fff')
            a(f'buffer_load_dwordx4 v[{KV(slot)}:{KV(slot)+3}], v1, {srd}, s92 offen nt')
            q.append(nm)
        qloads = ['buffer_load_dwordx4 v[4:7], v12, s[44:47], s93 offen sc1', 'buffer_load_dwordx4 v[16:19], v12, s[44:47], s93 offen offset:16 sc1']
        for t in range(32):
            wk = WK if t >= self.wk_sw else self.WK0
            if t >= wk:
                if self.WKL > wk and t >= self.wkl_sw:
                    L = a.label('L_kw')
                    a(f's_waitcnt vmcnt({self.WKL-1})\ns_cbranch_vccnz {L}\ns_waitcnt vmcnt({wk-1})\n{L}:')
                else: a(f's_waitcnt vmcnt({wk-1})')
            if t == self.WK0: self.stamp(8)
            ld(t, t, 's[48:51]', f'K{t}')
            if t == self.WK0 - 1:
                a(f'''
                v_mov_b32 v3, 0
                buffer_load_dword v35, v3, s[44:47], 0 offen sc1
                v_and_b32 v3, 15, v2
                v_lshlrev_b32 v12, 5, v3             ; Q voffset
                s_lshl_b32 s93, s2, 9
                s_add_u32 s93, s93, {WS_Q}
                v_mov_b32 v16, 0xffff
                v_mov_b32 v17, s84
                ''')
                q.append('E')
                for r in range(4):
                    a(f'''
                    v_cmp_eq_u32 vcc, {2*r}, v3
                    v_cndmask_b32 v{8+r}, 0, v16, vcc
                    v_cmp_eq_u32 vcc, {2*r+1}, v3
                    v_cndmask_b32 v{8+r}, v{8+r}, v17, vcc
                    ''')
                a(f'''
                s_mov_b32 s96, 0xcccccccc
                s_mov_b32 s97, 0xcccccccc
                s_mov_b32 s98, 0xaaaaaaaa
                s_mov_b32 s99, 0xaaaaaaaa
                s_mul_i32 s85, s14, 163840
                s_add_u32 s56, s24, s85
                s_addc_u32 s57, s25, 0
                s_mov_b32 s58, 163840
                s_mov_b32 s59, 0x20000
                v_lshrrev_b32 v34, 4, v2
                v_mul_u32_u24 v34, 5120, v34
                v_lshl_add_u32 v34, v3, 4, v34
                s_mul_i32 s85, s15, 20480
                v_add_u32 v34, s85, v34
                s_lshr_b32 s85, {self.lagmask}, s7
                s_bitcmp1_b32 s85, 0
                s_cselect_b64 vcc, -1, 0
                ''')
            if t == 12:
                self.tag_from(35)
            if t == self.qpos:
                for l in qloads: a(l)
                q.append('Q0'); q.append('Q1')
        self.stamp(1)
        wait_for('Q1')
        a(f'''
        s_mov_b32 s89, {SPIN_LIMIT}
        L_q_chk:
        v_xor_b32 v20, s94, v5
        v_xor_b32 v21, s94, v7
        v_xor_b32 v22, s94, v17
        v_xor_b32 v23, s94, v19
        v_or_b32 v20, v20, v21
        v_or3_b32 v20, v20, v22, v23
        v_cmp_ne_u32 vcc, 0, v20
        s_cbranch_vccz L_q_ok
        s_sleep 4
        {qloads[0]}
        {qloads[1]}
        s_waitcnt vmcnt(0)
        s_sub_u32 s89, s89, 1
        s_cbranch_scc0 L_q_chk
        L_q_ok:
        v_mov_b32 v5, v6
        v_mov_b32 v6, v16
        v_mov_b32 v7, v18
        ''')
        self.signal(C_QOK)
        self.stamp(2)
        D = 20
        st = dict(V=0, W=0)
        def ldwo(n):
            tp, c = n // 5, n % 5
            so = ['0', 's60', 's61', 's62'][tp]
            a(f'buffer_load_dwordx4 v[{KV(NV+n)}:{KV(NV+n)+3}], v34, s[56:59], {so} offen offset:{256*c} nt')
            q.append(f'W{n}')
        def pre(g, free):
            for ch in self.pre[g]:
                if ch == 'V':
                    assert st['V'] < NV and st['V'] <= free
                    ld(st['V'], st['V'], 's[52:55]', f"V{st['V']}"); st['V'] += 1
                else:
                    assert NV + st['W'] <= free
                    ldwo(st['W']); st['W'] += 1
        a('s_movk_i32 s60, 1280\ns_movk_i32 s61, 2560\ns_movk_i32 s62, 3840')
        for g in range(8):
            wait_for(f'K{4*g+3}')
            for i in range(4):
                for k in range(4):
                    t = 4 * g + k
                    a(f'v_dot2_f32_bf16 v{D+k}, v{KV(t)+i}, v{4+i}, {"0" if i == 0 else "v%d" % (D+k)}')
            pre(g, 4 * g + 3)
            a(f'v_add_f32_dpp v24, v{D}, v{D} row_ror:8 row_mask:0xf bank_mask:0x3')
            a(f'v_add_f32_dpp v25, v{D+2}, v{D+2} row_ror:8 row_mask:0xf bank_mask:0x3')
            a(f'v_add_f32_dpp v24, v{D+1}, v{D+1} row_ror:8 row_mask:0xf bank_mask:0xc')
            a(f'v_add_f32_dpp v25, v{D+3}, v{D+3} row_ror:8 row_mask:0xf bank_mask:0xc')
            r2 = 26 + (g & 1)
            a(f'v_add_f32_dpp v{r2}, v24, v24 row_shl:4 row_mask:0xf bank_mask:0x5')
            a(f'v_add_f32_dpp v{r2}, v25, v25 row_shr:4 row_mask:0xf bank_mask:0xa')
            if g & 1:
                r3 = 28 + ((g >> 1) & 1)
                a(f'v_add_f32_dpp v30, v26, v26 quad_perm:[2,3,0,1] row_mask:0xf bank_mask:0xf')
                a(f'v_add_f32_dpp v31, v27, v27 quad_perm:[2,3,0,1] row_mask:0xf bank_mask:0xf')
                a(f'v_cndmask_b32 v{r3}, v30, v31, s[96:97]')
            if (g & 3) == 3:
                a(f'v_add_f32_dpp v30, v28, v28 quad_perm:[1,0,3,2] row_mask:0xf bank_mask:0xf')
                a(f'v_add_f32_dpp v31, v29, v29 quad_perm:[1,0,3,2] row_mask:0xf bank_mask:0xf')
                a(f'v_cndmask_b32 v{32 + (g >> 2)}, v30, v31, s[98:99]')
        a(f'''
        v_cvt_pk_bf16_f32 v20, v32, v33
        s_mov_b32 s86, 0x3db504f3
        ''')
        self.unpack(32, 20)
        a('v_pk_mul_f32 v[32:33], v[32:33], s[86:87] op_sel_hi:[1,0]\nv_cvt_pk_bf16_f32 v20, v32, v33')
        self.unpack(32, 20)
        a('v_max_f32 v20, v32, v33')
        self.wave_red(20, 'max')
        a(f'''
        v_readlane_b32 s86, v20, 63              ; m_w
        s_mov_b32 s90, {LOG2E}
        v_subrev_f32 v20, s86, v32
        v_subrev_f32 v21, s86, v33
        v_mul_f32 v20, s90, v20
        v_mul_f32 v21, s90, v21
        v_exp_f32 v20, v20
        v_exp_f32 v21, v21
        v_add_f32 v21, v20, v21
        ''')
        self.wave_red(21)
        a(f'''
        v_mov_b32 v20, s86
        s_lshl_b32 s85, s15, 3
        v_add_u32 v22, s85, v13
        s_mov_b32 exec_lo, 0
        s_mov_b32 exec_hi, 0x80000000
        ds_write_b64 v22, v[20:21] offset:{L_SM}
        s_mov_b64 exec, -1
        ''')
        self.stamp(3)
        self.signal(C_SM)
        pre(8, 31)
        self.lds_wait(C_SM, 8)
        self.stamp(4)
        a(f'''
        v_and_b32 v22, 7, v2
        v_lshl_add_u32 v22, v22, 3, v13
        ds_read_b64 v[20:21], v22 offset:{L_SM}
        s_waitcnt lgkmcnt(0)
        v_max_f32_dpp v22, v20, v20 row_ror:4 row_mask:0xf bank_mask:0xf
        v_max_f32_dpp v22, v22, v22 row_ror:2 row_mask:0xf bank_mask:0xf
        v_max_f32_dpp v22, v22, v22 row_ror:1 row_mask:0xf bank_mask:0xf
        v_sub_f32 v20, v20, v22
        v_mul_f32 v20, s90, v20
        v_exp_f32 v20, v20
        v_sub_f32 v32, v32, v22
        v_sub_f32 v33, v33, v22
        v_mul_f32 v21, v21, v20
        v_mul_f32 v32, s90, v32
        v_mul_f32 v33, s90, v33
        v_add_f32_dpp v21, v21, v21 row_ror:4 row_mask:0xf bank_mask:0xf
        v_exp_f32 v32, v32
        v_exp_f32 v33, v33
        v_add_f32_dpp v21, v21, v21 row_ror:2 row_mask:0xf bank_mask:0xf
        v_add_f32_dpp v21, v21, v21 row_ror:1 row_mask:0xf bank_mask:0xf
        v_rcp_f32 v21, v21
        v_mul_f32 v32, v32, v21
        v_mul_f32 v33, v33, v21
        v_cvt_pk_bf16_f32 v32, v32, v32
        v_cvt_pk_bf16_f32 v33, v33, v33
        ''')
        issued = st['V']; nwo = st['W']
        for t in range(32):
            A = 20 + 4 * (t & 1)
            for r in range(4):
                a(f'v_and_b32_dpp v{A+r}, v{32 + (t >> 4)}, v{8+r} row_newbcast:{bitrev4(t & 15)} row_mask:0xf bank_mask:0xf')
            wait_for(f'V{t}')
            a(f'v_mfma_f32_16x16x32_bf16 v[16:19], v[{A}:{A+3}], v[{KV(t % NV)}:{KV(t % NV)+3}], {"0" if t == 0 else "v[16:19]"}')
            while t + (WV if t < self.wv_sw else self.WV2) >= issued and issued < 32:
                ld(issued, issued % NV, 's[52:55]', f'V{issued}'); issued += 1
            if t >= self.wo_start:
                for _ in range(self.wo_per):
                    if nwo < 20: ldwo(nwo); nwo += 1
            if t == self.prog_t: self.signal(C_PROG)
            if t == self.progw_t: self.signal(C_PROGW)
            if t == self.k2_t: self.signal(C_K2)
            if t == 28:
                a(f'''
                v_lshlrev_b32 v7, 4, v2
                v_and_b32 v3, 15, v2
                v_lshrrev_b32 v4, 4, v2
                v_lshlrev_b32 v5, 5, v3
                v_lshl_add_u32 v5, v4, 4, v5          ; (8j+4s')*4
                s_lshl_b32 s85, s15, 9
                s_add_u32 s85, s85, {L_OP}
                v_add_u32 v6, s85, v5
                s_mul_i32 s85, s15, 2560
                s_add_u32 s85, s85, {L_WP}
                v_add_u32 v5, s85, v5
                s_lshl_b32 s85, s15, 6
                s_add_u32 s85, s85, {L_OP}
                v_lshl_add_u32 v4, v4, 4, s85
                v_add_u32 v35, {L_WP}, v7
                v_lshlrev_b32 v12, 3, v2
                v_add_u32 v36, {L_WP}, v12
                s_mul_i32 s87, s2, 2560
                s_add_u32 s87, s87, {WS_P}
                ''')
        assert nwo == 20
        a(f'''
        s_mov_b32 exec_hi, 0
        ds_write_b128 v6, v[16:19]
        s_mov_b64 exec, -1
        ''')
        self.stamp(5)
        self.signal(C_PV)
        self.lds_wait(C_PV, 8)
        for w in range(8):
            a(f'ds_read_b128 v[{40+4*w}:{43+4*w}], v4 offset:{512*w}')
        a('s_waitcnt lgkmcnt(0)')
        self.sum_partials(40, [40 + 4 * i for i in range(8)])
        for r in range(4): a(f'v_cvt_pk_bf16_f32 v{40+r}, v{40+r}, v{40+r}')
        for tp in range(4):
            for r in range(4): a(f'v_and_b32 v{44+4*tp+r}, v{40+tp}, v{8+r}')
        a('s_waitcnt vmcnt(0)')
        self.stamp(6)
        for tp in range(4):
            for c in range(5):
                d = 60 + 4 * c; b = KV(NV + 5 * tp + c)
                a(f'v_mfma_f32_16x16x32_bf16 v[{d}:{d+3}], v[{44+4*tp}:{47+4*tp}], v[{b}:{b+3}], {"0" if tp == 0 else "v[%d:%d]" % (d, d+3)}')
        a('s_mov_b32 exec_hi, 0')
        for c in range(5): a(f'ds_write_b128 v5, v[{60+4*c}:{63+4*c}] offset:{512*c}')
        a('s_mov_b64 exec, -1')
        self.arrive(C_WO, 7, 'L_stream_end')
        self.stamp(7)
        for w in range(8):
            b = 40 + 10 * w
            a(f'ds_read_b128 v[{b}:{b+3}], v35 offset:{2560*w}')
            a(f'ds_read_b128 v[{b+4}:{b+7}], v35 offset:{2560*w + 1024}')
            a(f'ds_read_b64 v[{b+8}:{b+9}], v36 offset:{2560*w + 2048}')
            if w == 3: a('s_waitcnt lgkmcnt(0)')
        def P(r, i): return f'v[{r+2*i}:{r+2*i+1}]'
        for x, y in ((40, 50), (60, 70), (40, 60)):
            for i in range(5): a(f'v_pk_add_f32 {P(x,i)}, {P(x,i)}, {P(y,i)}')
        a('s_waitcnt lgkmcnt(0)')
        for x, y in ((80, 90), (100, 110), (80, 100), (40, 80)):
            for i in range(5): a(f'v_pk_add_f32 {P(x,i)}, {P(x,i)}, {P(y,i)}')
        self.sanitize(range(40, 50))
        a(f'''
        buffer_store_dwordx4 v[40:43], v7, s[44:47], s87 offen sc1
        buffer_store_dwordx4 v[44:47], v7, s[44:47], s87 offen offset:1024 sc1
        buffer_store_dwordx2 v[48:49], v12, s[44:47], s87 offen offset:2048 sc1
        ''')
        self.signal(C_DONE)
        a('L_stream_end:')
        self.stamp(10)
        self.stamp_flush()
        self.diag_end()
        a('L_end:\ns_endpgm\nL_code_end:')

    def build(self):
        self.prologue(); self.control(); self.stream()
        kn = NAME + '_kernel'
        body = '\n'.join(fix_hazards(self.a.l)) + '\n'
        hdr = open('cdna_kernels/' + NAME + '.s.ref').read().split('; Override launch')[0]
        return hdr + header([f'; @launch grid=(256,1,1) block=(768,1,1) lds={LDS_SIZE}']) + kernel_start(kn) + body + '.section .rodata,"a"\n' + descriptor(kn, vgpr=168, sgpr=102, accum=168)

if __name__ == '__main__':
    import argparse
    from collections import Counter
    rs = [role_of(w) for w in range(256)]
    for r, n in ((R_G1, 20), (R_DOWN, 40), (R_FFN, 54), (R_Q, 64), (R_MOD, 40), (R_RED, 8)):
        assert sorted(i for rr, i in rs if rr == r) == list(range(n)), r
    ap = argparse.ArgumentParser()
    ap.add_argument('-o', default='k.s'); ap.add_argument('--stamp', action='store_true')
    for p, d in (('WK', 3), ('WV', 3), ('rot', 3), ('rotw', 1), ('qpos', 25), ('prog_t', 22), ('progw_t', -1), ('WD', 20), ('wo_start', 0), ('wo_per', 1), ('sdelay', 0), ('WK0', 2), ('wk_sw', 16), ('k2_t', -1), ('WV2', 6), ('wv_sw', 16), ('hold', 1), ('pf', 1), ('WKL', 4), ('wkl_sw', 6), ('lagmask', 0x32), ('pfb', 1), ('cpf', 1), ('diag_until', 0), ('diag_xcc', 0), ('diag_role', -1), ('diag_cls', -1), ('diag_idx', -1), ('nEf', 8), ('nEd', 6), ('late', 0), ('WDM', 20), ('k2_n', 8)):
        ap.add_argument('--' + p, type=int, default=d)
    ap.add_argument('--pre', default='V,V,V,V,V,V,V,V,W')
    args = ap.parse_args()
    kw = dict(vars(args)); o = kw.pop('o')
    open(o, 'w').write(G(**kw).build())
```

```python
import sys
from asmlib import *
import gen as G1mod
from gen import bitrev4, LOG2E, SPIN_LIMIT

WS_E = 0
WS_H1 = 0x1000
WS_Q = 0x8000
SB2 = 0x28000
WS_H2 = SB2; WS_X1 = SB2 + 0x3000; WS_HID = SB2 + 0x6000; WS_MODO = SB2 + 0xD000
WS_P = 0x50000
WS_STAMP = 0x100000
WS_SIZE = 0x200000
LW = 0; L_OP = 0x14000; L_WP = 0x15000; LM = 0x1A000; LDS_SIZE = 0x1B000
C_A, C_SM, C_PV, C_WO, C_QOK, C_PROG, C_PROGW, C_GO, C_DONE, C_K2, C_ACT, C_PF, C_PF2 = [4 * i for i in range(13)]
L_STAT = 0x40; L_SM = 0x100
L_ACT = L_WP; ACTS = 1344
R_G1, R_DOWN, R_FFN, R_Q, R_MOD, R_RED = 1, 2, 3, 4, 5, 6

def role_of(wg):
    x = wg & 7; u = wg >> 3
    if u < 2: return R_G1, 2 * x + u
    if u < 6:
        k = u - 2
        e = EXTRA.get((x, k >> 1))
        if e is None: return 0, 0
        return e[0], e[0] * 16 + 2 * e[1] + (k & 1)
    if u < 14: return R_Q, (x + 8 * ((u - 6) >> 1)) * 2 + ((u - 6) & 1)
    if u < 19: return R_MOD, 5 * x + u - 14
    if u < 25: return R_FFN, 6 * x + u - 19
    if u < 29: return R_DOWN, 4 * x + u - 25
    if u == 29: return R_RED, x
    return 0, 0
EXTRA = {(0, 0): (R_DOWN, 0), (0, 1): (R_DOWN, 1), (2, 0): (R_DOWN, 2), (2, 1): (R_DOWN, 3),
         (4, 0): (R_FFN, 0), (4, 1): (R_FFN, 1), (6, 0): (R_G1, 0), (6, 1): (R_FFN, 2), (1, 0): (R_G1, 1)}

class G(G1mod.G):
    def __init__(self, stamp=False, WK=3, WV=3, rot=3, rotw=1, qpos=25, prog_t=22, progw_t=-1, WD=4, wo_start=0, wo_per=1, sdelay=0, WK0=2, wk_sw=16, k2_t=6, WV2=6, wv_sw=16, hold=1, pf=1, WKL=6, wkl_sw=6, lagmask=0x72, diag_xcc=0, diag_role=-1, diag_until=0, diag_cls=-1, diag_idx=-1, ntp='mqofkv', cpf=1, pfb=1, nEf=8, nEd=6, late=0, WDM=2, k2_n=8, pre='V,V,VV,VW,VWW,VWW,VVW,VWW,VVWW'):
        self.sdelay = sdelay; self.WK0 = WK0; self.wk_sw = wk_sw; self.k2_t = k2_t; self.WV2 = WV2; self.wv_sw = wv_sw; self.hold = hold; self.pf = pf; self.late = late; self.pfb = pfb; self.cpf = cpf; self.ntp = ntp; self.cur_nt = 'nt'; self.diag_until = diag_until; self.diag_xcc = diag_xcc; self.diag_role = diag_role; self.diag_cls = diag_cls; self.diag_idx = diag_idx; self.cur_cls = -1; self.nEf = nEf; self.nEd = nEd; self.WKL = WKL; self.wkl_sw = wkl_sw; self.lagmask = lagmask; self.WDM = WDM; self.k2_n = k2_n; self.pre = pre.split(',')
        self.a = Asm(); self.stamp_on = stamp
        self.WK = WK; self.WV = WV; self.rot = rot; self.rotw = rotw; self.qpos = qpos; self.prog_t = prog_t
        self.progw_t = progw_t; self.WD = WD; self.wo_start = wo_start; self.wo_per = wo_per

    def stamp(self, i):
        if self.diag_until and i == self.diag_idx and (self.cur_cls == self.diag_cls or (self.cur_cls == 99 and self.diag_cls > 0)):
            if self.cur_cls == 99:
                L = self.a.label('L_ds')
                self.a(f's_cmp_lg_u32 s7, {self.diag_cls}\ns_cbranch_scc1 {L}\ns_memrealtime s[100:101]\ns_waitcnt lgkmcnt(0)\n{L}:')
            elif self.diag_role >= 0:
                L = self.a.label('L_ds')
                self.a(f's_cmp_lg_u32 s7, {self.diag_role}\ns_cbranch_scc1 {L}\ns_memrealtime s[100:101]\ns_waitcnt lgkmcnt(0)\n{L}:')
            else:
                self.a('s_memrealtime s[100:101]\ns_waitcnt lgkmcnt(0)')
        super().stamp(i)

    def diag_end(self):
        if self.diag_until:
            L = self.a.label('L_diag')
            if self.diag_xcc:
                self.a('s_getreg_b32 s97, hwreg(HW_REG_XCC_ID)\ns_sub_u32 s97, s97, s2\ns_and_b32 s97, s97, 7')
                if self.diag_xcc == 2: self.a('s_sub_u32 s97, 7, s97')
                self.a('s_mul_i32 s97, s97, 400\ns_add_u32 s100, s100, s97')
            self.a(f'{L}:\ns_sleep 1\ns_memrealtime s[98:99]\ns_waitcnt lgkmcnt(0)\ns_sub_u32 s98, s98, s100\ns_cmp_lt_i32 s98, {self.diag_until*100}\ns_cbranch_scc1 {L}')

    def tag_from(self, v):
        self.a(f'''
        s_mov_b32 s85, 1664525
        v_mul_lo_u32 v{v}, s85, v{v}
        v_add_u32 v{v}, 1013904223, v{v}
        v_readfirstlane_b32 s94, v{v}
        ''')

    def poll(self, name, loads, check, sleep, tagged=False):
        a = self.a
        a(f's_mov_b32 s89, {SPIN_LIMIT}\nL_{name}_poll:')
        for l in loads: a(l)
        a('s_waitcnt vmcnt(0)')
        if tagged:
            for i in range(0, len(check), 2):
                a(f'v_xor_b32 v36, s94, v{check[i]}\nv_xor_b32 v37, s94, v{check[i+1]}')
                a('v_or_b32 v38, v36, v37' if i == 0 else 'v_or3_b32 v38, v38, v36, v37')
            a('v_cmp_ne_u32 vcc, 0, v38')
        else:
            c = list(check)
            if len(c) % 2 == 0:
                a(f'v_max_u32 v38, v{c[0]}, v{c[1]}'); c = c[2:]
            else:
                a(f'v_max3_u32 v38, v{c[0]}, v{c[1]}, v{c[2]}'); c = c[3:]
            for i in range(0, len(c), 2): a(f'v_max3_u32 v38, v38, v{c[i]}, v{c[i+1]}')
            a('v_cmp_eq_u32 vcc, -1, v38')
        a(f'''
        s_cbranch_vccz L_{name}_ok
        {"s_sleep %d" % sleep if sleep else ""}
        s_sub_u32 s89, s89, 1
        s_cbranch_scc0 L_{name}_poll
        L_{name}_ok:
        ''')

    def prologue(self):
        a = self.a
        a(f'''
        s_cmp_ge_u32 s2, 256
        s_cbranch_scc1 L_end
        {'s_memrealtime s[100:101]' if self.diag_until else ''}
        s_getpc_b64 s[86:87]
        L_pc0:
        v_lshlrev_b32 v3, 7, v0
        v_min_u32 v3, L_code_end-L_pc0-4, v3
        {'global_load_dword v161, v3, s[86:87]' if self.cpf else ''}
        s_load_dwordx16 s[16:31], s[0:1], 0
        s_load_dwordx8 s[32:39], s[0:1], 64
        s_load_dwordx4 s[40:43], s[0:1], 96
        v_lshrrev_b32 v1, 6, v0
        v_and_b32 v2, 63, v0
        v_readfirstlane_b32 s3, v1
        v_mov_b32 v13, {LM}
        s_mov_b32 s84, 0xffff0000
        v_mov_b32 v15, 0
        v_lshl_add_u32 v14, v2, 2, v13
        ds_write_b32 v14, v15
        s_lshr_b32 s13, s2, 5            ; b
        s_and_b32 s14, s2, 31            ; h
        v_lshlrev_b32 v7, 4, v2          ; lane*16
        ''')
        self.decode()
        a('''
        s_waitcnt lgkmcnt(0)
        s_barrier
        ''')
        self.srd(44, 42, WS_SIZE)
        self.stamp(0)
        a(f'''
        s_cmp_lt_u32 s3, 4
        s_cbranch_scc0 L_stream
        ''')

    def decode(self):
        a = self.a
        ext = 0
        for (x, kh), (r, idx) in EXTRA.items(): ext |= (r | idx << 2) << (4 * (2 * x + kh))
        a(f'''
        s_and_b32 s4, s2, 7              ; x
        s_lshr_b32 s5, s2, 3             ; u
        s_mov_b32 s7, 0
        s_mov_b32 s8, 0
        ''')
        for lo, hi, role, mul in ((0, 2, R_G1, 2), (14, 19, R_MOD, 5), (19, 25, R_FFN, 6), (25, 29, R_DOWN, 4), (29, 30, R_RED, 1)):
            a(f'''
            s_sub_u32 s9, s5, {lo}
            s_mul_i32 s10, s4, {mul}
            s_add_u32 s10, s10, s9
            s_cmp_lt_u32 s9, {hi-lo}
            s_cselect_b32 s7, {role}, s7
            s_cselect_b32 s8, s10, s8
            ''')
        a(f'''
        s_sub_u32 s9, s5, 6              ; Q: (x + 8*(k>>1))*2 + (k&1)
        s_lshr_b32 s10, s9, 1
        s_lshl_b32 s10, s10, 3
        s_add_u32 s10, s10, s4
        s_lshl_b32 s10, s10, 1
        s_and_b32 s11, s9, 1
        s_add_u32 s10, s10, s11
        s_cmp_lt_u32 s9, 8
        s_cselect_b32 s7, {R_Q}, s7
        s_cselect_b32 s8, s10, s8
        s_sub_u32 s9, s5, 2              ; extras
        s_lshr_b32 s10, s9, 1
        s_and_b32 s10, s10, 1
        s_lshl_b32 s11, s4, 1
        s_add_u32 s10, s10, s11
        s_lshl_b32 s10, s10, 2
        s_mov_b32 s86, {ext & 0xffffffff}
        s_mov_b32 s87, {ext >> 32}
        s_lshr_b64 s[86:87], s[86:87], s10
        s_and_b32 s10, s86, 3            ; role
        s_bfe_u32 s11, s86, 0x20002      ; idx
        s_lshl_b32 s11, s11, 1
        s_lshl_b32 s12, s10, 4
        s_add_u32 s11, s11, s12
        s_and_b32 s12, s9, 1
        s_add_u32 s11, s11, s12
        s_cmp_lt_u32 s9, 4
        s_cselect_b32 s7, s10, s7
        s_cselect_b32 s8, s11, s8
        ''')

    def nt(self, c): return 'nt' if c in self.ntp else ''
    def pfld(self, v, srd, so): self.a(f'buffer_load_dword v160, v{v}, {srd}, {so} offen {self.cur_nt}')

    def prefetch(self):
        a = self.a
        self.cur_nt = self.nt('m')
        self.srd(64, 36, 640 * 7680)
        a(f'''
        s_sub_u32 s90, s5, 14
        s_cmp_ge_u32 s90, 16
        s_cbranch_scc1 L_pf_done
        s_lshl_b32 s92, s4, 7
        s_cmp_lt_u32 s3, 2
        s_cbranch_scc1 L_pfA
        s_cmp_eq_u32 s4, 6
        s_cselect_b32 s92, 1024, 0
        s_cmp_eq_u32 s4, 1
        s_cselect_b32 s92, 1152, s92
        s_cmp_eq_u32 s92, 0
        s_cbranch_scc1 L_pf_done
        L_pfA:
        s_lshl_b32 s90, s90, 1
        s_and_b32 s91, s3, 1
        s_add_u32 s90, s90, s91
        s_mul_i32 s91, s90, {20*7680}
        s_add_u32 s92, s92, s91
        v_lshrrev_b32 v16, 1, v2
        v_min_u32 v16, 19, v16
        v_mul_u32_u24 v16, 7680, v16
        v_and_b32 v17, 1, v2
        v_mul_u32_u24 v17, 1280, v17
        v_add_u32 v16, v16, v17
        ''')
        self.pfld(16, 's[64:67]', 's92')
        a('L_pf_done:')

    def prefetch_b(self, sfx):
        a = self.a
        a(f'''
        s_cmp_lt_u32 s3, 2
        s_cbranch_scc1 L_pb_done{sfx}
        s_mul_i32 s90, s5, 20
        v_lshrrev_b32 v16, 3, v2
        s_cmp_eq_u32 s3, 3
        s_cbranch_scc1 L_pb3{sfx}
        ''')
        self.cur_nt = self.nt('q')
        self.srd(64, 22, 640 * 8192)
        a(f'''
        v_bfe_u32 v17, v2, 1, 2
        v_lshlrev_b32 v17, 11, v17
        v_and_b32 v18, 1, v2
        v_lshl_add_u32 v17, v18, 7, v17
        v_lshl_add_u32 v18, v16, 13, v17
        v_and_b32 v16, 3, v16
        v_lshl_add_u32 v19, v16, 13, v17
        s_lshl_b32 s91, s90, 13
        s_lshl_b32 s92, s4, 8
        s_add_u32 s92, s92, s91
        ''')
        self.pfld(18, 's[64:67]', 's92'); a(f's_add_u32 s92, s92, {8*8192}')
        self.pfld(18, 's[64:67]', 's92'); a(f's_add_u32 s92, s92, {8*8192}')
        self.pfld(19, 's[64:67]', 's92')
        if sfx == '':
            a('s_waitcnt vmcnt(0)')
            self.signal(C_PF)
        a(f's_branch L_pb_done{sfx}\nL_pb3{sfx}:')
        self.cur_nt = self.nt('m')
        self.srd(64, 36, 640 * 7680)
        a(f'''
        v_and_b32 v17, 7, v2
        v_min_u32 v17, 4, v17
        v_lshlrev_b32 v17, 7, v17
        v_mul_u32_u24 v18, 7680, v16
        v_add_u32 v18, v18, v17
        v_and_b32 v16, 3, v16
        v_mul_u32_u24 v19, 7680, v16
        v_add_u32 v19, v19, v17
        s_mul_i32 s91, s90, 7680
        s_mul_i32 s92, s4, 640
        s_add_u32 s92, s92, 2560
        s_add_u32 s92, s92, s91
        ''')
        if sfx == '': self.lds_wait(C_PF, 1, sleep=2)
        self.pfld(18, 's[64:67]', 's92'); a(f's_add_u32 s92, s92, {8*7680}')
        self.pfld(18, 's[64:67]', 's92'); a(f's_add_u32 s92, s92, {8*7680}')
        self.pfld(19, 's[64:67]', 's92')
        if sfx == '':
            a(f's_cmp_lg_u32 s7, {R_MOD}\ns_cbranch_scc1 L_pb_done{sfx}\ns_waitcnt vmcnt(0)')
            self.signal(C_PF2)
        a(f'L_pb_done{sfx}:')

    def prefetch_late(self, sfx):
        a = self.a
        a(f's_cmp_lg_u32 s3, 0\ns_cbranch_scc1 L_pl1{sfx}')
        self.srd(68, 32, 1728 * 1280)
        a(f'''
        v_min_u32 v16, 53, v2
        v_mul_u32_u24 v16, 1280, v16
        s_mul_i32 s91, s5, {54*1280}
        s_lshl_b32 s92, s4, 7
        s_add_u32 s92, s92, s91
        s_lshl_b32 s93, s4, 6
        s_add_u32 s93, s93, 1024
        s_add_u32 s93, s93, s91
        ''')
        self.lds_wait(C_PROGW if self.progw_t >= 0 else C_DONE, 1, sleep=4)
        self.pfld(16, 's[68:71]', 's92')
        a(f'''
        s_and_b32 s92, s4, 5
        s_cmp_lg_u32 s92, 0
        s_cbranch_scc1 L_pl_done{sfx}
        ''')
        self.pfld(16, 's[68:71]', 's93')
        a(f's_branch L_pl_done{sfx}\nL_pl1{sfx}:')
        self.srd(64, 28, 640 * 3456); self.srd(68, 30, 640 * 3456)
        a(f'''
        s_mul_i32 s92, s4, 3
        s_mov_b32 s91, s92
        s_mov_b32 s93, s92
        s_cmp_eq_u32 s4, 4
        s_cselect_b32 s91, 24, s91
        s_cselect_b32 s93, 25, s93
        s_cmp_eq_u32 s4, 6
        s_cselect_b32 s91, 26, s91
        v_and_b32 v17, 7, v2
        v_min_u32 v18, 2, v17
        v_add_u32 v18, s92, v18
        v_mov_b32 v19, s91
        v_cmp_eq_u32 vcc, 3, v17
        v_cndmask_b32 v18, v18, v19, vcc
        v_mov_b32 v19, s93
        v_cmp_eq_u32 vcc, 4, v17
        v_cndmask_b32 v18, v18, v19, vcc
        v_lshlrev_b32 v17, 7, v18
        v_lshrrev_b32 v16, 3, v2
        s_lshl_b32 s92, s3, 3
        s_sub_u32 s92, s92, 8
        v_add_u32 v16, s92, v16
        v_min_u32 v16, 19, v16
        v_mul_u32_u24 v18, 3456, v16
        v_add_u32 v18, v18, v17
        s_mul_i32 s92, s5, {20*3456}
        ''')
        self.lds_wait(C_PROGW if self.progw_t >= 0 else C_DONE, 1, sleep=4)
        self.pfld(18, 's[64:67]', 's92'); self.pfld(18, 's[68:71]', 's92')
        a(f'L_pl_done{sfx}:')

    def dma640_setup(self):
        a = self.a
        a(f'''
        v_lshrrev_b32 v16, 3, v2
        s_mul_i32 s85, s3, 160
        v_add_u32 v16, s85, v16
        v_mul_lo_u32 v16, s52, v16
        v_and_b32 v17, 3, v2
        v_lshl_add_u32 v16, v17, 4, v16
        v_mov_b32 v17, 0
        v_mov_b32 v18, s48
        v_mov_b32 v19, s49
        v_mov_b32 v20, s50
        v_mov_b32 v21, s51
        v_and_b32 v22, 4, v2
        v_cmp_ne_u32 vcc, 0, v22
        v_cndmask_b32 v18, v18, v20, vcc
        v_cndmask_b32 v19, v19, v21, vcc
        v_lshl_add_u64 v[4:5], v[16:17], 0, v[18:19]
        s_lshl_b32 s54, s52, 3
        s_mov_b32 s55, 0
        ''')
    def dma640_issue(self, lo, hi, WD=99):
        a = self.a
        for n in range(lo, hi):
            a(f's_add_u32 m0, s87, {LW + 1024*n}')
            if n >= WD: a(f's_waitcnt vmcnt({WD-1})')
            a(f'global_load_lds_dwordx4 v[4:5], off {self.cur_nt}')
            if n < 19: a('v_lshl_add_u64 v[4:5], v[4:5], 0, s[54:55]')
    def dma640(self, WD):
        self.dma640_setup(); self.dma640_issue(0, 20, WD)

    def wfrags640(self, younger=None):
        a = self.a
        for n in range(5):
            if younger is not None: a(f's_waitcnt vmcnt({younger + 4 * (4 - n)})')
            for T in range(4):
                b = 40 + 16 * n + 4 * T
                a(f'ds_read_b64_tr_b16 v[{b}:{b+1}], v9 offset:{LW + 4096*n + 32*T}')
                a(f'ds_read_b64_tr_b16 v[{b+2}:{b+3}], v9 offset:{LW + 4096*n + 32*T + 512}')
            a('s_waitcnt lgkmcnt(0)')

    def mfma640(self, skip):
        a = self.a
        for n in range(5):
            for T in range(4):
                b = 40 + 16 * n + 4 * T; d = 16 + 4 * T
                a(f'v_mfma_f32_16x16x32_bf16 v[{d}:{d+3}], v[{b}:{b+3}], v[{120+4*n}:{123+4*n}], {"0" if n == 0 else "v[%d:%d]" % (d, d+3)}')
        for T in range(4):
            a(f'ds_write_b128 v10, v[{16+4*T}:{19+4*T}] offset:{LW + 1024*T}')
        self.arrive(C_A, 3, skip)
        for w in range(4):
            a(f'ds_read_b128 v[{40+4*w}:{43+4*w}], v11 offset:{LW + 20480*w}')
            a(f'ds_read_b128 v[{56+4*w}:{59+4*w}], v11 offset:{LW + 20480*w + 2048}')

    def red640(self):
        self.a('s_waitcnt lgkmcnt(0)')
        self.sum_partials(40, [40, 44, 48, 52]); self.sum_partials(56, [56, 60, 64, 68])

    def silu(self, ns=range(5)):
        a = self.a
        a(f's_mov_b32 s85, {LOG2E | 0x80000000}')
        for n in ns:
            b = 120 + 4 * n
            for i in range(4): self.unpack(16 + 2 * i, b + i)
            for i in range(8): a(f'v_mul_f32 v{24+i}, s85, v{16+i}')
            for i in range(8): a(f'v_exp_f32 v{24+i}, v{24+i}')
            for i in range(8): a(f'v_add_f32 v{24+i}, 1.0, v{24+i}')
            for i in range(8): a(f'v_rcp_f32 v{24+i}, v{24+i}')
            for i in range(8): a(f'v_mul_f32 v{16+i}, v{16+i}, v{24+i}')
            for i in range(4): a(f'v_cvt_pk_bf16_f32 v{b+i}, v{16+2*i}, v{17+2*i}')

    def add64(self, d, base, off):
        self.a(f's_add_u32 s{d}, s{base}, {off}\ns_addc_u32 s{d+1}, s{base+1}, 0')

    def control(self):
        a = self.a
        self.cur_cls = 99
        a('s_setprio 3')
        if self.pf: self.prefetch()
        if self.pfb:
            a(f's_cmp_eq_u32 s7, {R_G1}\ns_cbranch_scc1 L_pb_done')
            self.prefetch_b('')
        a(f'''
        s_cmp_eq_u32 s7, 0
        s_cbranch_scc1 L_ctrl_end
        v_mov_b32 v3, 0
        buffer_load_dword v167, v3, s[44:47], 0 offen sc1
        s_mul_i32 s87, s3, 20480
        v_lshrrev_b32 v16, 4, v2         ; s
        v_bfe_u32 v17, v2, 2, 2          ; r4
        v_and_b32 v18, 3, v2             ; c
        v_lshl_add_u32 v19, v16, 3, v17  ; 8s+r4
        v_lshlrev_b32 v9, 7, v19
        v_lshl_add_u32 v9, v18, 3, v9
        v_add_u32 v9, s87, v9
        v_add_u32 v10, s87, v7
        v_and_b32 v17, 7, v2             ; b
        v_bfe_u32 v18, v2, 3, 1          ; t
        v_lshlrev_b32 v11, 8, v16
        v_lshl_add_u32 v11, v17, 4, v11
        v_lshl_add_u32 v11, v18, 10, v11
        v_mul_u32_u24 v19, 1280, v17
        v_lshl_add_u32 v6, v16, 4, v19
        v_lshlrev_b32 v8, 5, v18
        v_lshl_add_u32 v8, v16, 3, v8    ; (16t+4s')*2 bytes
        v_lshlrev_b32 v12, 2, v2         ; lane*4
        s_cmp_eq_u32 s7, {R_Q}
        s_cbranch_scc1 L_role_q
        s_cmp_eq_u32 s7, {R_FFN}
        s_cbranch_scc1 L_role_ffn
        s_cmp_eq_u32 s7, {R_DOWN}
        s_cbranch_scc1 L_role_down
        s_cmp_eq_u32 s7, {R_RED}
        s_cbranch_scc1 L_role_red
        ''')
        self.cur_nt = self.nt('m')
        a(f'''
        s_movk_i32 s52, 7680
        s_cmp_eq_u32 s7, {R_G1}
        s_cbranch_scc1 L_role_g1
        ''')
        self.srd(56, 34, 10240)
        a('s_mul_i32 s85, s3, 320')
        for n in range(5):
            a(f'buffer_load_dwordx4 v[{120+4*n}:{123+4*n}], v6, s[56:59], s85 offen offset:{64*n}')
        a(f'''
        s_lshl_b32 s9, s8, 7
        s_add_u32 s9, s9, 2560
        s_add_u32 s48, s36, s9
        s_addc_u32 s49, s37, 0
        s_add_u32 s50, s48, 64
        s_addc_u32 s51, s49, 0
        s_waitcnt vmcnt(0)
        ''')
        self.silu()
        if self.pfb: self.lds_wait(C_PF2, 1, sleep=2)
        self.dma640(self.WDM)
        a('s_waitcnt vmcnt(0)')
        self.stamp(2)
        self.wfrags640()
        self.mfma640('L_ctrl_end')
        a(f'''
        v_and_b32 v22, 7, v2
        v_mul_u32_u24 v22, 5120, v22
        v_add_u32 v22, v22, v8
        s_lshl_b32 s90, s8, 7
        s_add_u32 s90, s90, {WS_MODO}
        ''')
        self.red640()
        self.pack4(24, 40); self.pack4(26, 56)
        self.sanitize([24, 25, 26, 27])
        self.lds_wait(C_QOK, 1, sleep=8)
        a(f'''
        buffer_store_dwordx2 v[24:25], v22, s[44:47], s90 offen sc1
        buffer_store_dwordx2 v[26:27], v22, s[44:47], s90 offen offset:64 sc1
        s_branch L_ctrl_end
        L_role_g1:
        s_lshl_b32 s9, s8, 6
        s_add_u32 s48, s36, s9
        s_addc_u32 s49, s37, 0
        s_add_u32 s50, s48, 1280
        s_addc_u32 s51, s49, 0
        v_add_u32 v34, v19, v8
        ''')
        self.stamp(6)
        self.dma640(99)
        self.srd(60, 16, 10240)
        a(f'''
        buffer_load_dwordx2 v[150:151], v34, s[60:63], s9 offen
        s_lshl_b32 s85, s8, 2
        s_add_u32 s85, s85, s3
        s_lshl_b32 s85, s85, 11
        s_add_u32 s85, s85, {SB2}
        v_mov_b32 v152, -1
        v_mov_b32 v153, -1
        v_mov_b32 v154, -1
        v_mov_b32 v155, -1
        buffer_store_dwordx4 v[152:155], v7, s[44:47], s85 offen sc1
        buffer_store_dwordx4 v[152:155], v7, s[44:47], s85 offen offset:1024 sc1
        v_and_b32 v16, 7, v2
        v_mul_u32_u24 v16, {ACTS}, v16
        v_lshrrev_b32 v17, 4, v2
        v_lshl_add_u32 v16, v17, 4, v16
        s_mul_i32 s85, s3, 320
        s_add_u32 s85, s85, {L_ACT}
        v_add_u32 v35, s85, v16
        ''')
        self.signal(C_GO)
        self.stamp(1)
        self.lds_wait(C_ACT, 8)
        for n in range(5): a(f'ds_read_b128 v[{120+4*n}:{123+4*n}], v35 offset:{64*n}')
        self.stamp(3)
        self.wfrags640(younger=3)
        self.tag_from(167)
        a('s_waitcnt vmcnt(0)')
        self.stamp(2)
        self.mfma640('L_ctrl_end')
        a(f'''
        v_and_b32 v22, 7, v2
        v_lshl_add_u32 v23, v22, 3, v13
        ds_read_b64 v[36:37], v23 offset:{L_STAT}
        ''')
        self.red640()
        self.pack4(24, 40); self.pack4(26, 56)
        self.unpack4(56, 26)
        a('v_pk_add_f32 v[56:57], v[56:57], 1.0 op_sel_hi:[1,0]\nv_pk_add_f32 v[58:59], v[58:59], 1.0 op_sel_hi:[1,0]')
        self.round4(56, 26)
        self.unpack4(40, 24)
        self.unpack4(44, 150)
        for i in range(4): a(f'v_sub_f32 v{44+i}, v{44+i}, v36')
        self.round4(44, 28)
        for i in range(4): a(f'v_mul_f32 v{44+i}, v{44+i}, v37')
        self.round4(44, 28)
        a('v_pk_mul_f32 v[44:45], v[44:45], v[56:57]\nv_pk_mul_f32 v[46:47], v[46:47], v[58:59]')
        self.round4(44, 28)
        a('v_pk_add_f32 v[44:45], v[44:45], v[40:41]\nv_pk_add_f32 v[46:47], v[46:47], v[42:43]')
        a(f'''
        v_cvt_pk_bf16_f32 v28, v44, v45
        v_cvt_pk_bf16_f32 v30, v46, v47
        v_mov_b32 v29, s94
        v_mov_b32 v31, s94
        v_lshlrev_b32 v22, 4, v22               ; b*16
        v_lshl_add_u32 v22, v8, 4, v22          ; + (16t+4s')*32 = t*512 + s'*128
        s_lshl_b32 s85, s8, 10
        s_add_u32 s85, s85, {WS_H1}
        buffer_store_dwordx4 v[28:31], v22, s[44:47], s85 offen sc1
        s_branch L_ctrl_end
        ''')
        self.cur_nt = self.nt('q')
        a(f'''
        L_role_q:
        s_lshl_b32 s9, s8, 7
        s_add_u32 s48, s22, s9
        s_addc_u32 s49, s23, 0
        s_add_u32 s50, s48, 64
        s_addc_u32 s51, s49, 0
        s_movk_i32 s52, 8192
        ''')
        if self.pfb: self.lds_wait(C_PF, 1, sleep=2)
        self.dma640(99)
        a(f'''
        s_and_b32 s85, s8, 1
        s_lshl_b32 s85, s85, 2
        s_add_u32 s85, s85, s3
        s_lshl_b32 s85, s85, 5
        s_lshr_b32 s86, s8, 1
        s_add_u32 s85, s85, s86
        s_mul_i32 s85, s85, 2560
        s_add_u32 s85, s85, {WS_P}
        v_mov_b32 v152, -1
        v_mov_b32 v153, -1
        v_mov_b32 v154, -1
        v_mov_b32 v155, -1
        v_lshlrev_b32 v19, 3, v2
        buffer_store_dwordx4 v[152:155], v7, s[44:47], s85 offen sc1
        buffer_store_dwordx4 v[152:155], v7, s[44:47], s85 offen offset:1024 sc1
        buffer_store_dwordx2 v[152:153], v19, s[44:47], s85 offen offset:2048 sc1
        ''')
        self.signal(C_GO)
        a('s_waitcnt vmcnt(0)')
        self.stamp(2)
        self.tag_from(167)
        self.wfrags640()
        a(f'''
        s_mul_i32 s90, s3, 5120
        s_add_u32 s90, s90, {WS_H1}
        s_add_u32 s91, s90, 4096
        ''')
        self.stamp(3)
        loads = [f'buffer_load_dwordx4 v[{120+4*n}:{123+4*n}], v7, s[44:47], s{90 if n < 4 else 91} offen offset:{1024*(n%4)} sc1' for n in range(5)]
        self.poll('h1', loads, [121 + 2 * i for i in range(10)], 4, tagged=True)
        self.stamp(4)
        for n in range(5):
            b = 120 + 4 * n
            a(f'v_mov_b32_dpp v{b+3}, v{b+2} row_ror:8 row_mask:0xf bank_mask:0xf')
            a(f'v_mov_b32 v{b+1}, v{b+2}')
            a(f'v_mov_b32_dpp v{b+2}, v{b} row_ror:8 row_mask:0xf bank_mask:0xf')
        self.mfma640('L_ctrl_end')
        a(f'''
        v_and_b32 v22, 7, v2
        v_lshlrev_b32 v22, 14, v22              ; b*32*512
        v_lshl_add_u32 v22, v8, 1, v22          ; + col*4
        s_lshl_b32 s85, s8, 8                   ; h*512 + half*256
        s_add_u32 s85, s85, {WS_Q}
        v_mov_b32 v29, s94
        v_mov_b32 v31, s94
        v_mov_b32 v33, s94
        v_mov_b32 v35, s94
        ''')
        self.red640()
        a(f'''
        v_cvt_pk_bf16_f32 v28, v40, v41
        v_cvt_pk_bf16_f32 v30, v42, v43
        v_cvt_pk_bf16_f32 v32, v56, v57
        v_cvt_pk_bf16_f32 v34, v58, v59
        buffer_store_dwordx4 v[28:31], v22, s[44:47], s85 offen sc1
        buffer_store_dwordx4 v[32:35], v22, s[44:47], s85 offen offset:128 sc1
        s_branch L_ctrl_end
        ''')
        self.cur_nt = self.nt('f')
        a(f'''
        L_role_ffn:
        s_lshl_b32 s9, s8, 6
        s_add_u32 s48, s28, s9
        s_addc_u32 s49, s29, 0
        s_add_u32 s50, s30, s9
        s_addc_u32 s51, s31, 0
        s_movk_i32 s52, 3456
        ''')
        self.dma640_setup()
        self.dma640_issue(0, self.nEf, 1)
        self.lds_wait(C_DONE, 1, sleep=4)
        self.dma640_issue(self.nEf, 20)
        self.wfrags640(younger=0)
        self.stamp(2)
        a(f'''
        s_mul_i32 s90, s3, 320
        s_add_u32 s90, s90, {WS_H2}
        v_and_b32 v32, 7, v2
        v_lshlrev_b32 v32, 4, v32
        v_bfe_u32 v33, v2, 3, 1
        v_lshl_add_u32 v32, v33, 8, v32
        v_bfe_u32 v33, v2, 5, 1
        v_lshl_add_u32 v32, v33, 7, v32
        v_bfe_u32 v33, v2, 4, 1
        v_lshl_add_u32 v32, v33, 3, v32
        s_lshl_b32 s91, s8, 9
        s_add_u32 s91, s91, {WS_HID}
        ''')
        self.lds_wait(C_WO, 8, sleep=4)
        self.stamp(3)
        loads = [f'buffer_load_dwordx4 v[{120+4*n}:{123+4*n}], v6, s[44:47], s90 offen offset:{64*n} sc1' for n in range(5)]
        self.poll('h2', loads, list(range(120, 140)), 2)
        self.stamp(4)
        self.mfma640('L_ctrl_end')
        self.red640()
        self.round4(40, 28); self.round4(56, 30)
        for i in range(4):
            a(f'v_cmp_lt_f32 vcc, 0, v{40+i}\nv_cndmask_b32 v{20+i}, 0, 1.0, vcc')
        a('v_pk_mul_f32 v[40:41], v[40:41], v[20:21]\nv_pk_mul_f32 v[42:43], v[42:43], v[22:23]')
        a('v_pk_mul_f32 v[40:41], v[40:41], v[56:57]\nv_pk_mul_f32 v[42:43], v[42:43], v[58:59]')
        self.pack4(28, 40); self.sanitize([28, 29])
        a(f'''
        buffer_store_dwordx2 v[28:29], v32, s[44:47], s91 offen sc1
        s_branch L_ctrl_end
        ''')
        a('L_role_down:')
        self.srd(72, 32, 1728 * 1280); self.srd(80, 38, 10240)
        a(f'''
        s_add_u32 s76, s42, {WS_HID}
        s_addc_u32 s77, s43, 0
        s_mov_b32 s78, {27*1024}
        s_mov_b32 s79, 0x20000
        v_lshrrev_b32 v16, 1, v2
        v_mul_u32_u24 v4, 1280, v16
        v_and_b32 v16, 1, v2
        v_lshl_add_u32 v4, v16, 4, v4
        s_mul_i32 s85, s3, {7*64*1280}
        s_lshl_b32 s9, s8, 5
        s_add_u32 s85, s85, s9
        s_mul_i32 s87, s3, 14336
        ''')
        for n in range(14):
            if n == self.nEd: self.lds_wait(C_DONE, 1, sleep=4)
            a(f's_add_u32 m0, s87, {LW + 1024*n}')
            if n < self.nEd: a(f's_waitcnt vmcnt(0)')
            a(f'buffer_load_dwordx4 v4, s[72:75], s85 offen {self.nt("f")} lds')
            a(f's_add_u32 s85, s85, {32*1280}')
        a(f'''
        v_lshrrev_b32 v16, 4, v2         ; s
        v_bfe_u32 v17, v2, 2, 2          ; r4
        v_lshl_add_u32 v19, v16, 3, v17
        v_lshlrev_b32 v9, 5, v19
        v_bfe_u32 v17, v2, 1, 1
        v_lshl_add_u32 v9, v17, 10, v9
        v_and_b32 v17, 1, v2
        v_lshl_add_u32 v9, v17, 3, v9
        v_add_u32 v9, s87, v9
        v_add_u32 v10, s87, v7
        v_and_b32 v17, 7, v2             ; b
        v_bfe_u32 v18, v2, 3, 1          ; a / half
        v_lshlrev_b32 v3, 7, v16
        v_lshl_add_u32 v3, v17, 4, v3
        v_lshl_add_u32 v3, v18, 9, v3
        s_mul_i32 s86, s3, 7168
        v_add_u32 v3, s86, v3
        v_and_b32 v16, 1, v16            ; s'
        v_lshlrev_b32 v11, 8, v16
        v_lshl_add_u32 v11, v17, 4, v11
        v_lshl_add_u32 v11, v18, 10, v11
        v_lshlrev_b32 v8, 4, v18
        v_lshl_add_u32 v8, v16, 3, v8    ; (8a+4s')*2
        v_mul_u32_u24 v5, 5120, v17
        v_add_u32 v5, v5, v8
        v_mul_u32_u24 v6, 1280, v17
        v_add_u32 v6, v6, v8
        s_add_u32 s90, s9, {WS_MODO + 3840}
        s_add_u32 s91, s9, {WS_X1}
        s_movk_i32 s92, 4096
        s_waitcnt vmcnt(0)
        ''')
        self.stamp(2)
        self.tag_from(167)
        for n in range(7):
            for ac in range(2):
                b = 40 + 8 * n + 4 * ac
                a(f'ds_read_b64_tr_b16 v[{b}:{b+1}], v9 offset:{LW + 2048*n + 16*ac}')
                a(f'ds_read_b64_tr_b16 v[{b+2}:{b+3}], v9 offset:{LW + 2048*n + 16*ac + 128}')
            if n % 2: a('s_waitcnt lgkmcnt(0)')
        self.lds_wait(C_WO, 8, sleep=4)
        self.poll('gb', ['buffer_load_dwordx2 v[32:33], v5, s[44:47], s90 offen sc1'], [32, 33], 4)
        self.unpack4(140, 32)
        self.stamp(3)
        self.poll('x1', ['buffer_load_dwordx2 v[32:33], v6, s[44:47], s91 offen sc1'], [32, 33], 4)
        self.unpack4(144, 32)
        self.stamp(5)
        loads = [f'buffer_load_dwordx4 v[{104+4*n}:{107+4*n}], v3, s[76:79], {"0" if n < 4 else "s92"} offen offset:{1024*(n%4)} sc1' for n in range(7)]
        self.poll('hid', loads, list(range(104, 132)), 1)
        self.stamp(4)
        for n in range(7):
            for ac in range(2):
                b = 40 + 8 * n + 4 * ac; d = 16 + 4 * ac
                a(f'v_mfma_f32_16x16x32_bf16 v[{d}:{d+3}], v[{b}:{b+3}], v[{104+4*n}:{107+4*n}], {"0" if n == 0 else "v[%d:%d]" % (d, d+3)}')
        a(f'ds_write_b128 v10, v[16:19] offset:{LW}\nds_write_b128 v10, v[20:23] offset:{LW + 1024}')
        self.arrive(C_A, 3, 'L_ctrl_end')
        for w in range(4):
            a(f'ds_read_b128 v[{40+8*w}:{43+8*w}], v11 offset:{LW + 14336*w}')
            a(f'ds_read_b128 v[{44+8*w}:{47+8*w}], v11 offset:{LW + 14336*w + 640}')
        a('s_waitcnt lgkmcnt(0)')
        self.sum_partials(40, [40 + 4 * i for i in range(8)])
        self.round4(40, 28)
        a('v_pk_mul_f32 v[40:41], v[40:41], v[140:141]\nv_pk_mul_f32 v[42:43], v[42:43], v[142:143]')
        self.round4(40, 28)
        a('v_pk_add_f32 v[40:41], v[40:41], v[144:145]\nv_pk_add_f32 v[42:43], v[42:43], v[146:147]')
        self.pack4(28, 40)
        a(f'''
        s_mov_b32 exec_hi, 0
        buffer_store_dwordx2 v[28:29], v6, s[80:83], s9 offen
        s_cmp_lg_u32 s8, 0
        s_cbranch_scc1 L_noepoch
        s_mov_b64 exec, 1
        v_mov_b32 v20, 0
        v_mov_b32 v21, s94
        buffer_store_dword v21, v20, s[44:47], 0 offen sc1
        L_noepoch:
        s_mov_b64 exec, -1
        s_branch L_ctrl_end
        ''')
        a('L_role_red:')
        self.srd(60, 16, 10240)
        a(f'''
        v_lshlrev_b32 v8, 3, v2          ; lane*8
        s_mul_i32 s9, s8, 1280
        buffer_load_dwordx2 v[26:27], v8, s[60:63], s9 offen
        buffer_load_dwordx2 v[28:29], v8, s[60:63], s9 offen offset:512
        buffer_load_dword v30, v12, s[60:63], s9 offen offset:1024
        s_lshl_b32 s90, s8, 14
        s_lshl_b32 s85, s3, 12
        s_add_u32 s90, s90, s85
        s_add_u32 s90, s90, {WS_Q}
        s_waitcnt vmcnt(0)
        ''')
        self.tag_from(167)
        for i in range(5): self.unpack(120 + 2 * i, 26 + i)
        self.lds_wait(C_QOK, 1, sleep=8)
        loads = [f'buffer_load_dwordx4 v[{40+4*n}:{43+4*n}], v7, s[44:47], s90 offen offset:{1024*n} sc1' for n in range(4)]
        self.poll('qall', loads, [41 + 2 * i for i in range(8)], 8, tagged=True)
        a(f'''
        s_mul_i32 s90, s8, 5120
        s_add_u32 s90, s90, {WS_MODO}
        ''')
        loads = []
        for ch in range(3):
            b = 40 + 6 * ch
            loads += [f'buffer_load_dwordx2 v[{b}:{b+1}], v8, s[44:47], s90 offen offset:{1280*ch} sc1',
                      f'buffer_load_dwordx2 v[{b+2}:{b+3}], v8, s[44:47], s90 offen offset:{1280*ch + 512} sc1',
                      f'buffer_load_dword v{b+4}, v12, s[44:47], s90 offen offset:{1280*ch + 1024} sc1']
        self.poll('modo', loads, [40 + 6 * ch + i for ch in range(3) for i in range(5)], 8)
        for ch in range(3):
            for i in range(5): self.unpack(130 + 10 * ch + 2 * i, 40 + 6 * ch + i)
        for i in range(5):
            a(f'v_pk_add_f32 v[{150+2*i}:{151+2*i}], v[{150+2*i}:{151+2*i}], 1.0 op_sel_hi:[1,0]')
            a(f'v_cvt_pk_bf16_f32 v26, v{150+2*i}, v{151+2*i}')
            self.unpack(150 + 2 * i, 26)
        for i in range(10): a(f'v_mov_b32 v{16+i}, 0')
        a(f'''
        s_lshl_b32 s91, s8, 5
        s_lshl_b32 s85, s3, 3
        s_add_u32 s91, s91, s85
        s_mul_i32 s91, s91, 2560
        s_add_u32 s91, s91, {WS_P}
        s_mul_i32 s87, s3, 2560
        v_add_u32 v10, s87, v7
        v_add_u32 v11, s87, v8
        s_add_u32 s92, s9, {WS_H2}
        s_add_u32 s93, s9, {WS_X1}
        ''')
        self.stamp(2)
        self.lds_wait(C_PROG, 1, sleep=8)
        self.stamp(3)
        a(f'''
        s_mov_b32 s90, 0xff
        s_mov_b32 s89, {SPIN_LIMIT}
        v_and_b32 v34, 7, v2
        v_mul_u32_u24 v34, 2560, v34
        L_p_poll:
        s_mov_b32 s95, s90
        ds_read_b32 v14, v13 offset:{C_WO}
        s_waitcnt lgkmcnt(0)
        v_readfirstlane_b32 s88, v14
        s_cmp_ge_u32 s88, 8
        s_cbranch_scc1 L_p_fetch
        s_sleep 6
        buffer_load_dword v35, v34, s[44:47], s91 offen offset:2556 sc1
        s_waitcnt vmcnt(0)
        v_cmp_ne_u32 vcc, -1, v35
        s_nop 1
        s_and_b32 s95, s90, vcc_lo
        s_cbranch_scc0 L_p_next
        L_p_fetch:
        ''')
        for g in range(8):
            b = 40 + 10 * g
            a(f'''
            s_bitcmp1_b32 s95, {g}
            s_cbranch_scc0 L_p_sk{g}
            s_add_u32 s85, s91, {2560*g}
            buffer_load_dwordx4 v[{b}:{b+3}], v7, s[44:47], s85 offen sc1
            buffer_load_dwordx4 v[{b+4}:{b+7}], v7, s[44:47], s85 offen offset:1024 sc1
            buffer_load_dwordx2 v[{b+8}:{b+9}], v8, s[44:47], s85 offen offset:2048 sc1
            L_p_sk{g}:
            ''')
        a('s_waitcnt vmcnt(0)')
        for g in range(8):
            b = 40 + 10 * g
            a(f'''
            s_bitcmp1_b32 s95, {g}
            s_cbranch_scc0 L_p_ck{g}
            v_max3_u32 v36, v{b}, v{b+1}, v{b+2}
            v_max3_u32 v37, v{b+3}, v{b+4}, v{b+5}
            v_max3_u32 v36, v36, v{b+6}, v{b+7}
            v_max3_u32 v37, v37, v{b+8}, v{b+9}
            v_max_u32 v36, v36, v37
            v_cmp_eq_u32 vcc, -1, v36
            s_cbranch_vccnz L_p_ck{g}
            s_bitset0_b32 s90, {g}
            ''')
            for i in range(5): a(f'v_pk_add_f32 v[{16+2*i}:{17+2*i}], v[{16+2*i}:{17+2*i}], v[{b+2*i}:{b+2*i+1}]')
            a(f'L_p_ck{g}:')
        a(f'''
        s_cmp_eq_u32 s90, 0
        s_cbranch_scc1 L_p_ok
        L_p_next:
        s_sub_u32 s89, s89, 1
        s_cbranch_scc0 L_p_poll
        L_p_ok:
        ''')
        self.stamp(4)
        a(f'''
        ds_write_b128 v10, v[16:19] offset:{LW}
        ds_write_b128 v10, v[20:23] offset:{LW + 1024}
        ds_write_b64 v11, v[24:25] offset:{LW + 2048}
        ''')
        self.arrive(C_A, 3, 'L_ctrl_end')
        for w in range(4):
            b = 40 + 10 * w
            a(f'ds_read_b128 v[{b}:{b+3}], v7 offset:{LW + 2560*w}')
            a(f'ds_read_b128 v[{b+4}:{b+7}], v7 offset:{LW + 2560*w + 1024}')
            a(f'ds_read_b64 v[{b+8}:{b+9}], v8 offset:{LW + 2560*w + 2048}')
        a('s_waitcnt lgkmcnt(0)')
        U = 40
        def P(r, i): return f'v[{r+2*i}:{r+2*i+1}]'
        for i in range(5): a(f'v_pk_add_f32 {P(40,i)}, {P(40,i)}, {P(50,i)}')
        for i in range(5): a(f'v_pk_add_f32 {P(60,i)}, {P(60,i)}, {P(70,i)}')
        for i in range(5): a(f'v_pk_add_f32 {P(40,i)}, {P(40,i)}, {P(60,i)}')
        def pk():
            for i in range(5): a(f'v_cvt_pk_bf16_f32 v{26+i}, v{U+2*i}, v{U+2*i+1}')
        def rnd():
            pk()
            for i in range(5): self.unpack(U + 2 * i, 26 + i)
        rnd()
        for i in range(5): a(f'v_pk_mul_f32 {P(U,i)}, {P(U,i)}, {P(130,i)}')
        rnd()
        for i in range(5): a(f'v_pk_add_f32 {P(U,i)}, {P(U,i)}, {P(120,i)}')
        for i in range(5): a(f'v_cvt_pk_bf16_f32 v{160+i}, v{U+2*i}, v{U+2*i+1}')
        self.sanitize(range(160, 165))
        self.ln_stats(160, U, 32, 96, 98)
        for i in range(5): a(f'v_pk_add_f32 {P(U,i)}, {P(U,i)}, s[96:97] op_sel_hi:[1,0] neg_lo:[0,1] neg_hi:[0,1]')
        rnd()
        for i in range(5): a(f'v_pk_mul_f32 {P(U,i)}, {P(U,i)}, s[98:99] op_sel_hi:[1,0]')
        rnd()
        for i in range(5): a(f'v_pk_mul_f32 {P(U,i)}, {P(U,i)}, {P(150,i)}')
        rnd()
        for i in range(5): a(f'v_pk_add_f32 {P(U,i)}, {P(U,i)}, {P(140,i)}')
        pk()
        self.sanitize(range(26, 31))
        a(f'''
        buffer_store_dwordx2 v[26:27], v8, s[44:47], s92 offen sc1
        buffer_store_dwordx2 v[28:29], v8, s[44:47], s92 offen offset:512 sc1
        buffer_store_dword v30, v12, s[44:47], s92 offen offset:1024 sc1
        buffer_store_dwordx2 v[160:161], v8, s[44:47], s93 offen sc1
        buffer_store_dwordx2 v[162:163], v8, s[44:47], s93 offen offset:512 sc1
        buffer_store_dword v164, v12, s[44:47], s93 offen offset:1024 sc1
        L_ctrl_end:
        ''')
        self.stamp(11)
        if self.late:
            a(f's_cmp_eq_u32 s7, {R_DOWN}\ns_cbranch_scc1 L_ctrl_fin\ns_cmp_eq_u32 s7, {R_FFN}\ns_cbranch_scc1 L_ctrl_fin\ns_cmp_eq_u32 s7, {R_RED}\ns_cbranch_scc1 L_ctrl_fin')
            self.prefetch_late('e')
            a('L_ctrl_fin:')
        self.stamp_flush()
        self.diag_end()
        a('s_endpgm')

    def stream(self):
        a = self.a
        self.cur_cls = 0
        WK, WV = self.WK, self.WV
        NV = 12
        KV = lambda t: 40 + 4 * t
        a(f'''
        L_stream:
        s_sub_u32 s15, s3, 4             ; sw
        s_lshl_b32 s85, s15, 15
        v_add_u32 v1, s85, v7
        s_mul_i32 s91, s2, {self.rot}
        s_mul_i32 s85, s15, {self.rotw}
        s_add_u32 s91, s91, s85
        s_and_b32 s91, s91, 31
        s_lshl_b32 s91, s91, 10          ; rotation
        s_lshl_b32 s85, s2, 20
        s_add_u32 s85, s85, 0xC0000
        s_add_u32 s48, s18, s85
        s_addc_u32 s49, s19, 0
        s_mov_b32 s50, 0x40000
        s_mov_b32 s51, 0x20000
        s_add_u32 s52, s20, s85
        s_addc_u32 s53, s21, 0
        s_mov_b32 s54, 0x40000
        s_mov_b32 s55, 0x20000
        ''')
        for _ in range(self.sdelay): a('s_sleep 32')
        if self.hold > 1: a(f's_cmp_eq_u32 s7, {R_Q}\ns_cbranch_scc1 L_hold')
        a(f's_cmp_lg_u32 s7, {R_G1}\ns_cbranch_scc1 L_nohold')
        self.srd(56, 34, 10240); self.srd(60, 16, 10240)
        a('s_mul_i32 s90, s15, 1280\nv_lshlrev_b32 v12, 2, v2')
        for n in range(5): a(f'buffer_load_dword v{40+n}, v12, s[56:59], s90 offen offset:{256*n}')
        for n in range(5): a(f'buffer_load_dword v{46+n}, v12, s[60:63], s90 offen offset:{256*n}')
        a(f'''
        s_mul_i32 s90, s15, {ACTS}
        s_add_u32 s90, s90, {L_ACT}
        v_add_u32 v12, s90, v12
        s_mov_b32 s85, {LOG2E | 0x80000000}
        s_waitcnt vmcnt(5)
        ''')
        self.stamp(9)
        for i in range(5): self.unpack(52 + 2 * i, 40 + i)
        for i in range(10): a(f'v_mul_f32 v{64+i}, s85, v{52+i}')
        for i in range(10): a(f'v_exp_f32 v{64+i}, v{64+i}')
        for i in range(10): a(f'v_add_f32 v{64+i}, 1.0, v{64+i}')
        for i in range(10): a(f'v_rcp_f32 v{64+i}, v{64+i}')
        for i in range(10): a(f'v_mul_f32 v{52+i}, v{52+i}, v{64+i}')
        for i in range(5): a(f'v_cvt_pk_bf16_f32 v{40+i}, v{52+2*i}, v{53+2*i}')
        for i in range(5): a(f'ds_write_b32 v12, v{40+i} offset:{256*i}')
        a('s_waitcnt vmcnt(0)')
        self.ln_stats(46, 52, 64, 90, 92)
        a(f'''
        v_mov_b32 v28, s90
        v_mov_b32 v29, s92
        s_lshl_b32 s85, s15, 3
        v_add_u32 v30, s85, v13
        ds_write_b64 v30, v[28:29] offset:{L_STAT}
        ''')
        self.signal(C_ACT)
        a('L_hold:')
        if self.hold: self.lds_wait(C_GO, 4, sleep=2)
        a('L_nohold:')
        q = []
        def wait_for(name):
            i = len(q) - 1 - q[::-1].index(name)
            n = len(q) - 1 - i
            a(f's_waitcnt vmcnt({min(n, 63)})')
        def ld(t, slot, srd, nm):
            a(f's_add_u32 s92, s91, {t*1024}\ns_and_b32 s92, s92, 0x7fff')
            a(f'buffer_load_dwordx4 v[{KV(slot)}:{KV(slot)+3}], v1, {srd}, s92 offen {self.nt(nm[0].lower())}')
            q.append(nm)
        qloads = ['buffer_load_dwordx4 v[4:7], v12, s[44:47], s93 offen sc1', 'buffer_load_dwordx4 v[16:19], v12, s[44:47], s93 offen offset:16 sc1']
        for t in range(32):
            wk = WK if t >= self.wk_sw else self.WK0
            if t >= wk:
                if self.WKL > wk and t >= self.wkl_sw:
                    L = a.label('L_kw')
                    a(f's_waitcnt vmcnt({self.WKL-1})\ns_cbranch_vccnz {L}\ns_waitcnt vmcnt({wk-1})\n{L}:')
                else: a(f's_waitcnt vmcnt({wk-1})')
            if t == self.WK0: self.stamp(8)
            ld(t, t, 's[48:51]', f'K{t}')
            if t == self.WK0 - 1:
                a(f'''
                v_mov_b32 v3, 0
                buffer_load_dword v35, v3, s[44:47], 0 offen sc1
                v_and_b32 v3, 15, v2
                v_lshlrev_b32 v12, 5, v3             ; Q voffset
                s_lshl_b32 s93, s2, 9
                s_add_u32 s93, s93, {WS_Q}
                v_mov_b32 v16, 0xffff
                v_mov_b32 v17, s84
                ''')
                q.append('E')
                for r in range(4):
                    a(f'''
                    v_cmp_eq_u32 vcc, {2*r}, v3
                    v_cndmask_b32 v{8+r}, 0, v16, vcc
                    v_cmp_eq_u32 vcc, {2*r+1}, v3
                    v_cndmask_b32 v{8+r}, v{8+r}, v17, vcc
                    ''')
                a(f'''
                s_mov_b32 s96, 0xcccccccc
                s_mov_b32 s97, 0xcccccccc
                s_mov_b32 s98, 0xaaaaaaaa
                s_mov_b32 s99, 0xaaaaaaaa
                s_mul_i32 s85, s14, 163840
                s_add_u32 s56, s24, s85
                s_addc_u32 s57, s25, 0
                s_mov_b32 s58, 163840
                s_mov_b32 s59, 0x20000
                v_lshrrev_b32 v34, 4, v2
                v_mul_u32_u24 v34, 5120, v34
                v_lshl_add_u32 v34, v3, 4, v34
                s_mul_i32 s85, s15, 20480
                v_add_u32 v34, s85, v34
                s_lshr_b32 s85, {self.lagmask}, s7
                s_bitcmp1_b32 s85, 0
                s_cselect_b64 vcc, -1, 0
                ''')
            if t == 12:
                self.tag_from(35)
            if t == self.qpos:
                for l in qloads: a(l)
                q.append('Q0'); q.append('Q1')
        self.stamp(1)
        wait_for('Q1')
        a(f'''
        s_mov_b32 s89, {SPIN_LIMIT}
        L_q_chk:
        v_xor_b32 v20, s94, v5
        v_xor_b32 v21, s94, v7
        v_xor_b32 v22, s94, v17
        v_xor_b32 v23, s94, v19
        v_or_b32 v20, v20, v21
        v_or3_b32 v20, v20, v22, v23
        v_cmp_ne_u32 vcc, 0, v20
        s_cbranch_vccz L_q_ok
        s_sleep 4
        {qloads[0]}
        {qloads[1]}
        s_waitcnt vmcnt(0)
        s_sub_u32 s89, s89, 1
        s_cbranch_scc0 L_q_chk
        L_q_ok:
        v_mov_b32 v5, v6
        v_mov_b32 v6, v16
        v_mov_b32 v7, v18
        ''')
        self.signal(C_QOK)
        self.stamp(2)
        D = 20
        st = dict(V=0, W=0)
        def ldwo(n):
            tp, c = n // 5, n % 5
            so = ['0', 's60', 's61', 's62'][tp]
            a(f'buffer_load_dwordx4 v[{KV(NV+n)}:{KV(NV+n)+3}], v34, s[56:59], {so} offen offset:{256*c} {self.nt("o")}')
            q.append(f'W{n}')
        def pre(g, free):
            for ch in self.pre[g]:
                if ch == 'V':
                    assert st['V'] < NV and st['V'] <= free
                    ld(st['V'], st['V'], 's[52:55]', f"V{st['V']}"); st['V'] += 1
                else:
                    assert NV + st['W'] <= free
                    ldwo(st['W']); st['W'] += 1
        a('s_movk_i32 s60, 1280\ns_movk_i32 s61, 2560\ns_movk_i32 s62, 3840')
        for g in range(8):
            wait_for(f'K{4*g+3}')
            for i in range(4):
                for k in range(4):
                    t = 4 * g + k
                    a(f'v_dot2_f32_bf16 v{D+k}, v{KV(t)+i}, v{4+i}, {"0" if i == 0 else "v%d" % (D+k)}')
            pre(g, 4 * g + 3)
            a(f'v_add_f32_dpp v24, v{D}, v{D} row_ror:8 row_mask:0xf bank_mask:0x3')
            a(f'v_add_f32_dpp v25, v{D+2}, v{D+2} row_ror:8 row_mask:0xf bank_mask:0x3')
            a(f'v_add_f32_dpp v24, v{D+1}, v{D+1} row_ror:8 row_mask:0xf bank_mask:0xc')
            a(f'v_add_f32_dpp v25, v{D+3}, v{D+3} row_ror:8 row_mask:0xf bank_mask:0xc')
            r2 = 26 + (g & 1)
            a(f'v_add_f32_dpp v{r2}, v24, v24 row_shl:4 row_mask:0xf bank_mask:0x5')
            a(f'v_add_f32_dpp v{r2}, v25, v25 row_shr:4 row_mask:0xf bank_mask:0xa')
            if g & 1:
                r3 = 28 + ((g >> 1) & 1)
                a(f'v_add_f32_dpp v30, v26, v26 quad_perm:[2,3,0,1] row_mask:0xf bank_mask:0xf')
                a(f'v_add_f32_dpp v31, v27, v27 quad_perm:[2,3,0,1] row_mask:0xf bank_mask:0xf')
                a(f'v_cndmask_b32 v{r3}, v30, v31, s[96:97]')
            if (g & 3) == 3:
                a(f'v_add_f32_dpp v30, v28, v28 quad_perm:[1,0,3,2] row_mask:0xf bank_mask:0xf')
                a(f'v_add_f32_dpp v31, v29, v29 quad_perm:[1,0,3,2] row_mask:0xf bank_mask:0xf')
                a(f'v_cndmask_b32 v{32 + (g >> 2)}, v30, v31, s[98:99]')
        a(f'''
        v_cvt_pk_bf16_f32 v20, v32, v33
        s_mov_b32 s86, 0x3db504f3
        ''')
        self.unpack(32, 20)
        a('v_pk_mul_f32 v[32:33], v[32:33], s[86:87] op_sel_hi:[1,0]\nv_cvt_pk_bf16_f32 v20, v32, v33')
        self.unpack(32, 20)
        a('v_max_f32 v20, v32, v33')
        self.wave_red(20, 'max')
        a(f'''
        v_readlane_b32 s86, v20, 63              ; m_w
        s_mov_b32 s90, {LOG2E}
        v_subrev_f32 v20, s86, v32
        v_subrev_f32 v21, s86, v33
        v_mul_f32 v20, s90, v20
        v_mul_f32 v21, s90, v21
        v_exp_f32 v20, v20
        v_exp_f32 v21, v21
        v_add_f32 v21, v20, v21
        ''')
        self.wave_red(21)
        a(f'''
        v_mov_b32 v20, s86
        s_lshl_b32 s85, s15, 3
        v_add_u32 v22, s85, v13
        s_mov_b32 exec_lo, 0
        s_mov_b32 exec_hi, 0x80000000
        ds_write_b64 v22, v[20:21] offset:{L_SM}
        s_mov_b64 exec, -1
        ''')
        self.stamp(3)
        self.signal(C_SM)
        pre(8, 31)
        self.lds_wait(C_SM, 8)
        self.stamp(4)
        a(f'''
        v_and_b32 v22, 7, v2
        v_lshl_add_u32 v22, v22, 3, v13
        ds_read_b64 v[20:21], v22 offset:{L_SM}
        s_waitcnt lgkmcnt(0)
        v_max_f32_dpp v22, v20, v20 row_ror:4 row_mask:0xf bank_mask:0xf
        v_max_f32_dpp v22, v22, v22 row_ror:2 row_mask:0xf bank_mask:0xf
        v_max_f32_dpp v22, v22, v22 row_ror:1 row_mask:0xf bank_mask:0xf
        v_sub_f32 v20, v20, v22
        v_mul_f32 v20, s90, v20
        v_exp_f32 v20, v20
        v_sub_f32 v32, v32, v22
        v_sub_f32 v33, v33, v22
        v_mul_f32 v21, v21, v20
        v_mul_f32 v32, s90, v32
        v_mul_f32 v33, s90, v33
        v_add_f32_dpp v21, v21, v21 row_ror:4 row_mask:0xf bank_mask:0xf
        v_exp_f32 v32, v32
        v_exp_f32 v33, v33
        v_add_f32_dpp v21, v21, v21 row_ror:2 row_mask:0xf bank_mask:0xf
        v_add_f32_dpp v21, v21, v21 row_ror:1 row_mask:0xf bank_mask:0xf
        v_rcp_f32 v21, v21
        v_mul_f32 v32, v32, v21
        v_mul_f32 v33, v33, v21
        v_cvt_pk_bf16_f32 v32, v32, v32
        v_cvt_pk_bf16_f32 v33, v33, v33
        ''')
        issued = st['V']; nwo = st['W']
        for t in range(32):
            A = 20 + 4 * (t & 1)
            for r in range(4):
                a(f'v_and_b32_dpp v{A+r}, v{32 + (t >> 4)}, v{8+r} row_newbcast:{bitrev4(t & 15)} row_mask:0xf bank_mask:0xf')
            wait_for(f'V{t}')
            a(f'v_mfma_f32_16x16x32_bf16 v[16:19], v[{A}:{A+3}], v[{KV(t % NV)}:{KV(t % NV)+3}], {"0" if t == 0 else "v[16:19]"}')
            while t + (WV if t < self.wv_sw else self.WV2) >= issued and issued < 32:
                ld(issued, issued % NV, 's[52:55]', f'V{issued}'); issued += 1
            if t >= self.wo_start:
                for _ in range(self.wo_per):
                    if nwo < 20: ldwo(nwo); nwo += 1
            if t == self.prog_t: self.signal(C_PROG)
            if t == self.progw_t: self.signal(C_PROGW)
            if t == self.k2_t: self.signal(C_K2)
            if t == 28:
                a(f'''
                v_lshlrev_b32 v7, 4, v2
                v_and_b32 v3, 15, v2
                v_lshrrev_b32 v4, 4, v2
                v_lshlrev_b32 v5, 5, v3
                v_lshl_add_u32 v5, v4, 4, v5          ; (8j+4s')*4
                s_lshl_b32 s85, s15, 9
                s_add_u32 s85, s85, {L_OP}
                v_add_u32 v6, s85, v5
                s_mul_i32 s85, s15, 2560
                s_add_u32 s85, s85, {L_WP}
                v_add_u32 v5, s85, v5
                s_lshl_b32 s85, s15, 6
                s_add_u32 s85, s85, {L_OP}
                v_lshl_add_u32 v4, v4, 4, s85
                v_add_u32 v35, {L_WP}, v7
                v_lshlrev_b32 v12, 3, v2
                v_add_u32 v36, {L_WP}, v12
                s_mul_i32 s87, s2, 2560
                s_add_u32 s87, s87, {WS_P}
                ''')
        assert nwo == 20
        a(f'''
        s_mov_b32 exec_hi, 0
        ds_write_b128 v6, v[16:19]
        s_mov_b64 exec, -1
        ''')
        self.stamp(5)
        self.signal(C_PV)
        self.lds_wait(C_PV, 8)
        for w in range(8):
            a(f'ds_read_b128 v[{40+4*w}:{43+4*w}], v4 offset:{512*w}')
        a('s_waitcnt lgkmcnt(0)')
        self.sum_partials(40, [40 + 4 * i for i in range(8)])
        for r in range(4): a(f'v_cvt_pk_bf16_f32 v{40+r}, v{40+r}, v{40+r}')
        for tp in range(4):
            for r in range(4): a(f'v_and_b32 v{44+4*tp+r}, v{40+tp}, v{8+r}')
        a('s_waitcnt vmcnt(0)')
        self.stamp(6)
        for tp in range(4):
            for c in range(5):
                d = 60 + 4 * c; b = KV(NV + 5 * tp + c)
                a(f'v_mfma_f32_16x16x32_bf16 v[{d}:{d+3}], v[{44+4*tp}:{47+4*tp}], v[{b}:{b+3}], {"0" if tp == 0 else "v[%d:%d]" % (d, d+3)}')
        a('s_mov_b32 exec_hi, 0')
        for c in range(5): a(f'ds_write_b128 v5, v[{60+4*c}:{63+4*c}] offset:{512*c}')
        a('s_mov_b64 exec, -1')
        self.arrive(C_WO, 7, 'L_stream_end')
        self.stamp(7)
        for w in range(8):
            b = 40 + 10 * w
            a(f'ds_read_b128 v[{b}:{b+3}], v35 offset:{2560*w}')
            a(f'ds_read_b128 v[{b+4}:{b+7}], v35 offset:{2560*w + 1024}')
            a(f'ds_read_b64 v[{b+8}:{b+9}], v36 offset:{2560*w + 2048}')
            if w == 3: a('s_waitcnt lgkmcnt(0)')
        def P(r, i): return f'v[{r+2*i}:{r+2*i+1}]'
        for x, y in ((40, 50), (60, 70), (40, 60)):
            for i in range(5): a(f'v_pk_add_f32 {P(x,i)}, {P(x,i)}, {P(y,i)}')
        a('s_waitcnt lgkmcnt(0)')
        for x, y in ((80, 90), (100, 110), (80, 100), (40, 80)):
            for i in range(5): a(f'v_pk_add_f32 {P(x,i)}, {P(x,i)}, {P(y,i)}')
        self.sanitize(range(40, 50))
        a(f'''
        buffer_store_dwordx4 v[40:43], v7, s[44:47], s87 offen sc1
        buffer_store_dwordx4 v[44:47], v7, s[44:47], s87 offen offset:1024 sc1
        buffer_store_dwordx2 v[48:49], v12, s[44:47], s87 offen offset:2048 sc1
        ''')
        self.signal(C_DONE)
        a('L_stream_end:')
        self.stamp(10)
        self.stamp_flush()
        self.diag_end()
        a('L_end:\ns_endpgm\nL_code_end:')

    def build(self):
        self.prologue(); self.control(); self.stream()
        kn = NAME + '_kernel'
        body = '\n'.join(fix_hazards(self.a.l)) + '\n'
        hdr = open('cdna_kernels/' + NAME + '.s.ref').read().split('; Override launch')[0]
        return hdr + header([f'; @launch grid=(256,1,1) block=(768,1,1) lds={LDS_SIZE}']) + kernel_start(kn) + body + '.section .rodata,"a"\n' + descriptor(kn, vgpr=168, sgpr=102, accum=168)

if __name__ == '__main__':
    import argparse
    from collections import Counter
    rs = [role_of(w) for w in range(256)]
    for r, n in ((R_G1, 20), (R_DOWN, 40), (R_FFN, 54), (R_Q, 64), (R_MOD, 40), (R_RED, 8)):
        assert sorted(i for rr, i in rs if rr == r) == list(range(n)), r
    ap = argparse.ArgumentParser()
    ap.add_argument('-o', default='k.s'); ap.add_argument('--stamp', action='store_true')
    for p, d in (('WK', 3), ('WV', 3), ('rot', 3), ('rotw', 1), ('qpos', 25), ('prog_t', 22), ('progw_t', -1), ('WD', 20), ('wo_start', 0), ('wo_per', 1), ('sdelay', 0), ('WK0', 2), ('wk_sw', 16), ('k2_t', -1), ('WV2', 6), ('wv_sw', 16), ('hold', 1), ('pf', 1), ('WKL', 4), ('wkl_sw', 6), ('lagmask', 0x32), ('pfb', 1), ('cpf', 1), ('diag_until', 0), ('diag_xcc', 0), ('diag_role', -1), ('diag_cls', -1), ('diag_idx', -1), ('nEf', 8), ('nEd', 6), ('late', 0), ('WDM', 20), ('k2_n', 8)):
        ap.add_argument('--' + p, type=int, default=d)
    ap.add_argument('--pre', default='V,V,V,V,V,V,V,V,W')
    ap.add_argument('--ntp', default='mqofkv')
    args = ap.parse_args()
    kw = dict(vars(args)); o = kw.pop('o')
    open(o, 'w').write(G(**kw).build())
```

```python
import sys
from asmlib import *
import gen as G1mod
from gen import bitrev4, LOG2E, SPIN_LIMIT

WS_E = 0
WS_H1 = 0x1000
WS_Q = 0x8000
SB2 = 0x28000
WS_H2 = SB2; WS_X1 = SB2 + 0x3000; WS_HID = SB2 + 0x6000; WS_MODO = SB2 + 0xD000
WS_P = 0x50000
WS_STAMP = 0x100000
WS_SIZE = 0x200000
LW = 0; L_OP = 0x14000; L_WP = 0x15000; LM = 0x1A000; LDS_SIZE = 0x1B000
C_A, C_SM, C_PV, C_WO, C_QOK, C_PROG, C_PROGW, C_GO, C_DONE, C_K2, C_ACT, C_PF, C_PF2 = [4 * i for i in range(13)]
L_STAT = 0x40; L_SM = 0x100
L_ACT = L_WP; ACTS = 1344
R_G1, R_DOWN, R_FFN, R_Q, R_MOD, R_RED = 1, 2, 3, 4, 5, 6

def role_of(wg):
    x = wg & 7; u = wg >> 3
    if u < 2: return R_G1, 2 * x + u
    if u < 6:
        k = u - 2
        e = EXTRA.get((x, k >> 1))
        if e is None: return 0, 0
        return e[0], e[0] * 16 + 2 * e[1] + (k & 1)
    if u < 14: return R_Q, (x + 8 * ((u - 6) >> 1)) * 2 + ((u - 6) & 1)
    if u < 19: return R_MOD, 5 * x + u - 14
    if u < 25: return R_FFN, 6 * x + u - 19
    if u < 29: return R_DOWN, 4 * x + u - 25
    if u == 29: return R_RED, x
    return 0, 0
EXTRA = {(0, 0): (R_DOWN, 0), (0, 1): (R_DOWN, 1), (2, 0): (R_DOWN, 2), (2, 1): (R_DOWN, 3),
         (4, 0): (R_FFN, 0), (4, 1): (R_FFN, 1), (6, 0): (R_G1, 0), (6, 1): (R_FFN, 2), (1, 0): (R_G1, 1)}

class G(G1mod.G):
    def __init__(self, stamp=False, WK=3, WV=3, rot=3, rotw=1, qpos=25, prog_t=22, progw_t=-1, WD=4, wo_start=0, wo_per=1, sdelay=0, WK0=2, wk_sw=16, k2_t=6, WV2=6, wv_sw=16, hold=1, pf=1, WKL=6, wkl_sw=6, lagmask=0x72, diag_xcc=0, diag_role=-1, diag_until=0, diag_cls=-1, diag_idx=-1, ntp='kv', cpf=1, pfb=1, nEf=8, nEd=6, late=1, pfl_t=8, psleep=0, hdelay=0, red_direct=27, WDM=2, k2_n=8, pre='V,V,VV,VW,VWW,VWW,VVW,VWW,VVWW'):
        self.sdelay = sdelay; self.WK0 = WK0; self.wk_sw = wk_sw; self.k2_t = k2_t; self.WV2 = WV2; self.wv_sw = wv_sw; self.hold = hold; self.pf = pf; self.late = late; self.pfl_t = pfl_t; self.psleep = psleep; self.hdelay = hdelay; self.red_direct = red_direct; self.pfb = pfb; self.cpf = cpf; self.ntp = ntp; self.cur_nt = 'nt'; self.diag_until = diag_until; self.diag_xcc = diag_xcc; self.diag_role = diag_role; self.diag_cls = diag_cls; self.diag_idx = diag_idx; self.cur_cls = -1; self.nEf = nEf; self.nEd = nEd; self.WKL = WKL; self.wkl_sw = wkl_sw; self.lagmask = lagmask; self.WDM = WDM; self.k2_n = k2_n; self.pre = pre.split(',')
        self.a = Asm(); self.stamp_on = stamp
        self.WK = WK; self.WV = WV; self.rot = rot; self.rotw = rotw; self.qpos = qpos; self.prog_t = prog_t
        self.progw_t = progw_t; self.WD = WD; self.wo_start = wo_start; self.wo_per = wo_per

    def stamp(self, i):
        if self.diag_until and i == self.diag_idx and (self.cur_cls == self.diag_cls or (self.cur_cls == 99 and self.diag_cls > 0)):
            if self.cur_cls == 99:
                L = self.a.label('L_ds')
                self.a(f's_cmp_lg_u32 s7, {self.diag_cls}\ns_cbranch_scc1 {L}\ns_memrealtime s[100:101]\ns_waitcnt lgkmcnt(0)\n{L}:')
            elif self.diag_role >= 0:
                L = self.a.label('L_ds')
                self.a(f's_cmp_lg_u32 s7, {self.diag_role}\ns_cbranch_scc1 {L}\ns_memrealtime s[100:101]\ns_waitcnt lgkmcnt(0)\n{L}:')
            else:
                self.a('s_memrealtime s[100:101]\ns_waitcnt lgkmcnt(0)')
        super().stamp(i)

    def diag_end(self):
        if self.diag_until:
            L = self.a.label('L_diag')
            if self.diag_xcc:
                self.a('s_getreg_b32 s97, hwreg(HW_REG_XCC_ID)\ns_sub_u32 s97, s97, s2\ns_and_b32 s97, s97, 7')
                if self.diag_xcc == 2: self.a('s_sub_u32 s97, 7, s97')
                self.a('s_mul_i32 s97, s97, 400\ns_add_u32 s100, s100, s97')
            self.a(f'{L}:\ns_sleep 1\ns_memrealtime s[98:99]\ns_waitcnt lgkmcnt(0)\ns_sub_u32 s98, s98, s100\ns_cmp_lt_i32 s98, {self.diag_until*100}\ns_cbranch_scc1 {L}')

    def ln_stats1(self, U, T, s_m, s_rs):
        a = self.a
        a(f'v_readlane_b32 s86, v{U}, 0')
        for i in range(5):
            a(f'v_pk_add_f32 v[{T+4}:{T+5}], v[{U+2*i}:{U+2*i+1}], s[86:87] op_sel_hi:[1,0] neg_lo:[0,1] neg_hi:[0,1]')
            if i == 0:
                a(f'v_pk_mul_f32 v[{T+2}:{T+3}], v[{T+4}:{T+5}], v[{T+4}:{T+5}]')
                a(f'v_add_f32 v{T}, v{T+4}, v{T+5}')
            else:
                a(f'v_pk_fma_f32 v[{T+2}:{T+3}], v[{T+4}:{T+5}], v[{T+4}:{T+5}], v[{T+2}:{T+3}]')
                a(f'v_add_f32 v{T+1}, v{T+4}, v{T+5}\nv_add_f32 v{T}, v{T}, v{T+1}')
        a(f'v_add_f32 v{T+1}, v{T+2}, v{T+3}')
        for m in ('row_ror:8 row_mask:0xf', 'row_ror:4 row_mask:0xf', 'row_ror:2 row_mask:0xf', 'row_ror:1 row_mask:0xf', 'row_bcast:15 row_mask:0xa', 'row_bcast:31 row_mask:0xc'):
            for v in (T, T + 1): a(f'v_add_f32_dpp v{v}, v{v}, v{v} {m} bank_mask:0xf')
        a(f'''
        v_mul_f32 v{T}, 0x3acccccd, v{T}
        v_mul_f32 v{T+1}, 0x3acccccd, v{T+1}
        v_fma_f32 v{T+1}, -v{T}, v{T}, v{T+1}
        v_add_f32 v{T}, s86, v{T}
        v_max_f32 v{T+1}, 0, v{T+1}
        v_cvt_pk_bf16_f32 v{T}, v{T}, v{T+1}
        v_and_b32 v{T+1}, s84, v{T}
        v_lshlrev_b32 v{T}, 16, v{T}
        v_add_f32 v{T+1}, 0x3727c5ac, v{T+1}
        v_readlane_b32 s{s_m}, v{T}, 63
        ''')
        self.bf1(T + 1)
        a(f'v_sqrt_f32 v{T+1}, v{T+1}')
        self.bf1(T + 1)
        a(f'v_rcp_f32 v{T+1}, v{T+1}')
        a(f's_nop 0\nv_readlane_b32 s{s_rs}, v{T+1}, 63')

    def tag_from(self, v):
        self.a(f'''
        s_mov_b32 s85, 1664525
        v_mul_lo_u32 v{v}, s85, v{v}
        v_add_u32 v{v}, 1013904223, v{v}
        v_readfirstlane_b32 s94, v{v}
        ''')

    def poll(self, name, loads, check, sleep, tagged=False):
        a = self.a
        a(f's_mov_b32 s89, {SPIN_LIMIT}\nL_{name}_poll:')
        for l in loads: a(l)
        a('s_waitcnt vmcnt(0)')
        if tagged:
            for i in range(0, len(check), 2):
                a(f'v_xor_b32 v36, s94, v{check[i]}\nv_xor_b32 v37, s94, v{check[i+1]}')
                a('v_or_b32 v38, v36, v37' if i == 0 else 'v_or3_b32 v38, v38, v36, v37')
            a('v_cmp_ne_u32 vcc, 0, v38')
        else:
            c = list(check)
            if len(c) % 2 == 0:
                a(f'v_max_u32 v38, v{c[0]}, v{c[1]}'); c = c[2:]
            else:
                a(f'v_max3_u32 v38, v{c[0]}, v{c[1]}, v{c[2]}'); c = c[3:]
            for i in range(0, len(c), 2): a(f'v_max3_u32 v38, v38, v{c[i]}, v{c[i+1]}')
            a('v_cmp_eq_u32 vcc, -1, v38')
        a(f'''
        s_cbranch_vccz L_{name}_ok
        {"s_sleep %d" % sleep if sleep else ""}
        s_sub_u32 s89, s89, 1
        s_cbranch_scc0 L_{name}_poll
        L_{name}_ok:
        ''')

    def prologue(self):
        a = self.a
        a(f'''
        s_cmp_ge_u32 s2, 256
        s_cbranch_scc1 L_end
        {'s_memrealtime s[100:101]' if self.diag_until else ''}
        s_getpc_b64 s[86:87]
        L_pc0:
        v_lshlrev_b32 v3, 7, v0
        v_min_u32 v3, L_code_end-L_pc0-4, v3
        {'global_load_dword v161, v3, s[86:87]' if self.cpf else ''}
        s_load_dwordx16 s[16:31], s[0:1], 0
        s_load_dwordx8 s[32:39], s[0:1], 64
        s_load_dwordx4 s[40:43], s[0:1], 96
        v_lshrrev_b32 v1, 6, v0
        v_and_b32 v2, 63, v0
        v_readfirstlane_b32 s3, v1
        v_mov_b32 v13, {LM}
        s_mov_b32 s84, 0xffff0000
        v_mov_b32 v15, 0
        v_lshl_add_u32 v14, v2, 2, v13
        ds_write_b32 v14, v15
        s_lshr_b32 s13, s2, 5            ; b
        s_and_b32 s14, s2, 31            ; h
        v_lshlrev_b32 v7, 4, v2          ; lane*16
        ''')
        self.decode()
        a('''
        s_waitcnt lgkmcnt(0)
        s_barrier
        ''')
        self.srd(44, 42, WS_SIZE)
        self.stamp(0)
        a(f'''
        s_cmp_lt_u32 s3, 4
        s_cbranch_scc0 L_stream
        ''')

    def decode(self):
        a = self.a
        ext = 0
        for (x, kh), (r, idx) in EXTRA.items(): ext |= (r | idx << 2) << (4 * (2 * x + kh))
        a(f'''
        s_and_b32 s4, s2, 7              ; x
        s_lshr_b32 s5, s2, 3             ; u
        s_mov_b32 s7, 0
        s_mov_b32 s8, 0
        ''')
        for lo, hi, role, mul in ((0, 2, R_G1, 2), (14, 19, R_MOD, 5), (19, 25, R_FFN, 6), (25, 29, R_DOWN, 4), (29, 30, R_RED, 1)):
            a(f'''
            s_sub_u32 s9, s5, {lo}
            s_mul_i32 s10, s4, {mul}
            s_add_u32 s10, s10, s9
            s_cmp_lt_u32 s9, {hi-lo}
            s_cselect_b32 s7, {role}, s7
            s_cselect_b32 s8, s10, s8
            ''')
        a(f'''
        s_sub_u32 s9, s5, 6              ; Q: (x + 8*(k>>1))*2 + (k&1)
        s_lshr_b32 s10, s9, 1
        s_lshl_b32 s10, s10, 3
        s_add_u32 s10, s10, s4
        s_lshl_b32 s10, s10, 1
        s_and_b32 s11, s9, 1
        s_add_u32 s10, s10, s11
        s_cmp_lt_u32 s9, 8
        s_cselect_b32 s7, {R_Q}, s7
        s_cselect_b32 s8, s10, s8
        s_sub_u32 s9, s5, 2              ; extras
        s_lshr_b32 s10, s9, 1
        s_and_b32 s10, s10, 1
        s_lshl_b32 s11, s4, 1
        s_add_u32 s10, s10, s11
        s_lshl_b32 s10, s10, 2
        s_mov_b32 s86, {ext & 0xffffffff}
        s_mov_b32 s87, {ext >> 32}
        s_lshr_b64 s[86:87], s[86:87], s10
        s_and_b32 s10, s86, 3            ; role
        s_bfe_u32 s11, s86, 0x20002      ; idx
        s_lshl_b32 s11, s11, 1
        s_lshl_b32 s12, s10, 4
        s_add_u32 s11, s11, s12
        s_and_b32 s12, s9, 1
        s_add_u32 s11, s11, s12
        s_cmp_lt_u32 s9, 4
        s_cselect_b32 s7, s10, s7
        s_cselect_b32 s8, s11, s8
        ''')

    def nt(self, c): return 'nt' if c in self.ntp else ''
    def pfld(self, v, srd, so): self.a(f'buffer_load_dword v160, v{v}, {srd}, {so} offen {self.cur_nt}')

    def prefetch(self):
        a = self.a
        self.cur_nt = self.nt('m')
        self.srd(64, 36, 640 * 7680)
        a(f'''
        s_sub_u32 s90, s5, 14
        s_cmp_ge_u32 s90, 16
        s_cbranch_scc1 L_pf_done
        s_lshl_b32 s92, s4, 7
        s_cmp_lt_u32 s3, 2
        s_cbranch_scc1 L_pfA
        s_cmp_eq_u32 s4, 6
        s_cselect_b32 s92, 1024, 0
        s_cmp_eq_u32 s4, 1
        s_cselect_b32 s92, 1152, s92
        s_cmp_eq_u32 s92, 0
        s_cbranch_scc1 L_pf_done
        L_pfA:
        s_lshl_b32 s90, s90, 1
        s_and_b32 s91, s3, 1
        s_add_u32 s90, s90, s91
        s_mul_i32 s91, s90, {20*7680}
        s_add_u32 s92, s92, s91
        v_lshrrev_b32 v16, 1, v2
        v_min_u32 v16, 19, v16
        v_mul_u32_u24 v16, 7680, v16
        v_and_b32 v17, 1, v2
        v_mul_u32_u24 v17, 1280, v17
        v_add_u32 v16, v16, v17
        ''')
        self.pfld(16, 's[64:67]', 's92')
        a('L_pf_done:')

    def prefetch_b(self, sfx):
        a = self.a
        a(f'''
        s_cmp_lt_u32 s3, 2
        s_cbranch_scc1 L_pb_done{sfx}
        s_mul_i32 s90, s5, 20
        v_lshrrev_b32 v16, 3, v2
        s_cmp_eq_u32 s3, 3
        s_cbranch_scc1 L_pb3{sfx}
        ''')
        self.cur_nt = self.nt('q')
        self.srd(64, 22, 640 * 8192)
        a(f'''
        v_bfe_u32 v17, v2, 1, 2
        v_lshlrev_b32 v17, 11, v17
        v_and_b32 v18, 1, v2
        v_lshl_add_u32 v17, v18, 7, v17
        v_lshl_add_u32 v18, v16, 13, v17
        v_and_b32 v16, 3, v16
        v_lshl_add_u32 v19, v16, 13, v17
        s_lshl_b32 s91, s90, 13
        s_lshl_b32 s92, s4, 8
        s_add_u32 s92, s92, s91
        ''')
        self.pfld(18, 's[64:67]', 's92'); a(f's_add_u32 s92, s92, {8*8192}')
        self.pfld(18, 's[64:67]', 's92'); a(f's_add_u32 s92, s92, {8*8192}')
        self.pfld(19, 's[64:67]', 's92')
        if sfx == '':
            a('s_waitcnt vmcnt(0)')
            self.signal(C_PF)
        a(f's_branch L_pb_done{sfx}\nL_pb3{sfx}:')
        self.cur_nt = self.nt('m')
        self.srd(64, 36, 640 * 7680)
        a(f'''
        v_and_b32 v17, 7, v2
        v_min_u32 v17, 4, v17
        v_lshlrev_b32 v17, 7, v17
        v_mul_u32_u24 v18, 7680, v16
        v_add_u32 v18, v18, v17
        v_and_b32 v16, 3, v16
        v_mul_u32_u24 v19, 7680, v16
        v_add_u32 v19, v19, v17
        s_mul_i32 s91, s90, 7680
        s_mul_i32 s92, s4, 640
        s_add_u32 s92, s92, 2560
        s_add_u32 s92, s92, s91
        ''')
        if sfx == '': self.lds_wait(C_PF, 1, sleep=2)
        self.pfld(18, 's[64:67]', 's92'); a(f's_add_u32 s92, s92, {8*7680}')
        self.pfld(18, 's[64:67]', 's92'); a(f's_add_u32 s92, s92, {8*7680}')
        self.pfld(19, 's[64:67]', 's92')
        if sfx == '':
            a(f's_cmp_lg_u32 s7, {R_MOD}\ns_cbranch_scc1 L_pb_done{sfx}\ns_waitcnt vmcnt(0)')
            self.signal(C_PF2)
        a(f'L_pb_done{sfx}:')

    def prefetch_late(self, sfx):
        a = self.a
        self.cur_nt = self.nt('f')
        a(f's_cmp_lg_u32 s3, 0\ns_cbranch_scc1 L_pl1{sfx}')
        self.srd(68, 32, 1728 * 1280)
        a(f'''
        v_min_u32 v16, 53, v2
        v_mul_u32_u24 v16, 1280, v16
        s_mul_i32 s91, s5, {54*1280}
        s_lshl_b32 s92, s4, 7
        s_add_u32 s92, s92, s91
        s_lshl_b32 s93, s4, 6
        s_add_u32 s93, s93, 1024
        s_add_u32 s93, s93, s91
        ''')
        self.lds_wait(C_PROGW, 1, sleep=4)
        self.pfld(16, 's[68:71]', 's92')
        a(f'''
        s_and_b32 s92, s4, 5
        s_cmp_lg_u32 s92, 0
        s_cbranch_scc1 L_pl_done{sfx}
        ''')
        self.pfld(16, 's[68:71]', 's93')
        a(f's_branch L_pl_done{sfx}\nL_pl1{sfx}:')
        self.srd(64, 28, 640 * 3456); self.srd(68, 30, 640 * 3456)
        a(f'''
        s_mul_i32 s92, s4, 3
        s_mov_b32 s91, s92
        s_mov_b32 s93, s92
        s_cmp_eq_u32 s4, 4
        s_cselect_b32 s91, 24, s91
        s_cselect_b32 s93, 25, s93
        s_cmp_eq_u32 s4, 6
        s_cselect_b32 s91, 26, s91
        v_and_b32 v17, 7, v2
        v_min_u32 v18, 2, v17
        v_add_u32 v18, s92, v18
        v_mov_b32 v19, s91
        v_cmp_eq_u32 vcc, 3, v17
        v_cndmask_b32 v18, v18, v19, vcc
        v_mov_b32 v19, s93
        v_cmp_eq_u32 vcc, 4, v17
        v_cndmask_b32 v18, v18, v19, vcc
        v_lshlrev_b32 v17, 7, v18
        v_lshrrev_b32 v16, 3, v2
        s_lshl_b32 s92, s3, 3
        s_sub_u32 s92, s92, 8
        v_add_u32 v16, s92, v16
        v_min_u32 v16, 19, v16
        v_mul_u32_u24 v18, 3456, v16
        v_add_u32 v18, v18, v17
        s_mul_i32 s92, s5, {20*3456}
        ''')
        self.lds_wait(C_PROGW, 1, sleep=4)
        self.pfld(18, 's[64:67]', 's92'); self.pfld(18, 's[68:71]', 's92')
        a(f'L_pl_done{sfx}:')

    def dma640_setup(self):
        a = self.a
        a(f'''
        v_lshrrev_b32 v16, 3, v2
        s_mul_i32 s85, s3, 160
        v_add_u32 v16, s85, v16
        v_mul_lo_u32 v16, s52, v16
        v_and_b32 v17, 3, v2
        v_lshl_add_u32 v16, v17, 4, v16
        v_mov_b32 v17, 0
        v_mov_b32 v18, s48
        v_mov_b32 v19, s49
        v_mov_b32 v20, s50
        v_mov_b32 v21, s51
        v_and_b32 v22, 4, v2
        v_cmp_ne_u32 vcc, 0, v22
        v_cndmask_b32 v18, v18, v20, vcc
        v_cndmask_b32 v19, v19, v21, vcc
        v_lshl_add_u64 v[4:5], v[16:17], 0, v[18:19]
        s_lshl_b32 s54, s52, 3
        s_mov_b32 s55, 0
        ''')
    def dma640_issue(self, lo, hi, WD=99):
        a = self.a
        for n in range(lo, hi):
            a(f's_add_u32 m0, s87, {LW + 1024*n}')
            if n >= WD: a(f's_waitcnt vmcnt({WD-1})')
            a(f'global_load_lds_dwordx4 v[4:5], off {self.cur_nt}')
            if n < 19: a('v_lshl_add_u64 v[4:5], v[4:5], 0, s[54:55]')
    def dma640(self, WD):
        self.dma640_setup(); self.dma640_issue(0, 20, WD)

    def wfrags640(self, younger=None):
        a = self.a
        for n in range(5):
            if younger is not None: a(f's_waitcnt vmcnt({younger + 4 * (4 - n)})')
            for T in range(4):
                b = 40 + 16 * n + 4 * T
                a(f'ds_read_b64_tr_b16 v[{b}:{b+1}], v9 offset:{LW + 4096*n + 32*T}')
                a(f'ds_read_b64_tr_b16 v[{b+2}:{b+3}], v9 offset:{LW + 4096*n + 32*T + 512}')
            a('s_waitcnt lgkmcnt(0)')

    def mfma640(self, skip):
        a = self.a
        for n in range(5):
            for T in range(4):
                b = 40 + 16 * n + 4 * T; d = 16 + 4 * T
                a(f'v_mfma_f32_16x16x32_bf16 v[{d}:{d+3}], v[{b}:{b+3}], v[{120+4*n}:{123+4*n}], {"0" if n == 0 else "v[%d:%d]" % (d, d+3)}')
        for T in range(4):
            a(f'ds_write_b128 v10, v[{16+4*T}:{19+4*T}] offset:{LW + 1024*T}')
        self.arrive(C_A, 3, skip)
        for w in range(4):
            a(f'ds_read_b128 v[{40+4*w}:{43+4*w}], v11 offset:{LW + 20480*w}')
            a(f'ds_read_b128 v[{56+4*w}:{59+4*w}], v11 offset:{LW + 20480*w + 2048}')

    def red640(self):
        self.a('s_waitcnt lgkmcnt(0)')
        self.sum_partials(40, [40, 44, 48, 52]); self.sum_partials(56, [56, 60, 64, 68])

    def silu(self, ns=range(5)):
        a = self.a
        a(f's_mov_b32 s85, {LOG2E | 0x80000000}')
        for n in ns:
            b = 120 + 4 * n
            for i in range(4): self.unpack(16 + 2 * i, b + i)
            for i in range(8): a(f'v_mul_f32 v{24+i}, s85, v{16+i}')
            for i in range(8): a(f'v_exp_f32 v{24+i}, v{24+i}')
            for i in range(8): a(f'v_add_f32 v{24+i}, 1.0, v{24+i}')
            for i in range(8): a(f'v_rcp_f32 v{24+i}, v{24+i}')
            for i in range(8): a(f'v_mul_f32 v{16+i}, v{16+i}, v{24+i}')
            for i in range(4): a(f'v_cvt_pk_bf16_f32 v{b+i}, v{16+2*i}, v{17+2*i}')

    def add64(self, d, base, off):
        self.a(f's_add_u32 s{d}, s{base}, {off}\ns_addc_u32 s{d+1}, s{base+1}, 0')

    def control(self):
        a = self.a
        self.cur_cls = 99
        a('s_setprio 3')
        if self.pf: self.prefetch()
        if self.pfb:
            a(f's_cmp_eq_u32 s7, {R_G1}\ns_cbranch_scc1 L_pb_done')
            self.prefetch_b('')
        a(f'''
        v_mov_b32 v3, 0
        buffer_load_dword v167, v3, s[44:47], 0 offen sc1
        s_mul_i32 s87, s3, 20480
        v_lshrrev_b32 v16, 4, v2         ; s
        v_bfe_u32 v17, v2, 2, 2          ; r4
        v_and_b32 v18, 3, v2             ; c
        v_lshl_add_u32 v19, v16, 3, v17  ; 8s+r4
        v_lshlrev_b32 v9, 7, v19
        v_lshl_add_u32 v9, v18, 3, v9
        v_add_u32 v9, s87, v9
        v_add_u32 v10, s87, v7
        v_and_b32 v17, 7, v2             ; b
        v_bfe_u32 v18, v2, 3, 1          ; t
        v_lshlrev_b32 v11, 8, v16
        v_lshl_add_u32 v11, v17, 4, v11
        v_lshl_add_u32 v11, v18, 10, v11
        v_mul_u32_u24 v19, 1280, v17
        v_lshl_add_u32 v6, v16, 4, v19
        v_lshlrev_b32 v8, 5, v18
        v_lshl_add_u32 v8, v16, 3, v8    ; (16t+4s')*2 bytes
        v_lshlrev_b32 v12, 2, v2         ; lane*4
        s_cmp_eq_u32 s7, {R_Q}
        s_cbranch_scc1 L_role_q
        s_cmp_eq_u32 s7, 0
        s_cbranch_scc1 L_share
        s_cmp_eq_u32 s7, {R_FFN}
        s_cbranch_scc1 L_share
        s_cmp_eq_u32 s7, {R_DOWN}
        s_cbranch_scc1 L_share
        s_cmp_eq_u32 s7, {R_RED}
        s_cbranch_scc1 L_share
        ''')
        self.cur_nt = self.nt('m')
        a(f'''
        s_movk_i32 s52, 7680
        s_cmp_eq_u32 s7, {R_G1}
        s_cbranch_scc1 L_role_g1
        ''')
        self.srd(56, 34, 10240)
        a('s_mul_i32 s85, s3, 320')
        for n in range(5):
            a(f'buffer_load_dwordx4 v[{120+4*n}:{123+4*n}], v6, s[56:59], s85 offen offset:{64*n}')
        a(f'''
        s_lshl_b32 s9, s8, 7
        s_add_u32 s9, s9, 2560
        s_add_u32 s48, s36, s9
        s_addc_u32 s49, s37, 0
        s_add_u32 s50, s48, 64
        s_addc_u32 s51, s49, 0
        s_waitcnt vmcnt(0)
        ''')
        self.silu()
        if self.pfb: self.lds_wait(C_PF2, 1, sleep=2)
        self.dma640(self.WDM)
        a('s_waitcnt vmcnt(0)')
        self.stamp(2)
        self.wfrags640()
        self.mfma640('L_ctrl_end')
        a(f'''
        v_and_b32 v22, 7, v2
        v_mul_u32_u24 v22, 5120, v22
        v_add_u32 v22, v22, v8
        s_lshl_b32 s90, s8, 7
        s_add_u32 s90, s90, {WS_MODO}
        ''')
        self.red640()
        self.pack4(24, 40); self.pack4(26, 56)
        self.sanitize([24, 25, 26, 27])
        self.lds_wait(C_QOK, 1, sleep=8)
        a(f'''
        buffer_store_dwordx2 v[24:25], v22, s[44:47], s90 offen sc1
        buffer_store_dwordx2 v[26:27], v22, s[44:47], s90 offen offset:64 sc1
        s_branch L_ctrl_end
        L_role_g1:
        s_lshl_b32 s9, s8, 6
        s_add_u32 s48, s36, s9
        s_addc_u32 s49, s37, 0
        s_add_u32 s50, s48, 1280
        s_addc_u32 s51, s49, 0
        v_add_u32 v34, v19, v8
        ''')
        self.stamp(6)
        self.dma640(99)
        self.srd(60, 16, 10240)
        a(f'''
        buffer_load_dwordx2 v[150:151], v34, s[60:63], s9 offen
        s_lshl_b32 s85, s8, 2
        s_add_u32 s85, s85, s3
        s_lshl_b32 s85, s85, 11
        s_add_u32 s85, s85, {SB2}
        v_mov_b32 v152, -1
        v_mov_b32 v153, -1
        v_mov_b32 v154, -1
        v_mov_b32 v155, -1
        buffer_store_dwordx4 v[152:155], v7, s[44:47], s85 offen sc1
        buffer_store_dwordx4 v[152:155], v7, s[44:47], s85 offen offset:1024 sc1
        v_and_b32 v16, 7, v2
        v_mul_u32_u24 v16, {ACTS}, v16
        v_lshrrev_b32 v17, 4, v2
        v_lshl_add_u32 v16, v17, 4, v16
        s_mul_i32 s85, s3, 320
        s_add_u32 s85, s85, {L_ACT}
        v_add_u32 v35, s85, v16
        ''')
        self.signal(C_GO)
        self.stamp(1)
        self.lds_wait(C_ACT, 8)
        for n in range(5): a(f'ds_read_b128 v[{120+4*n}:{123+4*n}], v35 offset:{64*n}')
        self.stamp(3)
        self.wfrags640(younger=3)
        self.tag_from(167)
        a('s_waitcnt vmcnt(0)')
        self.stamp(2)
        self.mfma640('L_ctrl_end')
        a(f'''
        v_and_b32 v22, 7, v2
        v_lshl_add_u32 v23, v22, 3, v13
        ds_read_b64 v[36:37], v23 offset:{L_STAT}
        ''')
        self.red640()
        self.pack4(24, 40); self.pack4(26, 56)
        self.unpack4(56, 26)
        a('v_pk_add_f32 v[56:57], v[56:57], 1.0 op_sel_hi:[1,0]\nv_pk_add_f32 v[58:59], v[58:59], 1.0 op_sel_hi:[1,0]')
        self.round4(56, 26)
        self.unpack4(40, 24)
        self.unpack4(44, 150)
        for i in range(4): a(f'v_sub_f32 v{44+i}, v{44+i}, v36')
        self.round4(44, 28)
        for i in range(4): a(f'v_mul_f32 v{44+i}, v{44+i}, v37')
        self.round4(44, 28)
        a('v_pk_mul_f32 v[44:45], v[44:45], v[56:57]\nv_pk_mul_f32 v[46:47], v[46:47], v[58:59]')
        self.round4(44, 28)
        a('v_pk_add_f32 v[44:45], v[44:45], v[40:41]\nv_pk_add_f32 v[46:47], v[46:47], v[42:43]')
        a(f'''
        v_cvt_pk_bf16_f32 v28, v44, v45
        v_cvt_pk_bf16_f32 v30, v46, v47
        v_mov_b32 v29, s94
        v_mov_b32 v31, s94
        v_lshlrev_b32 v22, 4, v22               ; b*16
        v_lshl_add_u32 v22, v8, 4, v22          ; + (16t+4s')*32 = t*512 + s'*128
        s_lshl_b32 s85, s8, 10
        s_add_u32 s85, s85, {WS_H1}
        buffer_store_dwordx4 v[28:31], v22, s[44:47], s85 offen sc1
        s_branch L_ctrl_end
        ''')
        self.cur_nt = self.nt('q')
        a(f'''
        L_role_q:
        s_lshl_b32 s9, s8, 7
        s_add_u32 s48, s22, s9
        s_addc_u32 s49, s23, 0
        s_add_u32 s50, s48, 64
        s_addc_u32 s51, s49, 0
        s_movk_i32 s52, 8192
        ''')
        if self.pfb: self.lds_wait(C_PF, 1, sleep=2)
        self.dma640(99)
        a(f'''
        s_and_b32 s85, s8, 1
        s_lshl_b32 s85, s85, 2
        s_add_u32 s85, s85, s3
        s_lshl_b32 s85, s85, 5
        s_lshr_b32 s86, s8, 1
        s_add_u32 s85, s85, s86
        s_mul_i32 s85, s85, 2560
        s_add_u32 s85, s85, {WS_P}
        v_mov_b32 v152, -1
        v_mov_b32 v153, -1
        v_mov_b32 v154, -1
        v_mov_b32 v155, -1
        v_lshlrev_b32 v19, 3, v2
        buffer_store_dwordx4 v[152:155], v7, s[44:47], s85 offen sc1
        buffer_store_dwordx4 v[152:155], v7, s[44:47], s85 offen offset:1024 sc1
        buffer_store_dwordx2 v[152:153], v19, s[44:47], s85 offen offset:2048 sc1
        ''')
        self.signal(C_GO)
        a('s_waitcnt vmcnt(0)')
        self.stamp(2)
        self.tag_from(167)
        self.wfrags640()
        a(f'''
        s_mul_i32 s90, s3, 5120
        s_add_u32 s90, s90, {WS_H1}
        s_add_u32 s91, s90, 4096
        ''')
        self.stamp(3)
        loads = [f'buffer_load_dwordx4 v[{120+4*n}:{123+4*n}], v7, s[44:47], s{90 if n < 4 else 91} offen offset:{1024*(n%4)} sc1' for n in range(5)]
        self.poll('h1', loads, [121 + 2 * i for i in range(10)], 4, tagged=True)
        self.stamp(4)
        for n in range(5):
            b = 120 + 4 * n
            a(f'v_mov_b32_dpp v{b+3}, v{b+2} row_ror:8 row_mask:0xf bank_mask:0xf')
            a(f'v_mov_b32 v{b+1}, v{b+2}')
            a(f'v_mov_b32_dpp v{b+2}, v{b} row_ror:8 row_mask:0xf bank_mask:0xf')
        self.mfma640('L_ctrl_end')
        a(f'''
        v_and_b32 v22, 7, v2
        v_lshlrev_b32 v22, 14, v22              ; b*32*512
        v_lshl_add_u32 v22, v8, 1, v22          ; + col*4
        s_lshl_b32 s85, s8, 8                   ; h*512 + half*256
        s_add_u32 s85, s85, {WS_Q}
        v_mov_b32 v29, s94
        v_mov_b32 v31, s94
        v_mov_b32 v33, s94
        v_mov_b32 v35, s94
        ''')
        self.red640()
        a(f'''
        v_cvt_pk_bf16_f32 v28, v40, v41
        v_cvt_pk_bf16_f32 v30, v42, v43
        v_cvt_pk_bf16_f32 v32, v56, v57
        v_cvt_pk_bf16_f32 v34, v58, v59
        buffer_store_dwordx4 v[28:31], v22, s[44:47], s85 offen sc1
        buffer_store_dwordx4 v[32:35], v22, s[44:47], s85 offen offset:128 sc1
        s_branch L_ctrl_end
        ''')
        self.cur_nt = self.nt('f')
        a(f'''
        L_role_ffn:
        s_lshl_b32 s9, s8, 6
        s_add_u32 s48, s28, s9
        s_addc_u32 s49, s29, 0
        s_add_u32 s50, s30, s9
        s_addc_u32 s51, s31, 0
        s_movk_i32 s52, 3456
        ''')
        self.dma640_setup()
        self.dma640_issue(0, self.nEf, 1)
        self.lds_wait(C_DONE, 5, sleep=2)
        self.dma640_issue(self.nEf, 20)
        self.wfrags640(younger=0)
        self.stamp(2)
        a(f'''
        s_mul_i32 s90, s3, 320
        s_add_u32 s90, s90, {WS_H2}
        v_lshrrev_b32 v33, 3, v2                ; row
        v_and_b32 v35, 7, v2                    ; piece
        v_mul_u32_u24 v6, 1280, v33
        v_and_b32 v34, 3, v35
        v_lshl_add_u32 v34, v34, 4, v6
        v_lshl_add_u32 v6, v35, 4, v6
        v_mul_u32_u24 v3, 400, v33
        v_lshl_add_u32 v3, v35, 4, v3
        s_add_u32 s85, s87, {LW + 8192}
        v_add_u32 v3, s85, v3
        v_mul_u32_u24 v4, 400, v35
        v_lshrrev_b32 v33, 4, v2
        v_lshl_add_u32 v4, v33, 4, v4
        v_add_u32 v4, s85, v4
        v_and_b32 v32, 7, v2
        v_lshlrev_b32 v32, 4, v32
        v_bfe_u32 v33, v2, 3, 1
        v_lshl_add_u32 v32, v33, 8, v32
        v_bfe_u32 v33, v2, 5, 1
        v_lshl_add_u32 v32, v33, 7, v32
        s_lshl_b32 s91, s8, 9
        s_add_u32 s91, s91, {WS_HID}
        ''')
        self.lds_wait(C_WO, 8, sleep=4)
        self.stamp(3)
        loads = ['buffer_load_dwordx4 v[140:143], v6, s[44:47], s90 offen sc1',
                 'buffer_load_dwordx4 v[144:147], v6, s[44:47], s90 offen offset:128 sc1',
                 'buffer_load_dwordx4 v[148:151], v34, s[44:47], s90 offen offset:256 sc1']
        self.poll('h2', loads, list(range(140, 152)), self.psleep)
        self.stamp(4)
        for n in range(3): a(f'ds_write_b128 v3, v[{140+4*n}:{143+4*n}] offset:{128*n}')
        for n in range(5): a(f'ds_read_b128 v[{120+4*n}:{123+4*n}], v4 offset:{64*n}')
        a('s_waitcnt lgkmcnt(0)')
        self.mfma640('L_ctrl_end')
        self.red640()
        self.round4(40, 28); self.round4(56, 30)
        for i in range(4):
            a(f'v_cmp_lt_f32 vcc, 0, v{40+i}\nv_cndmask_b32 v{20+i}, 0, 1.0, vcc')
        a('v_pk_mul_f32 v[40:41], v[40:41], v[20:21]\nv_pk_mul_f32 v[42:43], v[42:43], v[22:23]')
        a('v_pk_mul_f32 v[40:41], v[40:41], v[56:57]\nv_pk_mul_f32 v[42:43], v[42:43], v[58:59]')
        self.pack4(28, 40); self.sanitize([28, 29])
        a(f'''
        v_mov_b32 v30, v28
        v_mov_b32 v31, v29
        v_permlane16_swap_b32 v28, v30
        v_permlane16_swap_b32 v29, v31
        s_mov_b32 exec_lo, 0xffff
        s_mov_b32 exec_hi, 0xffff
        buffer_store_dwordx4 v[28:31], v32, s[44:47], s91 offen sc1
        s_mov_b64 exec, -1
        s_branch L_ctrl_end
        ''')
        a('L_role_down:')
        self.srd(72, 32, 1728 * 1280); self.srd(80, 38, 10240)
        a(f'''
        s_add_u32 s76, s42, {WS_HID}
        s_addc_u32 s77, s43, 0
        s_mov_b32 s78, {27*1024}
        s_mov_b32 s79, 0x20000
        v_lshrrev_b32 v16, 1, v2
        v_mul_u32_u24 v4, 1280, v16
        v_and_b32 v16, 1, v2
        v_lshl_add_u32 v4, v16, 4, v4
        s_mul_i32 s85, s3, {7*64*1280}
        s_lshl_b32 s9, s8, 5
        s_add_u32 s85, s85, s9
        s_mul_i32 s87, s3, 14336
        ''')
        for n in range(14):
            if n == self.nEd: self.lds_wait(C_DONE, 5, sleep=2)
            a(f's_add_u32 m0, s87, {LW + 1024*n}')
            if n < self.nEd: a(f's_waitcnt vmcnt(0)')
            a(f'buffer_load_dwordx4 v4, s[72:75], s85 offen {self.nt("f")} lds')
            a(f's_add_u32 s85, s85, {32*1280}')
        a(f'''
        v_lshrrev_b32 v16, 4, v2         ; s
        v_bfe_u32 v17, v2, 2, 2          ; r4
        v_lshl_add_u32 v19, v16, 3, v17
        v_lshlrev_b32 v9, 5, v19
        v_bfe_u32 v17, v2, 1, 1
        v_lshl_add_u32 v9, v17, 10, v9
        v_and_b32 v17, 1, v2
        v_lshl_add_u32 v9, v17, 3, v9
        v_add_u32 v9, s87, v9
        v_add_u32 v10, s87, v7
        v_and_b32 v17, 7, v2             ; b
        v_bfe_u32 v18, v2, 3, 1          ; a / half
        v_lshlrev_b32 v3, 7, v16
        v_lshl_add_u32 v3, v17, 4, v3
        v_lshl_add_u32 v3, v18, 9, v3
        s_mul_i32 s86, s3, 7168
        v_add_u32 v3, s86, v3
        v_and_b32 v16, 1, v16            ; s'
        v_lshlrev_b32 v11, 8, v16
        v_lshl_add_u32 v11, v17, 4, v11
        v_lshl_add_u32 v11, v18, 10, v11
        v_lshlrev_b32 v8, 4, v18
        v_lshl_add_u32 v8, v16, 3, v8    ; (8a+4s')*2
        v_mul_u32_u24 v5, 5120, v17
        v_add_u32 v5, v5, v8
        v_mul_u32_u24 v6, 1280, v17
        v_add_u32 v6, v6, v8
        s_add_u32 s90, s9, {WS_MODO + 3840}
        s_add_u32 s91, s9, {WS_X1}
        s_movk_i32 s92, 4096
        ''')
        for n in range(7):
            a(f's_waitcnt vmcnt({12 - 2*n})')
            for ac in range(2):
                b = 40 + 8 * n + 4 * ac
                a(f'ds_read_b64_tr_b16 v[{b}:{b+1}], v9 offset:{LW + 2048*n + 16*ac}')
                a(f'ds_read_b64_tr_b16 v[{b+2}:{b+3}], v9 offset:{LW + 2048*n + 16*ac + 128}')
            if n % 2: a('s_waitcnt lgkmcnt(0)')
        self.stamp(2)
        self.tag_from(167)
        self.lds_wait(C_WO, 8, sleep=4)
        self.poll('gb', ['buffer_load_dwordx2 v[32:33], v5, s[44:47], s90 offen sc1'], [32, 33], 4)
        self.unpack4(140, 32)
        self.stamp(3)
        self.poll('x1', ['buffer_load_dwordx2 v[32:33], v6, s[44:47], s91 offen sc1'], [32, 33], 1)
        self.unpack4(144, 32)
        self.stamp(5)
        if self.hdelay: a(f's_sleep {self.hdelay}')
        for i in range(8): a(f'v_mov_b32 v{16+i}, 0')
        a(f's_mov_b32 s90, 0x7f\ns_mov_b32 s89, {SPIN_LIMIT}\nL_hid_poll:')
        for n in range(7):
            a(f's_bitcmp1_b32 s90, {n}\ns_cbranch_scc0 L_hd_sk{n}')
            a(f'buffer_load_dwordx4 v[{104+4*n}:{107+4*n}], v3, s[76:79], {"0" if n < 4 else "s92"} offen offset:{1024*(n%4)} sc1')
            a(f'L_hd_sk{n}:')
        a('s_waitcnt vmcnt(0)')
        for n in range(7):
            b = 104 + 4 * n
            a(f'''
            s_bitcmp1_b32 s90, {n}
            s_cbranch_scc0 L_hd_ck{n}
            v_max3_u32 v36, v{b}, v{b+1}, v{b+2}
            v_max_u32 v36, v36, v{b+3}
            v_cmp_eq_u32 vcc, -1, v36
            s_cbranch_vccnz L_hd_ck{n}
            s_bitset0_b32 s90, {n}
            v_mfma_f32_16x16x32_bf16 v[16:19], v[{40+8*n}:{43+8*n}], v[{b}:{b+3}], v[16:19]
            v_mfma_f32_16x16x32_bf16 v[20:23], v[{44+8*n}:{47+8*n}], v[{b}:{b+3}], v[20:23]
            L_hd_ck{n}:
            ''')
        a(f'''
        s_cmp_eq_u32 s90, 0
        s_cbranch_scc1 L_hid_ok
        s_sub_u32 s89, s89, 1
        s_cbranch_scc0 L_hid_poll
        L_hid_ok:
        s_nop 7
        ''')
        self.stamp(4)
        a(f'ds_write_b128 v10, v[16:19] offset:{LW}\nds_write_b128 v10, v[20:23] offset:{LW + 1024}')
        self.arrive(C_A, 3, 'L_ctrl_end')
        for w in range(4):
            a(f'ds_read_b128 v[{40+8*w}:{43+8*w}], v11 offset:{LW + 14336*w}')
            a(f'ds_read_b128 v[{44+8*w}:{47+8*w}], v11 offset:{LW + 14336*w + 640}')
        a('s_waitcnt lgkmcnt(0)')
        self.sum_partials(40, [40 + 4 * i for i in range(8)])
        self.round4(40, 28)
        a('v_pk_mul_f32 v[40:41], v[40:41], v[140:141]\nv_pk_mul_f32 v[42:43], v[42:43], v[142:143]')
        self.round4(40, 28)
        a('v_pk_add_f32 v[40:41], v[40:41], v[144:145]\nv_pk_add_f32 v[42:43], v[42:43], v[146:147]')
        self.pack4(28, 40)
        a(f'''
        s_mov_b32 exec_hi, 0
        buffer_store_dwordx2 v[28:29], v6, s[80:83], s9 offen
        s_cmp_lg_u32 s8, 0
        s_cbranch_scc1 L_noepoch
        s_mov_b64 exec, 1
        v_mov_b32 v20, 0
        v_mov_b32 v21, s94
        buffer_store_dword v21, v20, s[44:47], 0 offen sc1
        L_noepoch:
        s_mov_b64 exec, -1
        s_branch L_ctrl_end
        ''')
        a('L_role_red:')
        self.srd(60, 16, 10240)
        a(f'''
        v_lshlrev_b32 v8, 3, v2          ; lane*8
        s_mul_i32 s9, s8, 1280
        buffer_load_dwordx2 v[26:27], v8, s[60:63], s9 offen
        buffer_load_dwordx2 v[28:29], v8, s[60:63], s9 offen offset:512
        buffer_load_dword v30, v12, s[60:63], s9 offen offset:1024
        s_lshl_b32 s90, s8, 14
        s_lshl_b32 s85, s3, 12
        s_add_u32 s90, s90, s85
        s_add_u32 s90, s90, {WS_Q}
        s_waitcnt vmcnt(0)
        ''')
        self.tag_from(167)
        for i in range(5): self.unpack(120 + 2 * i, 26 + i)
        self.lds_wait(C_QOK, 1, sleep=8)
        loads = [f'buffer_load_dwordx4 v[{40+4*n}:{43+4*n}], v7, s[44:47], s90 offen offset:{1024*n} sc1' for n in range(4)]
        self.poll('qall', loads, [41 + 2 * i for i in range(8)], 8, tagged=True)
        a(f'''
        s_mul_i32 s90, s8, 5120
        s_add_u32 s90, s90, {WS_MODO}
        ''')
        loads = []
        for ch in range(3):
            b = 40 + 6 * ch
            loads += [f'buffer_load_dwordx2 v[{b}:{b+1}], v8, s[44:47], s90 offen offset:{1280*ch} sc1',
                      f'buffer_load_dwordx2 v[{b+2}:{b+3}], v8, s[44:47], s90 offen offset:{1280*ch + 512} sc1',
                      f'buffer_load_dword v{b+4}, v12, s[44:47], s90 offen offset:{1280*ch + 1024} sc1']
        self.poll('modo', loads, [40 + 6 * ch + i for ch in range(3) for i in range(5)], 8)
        for ch in range(3):
            for i in range(5): self.unpack(130 + 10 * ch + 2 * i, 40 + 6 * ch + i)
        for i in range(5):
            a(f'v_pk_add_f32 v[{150+2*i}:{151+2*i}], v[{150+2*i}:{151+2*i}], 1.0 op_sel_hi:[1,0]')
            a(f'v_cvt_pk_bf16_f32 v26, v{150+2*i}, v{151+2*i}')
            self.unpack(150 + 2 * i, 26)
        for i in range(10): a(f'v_mov_b32 v{16+i}, 0')
        a(f'''
        s_lshl_b32 s91, s8, 5
        s_lshl_b32 s85, s3, 3
        s_add_u32 s91, s91, s85
        s_mul_i32 s91, s91, 2560
        s_add_u32 s91, s91, {WS_P}
        s_mul_i32 s87, s3, 2560
        v_add_u32 v10, s87, v7
        v_add_u32 v11, s87, v8
        s_add_u32 s92, s9, {WS_H2}
        s_add_u32 s93, s9, {WS_X1}
        ''')
        self.stamp(2)
        self.lds_wait(C_PROG, 1, sleep=8)
        self.stamp(3)
        a(f'''
        s_mov_b32 s90, 0xff
        s_mov_b32 s89, {SPIN_LIMIT}
        v_and_b32 v34, 7, v2
        v_mul_u32_u24 v34, 2560, v34
        s_mov_b32 s86, 0
        L_p_poll:
        s_mov_b32 s95, s90
        s_cmp_lg_u32 s86, 0
        s_cbranch_scc1 L_p_fetch
        ds_read_b32 v14, v13 offset:{C_K2}
        s_waitcnt lgkmcnt(0)
        v_readfirstlane_b32 s88, v14
        s_cmp_ge_u32 s88, 8
        s_cselect_b32 s86, 1, 0
        s_cbranch_scc1 L_p_fetch
        s_sleep 4
        buffer_load_dword v35, v34, s[44:47], s91 offen offset:2556 sc1
        s_waitcnt vmcnt(0)
        v_cmp_ne_u32 vcc, -1, v35
        s_nop 1
        s_and_b32 s95, s90, vcc_lo
        s_cbranch_scc0 L_p_next
        L_p_fetch:
        ''')
        for g in range(8):
            b = 40 + 10 * g
            a(f'''
            s_bitcmp1_b32 s95, {g}
            s_cbranch_scc0 L_p_sk{g}
            s_add_u32 s85, s91, {2560*g}
            buffer_load_dwordx4 v[{b}:{b+3}], v7, s[44:47], s85 offen sc1
            buffer_load_dwordx4 v[{b+4}:{b+7}], v7, s[44:47], s85 offen offset:1024 sc1
            buffer_load_dwordx2 v[{b+8}:{b+9}], v8, s[44:47], s85 offen offset:2048 sc1
            L_p_sk{g}:
            ''')
        a('s_waitcnt vmcnt(0)')
        for g in range(8):
            b = 40 + 10 * g
            a(f'''
            s_bitcmp1_b32 s95, {g}
            s_cbranch_scc0 L_p_ck{g}
            v_max3_u32 v36, v{b}, v{b+1}, v{b+2}
            v_max3_u32 v37, v{b+3}, v{b+4}, v{b+5}
            v_max3_u32 v36, v36, v{b+6}, v{b+7}
            v_max3_u32 v37, v37, v{b+8}, v{b+9}
            v_max_u32 v36, v36, v37
            v_cmp_eq_u32 vcc, -1, v36
            s_cbranch_vccnz L_p_ck{g}
            s_bitset0_b32 s90, {g}
            ''')
            for i in range(5): a(f'v_pk_add_f32 v[{16+2*i}:{17+2*i}], v[{16+2*i}:{17+2*i}], v[{b+2*i}:{b+2*i+1}]')
            a(f'L_p_ck{g}:')
        a(f'''
        s_cmp_eq_u32 s90, 0
        s_cbranch_scc1 L_p_ok
        L_p_next:
        s_sub_u32 s89, s89, 1
        s_cbranch_scc0 L_p_poll
        L_p_ok:
        ''')
        self.stamp(4)
        a(f'''
        ds_write_b128 v10, v[16:19] offset:{LW}
        ds_write_b128 v10, v[20:23] offset:{LW + 1024}
        ds_write_b64 v11, v[24:25] offset:{LW + 2048}
        ''')
        self.arrive(C_A, 3, 'L_ctrl_end')
        for w in range(4):
            b = 40 + 10 * w
            a(f'ds_read_b128 v[{b}:{b+3}], v7 offset:{LW + 2560*w}')
            a(f'ds_read_b128 v[{b+4}:{b+7}], v7 offset:{LW + 2560*w + 1024}')
            a(f'ds_read_b64 v[{b+8}:{b+9}], v8 offset:{LW + 2560*w + 2048}')
        a('s_waitcnt lgkmcnt(0)')
        U = 40
        def P(r, i): return f'v[{r+2*i}:{r+2*i+1}]'
        for i in range(5): a(f'v_pk_add_f32 {P(40,i)}, {P(40,i)}, {P(50,i)}')
        for i in range(5): a(f'v_pk_add_f32 {P(60,i)}, {P(60,i)}, {P(70,i)}')
        for i in range(5): a(f'v_pk_add_f32 {P(40,i)}, {P(40,i)}, {P(60,i)}')
        def pk():
            for i in range(5): a(f'v_cvt_pk_bf16_f32 v{26+i}, v{U+2*i}, v{U+2*i+1}')
        def rnd():
            pk()
            for i in range(5): self.unpack(U + 2 * i, 26 + i)
        rnd()
        for i in range(5): a(f'v_pk_mul_f32 {P(U,i)}, {P(U,i)}, {P(130,i)}')
        rnd()
        for i in range(5): a(f'v_pk_add_f32 {P(U,i)}, {P(U,i)}, {P(120,i)}')
        for i in range(5): a(f'v_cvt_pk_bf16_f32 v{160+i}, v{U+2*i}, v{U+2*i+1}')
        self.sanitize(range(160, 165))
        for i in range(5): self.unpack(U + 2 * i, 160 + i)
        self.ln_stats1(U, 32, 96, 98)
        for i in range(5): a(f'v_pk_add_f32 {P(U,i)}, {P(U,i)}, s[96:97] op_sel_hi:[1,0] neg_lo:[0,1] neg_hi:[0,1]')
        rnd()
        for i in range(5): a(f'v_pk_mul_f32 {P(U,i)}, {P(U,i)}, s[98:99] op_sel_hi:[1,0]')
        rnd()
        for i in range(5): a(f'v_pk_mul_f32 {P(U,i)}, {P(U,i)}, {P(150,i)}')
        rnd()
        for i in range(5): a(f'v_pk_add_f32 {P(U,i)}, {P(U,i)}, {P(140,i)}')
        pk()
        self.sanitize(range(26, 31))
        a(f'''
        buffer_store_dwordx2 v[26:27], v8, s[44:47], s92 offen sc1
        buffer_store_dwordx2 v[28:29], v8, s[44:47], s92 offen offset:512 sc1
        buffer_store_dword v30, v12, s[44:47], s92 offen offset:1024 sc1
        buffer_store_dwordx2 v[160:161], v8, s[44:47], s93 offen sc1
        buffer_store_dwordx2 v[162:163], v8, s[44:47], s93 offen offset:512 sc1
        buffer_store_dword v164, v12, s[44:47], s93 offen offset:1024 sc1
        L_ctrl_end:
        ''')
        self.stamp(11)
        a(f's_cmp_eq_u32 s7, {R_DOWN}\ns_cbranch_scc1 L_ctrl_fin\ns_cmp_eq_u32 s7, {R_FFN}\ns_cbranch_scc1 L_ctrl_fin\ns_cmp_eq_u32 s7, {R_RED}\ns_cbranch_scc1 L_ctrl_fin')
        a('L_share:')
        if self.late: self.prefetch_late('e')
        a(f's_cmp_eq_u32 s7, {R_DOWN}\ns_cbranch_scc1 L_role_down\ns_cmp_eq_u32 s7, {R_FFN}\ns_cbranch_scc1 L_role_ffn\ns_cmp_eq_u32 s7, {R_RED}\ns_cbranch_scc1 L_role_red')
        a('L_ctrl_fin:')
        self.stamp_flush()
        self.diag_end()
        a('s_endpgm')

    def stream(self):
        a = self.a
        self.cur_cls = 0
        WK, WV = self.WK, self.WV
        NV = 12
        KV = lambda t: 40 + 4 * t
        a(f'''
        L_stream:
        s_sub_u32 s15, s3, 4             ; sw
        s_lshl_b32 s85, s15, 15
        v_add_u32 v1, s85, v7
        s_mul_i32 s91, s2, {self.rot}
        s_mul_i32 s85, s15, {self.rotw}
        s_add_u32 s91, s91, s85
        s_and_b32 s91, s91, 31
        s_lshl_b32 s91, s91, 10          ; rotation
        s_lshl_b32 s85, s2, 20
        s_add_u32 s85, s85, 0xC0000
        s_add_u32 s48, s18, s85
        s_addc_u32 s49, s19, 0
        s_mov_b32 s50, 0x40000
        s_mov_b32 s51, 0x20000
        s_add_u32 s52, s20, s85
        s_addc_u32 s53, s21, 0
        s_mov_b32 s54, 0x40000
        s_mov_b32 s55, 0x20000
        ''')
        for _ in range(self.sdelay): a('s_sleep 32')
        if self.hold > 1: a(f's_cmp_eq_u32 s7, {R_Q}\ns_cbranch_scc1 L_hold')
        a(f's_cmp_lg_u32 s7, {R_G1}\ns_cbranch_scc1 L_nohold')
        self.srd(56, 34, 10240); self.srd(60, 16, 10240)
        a('s_mul_i32 s90, s15, 1280\nv_lshlrev_b32 v12, 2, v2')
        for n in range(5): a(f'buffer_load_dword v{40+n}, v12, s[56:59], s90 offen offset:{256*n}')
        for n in range(5): a(f'buffer_load_dword v{46+n}, v12, s[60:63], s90 offen offset:{256*n}')
        a(f'''
        s_mul_i32 s90, s15, {ACTS}
        s_add_u32 s90, s90, {L_ACT}
        v_add_u32 v12, s90, v12
        s_mov_b32 s85, {LOG2E | 0x80000000}
        s_waitcnt vmcnt(5)
        ''')
        self.stamp(9)
        for i in range(5): self.unpack(52 + 2 * i, 40 + i)
        for i in range(10): a(f'v_mul_f32 v{64+i}, s85, v{52+i}')
        for i in range(10): a(f'v_exp_f32 v{64+i}, v{64+i}')
        for i in range(10): a(f'v_add_f32 v{64+i}, 1.0, v{64+i}')
        for i in range(10): a(f'v_rcp_f32 v{64+i}, v{64+i}')
        for i in range(10): a(f'v_mul_f32 v{52+i}, v{52+i}, v{64+i}')
        for i in range(5): a(f'v_cvt_pk_bf16_f32 v{40+i}, v{52+2*i}, v{53+2*i}')
        for i in range(5): a(f'ds_write_b32 v12, v{40+i} offset:{256*i}')
        a('s_waitcnt vmcnt(0)')
        self.ln_stats(46, 52, 64, 90, 92)
        a(f'''
        v_mov_b32 v28, s90
        v_mov_b32 v29, s92
        s_lshl_b32 s85, s15, 3
        v_add_u32 v30, s85, v13
        ds_write_b64 v30, v[28:29] offset:{L_STAT}
        ''')
        self.signal(C_ACT)
        a('L_hold:')
        if self.hold: self.lds_wait(C_GO, 4, sleep=2)
        a('L_nohold:')
        q = []
        def wait_for(name):
            i = len(q) - 1 - q[::-1].index(name)
            n = len(q) - 1 - i
            a(f's_waitcnt vmcnt({min(n, 63)})')
        def ld(t, slot, srd, nm):
            a(f's_add_u32 s92, s91, {t*1024}\ns_and_b32 s92, s92, 0x7fff')
            a(f'buffer_load_dwordx4 v[{KV(slot)}:{KV(slot)+3}], v1, {srd}, s92 offen {self.nt(nm[0].lower())}')
            q.append(nm)
        qloads = ['buffer_load_dwordx4 v[4:7], v12, s[44:47], s93 offen sc1', 'buffer_load_dwordx4 v[16:19], v12, s[44:47], s93 offen offset:16 sc1']
        for t in range(32):
            wk = WK if t >= self.wk_sw else self.WK0
            if t >= wk:
                if self.WKL > wk and t >= self.wkl_sw:
                    L = a.label('L_kw')
                    a(f's_waitcnt vmcnt({self.WKL-1})\ns_cbranch_vccnz {L}\ns_waitcnt vmcnt({wk-1})\n{L}:')
                else: a(f's_waitcnt vmcnt({wk-1})')
            if t == self.WK0: self.stamp(8)
            if t == self.pfl_t: self.signal(C_PROGW)
            ld(t, t, 's[48:51]', f'K{t}')
            if t == self.WK0 - 1:
                a(f'''
                v_mov_b32 v3, 0
                buffer_load_dword v35, v3, s[44:47], 0 offen sc1
                v_and_b32 v3, 15, v2
                v_lshlrev_b32 v12, 5, v3             ; Q voffset
                s_lshl_b32 s93, s2, 9
                s_add_u32 s93, s93, {WS_Q}
                v_mov_b32 v16, 0xffff
                v_mov_b32 v17, s84
                ''')
                q.append('E')
                for r in range(4):
                    a(f'''
                    v_cmp_eq_u32 vcc, {2*r}, v3
                    v_cndmask_b32 v{8+r}, 0, v16, vcc
                    v_cmp_eq_u32 vcc, {2*r+1}, v3
                    v_cndmask_b32 v{8+r}, v{8+r}, v17, vcc
                    ''')
                a(f'''
                s_mov_b32 s96, 0xcccccccc
                s_mov_b32 s97, 0xcccccccc
                s_mov_b32 s98, 0xaaaaaaaa
                s_mov_b32 s99, 0xaaaaaaaa
                s_mul_i32 s85, s14, 163840
                s_add_u32 s56, s24, s85
                s_addc_u32 s57, s25, 0
                s_mov_b32 s58, 163840
                s_mov_b32 s59, 0x20000
                v_lshrrev_b32 v34, 4, v2
                v_mul_u32_u24 v34, 5120, v34
                v_lshl_add_u32 v34, v3, 4, v34
                s_mul_i32 s85, s15, 20480
                v_add_u32 v34, s85, v34
                s_lshr_b32 s85, {self.lagmask}, s7
                s_bitcmp1_b32 s85, 0
                s_cselect_b64 vcc, -1, 0
                ''')
            if t == 12:
                self.tag_from(35)
            if t == self.qpos:
                for l in qloads: a(l)
                q.append('Q0'); q.append('Q1')
        self.stamp(1)
        wait_for('Q1')
        a(f'''
        s_mov_b32 s89, {SPIN_LIMIT}
        L_q_chk:
        v_xor_b32 v20, s94, v5
        v_xor_b32 v21, s94, v7
        v_xor_b32 v22, s94, v17
        v_xor_b32 v23, s94, v19
        v_or_b32 v20, v20, v21
        v_or3_b32 v20, v20, v22, v23
        v_cmp_ne_u32 vcc, 0, v20
        s_cbranch_vccz L_q_ok
        s_sleep 4
        {qloads[0]}
        {qloads[1]}
        s_waitcnt vmcnt(0)
        s_sub_u32 s89, s89, 1
        s_cbranch_scc0 L_q_chk
        L_q_ok:
        v_mov_b32 v5, v6
        v_mov_b32 v6, v16
        v_mov_b32 v7, v18
        ''')
        self.signal(C_QOK)
        self.stamp(2)
        D = 20
        st = dict(V=0, W=0)
        def ldwo(n):
            tp, c = n // 5, n % 5
            so = ['0', 's60', 's61', 's62'][tp]
            a(f'buffer_load_dwordx4 v[{KV(NV+n)}:{KV(NV+n)+3}], v34, s[56:59], {so} offen offset:{256*c} {self.nt("o")}')
            q.append(f'W{n}')
        def pre(g, free):
            for ch in self.pre[g]:
                if ch == 'V':
                    assert st['V'] < NV and st['V'] <= free
                    ld(st['V'], st['V'], 's[52:55]', f"V{st['V']}"); st['V'] += 1
                else:
                    assert NV + st['W'] <= free
                    ldwo(st['W']); st['W'] += 1
        a('s_movk_i32 s60, 1280\ns_movk_i32 s61, 2560\ns_movk_i32 s62, 3840')
        for g in range(8):
            wait_for(f'K{4*g+3}')
            for i in range(4):
                for k in range(4):
                    t = 4 * g + k
                    a(f'v_dot2_f32_bf16 v{D+k}, v{KV(t)+i}, v{4+i}, {"0" if i == 0 else "v%d" % (D+k)}')
            pre(g, 4 * g + 3)
            a(f'v_add_f32_dpp v24, v{D}, v{D} row_ror:8 row_mask:0xf bank_mask:0x3')
            a(f'v_add_f32_dpp v25, v{D+2}, v{D+2} row_ror:8 row_mask:0xf bank_mask:0x3')
            a(f'v_add_f32_dpp v24, v{D+1}, v{D+1} row_ror:8 row_mask:0xf bank_mask:0xc')
            a(f'v_add_f32_dpp v25, v{D+3}, v{D+3} row_ror:8 row_mask:0xf bank_mask:0xc')
            r2 = 26 + (g & 1)
            a(f'v_add_f32_dpp v{r2}, v24, v24 row_shl:4 row_mask:0xf bank_mask:0x5')
            a(f'v_add_f32_dpp v{r2}, v25, v25 row_shr:4 row_mask:0xf bank_mask:0xa')
            if g & 1:
                r3 = 28 + ((g >> 1) & 1)
                a(f'v_add_f32_dpp v30, v26, v26 quad_perm:[2,3,0,1] row_mask:0xf bank_mask:0xf')
                a(f'v_add_f32_dpp v31, v27, v27 quad_perm:[2,3,0,1] row_mask:0xf bank_mask:0xf')
                a(f'v_cndmask_b32 v{r3}, v30, v31, s[96:97]')
            if (g & 3) == 3:
                a(f'v_add_f32_dpp v30, v28, v28 quad_perm:[1,0,3,2] row_mask:0xf bank_mask:0xf')
                a(f'v_add_f32_dpp v31, v29, v29 quad_perm:[1,0,3,2] row_mask:0xf bank_mask:0xf')
                a(f'v_cndmask_b32 v{32 + (g >> 2)}, v30, v31, s[98:99]')
        a(f'''
        v_cvt_pk_bf16_f32 v20, v32, v33
        s_mov_b32 s86, 0x3db504f3
        ''')
        self.unpack(32, 20)
        a('v_pk_mul_f32 v[32:33], v[32:33], s[86:87] op_sel_hi:[1,0]\nv_cvt_pk_bf16_f32 v20, v32, v33')
        self.unpack(32, 20)
        a('v_max_f32 v20, v32, v33')
        self.wave_red(20, 'max')
        a(f'''
        v_readlane_b32 s86, v20, 63              ; m_w
        s_mov_b32 s90, {LOG2E}
        v_subrev_f32 v20, s86, v32
        v_subrev_f32 v21, s86, v33
        v_mul_f32 v20, s90, v20
        v_mul_f32 v21, s90, v21
        v_exp_f32 v20, v20
        v_exp_f32 v21, v21
        v_add_f32 v21, v20, v21
        ''')
        self.wave_red(21)
        a(f'''
        v_mov_b32 v20, s86
        s_lshl_b32 s85, s15, 3
        v_add_u32 v22, s85, v13
        s_mov_b32 exec_lo, 0
        s_mov_b32 exec_hi, 0x80000000
        ds_write_b64 v22, v[20:21] offset:{L_SM}
        s_mov_b64 exec, -1
        ''')
        self.stamp(3)
        self.signal(C_SM)
        pre(8, 31)
        self.lds_wait(C_SM, 8)
        self.stamp(4)
        a(f'''
        v_and_b32 v22, 7, v2
        v_lshl_add_u32 v22, v22, 3, v13
        ds_read_b64 v[20:21], v22 offset:{L_SM}
        s_waitcnt lgkmcnt(0)
        v_max_f32_dpp v22, v20, v20 row_ror:4 row_mask:0xf bank_mask:0xf
        v_max_f32_dpp v22, v22, v22 row_ror:2 row_mask:0xf bank_mask:0xf
        v_max_f32_dpp v22, v22, v22 row_ror:1 row_mask:0xf bank_mask:0xf
        v_sub_f32 v20, v20, v22
        v_mul_f32 v20, s90, v20
        v_exp_f32 v20, v20
        v_sub_f32 v32, v32, v22
        v_sub_f32 v33, v33, v22
        v_mul_f32 v21, v21, v20
        v_mul_f32 v32, s90, v32
        v_mul_f32 v33, s90, v33
        v_add_f32_dpp v21, v21, v21 row_ror:4 row_mask:0xf bank_mask:0xf
        v_exp_f32 v32, v32
        v_exp_f32 v33, v33
        v_add_f32_dpp v21, v21, v21 row_ror:2 row_mask:0xf bank_mask:0xf
        v_add_f32_dpp v21, v21, v21 row_ror:1 row_mask:0xf bank_mask:0xf
        v_rcp_f32 v21, v21
        v_mul_f32 v32, v32, v21
        v_mul_f32 v33, v33, v21
        v_cvt_pk_bf16_f32 v32, v32, v32
        v_cvt_pk_bf16_f32 v33, v33, v33
        ''')
        issued = st['V']; nwo = st['W']
        for t in range(32):
            A = 20 + 4 * (t & 1)
            for r in range(4):
                a(f'v_and_b32_dpp v{A+r}, v{32 + (t >> 4)}, v{8+r} row_newbcast:{bitrev4(t & 15)} row_mask:0xf bank_mask:0xf')
            wait_for(f'V{t}')
            a(f'v_mfma_f32_16x16x32_bf16 v[16:19], v[{A}:{A+3}], v[{KV(t % NV)}:{KV(t % NV)+3}], {"0" if t == 0 else "v[16:19]"}')
            while t + (WV if t < self.wv_sw else self.WV2) >= issued and issued < 32:
                ld(issued, issued % NV, 's[52:55]', f'V{issued}'); issued += 1
            if t >= self.wo_start:
                for _ in range(self.wo_per):
                    if nwo < 20: ldwo(nwo); nwo += 1
            if t == self.prog_t: self.signal(C_PROG)
            if t + 32 == self.pfl_t: self.signal(C_PROGW)
            if t == self.red_direct: self.signal(C_K2)
            if t == 28:
                a(f'''
                v_lshlrev_b32 v7, 4, v2
                v_and_b32 v3, 15, v2
                v_lshrrev_b32 v4, 4, v2
                v_lshlrev_b32 v5, 5, v3
                v_lshl_add_u32 v5, v4, 4, v5          ; (8j+4s')*4
                s_lshl_b32 s85, s15, 9
                s_add_u32 s85, s85, {L_OP}
                v_add_u32 v6, s85, v5
                s_mul_i32 s85, s15, 2560
                s_add_u32 s85, s85, {L_WP}
                v_add_u32 v5, s85, v5
                s_lshl_b32 s85, s15, 6
                s_add_u32 s85, s85, {L_OP}
                v_lshl_add_u32 v4, v4, 4, s85
                v_and_b32 v35, 31, v2
                v_lshlrev_b32 v35, 4, v35
                v_lshrrev_b32 v36, 5, v2
                v_mul_u32_u24 v36, 10240, v36
                s_lshl_b32 s85, s15, 9
                s_add_u32 s86, s85, {L_WP}
                v_add3_u32 v35, v35, v36, s86
                s_mul_i32 s87, s2, 2560
                s_add_u32 s87, s87, s85
                s_add_u32 s87, s87, {WS_P}
                ''')
        assert nwo == 20
        a(f'''
        s_mov_b32 exec_hi, 0
        ds_write_b128 v6, v[16:19]
        s_mov_b64 exec, -1
        ''')
        self.stamp(5)
        self.signal(C_PV)
        self.lds_wait(C_PV, 8)
        for w in range(8):
            a(f'ds_read_b128 v[{40+4*w}:{43+4*w}], v4 offset:{512*w}')
        a('s_waitcnt lgkmcnt(0)')
        self.sum_partials(40, [40 + 4 * i for i in range(8)])
        for r in range(4): a(f'v_cvt_pk_bf16_f32 v{40+r}, v{40+r}, v{40+r}')
        for tp in range(4):
            for r in range(4): a(f'v_and_b32 v{44+4*tp+r}, v{40+tp}, v{8+r}')
        a('s_waitcnt vmcnt(0)')
        self.stamp(6)
        for tp in range(4):
            for c in range(5):
                d = 60 + 4 * c; b = KV(NV + 5 * tp + c)
                a(f'v_mfma_f32_16x16x32_bf16 v[{d}:{d+3}], v[{44+4*tp}:{47+4*tp}], v[{b}:{b+3}], {"0" if tp == 0 else "v[%d:%d]" % (d, d+3)}')
        a('s_mov_b32 exec_hi, 0')
        for c in range(5): a(f'ds_write_b128 v5, v[{60+4*c}:{63+4*c}] offset:{512*c}')
        a('s_mov_b64 exec, -1')
        self.signal(C_WO)
        a('s_cmp_ge_u32 s15, 5\ns_cbranch_scc1 L_stream_end')
        self.lds_wait(C_WO, 8)
        self.stamp(7)
        for w in range(4): a(f'ds_read_b128 v[{40+4*w}:{43+4*w}], v35 offset:{2560*w}')
        a('s_waitcnt lgkmcnt(0)')
        self.sum_partials(40, [40, 44, 48, 52])
        for i in range(4): a(f'v_mov_b32 v{44+i}, v{40+i}')
        for i in range(4): a(f'v_permlane32_swap_b32 v{40+i}, v{44+i}')
        a('v_pk_add_f32 v[40:41], v[40:41], v[44:45]\nv_pk_add_f32 v[42:43], v[42:43], v[46:47]')
        self.sanitize(range(40, 44))
        a('''
        s_mov_b32 exec_hi, 0
        buffer_store_dwordx4 v[40:43], v7, s[44:47], s87 offen sc1
        s_mov_b64 exec, -1
        ''')
        self.signal(C_DONE)
        a('L_stream_end:')
        self.stamp(10)
        self.stamp_flush()
        self.diag_end()
        a('L_end:\ns_endpgm\nL_code_end:')

    def build(self):
        self.prologue(); self.control(); self.stream()
        kn = NAME + '_kernel'
        body = '\n'.join(fix_hazards(self.a.l)) + '\n'
        hdr = open('cdna_kernels/' + NAME + '.s.ref').read().split('; Override launch')[0]
        return hdr + header([f'; @launch grid=(256,1,1) block=(768,1,1) lds={LDS_SIZE}']) + kernel_start(kn) + body + '.section .rodata,"a"\n' + descriptor(kn, vgpr=168, sgpr=102, accum=168)

if __name__ == '__main__':
    import argparse
    from collections import Counter
    rs = [role_of(w) for w in range(256)]
    for r, n in ((R_G1, 20), (R_DOWN, 40), (R_FFN, 54), (R_Q, 64), (R_MOD, 40), (R_RED, 8)):
        assert sorted(i for rr, i in rs if rr == r) == list(range(n)), r
    ap = argparse.ArgumentParser()
    ap.add_argument('-o', default='k.s'); ap.add_argument('--stamp', action='store_true')
    for p, d in (('WK', 3), ('WV', 3), ('rot', 3), ('rotw', 1), ('qpos', 25), ('prog_t', 22), ('progw_t', -1), ('WD', 20), ('wo_start', 0), ('wo_per', 1), ('sdelay', 0), ('WK0', 2), ('wk_sw', 16), ('k2_t', -1), ('WV2', 6), ('wv_sw', 16), ('hold', 1), ('pf', 1), ('WKL', 4), ('wkl_sw', 6), ('lagmask', 0x32), ('pfb', 1), ('cpf', 1), ('diag_until', 0), ('diag_xcc', 0), ('diag_role', -1), ('diag_cls', -1), ('diag_idx', -1), ('nEf', 0), ('nEd', 0), ('late', 1), ('pfl_t', 8), ('psleep', 0), ('hdelay', 0), ('red_direct', 27), ('WDM', 20), ('k2_n', 8)):
        ap.add_argument('--' + p, type=int, default=d)
    ap.add_argument('--pre', default='V,V,V,V,V,V,V,V,W')
    ap.add_argument('--ntp', default='kv')
    args = ap.parse_args()
    kw = dict(vars(args)); o = kw.pop('o')
    open(o, 'w').write(G(**kw).build())
```

```python
import sys
from asmlib import *
import gen as G1mod
from gen import bitrev4, LOG2E, SPIN_LIMIT

WS_E = 0
WS_H1 = 0x1000
WS_Q = 0x8000
SB2 = 0x28000
WS_H2 = SB2; WS_X1 = SB2 + 0x3000; WS_HID = SB2 + 0x6000; WS_MODO = SB2 + 0xD000
WS_P = 0x50000
WS_STAMP = 0x100000
WS_SIZE = 0x200000
LW = 0; L_OP = 0x14000; L_WP = 0x15000; LM = 0x1A000; LDS_SIZE = 0x1B000
C_A, C_SM, C_PV, C_WO, C_QOK, C_PROG, C_PROGW, C_GO, C_DONE, C_K2, C_ACT, C_PF, C_PF2 = [4 * i for i in range(13)]
L_STAT = 0x40; L_SM = 0x100; L_RANK = 0x3c
L_ACT = L_WP; ACTS = 1344
R_G1, R_DOWN, R_FFN, R_Q, R_MOD, R_RED = 1, 2, 3, 4, 5, 6

def role_of(wg):
    x = wg & 7; u = wg >> 3
    if u < 2: return R_G1, 2 * x + u
    if u < 6:
        k = u - 2
        e = EXTRA.get((x, k >> 1))
        if e is None: return 0, 0
        return e[0], e[0] * 16 + 2 * e[1] + (k & 1)
    if u < 14: return R_Q, (x + 8 * ((u - 6) >> 1)) * 2 + ((u - 6) & 1)
    if u < 19: return R_MOD, 5 * x + u - 14
    if u < 25: return R_FFN, 6 * x + u - 19
    if u < 29: return R_DOWN, 4 * x + u - 25
    if u == 29: return R_RED, x
    return 0, 0
EXTRA = {(0, 0): (R_DOWN, 0), (0, 1): (R_DOWN, 1), (2, 0): (R_DOWN, 2), (2, 1): (R_DOWN, 3),
         (4, 0): (R_FFN, 0), (4, 1): (R_FFN, 1), (6, 0): (R_G1, 0), (6, 1): (R_FFN, 2), (1, 0): (R_G1, 1)}

class G(G1mod.G):
    def __init__(self, stamp=False, WK=3, WV=3, rot=3, rotw=1, qpos=25, prog_t=22, progw_t=-1, WD=4, wo_start=0, wo_per=1, sdelay=0, WK0=2, wk_sw=16, k2_t=6, WV2=6, wv_sw=16, hold=1, pf=1, WKL=6, wkl_sw=6, lagmask=0x72, diag_xcc=0, diag_role=-1, diag_until=0, diag_cls=-1, diag_idx=-1, ntp='kv', cpf=1, pfb=1, nEf=8, nEd=6, late=1, pfl_t=8, light=0, psleep=0, h1probe=1, lagv=0, rk=-1, rth1=128, rth2=208, WVa=2, WVb=4, WVc=8, hdelay=0, trig=0, trsh=0, red_direct=27, WDM=2, k2_n=8, pre='V,V,VV,VW,VWW,VWW,VVW,VWW,VVWW'):
        self.sdelay = sdelay; self.WK0 = WK0; self.wk_sw = wk_sw; self.k2_t = k2_t; self.WV2 = WV2; self.wv_sw = wv_sw; self.hold = hold; self.pf = pf; self.late = late; self.pfl_t = pfl_t; self.psleep = psleep; self.light = light; self.light_set = (0, 11, 5) if light == 1 else (0, 11); self.hdelay = hdelay; self.rk = rk; self.lagv = lagv; self.h1probe = h1probe; self.rth1 = rth1; self.rth2 = rth2; self.WVa = WVa; self.WVb = WVb; self.WVc = WVc; self.trig = trig; self.trsh = trsh; self.red_direct = red_direct; self.pfb = pfb; self.cpf = cpf; self.ntp = ntp; self.cur_nt = 'nt'; self.diag_until = diag_until; self.diag_xcc = diag_xcc; self.diag_role = diag_role; self.diag_cls = diag_cls; self.diag_idx = diag_idx; self.cur_cls = -1; self.nEf = nEf; self.nEd = nEd; self.WKL = WKL; self.wkl_sw = wkl_sw; self.lagmask = lagmask; self.WDM = WDM; self.k2_n = k2_n; self.pre = pre.split(',')
        self.a = Asm(); self.stamp_on = stamp
        self.WK = WK; self.WV = WV; self.rot = rot; self.rotw = rotw; self.qpos = qpos; self.prog_t = prog_t
        self.progw_t = progw_t; self.WD = WD; self.wo_start = wo_start; self.wo_per = wo_per

    def stamp(self, i):
        if self.diag_until and i == self.diag_idx and (self.cur_cls == self.diag_cls or (self.cur_cls == 99 and self.diag_cls > 0)):
            if self.cur_cls == 99:
                L = self.a.label('L_ds')
                self.a(f's_cmp_lg_u32 s7, {self.diag_cls}\ns_cbranch_scc1 {L}\ns_memrealtime s[100:101]\ns_waitcnt lgkmcnt(0)\n{L}:')
            elif self.diag_role >= 0:
                L = self.a.label('L_ds')
                self.a(f's_cmp_lg_u32 s7, {self.diag_role}\ns_cbranch_scc1 {L}\ns_memrealtime s[100:101]\ns_waitcnt lgkmcnt(0)\n{L}:')
            else:
                self.a('s_memrealtime s[100:101]\ns_waitcnt lgkmcnt(0)')
        if self.light and i not in self.light_set: return
        super().stamp(i)

    def diag_end(self):
        if self.diag_until:
            L = self.a.label('L_diag')
            if self.diag_xcc:
                self.a('s_getreg_b32 s97, hwreg(HW_REG_XCC_ID)\ns_sub_u32 s97, s97, s2\ns_and_b32 s97, s97, 7')
                if self.diag_xcc == 2: self.a('s_sub_u32 s97, 7, s97')
                self.a('s_mul_i32 s97, s97, 400\ns_add_u32 s100, s100, s97')
            self.a(f'{L}:\ns_sleep 1\ns_memrealtime s[98:99]\ns_waitcnt lgkmcnt(0)\ns_sub_u32 s98, s98, s100\ns_cmp_lt_i32 s98, {self.diag_until*100}\ns_cbranch_scc1 {L}')

    def ln_stats1(self, U, T, s_m, s_rs):
        a = self.a
        a(f'v_readlane_b32 s86, v{U}, 0')
        for i in range(5):
            a(f'v_pk_add_f32 v[{T+4}:{T+5}], v[{U+2*i}:{U+2*i+1}], s[86:87] op_sel_hi:[1,0] neg_lo:[0,1] neg_hi:[0,1]')
            if i == 0:
                a(f'v_pk_mul_f32 v[{T+2}:{T+3}], v[{T+4}:{T+5}], v[{T+4}:{T+5}]')
                a(f'v_add_f32 v{T}, v{T+4}, v{T+5}')
            else:
                a(f'v_pk_fma_f32 v[{T+2}:{T+3}], v[{T+4}:{T+5}], v[{T+4}:{T+5}], v[{T+2}:{T+3}]')
                a(f'v_add_f32 v{T+1}, v{T+4}, v{T+5}\nv_add_f32 v{T}, v{T}, v{T+1}')
        a(f'v_add_f32 v{T+1}, v{T+2}, v{T+3}')
        for m in ('row_ror:8 row_mask:0xf', 'row_ror:4 row_mask:0xf', 'row_ror:2 row_mask:0xf', 'row_ror:1 row_mask:0xf', 'row_bcast:15 row_mask:0xa', 'row_bcast:31 row_mask:0xc'):
            for v in (T, T + 1): a(f'v_add_f32_dpp v{v}, v{v}, v{v} {m} bank_mask:0xf')
        a(f'''
        v_mul_f32 v{T}, 0x3acccccd, v{T}
        v_mul_f32 v{T+1}, 0x3acccccd, v{T+1}
        v_fma_f32 v{T+1}, -v{T}, v{T}, v{T+1}
        v_add_f32 v{T}, s86, v{T}
        v_max_f32 v{T+1}, 0, v{T+1}
        v_cvt_pk_bf16_f32 v{T}, v{T}, v{T+1}
        v_and_b32 v{T+1}, s84, v{T}
        v_lshlrev_b32 v{T}, 16, v{T}
        v_add_f32 v{T+1}, 0x3727c5ac, v{T+1}
        v_readlane_b32 s{s_m}, v{T}, 63
        ''')
        self.bf1(T + 1)
        a(f'v_sqrt_f32 v{T+1}, v{T+1}')
        self.bf1(T + 1)
        a(f'v_rcp_f32 v{T+1}, v{T+1}')
        a(f's_nop 0\nv_readlane_b32 s{s_rs}, v{T+1}, 63')

    def signal(self, cnt):
        self.a(f'''
        s_mov_b64 exec, 1
        v_mov_b32 v14, 1
        ds_add_u32 v13, v14 offset:{cnt}
        s_mov_b64 exec, -1
        ''')

    def arrive2(self, cnt, last, skip, reads):
        a = self.a
        a(f'''
        s_mov_b64 exec, 1
        v_mov_b32 v14, 1
        ds_add_rtn_u32 v14, v13, v14 offset:{cnt}
        s_mov_b64 exec, -1
        ''')
        for r in reads: a(r)
        a(f'''
        s_waitcnt lgkmcnt({min(len(reads), 15)})
        v_readfirstlane_b32 s88, v14
        s_cmp_lg_u32 s88, {last}
        s_cbranch_scc1 {skip}
        ''')

    def wait2(self, cnt, target, reads):
        a = self.a
        L = a.label('L_w2'); D = a.label('L_w2d')
        a(f's_mov_b32 s89, {SPIN_LIMIT * 16}\n{L}:\nds_read_b32 v14, v13 offset:{cnt}')
        for r in reads: a(r)
        a(f'''
        s_waitcnt lgkmcnt({len(reads)})
        v_readfirstlane_b32 s88, v14
        s_cmp_ge_u32 s88, {target}
        s_cbranch_scc1 {D}
        s_sub_u32 s89, s89, 1
        s_cbranch_scc0 {L}
        {D}:
        s_waitcnt lgkmcnt(0)
        ''')

    def tag_from(self, v):
        self.a(f'''
        s_mov_b32 s85, 1664525
        v_mul_lo_u32 v{v}, s85, v{v}
        v_add_u32 v{v}, 1013904223, v{v}
        v_readfirstlane_b32 s94, v{v}
        ''')

    def poll(self, name, loads, check, sleep, tagged=False, lanemask=False):
        a = self.a
        a(f's_mov_b32 s89, {SPIN_LIMIT}\nL_{name}_poll:')
        for l in loads: a(l)
        a('s_waitcnt vmcnt(0)')
        if tagged:
            for i in range(0, len(check), 2):
                a(f'v_xor_b32 v36, s94, v{check[i]}\nv_xor_b32 v37, s94, v{check[i+1]}')
                a('v_or_b32 v38, v36, v37' if i == 0 else 'v_or3_b32 v38, v38, v36, v37')
            a('v_cmp_ne_u32 vcc, 0, v38')
        else:
            c = list(check)
            if len(c) % 2 == 0:
                a(f'v_max_u32 v38, v{c[0]}, v{c[1]}'); c = c[2:]
            else:
                a(f'v_max3_u32 v38, v{c[0]}, v{c[1]}, v{c[2]}'); c = c[3:]
            for i in range(0, len(c), 2): a(f'v_max3_u32 v38, v38, v{c[i]}, v{c[i+1]}')
            a('v_cmp_eq_u32 vcc, -1, v38')
        a(f'''
        s_cbranch_vccz L_{name}_ok
        {"s_mov_b64 exec, vcc" if lanemask else ""}
        {"s_sleep %d" % sleep if sleep else ""}
        s_sub_u32 s89, s89, 1
        s_cbranch_scc0 L_{name}_poll
        L_{name}_ok:
        {"s_mov_b64 exec, -1" if lanemask else ""}
        ''')

    def prologue(self):
        a = self.a
        a(f'''
        s_cmp_ge_u32 s2, 256
        s_cbranch_scc1 L_end
        {'s_memrealtime s[100:101]' if self.diag_until else ''}
        {'s_memrealtime s[98:99]' if self.stamp_on else ''}
        s_getpc_b64 s[86:87]
        L_pc0:
        v_lshlrev_b32 v3, 7, v0
        v_min_u32 v3, L_code_end-L_pc0-4, v3
        {'global_load_dword v161, v3, s[86:87]' if self.cpf else ''}
        s_load_dwordx16 s[16:31], s[0:1], 0
        s_load_dwordx8 s[32:39], s[0:1], 64
        s_load_dwordx4 s[40:43], s[0:1], 96
        v_lshrrev_b32 v1, 6, v0
        v_and_b32 v2, 63, v0
        v_readfirstlane_b32 s3, v1
        v_mov_b32 v13, {LM}
        s_mov_b32 s84, 0xffff0000
        v_mov_b32 v15, 0
        v_lshl_add_u32 v14, v2, 2, v13
        ds_write_b32 v14, v15
        s_lshr_b32 s13, s2, 5            ; b
        s_and_b32 s14, s2, 31            ; h
        v_lshlrev_b32 v7, 4, v2          ; lane*16
        ''')
        self.decode()
        a('''
        s_waitcnt lgkmcnt(0)
        s_barrier
        ''')
        self.srd(44, 42, WS_SIZE)
        if self.stamp_on: a('v_writelane_b32 v15, s98, 13')
        self.stamp(0)
        a(f'''
        s_cmp_lt_u32 s3, 4
        s_cbranch_scc0 L_stream
        ''')

    def decode(self):
        a = self.a
        ext = 0
        for (x, kh), (r, idx) in EXTRA.items(): ext |= (r | idx << 2) << (4 * (2 * x + kh))
        a(f'''
        s_and_b32 s4, s2, 7              ; x
        s_lshr_b32 s5, s2, 3             ; u
        s_mov_b32 s7, 0
        s_mov_b32 s8, 0
        ''')
        for lo, hi, role, mul in ((0, 2, R_G1, 2), (14, 19, R_MOD, 5), (19, 25, R_FFN, 6), (25, 29, R_DOWN, 4), (29, 30, R_RED, 1)):
            a(f'''
            s_sub_u32 s9, s5, {lo}
            s_mul_i32 s10, s4, {mul}
            s_add_u32 s10, s10, s9
            s_cmp_lt_u32 s9, {hi-lo}
            s_cselect_b32 s7, {role}, s7
            s_cselect_b32 s8, s10, s8
            ''')
        a(f'''
        s_sub_u32 s9, s5, 6              ; Q: (x + 8*(k>>1))*2 + (k&1)
        s_lshr_b32 s10, s9, 1
        s_lshl_b32 s10, s10, 3
        s_add_u32 s10, s10, s4
        s_lshl_b32 s10, s10, 1
        s_and_b32 s11, s9, 1
        s_add_u32 s10, s10, s11
        s_cmp_lt_u32 s9, 8
        s_cselect_b32 s7, {R_Q}, s7
        s_cselect_b32 s8, s10, s8
        s_sub_u32 s9, s5, 2              ; extras
        s_lshr_b32 s10, s9, 1
        s_and_b32 s10, s10, 1
        s_lshl_b32 s11, s4, 1
        s_add_u32 s10, s10, s11
        s_lshl_b32 s10, s10, 2
        s_mov_b32 s86, {ext & 0xffffffff}
        s_mov_b32 s87, {ext >> 32}
        s_lshr_b64 s[86:87], s[86:87], s10
        s_and_b32 s10, s86, 3            ; role
        s_bfe_u32 s11, s86, 0x20002      ; idx
        s_lshl_b32 s11, s11, 1
        s_lshl_b32 s12, s10, 4
        s_add_u32 s11, s11, s12
        s_and_b32 s12, s9, 1
        s_add_u32 s11, s11, s12
        s_cmp_lt_u32 s9, 4
        s_cselect_b32 s7, s10, s7
        s_cselect_b32 s8, s11, s8
        s_sub_u32 s9, s5, 19
        s_cmp_lt_u32 s9, 10
        s_cselect_b32 s6, s9, 99
        s_sub_u32 s10, s5, 20
        s_cmp_ge_u32 s5, 30
        s_cselect_b32 s6, s10, s6
        s_sub_u32 s9, s5, 2
        s_add_u32 s10, s9, 12
        s_cmp_lt_u32 s9, 4
        s_cselect_b32 s6, s10, s6
        ''')

    def nt(self, c): return 'nt' if c in self.ntp else ''
    def pfld(self, v, srd, so): self.a(f'buffer_load_dword v160, v{v}, {srd}, {so} offen {self.cur_nt}')

    def prefetch(self):
        a = self.a
        self.cur_nt = self.nt('m')
        self.srd(64, 36, 640 * 7680)
        a(f'''
        s_mov_b32 s90, s6
        s_cmp_ge_u32 s90, 16
        s_cbranch_scc1 L_pf_done
        s_lshl_b32 s92, s4, 7
        s_cmp_lt_u32 s3, 2
        s_cbranch_scc1 L_pfA
        s_cmp_eq_u32 s4, 6
        s_cselect_b32 s92, 1024, 0
        s_cmp_eq_u32 s4, 1
        s_cselect_b32 s92, 1152, s92
        s_cmp_eq_u32 s92, 0
        s_cbranch_scc1 L_pf_done
        L_pfA:
        s_lshl_b32 s90, s90, 1
        s_and_b32 s91, s3, 1
        s_add_u32 s90, s90, s91
        s_mul_i32 s91, s90, {20*7680}
        s_add_u32 s92, s92, s91
        v_lshrrev_b32 v16, 1, v2
        v_min_u32 v16, 19, v16
        v_mul_u32_u24 v16, 7680, v16
        v_and_b32 v17, 1, v2
        v_mul_u32_u24 v17, 1280, v17
        v_add_u32 v16, v16, v17
        ''')
        self.pfld(16, 's[64:67]', 's92')
        a('L_pf_done:')

    def prefetch_b(self, sfx):
        a = self.a
        a(f'''
        s_cmp_lt_u32 s3, 2
        s_cbranch_scc1 L_pb_done{sfx}
        s_mul_i32 s90, s5, 20
        v_lshrrev_b32 v16, 3, v2
        s_cmp_eq_u32 s3, 3
        s_cbranch_scc1 L_pb3{sfx}
        ''')
        self.cur_nt = self.nt('q')
        self.srd(64, 22, 640 * 8192)
        a(f'''
        v_bfe_u32 v17, v2, 1, 2
        v_lshlrev_b32 v17, 11, v17
        v_and_b32 v18, 1, v2
        v_lshl_add_u32 v17, v18, 7, v17
        v_lshl_add_u32 v18, v16, 13, v17
        v_and_b32 v16, 3, v16
        v_lshl_add_u32 v19, v16, 13, v17
        s_lshl_b32 s91, s90, 13
        s_lshl_b32 s92, s4, 8
        s_add_u32 s92, s92, s91
        ''')
        self.pfld(18, 's[64:67]', 's92'); a(f's_add_u32 s92, s92, {8*8192}')
        self.pfld(18, 's[64:67]', 's92'); a(f's_add_u32 s92, s92, {8*8192}')
        self.pfld(19, 's[64:67]', 's92')
        if sfx == '':
            a('s_waitcnt vmcnt(0)')
            self.signal(C_PF)
        a(f's_branch L_pb_done{sfx}\nL_pb3{sfx}:')
        self.cur_nt = self.nt('m')
        self.srd(64, 36, 640 * 7680)
        a(f'''
        v_and_b32 v17, 7, v2
        v_min_u32 v17, 4, v17
        v_lshlrev_b32 v17, 7, v17
        v_mul_u32_u24 v18, 7680, v16
        v_add_u32 v18, v18, v17
        v_and_b32 v16, 3, v16
        v_mul_u32_u24 v19, 7680, v16
        v_add_u32 v19, v19, v17
        s_mul_i32 s91, s90, 7680
        s_mul_i32 s92, s4, 640
        s_add_u32 s92, s92, 2560
        s_add_u32 s92, s92, s91
        ''')
        if sfx == '': self.lds_wait(C_PF, 1, sleep=2)
        self.pfld(18, 's[64:67]', 's92'); a(f's_add_u32 s92, s92, {8*7680}')
        self.pfld(18, 's[64:67]', 's92'); a(f's_add_u32 s92, s92, {8*7680}')
        self.pfld(19, 's[64:67]', 's92')
        if sfx == '':
            a(f's_cmp_lg_u32 s7, {R_MOD}\ns_cbranch_scc1 L_pb_done{sfx}\ns_waitcnt vmcnt(0)')
            self.signal(C_PF2)
        a(f'L_pb_done{sfx}:')

    def prefetch_late(self, sfx):
        a = self.a
        self.cur_nt = self.nt('f')
        a(f's_cmp_ge_u32 s6, 16\ns_cbranch_scc1 L_pl_done{sfx}')
        a(f's_cmp_lg_u32 s3, 0\ns_cbranch_scc1 L_pl1{sfx}')
        self.srd(68, 32, 1728 * 1280)
        a(f'''
        v_min_u32 v16, 53, v2
        v_mul_u32_u24 v16, 1280, v16
        s_mul_i32 s91, s6, {108*1280}
        s_lshl_b32 s92, s4, 7
        s_add_u32 s92, s92, s91
        s_lshl_b32 s93, s4, 6
        s_add_u32 s93, s93, 1024
        s_add_u32 s93, s93, s91
        ''')
        self.lds_wait(C_PROGW, 1, sleep=4)
        self.pfld(16, 's[68:71]', 's92')
        a(f's_add_u32 s92, s92, {54*1280}\ns_waitcnt vmcnt(0)')
        self.pfld(16, 's[68:71]', 's92')
        a(f'''
        s_and_b32 s92, s4, 5
        s_cmp_lg_u32 s92, 0
        s_cbranch_scc1 L_pl_done{sfx}
        s_waitcnt vmcnt(0)
        ''')
        self.pfld(16, 's[68:71]', 's93')
        a(f's_add_u32 s93, s93, {54*1280}\ns_waitcnt vmcnt(0)')
        self.pfld(16, 's[68:71]', 's93')
        a(f's_branch L_pl_done{sfx}\nL_pl1{sfx}:')
        self.srd(64, 28, 640 * 3456); self.srd(68, 30, 640 * 3456)
        a(f'''
        s_mul_i32 s92, s4, 3
        s_mov_b32 s91, s92
        s_mov_b32 s93, s92
        s_cmp_eq_u32 s4, 4
        s_cselect_b32 s91, 24, s91
        s_cselect_b32 s93, 25, s93
        s_cmp_eq_u32 s4, 6
        s_cselect_b32 s91, 26, s91
        v_and_b32 v17, 7, v2
        v_min_u32 v18, 2, v17
        v_add_u32 v18, s92, v18
        v_mov_b32 v19, s91
        v_cmp_eq_u32 vcc, 3, v17
        v_cndmask_b32 v18, v18, v19, vcc
        v_mov_b32 v19, s93
        v_cmp_eq_u32 vcc, 4, v17
        v_cndmask_b32 v18, v18, v19, vcc
        v_lshlrev_b32 v17, 7, v18
        v_lshrrev_b32 v16, 3, v2
        v_mul_u32_u24 v18, 3456, v16
        v_add_u32 v18, v18, v17
        s_mul_i32 s92, s6, 5
        s_add_u32 s92, s92, s3
        s_sub_u32 s92, s92, 1
        s_mul_i32 s92, s92, {8*3456}
        ''')
        self.lds_wait(C_PROGW, 1, sleep=4)
        self.pfld(18, 's[64:67]', 's92'); self.pfld(18, 's[68:71]', 's92')
        a(f's_cmp_eq_u32 s3, 3\ns_cbranch_scc1 L_pl_done{sfx}\ns_add_u32 s92, s92, {24*3456}\ns_waitcnt vmcnt(0)')
        self.pfld(18, 's[64:67]', 's92'); self.pfld(18, 's[68:71]', 's92')
        a(f'L_pl_done{sfx}:')

    def dma640_setup(self):
        a = self.a
        a(f'''
        v_lshrrev_b32 v16, 3, v2
        s_mul_i32 s85, s3, 160
        v_add_u32 v16, s85, v16
        v_mul_lo_u32 v16, s52, v16
        v_and_b32 v17, 3, v2
        v_lshl_add_u32 v16, v17, 4, v16
        v_mov_b32 v17, 0
        v_mov_b32 v18, s48
        v_mov_b32 v19, s49
        v_mov_b32 v20, s50
        v_mov_b32 v21, s51
        v_and_b32 v22, 4, v2
        v_cmp_ne_u32 vcc, 0, v22
        v_cndmask_b32 v18, v18, v20, vcc
        v_cndmask_b32 v19, v19, v21, vcc
        v_lshl_add_u64 v[4:5], v[16:17], 0, v[18:19]
        s_lshl_b32 s54, s52, 3
        s_mov_b32 s55, 0
        ''')
    def dma640_issue(self, lo, hi, WD=99):
        a = self.a
        for n in range(lo, hi):
            a(f's_add_u32 m0, s87, {LW + 1024*n}')
            if n >= WD: a(f's_waitcnt vmcnt({WD-1})')
            a(f'global_load_lds_dwordx4 v[4:5], off {self.cur_nt}')
            if n < 19: a('v_lshl_add_u64 v[4:5], v[4:5], 0, s[54:55]')
    def dma640(self, WD):
        self.dma640_setup(); self.dma640_issue(0, 20, WD)

    def wfrags640(self, younger=None):
        a = self.a
        for n in range(5):
            if younger is not None: a(f's_waitcnt vmcnt({younger + 4 * (4 - n)})')
            for T in range(4):
                b = 40 + 16 * n + 4 * T
                a(f'ds_read_b64_tr_b16 v[{b}:{b+1}], v9 offset:{LW + 4096*n + 32*T}')
                a(f'ds_read_b64_tr_b16 v[{b+2}:{b+3}], v9 offset:{LW + 4096*n + 32*T + 512}')
            a('s_waitcnt lgkmcnt(0)')

    def mfma640(self, skip, extra=()):
        a = self.a
        for T in range(4):
            d = 16 + 4 * T
            for n in range(5):
                b = 40 + 16 * n + 4 * T
                a(f'v_mfma_f32_16x16x32_bf16 v[{d}:{d+3}], v[{b}:{b+3}], v[{120+4*n}:{123+4*n}], {"0" if n == 0 else "v[%d:%d]" % (d, d+3)}')
            if T >= 2: a(f'ds_write_b128 v10, v[{16+4*(T-2)}:{19+4*(T-2)}] offset:{LW + 1024*(T-2)}')
        for T in (2, 3):
            a(f'ds_write_b128 v10, v[{16+4*T}:{19+4*T}] offset:{LW + 1024*T}')
        reads = []
        for w in range(4):
            reads.append(f'ds_read_b128 v[{40+4*w}:{43+4*w}], v11 offset:{LW + 20480*w}')
            reads.append(f'ds_read_b128 v[{56+4*w}:{59+4*w}], v11 offset:{LW + 20480*w + 2048}')
        self.arrive2(C_A, 3, skip, reads + list(extra))

    def red640(self):
        self.a('s_waitcnt lgkmcnt(0)')
        self.sum_partials(40, [40, 44, 48, 52]); self.sum_partials(56, [56, 60, 64, 68])

    def silu(self, ns=range(5)):
        a = self.a
        a(f's_mov_b32 s85, {LOG2E | 0x80000000}')
        for n in ns:
            b = 120 + 4 * n
            for i in range(4): self.unpack(16 + 2 * i, b + i)
            for i in range(8): a(f'v_mul_f32 v{24+i}, s85, v{16+i}')
            for i in range(8): a(f'v_exp_f32 v{24+i}, v{24+i}')
            for i in range(8): a(f'v_add_f32 v{24+i}, 1.0, v{24+i}')
            for i in range(8): a(f'v_rcp_f32 v{24+i}, v{24+i}')
            for i in range(8): a(f'v_mul_f32 v{16+i}, v{16+i}, v{24+i}')
            for i in range(4): a(f'v_cvt_pk_bf16_f32 v{b+i}, v{16+2*i}, v{17+2*i}')

    def add64(self, d, base, off):
        self.a(f's_add_u32 s{d}, s{base}, {off}\ns_addc_u32 s{d+1}, s{base+1}, 0')

    def control(self):
        a = self.a
        self.cur_cls = 99
        a('s_setprio 3')
        if self.pf: self.prefetch()
        if self.pfb:
            a(f's_cmp_eq_u32 s7, {R_G1}\ns_cbranch_scc1 L_pb_done')
            self.prefetch_b('')
        a(f'''
        v_mov_b32 v3, 0
        buffer_load_dword v167, v3, s[44:47], 0 offen sc1
        s_mul_i32 s87, s3, 20480
        v_lshrrev_b32 v16, 4, v2         ; s
        v_bfe_u32 v17, v2, 2, 2          ; r4
        v_and_b32 v18, 3, v2             ; c
        v_lshl_add_u32 v19, v16, 3, v17  ; 8s+r4
        v_lshlrev_b32 v9, 7, v19
        v_lshl_add_u32 v9, v18, 3, v9
        v_add_u32 v9, s87, v9
        v_add_u32 v10, s87, v7
        v_and_b32 v17, 7, v2             ; b
        v_bfe_u32 v18, v2, 3, 1          ; t
        v_lshlrev_b32 v11, 8, v16
        v_lshl_add_u32 v11, v17, 4, v11
        v_lshl_add_u32 v11, v18, 10, v11
        v_mul_u32_u24 v19, 1280, v17
        v_lshl_add_u32 v6, v16, 4, v19
        v_lshlrev_b32 v8, 5, v18
        v_lshl_add_u32 v8, v16, 3, v8    ; (16t+4s')*2 bytes
        v_lshlrev_b32 v12, 2, v2         ; lane*4
        s_cmp_eq_u32 s7, {R_Q}
        s_cbranch_scc1 L_role_q
        s_cmp_eq_u32 s7, 0
        s_cbranch_scc1 L_share
        s_cmp_eq_u32 s7, {R_FFN}
        s_cbranch_scc1 L_share
        s_cmp_eq_u32 s7, {R_DOWN}
        s_cbranch_scc1 L_share
        s_cmp_eq_u32 s7, {R_RED}
        s_cbranch_scc1 L_share
        ''')
        self.cur_nt = self.nt('m')
        a(f'''
        s_movk_i32 s52, 7680
        s_cmp_eq_u32 s7, {R_G1}
        s_cbranch_scc1 L_role_g1
        ''')
        self.srd(56, 34, 10240)
        a('s_mul_i32 s85, s3, 320')
        for n in range(5):
            a(f'buffer_load_dwordx4 v[{120+4*n}:{123+4*n}], v6, s[56:59], s85 offen offset:{64*n}')
        a(f'''
        s_lshl_b32 s9, s8, 7
        s_add_u32 s9, s9, 2560
        s_add_u32 s48, s36, s9
        s_addc_u32 s49, s37, 0
        s_add_u32 s50, s48, 64
        s_addc_u32 s51, s49, 0
        s_waitcnt vmcnt(0)
        ''')
        self.silu()
        if self.pfb: self.lds_wait(C_PF2, 1, sleep=2)
        self.dma640(self.WDM)
        a('s_waitcnt vmcnt(0)')
        self.stamp(2)
        self.wfrags640()
        self.mfma640('L_ctrl_end')
        a(f'''
        v_and_b32 v22, 7, v2
        v_mul_u32_u24 v22, 5120, v22
        v_add_u32 v22, v22, v8
        s_lshl_b32 s90, s8, 7
        s_add_u32 s90, s90, {WS_MODO}
        ''')
        self.red640()
        self.pack4(24, 40); self.pack4(26, 56)
        self.sanitize([24, 25, 26, 27])
        self.lds_wait(C_QOK, 1, sleep=8)
        a(f'''
        buffer_store_dwordx2 v[24:25], v22, s[44:47], s90 offen sc1
        buffer_store_dwordx2 v[26:27], v22, s[44:47], s90 offen offset:64 sc1
        s_branch L_ctrl_end
        L_role_g1:
        s_lshl_b32 s9, s8, 6
        s_add_u32 s48, s36, s9
        s_addc_u32 s49, s37, 0
        s_add_u32 s50, s48, 1280
        s_addc_u32 s51, s49, 0
        v_add_u32 v34, v19, v8
        ''')
        self.stamp(6)
        self.dma640(99)
        self.srd(60, 16, 10240)
        a(f'''
        buffer_load_dwordx2 v[150:151], v34, s[60:63], s9 offen
        s_lshl_b32 s85, s8, 2
        s_add_u32 s85, s85, s3
        s_lshl_b32 s85, s85, 11
        s_add_u32 s85, s85, {SB2}
        v_mov_b32 v152, -1
        v_mov_b32 v153, -1
        v_mov_b32 v154, -1
        v_mov_b32 v155, -1
        buffer_store_dwordx4 v[152:155], v7, s[44:47], s85 offen sc1
        buffer_store_dwordx4 v[152:155], v7, s[44:47], s85 offen offset:1024 sc1
        v_and_b32 v16, 7, v2
        v_mul_u32_u24 v16, {ACTS}, v16
        v_lshrrev_b32 v17, 4, v2
        v_lshl_add_u32 v16, v17, 4, v16
        s_mul_i32 s85, s3, 320
        s_add_u32 s85, s85, {L_ACT}
        v_add_u32 v35, s85, v16
        ''')
        self.signal(C_GO)
        self.stamp(1)
        self.lds_wait(C_ACT, 8)
        for n in range(5): a(f'ds_read_b128 v[{120+4*n}:{123+4*n}], v35 offset:{64*n}')
        self.stamp(3)
        self.wfrags640(younger=3)
        self.tag_from(167)
        a('s_waitcnt vmcnt(0)')
        self.stamp(2)
        self.mfma640('L_ctrl_end')
        a(f'''
        v_and_b32 v22, 7, v2
        v_lshl_add_u32 v23, v22, 3, v13
        ds_read_b64 v[36:37], v23 offset:{L_STAT}
        ''')
        self.red640()
        self.pack4(24, 40); self.pack4(26, 56)
        self.unpack4(56, 26)
        a('v_pk_add_f32 v[56:57], v[56:57], 1.0 op_sel_hi:[1,0]\nv_pk_add_f32 v[58:59], v[58:59], 1.0 op_sel_hi:[1,0]')
        self.round4(56, 26)
        self.unpack4(40, 24)
        self.unpack4(44, 150)
        for i in range(4): a(f'v_sub_f32 v{44+i}, v{44+i}, v36')
        self.round4(44, 28)
        for i in range(4): a(f'v_mul_f32 v{44+i}, v{44+i}, v37')
        self.round4(44, 28)
        a('v_pk_mul_f32 v[44:45], v[44:45], v[56:57]\nv_pk_mul_f32 v[46:47], v[46:47], v[58:59]')
        self.round4(44, 28)
        a('v_pk_add_f32 v[44:45], v[44:45], v[40:41]\nv_pk_add_f32 v[46:47], v[46:47], v[42:43]')
        a(f'''
        v_cvt_pk_bf16_f32 v28, v44, v45
        v_cvt_pk_bf16_f32 v30, v46, v47
        v_mov_b32 v29, s94
        v_mov_b32 v31, s94
        v_lshlrev_b32 v22, 4, v22               ; b*16
        v_lshl_add_u32 v22, v8, 4, v22          ; + (16t+4s')*32 = t*512 + s'*128
        s_lshl_b32 s85, s8, 10
        s_add_u32 s85, s85, {WS_H1}
        buffer_store_dwordx4 v[28:31], v22, s[44:47], s85 offen sc1
        s_branch L_ctrl_end
        ''')
        self.cur_nt = self.nt('q')
        a(f'''
        L_role_q:
        s_lshl_b32 s9, s8, 7
        s_add_u32 s48, s22, s9
        s_addc_u32 s49, s23, 0
        s_add_u32 s50, s48, 64
        s_addc_u32 s51, s49, 0
        s_movk_i32 s52, 8192
        ''')
        if self.pfb: self.lds_wait(C_PF, 1, sleep=2)
        self.dma640(99)
        a(f'''
        s_and_b32 s85, s8, 1
        s_lshl_b32 s85, s85, 2
        s_add_u32 s85, s85, s3
        s_lshl_b32 s85, s85, 5
        s_lshr_b32 s86, s8, 1
        s_add_u32 s85, s85, s86
        s_mul_i32 s85, s85, 2560
        s_add_u32 s85, s85, {WS_P}
        v_mov_b32 v152, -1
        v_mov_b32 v153, -1
        v_mov_b32 v154, -1
        v_mov_b32 v155, -1
        v_lshlrev_b32 v19, 3, v2
        buffer_store_dwordx4 v[152:155], v7, s[44:47], s85 offen sc1
        buffer_store_dwordx4 v[152:155], v7, s[44:47], s85 offen offset:1024 sc1
        buffer_store_dwordx2 v[152:153], v19, s[44:47], s85 offen offset:2048 sc1
        ''')
        self.signal(C_GO)
        a('s_waitcnt vmcnt(0)')
        self.stamp(2)
        self.tag_from(167)
        self.wfrags640()
        a(f'''
        s_mul_i32 s90, s3, 5120
        s_add_u32 s90, s90, {WS_H1}
        s_add_u32 s91, s90, 4096
        ''')
        self.stamp(3)
        if self.h1probe:
            a('v_min_u32 v34, 4, v2\nv_lshlrev_b32 v34, 10, v34')
            self.poll('h1p', ['buffer_load_dword v35, v34, s[44:47], s90 offen offset:1020 sc1'], [35, 35], 2, tagged=True)
        loads = [f'buffer_load_dwordx4 v[{120+4*n}:{123+4*n}], v7, s[44:47], s{90 if n < 4 else 91} offen offset:{1024*(n%4)} sc1' for n in range(5)]
        self.poll('h1', loads, [121 + 2 * i for i in range(10)], 4, tagged=True)
        self.stamp(4)
        for n in range(5):
            b = 120 + 4 * n
            a(f'v_mov_b32_dpp v{b+3}, v{b+2} row_ror:8 row_mask:0xf bank_mask:0xf')
            a(f'v_mov_b32 v{b+1}, v{b+2}')
            a(f'v_mov_b32_dpp v{b+2}, v{b} row_ror:8 row_mask:0xf bank_mask:0xf')
        self.mfma640('L_ctrl_end')
        a(f'''
        v_and_b32 v22, 7, v2
        v_lshlrev_b32 v22, 14, v22              ; b*32*512
        v_lshl_add_u32 v22, v8, 1, v22          ; + col*4
        s_lshl_b32 s85, s8, 8                   ; h*512 + half*256
        s_add_u32 s85, s85, {WS_Q}
        v_mov_b32 v29, s94
        v_mov_b32 v31, s94
        v_mov_b32 v33, s94
        v_mov_b32 v35, s94
        ''')
        self.red640()
        a(f'''
        v_cvt_pk_bf16_f32 v28, v40, v41
        v_cvt_pk_bf16_f32 v30, v42, v43
        v_cvt_pk_bf16_f32 v32, v56, v57
        v_cvt_pk_bf16_f32 v34, v58, v59
        buffer_store_dwordx4 v[28:31], v22, s[44:47], s85 offen sc1
        buffer_store_dwordx4 v[32:35], v22, s[44:47], s85 offen offset:128 sc1
        s_branch L_ctrl_end
        ''')
        self.cur_nt = self.nt('f')
        a(f'''
        L_role_ffn:
        s_lshl_b32 s9, s8, 6
        s_add_u32 s48, s28, s9
        s_addc_u32 s49, s29, 0
        s_add_u32 s50, s30, s9
        s_addc_u32 s51, s31, 0
        s_movk_i32 s52, 3456
        ''')
        self.dma640_setup()
        self.dma640_issue(0, self.nEf, 1)
        self.lds_wait(C_DONE, 5, sleep=2)
        self.dma640_issue(self.nEf, 20)
        self.wfrags640(younger=0)
        self.stamp(2)
        a(f'''
        s_mul_i32 s90, s3, 320
        s_add_u32 s90, s90, {WS_H2}
        v_lshrrev_b32 v33, 3, v2                ; row
        v_and_b32 v35, 7, v2                    ; piece
        v_mul_u32_u24 v6, 1280, v33
        v_and_b32 v34, 3, v35
        v_lshl_add_u32 v34, v34, 4, v6
        v_lshl_add_u32 v6, v35, 4, v6
        v_mul_u32_u24 v3, 400, v33
        v_lshl_add_u32 v3, v35, 4, v3
        s_add_u32 s85, s87, {LW + 8192}
        v_add_u32 v3, s85, v3
        v_mul_u32_u24 v4, 400, v35
        v_lshrrev_b32 v33, 4, v2
        v_lshl_add_u32 v4, v33, 4, v4
        v_add_u32 v4, s85, v4
        v_and_b32 v32, 7, v2
        v_lshlrev_b32 v32, 4, v32
        v_bfe_u32 v33, v2, 3, 1
        v_lshl_add_u32 v32, v33, 8, v32
        v_bfe_u32 v33, v2, 5, 1
        v_lshl_add_u32 v32, v33, 7, v32
        s_lshl_b32 s91, s8, 9
        s_add_u32 s91, s91, {WS_HID}
        ''')
        self.lds_wait(C_WO, 8, sleep=4)
        self.stamp(3)
        loads = ['buffer_load_dwordx4 v[140:143], v6, s[44:47], s90 offen sc1',
                 'buffer_load_dwordx4 v[144:147], v6, s[44:47], s90 offen offset:128 sc1',
                 'buffer_load_dwordx4 v[148:151], v34, s[44:47], s90 offen offset:256 sc1']
        self.poll('h2', loads, list(range(140, 152)), self.psleep, lanemask=True)
        self.stamp(4)
        for n in range(3): a(f'ds_write_b128 v3, v[{140+4*n}:{143+4*n}] offset:{128*n}')
        for n in range(5): a(f'ds_read_b128 v[{120+4*n}:{123+4*n}], v4 offset:{64*n}')
        a('s_waitcnt lgkmcnt(0)')
        self.mfma640('L_ctrl_end')
        self.red640()
        self.round4(40, 28); self.round4(56, 30)
        for i in range(4):
            a(f'v_cmp_lt_f32 vcc, 0, v{40+i}\nv_cndmask_b32 v{20+i}, 0, 1.0, vcc')
        a('v_pk_mul_f32 v[40:41], v[40:41], v[20:21]\nv_pk_mul_f32 v[42:43], v[42:43], v[22:23]')
        a('v_pk_mul_f32 v[40:41], v[40:41], v[56:57]\nv_pk_mul_f32 v[42:43], v[42:43], v[58:59]')
        self.pack4(28, 40); self.sanitize([28, 29])
        a(f'''
        v_mov_b32 v30, v28
        v_mov_b32 v31, v29
        v_permlane16_swap_b32 v28, v30
        v_permlane16_swap_b32 v29, v31
        s_mov_b32 exec_lo, 0xffff
        s_mov_b32 exec_hi, 0xffff
        buffer_store_dwordx4 v[28:31], v32, s[44:47], s91 offen sc1
        s_mov_b64 exec, -1
        ''')
        if self.stamp_on and not self.light:
            self.stamp(7); a('s_waitcnt vmcnt(0)'); self.stamp(8)
        a('s_branch L_ctrl_end')
        a('L_role_down:')
        self.srd(72, 32, 1728 * 1280); self.srd(80, 38, 10240)
        a(f'''
        s_add_u32 s76, s42, {WS_HID}
        s_addc_u32 s77, s43, 0
        s_mov_b32 s78, {27*1024}
        s_mov_b32 s79, 0x20000
        v_lshrrev_b32 v16, 1, v2
        v_mul_u32_u24 v4, 1280, v16
        v_and_b32 v16, 1, v2
        v_lshl_add_u32 v4, v16, 4, v4
        s_mul_i32 s85, s3, {7*64*1280}
        s_lshl_b32 s9, s8, 5
        s_add_u32 s85, s85, s9
        s_mul_i32 s87, s3, 14336
        ''')
        for n in range(14):
            if n == self.nEd: self.lds_wait(C_DONE, 5, sleep=2)
            a(f's_add_u32 m0, s87, {LW + 1024*n}')
            if n < self.nEd: a(f's_waitcnt vmcnt(0)')
            a(f'buffer_load_dwordx4 v4, s[72:75], s85 offen {self.nt("f")} lds')
            a(f's_add_u32 s85, s85, {32*1280}')
        a(f'''
        v_lshrrev_b32 v16, 4, v2         ; s
        v_bfe_u32 v17, v2, 2, 2          ; r4
        v_lshl_add_u32 v19, v16, 3, v17
        v_lshlrev_b32 v9, 5, v19
        v_bfe_u32 v17, v2, 1, 1
        v_lshl_add_u32 v9, v17, 10, v9
        v_and_b32 v17, 1, v2
        v_lshl_add_u32 v9, v17, 3, v9
        v_add_u32 v9, s87, v9
        v_add_u32 v10, s87, v7
        v_and_b32 v17, 7, v2             ; b
        v_bfe_u32 v18, v2, 3, 1          ; a / half
        v_lshlrev_b32 v3, 7, v16
        v_lshl_add_u32 v3, v17, 4, v3
        v_lshl_add_u32 v3, v18, 9, v3
        s_mul_i32 s86, s3, 7168
        v_add_u32 v3, s86, v3
        v_and_b32 v16, 1, v16            ; s'
        v_lshlrev_b32 v11, 8, v16
        v_lshl_add_u32 v11, v17, 4, v11
        v_lshl_add_u32 v11, v18, 10, v11
        v_lshlrev_b32 v8, 4, v18
        v_lshl_add_u32 v8, v16, 3, v8    ; (8a+4s')*2
        v_mul_u32_u24 v5, 5120, v17
        v_add_u32 v5, v5, v8
        v_mul_u32_u24 v6, 1280, v17
        v_add_u32 v6, v6, v8
        s_add_u32 s90, s9, {WS_MODO + 3840}
        s_add_u32 s91, s9, {WS_X1}
        s_movk_i32 s92, 4096
        ''')
        for n in range(7):
            a(f's_waitcnt vmcnt({12 - 2*n})')
            for ac in range(2):
                b = 40 + 8 * n + 4 * ac
                a(f'ds_read_b64_tr_b16 v[{b}:{b+1}], v9 offset:{LW + 2048*n + 16*ac}')
                a(f'ds_read_b64_tr_b16 v[{b+2}:{b+3}], v9 offset:{LW + 2048*n + 16*ac + 128}')
            if n % 2: a('s_waitcnt lgkmcnt(0)')
        self.stamp(2)
        self.tag_from(167)
        self.lds_wait(C_WO, 8, sleep=4)
        self.poll('gb', ['buffer_load_dwordx2 v[32:33], v5, s[44:47], s90 offen sc1'], [32, 33], 4)
        self.unpack4(140, 32)
        self.stamp(3)
        self.poll('x1', ['buffer_load_dwordx2 v[32:33], v6, s[44:47], s91 offen sc1'], [32, 33], 1, lanemask=True)
        self.unpack4(144, 32)
        self.stamp(5)
        if self.hdelay: a(f's_sleep {self.hdelay}')
        for i in range(8): a(f'v_mov_b32 v{16+i}, 0')
        def hld(n): return f'buffer_load_dwordx4 v[{104+4*n}:{107+4*n}], v3, s[76:79], {"0" if n < 4 else "s92"} offen offset:{1024*(n%4)} sc1'
        if self.trig:
            a(f'''
            s_mov_b32 s89, {SPIN_LIMIT}
            v_lshlrev_b32 v34, {9 + self.trsh}, v2
            v_add_u32 v34, s86, v34
            s_mov_b64 exec, {(1 << (12 >> self.trsh)) - 1}
            L_hd_trig:
            buffer_load_dword v35, v34, s[76:79], 0 offen offset:508 sc1
            s_sub_u32 s89, s89, 1
            s_cbranch_scc1 L_hd_go
            s_waitcnt vmcnt(0)
            v_cmp_ne_u32 vcc, -1, v35
            s_nop 1
            s_bcnt1_i32_b32 s85, vcc_lo
            s_cmp_lt_u32 s85, {self.trig}
            s_cbranch_scc1 L_hd_trig
            L_hd_go:
            s_mov_b64 exec, -1
            s_waitcnt vmcnt(0)
            ''')
            self.stamp(7)
        a(f's_mov_b32 s90, 0x7f\ns_mov_b32 s89, {SPIN_LIMIT}\nv_mov_b32 v34, 0')
        for n in range(7): a(hld(n))
        a('L_hid_poll:')
        for n in range(7):
            b = 104 + 4 * n
            a(f'''
            s_waitcnt vmcnt(6)
            s_bitcmp1_b32 s90, {n}
            s_cbranch_scc0 L_hd_dm{n}
            v_max3_u32 v36, v{b}, v{b+1}, v{b+2}
            v_max_u32 v36, v36, v{b+3}
            v_cmp_eq_u32 vcc, -1, v36
            s_cbranch_vccz L_hd_ok{n}
            {hld(n)}
            s_branch L_hd_nx{n}
            L_hd_ok{n}:
            v_mfma_f32_16x16x32_bf16 v[16:19], v[{40+8*n}:{43+8*n}], v[{b}:{b+3}], v[16:19]
            v_mfma_f32_16x16x32_bf16 v[20:23], v[{44+8*n}:{47+8*n}], v[{b}:{b+3}], v[20:23]
            s_bitset0_b32 s90, {n}
            s_cmp_eq_u32 s90, 0
            s_cbranch_scc1 L_hid_ok
            L_hd_dm{n}:
            buffer_load_dword v35, v34, s[76:79], 0 offen
            L_hd_nx{n}:
            ''')
        a(f'''
        s_sub_u32 s89, s89, 1
        s_cbranch_scc0 L_hid_poll
        L_hid_ok:
        s_nop 7
        ''')
        self.stamp(4)
        if self.stamp_on and not self.light: a(f's_sub_u32 s96, {SPIN_LIMIT}, s89\nv_writelane_b32 v15, s96, 12')
        a(f'ds_write_b128 v10, v[16:19] offset:{LW}\nds_write_b128 v10, v[20:23] offset:{LW + 1024}')
        reads = []
        for w in range(4):
            reads.append(f'ds_read_b128 v[{40+8*w}:{43+8*w}], v11 offset:{LW + 14336*w}')
            reads.append(f'ds_read_b128 v[{44+8*w}:{47+8*w}], v11 offset:{LW + 14336*w + 640}')
        self.arrive2(C_A, 3, 'L_ctrl_end', reads)
        a('s_waitcnt lgkmcnt(0)')
        self.sum_partials(40, [40 + 4 * i for i in range(8)])
        self.round4(40, 28)
        a('v_pk_mul_f32 v[40:41], v[40:41], v[140:141]\nv_pk_mul_f32 v[42:43], v[42:43], v[142:143]')
        self.round4(40, 28)
        a('v_pk_add_f32 v[40:41], v[40:41], v[144:145]\nv_pk_add_f32 v[42:43], v[42:43], v[146:147]')
        self.pack4(28, 40)
        a(f'''
        s_mov_b32 exec_hi, 0
        buffer_store_dwordx2 v[28:29], v6, s[80:83], s9 offen
        s_cmp_lg_u32 s8, 0
        s_cbranch_scc1 L_noepoch
        s_mov_b64 exec, 1
        v_mov_b32 v20, 0
        v_mov_b32 v21, s94
        buffer_store_dword v21, v20, s[44:47], 0 offen sc1
        L_noepoch:
        s_mov_b64 exec, -1
        s_branch L_ctrl_end
        ''')
        a('L_role_red:')
        self.srd(60, 16, 10240)
        a(f'''
        v_lshlrev_b32 v8, 3, v2          ; lane*8
        s_mul_i32 s9, s8, 1280
        buffer_load_dwordx2 v[26:27], v8, s[60:63], s9 offen
        buffer_load_dwordx2 v[28:29], v8, s[60:63], s9 offen offset:512
        buffer_load_dword v30, v12, s[60:63], s9 offen offset:1024
        s_lshl_b32 s90, s8, 14
        s_lshl_b32 s85, s3, 12
        s_add_u32 s90, s90, s85
        s_add_u32 s90, s90, {WS_Q}
        s_waitcnt vmcnt(0)
        ''')
        self.tag_from(167)
        for i in range(5): self.unpack(120 + 2 * i, 26 + i)
        self.lds_wait(C_QOK, 1, sleep=8)
        loads = [f'buffer_load_dwordx4 v[{40+4*n}:{43+4*n}], v7, s[44:47], s90 offen offset:{1024*n} sc1' for n in range(4)]
        self.poll('qall', loads, [41 + 2 * i for i in range(8)], 8, tagged=True)
        a(f'''
        s_mul_i32 s90, s8, 5120
        s_add_u32 s90, s90, {WS_MODO}
        ''')
        loads = []
        for ch in range(3):
            b = 40 + 6 * ch
            loads += [f'buffer_load_dwordx2 v[{b}:{b+1}], v8, s[44:47], s90 offen offset:{1280*ch} sc1',
                      f'buffer_load_dwordx2 v[{b+2}:{b+3}], v8, s[44:47], s90 offen offset:{1280*ch + 512} sc1',
                      f'buffer_load_dword v{b+4}, v12, s[44:47], s90 offen offset:{1280*ch + 1024} sc1']
        self.poll('modo', loads, [40 + 6 * ch + i for ch in range(3) for i in range(5)], 8)
        for ch in range(3):
            for i in range(5): self.unpack(130 + 10 * ch + 2 * i, 40 + 6 * ch + i)
        for i in range(5):
            a(f'v_pk_add_f32 v[{150+2*i}:{151+2*i}], v[{150+2*i}:{151+2*i}], 1.0 op_sel_hi:[1,0]')
            a(f'v_cvt_pk_bf16_f32 v26, v{150+2*i}, v{151+2*i}')
            self.unpack(150 + 2 * i, 26)
        for i in range(10): a(f'v_mov_b32 v{16+i}, 0')
        a(f'''
        s_lshl_b32 s91, s8, 5
        s_lshl_b32 s85, s3, 3
        s_add_u32 s91, s91, s85
        s_mul_i32 s91, s91, 2560
        s_add_u32 s91, s91, {WS_P}
        s_mul_i32 s87, s3, 2560
        v_add_u32 v10, s87, v7
        v_add_u32 v11, s87, v8
        s_add_u32 s92, s9, {WS_H2}
        s_add_u32 s93, s9, {WS_X1}
        ''')
        self.stamp(2)
        self.lds_wait(C_PROG, 1, sleep=8)
        self.stamp(3)
        a(f'''
        s_mov_b32 s90, 0xff
        s_mov_b32 s89, {SPIN_LIMIT}
        v_and_b32 v34, 7, v2
        v_mul_u32_u24 v34, 2560, v34
        s_mov_b32 s86, 0
        L_p_poll:
        s_mov_b32 s95, s90
        s_cmp_lg_u32 s86, 0
        s_cbranch_scc1 L_p_fetch
        ds_read_b32 v14, v13 offset:{C_K2}
        s_waitcnt lgkmcnt(0)
        v_readfirstlane_b32 s88, v14
        s_cmp_ge_u32 s88, 8
        s_cselect_b32 s86, 1, 0
        s_cbranch_scc1 L_p_fetch
        s_sleep 4
        buffer_load_dword v35, v34, s[44:47], s91 offen offset:2556 sc1
        s_waitcnt vmcnt(0)
        v_cmp_ne_u32 vcc, -1, v35
        s_nop 1
        s_and_b32 s95, s90, vcc_lo
        s_cbranch_scc0 L_p_next
        L_p_fetch:
        s_bcnt1_i32_b32 s85, s90
        s_and_b32 s85, s85, s86
        s_bcnt1_i32_b32 s88, s90
        s_cmp_eq_u32 s88, s85
        s_cbranch_scc1 L_p_one
        ''')
        for g in range(8):
            b = 40 + 10 * g
            a(f'''
            s_bitcmp1_b32 s95, {g}
            s_cbranch_scc0 L_p_sk{g}
            s_add_u32 s85, s91, {2560*g}
            buffer_load_dwordx4 v[{b}:{b+3}], v7, s[44:47], s85 offen sc1
            buffer_load_dwordx4 v[{b+4}:{b+7}], v7, s[44:47], s85 offen offset:1024 sc1
            buffer_load_dwordx2 v[{b+8}:{b+9}], v8, s[44:47], s85 offen offset:2048 sc1
            L_p_sk{g}:
            ''')
        a('s_waitcnt vmcnt(0)')
        for g in range(8):
            b = 40 + 10 * g
            a(f'''
            s_bitcmp1_b32 s95, {g}
            s_cbranch_scc0 L_p_ck{g}
            v_max3_u32 v36, v{b}, v{b+1}, v{b+2}
            v_max3_u32 v37, v{b+3}, v{b+4}, v{b+5}
            v_max3_u32 v36, v36, v{b+6}, v{b+7}
            v_max3_u32 v37, v37, v{b+8}, v{b+9}
            v_max_u32 v36, v36, v37
            v_cmp_eq_u32 vcc, -1, v36
            s_cbranch_vccnz L_p_ck{g}
            s_bitset0_b32 s90, {g}
            ''')
            for i in range(5): a(f'v_pk_add_f32 v[{16+2*i}:{17+2*i}], v[{16+2*i}:{17+2*i}], v[{b+2*i}:{b+2*i+1}]')
            a(f'L_p_ck{g}:')
        a(f'''
        s_cmp_eq_u32 s90, 0
        s_cbranch_scc1 L_p_ok
        L_p_next:
        s_sub_u32 s89, s89, 1
        s_cbranch_scc0 L_p_poll
        s_branch L_p_ok
        L_p_one:
        s_ff1_i32_b32 s85, s90
        s_mul_i32 s85, s85, 2560
        s_add_u32 s85, s85, s91
        L_p_one_l:
        buffer_load_dwordx4 v[40:43], v7, s[44:47], s85 offen sc1
        buffer_load_dwordx4 v[44:47], v7, s[44:47], s85 offen offset:1024 sc1
        buffer_load_dwordx2 v[48:49], v8, s[44:47], s85 offen offset:2048 sc1
        s_sub_u32 s89, s89, 1
        s_cbranch_scc1 L_p_ok
        s_waitcnt vmcnt(0)
        v_max3_u32 v36, v40, v41, v42
        v_max3_u32 v37, v43, v44, v45
        v_max3_u32 v36, v36, v46, v47
        v_max3_u32 v37, v37, v48, v49
        v_max_u32 v36, v36, v37
        v_cmp_eq_u32 vcc, -1, v36
        s_cbranch_vccnz L_p_one_l
        v_pk_add_f32 v[16:17], v[16:17], v[40:41]
        v_pk_add_f32 v[18:19], v[18:19], v[42:43]
        v_pk_add_f32 v[20:21], v[20:21], v[44:45]
        v_pk_add_f32 v[22:23], v[22:23], v[46:47]
        v_pk_add_f32 v[24:25], v[24:25], v[48:49]
        L_p_ok:
        ''')
        self.stamp(4)
        a(f'''
        ds_write_b128 v10, v[16:19] offset:{LW}
        ds_write_b128 v10, v[20:23] offset:{LW + 1024}
        ds_write_b64 v11, v[24:25] offset:{LW + 2048}
        ''')
        reads = []
        for w in range(4):
            b = 40 + 10 * w
            reads.append(f'ds_read_b128 v[{b}:{b+3}], v7 offset:{LW + 2560*w}')
            reads.append(f'ds_read_b128 v[{b+4}:{b+7}], v7 offset:{LW + 2560*w + 1024}')
            reads.append(f'ds_read_b64 v[{b+8}:{b+9}], v8 offset:{LW + 2560*w + 2048}')
        self.arrive2(C_A, 3, 'L_ctrl_end', reads)
        a('s_waitcnt lgkmcnt(0)')
        U = 40
        def P(r, i): return f'v[{r+2*i}:{r+2*i+1}]'
        for i in range(5): a(f'v_pk_add_f32 {P(40,i)}, {P(40,i)}, {P(50,i)}')
        for i in range(5): a(f'v_pk_add_f32 {P(60,i)}, {P(60,i)}, {P(70,i)}')
        for i in range(5): a(f'v_pk_add_f32 {P(40,i)}, {P(40,i)}, {P(60,i)}')
        def pk():
            for i in range(5): a(f'v_cvt_pk_bf16_f32 v{26+i}, v{U+2*i}, v{U+2*i+1}')
        def rnd():
            pk()
            for i in range(5): self.unpack(U + 2 * i, 26 + i)
        rnd()
        for i in range(5): a(f'v_pk_mul_f32 {P(U,i)}, {P(U,i)}, {P(130,i)}')
        rnd()
        for i in range(5): a(f'v_pk_add_f32 {P(U,i)}, {P(U,i)}, {P(120,i)}')
        for i in range(5): a(f'v_cvt_pk_bf16_f32 v{160+i}, v{U+2*i}, v{U+2*i+1}')
        self.sanitize(range(160, 165))
        for i in range(5): self.unpack(U + 2 * i, 160 + i)
        self.ln_stats1(U, 32, 96, 98)
        for i in range(5): a(f'v_pk_add_f32 {P(U,i)}, {P(U,i)}, s[96:97] op_sel_hi:[1,0] neg_lo:[0,1] neg_hi:[0,1]')
        rnd()
        for i in range(5): a(f'v_pk_mul_f32 {P(U,i)}, {P(U,i)}, s[98:99] op_sel_hi:[1,0]')
        rnd()
        for i in range(5): a(f'v_pk_mul_f32 {P(U,i)}, {P(U,i)}, {P(150,i)}')
        rnd()
        for i in range(5): a(f'v_pk_add_f32 {P(U,i)}, {P(U,i)}, {P(140,i)}')
        pk()
        self.sanitize(range(26, 31))
        a(f'''
        buffer_store_dwordx2 v[26:27], v8, s[44:47], s92 offen sc1
        buffer_store_dwordx2 v[28:29], v8, s[44:47], s92 offen offset:512 sc1
        buffer_store_dword v30, v12, s[44:47], s92 offen offset:1024 sc1
        buffer_store_dwordx2 v[160:161], v8, s[44:47], s93 offen sc1
        buffer_store_dwordx2 v[162:163], v8, s[44:47], s93 offen offset:512 sc1
        buffer_store_dword v164, v12, s[44:47], s93 offen offset:1024 sc1
        L_ctrl_end:
        ''')
        self.stamp(11)
        a(f's_cmp_eq_u32 s7, {R_DOWN}\ns_cbranch_scc1 L_ctrl_fin\ns_cmp_eq_u32 s7, {R_FFN}\ns_cbranch_scc1 L_ctrl_fin\ns_cmp_eq_u32 s7, {R_RED}\ns_cbranch_scc1 L_ctrl_fin')
        a('L_share:')
        if self.late: self.prefetch_late('e')
        a(f's_cmp_eq_u32 s7, {R_DOWN}\ns_cbranch_scc1 L_role_down\ns_cmp_eq_u32 s7, {R_FFN}\ns_cbranch_scc1 L_role_ffn\ns_cmp_eq_u32 s7, {R_RED}\ns_cbranch_scc1 L_role_red')
        a('L_ctrl_fin:')
        self.stamp_flush()
        self.diag_end()
        a('s_endpgm')

    def stream(self):
        a = self.a
        self.cur_cls = 0
        WK, WV = self.WK, self.WV
        NV = 12
        KV = lambda t: 40 + 4 * t
        a(f'''
        L_stream:
        s_sub_u32 s15, s3, 4             ; sw
        s_lshl_b32 s85, s15, 15
        v_add_u32 v1, s85, v7
        s_mul_i32 s91, s2, {self.rot}
        s_mul_i32 s85, s15, {self.rotw}
        s_add_u32 s91, s91, s85
        s_and_b32 s91, s91, 31
        s_lshl_b32 s91, s91, 10          ; rotation
        s_lshl_b32 s85, s2, 20
        s_add_u32 s85, s85, 0xC0000
        s_add_u32 s48, s18, s85
        s_addc_u32 s49, s19, 0
        s_mov_b32 s50, 0x40000
        s_mov_b32 s51, 0x20000
        s_add_u32 s52, s20, s85
        s_addc_u32 s53, s21, 0
        s_mov_b32 s54, 0x40000
        s_mov_b32 s55, 0x20000
        ''')
        for _ in range(self.sdelay): a('s_sleep 32')
        if self.hold > 1: a(f's_cmp_eq_u32 s7, {R_Q}\ns_cbranch_scc1 L_hold')
        a(f's_cmp_lg_u32 s7, {R_G1}\ns_cbranch_scc1 L_nohold')
        self.srd(56, 34, 10240); self.srd(60, 16, 10240)
        a('s_mul_i32 s90, s15, 1280\nv_lshlrev_b32 v12, 2, v2')
        for n in range(5): a(f'buffer_load_dword v{40+n}, v12, s[56:59], s90 offen offset:{256*n}')
        for n in range(5): a(f'buffer_load_dword v{46+n}, v12, s[60:63], s90 offen offset:{256*n}')
        a(f'''
        s_mul_i32 s90, s15, {ACTS}
        s_add_u32 s90, s90, {L_ACT}
        v_add_u32 v12, s90, v12
        s_mov_b32 s85, {LOG2E | 0x80000000}
        s_waitcnt vmcnt(5)
        ''')
        self.stamp(9)
        for i in range(5): self.unpack(52 + 2 * i, 40 + i)
        for i in range(10): a(f'v_mul_f32 v{64+i}, s85, v{52+i}')
        for i in range(10): a(f'v_exp_f32 v{64+i}, v{64+i}')
        for i in range(10): a(f'v_add_f32 v{64+i}, 1.0, v{64+i}')
        for i in range(10): a(f'v_rcp_f32 v{64+i}, v{64+i}')
        for i in range(10): a(f'v_mul_f32 v{52+i}, v{52+i}, v{64+i}')
        for i in range(5): a(f'v_cvt_pk_bf16_f32 v{40+i}, v{52+2*i}, v{53+2*i}')
        for i in range(5): a(f'ds_write_b32 v12, v{40+i} offset:{256*i}')
        a('s_waitcnt vmcnt(0)')
        self.ln_stats(46, 52, 64, 90, 92)
        a(f'''
        v_mov_b32 v28, s90
        v_mov_b32 v29, s92
        s_lshl_b32 s85, s15, 3
        v_add_u32 v30, s85, v13
        ds_write_b64 v30, v[28:29] offset:{L_STAT}
        ''')
        self.signal(C_ACT)
        a('L_hold:')
        if self.hold: self.lds_wait(C_GO, 4, sleep=2)
        a('L_nohold:')
        q = []
        def wait_for(name):
            i = len(q) - 1 - q[::-1].index(name)
            n = len(q) - 1 - i
            a(f's_waitcnt vmcnt({min(n, 63)})')
        def ld(t, slot, srd, nm):
            a(f's_add_u32 s92, s91, {t*1024}\ns_and_b32 s92, s92, 0x7fff')
            a(f'buffer_load_dwordx4 v[{KV(slot)}:{KV(slot)+3}], v1, {srd}, s92 offen {self.nt(nm[0].lower())}')
            q.append(nm)
        qloads = ['buffer_load_dwordx4 v[4:7], v12, s[44:47], s93 offen sc1', 'buffer_load_dwordx4 v[16:19], v12, s[44:47], s93 offen offset:16 sc1']
        for t in range(32):
            wk = WK if t >= self.wk_sw else self.WK0
            if t >= wk:
                if self.WKL > wk and t >= self.wkl_sw:
                    L = a.label('L_kw')
                    a(f's_waitcnt vmcnt({self.WKL-1})\ns_cbranch_vccnz {L}\ns_waitcnt vmcnt({wk-1})\n{L}:')
                else: a(f's_waitcnt vmcnt({wk-1})')
            if t == self.WK0: self.stamp(8)
            if t == self.pfl_t: self.signal(C_PROGW)
            if t == 0: self.stamp(14)
            ld(t, t, 's[48:51]', f'K{t}')
            if t == self.WK0 - 1:
                a(f'''
                v_mov_b32 v3, 0
                buffer_load_dword v35, v3, s[44:47], 0 offen sc1
                v_and_b32 v3, 15, v2
                v_lshlrev_b32 v12, 5, v3             ; Q voffset
                s_lshl_b32 s93, s2, 9
                s_add_u32 s93, s93, {WS_Q}
                v_mov_b32 v16, 0xffff
                v_mov_b32 v17, s84
                ''')
                q.append('E')
                for r in range(4):
                    a(f'''
                    v_cmp_eq_u32 vcc, {2*r}, v3
                    v_cndmask_b32 v{8+r}, 0, v16, vcc
                    v_cmp_eq_u32 vcc, {2*r+1}, v3
                    v_cndmask_b32 v{8+r}, v{8+r}, v17, vcc
                    ''')
                a(f'''
                s_mov_b32 s96, 0xcccccccc
                s_mov_b32 s97, 0xcccccccc
                s_mov_b32 s98, 0xaaaaaaaa
                s_mov_b32 s99, 0xaaaaaaaa
                s_mul_i32 s85, s14, 163840
                s_add_u32 s56, s24, s85
                s_addc_u32 s57, s25, 0
                s_mov_b32 s58, 163840
                s_mov_b32 s59, 0x20000
                v_lshrrev_b32 v34, 4, v2
                v_mul_u32_u24 v34, 5120, v34
                v_lshl_add_u32 v34, v3, 4, v34
                s_mul_i32 s85, s15, 20480
                v_add_u32 v34, s85, v34
                s_lshr_b32 s85, {self.lagmask}, s7
                s_bitcmp1_b32 s85, 0
                s_cselect_b64 vcc, -1, 0
                ''')
            if t == 12:
                self.tag_from(35)
            if t == self.rk:
                self.srd(64, 40, 256)
                a(f'''
                v_mov_b32 v37, 1
                v_mov_b32 v38, 0
                s_mov_b64 exec, 1
                s_cmp_eq_u32 s15, 0
                s_cbranch_scc1 L_rk_at
                buffer_load_dword v37, v38, s[64:67], 0 offen offset:128
                s_branch L_rk_dn
                L_rk_at:
                buffer_atomic_add v37, v38, s[64:67], 0 offen sc0 sc1
                L_rk_dn:
                s_mov_b64 exec, -1
                ''')
                q.append('RK')
            if t == self.qpos:
                for l in qloads: a(l)
                q.append('Q0'); q.append('Q1')
        self.stamp(1)
        wait_for('Q1')
        a(f'''
        s_mov_b32 s89, {SPIN_LIMIT}
        L_q_chk:
        v_xor_b32 v20, s94, v5
        v_xor_b32 v21, s94, v7
        v_xor_b32 v22, s94, v17
        v_xor_b32 v23, s94, v19
        v_or_b32 v20, v20, v21
        v_or3_b32 v20, v20, v22, v23
        v_cmp_ne_u32 vcc, 0, v20
        s_cbranch_vccz L_q_ok
        s_sleep 4
        {qloads[0]}
        {qloads[1]}
        s_waitcnt vmcnt(0)
        s_sub_u32 s89, s89, 1
        s_cbranch_scc0 L_q_chk
        L_q_ok:
        v_mov_b32 v5, v6
        v_mov_b32 v6, v16
        v_mov_b32 v7, v18
        ''')
        self.signal(C_QOK)
        self.stamp(2)
        D = 20
        st = dict(V=0, W=0)
        def ldwo(n):
            tp, c = n // 5, n % 5
            so = ['0', 's60', 's61', 's62'][tp]
            a(f'buffer_load_dwordx4 v[{KV(NV+n)}:{KV(NV+n)+3}], v34, s[56:59], {so} offen offset:{256*c} {self.nt("o")}')
            q.append(f'W{n}')
        def pre(g, free):
            for ch in self.pre[g]:
                if ch == 'V':
                    assert st['V'] < NV and st['V'] <= free
                    ld(st['V'], st['V'], 's[52:55]', f"V{st['V']}"); st['V'] += 1
                else:
                    assert NV + st['W'] <= free
                    ldwo(st['W']); st['W'] += 1
        a('s_movk_i32 s60, 1280\ns_movk_i32 s61, 2560\ns_movk_i32 s62, 3840')
        for g in range(8):
            wait_for(f'K{4*g+3}')
            for i in range(4):
                for k in range(4):
                    t = 4 * g + k
                    a(f'v_dot2_f32_bf16 v{D+k}, v{KV(t)+i}, v{4+i}, {"0" if i == 0 else "v%d" % (D+k)}')
            pre(g, 4 * g + 3)
            a(f'v_add_f32_dpp v24, v{D}, v{D} row_ror:8 row_mask:0xf bank_mask:0x3')
            a(f'v_add_f32_dpp v25, v{D+2}, v{D+2} row_ror:8 row_mask:0xf bank_mask:0x3')
            a(f'v_add_f32_dpp v24, v{D+1}, v{D+1} row_ror:8 row_mask:0xf bank_mask:0xc')
            a(f'v_add_f32_dpp v25, v{D+3}, v{D+3} row_ror:8 row_mask:0xf bank_mask:0xc')
            r2 = 26 + (g & 1)
            a(f'v_add_f32_dpp v{r2}, v24, v24 row_shl:4 row_mask:0xf bank_mask:0x5')
            a(f'v_add_f32_dpp v{r2}, v25, v25 row_shr:4 row_mask:0xf bank_mask:0xa')
            if g & 1:
                r3 = 28 + ((g >> 1) & 1)
                a(f'v_add_f32_dpp v30, v26, v26 quad_perm:[2,3,0,1] row_mask:0xf bank_mask:0xf')
                a(f'v_add_f32_dpp v31, v27, v27 quad_perm:[2,3,0,1] row_mask:0xf bank_mask:0xf')
                a(f'v_cndmask_b32 v{r3}, v30, v31, s[96:97]')
            if (g & 3) == 3:
                a(f'v_add_f32_dpp v30, v28, v28 quad_perm:[1,0,3,2] row_mask:0xf bank_mask:0xf')
                a(f'v_add_f32_dpp v31, v29, v29 quad_perm:[1,0,3,2] row_mask:0xf bank_mask:0xf')
                a(f'v_cndmask_b32 v{32 + (g >> 2)}, v30, v31, s[98:99]')
        a(f'''
        v_cvt_pk_bf16_f32 v20, v32, v33
        s_mov_b32 s86, 0x3db504f3
        ''')
        self.unpack(32, 20)
        a('v_pk_mul_f32 v[32:33], v[32:33], s[86:87] op_sel_hi:[1,0]\nv_cvt_pk_bf16_f32 v20, v32, v33')
        self.unpack(32, 20)
        a('v_max_f32 v20, v32, v33')
        self.wave_red(20, 'max')
        a(f'''
        v_readlane_b32 s86, v20, 63              ; m_w
        s_mov_b32 s90, {LOG2E}
        v_subrev_f32 v20, s86, v32
        v_subrev_f32 v21, s86, v33
        v_mul_f32 v20, s90, v20
        v_mul_f32 v21, s90, v21
        v_exp_f32 v20, v20
        v_exp_f32 v21, v21
        v_add_f32 v21, v20, v21
        ''')
        self.wave_red(21)
        a(f'''
        v_mov_b32 v20, s86
        s_lshl_b32 s85, s15, 3
        v_add_u32 v22, s85, v13
        s_mov_b32 exec_lo, 0
        s_mov_b32 exec_hi, 0x80000000
        ds_write_b64 v22, v[20:21] offset:{L_SM}
        s_mov_b64 exec, -1
        ''')
        if self.rk >= 0:
            a(f's_cmp_lg_u32 s15, 0\ns_cbranch_scc1 L_rk_nw\ns_mov_b64 exec, 1\nds_write_b32 v13, v37 offset:{L_RANK}\ns_mov_b64 exec, -1\nL_rk_nw:')
        self.stamp(3)
        self.signal(C_SM)
        pre(8, 31)
        self.lds_wait(C_SM, 8)
        self.stamp(4)
        a(f'''
        v_and_b32 v22, 7, v2
        v_lshl_add_u32 v22, v22, 3, v13
        ds_read_b64 v[20:21], v22 offset:{L_SM}
        s_lshr_b32 s63, {self.lagv}, s7
        s_and_b32 s63, s63, 1
        s_waitcnt lgkmcnt(0)
        v_max_f32_dpp v22, v20, v20 row_ror:4 row_mask:0xf bank_mask:0xf
        v_max_f32_dpp v22, v22, v22 row_ror:2 row_mask:0xf bank_mask:0xf
        v_max_f32_dpp v22, v22, v22 row_ror:1 row_mask:0xf bank_mask:0xf
        v_sub_f32 v20, v20, v22
        v_mul_f32 v20, s90, v20
        v_exp_f32 v20, v20
        v_sub_f32 v32, v32, v22
        v_sub_f32 v33, v33, v22
        v_mul_f32 v21, v21, v20
        v_mul_f32 v32, s90, v32
        v_mul_f32 v33, s90, v33
        v_add_f32_dpp v21, v21, v21 row_ror:4 row_mask:0xf bank_mask:0xf
        v_exp_f32 v32, v32
        v_exp_f32 v33, v33
        v_add_f32_dpp v21, v21, v21 row_ror:2 row_mask:0xf bank_mask:0xf
        v_add_f32_dpp v21, v21, v21 row_ror:1 row_mask:0xf bank_mask:0xf
        v_rcp_f32 v21, v21
        v_mul_f32 v32, v32, v21
        v_mul_f32 v33, v33, v21
        v_cvt_pk_bf16_f32 v32, v32, v32
        v_cvt_pk_bf16_f32 v33, v33, v33
        ''')
        issued = st['V']; nwo = st['W']
        for t in range(32):
            A = 20 + 4 * (t & 1)
            for r in range(4):
                a(f'v_and_b32_dpp v{A+r}, v{32 + (t >> 4)}, v{8+r} row_newbcast:{bitrev4(t & 15)} row_mask:0xf bank_mask:0xf')
            wait_for(f'V{t}')
            a(f'v_mfma_f32_16x16x32_bf16 v[16:19], v[{A}:{A+3}], v[{KV(t % NV)}:{KV(t % NV)+3}], {"0" if t == 0 else "v[16:19]"}')
            if not self.lagv:
                while t + (WV if t < self.wv_sw else self.WV2) >= issued and issued < 32:
                    ld(issued, issued % NV, 's[52:55]', f'V{issued}'); issued += 1
            else:
                wbig = max(self.WVc, WV if t < self.wv_sw else self.WV2)
                while t + wbig >= issued and issued < 32:
                    wa = WV if issued - WV < self.wv_sw else self.WV2
                    if issued - wa > t:
                        L = a.label('L_vw')
                        a(f's_cmp_lg_u32 s63, 0\ns_cbranch_scc1 {L}')
                        wait_for(f'V{issued - wa}')
                        a(f'{L}:')
                    ld(issued, issued % NV, 's[52:55]', f'V{issued}'); issued += 1
            if t >= self.wo_start:
                for _ in range(self.wo_per):
                    if nwo < 20: ldwo(nwo); nwo += 1
            if t == self.prog_t: self.signal(C_PROG)
            if t + 32 == self.pfl_t: self.signal(C_PROGW)
            if t == self.red_direct: self.signal(C_K2)
            if t == 28:
                a(f'''
                v_lshlrev_b32 v7, 4, v2
                v_and_b32 v3, 15, v2
                v_lshrrev_b32 v4, 4, v2
                v_lshlrev_b32 v5, 5, v3
                v_lshl_add_u32 v5, v4, 4, v5          ; (8j+4s')*4
                s_lshl_b32 s85, s15, 9
                s_add_u32 s85, s85, {L_OP}
                v_add_u32 v6, s85, v5
                s_mul_i32 s85, s15, 2560
                s_add_u32 s85, s85, {L_WP}
                v_add_u32 v5, s85, v5
                s_lshl_b32 s85, s15, 6
                s_add_u32 s85, s85, {L_OP}
                v_lshl_add_u32 v4, v4, 4, s85
                v_and_b32 v35, 31, v2
                v_lshlrev_b32 v35, 4, v35
                v_lshrrev_b32 v36, 5, v2
                v_mul_u32_u24 v36, 10240, v36
                s_lshl_b32 s85, s15, 9
                s_add_u32 s86, s85, {L_WP}
                v_add3_u32 v35, v35, v36, s86
                s_mul_i32 s87, s2, 2560
                s_add_u32 s87, s87, s85
                s_add_u32 s87, s87, {WS_P}
                ''')
        assert nwo == 20
        a(f'''
        s_mov_b32 exec_hi, 0
        ds_write_b128 v6, v[16:19]
        s_mov_b64 exec, -1
        ''')
        self.stamp(5)
        self.signal(C_PV)
        self.wait2(C_PV, 8, [f'ds_read_b128 v[{40+4*w}:{43+4*w}], v4 offset:{512*w}' for w in range(8)])
        self.sum_partials(40, [40 + 4 * i for i in range(8)])
        for r in range(4): a(f'v_cvt_pk_bf16_f32 v{40+r}, v{40+r}, v{40+r}')
        a('s_waitcnt vmcnt(0)')
        self.stamp(6)
        def wr(c): a(f's_mov_b32 exec_hi, 0\nds_write_b128 v5, v[{60+4*c}:{63+4*c}] offset:{512*c}\ns_mov_b32 exec_hi, -1')
        for c in range(5):
            for tp in range(4):
                if c == 0:
                    for r in range(4): a(f'v_and_b32 v{44+4*tp+r}, v{40+tp}, v{8+r}')
                d = 60 + 4 * c; b = KV(NV + 5 * tp + c)
                a(f'v_mfma_f32_16x16x32_bf16 v[{d}:{d+3}], v[{44+4*tp}:{47+4*tp}], v[{b}:{b+3}], {"0" if tp == 0 else "v[%d:%d]" % (d, d+3)}')
            if c >= 2: wr(c - 2)
        wr(3); wr(4)
        self.signal(C_WO)
        a('s_cmp_ge_u32 s15, 5\ns_cbranch_scc1 L_stream_end')
        self.wait2(C_WO, 8, [f'ds_read_b128 v[{40+4*w}:{43+4*w}], v35 offset:{2560*w}' for w in range(4)])
        self.stamp(7)
        self.sum_partials(40, [40, 44, 48, 52])
        for i in range(4): a(f'v_mov_b32 v{44+i}, v{40+i}')
        for i in range(4): a(f'v_permlane32_swap_b32 v{40+i}, v{44+i}')
        a('v_pk_add_f32 v[40:41], v[40:41], v[44:45]\nv_pk_add_f32 v[42:43], v[42:43], v[46:47]')
        self.sanitize(range(40, 44))
        a('''
        s_mov_b32 exec_hi, 0
        buffer_store_dwordx4 v[40:43], v7, s[44:47], s87 offen sc1
        s_mov_b64 exec, -1
        ''')
        self.signal(C_DONE)
        a('L_stream_end:')
        self.stamp(10)
        self.stamp_flush()
        self.diag_end()
        a('L_end:\ns_endpgm\nL_code_end:')

    def build(self):
        self.prologue(); self.control(); self.stream()
        kn = NAME + '_kernel'
        body = '\n'.join(fix_hazards(self.a.l)) + '\n'
        hdr = open('cdna_kernels/' + NAME + '.s.ref').read().split('; Override launch')[0]
        return hdr + header([f'; @launch grid=(256,1,1) block=(768,1,1) lds={LDS_SIZE}']) + kernel_start(kn) + body + '.section .rodata,"a"\n' + descriptor(kn, vgpr=168, sgpr=102, accum=168)

if __name__ == '__main__':
    import argparse
    from collections import Counter
    rs = [role_of(w) for w in range(256)]
    for r, n in ((R_G1, 20), (R_DOWN, 40), (R_FFN, 54), (R_Q, 64), (R_MOD, 40), (R_RED, 8)):
        assert sorted(i for rr, i in rs if rr == r) == list(range(n)), r
    ap = argparse.ArgumentParser()
    ap.add_argument('-o', default='k.s'); ap.add_argument('--stamp', action='store_true')
    for p, d in (('WK', 3), ('WV', 3), ('rot', 3), ('rotw', 1), ('qpos', 25), ('prog_t', 22), ('progw_t', -1), ('WD', 20), ('wo_start', 0), ('wo_per', 1), ('sdelay', 0), ('WK0', 2), ('wk_sw', 16), ('k2_t', -1), ('WV2', 6), ('wv_sw', 16), ('hold', 1), ('pf', 1), ('WKL', 4), ('wkl_sw', 6), ('lagmask', 0x32), ('pfb', 1), ('cpf', 1), ('diag_until', 0), ('diag_xcc', 0), ('diag_role', -1), ('diag_cls', -1), ('diag_idx', -1), ('nEf', 0), ('nEd', 0), ('late', 1), ('pfl_t', 8), ('psleep', 0), ('light', 0), ('hdelay', 0), ('rk', -1), ('lagv', 0), ('h1probe', 0), ('rth1', 128), ('rth2', 208), ('WVa', 2), ('WVb', 4), ('WVc', 8), ('trig', 0), ('trsh', 0), ('red_direct', 27), ('WDM', 20), ('k2_n', 8)):
        ap.add_argument('--' + p, type=int, default=d)
    ap.add_argument('--pre', default='V,V,V,V,V,V,V,V,W')
    ap.add_argument('--ntp', default='kv')
    args = ap.parse_args()
    kw = dict(vars(args)); o = kw.pop('o')
    open(o, 'w').write(G(**kw).build())
```

```python
import sys
from asmlib import *
import gen as G1mod
from gen import bitrev4, LOG2E, SPIN_LIMIT

WS_E = 0
WS_H1 = 0x1000
WS_Q = 0x8000
SB2 = 0x28000
WS_H2 = SB2; WS_X1 = SB2 + 0x3000; WS_HID = SB2 + 0x6000; WS_MODO = SB2 + 0xD000
WS_P = 0x50000
WS_STAMP = 0x100000
WS_SIZE = 0x200000
LW = 0; L_OP = 0x14000; L_WP = 0x15000; LM = 0x1A000; LDS_SIZE = 0x1B000
C_A, C_SM, C_PV, C_WO, C_QOK, C_PROG, C_PROGW, C_GO, C_DONE, C_K2, C_ACT, C_PF, C_PF2 = [4 * i for i in range(13)]
L_STAT = 0x40; L_SM = 0x100; L_RANK = 0x3c
L_ACT = L_WP; ACTS = 1344
R_G1, R_DOWN, R_FFN, R_Q, R_MOD, R_RED = 1, 2, 3, 4, 5, 6

def role_of(wg):
    x = wg & 7; u = wg >> 3
    if u < 2: return R_G1, 2 * x + u
    if u < 6:
        k = u - 2
        e = EXTRA.get((x, k >> 1))
        if e is None: return 0, 0
        return e[0], e[0] * 16 + 2 * e[1] + (k & 1)
    if u < 14: return R_Q, (x + 8 * ((u - 6) >> 1)) * 2 + ((u - 6) & 1)
    if u < 19: return R_MOD, 5 * x + u - 14
    if u < 25: return R_FFN, 6 * x + u - 19
    if u < 29: return R_DOWN, 4 * x + u - 25
    if u == 29: return R_RED, x
    return 0, 0
EXTRA = {(0, 0): (R_DOWN, 0), (0, 1): (R_DOWN, 1), (2, 0): (R_DOWN, 2), (2, 1): (R_DOWN, 3),
         (4, 0): (R_FFN, 0), (4, 1): (R_FFN, 1), (6, 0): (R_G1, 0), (6, 1): (R_FFN, 2), (1, 0): (R_G1, 1)}

class G(G1mod.G):
    def __init__(self, stamp=False, WK=3, WV=3, rot=3, rotw=1, qpos=25, prog_t=22, progw_t=-1, WD=4, wo_start=0, wo_per=1, sdelay=0, WK0=2, wk_sw=16, k2_t=6, WV2=6, wv_sw=16, hold=1, pf=1, WKL=6, wkl_sw=6, lagmask=0x72, diag_xcc=0, diag_role=-1, diag_until=0, diag_cls=-1, diag_idx=-1, ntp='kv', cpf=1, pfb=1, nEf=8, nEd=6, late=1, pfl_t=8, light=0, psleep=0, h1probe=1, lagv=0, rk=-1, rth1=128, rth2=208, WVa=2, WVb=4, WVc=8, hdelay=0, trig=0, trsh=0, red_direct=27, WDM=2, k2_n=8, pre='V,V,VV,VW,VWW,VWW,VVW,VWW,VVWW'):
        self.sdelay = sdelay; self.WK0 = WK0; self.wk_sw = wk_sw; self.k2_t = k2_t; self.WV2 = WV2; self.wv_sw = wv_sw; self.hold = hold; self.pf = pf; self.late = late; self.pfl_t = pfl_t; self.psleep = psleep; self.light = light; self.light_set = (0, 11, 5) if light == 1 else (0, 11); self.hdelay = hdelay; self.rk = rk; self.lagv = lagv; self.h1probe = h1probe; self.rth1 = rth1; self.rth2 = rth2; self.WVa = WVa; self.WVb = WVb; self.WVc = WVc; self.trig = trig; self.trsh = trsh; self.red_direct = red_direct; self.pfb = pfb; self.cpf = cpf; self.ntp = ntp; self.cur_nt = 'nt'; self.diag_until = diag_until; self.diag_xcc = diag_xcc; self.diag_role = diag_role; self.diag_cls = diag_cls; self.diag_idx = diag_idx; self.cur_cls = -1; self.nEf = nEf; self.nEd = nEd; self.WKL = WKL; self.wkl_sw = wkl_sw; self.lagmask = lagmask; self.WDM = WDM; self.k2_n = k2_n; self.pre = pre.split(',')
        self.a = Asm(); self.stamp_on = stamp
        self.WK = WK; self.WV = WV; self.rot = rot; self.rotw = rotw; self.qpos = qpos; self.prog_t = prog_t
        self.progw_t = progw_t; self.WD = WD; self.wo_start = wo_start; self.wo_per = wo_per

    def stamp(self, i):
        if self.diag_until and i == self.diag_idx and (self.cur_cls == self.diag_cls or (self.cur_cls == 99 and self.diag_cls > 0)):
            if self.cur_cls == 99:
                L = self.a.label('L_ds')
                self.a(f's_cmp_lg_u32 s7, {self.diag_cls}\ns_cbranch_scc1 {L}\ns_memrealtime s[100:101]\ns_waitcnt lgkmcnt(0)\n{L}:')
            elif self.diag_role >= 0:
                L = self.a.label('L_ds')
                self.a(f's_cmp_lg_u32 s7, {self.diag_role}\ns_cbranch_scc1 {L}\ns_memrealtime s[100:101]\ns_waitcnt lgkmcnt(0)\n{L}:')
            else:
                self.a('s_memrealtime s[100:101]\ns_waitcnt lgkmcnt(0)')
        if self.light and i not in self.light_set: return
        super().stamp(i)

    def diag_end(self):
        if self.diag_until:
            L = self.a.label('L_diag')
            if self.diag_xcc:
                self.a('s_getreg_b32 s97, hwreg(HW_REG_XCC_ID)\ns_sub_u32 s97, s97, s2\ns_and_b32 s97, s97, 7')
                if self.diag_xcc == 2: self.a('s_sub_u32 s97, 7, s97')
                self.a('s_mul_i32 s97, s97, 400\ns_add_u32 s100, s100, s97')
            self.a(f'{L}:\ns_sleep 1\ns_memrealtime s[98:99]\ns_waitcnt lgkmcnt(0)\ns_sub_u32 s98, s98, s100\ns_cmp_lt_i32 s98, {self.diag_until*100}\ns_cbranch_scc1 {L}')

    def ln_stats1(self, U, T, s_m, s_rs):
        a = self.a
        a(f'v_readlane_b32 s86, v{U}, 0')
        for i in range(5):
            a(f'v_pk_add_f32 v[{T+4}:{T+5}], v[{U+2*i}:{U+2*i+1}], s[86:87] op_sel_hi:[1,0] neg_lo:[0,1] neg_hi:[0,1]')
            if i == 0:
                a(f'v_pk_mul_f32 v[{T+2}:{T+3}], v[{T+4}:{T+5}], v[{T+4}:{T+5}]')
                a(f'v_add_f32 v{T}, v{T+4}, v{T+5}')
            else:
                a(f'v_pk_fma_f32 v[{T+2}:{T+3}], v[{T+4}:{T+5}], v[{T+4}:{T+5}], v[{T+2}:{T+3}]')
                a(f'v_add_f32 v{T+1}, v{T+4}, v{T+5}\nv_add_f32 v{T}, v{T}, v{T+1}')
        a(f'v_add_f32 v{T+1}, v{T+2}, v{T+3}')
        for m in ('row_ror:8 row_mask:0xf', 'row_ror:4 row_mask:0xf', 'row_ror:2 row_mask:0xf', 'row_ror:1 row_mask:0xf', 'row_bcast:15 row_mask:0xa', 'row_bcast:31 row_mask:0xc'):
            for v in (T, T + 1): a(f'v_add_f32_dpp v{v}, v{v}, v{v} {m} bank_mask:0xf')
        a(f'''
        v_mul_f32 v{T}, 0x3acccccd, v{T}
        v_mul_f32 v{T+1}, 0x3acccccd, v{T+1}
        v_fma_f32 v{T+1}, -v{T}, v{T}, v{T+1}
        v_add_f32 v{T}, s86, v{T}
        v_max_f32 v{T+1}, 0, v{T+1}
        v_cvt_pk_bf16_f32 v{T}, v{T}, v{T+1}
        v_and_b32 v{T+1}, s84, v{T}
        v_lshlrev_b32 v{T}, 16, v{T}
        v_add_f32 v{T+1}, 0x3727c5ac, v{T+1}
        v_readlane_b32 s{s_m}, v{T}, 63
        ''')
        self.bf1(T + 1)
        a(f'v_sqrt_f32 v{T+1}, v{T+1}')
        self.bf1(T + 1)
        a(f'v_rcp_f32 v{T+1}, v{T+1}')
        a(f's_nop 0\nv_readlane_b32 s{s_rs}, v{T+1}, 63')

    def signal(self, cnt):
        self.a(f'''
        s_mov_b64 exec, 1
        v_mov_b32 v14, 1
        ds_add_u32 v13, v14 offset:{cnt}
        s_mov_b64 exec, -1
        ''')

    def arrive2(self, cnt, last, skip, reads):
        a = self.a
        a(f'''
        s_mov_b64 exec, 1
        v_mov_b32 v14, 1
        ds_add_rtn_u32 v14, v13, v14 offset:{cnt}
        s_mov_b64 exec, -1
        ''')
        for r in reads: a(r)
        a(f'''
        s_waitcnt lgkmcnt({min(len(reads), 15)})
        v_readfirstlane_b32 s88, v14
        s_cmp_lg_u32 s88, {last}
        s_cbranch_scc1 {skip}
        ''')

    def wait2(self, cnt, target, reads):
        a = self.a
        L = a.label('L_w2'); D = a.label('L_w2d')
        a(f's_mov_b32 s89, {SPIN_LIMIT * 16}\n{L}:\nds_read_b32 v14, v13 offset:{cnt}')
        for r in reads: a(r)
        a(f'''
        s_waitcnt lgkmcnt({len(reads)})
        v_readfirstlane_b32 s88, v14
        s_cmp_ge_u32 s88, {target}
        s_cbranch_scc1 {D}
        s_sub_u32 s89, s89, 1
        s_cbranch_scc0 {L}
        {D}:
        s_waitcnt lgkmcnt(0)
        ''')

    def tag_from(self, v):
        self.a(f'''
        s_mov_b32 s85, 1664525
        v_mul_lo_u32 v{v}, s85, v{v}
        v_add_u32 v{v}, 1013904223, v{v}
        v_readfirstlane_b32 s94, v{v}
        ''')

    def poll(self, name, loads, check, sleep, tagged=False, lanemask=False):
        a = self.a
        a(f's_mov_b32 s89, {SPIN_LIMIT}\nL_{name}_poll:')
        for l in loads: a(l)
        a('s_waitcnt vmcnt(0)')
        if tagged:
            for i in range(0, len(check), 2):
                a(f'v_xor_b32 v36, s94, v{check[i]}\nv_xor_b32 v37, s94, v{check[i+1]}')
                a('v_or_b32 v38, v36, v37' if i == 0 else 'v_or3_b32 v38, v38, v36, v37')
            a('v_cmp_ne_u32 vcc, 0, v38')
        else:
            c = list(check)
            if len(c) % 2 == 0:
                a(f'v_max_u32 v38, v{c[0]}, v{c[1]}'); c = c[2:]
            else:
                a(f'v_max3_u32 v38, v{c[0]}, v{c[1]}, v{c[2]}'); c = c[3:]
            for i in range(0, len(c), 2): a(f'v_max3_u32 v38, v38, v{c[i]}, v{c[i+1]}')
            a('v_cmp_eq_u32 vcc, -1, v38')
        a(f'''
        s_cbranch_vccz L_{name}_ok
        {"s_mov_b64 exec, vcc" if lanemask else ""}
        {"s_sleep %d" % sleep if sleep else ""}
        s_sub_u32 s89, s89, 1
        s_cbranch_scc0 L_{name}_poll
        L_{name}_ok:
        {"s_mov_b64 exec, -1" if lanemask else ""}
        ''')

    def prologue(self):
        a = self.a
        a(f'''
        s_load_dwordx16 s[16:31], s[0:1], 0
        {'s_memrealtime s[100:101]' if self.diag_until else ''}
        {'s_memrealtime s[98:99]' if self.stamp_on else ''}
        v_lshrrev_b32 v1, 6, v0
        s_getpc_b64 s[86:87]
        L_pc0:
        v_readfirstlane_b32 s3, v1
        v_lshlrev_b32 v3, 7, v0
        s_cmpk_ge_u32 s2, 256
        s_cbranch_scc1 L_end
        v_min_u32 v3, L_code_end-L_pc0-4, v3
        v_and_b32 v2, 63, v0
        {'global_load_dword v161, v3, s[86:87]' if self.cpf else ''}
        s_load_dwordx8 s[32:39], s[0:1], 64
        s_load_dwordx4 s[40:43], s[0:1], 96
        v_lshlrev_b32 v7, 4, v2          ; lane*16
        s_cmp_lt_u32 s3, 4
        s_cbranch_scc1 L_control
        ''')

    def common2(self):
        a = self.a
        a(f'''
        v_mov_b32 v13, {LM}
        s_mov_b32 s84, 0xffff0000
        v_mov_b32 v15, 0
        s_lshr_b32 s13, s2, 5            ; b
        s_and_b32 s14, s2, 31            ; h
        ''')

    def decode(self):
        a = self.a
        ext = 0
        for (x, kh), (r, idx) in EXTRA.items(): ext |= (r | idx << 2) << (4 * (2 * x + kh))
        a(f'''
        s_and_b32 s4, s2, 7              ; x
        s_lshr_b32 s5, s2, 3             ; u
        s_mov_b32 s7, 0
        s_mov_b32 s8, 0
        ''')
        for lo, hi, role, mul in ((0, 2, R_G1, 2), (14, 19, R_MOD, 5), (19, 25, R_FFN, 6), (25, 29, R_DOWN, 4), (29, 30, R_RED, 1)):
            a(f'''
            s_sub_u32 s9, s5, {lo}
            s_mul_i32 s10, s4, {mul}
            s_add_u32 s10, s10, s9
            s_cmp_lt_u32 s9, {hi-lo}
            s_cselect_b32 s7, {role}, s7
            s_cselect_b32 s8, s10, s8
            ''')
        a(f'''
        s_sub_u32 s9, s5, 6              ; Q: (x + 8*(k>>1))*2 + (k&1)
        s_lshr_b32 s10, s9, 1
        s_lshl_b32 s10, s10, 3
        s_add_u32 s10, s10, s4
        s_lshl_b32 s10, s10, 1
        s_and_b32 s11, s9, 1
        s_add_u32 s10, s10, s11
        s_cmp_lt_u32 s9, 8
        s_cselect_b32 s7, {R_Q}, s7
        s_cselect_b32 s8, s10, s8
        s_sub_u32 s9, s5, 2              ; extras
        s_lshr_b32 s10, s9, 1
        s_and_b32 s10, s10, 1
        s_lshl_b32 s11, s4, 1
        s_add_u32 s10, s10, s11
        s_lshl_b32 s10, s10, 2
        s_mov_b32 s86, {ext & 0xffffffff}
        s_mov_b32 s87, {ext >> 32}
        s_lshr_b64 s[86:87], s[86:87], s10
        s_and_b32 s10, s86, 3            ; role
        s_bfe_u32 s11, s86, 0x20002      ; idx
        s_lshl_b32 s11, s11, 1
        s_lshl_b32 s12, s10, 4
        s_add_u32 s11, s11, s12
        s_and_b32 s12, s9, 1
        s_add_u32 s11, s11, s12
        s_cmp_lt_u32 s9, 4
        s_cselect_b32 s7, s10, s7
        s_cselect_b32 s8, s11, s8
        s_sub_u32 s9, s5, 19
        s_cmp_lt_u32 s9, 10
        s_cselect_b32 s6, s9, 99
        s_sub_u32 s10, s5, 20
        s_cmp_ge_u32 s5, 30
        s_cselect_b32 s6, s10, s6
        s_sub_u32 s9, s5, 2
        s_add_u32 s10, s9, 12
        s_cmp_lt_u32 s9, 4
        s_cselect_b32 s6, s10, s6
        ''')

    def nt(self, c): return 'nt' if c in self.ntp else ''
    def pfld(self, v, srd, so): self.a(f'buffer_load_dword v160, v{v}, {srd}, {so} offen {self.cur_nt}')

    def prefetch(self):
        a = self.a
        self.cur_nt = self.nt('m')
        self.srd(64, 36, 640 * 7680)
        a(f'''
        s_mov_b32 s90, s6
        s_cmp_ge_u32 s90, 16
        s_cbranch_scc1 L_pf_done
        s_lshl_b32 s92, s4, 7
        s_cmp_lt_u32 s3, 2
        s_cbranch_scc1 L_pfA
        s_cmp_eq_u32 s4, 6
        s_cselect_b32 s92, 1024, 0
        s_cmp_eq_u32 s4, 1
        s_cselect_b32 s92, 1152, s92
        s_cmp_eq_u32 s92, 0
        s_cbranch_scc1 L_pf_done
        L_pfA:
        s_lshl_b32 s90, s90, 1
        s_and_b32 s91, s3, 1
        s_add_u32 s90, s90, s91
        s_mul_i32 s91, s90, {20*7680}
        s_add_u32 s92, s92, s91
        v_lshrrev_b32 v16, 1, v2
        v_min_u32 v16, 19, v16
        v_mul_u32_u24 v16, 7680, v16
        v_and_b32 v17, 1, v2
        v_mul_u32_u24 v17, 1280, v17
        v_add_u32 v16, v16, v17
        ''')
        self.pfld(16, 's[64:67]', 's92')
        a('L_pf_done:')

    def prefetch_b(self, sfx):
        a = self.a
        a(f'''
        s_cmp_lt_u32 s3, 2
        s_cbranch_scc1 L_pb_done{sfx}
        s_mul_i32 s90, s5, 20
        v_lshrrev_b32 v16, 3, v2
        s_cmp_eq_u32 s3, 3
        s_cbranch_scc1 L_pb3{sfx}
        ''')
        self.cur_nt = self.nt('q')
        self.srd(64, 22, 640 * 8192)
        a(f'''
        v_bfe_u32 v17, v2, 1, 2
        v_lshlrev_b32 v17, 11, v17
        v_and_b32 v18, 1, v2
        v_lshl_add_u32 v17, v18, 7, v17
        v_lshl_add_u32 v18, v16, 13, v17
        v_and_b32 v16, 3, v16
        v_lshl_add_u32 v19, v16, 13, v17
        s_lshl_b32 s91, s90, 13
        s_lshl_b32 s92, s4, 8
        s_add_u32 s92, s92, s91
        ''')
        self.pfld(18, 's[64:67]', 's92'); a(f's_add_u32 s92, s92, {8*8192}')
        self.pfld(18, 's[64:67]', 's92'); a(f's_add_u32 s92, s92, {8*8192}')
        self.pfld(19, 's[64:67]', 's92')
        if sfx == '':
            a('s_waitcnt vmcnt(0)')
            self.signal(C_PF)
        a(f's_branch L_pb_done{sfx}\nL_pb3{sfx}:')
        self.cur_nt = self.nt('m')
        self.srd(64, 36, 640 * 7680)
        a(f'''
        v_and_b32 v17, 7, v2
        v_min_u32 v17, 4, v17
        v_lshlrev_b32 v17, 7, v17
        v_mul_u32_u24 v18, 7680, v16
        v_add_u32 v18, v18, v17
        v_and_b32 v16, 3, v16
        v_mul_u32_u24 v19, 7680, v16
        v_add_u32 v19, v19, v17
        s_mul_i32 s91, s90, 7680
        s_mul_i32 s92, s4, 640
        s_add_u32 s92, s92, 2560
        s_add_u32 s92, s92, s91
        ''')
        if sfx == '': self.lds_wait(C_PF, 1, sleep=2)
        self.pfld(18, 's[64:67]', 's92'); a(f's_add_u32 s92, s92, {8*7680}')
        self.pfld(18, 's[64:67]', 's92'); a(f's_add_u32 s92, s92, {8*7680}')
        self.pfld(19, 's[64:67]', 's92')
        if sfx == '':
            a(f's_cmp_lg_u32 s7, {R_MOD}\ns_cbranch_scc1 L_pb_done{sfx}\ns_waitcnt vmcnt(0)')
            self.signal(C_PF2)
        a(f'L_pb_done{sfx}:')

    def prefetch_late(self, sfx):
        a = self.a
        self.cur_nt = self.nt('f')
        a(f's_cmp_ge_u32 s6, 16\ns_cbranch_scc1 L_pl_done{sfx}')
        a(f's_cmp_lg_u32 s3, 0\ns_cbranch_scc1 L_pl1{sfx}')
        self.srd(68, 32, 1728 * 1280)
        a(f'''
        v_min_u32 v16, 53, v2
        v_mul_u32_u24 v16, 1280, v16
        s_mul_i32 s91, s6, {108*1280}
        s_lshl_b32 s92, s4, 7
        s_add_u32 s92, s92, s91
        s_lshl_b32 s93, s4, 6
        s_add_u32 s93, s93, 1024
        s_add_u32 s93, s93, s91
        ''')
        self.lds_wait(C_PROGW, 1, sleep=4)
        self.pfld(16, 's[68:71]', 's92')
        a(f's_add_u32 s92, s92, {54*1280}\ns_waitcnt vmcnt(0)')
        self.pfld(16, 's[68:71]', 's92')
        a(f'''
        s_and_b32 s92, s4, 5
        s_cmp_lg_u32 s92, 0
        s_cbranch_scc1 L_pl_done{sfx}
        s_waitcnt vmcnt(0)
        ''')
        self.pfld(16, 's[68:71]', 's93')
        a(f's_add_u32 s93, s93, {54*1280}\ns_waitcnt vmcnt(0)')
        self.pfld(16, 's[68:71]', 's93')
        a(f's_branch L_pl_done{sfx}\nL_pl1{sfx}:')
        self.srd(64, 28, 640 * 3456); self.srd(68, 30, 640 * 3456)
        a(f'''
        s_mul_i32 s92, s4, 3
        s_mov_b32 s91, s92
        s_mov_b32 s93, s92
        s_cmp_eq_u32 s4, 4
        s_cselect_b32 s91, 24, s91
        s_cselect_b32 s93, 25, s93
        s_cmp_eq_u32 s4, 6
        s_cselect_b32 s91, 26, s91
        v_and_b32 v17, 7, v2
        v_min_u32 v18, 2, v17
        v_add_u32 v18, s92, v18
        v_mov_b32 v19, s91
        v_cmp_eq_u32 vcc, 3, v17
        v_cndmask_b32 v18, v18, v19, vcc
        v_mov_b32 v19, s93
        v_cmp_eq_u32 vcc, 4, v17
        v_cndmask_b32 v18, v18, v19, vcc
        v_lshlrev_b32 v17, 7, v18
        v_lshrrev_b32 v16, 3, v2
        v_mul_u32_u24 v18, 3456, v16
        v_add_u32 v18, v18, v17
        s_mul_i32 s92, s6, 5
        s_add_u32 s92, s92, s3
        s_sub_u32 s92, s92, 1
        s_mul_i32 s92, s92, {8*3456}
        ''')
        self.lds_wait(C_PROGW, 1, sleep=4)
        self.pfld(18, 's[64:67]', 's92'); self.pfld(18, 's[68:71]', 's92')
        a(f's_cmp_eq_u32 s3, 3\ns_cbranch_scc1 L_pl_done{sfx}\ns_add_u32 s92, s92, {24*3456}\ns_waitcnt vmcnt(0)')
        self.pfld(18, 's[64:67]', 's92'); self.pfld(18, 's[68:71]', 's92')
        a(f'L_pl_done{sfx}:')

    def dma640_setup(self):
        a = self.a
        a(f'''
        v_lshrrev_b32 v16, 3, v2
        s_mul_i32 s85, s3, 160
        v_add_u32 v16, s85, v16
        v_mul_lo_u32 v16, s52, v16
        v_and_b32 v17, 3, v2
        v_lshl_add_u32 v16, v17, 4, v16
        v_mov_b32 v17, 0
        v_mov_b32 v18, s48
        v_mov_b32 v19, s49
        v_mov_b32 v20, s50
        v_mov_b32 v21, s51
        v_and_b32 v22, 4, v2
        v_cmp_ne_u32 vcc, 0, v22
        v_cndmask_b32 v18, v18, v20, vcc
        v_cndmask_b32 v19, v19, v21, vcc
        v_lshl_add_u64 v[4:5], v[16:17], 0, v[18:19]
        s_lshl_b32 s54, s52, 3
        s_mov_b32 s55, 0
        ''')
    def dma640_issue(self, lo, hi, WD=99):
        a = self.a
        for n in range(lo, hi):
            a(f's_add_u32 m0, s87, {LW + 1024*n}')
            if n >= WD: a(f's_waitcnt vmcnt({WD-1})')
            a(f'global_load_lds_dwordx4 v[4:5], off {self.cur_nt}')
            if n < 19: a('v_lshl_add_u64 v[4:5], v[4:5], 0, s[54:55]')
    def dma640(self, WD):
        self.dma640_setup(); self.dma640_issue(0, 20, WD)

    def wfrags640(self, younger=None):
        a = self.a
        for n in range(5):
            if younger is not None: a(f's_waitcnt vmcnt({younger + 4 * (4 - n)})')
            for T in range(4):
                b = 40 + 16 * n + 4 * T
                a(f'ds_read_b64_tr_b16 v[{b}:{b+1}], v9 offset:{LW + 4096*n + 32*T}')
                a(f'ds_read_b64_tr_b16 v[{b+2}:{b+3}], v9 offset:{LW + 4096*n + 32*T + 512}')
            a('s_waitcnt lgkmcnt(0)')

    def mfma640(self, skip, extra=()):
        a = self.a
        for T in range(4):
            d = 16 + 4 * T
            for n in range(5):
                b = 40 + 16 * n + 4 * T
                a(f'v_mfma_f32_16x16x32_bf16 v[{d}:{d+3}], v[{b}:{b+3}], v[{120+4*n}:{123+4*n}], {"0" if n == 0 else "v[%d:%d]" % (d, d+3)}')
            if T >= 2: a(f'ds_write_b128 v10, v[{16+4*(T-2)}:{19+4*(T-2)}] offset:{LW + 1024*(T-2)}')
        for T in (2, 3):
            a(f'ds_write_b128 v10, v[{16+4*T}:{19+4*T}] offset:{LW + 1024*T}')
        reads = []
        for w in range(4):
            reads.append(f'ds_read_b128 v[{40+4*w}:{43+4*w}], v11 offset:{LW + 20480*w}')
            reads.append(f'ds_read_b128 v[{56+4*w}:{59+4*w}], v11 offset:{LW + 20480*w + 2048}')
        self.arrive2(C_A, 3, skip, reads + list(extra))

    def red640(self):
        self.a('s_waitcnt lgkmcnt(0)')
        self.sum_partials(40, [40, 44, 48, 52]); self.sum_partials(56, [56, 60, 64, 68])

    def silu(self, ns=range(5)):
        a = self.a
        a(f's_mov_b32 s85, {LOG2E | 0x80000000}')
        for n in ns:
            b = 120 + 4 * n
            for i in range(4): self.unpack(16 + 2 * i, b + i)
            for i in range(8): a(f'v_mul_f32 v{24+i}, s85, v{16+i}')
            for i in range(8): a(f'v_exp_f32 v{24+i}, v{24+i}')
            for i in range(8): a(f'v_add_f32 v{24+i}, 1.0, v{24+i}')
            for i in range(8): a(f'v_rcp_f32 v{24+i}, v{24+i}')
            for i in range(8): a(f'v_mul_f32 v{16+i}, v{16+i}, v{24+i}')
            for i in range(4): a(f'v_cvt_pk_bf16_f32 v{b+i}, v{16+2*i}, v{17+2*i}')

    def add64(self, d, base, off):
        self.a(f's_add_u32 s{d}, s{base}, {off}\ns_addc_u32 s{d+1}, s{base+1}, 0')

    def control(self):
        a = self.a
        a('L_control:\ns_setprio 3')
        self.common2()
        a('v_lshl_add_u32 v14, v2, 2, v13\nds_write_b32 v14, v15')
        self.decode()
        a('s_waitcnt lgkmcnt(0)\ns_barrier')
        self.srd(44, 42, WS_SIZE)
        if self.stamp_on: a('v_writelane_b32 v15, s98, 13')
        self.cur_cls = -1
        self.stamp(0)
        self.cur_cls = 99
        if self.pf: self.prefetch()
        if self.pfb:
            a(f's_cmp_eq_u32 s7, {R_G1}\ns_cbranch_scc1 L_pb_done')
            self.prefetch_b('')
        a(f'''
        v_mov_b32 v3, 0
        buffer_load_dword v167, v3, s[44:47], 0 offen sc1
        s_mul_i32 s87, s3, 20480
        v_lshrrev_b32 v16, 4, v2         ; s
        v_bfe_u32 v17, v2, 2, 2          ; r4
        v_and_b32 v18, 3, v2             ; c
        v_lshl_add_u32 v19, v16, 3, v17  ; 8s+r4
        v_lshlrev_b32 v9, 7, v19
        v_lshl_add_u32 v9, v18, 3, v9
        v_add_u32 v9, s87, v9
        v_add_u32 v10, s87, v7
        v_and_b32 v17, 7, v2             ; b
        v_bfe_u32 v18, v2, 3, 1          ; t
        v_lshlrev_b32 v11, 8, v16
        v_lshl_add_u32 v11, v17, 4, v11
        v_lshl_add_u32 v11, v18, 10, v11
        v_mul_u32_u24 v19, 1280, v17
        v_lshl_add_u32 v6, v16, 4, v19
        v_lshlrev_b32 v8, 5, v18
        v_lshl_add_u32 v8, v16, 3, v8    ; (16t+4s')*2 bytes
        v_lshlrev_b32 v12, 2, v2         ; lane*4
        s_cmp_eq_u32 s7, {R_Q}
        s_cbranch_scc1 L_role_q
        s_cmp_eq_u32 s7, 0
        s_cbranch_scc1 L_share
        s_cmp_eq_u32 s7, {R_FFN}
        s_cbranch_scc1 L_share
        s_cmp_eq_u32 s7, {R_DOWN}
        s_cbranch_scc1 L_share
        s_cmp_eq_u32 s7, {R_RED}
        s_cbranch_scc1 L_share
        ''')
        self.cur_nt = self.nt('m')
        a(f'''
        s_movk_i32 s52, 7680
        s_cmp_eq_u32 s7, {R_G1}
        s_cbranch_scc1 L_role_g1
        ''')
        self.srd(56, 34, 10240)
        a('s_mul_i32 s85, s3, 320')
        for n in range(5):
            a(f'buffer_load_dwordx4 v[{120+4*n}:{123+4*n}], v6, s[56:59], s85 offen offset:{64*n}')
        a(f'''
        s_lshl_b32 s9, s8, 7
        s_add_u32 s9, s9, 2560
        s_add_u32 s48, s36, s9
        s_addc_u32 s49, s37, 0
        s_add_u32 s50, s48, 64
        s_addc_u32 s51, s49, 0
        s_waitcnt vmcnt(0)
        ''')
        self.silu()
        if self.pfb: self.lds_wait(C_PF2, 1, sleep=2)
        self.dma640(self.WDM)
        a('s_waitcnt vmcnt(0)')
        self.stamp(2)
        self.wfrags640()
        self.mfma640('L_ctrl_end')
        a(f'''
        v_and_b32 v22, 7, v2
        v_mul_u32_u24 v22, 5120, v22
        v_add_u32 v22, v22, v8
        s_lshl_b32 s90, s8, 7
        s_add_u32 s90, s90, {WS_MODO}
        ''')
        self.red640()
        self.pack4(24, 40); self.pack4(26, 56)
        self.sanitize([24, 25, 26, 27])
        self.lds_wait(C_QOK, 1, sleep=8)
        a(f'''
        buffer_store_dwordx2 v[24:25], v22, s[44:47], s90 offen sc1
        buffer_store_dwordx2 v[26:27], v22, s[44:47], s90 offen offset:64 sc1
        s_branch L_ctrl_end
        L_role_g1:
        s_lshl_b32 s9, s8, 6
        s_add_u32 s48, s36, s9
        s_addc_u32 s49, s37, 0
        s_add_u32 s50, s48, 1280
        s_addc_u32 s51, s49, 0
        v_add_u32 v34, v19, v8
        ''')
        self.stamp(6)
        self.dma640(99)
        self.srd(60, 16, 10240)
        a(f'''
        buffer_load_dwordx2 v[150:151], v34, s[60:63], s9 offen
        s_lshl_b32 s85, s8, 2
        s_add_u32 s85, s85, s3
        s_lshl_b32 s85, s85, 11
        s_add_u32 s85, s85, {SB2}
        v_mov_b32 v152, -1
        v_mov_b32 v153, -1
        v_mov_b32 v154, -1
        v_mov_b32 v155, -1
        buffer_store_dwordx4 v[152:155], v7, s[44:47], s85 offen sc1
        buffer_store_dwordx4 v[152:155], v7, s[44:47], s85 offen offset:1024 sc1
        v_and_b32 v16, 7, v2
        v_mul_u32_u24 v16, {ACTS}, v16
        v_lshrrev_b32 v17, 4, v2
        v_lshl_add_u32 v16, v17, 4, v16
        s_mul_i32 s85, s3, 320
        s_add_u32 s85, s85, {L_ACT}
        v_add_u32 v35, s85, v16
        ''')
        self.signal(C_GO)
        self.stamp(1)
        self.lds_wait(C_ACT, 8)
        for n in range(5): a(f'ds_read_b128 v[{120+4*n}:{123+4*n}], v35 offset:{64*n}')
        self.stamp(3)
        self.wfrags640(younger=3)
        self.tag_from(167)
        a('s_waitcnt vmcnt(0)')
        self.stamp(2)
        self.mfma640('L_ctrl_end')
        a(f'''
        v_and_b32 v22, 7, v2
        v_lshl_add_u32 v23, v22, 3, v13
        ds_read_b64 v[36:37], v23 offset:{L_STAT}
        ''')
        self.red640()
        self.pack4(24, 40); self.pack4(26, 56)
        self.unpack4(56, 26)
        a('v_pk_add_f32 v[56:57], v[56:57], 1.0 op_sel_hi:[1,0]\nv_pk_add_f32 v[58:59], v[58:59], 1.0 op_sel_hi:[1,0]')
        self.round4(56, 26)
        self.unpack4(40, 24)
        self.unpack4(44, 150)
        for i in range(4): a(f'v_sub_f32 v{44+i}, v{44+i}, v36')
        self.round4(44, 28)
        for i in range(4): a(f'v_mul_f32 v{44+i}, v{44+i}, v37')
        self.round4(44, 28)
        a('v_pk_mul_f32 v[44:45], v[44:45], v[56:57]\nv_pk_mul_f32 v[46:47], v[46:47], v[58:59]')
        self.round4(44, 28)
        a('v_pk_add_f32 v[44:45], v[44:45], v[40:41]\nv_pk_add_f32 v[46:47], v[46:47], v[42:43]')
        a(f'''
        v_cvt_pk_bf16_f32 v28, v44, v45
        v_cvt_pk_bf16_f32 v30, v46, v47
        v_mov_b32 v29, s94
        v_mov_b32 v31, s94
        v_lshlrev_b32 v22, 4, v22               ; b*16
        v_lshl_add_u32 v22, v8, 4, v22          ; + (16t+4s')*32 = t*512 + s'*128
        s_lshl_b32 s85, s8, 10
        s_add_u32 s85, s85, {WS_H1}
        buffer_store_dwordx4 v[28:31], v22, s[44:47], s85 offen sc1
        s_branch L_ctrl_end
        ''')
        self.cur_nt = self.nt('q')
        a(f'''
        L_role_q:
        s_lshl_b32 s9, s8, 7
        s_add_u32 s48, s22, s9
        s_addc_u32 s49, s23, 0
        s_add_u32 s50, s48, 64
        s_addc_u32 s51, s49, 0
        s_movk_i32 s52, 8192
        ''')
        if self.pfb: self.lds_wait(C_PF, 1, sleep=2)
        self.dma640(99)
        a(f'''
        s_and_b32 s85, s8, 1
        s_lshl_b32 s85, s85, 2
        s_add_u32 s85, s85, s3
        s_lshl_b32 s85, s85, 5
        s_lshr_b32 s86, s8, 1
        s_add_u32 s85, s85, s86
        s_mul_i32 s85, s85, 2560
        s_add_u32 s85, s85, {WS_P}
        v_mov_b32 v152, -1
        v_mov_b32 v153, -1
        v_mov_b32 v154, -1
        v_mov_b32 v155, -1
        v_lshlrev_b32 v19, 3, v2
        buffer_store_dwordx4 v[152:155], v7, s[44:47], s85 offen sc1
        buffer_store_dwordx4 v[152:155], v7, s[44:47], s85 offen offset:1024 sc1
        buffer_store_dwordx2 v[152:153], v19, s[44:47], s85 offen offset:2048 sc1
        ''')
        self.signal(C_GO)
        a('s_waitcnt vmcnt(0)')
        self.stamp(2)
        self.tag_from(167)
        self.wfrags640()
        a(f'''
        s_mul_i32 s90, s3, 5120
        s_add_u32 s90, s90, {WS_H1}
        s_add_u32 s91, s90, 4096
        ''')
        self.stamp(3)
        if self.h1probe:
            a('v_min_u32 v34, 4, v2\nv_lshlrev_b32 v34, 10, v34')
            self.poll('h1p', ['buffer_load_dword v35, v34, s[44:47], s90 offen offset:1020 sc1'], [35, 35], 2, tagged=True)
        loads = [f'buffer_load_dwordx4 v[{120+4*n}:{123+4*n}], v7, s[44:47], s{90 if n < 4 else 91} offen offset:{1024*(n%4)} sc1' for n in range(5)]
        self.poll('h1', loads, [121 + 2 * i for i in range(10)], 4, tagged=True)
        self.stamp(4)
        for n in range(5):
            b = 120 + 4 * n
            a(f'v_mov_b32_dpp v{b+3}, v{b+2} row_ror:8 row_mask:0xf bank_mask:0xf')
            a(f'v_mov_b32 v{b+1}, v{b+2}')
            a(f'v_mov_b32_dpp v{b+2}, v{b} row_ror:8 row_mask:0xf bank_mask:0xf')
        self.mfma640('L_ctrl_end')
        a(f'''
        v_and_b32 v22, 7, v2
        v_lshlrev_b32 v22, 14, v22              ; b*32*512
        v_lshl_add_u32 v22, v8, 1, v22          ; + col*4
        s_lshl_b32 s85, s8, 8                   ; h*512 + half*256
        s_add_u32 s85, s85, {WS_Q}
        v_mov_b32 v29, s94
        v_mov_b32 v31, s94
        v_mov_b32 v33, s94
        v_mov_b32 v35, s94
        ''')
        self.red640()
        a(f'''
        v_cvt_pk_bf16_f32 v28, v40, v41
        v_cvt_pk_bf16_f32 v30, v42, v43
        v_cvt_pk_bf16_f32 v32, v56, v57
        v_cvt_pk_bf16_f32 v34, v58, v59
        buffer_store_dwordx4 v[28:31], v22, s[44:47], s85 offen sc1
        buffer_store_dwordx4 v[32:35], v22, s[44:47], s85 offen offset:128 sc1
        s_branch L_ctrl_end
        ''')
        self.cur_nt = self.nt('f')
        a(f'''
        L_role_ffn:
        s_lshl_b32 s9, s8, 6
        s_add_u32 s48, s28, s9
        s_addc_u32 s49, s29, 0
        s_add_u32 s50, s30, s9
        s_addc_u32 s51, s31, 0
        s_movk_i32 s52, 3456
        ''')
        self.dma640_setup()
        self.dma640_issue(0, self.nEf, 1)
        self.lds_wait(C_DONE, 5, sleep=2)
        self.dma640_issue(self.nEf, 20)
        self.wfrags640(younger=0)
        self.stamp(2)
        a(f'''
        s_mul_i32 s90, s3, 320
        s_add_u32 s90, s90, {WS_H2}
        v_lshrrev_b32 v33, 3, v2                ; row
        v_and_b32 v35, 7, v2                    ; piece
        v_mul_u32_u24 v6, 1280, v33
        v_and_b32 v34, 3, v35
        v_lshl_add_u32 v34, v34, 4, v6
        v_lshl_add_u32 v6, v35, 4, v6
        v_mul_u32_u24 v3, 400, v33
        v_lshl_add_u32 v3, v35, 4, v3
        s_add_u32 s85, s87, {LW + 8192}
        v_add_u32 v3, s85, v3
        v_mul_u32_u24 v4, 400, v35
        v_lshrrev_b32 v33, 4, v2
        v_lshl_add_u32 v4, v33, 4, v4
        v_add_u32 v4, s85, v4
        v_and_b32 v32, 7, v2
        v_lshlrev_b32 v32, 4, v32
        v_bfe_u32 v33, v2, 3, 1
        v_lshl_add_u32 v32, v33, 8, v32
        v_bfe_u32 v33, v2, 5, 1
        v_lshl_add_u32 v32, v33, 7, v32
        s_lshl_b32 s91, s8, 9
        s_add_u32 s91, s91, {WS_HID}
        ''')
        self.lds_wait(C_WO, 8, sleep=4)
        self.stamp(3)
        loads = ['buffer_load_dwordx4 v[140:143], v6, s[44:47], s90 offen sc1',
                 'buffer_load_dwordx4 v[144:147], v6, s[44:47], s90 offen offset:128 sc1',
                 'buffer_load_dwordx4 v[148:151], v34, s[44:47], s90 offen offset:256 sc1']
        self.poll('h2', loads, list(range(140, 152)), self.psleep, lanemask=True)
        self.stamp(4)
        for n in range(3): a(f'ds_write_b128 v3, v[{140+4*n}:{143+4*n}] offset:{128*n}')
        for n in range(5): a(f'ds_read_b128 v[{120+4*n}:{123+4*n}], v4 offset:{64*n}')
        a('s_waitcnt lgkmcnt(0)')
        self.mfma640('L_ctrl_end')
        self.red640()
        self.round4(40, 28); self.round4(56, 30)
        for i in range(4):
            a(f'v_cmp_lt_f32 vcc, 0, v{40+i}\nv_cndmask_b32 v{20+i}, 0, 1.0, vcc')
        a('v_pk_mul_f32 v[40:41], v[40:41], v[20:21]\nv_pk_mul_f32 v[42:43], v[42:43], v[22:23]')
        a('v_pk_mul_f32 v[40:41], v[40:41], v[56:57]\nv_pk_mul_f32 v[42:43], v[42:43], v[58:59]')
        self.pack4(28, 40); self.sanitize([28, 29])
        a(f'''
        v_mov_b32 v30, v28
        v_mov_b32 v31, v29
        v_permlane16_swap_b32 v28, v30
        v_permlane16_swap_b32 v29, v31
        s_mov_b32 exec_lo, 0xffff
        s_mov_b32 exec_hi, 0xffff
        buffer_store_dwordx4 v[28:31], v32, s[44:47], s91 offen sc1
        s_mov_b64 exec, -1
        ''')
        if self.stamp_on and not self.light:
            self.stamp(7); a('s_waitcnt vmcnt(0)'); self.stamp(8)
        a('s_branch L_ctrl_end')
        a('L_role_down:')
        self.srd(72, 32, 1728 * 1280); self.srd(80, 38, 10240)
        a(f'''
        s_add_u32 s76, s42, {WS_HID}
        s_addc_u32 s77, s43, 0
        s_mov_b32 s78, {27*1024}
        s_mov_b32 s79, 0x20000
        v_lshrrev_b32 v16, 1, v2
        v_mul_u32_u24 v4, 1280, v16
        v_and_b32 v16, 1, v2
        v_lshl_add_u32 v4, v16, 4, v4
        s_mul_i32 s85, s3, {7*64*1280}
        s_lshl_b32 s9, s8, 5
        s_add_u32 s85, s85, s9
        s_mul_i32 s87, s3, 14336
        ''')
        for n in range(14):
            if n == self.nEd: self.lds_wait(C_DONE, 5, sleep=2)
            a(f's_add_u32 m0, s87, {LW + 1024*n}')
            if n < self.nEd: a(f's_waitcnt vmcnt(0)')
            a(f'buffer_load_dwordx4 v4, s[72:75], s85 offen {self.nt("f")} lds')
            a(f's_add_u32 s85, s85, {32*1280}')
        a(f'''
        v_lshrrev_b32 v16, 4, v2         ; s
        v_bfe_u32 v17, v2, 2, 2          ; r4
        v_lshl_add_u32 v19, v16, 3, v17
        v_lshlrev_b32 v9, 5, v19
        v_bfe_u32 v17, v2, 1, 1
        v_lshl_add_u32 v9, v17, 10, v9
        v_and_b32 v17, 1, v2
        v_lshl_add_u32 v9, v17, 3, v9
        v_add_u32 v9, s87, v9
        v_add_u32 v10, s87, v7
        v_and_b32 v17, 7, v2             ; b
        v_bfe_u32 v18, v2, 3, 1          ; a / half
        v_lshlrev_b32 v3, 7, v16
        v_lshl_add_u32 v3, v17, 4, v3
        v_lshl_add_u32 v3, v18, 9, v3
        s_mul_i32 s86, s3, 7168
        v_add_u32 v3, s86, v3
        v_and_b32 v16, 1, v16            ; s'
        v_lshlrev_b32 v11, 8, v16
        v_lshl_add_u32 v11, v17, 4, v11
        v_lshl_add_u32 v11, v18, 10, v11
        v_lshlrev_b32 v8, 4, v18
        v_lshl_add_u32 v8, v16, 3, v8    ; (8a+4s')*2
        v_mul_u32_u24 v5, 5120, v17
        v_add_u32 v5, v5, v8
        v_mul_u32_u24 v6, 1280, v17
        v_add_u32 v6, v6, v8
        s_add_u32 s90, s9, {WS_MODO + 3840}
        s_add_u32 s91, s9, {WS_X1}
        s_movk_i32 s92, 4096
        ''')
        for n in range(7):
            a(f's_waitcnt vmcnt({12 - 2*n})')
            for ac in range(2):
                b = 40 + 8 * n + 4 * ac
                a(f'ds_read_b64_tr_b16 v[{b}:{b+1}], v9 offset:{LW + 2048*n + 16*ac}')
                a(f'ds_read_b64_tr_b16 v[{b+2}:{b+3}], v9 offset:{LW + 2048*n + 16*ac + 128}')
            if n % 2: a('s_waitcnt lgkmcnt(0)')
        self.stamp(2)
        self.tag_from(167)
        self.lds_wait(C_WO, 8, sleep=4)
        self.poll('gb', ['buffer_load_dwordx2 v[32:33], v5, s[44:47], s90 offen sc1'], [32, 33], 4)
        self.unpack4(140, 32)
        self.stamp(3)
        self.poll('x1', ['buffer_load_dwordx2 v[32:33], v6, s[44:47], s91 offen sc1'], [32, 33], 1, lanemask=True)
        self.unpack4(144, 32)
        self.stamp(5)
        if self.hdelay: a(f's_sleep {self.hdelay}')
        for i in range(8): a(f'v_mov_b32 v{16+i}, 0')
        def hld(n): return f'buffer_load_dwordx4 v[{104+4*n}:{107+4*n}], v3, s[76:79], {"0" if n < 4 else "s92"} offen offset:{1024*(n%4)} sc1'
        if self.trig:
            a(f'''
            s_mov_b32 s89, {SPIN_LIMIT}
            v_lshlrev_b32 v34, {9 + self.trsh}, v2
            v_add_u32 v34, s86, v34
            s_mov_b64 exec, {(1 << (12 >> self.trsh)) - 1}
            L_hd_trig:
            buffer_load_dword v35, v34, s[76:79], 0 offen offset:508 sc1
            s_sub_u32 s89, s89, 1
            s_cbranch_scc1 L_hd_go
            s_waitcnt vmcnt(0)
            v_cmp_ne_u32 vcc, -1, v35
            s_nop 1
            s_bcnt1_i32_b32 s85, vcc_lo
            s_cmp_lt_u32 s85, {self.trig}
            s_cbranch_scc1 L_hd_trig
            L_hd_go:
            s_mov_b64 exec, -1
            s_waitcnt vmcnt(0)
            ''')
            self.stamp(7)
        a(f's_mov_b32 s90, 0x7f\ns_mov_b32 s89, {SPIN_LIMIT}\nv_mov_b32 v34, 0')
        for n in range(7): a(hld(n))
        a('L_hid_poll:')
        for n in range(7):
            b = 104 + 4 * n
            a(f'''
            s_waitcnt vmcnt(6)
            s_bitcmp1_b32 s90, {n}
            s_cbranch_scc0 L_hd_dm{n}
            v_max3_u32 v36, v{b}, v{b+1}, v{b+2}
            v_max_u32 v36, v36, v{b+3}
            v_cmp_eq_u32 vcc, -1, v36
            s_cbranch_vccz L_hd_ok{n}
            {hld(n)}
            s_branch L_hd_nx{n}
            L_hd_ok{n}:
            v_mfma_f32_16x16x32_bf16 v[16:19], v[{40+8*n}:{43+8*n}], v[{b}:{b+3}], v[16:19]
            v_mfma_f32_16x16x32_bf16 v[20:23], v[{44+8*n}:{47+8*n}], v[{b}:{b+3}], v[20:23]
            s_bitset0_b32 s90, {n}
            s_cmp_eq_u32 s90, 0
            s_cbranch_scc1 L_hid_ok
            L_hd_dm{n}:
            buffer_load_dword v35, v34, s[76:79], 0 offen
            L_hd_nx{n}:
            ''')
        a(f'''
        s_sub_u32 s89, s89, 1
        s_cbranch_scc0 L_hid_poll
        L_hid_ok:
        s_nop 7
        ''')
        self.stamp(4)
        if self.stamp_on and not self.light: a(f's_sub_u32 s96, {SPIN_LIMIT}, s89\nv_writelane_b32 v15, s96, 12')
        a(f'ds_write_b128 v10, v[16:19] offset:{LW}\nds_write_b128 v10, v[20:23] offset:{LW + 1024}')
        reads = []
        for w in range(4):
            reads.append(f'ds_read_b128 v[{40+8*w}:{43+8*w}], v11 offset:{LW + 14336*w}')
            reads.append(f'ds_read_b128 v[{44+8*w}:{47+8*w}], v11 offset:{LW + 14336*w + 640}')
        self.arrive2(C_A, 3, 'L_ctrl_end', reads)
        a('s_waitcnt lgkmcnt(0)')
        self.sum_partials(40, [40 + 4 * i for i in range(8)])
        self.round4(40, 28)
        a('v_pk_mul_f32 v[40:41], v[40:41], v[140:141]\nv_pk_mul_f32 v[42:43], v[42:43], v[142:143]')
        self.round4(40, 28)
        a('v_pk_add_f32 v[40:41], v[40:41], v[144:145]\nv_pk_add_f32 v[42:43], v[42:43], v[146:147]')
        self.pack4(28, 40)
        a(f'''
        s_mov_b32 exec_hi, 0
        buffer_store_dwordx2 v[28:29], v6, s[80:83], s9 offen
        s_cmp_lg_u32 s8, 0
        s_cbranch_scc1 L_noepoch
        s_mov_b64 exec, 1
        v_mov_b32 v20, 0
        v_mov_b32 v21, s94
        buffer_store_dword v21, v20, s[44:47], 0 offen sc1
        L_noepoch:
        s_mov_b64 exec, -1
        s_branch L_ctrl_end
        ''')
        a('L_role_red:')
        self.srd(60, 16, 10240)
        a(f'''
        v_lshlrev_b32 v8, 3, v2          ; lane*8
        s_mul_i32 s9, s8, 1280
        buffer_load_dwordx2 v[26:27], v8, s[60:63], s9 offen
        buffer_load_dwordx2 v[28:29], v8, s[60:63], s9 offen offset:512
        buffer_load_dword v30, v12, s[60:63], s9 offen offset:1024
        s_lshl_b32 s90, s8, 14
        s_lshl_b32 s85, s3, 12
        s_add_u32 s90, s90, s85
        s_add_u32 s90, s90, {WS_Q}
        s_waitcnt vmcnt(0)
        ''')
        self.tag_from(167)
        for i in range(5): self.unpack(120 + 2 * i, 26 + i)
        self.lds_wait(C_QOK, 1, sleep=8)
        loads = [f'buffer_load_dwordx4 v[{40+4*n}:{43+4*n}], v7, s[44:47], s90 offen offset:{1024*n} sc1' for n in range(4)]
        self.poll('qall', loads, [41 + 2 * i for i in range(8)], 8, tagged=True)
        a(f'''
        s_mul_i32 s90, s8, 5120
        s_add_u32 s90, s90, {WS_MODO}
        ''')
        loads = []
        for ch in range(3):
            b = 40 + 6 * ch
            loads += [f'buffer_load_dwordx2 v[{b}:{b+1}], v8, s[44:47], s90 offen offset:{1280*ch} sc1',
                      f'buffer_load_dwordx2 v[{b+2}:{b+3}], v8, s[44:47], s90 offen offset:{1280*ch + 512} sc1',
                      f'buffer_load_dword v{b+4}, v12, s[44:47], s90 offen offset:{1280*ch + 1024} sc1']
        self.poll('modo', loads, [40 + 6 * ch + i for ch in range(3) for i in range(5)], 8)
        for ch in range(3):
            for i in range(5): self.unpack(130 + 10 * ch + 2 * i, 40 + 6 * ch + i)
        for i in range(5):
            a(f'v_pk_add_f32 v[{150+2*i}:{151+2*i}], v[{150+2*i}:{151+2*i}], 1.0 op_sel_hi:[1,0]')
            a(f'v_cvt_pk_bf16_f32 v26, v{150+2*i}, v{151+2*i}')
            self.unpack(150 + 2 * i, 26)
        for i in range(10): a(f'v_mov_b32 v{16+i}, 0')
        a(f'''
        s_lshl_b32 s91, s8, 5
        s_lshl_b32 s85, s3, 3
        s_add_u32 s91, s91, s85
        s_mul_i32 s91, s91, 2560
        s_add_u32 s91, s91, {WS_P}
        s_mul_i32 s87, s3, 2560
        v_add_u32 v10, s87, v7
        v_add_u32 v11, s87, v8
        s_add_u32 s92, s9, {WS_H2}
        s_add_u32 s93, s9, {WS_X1}
        ''')
        self.stamp(2)
        self.lds_wait(C_PROG, 1, sleep=8)
        self.stamp(3)
        a(f'''
        s_mov_b32 s90, 0xff
        s_mov_b32 s89, {SPIN_LIMIT}
        v_and_b32 v34, 7, v2
        v_mul_u32_u24 v34, 2560, v34
        s_mov_b32 s86, 0
        L_p_poll:
        s_mov_b32 s95, s90
        s_cmp_lg_u32 s86, 0
        s_cbranch_scc1 L_p_fetch
        ds_read_b32 v14, v13 offset:{C_K2}
        s_waitcnt lgkmcnt(0)
        v_readfirstlane_b32 s88, v14
        s_cmp_ge_u32 s88, 8
        s_cselect_b32 s86, 1, 0
        s_cbranch_scc1 L_p_fetch
        s_sleep 4
        buffer_load_dword v35, v34, s[44:47], s91 offen offset:2556 sc1
        s_waitcnt vmcnt(0)
        v_cmp_ne_u32 vcc, -1, v35
        s_nop 1
        s_and_b32 s95, s90, vcc_lo
        s_cbranch_scc0 L_p_next
        L_p_fetch:
        s_bcnt1_i32_b32 s85, s90
        s_and_b32 s85, s85, s86
        s_bcnt1_i32_b32 s88, s90
        s_cmp_eq_u32 s88, s85
        s_cbranch_scc1 L_p_one
        ''')
        for g in range(8):
            b = 40 + 10 * g
            a(f'''
            s_bitcmp1_b32 s95, {g}
            s_cbranch_scc0 L_p_sk{g}
            s_add_u32 s85, s91, {2560*g}
            buffer_load_dwordx4 v[{b}:{b+3}], v7, s[44:47], s85 offen sc1
            buffer_load_dwordx4 v[{b+4}:{b+7}], v7, s[44:47], s85 offen offset:1024 sc1
            buffer_load_dwordx2 v[{b+8}:{b+9}], v8, s[44:47], s85 offen offset:2048 sc1
            L_p_sk{g}:
            ''')
        a('s_waitcnt vmcnt(0)')
        for g in range(8):
            b = 40 + 10 * g
            a(f'''
            s_bitcmp1_b32 s95, {g}
            s_cbranch_scc0 L_p_ck{g}
            v_max3_u32 v36, v{b}, v{b+1}, v{b+2}
            v_max3_u32 v37, v{b+3}, v{b+4}, v{b+5}
            v_max3_u32 v36, v36, v{b+6}, v{b+7}
            v_max3_u32 v37, v37, v{b+8}, v{b+9}
            v_max_u32 v36, v36, v37
            v_cmp_eq_u32 vcc, -1, v36
            s_cbranch_vccnz L_p_ck{g}
            s_bitset0_b32 s90, {g}
            ''')
            for i in range(5): a(f'v_pk_add_f32 v[{16+2*i}:{17+2*i}], v[{16+2*i}:{17+2*i}], v[{b+2*i}:{b+2*i+1}]')
            a(f'L_p_ck{g}:')
        a(f'''
        s_cmp_eq_u32 s90, 0
        s_cbranch_scc1 L_p_ok
        L_p_next:
        s_sub_u32 s89, s89, 1
        s_cbranch_scc0 L_p_poll
        s_branch L_p_ok
        L_p_one:
        s_ff1_i32_b32 s85, s90
        s_mul_i32 s85, s85, 2560
        s_add_u32 s85, s85, s91
        L_p_one_l:
        buffer_load_dwordx4 v[40:43], v7, s[44:47], s85 offen sc1
        buffer_load_dwordx4 v[44:47], v7, s[44:47], s85 offen offset:1024 sc1
        buffer_load_dwordx2 v[48:49], v8, s[44:47], s85 offen offset:2048 sc1
        s_sub_u32 s89, s89, 1
        s_cbranch_scc1 L_p_ok
        s_waitcnt vmcnt(0)
        v_max3_u32 v36, v40, v41, v42
        v_max3_u32 v37, v43, v44, v45
        v_max3_u32 v36, v36, v46, v47
        v_max3_u32 v37, v37, v48, v49
        v_max_u32 v36, v36, v37
        v_cmp_eq_u32 vcc, -1, v36
        s_cbranch_vccnz L_p_one_l
        v_pk_add_f32 v[16:17], v[16:17], v[40:41]
        v_pk_add_f32 v[18:19], v[18:19], v[42:43]
        v_pk_add_f32 v[20:21], v[20:21], v[44:45]
        v_pk_add_f32 v[22:23], v[22:23], v[46:47]
        v_pk_add_f32 v[24:25], v[24:25], v[48:49]
        L_p_ok:
        ''')
        self.stamp(4)
        a(f'''
        ds_write_b128 v10, v[16:19] offset:{LW}
        ds_write_b128 v10, v[20:23] offset:{LW + 1024}
        ds_write_b64 v11, v[24:25] offset:{LW + 2048}
        ''')
        reads = []
        for w in range(4):
            b = 40 + 10 * w
            reads.append(f'ds_read_b128 v[{b}:{b+3}], v7 offset:{LW + 2560*w}')
            reads.append(f'ds_read_b128 v[{b+4}:{b+7}], v7 offset:{LW + 2560*w + 1024}')
            reads.append(f'ds_read_b64 v[{b+8}:{b+9}], v8 offset:{LW + 2560*w + 2048}')
        self.arrive2(C_A, 3, 'L_ctrl_end', reads)
        a('s_waitcnt lgkmcnt(0)')
        U = 40
        def P(r, i): return f'v[{r+2*i}:{r+2*i+1}]'
        for i in range(5): a(f'v_pk_add_f32 {P(40,i)}, {P(40,i)}, {P(50,i)}')
        for i in range(5): a(f'v_pk_add_f32 {P(60,i)}, {P(60,i)}, {P(70,i)}')
        for i in range(5): a(f'v_pk_add_f32 {P(40,i)}, {P(40,i)}, {P(60,i)}')
        def pk():
            for i in range(5): a(f'v_cvt_pk_bf16_f32 v{26+i}, v{U+2*i}, v{U+2*i+1}')
        def rnd():
            pk()
            for i in range(5): self.unpack(U + 2 * i, 26 + i)
        rnd()
        for i in range(5): a(f'v_pk_mul_f32 {P(U,i)}, {P(U,i)}, {P(130,i)}')
        rnd()
        for i in range(5): a(f'v_pk_add_f32 {P(U,i)}, {P(U,i)}, {P(120,i)}')
        for i in range(5): a(f'v_cvt_pk_bf16_f32 v{160+i}, v{U+2*i}, v{U+2*i+1}')
        self.sanitize(range(160, 165))
        for i in range(5): self.unpack(U + 2 * i, 160 + i)
        self.ln_stats1(U, 32, 96, 98)
        for i in range(5): a(f'v_pk_add_f32 {P(U,i)}, {P(U,i)}, s[96:97] op_sel_hi:[1,0] neg_lo:[0,1] neg_hi:[0,1]')
        rnd()
        for i in range(5): a(f'v_pk_mul_f32 {P(U,i)}, {P(U,i)}, s[98:99] op_sel_hi:[1,0]')
        rnd()
        for i in range(5): a(f'v_pk_mul_f32 {P(U,i)}, {P(U,i)}, {P(150,i)}')
        rnd()
        for i in range(5): a(f'v_pk_add_f32 {P(U,i)}, {P(U,i)}, {P(140,i)}')
        pk()
        self.sanitize(range(26, 31))
        a(f'''
        buffer_store_dwordx2 v[26:27], v8, s[44:47], s92 offen sc1
        buffer_store_dwordx2 v[28:29], v8, s[44:47], s92 offen offset:512 sc1
        buffer_store_dword v30, v12, s[44:47], s92 offen offset:1024 sc1
        buffer_store_dwordx2 v[160:161], v8, s[44:47], s93 offen sc1
        buffer_store_dwordx2 v[162:163], v8, s[44:47], s93 offen offset:512 sc1
        buffer_store_dword v164, v12, s[44:47], s93 offen offset:1024 sc1
        L_ctrl_end:
        ''')
        self.stamp(11)
        a(f's_cmp_eq_u32 s7, {R_DOWN}\ns_cbranch_scc1 L_ctrl_fin\ns_cmp_eq_u32 s7, {R_FFN}\ns_cbranch_scc1 L_ctrl_fin\ns_cmp_eq_u32 s7, {R_RED}\ns_cbranch_scc1 L_ctrl_fin')
        a('L_share:')
        if self.late: self.prefetch_late('e')
        a(f's_cmp_eq_u32 s7, {R_DOWN}\ns_cbranch_scc1 L_role_down\ns_cmp_eq_u32 s7, {R_FFN}\ns_cbranch_scc1 L_role_ffn\ns_cmp_eq_u32 s7, {R_RED}\ns_cbranch_scc1 L_role_red')
        a('L_ctrl_fin:')
        self.stamp_flush()
        self.diag_end()
        a('s_endpgm')

    def stream(self):
        a = self.a
        self.cur_cls = 0
        WK, WV = self.WK, self.WV
        NV = 12
        KV = lambda t: 40 + 4 * t
        assert self.rotw == 1 and self.WK0 >= 2
        a(f'''
        s_sub_u32 s15, s3, 4             ; sw
        s_lshl_b32 s85, s15, 15
        v_add_u32 v1, s85, v7
        s_mul_i32 s91, s2, {self.rot}
        s_add_u32 s91, s91, s15
        s_and_b32 s91, s91, 31
        s_lshl_b32 s91, s91, 10          ; rotation
        s_lshl_b32 s85, s2, 2
        s_add_u32 s85, s85, 3
        s_lshl_b32 s85, s85, 18
        s_mov_b32 s51, 0x20000
        s_lshl_b32 s50, s51, 1
        s_movk_i32 s90, 0x7fff
        s_addk_i32 s91, 1024
        s_and_b32 s92, s91, s90
        s_addk_i32 s91, -1024
        s_waitcnt lgkmcnt(0)
        s_add_u32 s48, s18, s85
        s_addc_u32 s49, s19, 0
        buffer_load_dwordx4 v[40:43], v1, s[48:51], s91 offen {self.nt('k')}
        buffer_load_dwordx4 v[44:47], v1, s[48:51], s92 offen {self.nt('k')}
        s_add_u32 s52, s20, s85
        s_addc_u32 s53, s21, 0
        s_mov_b32 s54, 0x40000
        s_mov_b32 s55, 0x20000
        s_barrier
        ''')
        self.common2()
        self.srd(44, 42, WS_SIZE)
        if self.stamp_on: a('v_writelane_b32 v15, s98, 13')
        self.cur_cls = -1
        self.stamp(0)
        self.cur_cls = 0
        self.decode()
        for _ in range(self.sdelay): a('s_sleep 32')
        if self.hold > 1: a(f's_cmp_eq_u32 s7, {R_Q}\ns_cbranch_scc1 L_hold')
        a(f's_cmp_lg_u32 s7, {R_G1}\ns_cbranch_scc1 L_nohold')
        self.srd(56, 34, 10240); self.srd(60, 16, 10240)
        a('s_mul_i32 s90, s15, 1280\nv_lshlrev_b32 v12, 2, v2')
        for n in range(5): a(f'buffer_load_dword v{80+n}, v12, s[56:59], s90 offen offset:{256*n}')
        for n in range(5): a(f'buffer_load_dword v{86+n}, v12, s[60:63], s90 offen offset:{256*n}')
        a(f'''
        s_mul_i32 s90, s15, {ACTS}
        s_add_u32 s90, s90, {L_ACT}
        v_add_u32 v12, s90, v12
        s_mov_b32 s85, {LOG2E | 0x80000000}
        s_waitcnt vmcnt(5)
        ''')
        self.stamp(9)
        for i in range(5): self.unpack(52 + 2 * i, 80 + i)
        for i in range(10): a(f'v_mul_f32 v{64+i}, s85, v{52+i}')
        for i in range(10): a(f'v_exp_f32 v{64+i}, v{64+i}')
        for i in range(10): a(f'v_add_f32 v{64+i}, 1.0, v{64+i}')
        for i in range(10): a(f'v_rcp_f32 v{64+i}, v{64+i}')
        for i in range(10): a(f'v_mul_f32 v{52+i}, v{52+i}, v{64+i}')
        for i in range(5): a(f'v_cvt_pk_bf16_f32 v{80+i}, v{52+2*i}, v{53+2*i}')
        for i in range(5): a(f'ds_write_b32 v12, v{80+i} offset:{256*i}')
        a('s_waitcnt vmcnt(0)')
        self.ln_stats(86, 52, 64, 90, 92)
        a(f'''
        v_mov_b32 v28, s90
        v_mov_b32 v29, s92
        s_lshl_b32 s85, s15, 3
        v_add_u32 v30, s85, v13
        ds_write_b64 v30, v[28:29] offset:{L_STAT}
        ''')
        self.signal(C_ACT)
        a('L_hold:')
        if self.hold: self.lds_wait(C_GO, 4, sleep=2)
        a('L_nohold:')
        q = ['K0', 'K1']
        def wait_for(name):
            i = len(q) - 1 - q[::-1].index(name)
            n = len(q) - 1 - i
            a(f's_waitcnt vmcnt({min(n, 63)})')
        def ld(t, slot, srd, nm):
            a(f's_add_u32 s92, s91, {t*1024}\ns_and_b32 s92, s92, 0x7fff')
            a(f'buffer_load_dwordx4 v[{KV(slot)}:{KV(slot)+3}], v1, {srd}, s92 offen {self.nt(nm[0].lower())}')
            q.append(nm)
        qloads = ['buffer_load_dwordx4 v[4:7], v12, s[44:47], s93 offen sc1', 'buffer_load_dwordx4 v[16:19], v12, s[44:47], s93 offen offset:16 sc1']
        for t in range(1, 32):
            wk = WK if t >= self.wk_sw else self.WK0
            if t >= wk:
                if self.WKL > wk and t >= self.wkl_sw:
                    L = a.label('L_kw')
                    a(f's_waitcnt vmcnt({self.WKL-1})\ns_cbranch_vccnz {L}\ns_waitcnt vmcnt({wk-1})\n{L}:')
                else: a(f's_waitcnt vmcnt({wk-1})')
            if t == self.WK0: self.stamp(8)
            if t == self.pfl_t: self.signal(C_PROGW)
            if t >= 2: ld(t, t, 's[48:51]', f'K{t}')
            if t == self.WK0 - 1:
                a(f'''
                v_mov_b32 v3, 0
                buffer_load_dword v35, v3, s[44:47], 0 offen sc1
                v_and_b32 v3, 15, v2
                v_lshlrev_b32 v12, 5, v3             ; Q voffset
                s_lshl_b32 s93, s2, 9
                s_add_u32 s93, s93, {WS_Q}
                v_mov_b32 v16, 0xffff
                v_mov_b32 v17, s84
                ''')
                q.append('E')
                for r in range(4):
                    a(f'''
                    v_cmp_eq_u32 vcc, {2*r}, v3
                    v_cndmask_b32 v{8+r}, 0, v16, vcc
                    v_cmp_eq_u32 vcc, {2*r+1}, v3
                    v_cndmask_b32 v{8+r}, v{8+r}, v17, vcc
                    ''')
                a(f'''
                s_mov_b32 s96, 0xcccccccc
                s_mov_b32 s97, 0xcccccccc
                s_mov_b32 s98, 0xaaaaaaaa
                s_mov_b32 s99, 0xaaaaaaaa
                s_mul_i32 s85, s14, 163840
                s_add_u32 s56, s24, s85
                s_addc_u32 s57, s25, 0
                s_mov_b32 s58, 163840
                s_mov_b32 s59, 0x20000
                v_lshrrev_b32 v34, 4, v2
                v_mul_u32_u24 v34, 5120, v34
                v_lshl_add_u32 v34, v3, 4, v34
                s_mul_i32 s85, s15, 20480
                v_add_u32 v34, s85, v34
                s_lshr_b32 s85, {self.lagmask}, s7
                s_bitcmp1_b32 s85, 0
                s_cselect_b64 vcc, -1, 0
                ''')
            if t == 12:
                self.tag_from(35)
            if t == self.rk:
                self.srd(64, 40, 256)
                a(f'''
                v_mov_b32 v37, 1
                v_mov_b32 v38, 0
                s_mov_b64 exec, 1
                s_cmp_eq_u32 s15, 0
                s_cbranch_scc1 L_rk_at
                buffer_load_dword v37, v38, s[64:67], 0 offen offset:128
                s_branch L_rk_dn
                L_rk_at:
                buffer_atomic_add v37, v38, s[64:67], 0 offen sc0 sc1
                L_rk_dn:
                s_mov_b64 exec, -1
                ''')
                q.append('RK')
            if t == self.qpos:
                for l in qloads: a(l)
                q.append('Q0'); q.append('Q1')
        self.stamp(1)
        wait_for('Q1')
        a(f'''
        s_mov_b32 s89, {SPIN_LIMIT}
        L_q_chk:
        v_xor_b32 v20, s94, v5
        v_xor_b32 v21, s94, v7
        v_xor_b32 v22, s94, v17
        v_xor_b32 v23, s94, v19
        v_or_b32 v20, v20, v21
        v_or3_b32 v20, v20, v22, v23
        v_cmp_ne_u32 vcc, 0, v20
        s_cbranch_vccz L_q_ok
        s_sleep 4
        {qloads[0]}
        {qloads[1]}
        s_waitcnt vmcnt(0)
        s_sub_u32 s89, s89, 1
        s_cbranch_scc0 L_q_chk
        L_q_ok:
        v_mov_b32 v5, v6
        v_mov_b32 v6, v16
        v_mov_b32 v7, v18
        ''')
        self.signal(C_QOK)
        self.stamp(2)
        D = 20
        st = dict(V=0, W=0)
        def ldwo(n):
            tp, c = n // 5, n % 5
            so = ['0', 's60', 's61', 's62'][tp]
            a(f'buffer_load_dwordx4 v[{KV(NV+n)}:{KV(NV+n)+3}], v34, s[56:59], {so} offen offset:{256*c} {self.nt("o")}')
            q.append(f'W{n}')
        def pre(g, free):
            for ch in self.pre[g]:
                if ch == 'V':
                    assert st['V'] < NV and st['V'] <= free
                    ld(st['V'], st['V'], 's[52:55]', f"V{st['V']}"); st['V'] += 1
                else:
                    assert NV + st['W'] <= free
                    ldwo(st['W']); st['W'] += 1
        a('s_movk_i32 s60, 1280\ns_movk_i32 s61, 2560\ns_movk_i32 s62, 3840')
        for g in range(8):
            wait_for(f'K{4*g+3}')
            for i in range(4):
                for k in range(4):
                    t = 4 * g + k
                    a(f'v_dot2_f32_bf16 v{D+k}, v{KV(t)+i}, v{4+i}, {"0" if i == 0 else "v%d" % (D+k)}')
            pre(g, 4 * g + 3)
            a(f'v_add_f32_dpp v24, v{D}, v{D} row_ror:8 row_mask:0xf bank_mask:0x3')
            a(f'v_add_f32_dpp v25, v{D+2}, v{D+2} row_ror:8 row_mask:0xf bank_mask:0x3')
            a(f'v_add_f32_dpp v24, v{D+1}, v{D+1} row_ror:8 row_mask:0xf bank_mask:0xc')
            a(f'v_add_f32_dpp v25, v{D+3}, v{D+3} row_ror:8 row_mask:0xf bank_mask:0xc')
            r2 = 26 + (g & 1)
            a(f'v_add_f32_dpp v{r2}, v24, v24 row_shl:4 row_mask:0xf bank_mask:0x5')
            a(f'v_add_f32_dpp v{r2}, v25, v25 row_shr:4 row_mask:0xf bank_mask:0xa')
            if g & 1:
                r3 = 28 + ((g >> 1) & 1)
                a(f'v_add_f32_dpp v30, v26, v26 quad_perm:[2,3,0,1] row_mask:0xf bank_mask:0xf')
                a(f'v_add_f32_dpp v31, v27, v27 quad_perm:[2,3,0,1] row_mask:0xf bank_mask:0xf')
                a(f'v_cndmask_b32 v{r3}, v30, v31, s[96:97]')
            if (g & 3) == 3:
                a(f'v_add_f32_dpp v30, v28, v28 quad_perm:[1,0,3,2] row_mask:0xf bank_mask:0xf')
                a(f'v_add_f32_dpp v31, v29, v29 quad_perm:[1,0,3,2] row_mask:0xf bank_mask:0xf')
                a(f'v_cndmask_b32 v{32 + (g >> 2)}, v30, v31, s[98:99]')
        a(f'''
        v_cvt_pk_bf16_f32 v20, v32, v33
        s_mov_b32 s86, 0x3db504f3
        ''')
        self.unpack(32, 20)
        a('v_pk_mul_f32 v[32:33], v[32:33], s[86:87] op_sel_hi:[1,0]\nv_cvt_pk_bf16_f32 v20, v32, v33')
        self.unpack(32, 20)
        a('v_max_f32 v20, v32, v33')
        self.wave_red(20, 'max')
        a(f'''
        v_readlane_b32 s86, v20, 63              ; m_w
        s_mov_b32 s90, {LOG2E}
        v_subrev_f32 v20, s86, v32
        v_subrev_f32 v21, s86, v33
        v_mul_f32 v20, s90, v20
        v_mul_f32 v21, s90, v21
        v_exp_f32 v20, v20
        v_exp_f32 v21, v21
        v_add_f32 v21, v20, v21
        ''')
        self.wave_red(21)
        a(f'''
        v_mov_b32 v20, s86
        s_lshl_b32 s85, s15, 3
        v_add_u32 v22, s85, v13
        s_mov_b32 exec_lo, 0
        s_mov_b32 exec_hi, 0x80000000
        ds_write_b64 v22, v[20:21] offset:{L_SM}
        s_mov_b64 exec, -1
        ''')
        if self.rk >= 0:
            a(f's_cmp_lg_u32 s15, 0\ns_cbranch_scc1 L_rk_nw\ns_mov_b64 exec, 1\nds_write_b32 v13, v37 offset:{L_RANK}\ns_mov_b64 exec, -1\nL_rk_nw:')
        self.stamp(3)
        self.signal(C_SM)
        pre(8, 31)
        self.lds_wait(C_SM, 8)
        self.stamp(4)
        a(f'''
        v_and_b32 v22, 7, v2
        v_lshl_add_u32 v22, v22, 3, v13
        ds_read_b64 v[20:21], v22 offset:{L_SM}
        s_lshr_b32 s63, {self.lagv}, s7
        s_and_b32 s63, s63, 1
        s_waitcnt lgkmcnt(0)
        v_max_f32_dpp v22, v20, v20 row_ror:4 row_mask:0xf bank_mask:0xf
        v_max_f32_dpp v22, v22, v22 row_ror:2 row_mask:0xf bank_mask:0xf
        v_max_f32_dpp v22, v22, v22 row_ror:1 row_mask:0xf bank_mask:0xf
        v_sub_f32 v20, v20, v22
        v_mul_f32 v20, s90, v20
        v_exp_f32 v20, v20
        v_sub_f32 v32, v32, v22
        v_sub_f32 v33, v33, v22
        v_mul_f32 v21, v21, v20
        v_mul_f32 v32, s90, v32
        v_mul_f32 v33, s90, v33
        v_add_f32_dpp v21, v21, v21 row_ror:4 row_mask:0xf bank_mask:0xf
        v_exp_f32 v32, v32
        v_exp_f32 v33, v33
        v_add_f32_dpp v21, v21, v21 row_ror:2 row_mask:0xf bank_mask:0xf
        v_add_f32_dpp v21, v21, v21 row_ror:1 row_mask:0xf bank_mask:0xf
        v_rcp_f32 v21, v21
        v_mul_f32 v32, v32, v21
        v_mul_f32 v33, v33, v21
        v_cvt_pk_bf16_f32 v32, v32, v32
        v_cvt_pk_bf16_f32 v33, v33, v33
        ''')
        issued = st['V']; nwo = st['W']
        for t in range(32):
            A = 20 + 4 * (t & 1)
            for r in range(4):
                a(f'v_and_b32_dpp v{A+r}, v{32 + (t >> 4)}, v{8+r} row_newbcast:{bitrev4(t & 15)} row_mask:0xf bank_mask:0xf')
            wait_for(f'V{t}')
            a(f'v_mfma_f32_16x16x32_bf16 v[16:19], v[{A}:{A+3}], v[{KV(t % NV)}:{KV(t % NV)+3}], {"0" if t == 0 else "v[16:19]"}')
            if not self.lagv:
                while t + (WV if t < self.wv_sw else self.WV2) >= issued and issued < 32:
                    ld(issued, issued % NV, 's[52:55]', f'V{issued}'); issued += 1
            else:
                wbig = max(self.WVc, WV if t < self.wv_sw else self.WV2)
                while t + wbig >= issued and issued < 32:
                    wa = WV if issued - WV < self.wv_sw else self.WV2
                    if issued - wa > t:
                        L = a.label('L_vw')
                        a(f's_cmp_lg_u32 s63, 0\ns_cbranch_scc1 {L}')
                        wait_for(f'V{issued - wa}')
                        a(f'{L}:')
                    ld(issued, issued % NV, 's[52:55]', f'V{issued}'); issued += 1
            if t >= self.wo_start:
                for _ in range(self.wo_per):
                    if nwo < 20: ldwo(nwo); nwo += 1
            if t == self.prog_t: self.signal(C_PROG)
            if t + 32 == self.pfl_t: self.signal(C_PROGW)
            if t == self.red_direct: self.signal(C_K2)
            if t == 28:
                a(f'''
                v_lshlrev_b32 v7, 4, v2
                v_and_b32 v3, 15, v2
                v_lshrrev_b32 v4, 4, v2
                v_lshlrev_b32 v5, 5, v3
                v_lshl_add_u32 v5, v4, 4, v5          ; (8j+4s')*4
                s_lshl_b32 s85, s15, 9
                s_add_u32 s85, s85, {L_OP}
                v_add_u32 v6, s85, v5
                s_mul_i32 s85, s15, 2560
                s_add_u32 s85, s85, {L_WP}
                v_add_u32 v5, s85, v5
                s_lshl_b32 s85, s15, 6
                s_add_u32 s85, s85, {L_OP}
                v_lshl_add_u32 v4, v4, 4, s85
                v_and_b32 v35, 31, v2
                v_lshlrev_b32 v35, 4, v35
                v_lshrrev_b32 v36, 5, v2
                v_mul_u32_u24 v36, 10240, v36
                s_lshl_b32 s85, s15, 9
                s_add_u32 s86, s85, {L_WP}
                v_add3_u32 v35, v35, v36, s86
                s_mul_i32 s87, s2, 2560
                s_add_u32 s87, s87, s85
                s_add_u32 s87, s87, {WS_P}
                ''')
        assert nwo == 20
        a(f'''
        s_mov_b32 exec_hi, 0
        ds_write_b128 v6, v[16:19]
        s_mov_b64 exec, -1
        ''')
        self.stamp(5)
        self.signal(C_PV)
        self.wait2(C_PV, 8, [f'ds_read_b128 v[{40+4*w}:{43+4*w}], v4 offset:{512*w}' for w in range(8)])
        self.sum_partials(40, [40 + 4 * i for i in range(8)])
        for r in range(4): a(f'v_cvt_pk_bf16_f32 v{40+r}, v{40+r}, v{40+r}')
        a('s_waitcnt vmcnt(0)')
        self.stamp(6)
        def wr(c): a(f's_mov_b32 exec_hi, 0\nds_write_b128 v5, v[{60+4*c}:{63+4*c}] offset:{512*c}\ns_mov_b32 exec_hi, -1')
        for c in range(5):
            for tp in range(4):
                if c == 0:
                    for r in range(4): a(f'v_and_b32 v{44+4*tp+r}, v{40+tp}, v{8+r}')
                d = 60 + 4 * c; b = KV(NV + 5 * tp + c)
                a(f'v_mfma_f32_16x16x32_bf16 v[{d}:{d+3}], v[{44+4*tp}:{47+4*tp}], v[{b}:{b+3}], {"0" if tp == 0 else "v[%d:%d]" % (d, d+3)}')
            if c >= 2: wr(c - 2)
        wr(3); wr(4)
        self.signal(C_WO)
        a('s_cmp_ge_u32 s15, 5\ns_cbranch_scc1 L_stream_end')
        self.wait2(C_WO, 8, [f'ds_read_b128 v[{40+4*w}:{43+4*w}], v35 offset:{2560*w}' for w in range(4)])
        self.stamp(7)
        self.sum_partials(40, [40, 44, 48, 52])
        for i in range(4): a(f'v_mov_b32 v{44+i}, v{40+i}')
        for i in range(4): a(f'v_permlane32_swap_b32 v{40+i}, v{44+i}')
        a('v_pk_add_f32 v[40:41], v[40:41], v[44:45]\nv_pk_add_f32 v[42:43], v[42:43], v[46:47]')
        self.sanitize(range(40, 44))
        a('''
        s_mov_b32 exec_hi, 0
        buffer_store_dwordx4 v[40:43], v7, s[44:47], s87 offen sc1
        s_mov_b64 exec, -1
        ''')
        self.signal(C_DONE)
        a('L_stream_end:')
        self.stamp(10)
        self.stamp_flush()
        self.diag_end()
        a('L_end:\ns_endpgm')

    def build(self):
        self.prologue(); self.stream(); self.control(); self.a('L_code_end:')
        kn = NAME + '_kernel'
        body = '\n'.join(fix_hazards(self.a.l)) + '\n'
        hdr = open('cdna_kernels/' + NAME + '.s.ref').read().split('; Override launch')[0]
        return hdr + header([f'; @launch grid=(256,1,1) block=(768,1,1) lds={LDS_SIZE}']) + kernel_start(kn) + body + '.section .rodata,"a"\n' + descriptor(kn, vgpr=168, sgpr=102, accum=168)

if __name__ == '__main__':
    import argparse
    from collections import Counter
    rs = [role_of(w) for w in range(256)]
    for r, n in ((R_G1, 20), (R_DOWN, 40), (R_FFN, 54), (R_Q, 64), (R_MOD, 40), (R_RED, 8)):
        assert sorted(i for rr, i in rs if rr == r) == list(range(n)), r
    ap = argparse.ArgumentParser()
    ap.add_argument('-o', default='k.s'); ap.add_argument('--stamp', action='store_true')
    for p, d in (('WK', 3), ('WV', 3), ('rot', 3), ('rotw', 1), ('qpos', 25), ('prog_t', 22), ('progw_t', -1), ('WD', 20), ('wo_start', 0), ('wo_per', 1), ('sdelay', 0), ('WK0', 2), ('wk_sw', 16), ('k2_t', -1), ('WV2', 6), ('wv_sw', 16), ('hold', 1), ('pf', 1), ('WKL', 4), ('wkl_sw', 6), ('lagmask', 0x32), ('pfb', 1), ('cpf', 1), ('diag_until', 0), ('diag_xcc', 0), ('diag_role', -1), ('diag_cls', -1), ('diag_idx', -1), ('nEf', 0), ('nEd', 0), ('late', 1), ('pfl_t', 8), ('psleep', 0), ('light', 0), ('hdelay', 0), ('rk', -1), ('lagv', 0), ('h1probe', 0), ('rth1', 128), ('rth2', 208), ('WVa', 2), ('WVb', 4), ('WVc', 8), ('trig', 0), ('trsh', 0), ('red_direct', 27), ('WDM', 20), ('k2_n', 8)):
        ap.add_argument('--' + p, type=int, default=d)
    ap.add_argument('--pre', default='V,V,V,V,V,V,V,V,W')
    ap.add_argument('--ntp', default='kv')
    args = ap.parse_args()
    kw = dict(vars(args)); o = kw.pop('o')
    open(o, 'w').write(G(**kw).build())
```

```python
import sys
from asmlib import *
import gen as G1mod
from gen import bitrev4, LOG2E, SPIN_LIMIT

WS_E = 0
WS_H1 = 0x1000
WS_Q = 0x8000
SB2 = 0x28000
WS_H2 = SB2; WS_X1 = SB2 + 0x3000; WS_HID = SB2 + 0x6000; WS_MODO = SB2 + 0xD000
WS_P = 0x50000
WS_STAMP = 0x100000
WS_SIZE = 0x200000
LW = 0; LM = 0x14000; L_OP = 0x15000; L_WP = 0x23000; LST = 0x16000; LDS_SIZE = 0x28000
C_A, C_SM, C_PV, C_WO, C_QOK, C_PROG, C_PROGW, C_GO, C_DONE, C_K2, C_ACT, C_PF, C_PF2, C_CX = [4 * i for i in range(14)]
L_STAT = 0x40; L_SM = 0x100; L_RANK = 0x3c
L_ACT = L_WP; ACTS = 1344
R_G1, R_DOWN, R_FFN, R_Q, R_MOD, R_RED = 1, 2, 3, 4, 5, 6

def role_of(wg):
    x = wg & 7; u = wg >> 3
    if u < 2: return R_G1, 2 * x + u
    if u < 6:
        k = u - 2
        e = EXTRA.get((x, k >> 1))
        if e is None: return 0, 0
        return e[0], e[0] * 16 + 2 * e[1] + (k & 1)
    if u < 14: return R_Q, 8 * x + u - 6
    if u < 19: return R_MOD, 5 * x + u - 14
    if u < 25: return R_FFN, 6 * x + u - 19
    if u < 29: return R_DOWN, 4 * x + u - 25
    if u == 29: return R_RED, x
    return 0, 0
EXTRA = {(0, 0): (R_DOWN, 0), (0, 1): (R_DOWN, 1), (2, 0): (R_DOWN, 2), (2, 1): (R_DOWN, 3),
         (4, 0): (R_FFN, 0), (4, 1): (R_FFN, 1), (6, 0): (R_G1, 0), (6, 1): (R_FFN, 2), (1, 0): (R_G1, 1)}

class G(G1mod.G):
    def __init__(self, stamp=False, WK=3, WV=3, rot=3, rotw=1, qpos=25, prog_t=22, progw_t=-1, WD=4, wo_start=0, wo_per=1, sdelay=0, WK0=2, wk_sw=16, k2_t=6, WV2=6, wv_sw=16, hold=1, pf=1, WKL=6, wkl_sw=6, lagmask=0x72, diag_xcc=0, diag_role=-1, diag_until=0, diag_cls=-1, diag_idx=-1, ntp='kv', cpf=1, pfb=1, nEf=8, nEd=6, late=1, pfl_t=8, light=0, psleep=0, abl='', nst=0, st0=5, stp=3, allsh=0, pf1_t=4, pf2_t=9, ilv=0, rotm=1, tlbw=1, cxfirst=1, vpf=3, h1probe=1, lagv=0, rk=-1, rth1=128, rth2=208, WVa=2, WVb=4, WVc=8, hdelay=0, trig=0, trsh=0, red_direct=27, WDM=2, k2_n=8, pre='V,V,VV,VW,VWW,VWW,VVW,VWW,VVWW'):
        self.sdelay = sdelay; self.WK0 = WK0; self.wk_sw = wk_sw; self.k2_t = k2_t; self.WV2 = WV2; self.wv_sw = wv_sw; self.hold = hold; self.pf = pf; self.late = late; self.pfl_t = pfl_t; self.psleep = psleep; self.light = light; self.light_set = (0, 11, 5) if light == 1 else (0, 11); self.hdelay = hdelay; self.rk = rk; self.lagv = lagv; self.h1probe = h1probe; self.cxfirst = cxfirst; self.tlbw = tlbw; self.rotm = rotm; self.ilv = ilv; self.pf1_t = pf1_t; self.allsh = allsh; self.pf2_t = pf2_t; self.nst = nst; self.st0 = st0; self.stp = stp; self.abl = abl; self.vpf = vpf; self.rth1 = rth1; self.rth2 = rth2; self.WVa = WVa; self.WVb = WVb; self.WVc = WVc; self.trig = trig; self.trsh = trsh; self.red_direct = red_direct; self.pfb = pfb; self.cpf = cpf; self.ntp = ntp; self.cur_nt = 'nt'; self.diag_until = diag_until; self.diag_xcc = diag_xcc; self.diag_role = diag_role; self.diag_cls = diag_cls; self.diag_idx = diag_idx; self.cur_cls = -1; self.nEf = nEf; self.nEd = nEd; self.WKL = WKL; self.wkl_sw = wkl_sw; self.lagmask = lagmask; self.WDM = WDM; self.k2_n = k2_n; self.pre = pre.split(',')
        self.a = Asm(); self.stamp_on = stamp
        self.WK = WK; self.WV = WV; self.rot = rot; self.rotw = rotw; self.qpos = qpos; self.prog_t = prog_t
        self.progw_t = progw_t; self.WD = WD; self.wo_start = wo_start; self.wo_per = wo_per

    def stamp(self, i):
        if self.diag_until and i == self.diag_idx and (self.cur_cls == self.diag_cls or (self.cur_cls == 99 and self.diag_cls > 0)):
            if self.cur_cls == 99:
                L = self.a.label('L_ds')
                self.a(f's_cmp_lg_u32 s7, {self.diag_cls}\ns_cbranch_scc1 {L}\ns_memrealtime s[100:101]\ns_waitcnt lgkmcnt(0)\n{L}:')
            elif self.diag_role >= 0:
                L = self.a.label('L_ds')
                self.a(f's_cmp_lg_u32 s7, {self.diag_role}\ns_cbranch_scc1 {L}\ns_memrealtime s[100:101]\ns_waitcnt lgkmcnt(0)\n{L}:')
            else:
                self.a('s_memrealtime s[100:101]\ns_waitcnt lgkmcnt(0)')
        if self.light and i not in self.light_set: return
        super().stamp(i)

    def diag_end(self):
        if self.diag_until:
            L = self.a.label('L_diag')
            if self.diag_xcc:
                self.a('s_getreg_b32 s97, hwreg(HW_REG_XCC_ID)\ns_sub_u32 s97, s97, s2\ns_and_b32 s97, s97, 7')
                if self.diag_xcc == 2: self.a('s_sub_u32 s97, 7, s97')
                self.a('s_mul_i32 s97, s97, 400\ns_add_u32 s100, s100, s97')
            self.a(f'{L}:\ns_sleep 1\ns_memrealtime s[98:99]\ns_waitcnt lgkmcnt(0)\ns_sub_u32 s98, s98, s100\ns_cmp_lt_i32 s98, {self.diag_until*100}\ns_cbranch_scc1 {L}')

    def ln_stats1(self, U, T, s_m, s_rs):
        a = self.a
        a(f'v_readlane_b32 s86, v{U}, 0')
        for i in range(5):
            a(f'v_pk_add_f32 v[{T+4}:{T+5}], v[{U+2*i}:{U+2*i+1}], s[86:87] op_sel_hi:[1,0] neg_lo:[0,1] neg_hi:[0,1]')
            if i == 0:
                a(f'v_pk_mul_f32 v[{T+2}:{T+3}], v[{T+4}:{T+5}], v[{T+4}:{T+5}]')
                a(f'v_add_f32 v{T}, v{T+4}, v{T+5}')
            else:
                a(f'v_pk_fma_f32 v[{T+2}:{T+3}], v[{T+4}:{T+5}], v[{T+4}:{T+5}], v[{T+2}:{T+3}]')
                a(f'v_add_f32 v{T+1}, v{T+4}, v{T+5}\nv_add_f32 v{T}, v{T}, v{T+1}')
        a(f'v_add_f32 v{T+1}, v{T+2}, v{T+3}')
        for m in ('row_ror:8 row_mask:0xf', 'row_ror:4 row_mask:0xf', 'row_ror:2 row_mask:0xf', 'row_ror:1 row_mask:0xf', 'row_bcast:15 row_mask:0xa', 'row_bcast:31 row_mask:0xc'):
            for v in (T, T + 1): a(f'v_add_f32_dpp v{v}, v{v}, v{v} {m} bank_mask:0xf')
        a(f'''
        v_mul_f32 v{T}, 0x3acccccd, v{T}
        v_mul_f32 v{T+1}, 0x3acccccd, v{T+1}
        v_fma_f32 v{T+1}, -v{T}, v{T}, v{T+1}
        v_add_f32 v{T}, s86, v{T}
        v_max_f32 v{T+1}, 0, v{T+1}
        v_cvt_pk_bf16_f32 v{T}, v{T}, v{T+1}
        v_and_b32 v{T+1}, s84, v{T}
        v_lshlrev_b32 v{T}, 16, v{T}
        v_add_f32 v{T+1}, 0x3727c5ac, v{T+1}
        v_readlane_b32 s{s_m}, v{T}, 63
        ''')
        self.bf1(T + 1)
        a(f'v_sqrt_f32 v{T+1}, v{T+1}')
        self.bf1(T + 1)
        a(f'v_rcp_f32 v{T+1}, v{T+1}')
        a(f's_nop 0\nv_readlane_b32 s{s_rs}, v{T+1}, 63')

    def signal(self, cnt):
        self.a(f'''
        s_mov_b64 exec, 1
        v_mov_b32 v14, 1
        ds_add_u32 v13, v14 offset:{cnt}
        s_mov_b64 exec, -1
        ''')

    def arrive2(self, cnt, last, skip, reads):
        a = self.a
        a(f'''
        s_mov_b64 exec, 1
        v_mov_b32 v14, 1
        ds_add_rtn_u32 v14, v13, v14 offset:{cnt}
        s_mov_b64 exec, -1
        ''')
        for r in reads: a(r)
        a(f'''
        s_waitcnt lgkmcnt({min(len(reads), 15)})
        v_readfirstlane_b32 s88, v14
        s_cmp_lg_u32 s88, {last}
        s_cbranch_scc1 {skip}
        ''')

    def wait2(self, cnt, target, reads):
        a = self.a
        L = a.label('L_w2'); D = a.label('L_w2d')
        a(f's_mov_b32 s89, {SPIN_LIMIT * 16}\n{L}:\nds_read_b32 v14, v13 offset:{cnt}')
        for r in reads: a(r)
        a(f'''
        s_waitcnt lgkmcnt({len(reads)})
        v_readfirstlane_b32 s88, v14
        s_cmp_ge_u32 s88, {target}
        s_cbranch_scc1 {D}
        s_sub_u32 s89, s89, 1
        s_cbranch_scc0 {L}
        {D}:
        s_waitcnt lgkmcnt(0)
        ''')

    def tag_from(self, v):
        self.a(f'''
        s_mov_b32 s85, 1664525
        v_mul_lo_u32 v{v}, s85, v{v}
        v_add_u32 v{v}, 1013904223, v{v}
        v_readfirstlane_b32 s94, v{v}
        ''')

    def poll(self, name, loads, check, sleep, tagged=False, lanemask=False):
        a = self.a
        a(f's_mov_b32 s89, {SPIN_LIMIT}\nL_{name}_poll:')
        for l in loads: a(l)
        a('s_waitcnt vmcnt(0)')
        if tagged:
            for i in range(0, len(check), 2):
                a(f'v_xor_b32 v36, s94, v{check[i]}\nv_xor_b32 v37, s94, v{check[i+1]}')
                a('v_or_b32 v38, v36, v37' if i == 0 else 'v_or3_b32 v38, v38, v36, v37')
            a('v_cmp_ne_u32 vcc, 0, v38')
        else:
            c = list(check)
            if len(c) % 2 == 0:
                a(f'v_max_u32 v38, v{c[0]}, v{c[1]}'); c = c[2:]
            else:
                a(f'v_max3_u32 v38, v{c[0]}, v{c[1]}, v{c[2]}'); c = c[3:]
            for i in range(0, len(c), 2): a(f'v_max3_u32 v38, v38, v{c[i]}, v{c[i+1]}')
            a('v_cmp_eq_u32 vcc, -1, v38')
        a(f'''
        s_cbranch_vccz L_{name}_ok
        {"s_mov_b64 exec, vcc" if lanemask else ""}
        {"s_sleep %d" % sleep if sleep else ""}
        s_sub_u32 s89, s89, 1
        s_cbranch_scc0 L_{name}_poll
        L_{name}_ok:
        {"s_mov_b64 exec, -1" if lanemask else ""}
        ''')

    def prologue(self):
        a = self.a
        a(f'''
        s_load_dwordx16 s[16:31], s[0:1], 0
        {'s_memrealtime s[100:101]' if self.diag_until else ''}
        {'s_memrealtime s[98:99]' if self.stamp_on else ''}
        v_lshrrev_b32 v1, 6, v0
        s_getpc_b64 s[86:87]
        L_pc0:
        v_readfirstlane_b32 s3, v1
        v_lshlrev_b32 v3, 7, v0
        s_cmpk_ge_u32 s2, 256
        s_cbranch_scc1 L_end
        v_min_u32 v3, L_code_end-L_pc0-4, v3
        v_and_b32 v2, 63, v0
        {'global_load_dword v161, v3, s[86:87]' if self.cpf else ''}
        s_load_dwordx8 s[32:39], s[0:1], 64
        s_load_dwordx4 s[40:43], s[0:1], 96
        v_lshlrev_b32 v7, 4, v2          ; lane*16
        s_cmp_lt_u32 s3, 4
        s_cbranch_scc1 L_control
        ''')

    def common2(self):
        a = self.a
        a(f'''
        v_mov_b32 v13, {LM}
        s_mov_b32 s84, 0xffff0000
        v_mov_b32 v15, 0
        s_lshr_b32 s13, s2, 5            ; b
        s_and_b32 s14, s2, 31            ; h
        ''')

    def decode(self):
        a = self.a
        ext = 0
        for (x, kh), (r, idx) in EXTRA.items(): ext |= (r | idx << 2) << (4 * (2 * x + kh))
        a(f'''
        s_and_b32 s4, s2, 7              ; x
        s_lshr_b32 s5, s2, 3             ; u
        s_mov_b32 s7, 0
        s_mov_b32 s8, 0
        ''')
        for lo, hi, role, mul in ((0, 2, R_G1, 2), (6, 14, R_Q, 8), (14, 19, R_MOD, 5), (19, 25, R_FFN, 6), (25, 29, R_DOWN, 4), (29, 30, R_RED, 1)):
            a(f'''
            s_sub_u32 s9, s5, {lo}
            s_mul_i32 s10, s4, {mul}
            s_add_u32 s10, s10, s9
            s_cmp_lt_u32 s9, {hi-lo}
            s_cselect_b32 s7, {role}, s7
            s_cselect_b32 s8, s10, s8
            ''')
        a(f'''
        s_sub_u32 s9, s5, 2              ; extras
        s_lshr_b32 s10, s9, 1
        s_and_b32 s10, s10, 1
        s_lshl_b32 s11, s4, 1
        s_add_u32 s10, s10, s11
        s_lshl_b32 s10, s10, 2
        s_mov_b32 s86, {ext & 0xffffffff}
        s_mov_b32 s87, {ext >> 32}
        s_lshr_b64 s[86:87], s[86:87], s10
        s_and_b32 s10, s86, 3            ; role
        s_bfe_u32 s11, s86, 0x20002      ; idx
        s_lshl_b32 s11, s11, 1
        s_lshl_b32 s12, s10, 4
        s_add_u32 s11, s11, s12
        s_and_b32 s12, s9, 1
        s_add_u32 s11, s11, s12
        s_cmp_lt_u32 s9, 4
        s_cselect_b32 s7, s10, s7
        s_cselect_b32 s8, s11, s8
        s_sub_u32 s9, s5, 19
        s_cmp_lt_u32 s9, 10
        s_cselect_b32 s6, s9, 99
        s_sub_u32 s10, s5, 20
        s_cmp_ge_u32 s5, 30
        s_cselect_b32 s6, s10, s6
        s_sub_u32 s9, s5, 2
        s_add_u32 s10, s9, 12
        s_cmp_lt_u32 s9, 4
        s_cselect_b32 s6, s10, s6
        ''')

    def nt(self, c): return 'nt' if c in self.ntp else ''
    def pfld(self, v, srd, so): self.a(f'buffer_load_dword v160, v{v}, {srd}, {so} offen {self.cur_nt}')

    def prefetch(self):
        a = self.a
        self.cur_nt = self.nt('m')
        self.srd(64, 36, 640 * 7680)
        a(f'''
        s_mov_b32 s90, s6
        s_cmp_ge_u32 s90, 16
        s_cbranch_scc1 L_pf_done
        s_lshl_b32 s92, s4, 7
        s_cmp_lt_u32 s3, 2
        s_cbranch_scc1 L_pfA
        s_cmp_eq_u32 s4, 6
        s_cselect_b32 s92, 1024, 0
        s_cmp_eq_u32 s4, 1
        s_cselect_b32 s92, 1152, s92
        s_cmp_eq_u32 s92, 0
        s_cbranch_scc1 L_pf_done
        L_pfA:
        s_lshl_b32 s90, s90, 1
        s_and_b32 s91, s3, 1
        s_add_u32 s90, s90, s91
        s_mul_i32 s91, s90, {20*7680}
        s_add_u32 s92, s92, s91
        v_lshrrev_b32 v16, 1, v2
        v_min_u32 v16, 19, v16
        v_mul_u32_u24 v16, 7680, v16
        v_and_b32 v17, 1, v2
        v_mul_u32_u24 v17, 1280, v17
        v_add_u32 v16, v16, v17
        ''')
        self.pfld(16, 's[64:67]', 's92')
        a('L_pf_done:')

    def prefetch_b(self, sfx):
        a = self.a
        a(f'''
        {'s_cmp_ge_u32 s6, 16' if not self.allsh else 's_bitcmp1_b32 s3, 0'}
        s_cbranch_scc1 L_pb_done
        {'s_mul_i32 s90, s6, 40' if not self.allsh else 's_mul_i32 s90, s5, 20'}
        s_and_b32 s91, s3, 1
        s_mul_i32 s91, s91, 24
        s_add_u32 s90, s90, s91
        v_lshrrev_b32 v16, 3, v2
        v_and_b32 v17, 7, v2
        s_cmp_lt_u32 s3, 2
        s_cbranch_scc1 L_pb3
        ''')
        self.cur_nt = self.nt('q')
        self.srd(64, 22, 640 * 8192)
        a(f'''
        v_lshlrev_b32 v17, 7, v17
        v_lshl_add_u32 v18, v16, 13, v17
        s_lshl_b32 s91, s90, 13
        s_lshl_b32 s92, s4, 10
        s_add_u32 s92, s92, s91
        s_mov_b32 s91, {8*8192}
        s_branch L_pb4
        L_pb3:
        ''')
        self.srd(64, 36, 640 * 7680)
        a(f'''
        v_min_u32 v17, 4, v17
        v_lshlrev_b32 v17, 7, v17
        v_mul_u32_u24 v18, 7680, v16
        v_add_u32 v18, v18, v17
        s_mul_i32 s91, s90, 7680
        s_mul_i32 s92, s4, 640
        s_add_u32 s92, s92, 2560
        s_add_u32 s92, s92, s91
        s_mov_b32 s91, {8*7680}
        ''')
        if 'm' in self.abl: a('s_branch L_pb_done')
        self.lds_wait(C_PF, 1, sleep=2)
        a('L_pb4:')
        self.pfld(18, 's[64:67]', 's92'); a('s_add_u32 s92, s92, s91')
        self.pfld(18, 's[64:67]', 's92'); a('s_add_u32 s92, s92, s91')
        a('s_bitcmp1_b32 s3, 0\ns_cbranch_scc1 L_pb_done')
        self.pfld(18, 's[64:67]', 's92')
        a('L_pb_done:')

    def prefetch_late(self, sfx):
        a = self.a
        self.cur_nt = self.nt('f')
        a(f's_cmp_ge_u32 s6, 16\ns_cbranch_scc1 L_pl_done{sfx}')
        a(f's_cmp_lg_u32 s3, 0\ns_cbranch_scc1 L_pl1{sfx}')
        self.srd(68, 32, 1728 * 1280)
        a(f'''
        v_min_u32 v16, 53, v2
        v_mul_u32_u24 v16, 1280, v16
        s_mul_i32 s91, s6, {108*1280}
        s_lshl_b32 s92, s4, 7
        s_add_u32 s92, s92, s91
        s_lshl_b32 s93, s4, 6
        s_add_u32 s93, s93, 1024
        s_add_u32 s93, s93, s91
        ''')
        self.lds_wait(C_PROGW, 1, sleep=4)
        self.pfld(16, 's[68:71]', 's92')
        a(f's_add_u32 s92, s92, {54*1280}\ns_waitcnt vmcnt(0)')
        self.pfld(16, 's[68:71]', 's92')
        a(f'''
        s_and_b32 s92, s4, 5
        s_cmp_lg_u32 s92, 0
        s_cbranch_scc1 L_pl_done{sfx}
        s_waitcnt vmcnt(0)
        ''')
        self.pfld(16, 's[68:71]', 's93')
        a(f's_add_u32 s93, s93, {54*1280}\ns_waitcnt vmcnt(0)')
        self.pfld(16, 's[68:71]', 's93')
        a(f's_branch L_pl_done{sfx}\nL_pl1{sfx}:')
        self.srd(64, 28, 640 * 3456); self.srd(68, 30, 640 * 3456)
        a(f'''
        s_mul_i32 s92, s4, 3
        s_mov_b32 s91, s92
        s_mov_b32 s93, s92
        s_cmp_eq_u32 s4, 4
        s_cselect_b32 s91, 24, s91
        s_cselect_b32 s93, 25, s93
        s_cmp_eq_u32 s4, 6
        s_cselect_b32 s91, 26, s91
        v_and_b32 v17, 7, v2
        v_min_u32 v18, 2, v17
        v_add_u32 v18, s92, v18
        v_mov_b32 v19, s91
        v_cmp_eq_u32 vcc, 3, v17
        v_cndmask_b32 v18, v18, v19, vcc
        v_mov_b32 v19, s93
        v_cmp_eq_u32 vcc, 4, v17
        v_cndmask_b32 v18, v18, v19, vcc
        v_lshlrev_b32 v17, 7, v18
        v_lshrrev_b32 v16, 3, v2
        v_mul_u32_u24 v18, 3456, v16
        v_add_u32 v18, v18, v17
        s_mul_i32 s92, s6, 5
        s_add_u32 s92, s92, s3
        s_sub_u32 s92, s92, 1
        s_mul_i32 s92, s92, {8*3456}
        ''')
        self.lds_wait(C_PROGW, 1, sleep=4)
        self.pfld(18, 's[64:67]', 's92'); self.pfld(18, 's[68:71]', 's92')
        a(f's_cmp_eq_u32 s3, 3\ns_cbranch_scc1 L_pl_done{sfx}\ns_add_u32 s92, s92, {24*3456}\ns_waitcnt vmcnt(0)')
        self.pfld(18, 's[64:67]', 's92'); self.pfld(18, 's[68:71]', 's92')
        a(f'L_pl_done{sfx}:')

    def dma640_setup(self, rot=False):
        a = self.a
        a(f'''
        v_lshrrev_b32 v16, 3, v2
        s_mul_i32 s85, s3, 160
        {'s_add_u32 s85, s85, s53' if rot else ''}
        v_add_u32 v16, s85, v16
        v_mul_lo_u32 v16, s52, v16
        v_and_b32 v17, 3, v2
        v_lshl_add_u32 v16, v17, 4, v16
        v_mov_b32 v17, 0
        v_mov_b32 v18, s48
        v_mov_b32 v19, s49
        v_mov_b32 v20, s50
        v_mov_b32 v21, s51
        v_and_b32 v22, 4, v2
        v_cmp_ne_u32 vcc, 0, v22
        v_cndmask_b32 v18, v18, v20, vcc
        v_cndmask_b32 v19, v19, v21, vcc
        v_lshl_add_u64 v[4:5], v[16:17], 0, v[18:19]
        s_lshl_b32 s54, s52, 3
        s_mov_b32 s55, 0
        ''')
    def dma640_issue(self, lo, hi, WD=99, rot=False):
        a = self.a
        for n in range(lo, hi):
            a(f's_add_u32 m0, s87, {LW + 1024*n}')
            if n >= WD: a(f's_waitcnt vmcnt({WD-1})')
            a(f'global_load_lds_dwordx4 v[4:5], off {self.cur_nt}')
            if n < 19: a(f'v_lshl_add_u64 v[4:5], v[4:5], 0, {"s[96:97]" if rot and n == 7 else "s[54:55]"}')
    def dma640(self, WD):
        self.dma640_setup(); self.dma640_issue(0, 20, WD)

    def wfrags640(self, younger=None):
        a = self.a
        for n in range(5):
            if younger is not None: a(f's_waitcnt vmcnt({younger + 4 * (4 - n)})')
            for T in range(4):
                b = 40 + 16 * n + 4 * T
                a(f'ds_read_b64_tr_b16 v[{b}:{b+1}], v9 offset:{LW + 4096*n + 32*T}')
                a(f'ds_read_b64_tr_b16 v[{b+2}:{b+3}], v9 offset:{LW + 4096*n + 32*T + 512}')
            a('s_waitcnt lgkmcnt(0)')

    def mfma640(self, skip, extra=()):
        a = self.a
        for T in range(4):
            d = 16 + 4 * T
            for n in range(5):
                b = 40 + 16 * n + 4 * T
                a(f'v_mfma_f32_16x16x32_bf16 v[{d}:{d+3}], v[{b}:{b+3}], v[{120+4*n}:{123+4*n}], {"0" if n == 0 else "v[%d:%d]" % (d, d+3)}')
            if T >= 2: a(f'ds_write_b128 v10, v[{16+4*(T-2)}:{19+4*(T-2)}] offset:{LW + 1024*(T-2)}')
        for T in (2, 3):
            a(f'ds_write_b128 v10, v[{16+4*T}:{19+4*T}] offset:{LW + 1024*T}')
        reads = []
        for w in range(4):
            reads.append(f'ds_read_b128 v[{40+4*w}:{43+4*w}], v11 offset:{LW + 20480*w}')
            reads.append(f'ds_read_b128 v[{56+4*w}:{59+4*w}], v11 offset:{LW + 20480*w + 2048}')
        self.arrive2(C_A, 3, skip, reads + list(extra))

    def red640(self):
        self.a('s_waitcnt lgkmcnt(0)')
        self.sum_partials(40, [40, 44, 48, 52]); self.sum_partials(56, [56, 60, 64, 68])

    def silu(self, ns=range(5)):
        a = self.a
        a(f's_mov_b32 s85, {LOG2E | 0x80000000}')
        for n in ns:
            b = 120 + 4 * n
            for i in range(4): self.unpack(16 + 2 * i, b + i)
            for i in range(8): a(f'v_mul_f32 v{24+i}, s85, v{16+i}')
            for i in range(8): a(f'v_exp_f32 v{24+i}, v{24+i}')
            for i in range(8): a(f'v_add_f32 v{24+i}, 1.0, v{24+i}')
            for i in range(8): a(f'v_rcp_f32 v{24+i}, v{24+i}')
            for i in range(8): a(f'v_mul_f32 v{16+i}, v{16+i}, v{24+i}')
            for i in range(4): a(f'v_cvt_pk_bf16_f32 v{b+i}, v{16+2*i}, v{17+2*i}')

    def add64(self, d, base, off):
        self.a(f's_add_u32 s{d}, s{base}, {off}\ns_addc_u32 s{d+1}, s{base+1}, 0')

    def control(self):
        a = self.a
        CL = '; ' if 'c' in self.abl else ''
        a('L_control:\ns_setprio 3')
        self.common2()
        a('v_lshl_add_u32 v14, v2, 2, v13\nds_write_b32 v14, v15')
        self.decode()
        a('s_waitcnt lgkmcnt(0)\ns_barrier')
        self.srd(44, 42, WS_SIZE)
        if self.stamp_on: a('v_writelane_b32 v15, s98, 13')
        self.cur_cls = -1
        self.stamp(0)
        self.cur_cls = 99
        if 'r' in self.abl: a('s_branch L_ctrl_fin')
        if self.tlbw:
            a(f'''
            s_cmp_lg_u32 s3, 3
            s_cbranch_scc1 L_notlb
            v_mov_b32 v3, 0
            s_lshl_b32 s85, s2, 2
            s_add_u32 s85, s85, 3
            s_lshl_b32 s85, s85, 18
            s_add_u32 s56, s20, s85
            s_addc_u32 s57, s21, 0
            s_mul_i32 s85, s14, 163840
            s_add_u32 s58, s24, s85
            s_addc_u32 s59, s25, 0
            v_mov_b32 v4, 163836
            s_mov_b64 exec, 1
            global_load_dword v162, v3, s[56:57]
            global_load_dword v162, v3, s[58:59]
            global_load_dword v162, v4, s[58:59]
            global_load_dword v162, v3, s[38:39]
            s_mov_b64 exec, -1
            L_notlb:
            ''')
        if self.pf: self.prefetch()
        if self.pfb:
            a(f's_cmp_eq_u32 s7, {R_G1}\ns_cbranch_scc1 L_pb_done')
            self.prefetch_b('')
        a(f'''
        v_mov_b32 v3, 0
        buffer_load_dword v167, v3, s[44:47], 0 offen sc1
        s_mul_i32 s87, s3, 20480
        v_lshrrev_b32 v16, 4, v2         ; s
        v_bfe_u32 v17, v2, 2, 2          ; r4
        v_and_b32 v18, 3, v2             ; c
        v_lshl_add_u32 v19, v16, 3, v17  ; 8s+r4
        v_lshlrev_b32 v9, 7, v19
        v_lshl_add_u32 v9, v18, 3, v9
        v_add_u32 v9, s87, v9
        v_add_u32 v10, s87, v7
        v_and_b32 v17, 7, v2             ; b
        v_bfe_u32 v18, v2, 3, 1          ; t
        v_lshlrev_b32 v11, 8, v16
        v_lshl_add_u32 v11, v17, 4, v11
        v_lshl_add_u32 v11, v18, 10, v11
        v_mul_u32_u24 v19, 1280, v17
        v_lshl_add_u32 v6, v16, 4, v19
        v_lshlrev_b32 v8, 5, v18
        v_lshl_add_u32 v8, v16, 3, v8    ; (16t+4s')*2 bytes
        v_lshlrev_b32 v12, 2, v2         ; lane*4
        s_cmp_eq_u32 s7, {R_Q}
        s_cbranch_scc1 L_role_q
        s_cmp_eq_u32 s7, 0
        s_cbranch_scc1 L_share
        s_cmp_eq_u32 s7, {R_FFN}
        s_cbranch_scc1 L_share
        s_cmp_eq_u32 s7, {R_DOWN}
        s_cbranch_scc1 L_share
        s_cmp_eq_u32 s7, {R_RED}
        s_cbranch_scc1 L_share
        ''')
        self.cur_nt = self.nt('m')
        a(f'''
        s_movk_i32 s52, 7680
        s_cmp_eq_u32 s7, {R_G1}
        s_cbranch_scc1 L_role_g1
        ''')
        if 'm' in self.abl or 'M' in self.abl: a('s_branch L_ctrl_fin')
        self.srd(56, 34, 10240)
        a('s_mul_i32 s85, s3, 320')
        for n in range(5):
            a(f'buffer_load_dwordx4 v[{120+4*n}:{123+4*n}], v6, s[56:59], s85 offen offset:{64*n}')
        a(f'''
        s_lshl_b32 s9, s8, 7
        s_add_u32 s9, s9, 2560
        s_add_u32 s48, s36, s9
        s_addc_u32 s49, s37, 0
        s_add_u32 s50, s48, 64
        s_addc_u32 s51, s49, 0
        s_waitcnt vmcnt(0)
        ''')
        self.silu()
        if self.pfb: self.lds_wait(C_PF2, 1, sleep=2)
        self.dma640(self.WDM)
        a('s_waitcnt vmcnt(0)')
        self.stamp(2)
        self.wfrags640()
        self.mfma640('L_ctrl_end')
        a(f'''
        v_and_b32 v22, 7, v2
        v_mul_u32_u24 v22, 5120, v22
        v_add_u32 v22, v22, v8
        s_lshl_b32 s90, s8, 7
        s_add_u32 s90, s90, {WS_MODO}
        ''')
        self.red640()
        self.pack4(24, 40); self.pack4(26, 56)
        self.sanitize([24, 25, 26, 27])
        self.lds_wait(C_QOK, 1, sleep=8)
        a(f'''
        buffer_store_dwordx2 v[24:25], v22, s[44:47], s90 offen sc1
        buffer_store_dwordx2 v[26:27], v22, s[44:47], s90 offen offset:64 sc1
        s_branch L_ctrl_end
        L_role_g1:
        s_lshl_b32 s9, s8, 6
        s_add_u32 s48, s36, s9
        s_addc_u32 s49, s37, 0
        s_add_u32 s50, s48, 1280
        s_addc_u32 s51, s49, 0
        v_add_u32 v34, v19, v8
        ''')
        self.dma640_setup()
        if self.cxfirst: self.lds_wait(C_CX, 8)
        self.stamp(6)
        self.dma640_issue(0, 20)
        self.srd(60, 16, 10240)
        a(f'''
        buffer_load_dwordx2 v[150:151], v34, s[60:63], s9 offen
        s_lshl_b32 s85, s8, 2
        s_add_u32 s85, s85, s3
        s_lshl_b32 s85, s85, 11
        s_add_u32 s85, s85, {SB2}
        v_mov_b32 v152, -1
        v_mov_b32 v153, -1
        v_mov_b32 v154, -1
        v_mov_b32 v155, -1
        {CL}buffer_store_dwordx4 v[152:155], v7, s[44:47], s85 offen sc1
        {CL}buffer_store_dwordx4 v[152:155], v7, s[44:47], s85 offen offset:1024 sc1
        v_and_b32 v16, 7, v2
        v_mul_u32_u24 v16, {ACTS}, v16
        v_lshrrev_b32 v17, 4, v2
        v_lshl_add_u32 v16, v17, 4, v16
        s_mul_i32 s85, s3, 320
        s_add_u32 s85, s85, {L_ACT}
        v_add_u32 v35, s85, v16
        ''')
        self.signal(C_GO)
        self.stamp(1)
        self.lds_wait(C_ACT, 8)
        for n in range(5): a(f'ds_read_b128 v[{120+4*n}:{123+4*n}], v35 offset:{64*n}')
        self.stamp(3)
        self.wfrags640(younger=3)
        self.tag_from(167)
        a('s_waitcnt vmcnt(0)')
        self.stamp(2)
        self.mfma640('L_ctrl_end')
        a(f'''
        v_and_b32 v22, 7, v2
        v_lshl_add_u32 v23, v22, 3, v13
        ds_read_b64 v[36:37], v23 offset:{L_STAT}
        ''')
        self.red640()
        self.pack4(24, 40); self.pack4(26, 56)
        self.unpack4(56, 26)
        a('v_pk_add_f32 v[56:57], v[56:57], 1.0 op_sel_hi:[1,0]\nv_pk_add_f32 v[58:59], v[58:59], 1.0 op_sel_hi:[1,0]')
        self.round4(56, 26)
        self.unpack4(40, 24)
        self.unpack4(44, 150)
        for i in range(4): a(f'v_sub_f32 v{44+i}, v{44+i}, v36')
        self.round4(44, 28)
        for i in range(4): a(f'v_mul_f32 v{44+i}, v{44+i}, v37')
        self.round4(44, 28)
        a('v_pk_mul_f32 v[44:45], v[44:45], v[56:57]\nv_pk_mul_f32 v[46:47], v[46:47], v[58:59]')
        self.round4(44, 28)
        a('v_pk_add_f32 v[44:45], v[44:45], v[40:41]\nv_pk_add_f32 v[46:47], v[46:47], v[42:43]')
        a(f'''
        v_cvt_pk_bf16_f32 v28, v44, v45
        v_cvt_pk_bf16_f32 v30, v46, v47
        v_mov_b32 v29, s94
        v_mov_b32 v31, s94
        v_lshlrev_b32 v22, 4, v22               ; b*16
        v_lshl_add_u32 v22, v8, 4, v22          ; + (16t+4s')*32 = t*512 + s'*128
        s_lshl_b32 s85, s8, 10
        s_add_u32 s85, s85, {WS_H1}
        buffer_store_dwordx4 v[28:31], v22, s[44:47], s85 offen sc1
        s_branch L_ctrl_end
        ''')
        self.cur_nt = self.nt('q')
        a(f'''
        L_role_q:
        {'s_branch L_ctrl_fin' if 'q' in self.abl else ''}
        s_lshl_b32 s9, s8, 7
        s_add_u32 s48, s22, s9
        s_addc_u32 s49, s23, 0
        s_add_u32 s50, s48, 64
        s_addc_u32 s51, s49, 0
        s_movk_i32 s52, 8192
        ''')
        if self.pfb: self.lds_wait(C_PF, 1, sleep=2)
        self.dma640(99)
        a(f'''
        s_and_b32 s85, s8, 1
        s_lshl_b32 s85, s85, 2
        s_add_u32 s85, s85, s3
        s_lshl_b32 s85, s85, 5
        s_lshr_b32 s86, s8, 1
        s_add_u32 s85, s85, s86
        s_mul_i32 s85, s85, 2560
        s_add_u32 s85, s85, {WS_P}
        v_mov_b32 v152, -1
        v_mov_b32 v153, -1
        v_mov_b32 v154, -1
        v_mov_b32 v155, -1
        v_lshlrev_b32 v19, 3, v2
        {CL}buffer_store_dwordx4 v[152:155], v7, s[44:47], s85 offen sc1
        {CL}buffer_store_dwordx4 v[152:155], v7, s[44:47], s85 offen offset:1024 sc1
        {CL}buffer_store_dwordx2 v[152:153], v19, s[44:47], s85 offen offset:2048 sc1
        ''')
        self.signal(C_GO)
        a('s_waitcnt vmcnt(0)')
        self.stamp(2)
        self.tag_from(167)
        self.wfrags640()
        a(f'''
        s_mul_i32 s90, s3, 5120
        s_add_u32 s90, s90, {WS_H1}
        s_add_u32 s91, s90, 4096
        ''')
        self.stamp(3)
        if self.h1probe:
            a('v_min_u32 v34, 4, v2\nv_lshlrev_b32 v34, 10, v34')
            self.poll('h1p', ['buffer_load_dword v35, v34, s[44:47], s90 offen offset:1020 sc1'], [35, 35], 2, tagged=True)
        loads = [f'buffer_load_dwordx4 v[{120+4*n}:{123+4*n}], v7, s[44:47], s{90 if n < 4 else 91} offen offset:{1024*(n%4)} sc1' for n in range(5)]
        self.poll('h1', loads, [121 + 2 * i for i in range(10)], 4, tagged=True)
        self.stamp(4)
        for n in range(5):
            b = 120 + 4 * n
            a(f'v_mov_b32_dpp v{b+3}, v{b+2} row_ror:8 row_mask:0xf bank_mask:0xf')
            a(f'v_mov_b32 v{b+1}, v{b+2}')
            a(f'v_mov_b32_dpp v{b+2}, v{b} row_ror:8 row_mask:0xf bank_mask:0xf')
        self.mfma640('L_ctrl_end')
        a(f'''
        v_and_b32 v22, 7, v2
        v_lshlrev_b32 v22, 14, v22              ; b*32*512
        v_lshl_add_u32 v22, v8, 1, v22          ; + col*4
        s_lshl_b32 s85, s8, 8                   ; h*512 + half*256
        s_add_u32 s85, s85, {WS_Q}
        v_mov_b32 v29, s94
        v_mov_b32 v31, s94
        v_mov_b32 v33, s94
        v_mov_b32 v35, s94
        ''')
        self.red640()
        a(f'''
        v_cvt_pk_bf16_f32 v28, v40, v41
        v_cvt_pk_bf16_f32 v30, v42, v43
        v_cvt_pk_bf16_f32 v32, v56, v57
        v_cvt_pk_bf16_f32 v34, v58, v59
        buffer_store_dwordx4 v[28:31], v22, s[44:47], s85 offen sc1
        buffer_store_dwordx4 v[32:35], v22, s[44:47], s85 offen offset:128 sc1
        s_branch L_ctrl_end
        ''')
        self.cur_nt = self.nt('f')
        a(f'''
        L_role_ffn:
        s_lshl_b32 s9, s8, 6
        s_add_u32 s48, s28, s9
        s_addc_u32 s49, s29, 0
        s_add_u32 s50, s30, s9
        s_addc_u32 s51, s31, 0
        s_movk_i32 s52, 3456
        ''')
        a(f'''
        s_bitcmp1_b32 s8, 0
        {'' if self.rotm else 's_cmp_eq_u32 s8, 999'}
        s_cselect_b32 s53, 96, 0
        s_cselect_b32 s96, {(-152*3456) & 0xffffffff}, 0
        s_cselect_b32 s97, -1, 0
        s_cselect_b32 s98, 192, 0
        s_cselect_b32 s99, -128, 0
        s_cbranch_scc1 L_ffn_r
        s_movk_i32 s96, {8*3456}
        L_ffn_r:
        ''')
        self.dma640_setup(rot=True)
        self.dma640_issue(0, self.nEf, 1, rot=True)
        self.lds_wait(C_DONE, 5, sleep=2)
        self.dma640_issue(self.nEf, 20, rot=True)
        self.wfrags640(younger=0)
        self.stamp(2)
        a(f'''
        s_mul_i32 s90, s3, 320
        s_add_u32 s90, s90, {WS_H2}
        v_lshrrev_b32 v33, 3, v2                ; row
        v_and_b32 v35, 7, v2                    ; piece
        v_mul_u32_u24 v6, 1280, v33
        v_and_b32 v34, 3, v35
        v_lshl_add_u32 v34, v34, 4, v6
        v_lshl_add_u32 v6, v35, 4, v6
        v_mul_u32_u24 v3, 400, v33
        v_lshl_add_u32 v3, v35, 4, v3
        s_add_u32 s85, s87, {LW + 8192}
        v_add_u32 v3, s85, v3
        v_mul_u32_u24 v4, 400, v35
        v_lshrrev_b32 v33, 4, v2
        v_lshl_add_u32 v4, v33, 4, v4
        v_add_u32 v4, s85, v4
        v_add_u32 v5, s99, v4
        v_add_u32 v4, s98, v4
        v_and_b32 v32, 7, v2
        v_lshlrev_b32 v32, 4, v32
        v_bfe_u32 v33, v2, 3, 1
        v_lshl_add_u32 v32, v33, 8, v32
        v_bfe_u32 v33, v2, 5, 1
        v_lshl_add_u32 v32, v33, 7, v32
        s_lshl_b32 s91, s8, 9
        s_add_u32 s91, s91, {WS_HID}
        ''')
        self.lds_wait(C_WO, 8, sleep=4)
        self.stamp(3)
        loads = ['buffer_load_dwordx4 v[140:143], v6, s[44:47], s90 offen sc1',
                 'buffer_load_dwordx4 v[144:147], v6, s[44:47], s90 offen offset:128 sc1',
                 'buffer_load_dwordx4 v[148:151], v34, s[44:47], s90 offen offset:256 sc1']
        self.poll('h2', loads, list(range(140, 152)), self.psleep, lanemask=True)
        self.stamp(4)
        for n in range(3): a(f'ds_write_b128 v3, v[{140+4*n}:{143+4*n}] offset:{128*n}')
        for n in range(5): a(f'ds_read_b128 v[{120+4*n}:{123+4*n}], v{4 if n < 2 else 5} offset:{64*n}')
        a('s_waitcnt lgkmcnt(0)')
        self.mfma640('L_ctrl_end')
        self.red640()
        self.round4(40, 28); self.round4(56, 30)
        for i in range(4):
            a(f'v_cmp_lt_f32 vcc, 0, v{40+i}\nv_cndmask_b32 v{20+i}, 0, 1.0, vcc')
        a('v_pk_mul_f32 v[40:41], v[40:41], v[20:21]\nv_pk_mul_f32 v[42:43], v[42:43], v[22:23]')
        a('v_pk_mul_f32 v[40:41], v[40:41], v[56:57]\nv_pk_mul_f32 v[42:43], v[42:43], v[58:59]')
        self.pack4(28, 40); self.sanitize([28, 29])
        a(f'''
        v_mov_b32 v30, v28
        v_mov_b32 v31, v29
        v_permlane16_swap_b32 v28, v30
        v_permlane16_swap_b32 v29, v31
        s_mov_b32 exec_lo, 0xffff
        s_mov_b32 exec_hi, 0xffff
        buffer_store_dwordx4 v[28:31], v32, s[44:47], s91 offen sc1
        s_mov_b64 exec, -1
        ''')
        if self.stamp_on and not self.light:
            self.stamp(7); a('s_waitcnt vmcnt(0)'); self.stamp(8)
        a('s_branch L_ctrl_end')
        a('L_role_down:')
        self.srd(72, 32, 1728 * 1280); self.srd(80, 38, 10240)
        a(f'''
        s_add_u32 s76, s42, {WS_HID}
        s_addc_u32 s77, s43, 0
        s_mov_b32 s78, {27*1024}
        s_mov_b32 s79, 0x20000
        v_lshrrev_b32 v16, 1, v2
        v_mul_u32_u24 v4, 1280, v16
        v_and_b32 v16, 1, v2
        v_lshl_add_u32 v4, v16, 4, v4
        s_mul_i32 s85, s3, {7*64*1280}
        s_lshl_b32 s9, s8, 5
        s_add_u32 s85, s85, s9
        s_mul_i32 s87, s3, 14336
        ''')
        a(f's_and_b32 s48, s8, {3 if self.rotm else 0}\ns_lshl_b32 s48, s48, 11')
        for n in range(1, 7):
            a(f's_add_u32 s{48+n}, s{47+n}, 1024\ns_cmp_ge_u32 s{48+n}, 7168\ns_cselect_b32 s{48+n}, 0, s{48+n}')
        a('v_mov_b32 v16, 0\nbuffer_load_dword v162, v16, s[80:83], 0 offen')
        for n in range(14):
            if n == self.nEd: self.lds_wait(C_DONE, 5, sleep=2)
            if n % 2 == 0: a(f's_mul_i32 s55, s{48+n//2}, 80\ns_add_u32 s55, s55, s85')
            else: a(f's_add_u32 s55, s55, {32*1280}')
            a(f's_add_u32 m0, s87, {LW + 1024*n}')
            if n < self.nEd: a(f's_waitcnt vmcnt(0)')
            a(f'buffer_load_dwordx4 v4, s[72:75], s55 offen {self.nt("f")} lds')
        a(f'''
        v_lshrrev_b32 v16, 4, v2         ; s
        v_bfe_u32 v17, v2, 2, 2          ; r4
        v_lshl_add_u32 v19, v16, 3, v17
        v_lshlrev_b32 v9, 5, v19
        v_bfe_u32 v17, v2, 1, 1
        v_lshl_add_u32 v9, v17, 10, v9
        v_and_b32 v17, 1, v2
        v_lshl_add_u32 v9, v17, 3, v9
        v_add_u32 v9, s87, v9
        v_add_u32 v10, s87, v7
        v_and_b32 v17, 7, v2             ; b
        v_bfe_u32 v18, v2, 3, 1          ; a / half
        v_lshlrev_b32 v3, 7, v16
        v_lshl_add_u32 v3, v17, 4, v3
        v_lshl_add_u32 v3, v18, 9, v3
        s_mul_i32 s86, s3, 7168
        v_add_u32 v3, s86, v3
        v_and_b32 v16, 1, v16            ; s'
        v_lshlrev_b32 v11, 8, v16
        v_lshl_add_u32 v11, v17, 4, v11
        v_lshl_add_u32 v11, v18, 10, v11
        v_lshlrev_b32 v8, 4, v18
        v_lshl_add_u32 v8, v16, 3, v8    ; (8a+4s')*2
        v_mul_u32_u24 v5, 5120, v17
        v_add_u32 v5, v5, v8
        v_mul_u32_u24 v6, 1280, v17
        v_add_u32 v6, v6, v8
        s_add_u32 s90, s9, {WS_MODO + 3840}
        s_add_u32 s91, s9, {WS_X1}
        s_movk_i32 s92, 4096
        ''')
        for n in range(7):
            a(f's_waitcnt vmcnt({12 - 2*n})')
            for ac in range(2):
                b = 40 + 8 * n + 4 * ac
                a(f'ds_read_b64_tr_b16 v[{b}:{b+1}], v9 offset:{LW + 2048*n + 16*ac}')
                a(f'ds_read_b64_tr_b16 v[{b+2}:{b+3}], v9 offset:{LW + 2048*n + 16*ac + 128}')
            if n % 2: a('s_waitcnt lgkmcnt(0)')
        self.stamp(2)
        self.tag_from(167)
        self.lds_wait(C_WO, 8, sleep=4)
        self.poll('gb', ['buffer_load_dwordx2 v[32:33], v5, s[44:47], s90 offen sc1'], [32, 33], 4)
        self.unpack4(140, 32)
        self.stamp(3)
        self.poll('x1', ['buffer_load_dwordx2 v[32:33], v6, s[44:47], s91 offen sc1'], [32, 33], 1, lanemask=True)
        self.unpack4(144, 32)
        self.stamp(5)
        if self.hdelay: a(f's_sleep {self.hdelay}')
        for i in range(8): a(f'v_mov_b32 v{16+i}, 0')
        def hld(n): return f'buffer_load_dwordx4 v[{104+4*n}:{107+4*n}], v3, s[76:79], s{48+n} offen sc1'
        if self.trig:
            a(f'''
            s_mov_b32 s89, {SPIN_LIMIT}
            v_lshlrev_b32 v34, {9 + self.trsh}, v2
            v_add_u32 v34, s86, v34
            s_mov_b64 exec, {(1 << (12 >> self.trsh)) - 1}
            L_hd_trig:
            buffer_load_dword v35, v34, s[76:79], 0 offen offset:508 sc1
            s_sub_u32 s89, s89, 1
            s_cbranch_scc1 L_hd_go
            s_waitcnt vmcnt(0)
            v_cmp_ne_u32 vcc, -1, v35
            s_nop 1
            s_bcnt1_i32_b32 s85, vcc_lo
            s_cmp_lt_u32 s85, {self.trig}
            s_cbranch_scc1 L_hd_trig
            L_hd_go:
            s_mov_b64 exec, -1
            s_waitcnt vmcnt(0)
            ''')
            self.stamp(7)
        a(f's_mov_b32 s90, 0x7f\ns_mov_b32 s89, {SPIN_LIMIT}\nv_mov_b32 v34, 0')
        for n in range(7): a(hld(n))
        a('L_hid_poll:')
        for n in range(7):
            b = 104 + 4 * n
            a(f'''
            s_waitcnt vmcnt(6)
            s_bitcmp1_b32 s90, {n}
            s_cbranch_scc0 L_hd_dm{n}
            v_max3_u32 v36, v{b}, v{b+1}, v{b+2}
            v_max_u32 v36, v36, v{b+3}
            v_cmp_eq_u32 vcc, -1, v36
            s_cbranch_vccz L_hd_ok{n}
            {hld(n)}
            s_branch L_hd_nx{n}
            L_hd_ok{n}:
            v_mfma_f32_16x16x32_bf16 v[16:19], v[{40+8*n}:{43+8*n}], v[{b}:{b+3}], v[16:19]
            v_mfma_f32_16x16x32_bf16 v[20:23], v[{44+8*n}:{47+8*n}], v[{b}:{b+3}], v[20:23]
            s_bitset0_b32 s90, {n}
            s_cmp_eq_u32 s90, 0
            s_cbranch_scc1 L_hid_ok
            L_hd_dm{n}:
            buffer_load_dword v35, v34, s[76:79], 0 offen
            L_hd_nx{n}:
            ''')
        a(f'''
        s_sub_u32 s89, s89, 1
        s_cbranch_scc0 L_hid_poll
        L_hid_ok:
        s_nop 7
        ''')
        self.stamp(4)
        if self.stamp_on and not self.light: a(f's_sub_u32 s96, {SPIN_LIMIT}, s89\nv_writelane_b32 v15, s96, 12')
        a(f'ds_write_b128 v10, v[16:19] offset:{LW}\nds_write_b128 v10, v[20:23] offset:{LW + 1024}')
        reads = []
        for w in range(4):
            reads.append(f'ds_read_b128 v[{40+8*w}:{43+8*w}], v11 offset:{LW + 14336*w}')
            reads.append(f'ds_read_b128 v[{44+8*w}:{47+8*w}], v11 offset:{LW + 14336*w + 640}')
        self.arrive2(C_A, 3, 'L_ctrl_end', reads)
        a('s_waitcnt lgkmcnt(0)')
        self.sum_partials(40, [40 + 4 * i for i in range(8)])
        self.round4(40, 28)
        a('v_pk_mul_f32 v[40:41], v[40:41], v[140:141]\nv_pk_mul_f32 v[42:43], v[42:43], v[142:143]')
        self.round4(40, 28)
        a('v_pk_add_f32 v[40:41], v[40:41], v[144:145]\nv_pk_add_f32 v[42:43], v[42:43], v[146:147]')
        self.pack4(28, 40)
        a(f'''
        s_mov_b32 exec_hi, 0
        buffer_store_dwordx2 v[28:29], v6, s[80:83], s9 offen
        s_cmp_lg_u32 s8, 0
        s_cbranch_scc1 L_noepoch
        s_mov_b64 exec, 1
        v_mov_b32 v20, 0
        v_mov_b32 v21, s94
        buffer_store_dword v21, v20, s[44:47], 0 offen sc1
        L_noepoch:
        s_mov_b64 exec, -1
        s_branch L_ctrl_end
        ''')
        a('L_role_red:')
        self.srd(60, 16, 10240)
        a(f'''
        v_lshlrev_b32 v8, 3, v2          ; lane*8
        s_mul_i32 s9, s8, 1280
        buffer_load_dwordx2 v[26:27], v8, s[60:63], s9 offen
        buffer_load_dwordx2 v[28:29], v8, s[60:63], s9 offen offset:512
        buffer_load_dword v30, v12, s[60:63], s9 offen offset:1024
        s_lshl_b32 s90, s8, 14
        s_lshl_b32 s85, s3, 12
        s_add_u32 s90, s90, s85
        s_add_u32 s90, s90, {WS_Q}
        s_waitcnt vmcnt(0)
        ''')
        self.tag_from(167)
        for i in range(5): self.unpack(120 + 2 * i, 26 + i)
        self.lds_wait(C_QOK, 1, sleep=8)
        loads = [f'buffer_load_dwordx4 v[{40+4*n}:{43+4*n}], v7, s[44:47], s90 offen offset:{1024*n} sc1' for n in range(4)]
        self.poll('qall', loads, [41 + 2 * i for i in range(8)], 8, tagged=True)
        a(f'''
        s_mul_i32 s90, s8, 5120
        s_add_u32 s90, s90, {WS_MODO}
        ''')
        loads = []
        for ch in range(3):
            b = 40 + 6 * ch
            loads += [f'buffer_load_dwordx2 v[{b}:{b+1}], v8, s[44:47], s90 offen offset:{1280*ch} sc1',
                      f'buffer_load_dwordx2 v[{b+2}:{b+3}], v8, s[44:47], s90 offen offset:{1280*ch + 512} sc1',
                      f'buffer_load_dword v{b+4}, v12, s[44:47], s90 offen offset:{1280*ch + 1024} sc1']
        self.poll('modo', loads, [40 + 6 * ch + i for ch in range(3) for i in range(5)], 8)
        for ch in range(3):
            for i in range(5): self.unpack(130 + 10 * ch + 2 * i, 40 + 6 * ch + i)
        for i in range(5):
            a(f'v_pk_add_f32 v[{150+2*i}:{151+2*i}], v[{150+2*i}:{151+2*i}], 1.0 op_sel_hi:[1,0]')
            a(f'v_cvt_pk_bf16_f32 v26, v{150+2*i}, v{151+2*i}')
            self.unpack(150 + 2 * i, 26)
        for i in range(10): a(f'v_mov_b32 v{16+i}, 0')
        a(f'''
        s_lshl_b32 s91, s8, 5
        s_lshl_b32 s85, s3, 3
        s_add_u32 s91, s91, s85
        s_mul_i32 s91, s91, 2560
        s_add_u32 s91, s91, {WS_P}
        s_mul_i32 s87, s3, 2560
        v_add_u32 v10, s87, v7
        v_add_u32 v11, s87, v8
        s_add_u32 s92, s9, {WS_H2}
        s_add_u32 s93, s9, {WS_X1}
        ''')
        self.stamp(2)
        self.lds_wait(C_PROG, 1, sleep=8)
        self.stamp(3)
        a(f'''
        s_mov_b32 s90, 0xff
        s_mov_b32 s89, {SPIN_LIMIT}
        v_and_b32 v34, 7, v2
        v_mul_u32_u24 v34, 2560, v34
        s_mov_b32 s86, 0
        L_p_poll:
        s_mov_b32 s95, s90
        s_cmp_lg_u32 s86, 0
        s_cbranch_scc1 L_p_fetch
        ds_read_b32 v14, v13 offset:{C_K2}
        s_waitcnt lgkmcnt(0)
        v_readfirstlane_b32 s88, v14
        s_cmp_ge_u32 s88, 8
        s_cselect_b32 s86, 1, 0
        s_cbranch_scc1 L_p_fetch
        s_sleep 4
        buffer_load_dword v35, v34, s[44:47], s91 offen offset:2556 sc1
        s_waitcnt vmcnt(0)
        v_cmp_ne_u32 vcc, -1, v35
        s_nop 1
        s_and_b32 s95, s90, vcc_lo
        s_cbranch_scc0 L_p_next
        L_p_fetch:
        s_bcnt1_i32_b32 s85, s90
        s_and_b32 s85, s85, s86
        s_bcnt1_i32_b32 s88, s90
        s_cmp_eq_u32 s88, s85
        s_cbranch_scc1 L_p_one
        ''')
        for g in range(8):
            b = 40 + 10 * g
            a(f'''
            s_bitcmp1_b32 s95, {g}
            s_cbranch_scc0 L_p_sk{g}
            s_add_u32 s85, s91, {2560*g}
            buffer_load_dwordx4 v[{b}:{b+3}], v7, s[44:47], s85 offen sc1
            buffer_load_dwordx4 v[{b+4}:{b+7}], v7, s[44:47], s85 offen offset:1024 sc1
            buffer_load_dwordx2 v[{b+8}:{b+9}], v8, s[44:47], s85 offen offset:2048 sc1
            L_p_sk{g}:
            ''')
        a('s_waitcnt vmcnt(0)')
        for g in range(8):
            b = 40 + 10 * g
            a(f'''
            s_bitcmp1_b32 s95, {g}
            s_cbranch_scc0 L_p_ck{g}
            v_max3_u32 v36, v{b}, v{b+1}, v{b+2}
            v_max3_u32 v37, v{b+3}, v{b+4}, v{b+5}
            v_max3_u32 v36, v36, v{b+6}, v{b+7}
            v_max3_u32 v37, v37, v{b+8}, v{b+9}
            v_max_u32 v36, v36, v37
            v_cmp_eq_u32 vcc, -1, v36
            s_cbranch_vccnz L_p_ck{g}
            s_bitset0_b32 s90, {g}
            ''')
            for i in range(5): a(f'v_pk_add_f32 v[{16+2*i}:{17+2*i}], v[{16+2*i}:{17+2*i}], v[{b+2*i}:{b+2*i+1}]')
            a(f'L_p_ck{g}:')
        a(f'''
        s_cmp_eq_u32 s90, 0
        s_cbranch_scc1 L_p_ok
        L_p_next:
        s_sub_u32 s89, s89, 1
        s_cbranch_scc0 L_p_poll
        s_branch L_p_ok
        L_p_one:
        s_ff1_i32_b32 s85, s90
        s_mul_i32 s85, s85, 2560
        s_add_u32 s85, s85, s91
        L_p_one_l:
        buffer_load_dwordx4 v[40:43], v7, s[44:47], s85 offen sc1
        buffer_load_dwordx4 v[44:47], v7, s[44:47], s85 offen offset:1024 sc1
        buffer_load_dwordx2 v[48:49], v8, s[44:47], s85 offen offset:2048 sc1
        s_sub_u32 s89, s89, 1
        s_cbranch_scc1 L_p_ok
        s_waitcnt vmcnt(0)
        v_max3_u32 v36, v40, v41, v42
        v_max3_u32 v37, v43, v44, v45
        v_max3_u32 v36, v36, v46, v47
        v_max3_u32 v37, v37, v48, v49
        v_max_u32 v36, v36, v37
        v_cmp_eq_u32 vcc, -1, v36
        s_cbranch_vccnz L_p_one_l
        v_pk_add_f32 v[16:17], v[16:17], v[40:41]
        v_pk_add_f32 v[18:19], v[18:19], v[42:43]
        v_pk_add_f32 v[20:21], v[20:21], v[44:45]
        v_pk_add_f32 v[22:23], v[22:23], v[46:47]
        v_pk_add_f32 v[24:25], v[24:25], v[48:49]
        L_p_ok:
        ''')
        self.stamp(4)
        a(f'''
        ds_write_b128 v10, v[16:19] offset:{LW}
        ds_write_b128 v10, v[20:23] offset:{LW + 1024}
        ds_write_b64 v11, v[24:25] offset:{LW + 2048}
        ''')
        reads = []
        for w in range(4):
            b = 40 + 10 * w
            reads.append(f'ds_read_b128 v[{b}:{b+3}], v7 offset:{LW + 2560*w}')
            reads.append(f'ds_read_b128 v[{b+4}:{b+7}], v7 offset:{LW + 2560*w + 1024}')
            reads.append(f'ds_read_b64 v[{b+8}:{b+9}], v8 offset:{LW + 2560*w + 2048}')
        self.arrive2(C_A, 3, 'L_ctrl_end', reads)
        a('s_waitcnt lgkmcnt(0)')
        U = 40
        def P(r, i): return f'v[{r+2*i}:{r+2*i+1}]'
        for i in range(5): a(f'v_pk_add_f32 {P(40,i)}, {P(40,i)}, {P(50,i)}')
        for i in range(5): a(f'v_pk_add_f32 {P(60,i)}, {P(60,i)}, {P(70,i)}')
        for i in range(5): a(f'v_pk_add_f32 {P(40,i)}, {P(40,i)}, {P(60,i)}')
        def pk():
            for i in range(5): a(f'v_cvt_pk_bf16_f32 v{26+i}, v{U+2*i}, v{U+2*i+1}')
        def rnd():
            pk()
            for i in range(5): self.unpack(U + 2 * i, 26 + i)
        rnd()
        for i in range(5): a(f'v_pk_mul_f32 {P(U,i)}, {P(U,i)}, {P(130,i)}')
        rnd()
        for i in range(5): a(f'v_pk_add_f32 {P(U,i)}, {P(U,i)}, {P(120,i)}')
        for i in range(5): a(f'v_cvt_pk_bf16_f32 v{160+i}, v{U+2*i}, v{U+2*i+1}')
        self.sanitize(range(160, 165))
        for i in range(5): self.unpack(U + 2 * i, 160 + i)
        self.ln_stats1(U, 32, 96, 98)
        for i in range(5): a(f'v_pk_add_f32 {P(U,i)}, {P(U,i)}, s[96:97] op_sel_hi:[1,0] neg_lo:[0,1] neg_hi:[0,1]')
        rnd()
        for i in range(5): a(f'v_pk_mul_f32 {P(U,i)}, {P(U,i)}, s[98:99] op_sel_hi:[1,0]')
        rnd()
        for i in range(5): a(f'v_pk_mul_f32 {P(U,i)}, {P(U,i)}, {P(150,i)}')
        rnd()
        for i in range(5): a(f'v_pk_add_f32 {P(U,i)}, {P(U,i)}, {P(140,i)}')
        pk()
        self.sanitize(range(26, 31))
        a(f'''
        buffer_store_dwordx2 v[26:27], v8, s[44:47], s92 offen sc1
        buffer_store_dwordx2 v[28:29], v8, s[44:47], s92 offen offset:512 sc1
        buffer_store_dword v30, v12, s[44:47], s92 offen offset:1024 sc1
        buffer_store_dwordx2 v[160:161], v8, s[44:47], s93 offen sc1
        buffer_store_dwordx2 v[162:163], v8, s[44:47], s93 offen offset:512 sc1
        buffer_store_dword v164, v12, s[44:47], s93 offen offset:1024 sc1
        L_ctrl_end:
        ''')
        self.stamp(11)
        a(f's_cmp_eq_u32 s7, {R_DOWN}\ns_cbranch_scc1 L_ctrl_fin\ns_cmp_eq_u32 s7, {R_FFN}\ns_cbranch_scc1 L_ctrl_fin\ns_cmp_eq_u32 s7, {R_RED}\ns_cbranch_scc1 L_ctrl_fin')
        a('L_share:')
        if 't' in self.abl: a('s_branch L_ctrl_fin')
        if self.late: self.prefetch_late('e')
        a(f's_cmp_eq_u32 s7, {R_DOWN}\ns_cbranch_scc1 L_role_down\ns_cmp_eq_u32 s7, {R_FFN}\ns_cbranch_scc1 L_role_ffn\ns_cmp_eq_u32 s7, {R_RED}\ns_cbranch_scc1 L_role_red')
        a('L_ctrl_fin:')
        self.stamp_flush()
        self.diag_end()
        a('s_endpgm')

    def stream(self):
        a = self.a
        self.cur_cls = 0
        WK, WV = self.WK, self.WV
        NV = 12
        KV = lambda t: 40 + 4 * t
        assert self.rotw == 1 and self.WK0 >= 2
        a(f'''
        s_sub_u32 s15, s3, 4             ; sw
        s_lshl_b32 s85, s15, {10 if self.ilv else 15}
        v_add_u32 v1, s85, v7
        s_mul_i32 s91, s2, {self.rot}
        {'' if self.ilv else 's_add_u32 s91, s91, s15'}
        s_and_b32 s91, s91, 31
        s_lshl_b32 s91, s91, {13 if self.ilv else 10}          ; rotation
        s_lshl_b32 s85, s2, 2
        s_add_u32 s85, s85, 3
        s_lshl_b32 s85, s85, 18
        s_mov_b32 s51, 0x20000
        s_lshl_b32 s50, s51, 1
        {'s_sub_u32 s90, s50, 1' if self.ilv else 's_movk_i32 s90, 0x7fff'}
        s_addk_i32 s91, {8192 if self.ilv else 1024}
        s_and_b32 s92, s91, s90
        s_addk_i32 s91, {-8192 if self.ilv else -1024}
        s_waitcnt lgkmcnt(0)
        s_add_u32 s48, s18, s85
        s_addc_u32 s49, s19, 0
        buffer_load_dwordx4 v[40:43], v1, s[48:51], s91 offen {self.nt('k')}
        buffer_load_dwordx4 v[44:47], v1, s[48:51], s92 offen {self.nt('k')}
        s_add_u32 s52, s20, s85
        s_addc_u32 s53, s21, 0
        s_mov_b32 s54, 0x40000
        s_mov_b32 s55, 0x20000
        s_barrier
        ''')
        self.common2()
        self.srd(44, 42, WS_SIZE)
        if self.stamp_on: a('v_writelane_b32 v15, s98, 13')
        self.cur_cls = -1
        self.stamp(0)
        self.cur_cls = 0
        self.decode()
        for _ in range(self.sdelay): a('s_sleep 32')
        if self.hold > 1: a(f's_cmp_eq_u32 s7, {R_Q}\ns_cbranch_scc1 L_hold')
        if 'r' in self.abl: a('s_branch L_nohold')
        a(f's_cmp_lg_u32 s7, {R_G1}\ns_cbranch_scc1 L_nohold')
        self.srd(56, 34, 10240); self.srd(60, 16, 10240)
        a('s_mul_i32 s90, s15, 1280\nv_lshlrev_b32 v12, 2, v2')
        for n in range(5): a(f'buffer_load_dword v{80+n}, v12, s[56:59], s90 offen offset:{256*n}')
        for n in range(5): a(f'buffer_load_dword v{86+n}, v12, s[60:63], s90 offen offset:{256*n}')
        if self.cxfirst: self.signal(C_CX)
        a(f'''
        s_mul_i32 s90, s15, {ACTS}
        s_add_u32 s90, s90, {L_ACT}
        v_add_u32 v12, s90, v12
        s_mov_b32 s85, {LOG2E | 0x80000000}
        s_waitcnt vmcnt(5)
        ''')
        self.stamp(9)
        for i in range(5): self.unpack(52 + 2 * i, 80 + i)
        for i in range(10): a(f'v_mul_f32 v{64+i}, s85, v{52+i}')
        for i in range(10): a(f'v_exp_f32 v{64+i}, v{64+i}')
        for i in range(10): a(f'v_add_f32 v{64+i}, 1.0, v{64+i}')
        for i in range(10): a(f'v_rcp_f32 v{64+i}, v{64+i}')
        for i in range(10): a(f'v_mul_f32 v{52+i}, v{52+i}, v{64+i}')
        for i in range(5): a(f'v_cvt_pk_bf16_f32 v{80+i}, v{52+2*i}, v{53+2*i}')
        for i in range(5): a(f'ds_write_b32 v12, v{80+i} offset:{256*i}')
        a('s_waitcnt vmcnt(0)')
        self.ln_stats(86, 52, 64, 90, 92)
        a(f'''
        v_mov_b32 v28, s90
        v_mov_b32 v29, s92
        s_lshl_b32 s85, s15, 3
        v_add_u32 v30, s85, v13
        ds_write_b64 v30, v[28:29] offset:{L_STAT}
        ''')
        self.signal(C_ACT)
        a('L_hold:')
        if self.hold: self.lds_wait(C_GO, 4, sleep=2)
        a('L_nohold:')
        q = ['K0', 'K1']
        def wait_for(name):
            i = len(q) - 1 - q[::-1].index(name)
            n = len(q) - 1 - i
            a(f's_waitcnt vmcnt({min(n, 63)})')
        def ld(t, slot, srd, nm):
            a(f's_add_u32 s92, s91, {t*(8192 if self.ilv else 1024)}\ns_and_b32 s92, s92, {0x3ffff if self.ilv else 0x7fff}')
            a(f'buffer_load_dwordx4 v[{KV(slot)}:{KV(slot)+3}], v1, {srd}, s92 offen {self.nt(nm[0].lower())}')
            q.append(nm)
        qloads = ['buffer_load_dwordx4 v[4:7], v12, s[44:47], s93 offen sc1', 'buffer_load_dwordx4 v[16:19], v12, s[44:47], s93 offen offset:16 sc1']
        for t in range(1, 32):
            wk = WK if t >= self.wk_sw else self.WK0
            if t >= wk:
                if self.WKL > wk and t >= self.wkl_sw:
                    L = a.label('L_kw')
                    a(f's_waitcnt vmcnt({self.WKL-1})\ns_cbranch_vccnz {L}\ns_waitcnt vmcnt({wk-1})\n{L}:')
                else: a(f's_waitcnt vmcnt({wk-1})')
            if t == self.WK0: self.stamp(8)
            if t == self.pfl_t: self.signal(C_PROGW)
            if t == self.pf1_t: self.signal(C_PF)
            if t == self.pf2_t: self.signal(C_PF2)
            if t >= 2: ld(t, t, 's[48:51]', f'K{t}')
            if t == self.WK0 - 1:
                a(f'''
                v_mov_b32 v3, 0
                buffer_load_dword v35, v3, s[44:47], 0 offen sc1
                v_and_b32 v3, 15, v2
                v_lshlrev_b32 v12, 5, v3             ; Q voffset
                s_lshl_b32 s93, s2, 9
                s_add_u32 s93, s93, {WS_Q}
                v_mov_b32 v16, 0xffff
                v_mov_b32 v17, s84
                ''')
                q.append('E')
                for r in range(4):
                    a(f'''
                    v_cmp_eq_u32 vcc, {2*r}, v3
                    v_cndmask_b32 v{8+r}, 0, v16, vcc
                    v_cmp_eq_u32 vcc, {2*r+1}, v3
                    v_cndmask_b32 v{8+r}, v{8+r}, v17, vcc
                    ''')
                a(f'''
                s_mov_b32 s96, 0xcccccccc
                s_mov_b32 s97, 0xcccccccc
                s_mov_b32 s98, 0xaaaaaaaa
                s_mov_b32 s99, 0xaaaaaaaa
                s_mul_i32 s85, s14, 163840
                s_add_u32 s56, s24, s85
                s_addc_u32 s57, s25, 0
                s_mov_b32 s58, 163840
                s_mov_b32 s59, 0x20000
                v_lshrrev_b32 v34, 4, v2
                v_mul_u32_u24 v34, 5120, v34
                v_lshl_add_u32 v34, v3, 4, v34
                s_mul_i32 s85, s15, 20480
                v_add_u32 v34, s85, v34
                s_lshr_b32 s85, {self.lagmask}, s7
                s_bitcmp1_b32 s85, 0
                s_cselect_b64 vcc, -1, 0
                ''')
            if t >= self.st0 and (t - self.st0) % self.stp == 0 and (t - self.st0) // self.stp < self.nst:
                n = (t - self.st0) // self.stp
                if n == 6 and 'r' not in self.abl:
                    a(f's_cmp_lg_u32 s7, {R_G1}\ns_cbranch_scc1 L_stg_ok')
                    self.lds_wait(C_A, 4, sleep=1)
                    a('L_stg_ok:')
                a(f's_lshl_b32 s85, s15, 10\ns_add_u32 m0, s85, {LST + 8192*n}\ns_movk_i32 s85, {(n // 5) * 1280 + (n % 5) * 256}')
                a(f'buffer_load_dwordx4 v34, s[56:59], s85 offen {self.nt("o")} lds')
                q.append(f'S{n}')
            if t == 12:
                self.tag_from(35)
            if t == self.rk:
                self.srd(64, 40, 256)
                a(f'''
                v_mov_b32 v37, 1
                v_mov_b32 v38, 0
                s_mov_b64 exec, 1
                s_cmp_eq_u32 s15, 0
                s_cbranch_scc1 L_rk_at
                buffer_load_dword v37, v38, s[64:67], 0 offen offset:128
                s_branch L_rk_dn
                L_rk_at:
                buffer_atomic_add v37, v38, s[64:67], 0 offen sc0 sc1
                L_rk_dn:
                s_mov_b64 exec, -1
                ''')
                q.append('RK')
            if t == self.qpos:
                for l in qloads: a(l)
                q.append('Q0'); q.append('Q1')
        self.stamp(1)
        wait_for('Q1')
        a(f'''
        s_mov_b32 s89, {SPIN_LIMIT}
        s_mov_b32 s63, 0
        L_q_chk:
        v_xor_b32 v20, s94, v5
        v_xor_b32 v21, s94, v7
        v_xor_b32 v22, s94, v17
        v_xor_b32 v23, s94, v19
        v_or_b32 v20, v20, v21
        v_or3_b32 v20, v20, v22, v23
        v_cmp_ne_u32 vcc, 0, v20
        {'s_branch L_q_ok' if 'r' in self.abl or 'q' in self.abl else ''}
        s_cbranch_vccz L_q_ok
        s_cmp_ge_u32 s63, {self.vpf * 8192}
        s_cbranch_scc1 L_q_nopf
        ''')
        if self.ilv:
            a('''
            s_lshl_b32 s85, s63, 3
            s_add_u32 s85, s85, s91
            v_lshrrev_b32 v38, 3, v2
            v_lshl_add_u32 v38, v38, 13, s85
            v_and_b32 v38, 0x3ffff, v38
            v_and_b32 v39, 7, v2
            v_lshl_add_u32 v38, v39, 7, v38
            s_lshl_b32 s85, s15, 10
            ''')
        else:
            a('''
            s_add_u32 s85, s91, s63
            v_lshl_add_u32 v38, v2, 7, s85
            v_and_b32 v38, 0x7fff, v38
            s_lshl_b32 s85, s15, 15
            ''')
        a(f'''
        buffer_load_dword v39, v38, s[52:55], s85 offen
        s_addk_i32 s63, 8192
        L_q_nopf:
        {qloads[0]}
        {qloads[1]}
        s_waitcnt vmcnt(0)
        s_sub_u32 s89, s89, 1
        s_cbranch_scc0 L_q_chk
        L_q_ok:
        v_mov_b32 v5, v6
        v_mov_b32 v6, v16
        v_mov_b32 v7, v18
        ''')
        self.signal(C_QOK)
        self.stamp(2)
        D = 20
        st = dict(V=0, W=self.nst)
        def ldwo(n):
            tp, c = n // 5, n % 5
            so = ['0', 's60', 's61', 's62'][tp]
            if 'w' in self.abl: return
            a(f'buffer_load_dwordx4 v[{KV(NV+n)}:{KV(NV+n)+3}], v34, s[56:59], {so} offen offset:{256*c} {self.nt("o")}')
            q.append(f'W{n}')
        def pre(g, free):
            for ch in self.pre[g]:
                if ch == 'V':
                    assert st['V'] < NV and st['V'] <= free
                    ld(st['V'], st['V'], 's[52:55]', f"V{st['V']}"); st['V'] += 1
                else:
                    assert NV + st['W'] <= free
                    ldwo(st['W']); st['W'] += 1
        a('s_movk_i32 s60, 1280\ns_movk_i32 s61, 2560\ns_movk_i32 s62, 3840')
        for g in range(8):
            wait_for(f'K{4*g+3}')
            for i in range(4):
                for k in range(4):
                    t = 4 * g + k
                    a(f'v_dot2_f32_bf16 v{D+k}, v{KV(t)+i}, v{4+i}, {"0" if i == 0 else "v%d" % (D+k)}')
            pre(g, 4 * g + 3)
            a(f'v_add_f32_dpp v24, v{D}, v{D} row_ror:8 row_mask:0xf bank_mask:0x3')
            a(f'v_add_f32_dpp v25, v{D+2}, v{D+2} row_ror:8 row_mask:0xf bank_mask:0x3')
            a(f'v_add_f32_dpp v24, v{D+1}, v{D+1} row_ror:8 row_mask:0xf bank_mask:0xc')
            a(f'v_add_f32_dpp v25, v{D+3}, v{D+3} row_ror:8 row_mask:0xf bank_mask:0xc')
            r2 = 26 + (g & 1)
            a(f'v_add_f32_dpp v{r2}, v24, v24 row_shl:4 row_mask:0xf bank_mask:0x5')
            a(f'v_add_f32_dpp v{r2}, v25, v25 row_shr:4 row_mask:0xf bank_mask:0xa')
            if g & 1:
                r3 = 28 + ((g >> 1) & 1)
                a(f'v_add_f32_dpp v30, v26, v26 quad_perm:[2,3,0,1] row_mask:0xf bank_mask:0xf')
                a(f'v_add_f32_dpp v31, v27, v27 quad_perm:[2,3,0,1] row_mask:0xf bank_mask:0xf')
                a(f'v_cndmask_b32 v{r3}, v30, v31, s[96:97]')
            if (g & 3) == 3:
                a(f'v_add_f32_dpp v30, v28, v28 quad_perm:[1,0,3,2] row_mask:0xf bank_mask:0xf')
                a(f'v_add_f32_dpp v31, v29, v29 quad_perm:[1,0,3,2] row_mask:0xf bank_mask:0xf')
                a(f'v_cndmask_b32 v{32 + (g >> 2)}, v30, v31, s[98:99]')
        a(f'''
        v_cvt_pk_bf16_f32 v20, v32, v33
        s_mov_b32 s86, 0x3db504f3
        ''')
        self.unpack(32, 20)
        a('v_pk_mul_f32 v[32:33], v[32:33], s[86:87] op_sel_hi:[1,0]\nv_cvt_pk_bf16_f32 v20, v32, v33')
        self.unpack(32, 20)
        a('v_max_f32 v20, v32, v33')
        self.wave_red(20, 'max')
        a(f'''
        v_readlane_b32 s86, v20, 63              ; m_w
        s_mov_b32 s90, {LOG2E}
        v_subrev_f32 v20, s86, v32
        v_subrev_f32 v21, s86, v33
        v_mul_f32 v20, s90, v20
        v_mul_f32 v21, s90, v21
        v_exp_f32 v20, v20
        v_exp_f32 v21, v21
        v_add_f32 v21, v20, v21
        ''')
        self.wave_red(21)
        a(f'''
        v_mov_b32 v20, s86
        s_lshl_b32 s85, s15, 3
        v_add_u32 v22, s85, v13
        s_mov_b32 exec_lo, 0
        s_mov_b32 exec_hi, 0x80000000
        ds_write_b64 v22, v[20:21] offset:{L_SM}
        s_mov_b64 exec, -1
        ''')
        if self.rk >= 0:
            a(f's_cmp_lg_u32 s15, 0\ns_cbranch_scc1 L_rk_nw\ns_mov_b64 exec, 1\nds_write_b32 v13, v37 offset:{L_RANK}\ns_mov_b64 exec, -1\nL_rk_nw:')
        if self.nst:
            a(f's_lshl_b32 s85, s15, 10\ns_add_u32 s85, s85, {LST}\nv_lshl_add_u32 v36, v2, 4, s85\nv_add_u32 v37, 32768, v36')
            for n in range(self.nst):
                a(f'ds_read_b128 v[{KV(NV+n)}:{KV(NV+n)+3}], v{36 if n < 4 else 37} offset:{8192*(n if n < 4 else n - 4)}')
        self.stamp(3)
        self.signal(C_SM)
        pre(8, 31)
        self.lds_wait(C_SM, 8)
        self.stamp(4)
        a(f'''
        v_and_b32 v22, 7, v2
        v_lshl_add_u32 v22, v22, 3, v13
        ds_read_b64 v[20:21], v22 offset:{L_SM}
        s_lshr_b32 s63, {self.lagv}, s7
        s_and_b32 s63, s63, 1
        s_waitcnt lgkmcnt(0)
        v_max_f32_dpp v22, v20, v20 row_ror:4 row_mask:0xf bank_mask:0xf
        v_max_f32_dpp v22, v22, v22 row_ror:2 row_mask:0xf bank_mask:0xf
        v_max_f32_dpp v22, v22, v22 row_ror:1 row_mask:0xf bank_mask:0xf
        v_sub_f32 v20, v20, v22
        v_mul_f32 v20, s90, v20
        v_exp_f32 v20, v20
        v_sub_f32 v32, v32, v22
        v_sub_f32 v33, v33, v22
        v_mul_f32 v21, v21, v20
        v_mul_f32 v32, s90, v32
        v_mul_f32 v33, s90, v33
        v_add_f32_dpp v21, v21, v21 row_ror:4 row_mask:0xf bank_mask:0xf
        v_exp_f32 v32, v32
        v_exp_f32 v33, v33
        v_add_f32_dpp v21, v21, v21 row_ror:2 row_mask:0xf bank_mask:0xf
        v_add_f32_dpp v21, v21, v21 row_ror:1 row_mask:0xf bank_mask:0xf
        v_rcp_f32 v21, v21
        v_mul_f32 v32, v32, v21
        v_mul_f32 v33, v33, v21
        v_cvt_pk_bf16_f32 v32, v32, v32
        v_cvt_pk_bf16_f32 v33, v33, v33
        ''')
        issued = st['V']; nwo = st['W']
        for t in range(32):
            A = 20 + 4 * (t & 1)
            for r in range(4):
                a(f'v_and_b32_dpp v{A+r}, v{32 + (t >> 4)}, v{8+r} row_newbcast:{bitrev4(t & 15)} row_mask:0xf bank_mask:0xf')
            wait_for(f'V{t}')
            a(f'v_mfma_f32_16x16x32_bf16 v[16:19], v[{A}:{A+3}], v[{KV(t % NV)}:{KV(t % NV)+3}], {"0" if t == 0 else "v[16:19]"}')
            if not self.lagv:
                while t + (WV if t < self.wv_sw else self.WV2) >= issued and issued < 32:
                    ld(issued, issued % NV, 's[52:55]', f'V{issued}'); issued += 1
            else:
                wbig = max(self.WVc, WV if t < self.wv_sw else self.WV2)
                while t + wbig >= issued and issued < 32:
                    wa = WV if issued - WV < self.wv_sw else self.WV2
                    if issued - wa > t:
                        L = a.label('L_vw')
                        a(f's_cmp_lg_u32 s63, 0\ns_cbranch_scc1 {L}')
                        wait_for(f'V{issued - wa}')
                        a(f'{L}:')
                    ld(issued, issued % NV, 's[52:55]', f'V{issued}'); issued += 1
            if t >= self.wo_start:
                for _ in range(self.wo_per):
                    if nwo < 20: ldwo(nwo); nwo += 1
            if t == self.prog_t: self.signal(C_PROG)
            if t + 32 == self.pfl_t: self.signal(C_PROGW)
            if t == self.red_direct: self.signal(C_K2)
            if t == 28:
                a(f'''
                v_lshlrev_b32 v7, 4, v2
                v_and_b32 v3, 15, v2
                v_lshrrev_b32 v4, 4, v2
                v_lshlrev_b32 v5, 5, v3
                v_lshl_add_u32 v5, v4, 4, v5          ; (8j+4s')*4
                s_lshl_b32 s85, s15, 9
                s_add_u32 s85, s85, {L_OP}
                v_add_u32 v6, s85, v5
                s_mul_i32 s85, s15, 2560
                s_add_u32 s85, s85, {L_WP}
                v_add_u32 v5, s85, v5
                s_lshl_b32 s85, s15, 6
                s_add_u32 s85, s85, {L_OP}
                v_lshl_add_u32 v4, v4, 4, s85
                v_and_b32 v35, 31, v2
                v_lshlrev_b32 v35, 4, v35
                v_lshrrev_b32 v36, 5, v2
                v_mul_u32_u24 v36, 10240, v36
                s_lshl_b32 s85, s15, 9
                s_add_u32 s86, s85, {L_WP}
                v_add3_u32 v35, v35, v36, s86
                s_mul_i32 s87, s2, 2560
                s_add_u32 s87, s87, s85
                s_add_u32 s87, s87, {WS_P}
                ''')
        assert nwo == 20
        a(f'''
        s_mov_b32 exec_hi, 0
        ds_write_b128 v6, v[16:19]
        s_mov_b64 exec, -1
        ''')
        self.stamp(5)
        self.signal(C_PV)
        self.wait2(C_PV, 8, [f'ds_read_b128 v[{40+4*w}:{43+4*w}], v4 offset:{512*w}' for w in range(8)])
        self.sum_partials(40, [40 + 4 * i for i in range(8)])
        for r in range(4): a(f'v_cvt_pk_bf16_f32 v{40+r}, v{40+r}, v{40+r}')
        a('s_waitcnt vmcnt(0)')
        self.stamp(6)
        def wr(c): a(f's_mov_b32 exec_hi, 0\nds_write_b128 v5, v[{60+4*c}:{63+4*c}] offset:{512*c}\ns_mov_b32 exec_hi, -1')
        for c in range(5):
            for tp in range(4):
                if c == 0:
                    for r in range(4): a(f'v_and_b32 v{44+4*tp+r}, v{40+tp}, v{8+r}')
                d = 60 + 4 * c; b = KV(NV + 5 * tp + c)
                a(f'v_mfma_f32_16x16x32_bf16 v[{d}:{d+3}], v[{44+4*tp}:{47+4*tp}], v[{b}:{b+3}], {"0" if tp == 0 else "v[%d:%d]" % (d, d+3)}')
            if c >= 2: wr(c - 2)
        wr(3); wr(4)
        self.signal(C_WO)
        a('s_cmp_ge_u32 s15, 5\ns_cbranch_scc1 L_stream_end')
        self.wait2(C_WO, 8, [f'ds_read_b128 v[{40+4*w}:{43+4*w}], v35 offset:{2560*w}' for w in range(4)])
        self.stamp(7)
        self.sum_partials(40, [40, 44, 48, 52])
        for i in range(4): a(f'v_mov_b32 v{44+i}, v{40+i}')
        for i in range(4): a(f'v_permlane32_swap_b32 v{40+i}, v{44+i}')
        a('v_pk_add_f32 v[40:41], v[40:41], v[44:45]\nv_pk_add_f32 v[42:43], v[42:43], v[46:47]')
        self.sanitize(range(40, 44))
        a('''
        s_mov_b32 exec_hi, 0
        buffer_store_dwordx4 v[40:43], v7, s[44:47], s87 offen sc1
        s_mov_b64 exec, -1
        ''')
        self.signal(C_DONE)
        a('L_stream_end:')
        self.stamp(10)
        self.stamp_flush()
        self.diag_end()
        a('L_end:\ns_endpgm')

    def build(self):
        self.prologue(); self.stream(); self.control(); self.a('L_code_end:')
        kn = NAME + '_kernel'
        body = '\n'.join(fix_hazards(self.a.l)) + '\n'
        hdr = open('cdna_kernels/' + NAME + '.s.ref').read().split('; Override launch')[0]
        return hdr + header([f'; @launch grid=(256,1,1) block=(768,1,1) lds={LDS_SIZE}']) + kernel_start(kn) + body + '.section .rodata,"a"\n' + descriptor(kn, vgpr=168, sgpr=102, accum=168)

if __name__ == '__main__':
    import argparse
    from collections import Counter
    rs = [role_of(w) for w in range(256)]
    for r, n in ((R_G1, 20), (R_DOWN, 40), (R_FFN, 54), (R_Q, 64), (R_MOD, 40), (R_RED, 8)):
        assert sorted(i for rr, i in rs if rr == r) == list(range(n)), r
    ap = argparse.ArgumentParser()
    ap.add_argument('-o', default='k.s'); ap.add_argument('--stamp', action='store_true')
    for p, d in (('WK', 3), ('WV', 4), ('rot', 3), ('rotw', 1), ('qpos', 28), ('prog_t', 22), ('progw_t', -1), ('WD', 20), ('wo_start', 0), ('wo_per', 1), ('sdelay', 0), ('WK0', 3), ('wk_sw', 16), ('k2_t', -1), ('WV2', 8), ('wv_sw', 12), ('hold', 1), ('pf', 1), ('WKL', 4), ('wkl_sw', 6), ('lagmask', 2), ('pfb', 1), ('cpf', 1), ('diag_until', 0), ('diag_xcc', 0), ('diag_role', -1), ('diag_cls', -1), ('diag_idx', -1), ('nEf', 0), ('nEd', 0), ('late', 0), ('pfl_t', 8), ('psleep', 0), ('light', 0), ('hdelay', 0), ('rk', -1), ('lagv', 0), ('h1probe', 0), ('cxfirst', 1), ('tlbw', 0), ('rotm', 1), ('ilv', 0), ('pf1_t', 5), ('allsh', 0), ('pf2_t', 10), ('nst', 9), ('st0', 4), ('stp', 3), ('vpf', 3), ('rth1', 128), ('rth2', 208), ('WVa', 2), ('WVb', 4), ('WVc', 8), ('trig', 0), ('trsh', 0), ('red_direct', 27), ('WDM', 20), ('k2_n', 8)):
        ap.add_argument('--' + p, type=int, default=d)
    ap.add_argument('--pre', default='V,V,V,V,V,V,V,V,W')
    ap.add_argument('--ntp', default='kv')
    ap.add_argument('--abl', default='')
    args = ap.parse_args()
    kw = dict(vars(args)); o = kw.pop('o')
    open(o, 'w').write(G(**kw).build())
```

```python
import sys
from asmlib import *
import gen as G1mod
from gen import bitrev4, LOG2E, SPIN_LIMIT

WS_E = 0
WS_H1 = 0x1000
WS_Q = 0x8000
SB2 = 0x28000
WS_H2 = SB2; WS_X1 = SB2 + 0x3000; WS_HID = SB2 + 0x6000; WS_MODO = SB2 + 0xD000
WS_P = 0x50000
WS_STAMP = 0x100000
WS_SIZE = 0x200000
LW = 0; LM = 0x14000; L_OP = 0x15000; L_WP = 0x23000; LST = 0x16000; LDS_SIZE = 0x28000
C_A, C_SM, C_PV, C_WO, C_QOK, C_PROG, C_PROGW, C_GO, C_DONE, C_K2, C_ACT, C_PF, C_PF2, C_CX, C_VI = [4 * i for i in range(15)]
L_STAT = 0x40; L_SM = 0x100; L_RANK = 0x3c
L_ACT = L_WP; ACTS = 1344
R_G1, R_DOWN, R_FFN, R_Q, R_MOD, R_RED = 1, 2, 3, 4, 5, 6

def role_of(wg):
    x = wg & 7; u = wg >> 3
    if u < 2: return R_G1, 2 * x + u
    if u < 6:
        k = u - 2
        e = EXTRA.get((x, k >> 1))
        if e is None: return 0, 0
        return e[0], e[0] * 16 + 2 * e[1] + (k & 1)
    if u < 14: return R_Q, 8 * x + u - 6
    if u < 19: return R_MOD, 5 * x + u - 14
    if u < 25: return R_FFN, 6 * x + u - 19
    if u < 29: return R_DOWN, 4 * x + u - 25
    if u == 29: return R_RED, x
    return 0, 0
EXTRA = {(0, 0): (R_DOWN, 0), (0, 1): (R_DOWN, 1), (2, 0): (R_DOWN, 2), (2, 1): (R_DOWN, 3),
         (4, 0): (R_FFN, 0), (4, 1): (R_FFN, 1), (6, 0): (R_G1, 0), (6, 1): (R_FFN, 2), (1, 0): (R_G1, 1)}

class G(G1mod.G):
    def __init__(self, stamp=False, WK=3, WV=3, rot=3, rotw=1, qpos=25, prog_t=22, progw_t=-1, WD=4, wo_start=0, wo_per=1, sdelay=0, WK0=2, wk_sw=16, k2_t=6, WV2=6, wv_sw=16, hold=1, pf=1, WKL=6, wkl_sw=6, lagmask=0x72, diag_xcc=0, diag_role=-1, diag_until=0, diag_cls=-1, diag_idx=-1, ntp='kv', cpf=1, pfb=1, nMf=0, nMd=0, vi_t=29, nEf=8, nEd=6, late=1, pfl_t=8, light=0, psleep=0, outf='', abl='', nst=0, st0=5, stp=3, allsh=0, pf1_t=4, pf2_t=9, wki=2, ilv=0, rotm=1, tlbw=1, cxfirst=1, vpf=3, h1probe=1, lagv=0, rk=-1, rth1=128, rth2=208, WVa=2, WVb=4, WVc=8, hdelay=0, trig=0, trsh=0, red_direct=27, WDM=2, k2_n=8, pre='V,V,VV,VW,VWW,VWW,VVW,VWW,VVWW'):
        self.sdelay = sdelay; self.WK0 = WK0; self.wk_sw = wk_sw; self.k2_t = k2_t; self.WV2 = WV2; self.wv_sw = wv_sw; self.hold = hold; self.pf = pf; self.late = late; self.pfl_t = pfl_t; self.psleep = psleep; self.light = light; self.light_set = (0, 11, 5) if light == 1 else (0, 11); self.hdelay = hdelay; self.rk = rk; self.lagv = lagv; self.h1probe = h1probe; self.cxfirst = cxfirst; self.tlbw = tlbw; self.rotm = rotm; self.ilv = ilv; self.wki = wki; self.pf1_t = pf1_t; self.allsh = allsh; self.pf2_t = pf2_t; self.nst = nst; self.st0 = st0; self.stp = stp; self.abl = abl; self.outf = outf.replace('_', ' '); self.vpf = vpf; self.rth1 = rth1; self.rth2 = rth2; self.WVa = WVa; self.WVb = WVb; self.WVc = WVc; self.trig = trig; self.trsh = trsh; self.red_direct = red_direct; self.pfb = pfb; self.cpf = cpf; self.ntp = ntp; self.cur_nt = 'nt'; self.diag_until = diag_until; self.diag_xcc = diag_xcc; self.diag_role = diag_role; self.diag_cls = diag_cls; self.diag_idx = diag_idx; self.cur_cls = -1; self.nEf = nEf; self.nMf = nMf; self.nMd = nMd; self.vi_t = vi_t; self.nEd = nEd; self.WKL = WKL; self.wkl_sw = wkl_sw; self.lagmask = lagmask; self.WDM = WDM; self.k2_n = k2_n; self.pre = pre.split(',')
        self.a = Asm(); self.stamp_on = stamp
        self.WK = WK; self.WV = WV; self.rot = rot; self.rotw = rotw; self.qpos = qpos; self.prog_t = prog_t
        self.progw_t = progw_t; self.WD = WD; self.wo_start = wo_start; self.wo_per = wo_per

    def stamp(self, i):
        if self.diag_until and i == self.diag_idx and (self.cur_cls == self.diag_cls or (self.cur_cls == 99 and self.diag_cls > 0)):
            if self.cur_cls == 99:
                L = self.a.label('L_ds')
                self.a(f's_cmp_lg_u32 s7, {self.diag_cls}\ns_cbranch_scc1 {L}\ns_memrealtime s[100:101]\ns_waitcnt lgkmcnt(0)\n{L}:')
            elif self.diag_role >= 0:
                L = self.a.label('L_ds')
                self.a(f's_cmp_lg_u32 s7, {self.diag_role}\ns_cbranch_scc1 {L}\ns_memrealtime s[100:101]\ns_waitcnt lgkmcnt(0)\n{L}:')
            else:
                self.a('s_memrealtime s[100:101]\ns_waitcnt lgkmcnt(0)')
        if self.light and i not in self.light_set: return
        super().stamp(i)

    def diag_end(self):
        if self.diag_until:
            L = self.a.label('L_diag')
            if self.diag_xcc:
                self.a('s_getreg_b32 s97, hwreg(HW_REG_XCC_ID)\ns_sub_u32 s97, s97, s2\ns_and_b32 s97, s97, 7')
                if self.diag_xcc == 2: self.a('s_sub_u32 s97, 7, s97')
                self.a('s_mul_i32 s97, s97, 400\ns_add_u32 s100, s100, s97')
            self.a(f'{L}:\ns_sleep 1\ns_memrealtime s[98:99]\ns_waitcnt lgkmcnt(0)\ns_sub_u32 s98, s98, s100\ns_cmp_lt_i32 s98, {self.diag_until*100}\ns_cbranch_scc1 {L}')

    def ln_stats1(self, U, T, s_m, s_rs, mid=None):
        a = self.a
        a(f'v_readlane_b32 s86, v{U}, 0')
        for i in range(5):
            a(f'v_pk_add_f32 v[{T+4}:{T+5}], v[{U+2*i}:{U+2*i+1}], s[86:87] op_sel_hi:[1,0] neg_lo:[0,1] neg_hi:[0,1]')
            if i == 0:
                a(f'v_pk_mul_f32 v[{T+2}:{T+3}], v[{T+4}:{T+5}], v[{T+4}:{T+5}]')
                a(f'v_add_f32 v{T}, v{T+4}, v{T+5}')
            else:
                a(f'v_pk_fma_f32 v[{T+2}:{T+3}], v[{T+4}:{T+5}], v[{T+4}:{T+5}], v[{T+2}:{T+3}]')
                a(f'v_add_f32 v{T+1}, v{T+4}, v{T+5}\nv_add_f32 v{T}, v{T}, v{T+1}')
        a(f'v_add_f32 v{T+1}, v{T+2}, v{T+3}')
        for m in ('row_ror:8 row_mask:0xf', 'row_ror:4 row_mask:0xf', 'row_ror:2 row_mask:0xf', 'row_ror:1 row_mask:0xf', 'row_bcast:15 row_mask:0xa', 'row_bcast:31 row_mask:0xc'):
            for v in (T, T + 1): a(f'v_add_f32_dpp v{v}, v{v}, v{v} {m} bank_mask:0xf')
        a(f'''
        v_mul_f32 v{T}, 0x3acccccd, v{T}
        v_mul_f32 v{T+1}, 0x3acccccd, v{T+1}
        v_fma_f32 v{T+1}, -v{T}, v{T}, v{T+1}
        v_add_f32 v{T}, s86, v{T}
        v_max_f32 v{T+1}, 0, v{T+1}
        v_cvt_pk_bf16_f32 v{T}, 0, v{T}
        v_cvt_pk_bf16_f32 v{T+1}, 0, v{T+1}
        v_readlane_b32 s{s_m}, v{T}, 63
        v_add_f32 v{T+1}, 0x3727c5ac, v{T+1}
        v_cvt_pk_bf16_f32 v{T+1}, 0, v{T+1}
        v_sqrt_f32 v{T+1}, v{T+1}
        v_cvt_pk_bf16_f32 v{T+1}, 0, v{T+1}
        v_rcp_f32 v{T+1}, v{T+1}
        s_nop 0
        v_readlane_b32 s{s_rs}, v{T+1}, 63
        ''')
        if mid: mid()

    def signal(self, cnt):
        self.a(f'''
        s_mov_b64 exec, 1
        v_mov_b32 v14, 1
        ds_add_u32 v13, v14 offset:{cnt}
        s_mov_b64 exec, -1
        ''')

    def arrive2(self, cnt, last, skip, reads):
        a = self.a
        a(f'''
        s_mov_b64 exec, 1
        v_mov_b32 v14, 1
        ds_add_rtn_u32 v14, v13, v14 offset:{cnt}
        s_mov_b64 exec, -1
        ''')
        for r in reads: a(r)
        a(f'''
        s_waitcnt lgkmcnt({min(len(reads), 15)})
        v_readfirstlane_b32 s88, v14
        s_cmp_lg_u32 s88, {last}
        s_cbranch_scc1 {skip}
        ''')

    def wait2(self, cnt, target, reads):
        a = self.a
        L = a.label('L_w2'); D = a.label('L_w2d'); R = a.label('L_w2r')
        a(f'ds_read_b32 v14, v13 offset:{cnt}')
        for r in reads: a(r)
        a(f'''
        s_mov_b32 s89, {SPIN_LIMIT * 16}
        s_waitcnt lgkmcnt({len(reads)})
        v_readfirstlane_b32 s88, v14
        s_cmp_ge_u32 s88, {target}
        s_cbranch_scc1 {D}
        {L}:
        ds_read_b32 v14, v13 offset:{cnt}
        s_sub_u32 s89, s89, 1
        s_cbranch_scc1 {R}
        s_waitcnt lgkmcnt(0)
        v_readfirstlane_b32 s88, v14
        s_cmp_lt_u32 s88, {target}
        s_cbranch_scc1 {L}
        {R}:
        ''')
        for r in reads: a(r)
        a(f'{D}:\ns_waitcnt lgkmcnt(0)')

    def rnd1(self, regs):
        for r in regs: self.a(f'v_cvt_pk_bf16_f32 v{r}, 0, v{r}')
    def round4(self, v, t):
        self.rnd1(range(v, v + 4))
    def bf1(self, v):
        self.rnd1([v])

    def tag_from(self, v):
        self.a(f'''
        s_mov_b32 s85, 1664525
        v_mul_lo_u32 v{v}, s85, v{v}
        v_add_u32 v{v}, 1013904223, v{v}
        v_readfirstlane_b32 s94, v{v}
        ''')

    def poll(self, name, loads, check, sleep, tagged=False, lanemask=False):
        a = self.a
        a(f's_mov_b32 s89, {SPIN_LIMIT}\nL_{name}_poll:')
        for l in loads: a(l)
        a('s_waitcnt vmcnt(0)')
        if tagged:
            for i in range(0, len(check), 2):
                a(f'v_xor_b32 v36, s94, v{check[i]}\nv_xor_b32 v37, s94, v{check[i+1]}')
                a('v_or_b32 v38, v36, v37' if i == 0 else 'v_or3_b32 v38, v38, v36, v37')
            a('v_cmp_ne_u32 vcc, 0, v38')
        else:
            c = list(check)
            if len(c) % 2 == 0:
                a(f'v_max_u32 v38, v{c[0]}, v{c[1]}'); c = c[2:]
            else:
                a(f'v_max3_u32 v38, v{c[0]}, v{c[1]}, v{c[2]}'); c = c[3:]
            for i in range(0, len(c), 2): a(f'v_max3_u32 v38, v38, v{c[i]}, v{c[i+1]}')
            a('v_cmp_eq_u32 vcc, -1, v38')
        a(f'''
        s_cbranch_vccz L_{name}_ok
        {"s_mov_b64 exec, vcc" if lanemask else ""}
        {"s_sleep %d" % sleep if sleep else ""}
        s_sub_u32 s89, s89, 1
        s_cbranch_scc0 L_{name}_poll
        L_{name}_ok:
        {"s_mov_b64 exec, -1" if lanemask else ""}
        ''')

    def prologue(self):
        a = self.a
        a(f'''
        s_load_dwordx16 s[16:31], s[0:1], 0
        {'s_memrealtime s[100:101]' if self.diag_until else ''}
        {'s_memrealtime s[98:99]' if self.stamp_on else ''}
        v_lshrrev_b32 v1, 6, v0
        s_getpc_b64 s[86:87]
        L_pc0:
        v_readfirstlane_b32 s3, v1
        v_lshlrev_b32 v3, 7, v0
        s_cmpk_ge_u32 s2, 256
        s_cbranch_scc1 L_end
        v_min_u32 v3, L_code_end-L_pc0-4, v3
        v_and_b32 v2, 63, v0
        {'global_load_dword v161, v3, s[86:87]' if self.cpf else ''}
        s_load_dwordx8 s[32:39], s[0:1], 64
        s_load_dwordx4 s[40:43], s[0:1], 96
        v_lshlrev_b32 v7, 4, v2          ; lane*16
        s_cmp_lt_u32 s3, 4
        s_cbranch_scc1 L_control
        ''')

    def common2(self):
        a = self.a
        a(f'''
        v_mov_b32 v13, {LM}
        s_mov_b32 s84, 0xffff0000
        v_mov_b32 v15, 0
        s_lshr_b32 s13, s2, 5            ; b
        s_and_b32 s14, s2, 31            ; h
        ''')

    def decode(self):
        a = self.a
        ext = 0
        for (x, kh), (r, idx) in EXTRA.items(): ext |= (r | idx << 2) << (4 * (2 * x + kh))
        a(f'''
        s_and_b32 s4, s2, 7              ; x
        s_lshr_b32 s5, s2, 3             ; u
        s_mov_b32 s7, 0
        s_mov_b32 s8, 0
        ''')
        for lo, hi, role, mul in ((0, 2, R_G1, 2), (6, 14, R_Q, 8), (14, 19, R_MOD, 5), (19, 25, R_FFN, 6), (25, 29, R_DOWN, 4), (29, 30, R_RED, 1)):
            a(f'''
            s_sub_u32 s9, s5, {lo}
            s_mul_i32 s10, s4, {mul}
            s_add_u32 s10, s10, s9
            s_cmp_lt_u32 s9, {hi-lo}
            s_cselect_b32 s7, {role}, s7
            s_cselect_b32 s8, s10, s8
            ''')
        a(f'''
        s_sub_u32 s9, s5, 2              ; extras
        s_lshr_b32 s10, s9, 1
        s_and_b32 s10, s10, 1
        s_lshl_b32 s11, s4, 1
        s_add_u32 s10, s10, s11
        s_lshl_b32 s10, s10, 2
        s_mov_b32 s86, {ext & 0xffffffff}
        s_mov_b32 s87, {ext >> 32}
        s_lshr_b64 s[86:87], s[86:87], s10
        s_and_b32 s10, s86, 3            ; role
        s_bfe_u32 s11, s86, 0x20002      ; idx
        s_lshl_b32 s11, s11, 1
        s_lshl_b32 s12, s10, 4
        s_add_u32 s11, s11, s12
        s_and_b32 s12, s9, 1
        s_add_u32 s11, s11, s12
        s_cmp_lt_u32 s9, 4
        s_cselect_b32 s7, s10, s7
        s_cselect_b32 s8, s11, s8
        s_sub_u32 s9, s5, 19
        s_cmp_lt_u32 s9, 10
        s_cselect_b32 s6, s9, 99
        s_sub_u32 s10, s5, 20
        s_cmp_ge_u32 s5, 30
        s_cselect_b32 s6, s10, s6
        s_sub_u32 s9, s5, 2
        s_add_u32 s10, s9, 12
        s_cmp_lt_u32 s9, 4
        s_cselect_b32 s6, s10, s6
        ''')

    def nt(self, c): return 'nt' if c in self.ntp else ''
    def pfld(self, v, srd, so): self.a(f'buffer_load_dword v160, v{v}, {srd}, {so} offen {self.cur_nt}')

    def prefetch(self):
        a = self.a
        self.cur_nt = self.nt('m')
        self.srd(64, 36, 640 * 7680)
        a(f'''
        s_mov_b32 s90, s6
        s_cmp_ge_u32 s90, 16
        s_cbranch_scc1 L_pf_done
        s_lshl_b32 s92, s4, 7
        s_cmp_lt_u32 s3, 2
        s_cbranch_scc1 L_pfA
        s_cmp_eq_u32 s4, 6
        s_cselect_b32 s92, 1024, 0
        s_cmp_eq_u32 s4, 1
        s_cselect_b32 s92, 1152, s92
        s_cmp_eq_u32 s92, 0
        s_cbranch_scc1 L_pf_done
        L_pfA:
        s_lshl_b32 s90, s90, 1
        s_and_b32 s91, s3, 1
        s_add_u32 s90, s90, s91
        s_mul_i32 s91, s90, {20*7680}
        s_add_u32 s92, s92, s91
        v_lshrrev_b32 v16, 1, v2
        v_min_u32 v16, 19, v16
        v_mul_u32_u24 v16, 7680, v16
        v_and_b32 v17, 1, v2
        v_mul_u32_u24 v17, 1280, v17
        v_add_u32 v16, v16, v17
        ''')
        self.pfld(16, 's[64:67]', 's92')
        a('L_pf_done:')

    def prefetch_b(self, sfx):
        a = self.a
        a(f'''
        {'s_cmp_ge_u32 s6, 16' if not self.allsh else 's_bitcmp1_b32 s3, 0'}
        s_cbranch_scc1 L_pb_done
        {'s_mul_i32 s90, s6, 40' if not self.allsh else 's_mul_i32 s90, s5, 20'}
        s_and_b32 s91, s3, 1
        s_mul_i32 s91, s91, 24
        s_add_u32 s90, s90, s91
        v_lshrrev_b32 v16, 3, v2
        v_and_b32 v17, 7, v2
        s_cmp_lt_u32 s3, 2
        s_cbranch_scc1 L_pb3
        ''')
        self.cur_nt = self.nt('q')
        self.srd(64, 22, 640 * 8192)
        a(f'''
        v_lshlrev_b32 v17, 7, v17
        v_lshl_add_u32 v18, v16, 13, v17
        s_lshl_b32 s91, s90, 13
        s_lshl_b32 s92, s4, 10
        s_add_u32 s92, s92, s91
        s_mov_b32 s91, {8*8192}
        s_branch L_pb4
        L_pb3:
        ''')
        self.srd(64, 36, 640 * 7680)
        a(f'''
        v_min_u32 v17, 4, v17
        v_lshlrev_b32 v17, 7, v17
        v_mul_u32_u24 v18, 7680, v16
        v_add_u32 v18, v18, v17
        s_mul_i32 s91, s90, 7680
        s_mul_i32 s92, s4, 640
        s_add_u32 s92, s92, 2560
        s_add_u32 s92, s92, s91
        s_mov_b32 s91, {8*7680}
        ''')
        if 'm' in self.abl: a('s_branch L_pb_done')
        self.lds_wait(C_PF, 1, sleep=2)
        a('L_pb4:')
        self.pfld(18, 's[64:67]', 's92'); a('s_add_u32 s92, s92, s91')
        self.pfld(18, 's[64:67]', 's92'); a('s_add_u32 s92, s92, s91')
        a('s_bitcmp1_b32 s3, 0\ns_cbranch_scc1 L_pb_done')
        self.pfld(18, 's[64:67]', 's92')
        a('L_pb_done:')

    def prefetch_late(self, sfx):
        a = self.a
        self.cur_nt = self.nt('f')
        a(f's_cmp_ge_u32 s6, 16\ns_cbranch_scc1 L_pl_done{sfx}')
        a(f's_cmp_lg_u32 s3, 0\ns_cbranch_scc1 L_pl1{sfx}')
        self.srd(68, 32, 1728 * 1280)
        a(f'''
        v_min_u32 v16, 53, v2
        v_mul_u32_u24 v16, 1280, v16
        s_mul_i32 s91, s6, {108*1280}
        s_lshl_b32 s92, s4, 7
        s_add_u32 s92, s92, s91
        s_lshl_b32 s93, s4, 6
        s_add_u32 s93, s93, 1024
        s_add_u32 s93, s93, s91
        ''')
        self.lds_wait(C_PROGW, 1, sleep=4)
        self.pfld(16, 's[68:71]', 's92')
        a(f's_add_u32 s92, s92, {54*1280}\ns_waitcnt vmcnt(0)')
        self.pfld(16, 's[68:71]', 's92')
        a(f'''
        s_and_b32 s92, s4, 5
        s_cmp_lg_u32 s92, 0
        s_cbranch_scc1 L_pl_done{sfx}
        s_waitcnt vmcnt(0)
        ''')
        self.pfld(16, 's[68:71]', 's93')
        a(f's_add_u32 s93, s93, {54*1280}\ns_waitcnt vmcnt(0)')
        self.pfld(16, 's[68:71]', 's93')
        a(f's_branch L_pl_done{sfx}\nL_pl1{sfx}:')
        self.srd(64, 28, 640 * 3456); self.srd(68, 30, 640 * 3456)
        a(f'''
        s_mul_i32 s92, s4, 3
        s_mov_b32 s91, s92
        s_mov_b32 s93, s92
        s_cmp_eq_u32 s4, 4
        s_cselect_b32 s91, 24, s91
        s_cselect_b32 s93, 25, s93
        s_cmp_eq_u32 s4, 6
        s_cselect_b32 s91, 26, s91
        v_and_b32 v17, 7, v2
        v_min_u32 v18, 2, v17
        v_add_u32 v18, s92, v18
        v_mov_b32 v19, s91
        v_cmp_eq_u32 vcc, 3, v17
        v_cndmask_b32 v18, v18, v19, vcc
        v_mov_b32 v19, s93
        v_cmp_eq_u32 vcc, 4, v17
        v_cndmask_b32 v18, v18, v19, vcc
        v_lshlrev_b32 v17, 7, v18
        v_lshrrev_b32 v16, 3, v2
        v_mul_u32_u24 v18, 3456, v16
        v_add_u32 v18, v18, v17
        s_mul_i32 s92, s6, 5
        s_add_u32 s92, s92, s3
        s_sub_u32 s92, s92, 1
        s_mul_i32 s92, s92, {8*3456}
        ''')
        self.lds_wait(C_PROGW, 1, sleep=4)
        self.pfld(18, 's[64:67]', 's92'); self.pfld(18, 's[68:71]', 's92')
        a(f's_cmp_eq_u32 s3, 3\ns_cbranch_scc1 L_pl_done{sfx}\ns_add_u32 s92, s92, {24*3456}\ns_waitcnt vmcnt(0)')
        self.pfld(18, 's[64:67]', 's92'); self.pfld(18, 's[68:71]', 's92')
        a(f'L_pl_done{sfx}:')

    def dma640_setup(self, rot=False):
        a = self.a
        a(f'''
        v_lshrrev_b32 v16, 3, v2
        s_mul_i32 s85, s3, 160
        {'s_add_u32 s85, s85, s53' if rot else ''}
        v_add_u32 v16, s85, v16
        v_mul_lo_u32 v16, s52, v16
        v_and_b32 v17, 3, v2
        v_lshl_add_u32 v16, v17, 4, v16
        v_mov_b32 v17, 0
        v_mov_b32 v18, s48
        v_mov_b32 v19, s49
        v_mov_b32 v20, s50
        v_mov_b32 v21, s51
        v_and_b32 v22, 4, v2
        v_cmp_ne_u32 vcc, 0, v22
        v_cndmask_b32 v18, v18, v20, vcc
        v_cndmask_b32 v19, v19, v21, vcc
        v_lshl_add_u64 v[4:5], v[16:17], 0, v[18:19]
        s_lshl_b32 s54, s52, 3
        s_mov_b32 s55, 0
        ''')
    def dma640_issue(self, lo, hi, WD=99, rot=False):
        a = self.a
        for n in range(lo, hi):
            a(f's_add_u32 m0, s87, {LW + 1024*n}')
            if n >= WD: a(f's_waitcnt vmcnt({WD-1})')
            a(f'global_load_lds_dwordx4 v[4:5], off {self.cur_nt}')
            if n < 19: a(f'v_lshl_add_u64 v[4:5], v[4:5], 0, {"s[96:97]" if rot and n == 7 else "s[54:55]"}')
    def dma640(self, WD):
        self.dma640_setup(); self.dma640_issue(0, 20, WD)

    def wfrags640(self, younger=None):
        a = self.a
        for n in range(5):
            if younger is not None: a(f's_waitcnt vmcnt({younger + 4 * (4 - n)})')
            for T in range(4):
                b = 40 + 16 * n + 4 * T
                a(f'ds_read_b64_tr_b16 v[{b}:{b+1}], v9 offset:{LW + 4096*n + 32*T}')
                a(f'ds_read_b64_tr_b16 v[{b+2}:{b+3}], v9 offset:{LW + 4096*n + 32*T + 512}')
            a('s_waitcnt lgkmcnt(0)')

    def mfma640(self, skip, extra=()):
        a = self.a
        for T in range(4):
            d = 16 + 4 * T
            for n in range(5):
                b = 40 + 16 * n + 4 * T
                a(f'v_mfma_f32_16x16x32_bf16 v[{d}:{d+3}], v[{b}:{b+3}], v[{120+4*n}:{123+4*n}], {"0" if n == 0 else "v[%d:%d]" % (d, d+3)}')
            if T >= 2: a(f'ds_write_b128 v10, v[{16+4*(T-2)}:{19+4*(T-2)}] offset:{LW + 1024*(T-2)}')
        for T in (2, 3):
            a(f'ds_write_b128 v10, v[{16+4*T}:{19+4*T}] offset:{LW + 1024*T}')
        reads = []
        for w in range(4):
            reads.append(f'ds_read_b128 v[{40+4*w}:{43+4*w}], v11 offset:{LW + 20480*w}')
            reads.append(f'ds_read_b128 v[{56+4*w}:{59+4*w}], v11 offset:{LW + 20480*w + 2048}')
        self.arrive2(C_A, 3, skip, reads + list(extra))

    def red640(self):
        self.a('s_waitcnt lgkmcnt(0)')
        self.sum_partials(40, [40, 44, 48, 52]); self.sum_partials(56, [56, 60, 64, 68])

    def silu(self, ns=range(5)):
        a = self.a
        a(f's_mov_b32 s85, {LOG2E | 0x80000000}')
        for n in ns:
            b = 120 + 4 * n
            for i in range(4): self.unpack(16 + 2 * i, b + i)
            for i in range(8): a(f'v_mul_f32 v{24+i}, s85, v{16+i}')
            for i in range(8): a(f'v_exp_f32 v{24+i}, v{24+i}')
            for i in range(8): a(f'v_add_f32 v{24+i}, 1.0, v{24+i}')
            for i in range(8): a(f'v_rcp_f32 v{24+i}, v{24+i}')
            for i in range(8): a(f'v_mul_f32 v{16+i}, v{16+i}, v{24+i}')
            for i in range(4): a(f'v_cvt_pk_bf16_f32 v{b+i}, v{16+2*i}, v{17+2*i}')

    def add64(self, d, base, off):
        self.a(f's_add_u32 s{d}, s{base}, {off}\ns_addc_u32 s{d+1}, s{base+1}, 0')

    def control(self):
        a = self.a
        CL = '; ' if 'c' in self.abl else ''
        a('L_control:\ns_setprio 3')
        self.common2()
        a('v_lshl_add_u32 v14, v2, 2, v13\nds_write_b32 v14, v15')
        self.decode()
        a('s_waitcnt lgkmcnt(0)\ns_barrier')
        self.srd(44, 42, WS_SIZE)
        if self.stamp_on: a('v_writelane_b32 v15, s98, 13')
        self.cur_cls = -1
        self.stamp(0)
        self.cur_cls = 99
        if 'r' in self.abl: a('s_branch L_ctrl_fin')
        if self.tlbw:
            a(f'''
            s_cmp_lg_u32 s3, 3
            s_cbranch_scc1 L_notlb
            v_mov_b32 v3, 0
            s_lshl_b32 s85, s2, 2
            s_add_u32 s85, s85, 3
            s_lshl_b32 s85, s85, 18
            s_add_u32 s56, s20, s85
            s_addc_u32 s57, s21, 0
            s_mul_i32 s85, s14, 163840
            s_add_u32 s58, s24, s85
            s_addc_u32 s59, s25, 0
            v_mov_b32 v4, 163836
            s_mov_b64 exec, 1
            global_load_dword v162, v3, s[56:57]
            global_load_dword v162, v3, s[58:59]
            global_load_dword v162, v4, s[58:59]
            global_load_dword v162, v3, s[38:39]
            s_mov_b64 exec, -1
            L_notlb:
            ''')
        if self.pf: self.prefetch()
        if self.pfb:
            a(f's_cmp_eq_u32 s7, {R_G1}\ns_cbranch_scc1 L_pb_done')
            self.prefetch_b('')
        a(f'''
        v_mov_b32 v3, 0
        buffer_load_dword v167, v3, s[44:47], 0 offen sc1
        s_mul_i32 s87, s3, 20480
        v_lshrrev_b32 v16, 4, v2         ; s
        v_bfe_u32 v17, v2, 2, 2          ; r4
        v_and_b32 v18, 3, v2             ; c
        v_lshl_add_u32 v19, v16, 3, v17  ; 8s+r4
        v_lshlrev_b32 v9, 7, v19
        v_lshl_add_u32 v9, v18, 3, v9
        v_add_u32 v9, s87, v9
        v_add_u32 v10, s87, v7
        v_and_b32 v17, 7, v2             ; b
        v_bfe_u32 v18, v2, 3, 1          ; t
        v_lshlrev_b32 v11, 8, v16
        v_lshl_add_u32 v11, v17, 4, v11
        v_lshl_add_u32 v11, v18, 10, v11
        v_mul_u32_u24 v19, 1280, v17
        v_lshl_add_u32 v6, v16, 4, v19
        v_lshlrev_b32 v8, 5, v18
        v_lshl_add_u32 v8, v16, 3, v8    ; (16t+4s')*2 bytes
        v_lshlrev_b32 v12, 2, v2         ; lane*4
        s_cmp_eq_u32 s7, {R_Q}
        s_cbranch_scc1 L_role_q
        s_cmp_eq_u32 s7, 0
        s_cbranch_scc1 L_share
        s_cmp_eq_u32 s7, {R_FFN}
        s_cbranch_scc1 L_share
        s_cmp_eq_u32 s7, {R_DOWN}
        s_cbranch_scc1 L_share
        s_cmp_eq_u32 s7, {R_RED}
        s_cbranch_scc1 L_share
        ''')
        self.cur_nt = self.nt('m')
        a(f'''
        s_movk_i32 s52, 7680
        s_cmp_eq_u32 s7, {R_G1}
        s_cbranch_scc1 L_role_g1
        ''')
        if 'm' in self.abl or 'M' in self.abl: a('s_branch L_ctrl_fin')
        self.srd(56, 34, 10240)
        a('s_mul_i32 s85, s3, 320')
        for n in range(5):
            a(f'buffer_load_dwordx4 v[{120+4*n}:{123+4*n}], v6, s[56:59], s85 offen offset:{64*n}')
        a(f'''
        s_lshl_b32 s9, s8, 7
        s_add_u32 s9, s9, 2560
        s_add_u32 s48, s36, s9
        s_addc_u32 s49, s37, 0
        s_add_u32 s50, s48, 64
        s_addc_u32 s51, s49, 0
        s_waitcnt vmcnt(0)
        ''')
        self.silu()
        if self.pfb: self.lds_wait(C_PF2, 1, sleep=2)
        self.dma640(self.WDM)
        a('s_waitcnt vmcnt(0)')
        self.stamp(2)
        self.wfrags640()
        self.mfma640('L_ctrl_end')
        a(f'''
        v_and_b32 v22, 7, v2
        v_mul_u32_u24 v22, 5120, v22
        v_add_u32 v22, v22, v8
        s_lshl_b32 s90, s8, 7
        s_add_u32 s90, s90, {WS_MODO}
        ''')
        self.red640()
        self.pack4(24, 40); self.pack4(26, 56)
        self.sanitize([24, 25, 26, 27])
        self.lds_wait(C_QOK, 1, sleep=8)
        a(f'''
        buffer_store_dwordx2 v[24:25], v22, s[44:47], s90 offen sc1
        buffer_store_dwordx2 v[26:27], v22, s[44:47], s90 offen offset:64 sc1
        s_branch L_ctrl_end
        L_role_g1:
        s_lshl_b32 s9, s8, 6
        s_add_u32 s48, s36, s9
        s_addc_u32 s49, s37, 0
        s_add_u32 s50, s48, 1280
        s_addc_u32 s51, s49, 0
        v_add_u32 v34, v19, v8
        ''')
        self.dma640_setup()
        if self.cxfirst: self.lds_wait(C_CX, 8)
        self.stamp(6)
        self.dma640_issue(0, 20)
        self.srd(60, 16, 10240)
        a(f'''
        buffer_load_dwordx2 v[150:151], v34, s[60:63], s9 offen
        s_lshl_b32 s85, s8, 2
        s_add_u32 s85, s85, s3
        s_lshl_b32 s85, s85, 11
        s_add_u32 s85, s85, {SB2}
        v_mov_b32 v152, -1
        v_mov_b32 v153, -1
        v_mov_b32 v154, -1
        v_mov_b32 v155, -1
        {CL}buffer_store_dwordx4 v[152:155], v7, s[44:47], s85 offen sc1
        {CL}buffer_store_dwordx4 v[152:155], v7, s[44:47], s85 offen offset:1024 sc1
        v_and_b32 v16, 7, v2
        v_mul_u32_u24 v16, {ACTS}, v16
        v_lshrrev_b32 v17, 4, v2
        v_lshl_add_u32 v16, v17, 4, v16
        s_mul_i32 s85, s3, 320
        s_add_u32 s85, s85, {L_ACT}
        v_add_u32 v35, s85, v16
        ''')
        self.signal(C_GO)
        self.stamp(1)
        self.lds_wait(C_ACT, 8)
        for n in range(5): a(f'ds_read_b128 v[{120+4*n}:{123+4*n}], v35 offset:{64*n}')
        self.stamp(3)
        self.wfrags640(younger=3)
        self.tag_from(167)
        a('s_waitcnt vmcnt(0)')
        self.stamp(2)
        self.mfma640('L_ctrl_end')
        a(f'''
        v_and_b32 v22, 7, v2
        v_lshl_add_u32 v23, v22, 3, v13
        ds_read_b64 v[36:37], v23 offset:{L_STAT}
        ''')
        self.red640()
        self.pack4(24, 40); self.pack4(26, 56)
        self.unpack4(56, 26)
        a('v_pk_add_f32 v[56:57], v[56:57], 1.0 op_sel_hi:[1,0]\nv_pk_add_f32 v[58:59], v[58:59], 1.0 op_sel_hi:[1,0]')
        self.round4(56, 26)
        self.unpack4(40, 24)
        self.unpack4(44, 150)
        for i in range(4): a(f'v_sub_f32 v{44+i}, v{44+i}, v36')
        self.round4(44, 28)
        for i in range(4): a(f'v_mul_f32 v{44+i}, v{44+i}, v37')
        self.round4(44, 28)
        a('v_pk_mul_f32 v[44:45], v[44:45], v[56:57]\nv_pk_mul_f32 v[46:47], v[46:47], v[58:59]')
        self.round4(44, 28)
        a('v_pk_add_f32 v[44:45], v[44:45], v[40:41]\nv_pk_add_f32 v[46:47], v[46:47], v[42:43]')
        a(f'''
        v_cvt_pk_bf16_f32 v28, v44, v45
        v_cvt_pk_bf16_f32 v30, v46, v47
        v_mov_b32 v29, s94
        v_mov_b32 v31, s94
        v_lshlrev_b32 v22, 4, v22               ; b*16
        v_lshl_add_u32 v22, v8, 4, v22          ; + (16t+4s')*32 = t*512 + s'*128
        s_lshl_b32 s85, s8, 10
        s_add_u32 s85, s85, {WS_H1}
        buffer_store_dwordx4 v[28:31], v22, s[44:47], s85 offen sc1
        s_branch L_ctrl_end
        ''')
        self.cur_nt = self.nt('q')
        a(f'''
        L_role_q:
        {'s_branch L_ctrl_fin' if 'q' in self.abl else ''}
        s_lshl_b32 s9, s8, 7
        s_add_u32 s48, s22, s9
        s_addc_u32 s49, s23, 0
        s_add_u32 s50, s48, 64
        s_addc_u32 s51, s49, 0
        s_movk_i32 s52, 8192
        ''')
        if self.pfb: self.lds_wait(C_PF, 1, sleep=2)
        self.dma640(99)
        a(f'''
        s_and_b32 s85, s8, 1
        s_lshl_b32 s85, s85, 2
        s_add_u32 s85, s85, s3
        s_lshl_b32 s85, s85, 5
        s_lshr_b32 s86, s8, 1
        s_add_u32 s85, s85, s86
        s_mul_i32 s85, s85, 2560
        s_add_u32 s85, s85, {WS_P}
        v_mov_b32 v152, -1
        v_mov_b32 v153, -1
        v_mov_b32 v154, -1
        v_mov_b32 v155, -1
        v_lshlrev_b32 v19, 3, v2
        {CL}buffer_store_dwordx4 v[152:155], v7, s[44:47], s85 offen sc1
        {CL}buffer_store_dwordx4 v[152:155], v7, s[44:47], s85 offen offset:1024 sc1
        {CL}buffer_store_dwordx2 v[152:153], v19, s[44:47], s85 offen offset:2048 sc1
        ''')
        self.signal(C_GO)
        a('s_waitcnt vmcnt(0)')
        self.stamp(2)
        self.tag_from(167)
        self.wfrags640()
        a(f'''
        s_mul_i32 s90, s3, 5120
        s_add_u32 s90, s90, {WS_H1}
        s_add_u32 s91, s90, 4096
        ''')
        self.stamp(3)
        if self.h1probe:
            a('v_min_u32 v34, 4, v2\nv_lshlrev_b32 v34, 10, v34')
            self.poll('h1p', ['buffer_load_dword v35, v34, s[44:47], s90 offen offset:1020 sc1'], [35, 35], 2, tagged=True)
        loads = [f'buffer_load_dwordx4 v[{120+4*n}:{123+4*n}], v7, s[44:47], s{90 if n < 4 else 91} offen offset:{1024*(n%4)} sc1' for n in range(5)]
        self.poll('h1', loads, [121 + 2 * i for i in range(10)], 4, tagged=True)
        self.stamp(4)
        for n in range(5):
            b = 120 + 4 * n
            a(f'v_mov_b32_dpp v{b+3}, v{b+2} row_ror:8 row_mask:0xf bank_mask:0xf')
            a(f'v_mov_b32 v{b+1}, v{b+2}')
            a(f'v_mov_b32_dpp v{b+2}, v{b} row_ror:8 row_mask:0xf bank_mask:0xf')
        self.mfma640('L_ctrl_end')
        a(f'''
        v_and_b32 v22, 7, v2
        v_lshlrev_b32 v22, 14, v22              ; b*32*512
        v_lshl_add_u32 v22, v8, 1, v22          ; + col*4
        s_lshl_b32 s85, s8, 8                   ; h*512 + half*256
        s_add_u32 s85, s85, {WS_Q}
        v_mov_b32 v29, s94
        v_mov_b32 v31, s94
        v_mov_b32 v33, s94
        v_mov_b32 v35, s94
        ''')
        self.red640()
        a(f'''
        v_cvt_pk_bf16_f32 v28, v40, v41
        v_cvt_pk_bf16_f32 v30, v42, v43
        v_cvt_pk_bf16_f32 v32, v56, v57
        v_cvt_pk_bf16_f32 v34, v58, v59
        buffer_store_dwordx4 v[28:31], v22, s[44:47], s85 offen sc1
        buffer_store_dwordx4 v[32:35], v22, s[44:47], s85 offen offset:128 sc1
        s_branch L_ctrl_end
        ''')
        self.cur_nt = self.nt('f')
        a(f'''
        L_role_ffn:
        s_lshl_b32 s9, s8, 6
        s_add_u32 s48, s28, s9
        s_addc_u32 s49, s29, 0
        s_add_u32 s50, s30, s9
        s_addc_u32 s51, s31, 0
        s_movk_i32 s52, 3456
        ''')
        a(f'''
        s_bitcmp1_b32 s8, 0
        {'' if self.rotm else 's_cmp_eq_u32 s8, 999'}
        s_cselect_b32 s53, 96, 0
        s_cselect_b32 s96, {(-152*3456) & 0xffffffff}, 0
        s_cselect_b32 s97, -1, 0
        s_cselect_b32 s98, 192, 0
        s_cselect_b32 s99, -128, 0
        s_cbranch_scc1 L_ffn_r
        s_movk_i32 s96, {8*3456}
        L_ffn_r:
        ''')
        self.dma640_setup(rot=True)
        self.dma640_issue(0, self.nEf, 1, rot=True)
        if self.nMf:
            self.lds_wait(C_VI, 8, sleep=2)
            self.dma640_issue(self.nEf, self.nEf + self.nMf, rot=True)
        self.lds_wait(C_DONE, 5, sleep=2)
        self.dma640_issue(self.nEf + self.nMf, 20, rot=True)
        self.wfrags640(younger=0)
        self.stamp(2)
        a(f'''
        s_mul_i32 s90, s3, 320
        s_add_u32 s90, s90, {WS_H2}
        v_lshrrev_b32 v33, 3, v2                ; row
        v_and_b32 v35, 7, v2                    ; piece
        v_mul_u32_u24 v6, 1280, v33
        v_and_b32 v34, 3, v35
        v_lshl_add_u32 v34, v34, 4, v6
        v_lshl_add_u32 v6, v35, 4, v6
        v_mul_u32_u24 v3, 400, v33
        v_lshl_add_u32 v3, v35, 4, v3
        s_add_u32 s85, s87, {LW + 8192}
        v_add_u32 v3, s85, v3
        v_mul_u32_u24 v4, 400, v35
        v_lshrrev_b32 v33, 4, v2
        v_lshl_add_u32 v4, v33, 4, v4
        v_add_u32 v4, s85, v4
        v_add_u32 v5, s99, v4
        v_add_u32 v4, s98, v4
        v_and_b32 v32, 7, v2
        v_lshlrev_b32 v32, 4, v32
        v_bfe_u32 v33, v2, 3, 1
        v_lshl_add_u32 v32, v33, 8, v32
        v_bfe_u32 v33, v2, 5, 1
        v_lshl_add_u32 v32, v33, 7, v32
        s_lshl_b32 s91, s8, 9
        s_add_u32 s91, s91, {WS_HID}
        ''')
        self.lds_wait(C_WO, 8, sleep=4)
        self.stamp(3)
        loads = ['buffer_load_dwordx4 v[140:143], v6, s[44:47], s90 offen sc1',
                 'buffer_load_dwordx4 v[144:147], v6, s[44:47], s90 offen offset:128 sc1',
                 'buffer_load_dwordx4 v[148:151], v34, s[44:47], s90 offen offset:256 sc1']
        self.poll('h2', loads, list(range(140, 152)), self.psleep, lanemask=True)
        self.stamp(4)
        for n in range(3): a(f'ds_write_b128 v3, v[{140+4*n}:{143+4*n}] offset:{128*n}')
        for n in range(5): a(f'ds_read_b128 v[{120+4*n}:{123+4*n}], v{4 if n < 2 else 5} offset:{64*n}')
        a('s_waitcnt lgkmcnt(0)')
        self.mfma640('L_ctrl_end')
        self.red640()
        self.round4(40, 28); self.round4(56, 30)
        for i in range(4):
            a(f'v_cmp_lt_f32 vcc, 0, v{40+i}\nv_cndmask_b32 v{20+i}, 0, 1.0, vcc')
        a('v_pk_mul_f32 v[40:41], v[40:41], v[20:21]\nv_pk_mul_f32 v[42:43], v[42:43], v[22:23]')
        a('v_pk_mul_f32 v[40:41], v[40:41], v[56:57]\nv_pk_mul_f32 v[42:43], v[42:43], v[58:59]')
        self.pack4(28, 40); self.sanitize([28, 29])
        a(f'''
        v_mov_b32 v30, v28
        v_mov_b32 v31, v29
        v_permlane16_swap_b32 v28, v30
        v_permlane16_swap_b32 v29, v31
        s_mov_b32 exec_lo, 0xffff
        s_mov_b32 exec_hi, 0xffff
        buffer_store_dwordx4 v[28:31], v32, s[44:47], s91 offen sc1
        s_mov_b64 exec, -1
        ''')
        if self.stamp_on and not self.light:
            self.stamp(7); a('s_waitcnt vmcnt(0)'); self.stamp(8)
        a('s_branch L_ctrl_end')
        a('L_role_down:')
        self.srd(72, 32, 1728 * 1280); self.srd(80, 38, 10240)
        a(f'''
        s_add_u32 s76, s42, {WS_HID}
        s_addc_u32 s77, s43, 0
        s_mov_b32 s78, {27*1024}
        s_mov_b32 s79, 0x20000
        v_lshrrev_b32 v16, 1, v2
        v_mul_u32_u24 v4, 1280, v16
        v_and_b32 v16, 1, v2
        v_lshl_add_u32 v4, v16, 4, v4
        s_mul_i32 s85, s3, {7*64*1280}
        s_lshl_b32 s9, s8, 5
        s_add_u32 s85, s85, s9
        s_mul_i32 s87, s3, 14336
        ''')
        a(f's_and_b32 s48, s8, {3 if self.rotm else 0}\ns_lshl_b32 s48, s48, 11')
        for n in range(1, 7):
            a(f's_add_u32 s{48+n}, s{47+n}, 1024\ns_cmp_ge_u32 s{48+n}, 7168\ns_cselect_b32 s{48+n}, 0, s{48+n}')
        a('v_mov_b32 v16, 0\nbuffer_load_dword v162, v16, s[80:83], 0 offen')
        for n in range(14):
            if n == self.nEd and self.nMd: self.lds_wait(C_VI, 8, sleep=2)
            if n == self.nEd + self.nMd: self.lds_wait(C_DONE, 5, sleep=2)
            if n % 2 == 0: a(f's_mul_i32 s55, s{48+n//2}, 80\ns_add_u32 s55, s55, s85')
            else: a(f's_add_u32 s55, s55, {32*1280}')
            a(f's_add_u32 m0, s87, {LW + 1024*n}')
            if n < self.nEd: a(f's_waitcnt vmcnt(0)')
            a(f'buffer_load_dwordx4 v4, s[72:75], s55 offen {self.nt("f")} lds')
        a(f'''
        v_lshrrev_b32 v16, 4, v2         ; s
        v_bfe_u32 v17, v2, 2, 2          ; r4
        v_lshl_add_u32 v19, v16, 3, v17
        v_lshlrev_b32 v9, 5, v19
        v_bfe_u32 v17, v2, 1, 1
        v_lshl_add_u32 v9, v17, 10, v9
        v_and_b32 v17, 1, v2
        v_lshl_add_u32 v9, v17, 3, v9
        v_add_u32 v9, s87, v9
        v_add_u32 v10, s87, v7
        v_and_b32 v17, 7, v2             ; b
        v_bfe_u32 v18, v2, 3, 1          ; a / half
        v_lshlrev_b32 v3, 7, v16
        v_lshl_add_u32 v3, v17, 4, v3
        v_lshl_add_u32 v3, v18, 9, v3
        s_mul_i32 s86, s3, 7168
        v_add_u32 v3, s86, v3
        v_and_b32 v16, 1, v16            ; s'
        v_lshlrev_b32 v11, 8, v16
        v_lshl_add_u32 v11, v17, 4, v11
        v_lshl_add_u32 v11, v18, 10, v11
        v_lshlrev_b32 v8, 4, v18
        v_lshl_add_u32 v8, v16, 3, v8    ; (8a+4s')*2
        v_mul_u32_u24 v5, 5120, v17
        v_add_u32 v5, v5, v8
        v_mul_u32_u24 v6, 1280, v17
        v_add_u32 v6, v6, v8
        s_add_u32 s90, s9, {WS_MODO + 3840}
        s_add_u32 s91, s9, {WS_X1}
        s_movk_i32 s92, 4096
        ''')
        for n in range(7):
            a(f's_waitcnt vmcnt({12 - 2*n})')
            for ac in range(2):
                b = 40 + 8 * n + 4 * ac
                a(f'ds_read_b64_tr_b16 v[{b}:{b+1}], v9 offset:{LW + 2048*n + 16*ac}')
                a(f'ds_read_b64_tr_b16 v[{b+2}:{b+3}], v9 offset:{LW + 2048*n + 16*ac + 128}')
            if n % 2: a('s_waitcnt lgkmcnt(0)')
        self.stamp(2)
        self.tag_from(167)
        self.lds_wait(C_WO, 8, sleep=4)
        self.poll('gb', ['buffer_load_dwordx2 v[32:33], v5, s[44:47], s90 offen sc1'], [32, 33], 4)
        self.unpack4(140, 32)
        self.stamp(3)
        self.poll('x1', ['buffer_load_dwordx2 v[32:33], v6, s[44:47], s91 offen sc1'], [32, 33], 1, lanemask=True)
        self.unpack4(144, 32)
        self.stamp(5)
        if self.hdelay: a(f's_sleep {self.hdelay}')
        for i in range(8): a(f'v_mov_b32 v{16+i}, 0')
        def hld(n): return f'buffer_load_dwordx4 v[{104+4*n}:{107+4*n}], v3, s[76:79], s{48+n} offen sc1'
        if self.trig:
            a(f'''
            s_mov_b32 s89, {SPIN_LIMIT}
            v_lshlrev_b32 v34, {9 + self.trsh}, v2
            v_add_u32 v34, s86, v34
            s_mov_b64 exec, {(1 << (12 >> self.trsh)) - 1}
            L_hd_trig:
            buffer_load_dword v35, v34, s[76:79], 0 offen offset:508 sc1
            s_sub_u32 s89, s89, 1
            s_cbranch_scc1 L_hd_go
            s_waitcnt vmcnt(0)
            v_cmp_ne_u32 vcc, -1, v35
            s_nop 1
            s_bcnt1_i32_b32 s85, vcc_lo
            s_cmp_lt_u32 s85, {self.trig}
            s_cbranch_scc1 L_hd_trig
            L_hd_go:
            s_mov_b64 exec, -1
            s_waitcnt vmcnt(0)
            ''')
            self.stamp(7)
        a(f's_mov_b32 s90, 0x7f\ns_mov_b32 s89, {SPIN_LIMIT}\nv_mov_b32 v34, 0')
        for n in range(7): a(hld(n))
        a('L_hid_poll:')
        for n in range(7):
            b = 104 + 4 * n
            a(f'''
            s_waitcnt vmcnt(6)
            s_bitcmp1_b32 s90, {n}
            s_cbranch_scc0 L_hd_dm{n}
            v_max3_u32 v36, v{b}, v{b+1}, v{b+2}
            v_max_u32 v36, v36, v{b+3}
            v_cmp_eq_u32 vcc, -1, v36
            s_cbranch_vccz L_hd_ok{n}
            {hld(n)}
            s_branch L_hd_nx{n}
            L_hd_ok{n}:
            v_mfma_f32_16x16x32_bf16 v[16:19], v[{40+8*n}:{43+8*n}], v[{b}:{b+3}], v[16:19]
            v_mfma_f32_16x16x32_bf16 v[20:23], v[{44+8*n}:{47+8*n}], v[{b}:{b+3}], v[20:23]
            s_bitset0_b32 s90, {n}
            s_cmp_eq_u32 s90, 0
            s_cbranch_scc1 L_hid_ok
            L_hd_dm{n}:
            buffer_load_dword v35, v34, s[76:79], 0 offen
            L_hd_nx{n}:
            ''')
        a(f'''
        s_sub_u32 s89, s89, 1
        s_cbranch_scc0 L_hid_poll
        L_hid_ok:
        s_nop 7
        ''')
        self.stamp(4)
        if self.stamp_on and not self.light: a(f's_sub_u32 s96, {SPIN_LIMIT}, s89\nv_writelane_b32 v15, s96, 12')
        a(f'ds_write_b128 v10, v[16:19] offset:{LW}\nds_write_b128 v10, v[20:23] offset:{LW + 1024}')
        reads = []
        for w in range(4):
            reads.append(f'ds_read_b128 v[{40+8*w}:{43+8*w}], v11 offset:{LW + 14336*w}')
            reads.append(f'ds_read_b128 v[{44+8*w}:{47+8*w}], v11 offset:{LW + 14336*w + 640}')
        self.arrive2(C_A, 3, 'L_ctrl_end', reads)
        a('s_waitcnt lgkmcnt(0)')
        self.sum_partials(40, [40 + 4 * i for i in range(8)])
        self.round4(40, 28)
        a('v_pk_mul_f32 v[40:41], v[40:41], v[140:141]\nv_pk_mul_f32 v[42:43], v[42:43], v[142:143]')
        self.round4(40, 28)
        a('v_pk_add_f32 v[40:41], v[40:41], v[144:145]\nv_pk_add_f32 v[42:43], v[42:43], v[146:147]')
        self.pack4(28, 40)
        a(f'''
        s_mov_b32 exec_hi, 0
        buffer_store_dwordx2 v[28:29], v6, s[80:83], s9 offen {self.outf}
        s_cmp_lg_u32 s8, 0
        s_cbranch_scc1 L_noepoch
        s_mov_b64 exec, 1
        v_mov_b32 v20, 0
        v_mov_b32 v21, s94
        buffer_store_dword v21, v20, s[44:47], 0 offen sc1
        L_noepoch:
        s_mov_b64 exec, -1
        s_branch L_ctrl_end
        ''')
        a('L_role_red:')
        self.srd(60, 16, 10240)
        a(f'''
        v_lshlrev_b32 v8, 3, v2          ; lane*8
        s_mul_i32 s9, s8, 1280
        buffer_load_dwordx2 v[26:27], v8, s[60:63], s9 offen
        buffer_load_dwordx2 v[28:29], v8, s[60:63], s9 offen offset:512
        buffer_load_dword v30, v12, s[60:63], s9 offen offset:1024
        s_lshl_b32 s90, s8, 14
        s_lshl_b32 s85, s3, 12
        s_add_u32 s90, s90, s85
        s_add_u32 s90, s90, {WS_Q}
        s_waitcnt vmcnt(0)
        ''')
        self.tag_from(167)
        for i in range(5): self.unpack(120 + 2 * i, 26 + i)
        self.lds_wait(C_QOK, 1, sleep=8)
        loads = [f'buffer_load_dwordx4 v[{40+4*n}:{43+4*n}], v7, s[44:47], s90 offen offset:{1024*n} sc1' for n in range(4)]
        self.poll('qall', loads, [41 + 2 * i for i in range(8)], 8, tagged=True)
        a(f'''
        s_mul_i32 s90, s8, 5120
        s_add_u32 s90, s90, {WS_MODO}
        ''')
        loads = []
        for ch in range(3):
            b = 40 + 6 * ch
            loads += [f'buffer_load_dwordx2 v[{b}:{b+1}], v8, s[44:47], s90 offen offset:{1280*ch} sc1',
                      f'buffer_load_dwordx2 v[{b+2}:{b+3}], v8, s[44:47], s90 offen offset:{1280*ch + 512} sc1',
                      f'buffer_load_dword v{b+4}, v12, s[44:47], s90 offen offset:{1280*ch + 1024} sc1']
        self.poll('modo', loads, [40 + 6 * ch + i for ch in range(3) for i in range(5)], 8)
        for ch in range(3):
            for i in range(5): self.unpack(130 + 10 * ch + 2 * i, 40 + 6 * ch + i)
        for i in range(5):
            a(f'v_pk_add_f32 v[{150+2*i}:{151+2*i}], v[{150+2*i}:{151+2*i}], 1.0 op_sel_hi:[1,0]')
            a(f'v_cvt_pk_bf16_f32 v26, v{150+2*i}, v{151+2*i}')
            self.unpack(150 + 2 * i, 26)
        for i in range(10): a(f'v_mov_b32 v{16+i}, 0')
        a(f'''
        s_lshl_b32 s91, s8, 5
        s_lshl_b32 s85, s3, 3
        s_add_u32 s91, s91, s85
        s_mul_i32 s91, s91, 2560
        s_add_u32 s91, s91, {WS_P}
        s_mul_i32 s87, s3, 2560
        v_add_u32 v10, s87, v7
        v_add_u32 v11, s87, v8
        s_add_u32 s92, s9, {WS_H2}
        s_add_u32 s93, s9, {WS_X1}
        ''')
        self.stamp(2)
        self.lds_wait(C_PROG, 1, sleep=8)
        self.stamp(3)
        a(f'''
        s_mov_b32 s90, 0xff
        s_mov_b32 s89, {SPIN_LIMIT}
        v_and_b32 v34, 7, v2
        v_mul_u32_u24 v34, 2560, v34
        s_mov_b32 s86, 0
        L_p_poll:
        s_mov_b32 s95, s90
        s_cmp_lg_u32 s86, 0
        s_cbranch_scc1 L_p_fetch
        ds_read_b32 v14, v13 offset:{C_K2}
        s_waitcnt lgkmcnt(0)
        v_readfirstlane_b32 s88, v14
        s_cmp_ge_u32 s88, 8
        s_cselect_b32 s86, 1, 0
        s_cbranch_scc1 L_p_fetch
        s_sleep 4
        buffer_load_dword v35, v34, s[44:47], s91 offen offset:2556 sc1
        s_waitcnt vmcnt(0)
        v_cmp_ne_u32 vcc, -1, v35
        s_nop 1
        s_and_b32 s95, s90, vcc_lo
        s_cbranch_scc0 L_p_next
        L_p_fetch:
        s_bcnt1_i32_b32 s85, s90
        s_and_b32 s85, s85, s86
        s_bcnt1_i32_b32 s88, s90
        s_cmp_eq_u32 s88, s85
        s_cbranch_scc1 L_p_one
        ''')
        for g in range(8):
            b = 40 + 10 * g
            a(f'''
            s_bitcmp1_b32 s95, {g}
            s_cbranch_scc0 L_p_sk{g}
            s_add_u32 s85, s91, {2560*g}
            buffer_load_dwordx4 v[{b}:{b+3}], v7, s[44:47], s85 offen sc1
            buffer_load_dwordx4 v[{b+4}:{b+7}], v7, s[44:47], s85 offen offset:1024 sc1
            buffer_load_dwordx2 v[{b+8}:{b+9}], v8, s[44:47], s85 offen offset:2048 sc1
            L_p_sk{g}:
            ''')
        a('s_waitcnt vmcnt(0)')
        for g in range(8):
            b = 40 + 10 * g
            a(f'''
            s_bitcmp1_b32 s95, {g}
            s_cbranch_scc0 L_p_ck{g}
            v_max3_u32 v36, v{b}, v{b+1}, v{b+2}
            v_max3_u32 v37, v{b+3}, v{b+4}, v{b+5}
            v_max3_u32 v36, v36, v{b+6}, v{b+7}
            v_max3_u32 v37, v37, v{b+8}, v{b+9}
            v_max_u32 v36, v36, v37
            v_cmp_eq_u32 vcc, -1, v36
            s_cbranch_vccnz L_p_ck{g}
            s_bitset0_b32 s90, {g}
            ''')
            for i in range(5): a(f'v_pk_add_f32 v[{16+2*i}:{17+2*i}], v[{16+2*i}:{17+2*i}], v[{b+2*i}:{b+2*i+1}]')
            a(f'L_p_ck{g}:')
        a(f'''
        s_cmp_eq_u32 s90, 0
        s_cbranch_scc1 L_p_ok
        L_p_next:
        s_sub_u32 s89, s89, 1
        s_cbranch_scc0 L_p_poll
        s_branch L_p_ok
        L_p_one:
        s_ff1_i32_b32 s85, s90
        s_mul_i32 s85, s85, 2560
        s_add_u32 s85, s85, s91
        L_p_one_l:
        buffer_load_dwordx4 v[40:43], v7, s[44:47], s85 offen sc1
        buffer_load_dwordx4 v[44:47], v7, s[44:47], s85 offen offset:1024 sc1
        buffer_load_dwordx2 v[48:49], v8, s[44:47], s85 offen offset:2048 sc1
        s_sub_u32 s89, s89, 1
        s_cbranch_scc1 L_p_ok
        s_waitcnt vmcnt(0)
        v_max3_u32 v36, v40, v41, v42
        v_max3_u32 v37, v43, v44, v45
        v_max3_u32 v36, v36, v46, v47
        v_max3_u32 v37, v37, v48, v49
        v_max_u32 v36, v36, v37
        v_cmp_eq_u32 vcc, -1, v36
        s_cbranch_vccnz L_p_one_l
        v_pk_add_f32 v[16:17], v[16:17], v[40:41]
        v_pk_add_f32 v[18:19], v[18:19], v[42:43]
        v_pk_add_f32 v[20:21], v[20:21], v[44:45]
        v_pk_add_f32 v[22:23], v[22:23], v[46:47]
        v_pk_add_f32 v[24:25], v[24:25], v[48:49]
        L_p_ok:
        ''')
        self.stamp(4)
        a(f'''
        ds_write_b128 v10, v[16:19] offset:{LW}
        ds_write_b128 v10, v[20:23] offset:{LW + 1024}
        ds_write_b64 v11, v[24:25] offset:{LW + 2048}
        ''')
        reads = []
        for w in range(4):
            b = 40 + 10 * w
            reads.append(f'ds_read_b128 v[{b}:{b+3}], v7 offset:{LW + 2560*w}')
            reads.append(f'ds_read_b128 v[{b+4}:{b+7}], v7 offset:{LW + 2560*w + 1024}')
            reads.append(f'ds_read_b64 v[{b+8}:{b+9}], v8 offset:{LW + 2560*w + 2048}')
        self.arrive2(C_A, 3, 'L_ctrl_end', reads)
        a('s_waitcnt lgkmcnt(0)')
        U = 40
        def P(r, i): return f'v[{r+2*i}:{r+2*i+1}]'
        for i in range(5): a(f'v_pk_add_f32 {P(40,i)}, {P(40,i)}, {P(50,i)}')
        for i in range(5): a(f'v_pk_add_f32 {P(60,i)}, {P(60,i)}, {P(70,i)}')
        for i in range(5): a(f'v_pk_add_f32 {P(40,i)}, {P(40,i)}, {P(60,i)}')
        def pk():
            for i in range(5): a(f'v_cvt_pk_bf16_f32 v{26+i}, v{U+2*i}, v{U+2*i+1}')
        def rnd(): self.rnd1(range(U, U + 10))
        rnd()
        for i in range(5): a(f'v_pk_mul_f32 {P(U,i)}, {P(U,i)}, {P(130,i)}')
        rnd()
        for i in range(5): a(f'v_pk_add_f32 {P(U,i)}, {P(U,i)}, {P(120,i)}')
        rnd()
        def mid():
            for i in range(5): a(f'v_cvt_pk_bf16_f32 v{160+i}, v{U+2*i}, v{U+2*i+1}')
            for i in range(5): a(f'v_pk_add_f32 {P(U,i)}, {P(U,i)}, s[96:97] op_sel_hi:[1,0] neg_lo:[0,1] neg_hi:[0,1]')
            rnd()
        self.ln_stats1(U, 32, 96, 98, mid)
        for i in range(5): a(f'v_pk_mul_f32 {P(U,i)}, {P(U,i)}, s[98:99] op_sel_hi:[1,0]')
        rnd()
        for i in range(5): a(f'v_pk_mul_f32 {P(U,i)}, {P(U,i)}, {P(150,i)}')
        rnd()
        for i in range(5): a(f'v_pk_add_f32 {P(U,i)}, {P(U,i)}, {P(140,i)}')
        pk()
        self.sanitize(range(26, 31))
        a(f'''
        buffer_store_dwordx2 v[26:27], v8, s[44:47], s92 offen sc1
        buffer_store_dwordx2 v[28:29], v8, s[44:47], s92 offen offset:512 sc1
        buffer_store_dword v30, v12, s[44:47], s92 offen offset:1024 sc1
        ''')
        self.sanitize(range(160, 165))
        a(f'''
        buffer_store_dwordx2 v[160:161], v8, s[44:47], s93 offen sc1
        buffer_store_dwordx2 v[162:163], v8, s[44:47], s93 offen offset:512 sc1
        buffer_store_dword v164, v12, s[44:47], s93 offen offset:1024 sc1
        L_ctrl_end:
        ''')
        self.stamp(11)
        a(f's_cmp_eq_u32 s7, {R_DOWN}\ns_cbranch_scc1 L_ctrl_fin\ns_cmp_eq_u32 s7, {R_FFN}\ns_cbranch_scc1 L_ctrl_fin\ns_cmp_eq_u32 s7, {R_RED}\ns_cbranch_scc1 L_ctrl_fin')
        a('L_share:')
        if 't' in self.abl: a('s_branch L_ctrl_fin')
        if self.late: self.prefetch_late('e')
        a(f's_cmp_eq_u32 s7, {R_DOWN}\ns_cbranch_scc1 L_role_down\ns_cmp_eq_u32 s7, {R_FFN}\ns_cbranch_scc1 L_role_ffn\ns_cmp_eq_u32 s7, {R_RED}\ns_cbranch_scc1 L_role_red')
        a('L_ctrl_fin:')
        self.stamp_flush()
        self.diag_end()
        a('s_endpgm')

    def stream(self):
        a = self.a
        self.cur_cls = 0
        WK, WV = self.WK, self.WV
        NV = 12
        KV = lambda t: 40 + 4 * t
        assert self.rotw == 1 and self.WK0 >= 2
        a(f'''
        s_sub_u32 s15, s3, 4             ; sw
        s_lshl_b32 s85, s15, {10 if self.ilv else 15}
        v_add_u32 v1, s85, v7
        s_mul_i32 s91, s2, {self.rot}
        {'' if self.ilv else 's_add_u32 s91, s91, s15'}
        s_and_b32 s91, s91, 31
        s_lshl_b32 s91, s91, {13 if self.ilv else 10}          ; rotation
        s_lshl_b32 s85, s2, 2
        s_add_u32 s85, s85, 3
        s_lshl_b32 s85, s85, 18
        s_mov_b32 s51, 0x20000
        s_lshl_b32 s50, s51, 1
        {'s_sub_u32 s90, s50, 1' if self.ilv else 's_movk_i32 s90, 0x7fff'}
        s_addk_i32 s91, {8192 if self.ilv else 1024}
        s_and_b32 s92, s91, s90
        s_addk_i32 s91, {-8192 if self.ilv else -1024}
        s_waitcnt lgkmcnt(0)
        s_add_u32 s48, s18, s85
        s_addc_u32 s49, s19, 0
        buffer_load_dwordx4 v[40:43], v1, s[48:51], s91 offen {self.nt('k')}
        buffer_load_dwordx4 v[44:47], v1, s[48:51], s92 offen {self.nt('k')}
        ''')
        for t in range(2, self.wki):
            a(f's_addk_i32 s92, {8192 if self.ilv else 1024}\ns_and_b32 s92, s92, s90\nbuffer_load_dwordx4 v[{40+4*t}:{43+4*t}], v1, s[48:51], s92 offen {self.nt("k")}')
        a(f'''
        s_add_u32 s52, s20, s85
        s_addc_u32 s53, s21, 0
        s_mov_b32 s54, 0x40000
        s_mov_b32 s55, 0x20000
        s_barrier
        ''')
        self.common2()
        self.srd(44, 42, WS_SIZE)
        if self.stamp_on: a('v_writelane_b32 v15, s98, 13')
        self.cur_cls = -1
        self.stamp(0)
        self.cur_cls = 0
        self.decode()
        for _ in range(self.sdelay): a('s_sleep 32')
        if self.hold > 1: a(f's_cmp_eq_u32 s7, {R_Q}\ns_cbranch_scc1 L_hold')
        if 'r' in self.abl: a('s_branch L_nohold')
        a(f's_cmp_lg_u32 s7, {R_G1}\ns_cbranch_scc1 L_nohold')
        self.srd(56, 34, 10240); self.srd(60, 16, 10240)
        a('s_mul_i32 s90, s15, 1280\nv_lshlrev_b32 v12, 2, v2')
        for n in range(5): a(f'buffer_load_dword v{80+n}, v12, s[56:59], s90 offen offset:{256*n}')
        for n in range(5): a(f'buffer_load_dword v{86+n}, v12, s[60:63], s90 offen offset:{256*n}')
        if self.cxfirst: self.signal(C_CX)
        a(f'''
        s_mul_i32 s90, s15, {ACTS}
        s_add_u32 s90, s90, {L_ACT}
        v_add_u32 v12, s90, v12
        s_mov_b32 s85, {LOG2E | 0x80000000}
        s_waitcnt vmcnt(5)
        ''')
        self.stamp(9)
        for i in range(5): self.unpack(100 + 2 * i, 80 + i)
        for i in range(10): a(f'v_mul_f32 v{112+i}, s85, v{100+i}')
        for i in range(10): a(f'v_exp_f32 v{112+i}, v{112+i}')
        for i in range(10): a(f'v_add_f32 v{112+i}, 1.0, v{112+i}')
        for i in range(10): a(f'v_rcp_f32 v{112+i}, v{112+i}')
        for i in range(10): a(f'v_mul_f32 v{100+i}, v{100+i}, v{112+i}')
        for i in range(5): a(f'v_cvt_pk_bf16_f32 v{80+i}, v{100+2*i}, v{101+2*i}')
        for i in range(5): a(f'ds_write_b32 v12, v{80+i} offset:{256*i}')
        a('s_waitcnt vmcnt(0)')
        self.ln_stats(86, 100, 112, 90, 92)
        a(f'''
        v_mov_b32 v28, s90
        v_mov_b32 v29, s92
        s_lshl_b32 s85, s15, 3
        v_add_u32 v30, s85, v13
        ds_write_b64 v30, v[28:29] offset:{L_STAT}
        ''')
        self.signal(C_ACT)
        a('L_hold:')
        if self.hold: self.lds_wait(C_GO, 4, sleep=2)
        a('L_nohold:')
        q = [f'K{t}' for t in range(self.wki)]
        def wait_for(name):
            i = len(q) - 1 - q[::-1].index(name)
            n = len(q) - 1 - i
            a(f's_waitcnt vmcnt({min(n, 63)})')
        def ld(t, slot, srd, nm):
            a(f's_add_u32 s92, s91, {t*(8192 if self.ilv else 1024)}\ns_and_b32 s92, s92, {0x3ffff if self.ilv else 0x7fff}')
            a(f'buffer_load_dwordx4 v[{KV(slot)}:{KV(slot)+3}], v1, {srd}, s92 offen {self.nt(nm[0].lower())}')
            q.append(nm)
        qloads = ['buffer_load_dwordx4 v[4:7], v12, s[44:47], s93 offen sc1', 'buffer_load_dwordx4 v[16:19], v12, s[44:47], s93 offen offset:16 sc1']
        for t in range(1, 32):
            wk = WK if t >= self.wk_sw else self.WK0
            if t >= wk and t >= self.wki:
                if self.WKL > wk and t >= self.wkl_sw:
                    L = a.label('L_kw')
                    a(f's_waitcnt vmcnt({self.WKL-1})\ns_cbranch_vccnz {L}\ns_waitcnt vmcnt({wk-1})\n{L}:')
                else: a(f's_waitcnt vmcnt({wk-1})')
            if t == self.WK0: self.stamp(8)
            if t == self.pfl_t: self.signal(C_PROGW)
            if t == self.pf1_t: self.signal(C_PF)
            if t == self.pf2_t: self.signal(C_PF2)
            if t >= self.wki: ld(t, t, 's[48:51]', f'K{t}')
            if t == self.WK0 - 1:
                a(f'''
                v_mov_b32 v3, 0
                buffer_load_dword v35, v3, s[44:47], 0 offen sc1
                v_and_b32 v3, 15, v2
                v_lshlrev_b32 v12, 5, v3             ; Q voffset
                s_lshl_b32 s93, s2, 9
                s_add_u32 s93, s93, {WS_Q}
                v_mov_b32 v16, 0xffff
                v_mov_b32 v17, s84
                ''')
                q.append('E')
                for r in range(4):
                    a(f'''
                    v_cmp_eq_u32 vcc, {2*r}, v3
                    v_cndmask_b32 v{8+r}, 0, v16, vcc
                    v_cmp_eq_u32 vcc, {2*r+1}, v3
                    v_cndmask_b32 v{8+r}, v{8+r}, v17, vcc
                    ''')
                a(f'''
                s_mov_b32 s96, 0xcccccccc
                s_mov_b32 s97, 0xcccccccc
                s_mov_b32 s98, 0xaaaaaaaa
                s_mov_b32 s99, 0xaaaaaaaa
                s_mul_i32 s85, s14, 163840
                s_add_u32 s56, s24, s85
                s_addc_u32 s57, s25, 0
                s_mov_b32 s58, 163840
                s_mov_b32 s59, 0x20000
                v_lshrrev_b32 v34, 4, v2
                v_mul_u32_u24 v34, 5120, v34
                v_lshl_add_u32 v34, v3, 4, v34
                s_mul_i32 s85, s15, 20480
                v_add_u32 v34, s85, v34
                s_lshr_b32 s85, {self.lagmask}, s7
                s_bitcmp1_b32 s85, 0
                s_cselect_b64 vcc, -1, 0
                ''')
            if t >= self.st0 and (t - self.st0) % self.stp == 0 and (t - self.st0) // self.stp < self.nst:
                n = (t - self.st0) // self.stp
                if n == 6 and 'r' not in self.abl:
                    a(f's_cmp_lg_u32 s7, {R_G1}\ns_cbranch_scc1 L_stg_ok')
                    self.lds_wait(C_A, 4, sleep=1)
                    a('L_stg_ok:')
                a(f's_lshl_b32 s85, s15, 10\ns_add_u32 m0, s85, {LST + 8192*n}\ns_movk_i32 s85, {(n // 5) * 1280 + (n % 5) * 256}')
                a(f'buffer_load_dwordx4 v34, s[56:59], s85 offen {self.nt("o")} lds')
                q.append(f'S{n}')
            if t == 12:
                self.tag_from(35)
            if t == self.rk:
                self.srd(64, 40, 256)
                a(f'''
                v_mov_b32 v37, 1
                v_mov_b32 v38, 0
                s_mov_b64 exec, 1
                s_cmp_eq_u32 s15, 0
                s_cbranch_scc1 L_rk_at
                buffer_load_dword v37, v38, s[64:67], 0 offen offset:128
                s_branch L_rk_dn
                L_rk_at:
                buffer_atomic_add v37, v38, s[64:67], 0 offen sc0 sc1
                L_rk_dn:
                s_mov_b64 exec, -1
                ''')
                q.append('RK')
            if t == self.qpos:
                for l in qloads: a(l)
                q.append('Q0'); q.append('Q1')
        self.stamp(1)
        wait_for('Q1')
        a(f'''
        s_mov_b32 s89, {SPIN_LIMIT}
        s_mov_b32 s63, 0
        L_q_chk:
        v_xor_b32 v20, s94, v5
        v_xor_b32 v21, s94, v7
        v_xor_b32 v22, s94, v17
        v_xor_b32 v23, s94, v19
        v_or_b32 v20, v20, v21
        v_or3_b32 v20, v20, v22, v23
        v_cmp_ne_u32 vcc, 0, v20
        {'s_branch L_q_ok' if 'r' in self.abl or 'q' in self.abl else ''}
        s_cbranch_vccz L_q_ok
        s_cmp_ge_u32 s63, {self.vpf * 8192}
        s_cbranch_scc1 L_q_nopf
        ''')
        if self.ilv:
            a('''
            s_lshl_b32 s85, s63, 3
            s_add_u32 s85, s85, s91
            v_lshrrev_b32 v38, 3, v2
            v_lshl_add_u32 v38, v38, 13, s85
            v_and_b32 v38, 0x3ffff, v38
            v_and_b32 v39, 7, v2
            v_lshl_add_u32 v38, v39, 7, v38
            s_lshl_b32 s85, s15, 10
            ''')
        else:
            a('''
            s_add_u32 s85, s91, s63
            v_lshl_add_u32 v38, v2, 7, s85
            v_and_b32 v38, 0x7fff, v38
            s_lshl_b32 s85, s15, 15
            ''')
        a(f'''
        buffer_load_dword v39, v38, s[52:55], s85 offen
        s_addk_i32 s63, 8192
        L_q_nopf:
        {qloads[0]}
        {qloads[1]}
        s_waitcnt vmcnt(0)
        s_sub_u32 s89, s89, 1
        s_cbranch_scc0 L_q_chk
        L_q_ok:
        v_mov_b32 v5, v6
        v_mov_b32 v6, v16
        v_mov_b32 v7, v18
        ''')
        self.signal(C_QOK)
        self.stamp(2)
        D = 20
        st = dict(V=0, W=self.nst)
        def ldwo(n):
            tp, c = n // 5, n % 5
            so = ['0', 's60', 's61', 's62'][tp]
            if 'w' in self.abl: return
            a(f'buffer_load_dwordx4 v[{KV(NV+n)}:{KV(NV+n)+3}], v34, s[56:59], {so} offen offset:{256*c} {self.nt("o")}')
            q.append(f'W{n}')
        def pre(g, free):
            for ch in self.pre[g]:
                if ch == 'V':
                    assert st['V'] < NV and st['V'] <= free
                    ld(st['V'], st['V'], 's[52:55]', f"V{st['V']}"); st['V'] += 1
                else:
                    assert NV + st['W'] <= free
                    ldwo(st['W']); st['W'] += 1
        a('s_movk_i32 s60, 1280\ns_movk_i32 s61, 2560\ns_movk_i32 s62, 3840')
        for g in range(8):
            wait_for(f'K{4*g+3}')
            for i in range(4):
                for k in range(4):
                    t = 4 * g + k
                    a(f'v_dot2_f32_bf16 v{D+k}, v{KV(t)+i}, v{4+i}, {"0" if i == 0 else "v%d" % (D+k)}')
            pre(g, 4 * g + 3)
            a(f'v_add_f32_dpp v24, v{D}, v{D} row_ror:8 row_mask:0xf bank_mask:0x3')
            a(f'v_add_f32_dpp v25, v{D+2}, v{D+2} row_ror:8 row_mask:0xf bank_mask:0x3')
            a(f'v_add_f32_dpp v24, v{D+1}, v{D+1} row_ror:8 row_mask:0xf bank_mask:0xc')
            a(f'v_add_f32_dpp v25, v{D+3}, v{D+3} row_ror:8 row_mask:0xf bank_mask:0xc')
            r2 = 26 + (g & 1)
            a(f'v_add_f32_dpp v{r2}, v24, v24 row_shl:4 row_mask:0xf bank_mask:0x5')
            a(f'v_add_f32_dpp v{r2}, v25, v25 row_shr:4 row_mask:0xf bank_mask:0xa')
            if g & 1:
                r3 = 28 + ((g >> 1) & 1)
                a(f'v_add_f32_dpp v30, v26, v26 quad_perm:[2,3,0,1] row_mask:0xf bank_mask:0xf')
                a(f'v_add_f32_dpp v31, v27, v27 quad_perm:[2,3,0,1] row_mask:0xf bank_mask:0xf')
                a(f'v_cndmask_b32 v{r3}, v30, v31, s[96:97]')
            if (g & 3) == 3:
                a(f'v_add_f32_dpp v30, v28, v28 quad_perm:[1,0,3,2] row_mask:0xf bank_mask:0xf')
                a(f'v_add_f32_dpp v31, v29, v29 quad_perm:[1,0,3,2] row_mask:0xf bank_mask:0xf')
                a(f'v_cndmask_b32 v{32 + (g >> 2)}, v30, v31, s[98:99]')
        a(f'''
        v_cvt_pk_bf16_f32 v20, v32, v33
        s_mov_b32 s86, 0x3db504f3
        ''')
        self.unpack(32, 20)
        a('v_pk_mul_f32 v[32:33], v[32:33], s[86:87] op_sel_hi:[1,0]\nv_cvt_pk_bf16_f32 v20, v32, v33')
        self.unpack(32, 20)
        a('v_max_f32 v20, v32, v33')
        self.wave_red(20, 'max')
        a(f'''
        v_readlane_b32 s86, v20, 63              ; m_w
        s_mov_b32 s90, {LOG2E}
        v_subrev_f32 v20, s86, v32
        v_subrev_f32 v21, s86, v33
        v_mul_f32 v20, s90, v20
        v_mul_f32 v21, s90, v21
        v_exp_f32 v20, v20
        v_exp_f32 v21, v21
        v_add_f32 v21, v20, v21
        ''')
        self.wave_red(21)
        a(f'''
        v_mov_b32 v20, s86
        s_lshl_b32 s85, s15, 3
        v_add_u32 v22, s85, v13
        s_mov_b32 exec_lo, 0
        s_mov_b32 exec_hi, 0x80000000
        ds_write_b64 v22, v[20:21] offset:{L_SM}
        s_mov_b64 exec, -1
        ''')
        if self.rk >= 0:
            a(f's_cmp_lg_u32 s15, 0\ns_cbranch_scc1 L_rk_nw\ns_mov_b64 exec, 1\nds_write_b32 v13, v37 offset:{L_RANK}\ns_mov_b64 exec, -1\nL_rk_nw:')
        if self.nst:
            a(f's_lshl_b32 s85, s15, 10\ns_add_u32 s85, s85, {LST}\nv_lshl_add_u32 v36, v2, 4, s85\nv_add_u32 v37, 32768, v36')
            for n in range(self.nst):
                a(f'ds_read_b128 v[{KV(NV+n)}:{KV(NV+n)+3}], v{36 if n < 4 else 37} offset:{8192*(n if n < 4 else n - 4)}')
        self.stamp(3)
        self.signal(C_SM)
        pre(8, 31)
        self.lds_wait(C_SM, 8)
        self.stamp(4)
        a(f'''
        v_and_b32 v22, 7, v2
        v_lshl_add_u32 v22, v22, 3, v13
        ds_read_b64 v[20:21], v22 offset:{L_SM}
        s_lshr_b32 s63, {self.lagv}, s7
        s_and_b32 s63, s63, 1
        s_waitcnt lgkmcnt(0)
        v_max_f32_dpp v22, v20, v20 row_ror:4 row_mask:0xf bank_mask:0xf
        v_max_f32_dpp v22, v22, v22 row_ror:2 row_mask:0xf bank_mask:0xf
        v_max_f32_dpp v22, v22, v22 row_ror:1 row_mask:0xf bank_mask:0xf
        v_sub_f32 v20, v20, v22
        v_mul_f32 v20, s90, v20
        v_exp_f32 v20, v20
        v_sub_f32 v32, v32, v22
        v_sub_f32 v33, v33, v22
        v_mul_f32 v21, v21, v20
        v_mul_f32 v32, s90, v32
        v_mul_f32 v33, s90, v33
        v_add_f32_dpp v21, v21, v21 row_ror:4 row_mask:0xf bank_mask:0xf
        v_exp_f32 v32, v32
        v_exp_f32 v33, v33
        v_add_f32_dpp v21, v21, v21 row_ror:2 row_mask:0xf bank_mask:0xf
        v_add_f32_dpp v21, v21, v21 row_ror:1 row_mask:0xf bank_mask:0xf
        v_rcp_f32 v21, v21
        v_mul_f32 v32, v32, v21
        v_mul_f32 v33, v33, v21
        v_cvt_pk_bf16_f32 v32, v32, v32
        v_cvt_pk_bf16_f32 v33, v33, v33
        ''')
        issued = st['V']; nwo = st['W']
        for t in range(32):
            A = 20 + 4 * (t & 1)
            for r in range(4):
                a(f'v_and_b32_dpp v{A+r}, v{32 + (t >> 4)}, v{8+r} row_newbcast:{bitrev4(t & 15)} row_mask:0xf bank_mask:0xf')
            wait_for(f'V{t}')
            a(f'v_mfma_f32_16x16x32_bf16 v[16:19], v[{A}:{A+3}], v[{KV(t % NV)}:{KV(t % NV)+3}], {"0" if t == 0 else "v[16:19]"}')
            if not self.lagv:
                while t + (WV if t < self.wv_sw else self.WV2) >= issued and issued < 32:
                    ld(issued, issued % NV, 's[52:55]', f'V{issued}'); issued += 1
            else:
                wbig = max(self.WVc, WV if t < self.wv_sw else self.WV2)
                while t + wbig >= issued and issued < 32:
                    wa = WV if issued - WV < self.wv_sw else self.WV2
                    if issued - wa > t:
                        L = a.label('L_vw')
                        a(f's_cmp_lg_u32 s63, 0\ns_cbranch_scc1 {L}')
                        wait_for(f'V{issued - wa}')
                        a(f'{L}:')
                    ld(issued, issued % NV, 's[52:55]', f'V{issued}'); issued += 1
            if t >= self.wo_start:
                for _ in range(self.wo_per):
                    if nwo < 20: ldwo(nwo); nwo += 1
            if t == self.prog_t: self.signal(C_PROG)
            if t + 32 == self.pfl_t: self.signal(C_PROGW)
            if t == self.red_direct: self.signal(C_K2)
            if t == self.vi_t: self.signal(C_VI)
            if t == 28:
                a(f'''
                v_lshlrev_b32 v7, 4, v2
                v_and_b32 v3, 15, v2
                v_lshrrev_b32 v4, 4, v2
                v_lshlrev_b32 v5, 5, v3
                v_lshl_add_u32 v5, v4, 4, v5          ; (8j+4s')*4
                s_lshl_b32 s85, s15, 9
                s_add_u32 s85, s85, {L_OP}
                v_add_u32 v6, s85, v5
                s_mul_i32 s85, s15, 2560
                s_add_u32 s85, s85, {L_WP}
                v_add_u32 v5, s85, v5
                s_lshl_b32 s85, s15, 6
                s_add_u32 s85, s85, {L_OP}
                v_lshl_add_u32 v4, v4, 4, s85
                v_and_b32 v35, 31, v2
                v_lshlrev_b32 v35, 4, v35
                v_lshrrev_b32 v36, 5, v2
                v_mul_u32_u24 v36, 10240, v36
                s_lshl_b32 s85, s15, 9
                s_add_u32 s86, s85, {L_WP}
                v_add3_u32 v35, v35, v36, s86
                s_mul_i32 s87, s2, 2560
                s_add_u32 s87, s87, s85
                s_add_u32 s87, s87, {WS_P}
                ''')
        assert nwo == 20
        a(f'''
        s_mov_b32 exec_hi, 0
        ds_write_b128 v6, v[16:19]
        s_mov_b64 exec, -1
        ''')
        self.stamp(5)
        self.signal(C_PV)
        self.wait2(C_PV, 8, [f'ds_read_b128 v[{40+4*w}:{43+4*w}], v4 offset:{512*w}' for w in range(8)])
        self.sum_partials(40, [40 + 4 * i for i in range(8)])
        for r in range(4): a(f'v_cvt_pk_bf16_f32 v{40+r}, v{40+r}, v{40+r}')
        a('s_waitcnt vmcnt(0)')
        self.stamp(6)
        def wr(c): a(f's_mov_b32 exec_hi, 0\nds_write_b128 v5, v[{60+4*c}:{63+4*c}] offset:{512*c}\ns_mov_b32 exec_hi, -1')
        for c in range(5):
            for tp in range(4):
                if c == 0:
                    for r in range(4): a(f'v_and_b32 v{44+4*tp+r}, v{40+tp}, v{8+r}')
                d = 60 + 4 * c; b = KV(NV + 5 * tp + c)
                a(f'v_mfma_f32_16x16x32_bf16 v[{d}:{d+3}], v[{44+4*tp}:{47+4*tp}], v[{b}:{b+3}], {"0" if tp == 0 else "v[%d:%d]" % (d, d+3)}')
            if c >= 2: wr(c - 2)
        wr(3); wr(4)
        self.signal(C_WO)
        a('s_cmp_ge_u32 s15, 5\ns_cbranch_scc1 L_stream_end')
        self.wait2(C_WO, 8, [f'ds_read_b128 v[{40+4*w}:{43+4*w}], v35 offset:{2560*w}' for w in range(4)])
        self.stamp(7)
        self.sum_partials(40, [40, 44, 48, 52])
        for i in range(4): a(f'v_mov_b32 v{44+i}, v{40+i}')
        for i in range(4): a(f'v_permlane32_swap_b32 v{40+i}, v{44+i}')
        a('v_pk_add_f32 v[40:41], v[40:41], v[44:45]\nv_pk_add_f32 v[42:43], v[42:43], v[46:47]')
        self.sanitize(range(40, 44))
        a('''
        s_mov_b32 exec_hi, 0
        buffer_store_dwordx4 v[40:43], v7, s[44:47], s87 offen sc1
        s_mov_b64 exec, -1
        ''')
        self.signal(C_DONE)
        a('L_stream_end:')
        self.stamp(10)
        self.stamp_flush()
        self.diag_end()
        a('L_end:\ns_endpgm')

    def build(self):
        self.prologue(); self.stream(); self.control(); self.a('L_code_end:')
        kn = NAME + '_kernel'
        body = '\n'.join(fix_hazards(self.a.l)) + '\n'
        hdr = open('cdna_kernels/' + NAME + '.s.ref').read().split('; Override launch')[0]
        return hdr + header([f'; @launch grid=(256,1,1) block=(768,1,1) lds={LDS_SIZE}']) + kernel_start(kn) + body + '.section .rodata,"a"\n' + descriptor(kn, vgpr=168, sgpr=102, accum=168)

if __name__ == '__main__':
    import argparse
    from collections import Counter
    rs = [role_of(w) for w in range(256)]
    for r, n in ((R_G1, 20), (R_DOWN, 40), (R_FFN, 54), (R_Q, 64), (R_MOD, 40), (R_RED, 8)):
        assert sorted(i for rr, i in rs if rr == r) == list(range(n)), r
    ap = argparse.ArgumentParser()
    ap.add_argument('-o', default='k.s'); ap.add_argument('--stamp', action='store_true')
    for p, d in (('WK', 3), ('WV', 4), ('rot', 3), ('rotw', 1), ('qpos', 28), ('prog_t', 22), ('progw_t', -1), ('WD', 20), ('wo_start', 0), ('wo_per', 1), ('sdelay', 0), ('WK0', 3), ('wk_sw', 16), ('k2_t', -1), ('WV2', 8), ('wv_sw', 12), ('hold', 1), ('pf', 1), ('WKL', 4), ('wkl_sw', 6), ('lagmask', 2), ('pfb', 1), ('cpf', 1), ('diag_until', 0), ('diag_xcc', 0), ('diag_role', -1), ('diag_cls', -1), ('diag_idx', -1), ('nMf', 0), ('nMd', 0), ('vi_t', 29), ('nEf', 0), ('nEd', 0), ('late', 0), ('pfl_t', 8), ('psleep', 0), ('light', 0), ('hdelay', 0), ('rk', -1), ('lagv', 0), ('h1probe', 0), ('cxfirst', 1), ('tlbw', 0), ('rotm', 1), ('ilv', 0), ('wki', 2), ('pf1_t', 5), ('allsh', 0), ('pf2_t', 10), ('nst', 9), ('st0', 4), ('stp', 3), ('vpf', 3), ('rth1', 128), ('rth2', 208), ('WVa', 2), ('WVb', 4), ('WVc', 8), ('trig', 0), ('trsh', 0), ('red_direct', 27), ('WDM', 20), ('k2_n', 8)):
        ap.add_argument('--' + p, type=int, default=d)
    ap.add_argument('--pre', default='V,V,V,V,V,V,V,V,W')
    ap.add_argument('--ntp', default='kv')
    ap.add_argument('--abl', default='')
    ap.add_argument('--outf', default='')
    args = ap.parse_args()
    kw = dict(vars(args)); o = kw.pop('o')
    open(o, 'w').write(G(**kw).build())
```

```python
import sys
from asmlib import *
import gen as G1mod
from gen import bitrev4, LOG2E, SPIN_LIMIT

WS_E = 0
WS_H1 = 0x1000
WS_Q = 0x8000
SB2 = 0x28000
WS_H2 = SB2; WS_X1 = SB2 + 0x3000; WS_HID = SB2 + 0x6000; WS_MODO = SB2 + 0xD000
WS_P = 0x50000
WS_F = 0xF0000
WS_STAMP = 0x100000
WS_SIZE = 0x200000
LW = 0; LM = 0x14000; L_OP = 0x15000; L_WP = 0x23000; LST = 0x16000; LDS_SIZE = 0x28000
C_A, C_SM, C_PV, C_WO, C_QOK, C_PROG, C_PROGW, C_GO, C_DONE, C_K2, C_ACT, C_PF, C_PF2, C_CX, C_VI = [4 * i for i in range(15)]
L_STAT = 0x40; L_SM = 0x100; L_RANK = 0x3c
L_ACT = L_WP; ACTS = 1344
R_G1, R_DOWN, R_FFN, R_Q, R_MOD, R_RED = 1, 2, 3, 4, 5, 6

def role_of(wg):
    x = wg & 7; u = wg >> 3
    if u < 2: return R_G1, 2 * x + u
    if u < 6:
        k = u - 2
        e = EXTRA.get((x, k >> 1))
        if e is None: return 0, 0
        return e[0], e[0] * 16 + 2 * e[1] + (k & 1)
    if u < 14: return R_Q, 8 * x + u - 6
    if u < 19: return R_MOD, 5 * x + u - 14
    if u < 25: return R_FFN, 6 * x + u - 19
    if u < 29: return R_DOWN, 4 * x + u - 25
    if u == 29: return R_RED, x
    return 0, 0
EXTRA = {(0, 0): (R_DOWN, 0), (0, 1): (R_DOWN, 1), (2, 0): (R_DOWN, 2), (2, 1): (R_DOWN, 3),
         (4, 0): (R_FFN, 0), (4, 1): (R_FFN, 1), (6, 0): (R_G1, 0), (6, 1): (R_FFN, 2), (1, 0): (R_G1, 1)}

class G(G1mod.G):
    def __init__(self, stamp=False, WK=3, WV=3, rot=3, rotw=1, qpos=25, prog_t=22, progw_t=-1, WD=4, wo_start=0, wo_per=1, sdelay=0, WK0=2, wk_sw=16, k2_t=6, WV2=6, wv_sw=16, hold=1, pf=1, WKL=6, wkl_sw=6, lagmask=0x72, diag_xcc=0, diag_role=-1, diag_until=0, diag_cls=-1, diag_idx=-1, ntp='kv', cpf=1, pfb=1, nMf=0, nMd=0, vi_t=29, nEf=8, nEd=6, late=1, pfl_t=8, light=0, psleep=0, outf='', abl='', nst=0, st0=5, stp=3, allsh=0, pf1_t=4, pf2_t=9, wki=2, pipe=0, cyc=0, bar=0, oadd=0, dry=0, mo=0, olp=0, smf=0, ddelay=0, setup_t=14, help2=0, gthr=0, ilv=0, rotm=1, tlbw=1, cxfirst=1, vpf=3, h1probe=1, lagv=0, rk=-1, rth1=128, rth2=208, WVa=2, WVb=4, WVc=8, hdelay=0, trig=0, trsh=0, red_direct=27, WDM=2, k2_n=8, pre='V,V,VV,VW,VWW,VWW,VVW,VWW,VVWW'):
        self.sdelay = sdelay; self.WK0 = WK0; self.wk_sw = wk_sw; self.k2_t = k2_t; self.WV2 = WV2; self.wv_sw = wv_sw; self.hold = hold; self.pf = pf; self.late = late; self.pfl_t = pfl_t; self.psleep = psleep; self.light = light; self.light_set = (0, 11, 5) if light == 1 else (0, 11); self.hdelay = hdelay; self.rk = rk; self.lagv = lagv; self.h1probe = h1probe; self.cxfirst = cxfirst; self.tlbw = tlbw; self.rotm = rotm; self.ilv = ilv; self.gthr = gthr; self.help2 = help2; self.setup_t = setup_t; self.ddelay = ddelay; self.smf = smf; self.olp = olp; self.mo = mo; self.dry = dry; self.oadd = oadd; self.bar = bar; self.cyc = cyc; self.pipe = pipe; self.wki = wki; self.pf1_t = pf1_t; self.allsh = allsh; self.pf2_t = pf2_t; self.nst = nst; self.st0 = st0; self.stp = stp; self.abl = abl; self.outf = outf.replace('_', ' '); self.vpf = vpf; self.rth1 = rth1; self.rth2 = rth2; self.WVa = WVa; self.WVb = WVb; self.WVc = WVc; self.trig = trig; self.trsh = trsh; self.red_direct = red_direct; self.pfb = pfb; self.cpf = cpf; self.ntp = ntp; self.cur_nt = 'nt'; self.diag_until = diag_until; self.diag_xcc = diag_xcc; self.diag_role = diag_role; self.diag_cls = diag_cls; self.diag_idx = diag_idx; self.cur_cls = -1; self.nEf = nEf; self.nMf = nMf; self.nMd = nMd; self.vi_t = vi_t; self.nEd = nEd; self.WKL = WKL; self.wkl_sw = wkl_sw; self.lagmask = lagmask; self.WDM = WDM; self.k2_n = k2_n; self.pre = pre.split(',')
        self.a = Asm(); self.stamp_on = stamp
        self.WK = WK; self.WV = WV; self.rot = rot; self.rotw = rotw; self.qpos = qpos; self.prog_t = prog_t
        self.progw_t = progw_t; self.WD = WD; self.wo_start = wo_start; self.wo_per = wo_per

    def stamp(self, i):
        if self.diag_until and i == self.diag_idx and (self.cur_cls == self.diag_cls or (self.cur_cls == 99 and self.diag_cls > 0)):
            if self.cur_cls == 99:
                L = self.a.label('L_ds')
                self.a(f's_cmp_lg_u32 s7, {self.diag_cls}\ns_cbranch_scc1 {L}\ns_memrealtime s[100:101]\ns_waitcnt lgkmcnt(0)\n{L}:')
            elif self.diag_role >= 0:
                L = self.a.label('L_ds')
                self.a(f's_cmp_lg_u32 s7, {self.diag_role}\ns_cbranch_scc1 {L}\ns_memrealtime s[100:101]\ns_waitcnt lgkmcnt(0)\n{L}:')
            else:
                self.a('s_memrealtime s[100:101]\ns_waitcnt lgkmcnt(0)')
        if self.light and i not in self.light_set: return
        super().stamp(i)

    def diag_end(self):
        if self.diag_until:
            L = self.a.label('L_diag')
            if self.diag_xcc:
                self.a('s_getreg_b32 s97, hwreg(HW_REG_XCC_ID)\ns_sub_u32 s97, s97, s2\ns_and_b32 s97, s97, 7')
                if self.diag_xcc == 2: self.a('s_sub_u32 s97, 7, s97')
                self.a('s_mul_i32 s97, s97, 400\ns_add_u32 s100, s100, s97')
            self.a(f'{L}:\ns_sleep 1\ns_memrealtime s[98:99]\ns_waitcnt lgkmcnt(0)\ns_sub_u32 s98, s98, s100\ns_cmp_lt_i32 s98, {self.diag_until*100}\ns_cbranch_scc1 {L}')

    def ln_stats1(self, U, T, s_m, s_rs, mid=None):
        a = self.a
        a(f'v_readlane_b32 s86, v{U}, 0')
        for i in range(5):
            a(f'v_pk_add_f32 v[{T+4}:{T+5}], v[{U+2*i}:{U+2*i+1}], s[86:87] op_sel_hi:[1,0] neg_lo:[0,1] neg_hi:[0,1]')
            if i == 0:
                a(f'v_pk_mul_f32 v[{T+2}:{T+3}], v[{T+4}:{T+5}], v[{T+4}:{T+5}]')
                a(f'v_add_f32 v{T}, v{T+4}, v{T+5}')
            else:
                a(f'v_pk_fma_f32 v[{T+2}:{T+3}], v[{T+4}:{T+5}], v[{T+4}:{T+5}], v[{T+2}:{T+3}]')
                a(f'v_add_f32 v{T+1}, v{T+4}, v{T+5}\nv_add_f32 v{T}, v{T}, v{T+1}')
        a(f'v_add_f32 v{T+1}, v{T+2}, v{T+3}')
        for m in ('row_ror:8 row_mask:0xf', 'row_ror:4 row_mask:0xf', 'row_ror:2 row_mask:0xf', 'row_ror:1 row_mask:0xf', 'row_bcast:15 row_mask:0xa', 'row_bcast:31 row_mask:0xc'):
            for v in (T, T + 1): a(f'v_add_f32_dpp v{v}, v{v}, v{v} {m} bank_mask:0xf')
        a(f'''
        v_mul_f32 v{T}, 0x3acccccd, v{T}
        v_mul_f32 v{T+1}, 0x3acccccd, v{T+1}
        v_fma_f32 v{T+1}, -v{T}, v{T}, v{T+1}
        v_add_f32 v{T}, s86, v{T}
        v_max_f32 v{T+1}, 0, v{T+1}
        v_cvt_pk_bf16_f32 v{T}, 0, v{T}
        v_cvt_pk_bf16_f32 v{T+1}, 0, v{T+1}
        v_readlane_b32 s{s_m}, v{T}, 63
        v_add_f32 v{T+1}, 0x3727c5ac, v{T+1}
        v_cvt_pk_bf16_f32 v{T+1}, 0, v{T+1}
        v_sqrt_f32 v{T+1}, v{T+1}
        v_cvt_pk_bf16_f32 v{T+1}, 0, v{T+1}
        v_rcp_f32 v{T+1}, v{T+1}
        s_nop 0
        v_readlane_b32 s{s_rs}, v{T+1}, 63
        ''')
        if mid: mid()

    def signal(self, cnt):
        self.a(f'''
        s_mov_b64 exec, 1
        v_mov_b32 v14, 1
        ds_add_u32 v13, v14 offset:{cnt}
        s_mov_b64 exec, -1
        ''')

    def arrive2(self, cnt, last, skip, reads):
        a = self.a
        a(f'''
        s_mov_b64 exec, 1
        v_mov_b32 v14, 1
        ds_add_rtn_u32 v14, v13, v14 offset:{cnt}
        s_mov_b64 exec, -1
        ''')
        for r in reads: a(r)
        a(f'''
        s_waitcnt lgkmcnt({min(len(reads), 15)})
        v_readfirstlane_b32 s88, v14
        s_cmp_lg_u32 s88, {last}
        s_cbranch_scc1 {skip}
        ''')

    def wait2(self, cnt, target, reads):
        a = self.a
        L = a.label('L_w2'); D = a.label('L_w2d'); R = a.label('L_w2r')
        a(f'ds_read_b32 v14, v13 offset:{cnt}')
        for r in reads: a(r)
        a(f'''
        s_mov_b32 s89, {SPIN_LIMIT * 16}
        s_waitcnt lgkmcnt({len(reads)})
        v_readfirstlane_b32 s88, v14
        s_cmp_ge_u32 s88, {target}
        s_cbranch_scc1 {D}
        {L}:
        ds_read_b32 v14, v13 offset:{cnt}
        s_sub_u32 s89, s89, 1
        s_cbranch_scc1 {R}
        s_waitcnt lgkmcnt(0)
        v_readfirstlane_b32 s88, v14
        s_cmp_lt_u32 s88, {target}
        s_cbranch_scc1 {L}
        {R}:
        ''')
        for r in reads: a(r)
        a(f'{D}:\ns_waitcnt lgkmcnt(0)')

    def rnd1(self, regs):
        for r in regs: self.a(f'v_cvt_pk_bf16_f32 v{r}, 0, v{r}')
    def round4(self, v, t):
        self.rnd1(range(v, v + 4))
    def bf1(self, v):
        self.rnd1([v])

    def tag_from(self, v):
        self.a(f'''
        v_readfirstlane_b32 s94, v{v}
        s_mul_i32 s94, s94, 1664525
        s_add_u32 s94, s94, 1013904223
        ''')

    def poll(self, name, loads, check, sleep, tagged=False, lanemask=False, pipe=0):
        a = self.a
        a(f's_mov_b32 s89, {SPIN_LIMIT}')
        if pipe:
            for l in loads: a(l)
            a(f's_sleep {pipe}')
        a(f'L_{name}_poll:')
        for l in loads: a(l)
        a(f's_waitcnt vmcnt({len(loads) if pipe else 0})')
        if tagged:
            for i in range(0, len(check), 2):
                a(f'v_xor_b32 v36, s94, v{check[i]}\nv_xor_b32 v37, s94, v{check[i+1]}')
                a('v_or_b32 v38, v36, v37' if i == 0 else 'v_or3_b32 v38, v38, v36, v37')
            a('v_cmp_ne_u32 vcc, 0, v38')
        else:
            c = list(check)
            if len(c) % 2 == 0:
                a(f'v_max_u32 v38, v{c[0]}, v{c[1]}'); c = c[2:]
            else:
                a(f'v_max3_u32 v38, v{c[0]}, v{c[1]}, v{c[2]}'); c = c[3:]
            for i in range(0, len(c), 2): a(f'v_max3_u32 v38, v38, v{c[i]}, v{c[i+1]}')
            a('v_cmp_eq_u32 vcc, -1, v38')
        a(f'''
        s_cbranch_vccz L_{name}_ok
        {"s_mov_b64 exec, vcc" if lanemask else ""}
        {"s_sleep %d" % sleep if sleep else ""}
        s_sub_u32 s89, s89, 1
        s_cbranch_scc0 L_{name}_poll
        L_{name}_ok:
        {"s_mov_b64 exec, -1" if lanemask else ""}
        ''')

    def prologue(self):
        a = self.a
        a(f'''
        s_load_dwordx16 s[16:31], s[0:1], 0
        {'s_memrealtime s[100:101]' if self.diag_until else ''}
        {'s_memrealtime s[98:99]' if self.stamp_on else ''}
        v_lshrrev_b32 v1, 6, v0
        s_getpc_b64 s[86:87]
        L_pc0:
        v_readfirstlane_b32 s3, v1
        v_lshlrev_b32 v3, 7, v0
        s_cmpk_ge_u32 s2, 256
        s_cbranch_scc1 L_end
        v_min_u32 v3, L_code_end-L_pc0-4, v3
        v_and_b32 v2, 63, v0
        {'global_load_dword v161, v3, s[86:87]' if self.cpf else ''}
        s_load_dwordx8 s[32:39], s[0:1], 64
        s_load_dwordx4 s[40:43], s[0:1], 96
        v_lshlrev_b32 v7, 4, v2          ; lane*16
        s_cmp_lt_u32 s3, 4
        s_cbranch_scc1 L_control
        ''')

    def common2(self):
        a = self.a
        a(f'''
        v_mov_b32 v13, {LM}
        s_mov_b32 s84, 0xffff0000
        v_mov_b32 v15, 0
        s_lshr_b32 s13, s2, 5            ; b
        s_and_b32 s14, s2, 31            ; h
        ''')

    def decode(self):
        a = self.a
        ext = 0
        for (x, kh), (r, idx) in EXTRA.items(): ext |= (r | idx << 2) << (4 * (2 * x + kh))
        a(f'''
        s_and_b32 s4, s2, 7              ; x
        s_lshr_b32 s5, s2, 3             ; u
        s_mov_b32 s7, 0
        s_mov_b32 s8, 0
        ''')
        for lo, hi, role, mul in ((0, 2, R_G1, 2), (6, 14, R_Q, 8), (14, 19, R_MOD, 5), (19, 25, R_FFN, 6), (25, 29, R_DOWN, 4), (29, 30, R_RED, 1)):
            a(f'''
            s_sub_u32 s9, s5, {lo}
            s_mul_i32 s10, s4, {mul}
            s_add_u32 s10, s10, s9
            s_cmp_lt_u32 s9, {hi-lo}
            s_cselect_b32 s7, {role}, s7
            s_cselect_b32 s8, s10, s8
            ''')
        a(f'''
        s_sub_u32 s9, s5, 2              ; extras
        s_lshr_b32 s10, s9, 1
        s_and_b32 s10, s10, 1
        s_lshl_b32 s11, s4, 1
        s_add_u32 s10, s10, s11
        s_lshl_b32 s10, s10, 2
        s_mov_b32 s86, {ext & 0xffffffff}
        s_mov_b32 s87, {ext >> 32}
        s_lshr_b64 s[86:87], s[86:87], s10
        s_and_b32 s10, s86, 3            ; role
        s_bfe_u32 s11, s86, 0x20002      ; idx
        s_lshl_b32 s11, s11, 1
        s_lshl_b32 s12, s10, 4
        s_add_u32 s11, s11, s12
        s_and_b32 s12, s9, 1
        s_add_u32 s11, s11, s12
        s_cmp_lt_u32 s9, 4
        s_cselect_b32 s7, s10, s7
        s_cselect_b32 s8, s11, s8
        s_sub_u32 s9, s5, 19
        s_cmp_lt_u32 s9, 10
        s_cselect_b32 s6, s9, 99
        s_sub_u32 s10, s5, 20
        s_cmp_ge_u32 s5, 30
        s_cselect_b32 s6, s10, s6
        s_sub_u32 s9, s5, 2
        s_add_u32 s10, s9, 12
        s_cmp_lt_u32 s9, 4
        s_cselect_b32 s6, s10, s6
        ''')

    def nt(self, c): return 'nt' if c in self.ntp else ''
    def pfld(self, v, srd, so): self.a(f'buffer_load_dword v160, v{v}, {srd}, {so} offen {self.cur_nt}')

    def prefetch(self):
        a = self.a
        self.cur_nt = self.nt('m')
        self.srd(64, 36, 640 * 7680)
        a(f'''
        s_mov_b32 s90, s6
        s_cmp_ge_u32 s90, 16
        s_cbranch_scc1 L_pf_done
        s_lshl_b32 s92, s4, 7
        s_cmp_lt_u32 s3, 2
        s_cbranch_scc1 L_pfA
        s_cmp_eq_u32 s4, 6
        s_cselect_b32 s92, 1024, 0
        s_cmp_eq_u32 s4, 1
        s_cselect_b32 s92, 1152, s92
        s_cmp_eq_u32 s92, 0
        s_cbranch_scc1 L_pf_done
        L_pfA:
        s_lshl_b32 s90, s90, 1
        s_and_b32 s91, s3, 1
        s_add_u32 s90, s90, s91
        s_mul_i32 s91, s90, {20*7680}
        s_add_u32 s92, s92, s91
        v_lshrrev_b32 v16, 1, v2
        v_min_u32 v16, 19, v16
        v_mul_u32_u24 v16, 7680, v16
        v_and_b32 v17, 1, v2
        v_mul_u32_u24 v17, 1280, v17
        v_add_u32 v16, v16, v17
        ''')
        self.pfld(16, 's[64:67]', 's92')
        a('L_pf_done:')

    def prefetch_b(self, sfx):
        a = self.a
        a(f'''
        {'s_cmp_ge_u32 s6, 16' if not self.allsh else 's_bitcmp1_b32 s3, 0'}
        s_cbranch_scc1 L_pb_done
        {'s_mul_i32 s90, s6, 40' if not self.allsh else 's_mul_i32 s90, s5, 20'}
        s_and_b32 s91, s3, 1
        s_mul_i32 s91, s91, 24
        s_add_u32 s90, s90, s91
        v_lshrrev_b32 v16, 3, v2
        v_and_b32 v17, 7, v2
        s_cmp_lt_u32 s3, 2
        s_cbranch_scc1 L_pb3
        ''')
        self.cur_nt = self.nt('q')
        self.srd(64, 22, 640 * 8192)
        a(f'''
        v_lshlrev_b32 v17, 7, v17
        v_lshl_add_u32 v18, v16, 13, v17
        s_lshl_b32 s91, s90, 13
        s_lshl_b32 s92, s4, 10
        s_add_u32 s92, s92, s91
        s_mov_b32 s91, {8*8192}
        s_branch L_pb4
        L_pb3:
        ''')
        self.srd(64, 36, 640 * 7680)
        a(f'''
        v_min_u32 v17, 4, v17
        v_lshlrev_b32 v17, 7, v17
        v_mul_u32_u24 v18, 7680, v16
        v_add_u32 v18, v18, v17
        s_mul_i32 s91, s90, 7680
        s_mul_i32 s92, s4, 640
        s_add_u32 s92, s92, 2560
        s_add_u32 s92, s92, s91
        s_mov_b32 s91, {8*7680}
        ''')
        if 'm' in self.abl: a('s_branch L_pb_done')
        self.lds_wait(C_PF, 1, sleep=2)
        a('L_pb4:')
        self.pfld(18, 's[64:67]', 's92'); a('s_add_u32 s92, s92, s91')
        self.pfld(18, 's[64:67]', 's92'); a('s_add_u32 s92, s92, s91')
        a('s_bitcmp1_b32 s3, 0\ns_cbranch_scc1 L_pb_done')
        self.pfld(18, 's[64:67]', 's92')
        a('L_pb_done:')

    def prefetch_late(self, sfx):
        a = self.a
        self.cur_nt = self.nt('f')
        a(f's_cmp_ge_u32 s6, 16\ns_cbranch_scc1 L_pl_done{sfx}')
        a(f's_cmp_lg_u32 s3, 0\ns_cbranch_scc1 L_pl1{sfx}')
        self.srd(68, 32, 1728 * 1280)
        a(f'''
        v_min_u32 v16, 53, v2
        v_mul_u32_u24 v16, 1280, v16
        s_mul_i32 s91, s6, {108*1280}
        s_lshl_b32 s92, s4, 7
        s_add_u32 s92, s92, s91
        s_lshl_b32 s93, s4, 6
        s_add_u32 s93, s93, 1024
        s_add_u32 s93, s93, s91
        ''')
        self.lds_wait(C_PROGW, 1, sleep=4)
        self.pfld(16, 's[68:71]', 's92')
        a(f's_add_u32 s92, s92, {54*1280}\ns_waitcnt vmcnt(0)')
        self.pfld(16, 's[68:71]', 's92')
        a(f'''
        s_and_b32 s92, s4, 5
        s_cmp_lg_u32 s92, 0
        s_cbranch_scc1 L_pl_done{sfx}
        s_waitcnt vmcnt(0)
        ''')
        self.pfld(16, 's[68:71]', 's93')
        a(f's_add_u32 s93, s93, {54*1280}\ns_waitcnt vmcnt(0)')
        self.pfld(16, 's[68:71]', 's93')
        a(f's_branch L_pl_done{sfx}\nL_pl1{sfx}:')
        self.srd(64, 28, 640 * 3456); self.srd(68, 30, 640 * 3456)
        a(f'''
        s_mul_i32 s92, s4, 3
        s_mov_b32 s91, s92
        s_mov_b32 s93, s92
        s_cmp_eq_u32 s4, 4
        s_cselect_b32 s91, 24, s91
        s_cselect_b32 s93, 25, s93
        s_cmp_eq_u32 s4, 6
        s_cselect_b32 s91, 26, s91
        v_and_b32 v17, 7, v2
        v_min_u32 v18, 2, v17
        v_add_u32 v18, s92, v18
        v_mov_b32 v19, s91
        v_cmp_eq_u32 vcc, 3, v17
        v_cndmask_b32 v18, v18, v19, vcc
        v_mov_b32 v19, s93
        v_cmp_eq_u32 vcc, 4, v17
        v_cndmask_b32 v18, v18, v19, vcc
        v_lshlrev_b32 v17, 7, v18
        v_lshrrev_b32 v16, 3, v2
        v_mul_u32_u24 v18, 3456, v16
        v_add_u32 v18, v18, v17
        s_mul_i32 s92, s6, 5
        s_add_u32 s92, s92, s3
        s_sub_u32 s92, s92, 1
        s_mul_i32 s92, s92, {8*3456}
        ''')
        self.lds_wait(C_PROGW, 1, sleep=4)
        self.pfld(18, 's[64:67]', 's92'); self.pfld(18, 's[68:71]', 's92')
        a(f's_cmp_eq_u32 s3, 3\ns_cbranch_scc1 L_pl_done{sfx}\ns_add_u32 s92, s92, {24*3456}\ns_waitcnt vmcnt(0)')
        self.pfld(18, 's[64:67]', 's92'); self.pfld(18, 's[68:71]', 's92')
        a(f'L_pl_done{sfx}:')

    def gwait(self):
        if not self.gthr: return
        a = self.a
        nm = a.label('gw')
        a(f'''
        v_min_u32 v20, {self.gthr - 1}, v2
        v_mul_u32_u24 v20, 37, v20
        s_add_u32 s57, s2, 37
        v_add_u32 v20, s57, v20
        v_and_b32 v20, 255, v20
        v_lshlrev_b32 v20, 7, v20
        s_mov_b32 s56, {WS_F}
        s_waitcnt vmcnt(0)
        ''')
        self.tag_from(167)
        self.poll(nm, ['buffer_load_dword v21, v20, s[44:47], s56 offen sc1'], [21, 21], 2, tagged=True, lanemask=True)

    def prefetch_late2(self):
        a = self.a
        self.cur_nt = self.nt('f')
        a(f'''
        s_sub_u32 s90, s5, 4
        s_cmp_lt_u32 s5, 2
        s_cselect_b32 s90, s5, s90       ; u<2 -> u ; u in [6,19) -> u-4 (2..14)
        s_cmp_eq_u32 s5, 30
        s_cselect_b32 s90, 15, s90
        s_cselect_b32 s91, 0, s6
        s_cmp_lt_u32 s91, 16
        s_cselect_b32 s91, 1, 0
        s_cmp_eq_u32 s5, 30
        s_cselect_b32 s91, 0, s91
        s_cmp_lg_u32 s91, 0
        s_cbranch_scc1 L_ctrl_fin
        s_cmp_eq_u32 s3, 0
        s_cbranch_scc1 L_ctrl_fin
        ''')
        self.srd(64, 28, 640 * 3456); self.srd(68, 30, 640 * 3456)
        a(f'''
        s_mul_i32 s92, s4, 3
        s_mov_b32 s91, s92
        s_mov_b32 s93, s92
        s_cmp_eq_u32 s4, 4
        s_cselect_b32 s91, 24, s91
        s_cselect_b32 s93, 25, s93
        s_cmp_eq_u32 s4, 6
        s_cselect_b32 s91, 26, s91
        v_and_b32 v17, 7, v2
        v_min_u32 v18, 2, v17
        v_add_u32 v18, s92, v18
        v_mov_b32 v19, s91
        v_cmp_eq_u32 vcc, 3, v17
        v_cndmask_b32 v18, v18, v19, vcc
        v_mov_b32 v19, s93
        v_cmp_eq_u32 vcc, 4, v17
        v_cndmask_b32 v18, v18, v19, vcc
        v_lshlrev_b32 v17, 7, v18
        v_lshrrev_b32 v16, 3, v2
        v_mul_u32_u24 v18, 3456, v16
        v_add_u32 v18, v18, v17
        s_lshr_b32 s92, s90, 2
        s_mul_i32 s92, s92, 160
        s_and_b32 s91, s90, 3
        s_mul_i32 s91, s91, 24
        s_add_u32 s92, s92, s91
        s_lshl_b32 s91, s3, 3
        s_add_u32 s92, s92, s91
        s_add_u32 s92, s92, 56           ; + 64 - 8
        s_mul_i32 s92, s92, 3456
        s_barrier
        {'s_barrier' if self.help2 == 1 else ''}
        ''')
        if self.help2 == 1: self.lds_wait(C_DONE, 5)
        self.gwait()
        self.pfld(18, 's[64:67]', 's92'); self.pfld(18, 's[68:71]', 's92')

    def dma640_setup(self, rot=False):
        a = self.a
        a(f'''
        v_lshrrev_b32 v16, 3, v2
        s_mul_i32 s85, s3, 160
        {'s_add_u32 s85, s85, s53' if rot else ''}
        v_add_u32 v16, s85, v16
        v_mul_lo_u32 v16, s52, v16
        v_and_b32 v17, 3, v2
        v_lshl_add_u32 v16, v17, 4, v16
        v_mov_b32 v17, 0
        v_mov_b32 v18, s48
        v_mov_b32 v19, s49
        v_mov_b32 v20, s50
        v_mov_b32 v21, s51
        v_and_b32 v22, 4, v2
        v_cmp_ne_u32 vcc, 0, v22
        v_cndmask_b32 v18, v18, v20, vcc
        v_cndmask_b32 v19, v19, v21, vcc
        v_lshl_add_u64 v[4:5], v[16:17], 0, v[18:19]
        s_lshl_b32 s54, s52, 3
        s_mov_b32 s55, 0
        ''')
    def dma640_issue(self, lo, hi, WD=99, rot=False):
        a = self.a
        for n in range(lo, hi):
            a(f's_add_u32 m0, s87, {LW + 1024*n}')
            if n >= WD: a(f's_waitcnt vmcnt({WD-1})')
            a(f'global_load_lds_dwordx4 v[4:5], off {self.cur_nt}')
            if n < 19: a(f'v_lshl_add_u64 v[4:5], v[4:5], 0, {"s[96:97]" if rot and n == 7 else "s[92:93]" if rot and n == 3 and self.help2 else "s[54:55]"}')
    def dma640(self, WD):
        self.dma640_setup(); self.dma640_issue(0, 20, WD)

    def wfrags640(self, younger=None):
        a = self.a
        for n in range(5):
            if younger is not None: a(f's_waitcnt vmcnt({younger + 4 * (4 - n)})')
            for T in range(4):
                b = 40 + 16 * n + 4 * T
                a(f'ds_read_b64_tr_b16 v[{b}:{b+1}], v9 offset:{LW + 4096*n + 32*T}')
                a(f'ds_read_b64_tr_b16 v[{b+2}:{b+3}], v9 offset:{LW + 4096*n + 32*T + 512}')
            a('s_waitcnt lgkmcnt(0)')

    def mfma640(self, skip, extra=()):
        a = self.a
        def mf(T, n):
            d = 16 + 4 * T; b = 40 + 16 * n + 4 * T
            a(f'v_mfma_f32_16x16x32_bf16 v[{d}:{d+3}], v[{b}:{b+3}], v[{120+4*n}:{123+4*n}], {"0" if n == 0 else "v[%d:%d]" % (d, d+3)}')
        def wr(T): a(f'ds_write_b128 v10, v[{16+4*T}:{19+4*T}] offset:{LW + 1024*T}')
        if self.mo == 0:
            for T in range(4):
                for n in range(5): mf(T, n)
                if T >= 2: wr(T - 2)
            wr(2); wr(3)
        elif self.mo == 1:
            for n in range(5):
                for T in range(4): mf(T, n)
            for T in range(4): wr(T)
        else:
            for n in range(5):
                for T in (0, 1): mf(T, n)
            for n in range(5):
                for T in (2, 3): mf(T, n)
                if n >= 3: wr(n - 3)
            wr(2); wr(3)
        reads = []
        for w in range(4):
            reads.append(f'ds_read_b128 v[{40+4*w}:{43+4*w}], v11 offset:{LW + 20480*w}')
            reads.append(f'ds_read_b128 v[{56+4*w}:{59+4*w}], v11 offset:{LW + 20480*w + 2048}')
        self.arrive2(C_A, 3, skip, reads + list(extra))

    def red640(self):
        self.a('s_waitcnt lgkmcnt(0)')
        self.sum_partials(40, [40, 44, 48, 52]); self.sum_partials(56, [56, 60, 64, 68])

    def silu(self, ns=range(5)):
        a = self.a
        a(f's_mov_b32 s85, {LOG2E | 0x80000000}')
        for n in ns:
            b = 120 + 4 * n
            for i in range(4): self.unpack(16 + 2 * i, b + i)
            for i in range(8): a(f'v_mul_f32 v{24+i}, s85, v{16+i}')
            for i in range(8): a(f'v_exp_f32 v{24+i}, v{24+i}')
            for i in range(8): a(f'v_add_f32 v{24+i}, 1.0, v{24+i}')
            for i in range(8): a(f'v_rcp_f32 v{24+i}, v{24+i}')
            for i in range(8): a(f'v_mul_f32 v{16+i}, v{16+i}, v{24+i}')
            for i in range(4): a(f'v_cvt_pk_bf16_f32 v{b+i}, v{16+2*i}, v{17+2*i}')

    def add64(self, d, base, off):
        self.a(f's_add_u32 s{d}, s{base}, {off}\ns_addc_u32 s{d+1}, s{base+1}, 0')

    def control(self):
        a = self.a
        CL = '; ' if 'c' in self.abl else ''
        a('L_control:\ns_setprio 3')
        self.common2()
        a('v_add_u32 v14, v7, v13\nv_mov_b32 v16, 0\nv_mov_b32 v17, 0\nv_mov_b32 v18, 0\nv_mov_b32 v19, 0\nds_write_b128 v14, v[16:19]')
        self.decode()
        a('s_waitcnt lgkmcnt(0)\ns_barrier')
        self.srd(44, 42, WS_SIZE)
        if self.stamp_on: a('v_writelane_b32 v15, s98, 13')
        self.cur_cls = -1
        self.stamp(0)
        self.cur_cls = 99
        if 'r' in self.abl: a('s_branch L_ctrl_fin')
        if self.tlbw:
            a(f'''
            s_cmp_lg_u32 s3, 3
            s_cbranch_scc1 L_notlb
            v_mov_b32 v3, 0
            s_lshl_b32 s85, s2, 2
            s_add_u32 s85, s85, 3
            s_lshl_b32 s85, s85, 18
            s_add_u32 s56, s20, s85
            s_addc_u32 s57, s21, 0
            s_mul_i32 s85, s14, 163840
            s_add_u32 s58, s24, s85
            s_addc_u32 s59, s25, 0
            v_mov_b32 v4, 163836
            s_mov_b64 exec, 1
            global_load_dword v162, v3, s[56:57]
            global_load_dword v162, v3, s[58:59]
            global_load_dword v162, v4, s[58:59]
            global_load_dword v162, v3, s[38:39]
            s_mov_b64 exec, -1
            L_notlb:
            ''')
        if self.pf: self.prefetch()
        if self.pfb:
            a(f's_cmp_eq_u32 s7, {R_G1}\ns_cbranch_scc1 L_pb_done')
            self.prefetch_b('')
        if self.dry:
            a(f'''
            s_cmp_lg_u32 s3, 1
            s_cbranch_scc1 L_dry_done
            s_cmp_eq_u32 s7, {R_G1}
            s_cbranch_scc1 L_dry_done
            v_mov_b32 v4, 0
            v_mov_b32 v5, 0
            v_mov_b32 v35, 0
            s_mov_b64 exec, 0
            s_branch L_tail_dry
            L_dry_ret:
            s_waitcnt lgkmcnt(0)
            s_mov_b64 exec, -1
            L_dry_done:
            ''')
        a(f'''
        v_mov_b32 v3, 0
        buffer_load_dword v167, v3, s[44:47], 0 offen sc1
        s_mul_i32 s87, s3, 20480
        v_lshrrev_b32 v16, 4, v2         ; s
        v_bfe_u32 v17, v2, 2, 2          ; r4
        v_and_b32 v18, 3, v2             ; c
        v_lshl_add_u32 v19, v16, 3, v17  ; 8s+r4
        v_lshlrev_b32 v9, 7, v19
        v_lshl_add_u32 v9, v18, 3, v9
        v_add_u32 v9, s87, v9
        v_add_u32 v10, s87, v7
        v_and_b32 v17, 7, v2             ; b
        v_bfe_u32 v18, v2, 3, 1          ; t
        v_lshlrev_b32 v11, 8, v16
        v_lshl_add_u32 v11, v17, 4, v11
        v_lshl_add_u32 v11, v18, 10, v11
        v_mul_u32_u24 v19, 1280, v17
        v_lshl_add_u32 v6, v16, 4, v19
        v_lshlrev_b32 v8, 5, v18
        v_lshl_add_u32 v8, v16, 3, v8    ; (16t+4s')*2 bytes
        v_lshlrev_b32 v12, 2, v2         ; lane*4
        s_cmp_eq_u32 s7, {R_Q}
        s_cbranch_scc1 L_role_q
        s_cmp_eq_u32 s7, 0
        s_cbranch_scc1 L_share
        s_cmp_eq_u32 s7, {R_FFN}
        s_cbranch_scc1 L_share
        s_cmp_eq_u32 s7, {R_DOWN}
        s_cbranch_scc1 L_share
        s_cmp_eq_u32 s7, {R_RED}
        s_cbranch_scc1 L_share
        ''')
        self.cur_nt = self.nt('m')
        a(f'''
        s_movk_i32 s52, 7680
        s_cmp_eq_u32 s7, {R_G1}
        s_cbranch_scc1 L_role_g1
        ''')
        if 'm' in self.abl or 'M' in self.abl: a('s_branch L_ctrl_fin')
        self.srd(56, 34, 10240)
        a('s_mul_i32 s85, s3, 320')
        for n in range(5):
            a(f'buffer_load_dwordx4 v[{120+4*n}:{123+4*n}], v6, s[56:59], s85 offen offset:{64*n}')
        a(f'''
        s_lshl_b32 s9, s8, 7
        s_add_u32 s9, s9, 2560
        s_add_u32 s48, s36, s9
        s_addc_u32 s49, s37, 0
        s_add_u32 s50, s48, 64
        s_addc_u32 s51, s49, 0
        s_waitcnt vmcnt(0)
        ''')
        self.silu()
        if self.pfb: self.lds_wait(C_PF2, 1, sleep=2)
        self.dma640(self.WDM)
        a('s_waitcnt vmcnt(0)')
        self.stamp(2)
        self.wfrags640()
        self.mfma640('L_ctrl_end')
        a(f'''
        v_and_b32 v22, 7, v2
        v_mul_u32_u24 v22, 5120, v22
        v_add_u32 v22, v22, v8
        s_lshl_b32 s90, s8, 7
        s_add_u32 s90, s90, {WS_MODO}
        ''')
        self.red640()
        self.pack4(24, 40); self.pack4(26, 56)
        self.sanitize([24, 25, 26, 27])
        self.lds_wait(C_QOK, 1, sleep=8)
        a(f'''
        buffer_store_dwordx2 v[24:25], v22, s[44:47], s90 offen sc1
        buffer_store_dwordx2 v[26:27], v22, s[44:47], s90 offen offset:64 sc1
        s_branch L_ctrl_end
        L_role_g1:
        s_lshl_b32 s9, s8, 6
        s_add_u32 s48, s36, s9
        s_addc_u32 s49, s37, 0
        s_add_u32 s50, s48, 1280
        s_addc_u32 s51, s49, 0
        v_add_u32 v34, v19, v8
        ''')
        self.dma640_setup()
        if self.cxfirst: self.lds_wait(C_CX, 8)
        self.stamp(6)
        self.dma640_issue(0, 20)
        self.srd(60, 16, 10240)
        a(f'''
        buffer_load_dwordx2 v[150:151], v34, s[60:63], s9 offen
        s_lshl_b32 s85, s8, 2
        s_add_u32 s85, s85, s3
        s_lshl_b32 s85, s85, 11
        s_add_u32 s85, s85, {SB2}
        v_mov_b32 v152, -1
        v_mov_b32 v153, -1
        v_mov_b32 v154, -1
        v_mov_b32 v155, -1
        {CL}buffer_store_dwordx4 v[152:155], v7, s[44:47], s85 offen sc1
        {CL}buffer_store_dwordx4 v[152:155], v7, s[44:47], s85 offen offset:1024 sc1
        v_and_b32 v16, 7, v2
        v_mul_u32_u24 v16, {ACTS}, v16
        v_lshrrev_b32 v17, 4, v2
        v_lshl_add_u32 v16, v17, 4, v16
        s_mul_i32 s85, s3, 320
        s_add_u32 s85, s85, {L_ACT}
        v_add_u32 v35, s85, v16
        ''')
        self.signal(C_GO)
        self.stamp(1)
        self.lds_wait(C_ACT, 8)
        for n in range(5): a(f'ds_read_b128 v[{120+4*n}:{123+4*n}], v35 offset:{64*n}')
        self.stamp(3)
        self.wfrags640(younger=3)
        self.tag_from(167)
        a('s_waitcnt vmcnt(0)')
        self.stamp(2)
        self.mfma640('L_ctrl_end')
        a(f'''
        v_and_b32 v22, 7, v2
        v_lshl_add_u32 v23, v22, 3, v13
        ds_read_b64 v[36:37], v23 offset:{L_STAT}
        ''')
        self.red640()
        self.pack4(24, 40); self.pack4(26, 56)
        self.unpack4(56, 26)
        a('v_pk_add_f32 v[56:57], v[56:57], 1.0 op_sel_hi:[1,0]\nv_pk_add_f32 v[58:59], v[58:59], 1.0 op_sel_hi:[1,0]')
        self.round4(56, 26)
        self.unpack4(40, 24)
        self.unpack4(44, 150)
        for i in range(4): a(f'v_sub_f32 v{44+i}, v{44+i}, v36')
        self.round4(44, 28)
        for i in range(4): a(f'v_mul_f32 v{44+i}, v{44+i}, v37')
        self.round4(44, 28)
        a('v_pk_mul_f32 v[44:45], v[44:45], v[56:57]\nv_pk_mul_f32 v[46:47], v[46:47], v[58:59]')
        self.round4(44, 28)
        a('v_pk_add_f32 v[44:45], v[44:45], v[40:41]\nv_pk_add_f32 v[46:47], v[46:47], v[42:43]')
        a(f'''
        v_cvt_pk_bf16_f32 v28, v44, v45
        v_cvt_pk_bf16_f32 v30, v46, v47
        v_mov_b32 v29, s94
        v_mov_b32 v31, s94
        v_lshlrev_b32 v22, 4, v22               ; b*16
        v_lshl_add_u32 v22, v8, 4, v22          ; + (16t+4s')*32 = t*512 + s'*128
        s_lshl_b32 s85, s8, 10
        s_add_u32 s85, s85, {WS_H1}
        buffer_store_dwordx4 v[28:31], v22, s[44:47], s85 offen sc1
        s_branch L_ctrl_end
        ''')
        self.cur_nt = self.nt('q')
        a(f'''
        L_role_q:
        {'s_branch L_ctrl_fin' if 'q' in self.abl else ''}
        s_lshl_b32 s9, s8, 7
        s_add_u32 s48, s22, s9
        s_addc_u32 s49, s23, 0
        s_add_u32 s50, s48, 64
        s_addc_u32 s51, s49, 0
        s_movk_i32 s52, 8192
        ''')
        if self.pfb: self.lds_wait(C_PF, 1, sleep=2)
        self.dma640(99)
        a(f'''
        s_and_b32 s85, s8, 1
        s_lshl_b32 s85, s85, 2
        s_add_u32 s85, s85, s3
        s_lshl_b32 s85, s85, 5
        s_lshr_b32 s86, s8, 1
        s_add_u32 s85, s85, s86
        s_mul_i32 s85, s85, 2560
        s_add_u32 s85, s85, {WS_P}
        v_mov_b32 v152, -1
        v_mov_b32 v153, -1
        v_mov_b32 v154, -1
        v_mov_b32 v155, -1
        v_lshlrev_b32 v19, 3, v2
        {CL}buffer_store_dwordx4 v[152:155], v7, s[44:47], s85 offen sc1
        {CL}buffer_store_dwordx4 v[152:155], v7, s[44:47], s85 offen offset:1024 sc1
        {CL}buffer_store_dwordx2 v[152:153], v19, s[44:47], s85 offen offset:2048 sc1
        ''')
        self.signal(C_GO)
        a('s_waitcnt vmcnt(0)')
        self.stamp(2)
        self.tag_from(167)
        self.wfrags640()
        a(f'''
        s_mul_i32 s90, s3, 5120
        s_add_u32 s90, s90, {WS_H1}
        s_add_u32 s91, s90, 4096
        ''')
        self.stamp(3)
        if self.h1probe:
            a('v_min_u32 v34, 4, v2\nv_lshlrev_b32 v34, 10, v34')
            self.poll('h1p', ['buffer_load_dword v35, v34, s[44:47], s90 offen offset:1020 sc1'], [35, 35], 2, tagged=True)
        loads = [f'buffer_load_dwordx4 v[{120+4*n}:{123+4*n}], v7, s[44:47], s{90 if n < 4 else 91} offen offset:{1024*(n%4)} sc1' for n in range(5)]
        self.poll('h1', loads, [121 + 2 * i for i in range(10)], 4, tagged=True)
        self.stamp(4)
        for n in range(5):
            b = 120 + 4 * n
            a(f'v_mov_b32_dpp v{b+3}, v{b+2} row_ror:8 row_mask:0xf bank_mask:0xf')
            a(f'v_mov_b32 v{b+1}, v{b+2}')
            a(f'v_mov_b32_dpp v{b+2}, v{b} row_ror:8 row_mask:0xf bank_mask:0xf')
        self.mfma640('L_ctrl_end')
        a(f'''
        v_and_b32 v22, 7, v2
        v_lshlrev_b32 v22, 14, v22              ; b*32*512
        v_lshl_add_u32 v22, v8, 1, v22          ; + col*4
        s_lshl_b32 s85, s8, 8                   ; h*512 + half*256
        s_add_u32 s85, s85, {WS_Q}
        v_mov_b32 v29, s94
        v_mov_b32 v31, s94
        v_mov_b32 v33, s94
        v_mov_b32 v35, s94
        ''')
        self.red640()
        a(f'''
        v_cvt_pk_bf16_f32 v28, v40, v41
        v_cvt_pk_bf16_f32 v30, v42, v43
        v_cvt_pk_bf16_f32 v32, v56, v57
        v_cvt_pk_bf16_f32 v34, v58, v59
        buffer_store_dwordx4 v[28:31], v22, s[44:47], s85 offen sc1
        buffer_store_dwordx4 v[32:35], v22, s[44:47], s85 offen offset:128 sc1
        s_branch L_ctrl_end
        ''')
        self.cur_nt = self.nt('f')
        a(f'''
        L_role_ffn:
        s_lshl_b32 s9, s8, 6
        s_add_u32 s48, s28, s9
        s_addc_u32 s49, s29, 0
        s_add_u32 s50, s30, s9
        s_addc_u32 s51, s31, 0
        s_movk_i32 s52, 3456
        ''')
        if self.help2:
            a(f'''
            s_movk_i32 s96, {8*3456}
            s_mov_b32 s92, s96
            s_mov_b32 s93, 0
            s_bitcmp1_b32 s8, 0
            s_cselect_b32 s53, 32, 0
            s_cselect_b32 s92, {(-56*3456) & 0xffffffff}, s92
            s_cselect_b32 s93, -1, 0
            s_cselect_b32 s96, {40*3456}, s96
            s_mov_b32 s97, 0
            s_cselect_b32 s98, 64, 0
            s_cselect_b32 s99, -64, 0
            ''')
        else:
            a(f'''
            s_bitcmp1_b32 s8, 0
            {'' if self.rotm else 's_cmp_eq_u32 s8, 999'}
            s_cselect_b32 s53, 96, 0
            s_cselect_b32 s96, {(-152*3456) & 0xffffffff}, 0
            s_cselect_b32 s97, -1, 0
            s_cselect_b32 s98, 192, 0
            s_cselect_b32 s99, -128, 0
            s_cbranch_scc1 L_ffn_r
            s_movk_i32 s96, {8*3456}
            L_ffn_r:
            ''')
        self.dma640_setup(rot=True)
        self.dma640_issue(0, self.nEf, 1, rot=True)
        if self.nMf:
            self.lds_wait(C_VI, 8, sleep=2)
            self.dma640_issue(self.nEf, self.nEf + self.nMf, rot=True)
        if self.bar: a('s_barrier\ns_barrier')
        self.lds_wait(C_DONE, 5, sleep=0 if self.bar else 2)
        self.gwait()
        self.dma640_issue(self.nEf + self.nMf, 20, rot=True)
        self.wfrags640(younger=0)
        self.stamp(2)
        a(f'''
        s_mul_i32 s90, s3, 320
        s_add_u32 s90, s90, {WS_H2}
        v_lshrrev_b32 v33, 3, v2                ; row
        v_and_b32 v35, 7, v2                    ; piece
        v_mul_u32_u24 v6, 1280, v33
        v_and_b32 v34, 3, v35
        v_lshl_add_u32 v34, v34, 4, v6
        v_lshl_add_u32 v6, v35, 4, v6
        v_mul_u32_u24 v3, 400, v33
        v_lshl_add_u32 v3, v35, 4, v3
        s_add_u32 s85, s87, {LW + 8192}
        v_add_u32 v3, s85, v3
        v_mul_u32_u24 v4, 400, v35
        v_lshrrev_b32 v33, 4, v2
        v_lshl_add_u32 v4, v33, 4, v4
        v_add_u32 v4, s85, v4
        v_mov_b32 v12, v4
        v_add_u32 v5, s99, v4
        v_add_u32 v4, s98, v4
        v_and_b32 v32, 7, v2
        v_lshlrev_b32 v32, 4, v32
        v_bfe_u32 v33, v2, 3, 1
        v_lshl_add_u32 v32, v33, 8, v32
        v_bfe_u32 v33, v2, 5, 1
        v_lshl_add_u32 v32, v33, 7, v32
        s_lshl_b32 s91, s8, 9
        s_add_u32 s91, s91, {WS_HID}
        ''')
        a('s_waitcnt lgkmcnt(0)')
        self.stamp(3)
        loads = ['buffer_load_dwordx4 v[140:143], v6, s[44:47], s90 offen sc1',
                 'buffer_load_dwordx4 v[144:147], v6, s[44:47], s90 offen offset:128 sc1',
                 'buffer_load_dwordx4 v[148:151], v34, s[44:47], s90 offen offset:256 sc1']
        self.poll('h2', loads, list(range(140, 152)), self.psleep, lanemask=True, pipe=self.pipe)
        self.stamp(4)
        for n in range(3): a(f'ds_write_b128 v3, v[{140+4*n}:{143+4*n}] offset:{128*n}')
        for n in range(5): a(f'ds_read_b128 v[{120+4*n}:{123+4*n}], v{([4, 5, 12, 12, 12] if self.help2 else [4, 4, 5, 5, 5])[n]} offset:{64*n}')
        a('s_waitcnt lgkmcnt(0)')
        self.mfma640('L_ctrl_end')
        self.red640()
        self.round4(40, 28); self.round4(56, 30)
        for i in range(4):
            a(f'v_cmp_lt_f32 vcc, 0, v{40+i}\nv_cndmask_b32 v{20+i}, 0, 1.0, vcc')
        a('v_pk_mul_f32 v[40:41], v[40:41], v[20:21]\nv_pk_mul_f32 v[42:43], v[42:43], v[22:23]')
        a('v_pk_mul_f32 v[40:41], v[40:41], v[56:57]\nv_pk_mul_f32 v[42:43], v[42:43], v[58:59]')
        self.pack4(28, 40); self.sanitize([28, 29])
        a(f'''
        v_mov_b32 v30, v28
        v_mov_b32 v31, v29
        v_permlane16_swap_b32 v28, v30
        v_permlane16_swap_b32 v29, v31
        s_mov_b32 exec_lo, 0xffff
        s_mov_b32 exec_hi, 0xffff
        buffer_store_dwordx4 v[28:31], v32, s[44:47], s91 offen sc1
        s_mov_b64 exec, -1
        ''')
        if self.stamp_on and not self.light:
            self.stamp(7); a('s_waitcnt vmcnt(0)'); self.stamp(8)
        a('s_branch L_ctrl_end')
        a('L_role_down:')
        self.srd(72, 32, 1728 * 1280); self.srd(80, 38, 10240)
        a(f'''
        s_add_u32 s76, s42, {WS_HID}
        s_addc_u32 s77, s43, 0
        s_mov_b32 s78, {27*1024}
        s_mov_b32 s79, 0x20000
        v_lshrrev_b32 v16, 1, v2
        v_mul_u32_u24 v4, 1280, v16
        v_and_b32 v16, 1, v2
        v_lshl_add_u32 v4, v16, 4, v4
        s_mul_i32 s85, s3, {7*64*1280}
        s_lshl_b32 s9, s8, 5
        s_add_u32 s85, s85, s9
        s_mul_i32 s87, s3, 14336
        ''')
        a(f's_and_b32 s48, s8, {3 if self.rotm else 0}\ns_lshl_b32 s48, s48, 11')
        for n in range(1, 7):
            a(f's_add_u32 s{48+n}, s{47+n}, 1024\ns_cmp_ge_u32 s{48+n}, 7168\ns_cselect_b32 s{48+n}, 0, s{48+n}')
        a('v_mov_b32 v16, 0\nbuffer_load_dword v162, v16, s[80:83], 0 offen')
        for n in range(14):
            if n == self.nEd and self.nMd: self.lds_wait(C_VI, 8, sleep=2)
            if n == self.nEd + self.nMd:
                if self.bar: a('s_barrier\ns_barrier')
                self.lds_wait(C_DONE, 5, sleep=0 if self.bar else 2)
                self.gwait()
                if self.ddelay: a(f's_sleep {self.ddelay}')
            if n % 2 == 0: a(f's_mul_i32 s55, s{48+n//2}, 80\ns_add_u32 s55, s55, s85')
            else: a(f's_add_u32 s55, s55, {32*1280}')
            a(f's_add_u32 m0, s87, {LW + 1024*n}')
            if n < self.nEd: a(f's_waitcnt vmcnt(0)')
            a(f'buffer_load_dwordx4 v4, s[72:75], s55 offen {self.nt("f")} lds')
        a(f'''
        v_lshrrev_b32 v16, 4, v2         ; s
        v_bfe_u32 v17, v2, 2, 2          ; r4
        v_lshl_add_u32 v19, v16, 3, v17
        v_lshlrev_b32 v9, 5, v19
        v_bfe_u32 v17, v2, 1, 1
        v_lshl_add_u32 v9, v17, 10, v9
        v_and_b32 v17, 1, v2
        v_lshl_add_u32 v9, v17, 3, v9
        v_add_u32 v9, s87, v9
        v_add_u32 v10, s87, v7
        v_and_b32 v17, 7, v2             ; b
        v_bfe_u32 v18, v2, 3, 1          ; a / half
        v_lshlrev_b32 v3, 7, v16
        v_lshl_add_u32 v3, v17, 4, v3
        v_lshl_add_u32 v3, v18, 9, v3
        s_mul_i32 s86, s3, 7168
        v_add_u32 v3, s86, v3
        v_and_b32 v16, 1, v16            ; s'
        v_lshlrev_b32 v11, 8, v16
        v_lshl_add_u32 v11, v17, 4, v11
        v_lshl_add_u32 v11, v18, 10, v11
        v_lshlrev_b32 v8, 4, v18
        v_lshl_add_u32 v8, v16, 3, v8    ; (8a+4s')*2
        v_mul_u32_u24 v5, 5120, v17
        v_add_u32 v5, v5, v8
        v_mul_u32_u24 v6, 1280, v17
        v_add_u32 v6, v6, v8
        s_add_u32 s90, s9, {WS_MODO + 3840}
        s_add_u32 s91, s9, {WS_X1}
        s_movk_i32 s92, 4096
        ''')
        for n in range(7):
            a(f's_waitcnt vmcnt({12 - 2*n})')
            for ac in range(2):
                b = 40 + 8 * n + 4 * ac
                a(f'ds_read_b64_tr_b16 v[{b}:{b+1}], v9 offset:{LW + 2048*n + 16*ac}')
                a(f'ds_read_b64_tr_b16 v[{b+2}:{b+3}], v9 offset:{LW + 2048*n + 16*ac + 128}')
            if n % 2: a('s_waitcnt lgkmcnt(0)')
        self.stamp(2)
        self.tag_from(167)
        a('s_waitcnt lgkmcnt(0)')
        self.poll('gb', ['buffer_load_dwordx2 v[32:33], v5, s[44:47], s90 offen sc1'], [32, 33], 4)
        self.unpack4(140, 32)
        self.stamp(3)
        self.poll('x1', ['buffer_load_dwordx2 v[32:33], v6, s[44:47], s91 offen sc1'], [32, 33], 1, lanemask=True)
        self.unpack4(144, 32)
        self.stamp(5)
        if self.hdelay: a(f's_sleep {self.hdelay}')
        for i in range(8): a(f'v_mov_b32 v{16+i}, 0')
        def hld(n): return f'buffer_load_dwordx4 v[{104+4*n}:{107+4*n}], v3, s[76:79], s{48+n} offen sc1'
        if self.trig:
            a(f'''
            s_mov_b32 s89, {SPIN_LIMIT}
            v_lshlrev_b32 v34, {9 + self.trsh}, v2
            v_add_u32 v34, s86, v34
            s_mov_b64 exec, {(1 << (12 >> self.trsh)) - 1}
            L_hd_trig:
            buffer_load_dword v35, v34, s[76:79], 0 offen offset:508 sc1
            s_sub_u32 s89, s89, 1
            s_cbranch_scc1 L_hd_go
            s_waitcnt vmcnt(0)
            v_cmp_ne_u32 vcc, -1, v35
            s_nop 1
            s_bcnt1_i32_b32 s85, vcc_lo
            s_cmp_lt_u32 s85, {self.trig}
            s_cbranch_scc1 L_hd_trig
            L_hd_go:
            s_mov_b64 exec, -1
            s_waitcnt vmcnt(0)
            ''')
            self.stamp(7)
        NH = 4 if 'h' in self.abl else 2 if 'H' in self.abl else 7
        a(f's_mov_b32 s90, {(1 << NH) - 1}\ns_mov_b32 s89, {SPIN_LIMIT}\nv_mov_b32 v34, 0')
        for n in range(NH): a(hld(n))
        a('L_hid_poll:')
        for n in range(NH):
            b = 104 + 4 * n
            a(f'''
            s_waitcnt vmcnt({NH-1})
            s_bitcmp1_b32 s90, {n}
            s_cbranch_scc0 L_hd_dm{n}
            v_max3_u32 v36, v{b}, v{b+1}, v{b+2}
            v_max_u32 v36, v36, v{b+3}
            v_cmp_eq_u32 vcc, -1, v36
            s_cbranch_vccz L_hd_ok{n}
            {hld(n)}
            s_branch L_hd_nx{n}
            L_hd_ok{n}:
            v_mfma_f32_16x16x32_bf16 v[16:19], v[{40+8*n}:{43+8*n}], v[{b}:{b+3}], v[16:19]
            v_mfma_f32_16x16x32_bf16 v[20:23], v[{44+8*n}:{47+8*n}], v[{b}:{b+3}], v[20:23]
            s_bitset0_b32 s90, {n}
            s_cmp_eq_u32 s90, 0
            s_cbranch_scc1 L_hid_ok
            L_hd_dm{n}:
            buffer_load_dword v35, v34, s[76:79], 0 offen
            L_hd_nx{n}:
            ''')
        a(f'''
        s_sub_u32 s89, s89, 1
        s_cbranch_scc0 L_hid_poll
        L_hid_ok:
        s_nop 7
        ''')
        self.stamp(4)
        if self.stamp_on and not self.light: a(f's_sub_u32 s96, {SPIN_LIMIT}, s89\nv_writelane_b32 v15, s96, 12')
        a(f'ds_write_b128 v10, v[16:19] offset:{LW}\nds_write_b128 v10, v[20:23] offset:{LW + 1024}')
        reads = []
        for w in range(4):
            reads.append(f'ds_read_b128 v[{40+8*w}:{43+8*w}], v11 offset:{LW + 14336*w}')
            reads.append(f'ds_read_b128 v[{44+8*w}:{47+8*w}], v11 offset:{LW + 14336*w + 640}')
        self.arrive2(C_A, 3, 'L_ctrl_end', reads)
        a('s_waitcnt lgkmcnt(0)')
        self.sum_partials(40, [40 + 4 * i for i in range(8)])
        self.round4(40, 28)
        a('v_pk_mul_f32 v[40:41], v[40:41], v[140:141]\nv_pk_mul_f32 v[42:43], v[42:43], v[142:143]')
        self.round4(40, 28)
        a('v_pk_add_f32 v[40:41], v[40:41], v[144:145]\nv_pk_add_f32 v[42:43], v[42:43], v[146:147]')
        self.pack4(28, 40)
        a(f'''
        s_mov_b32 exec_hi, 0
        buffer_store_dwordx2 v[28:29], v6, s[80:83], s9 offen {self.outf}
        s_cmp_lg_u32 s8, 0
        s_cbranch_scc1 L_noepoch
        s_mov_b64 exec, 1
        v_mov_b32 v20, 0
        v_mov_b32 v21, s94
        buffer_store_dword v21, v20, s[44:47], 0 offen sc1
        L_noepoch:
        s_mov_b64 exec, -1
        s_branch L_ctrl_end
        ''')
        a('L_role_red:')
        self.srd(60, 16, 10240)
        a(f'''
        v_lshlrev_b32 v8, 3, v2          ; lane*8
        s_mul_i32 s9, s8, 1280
        buffer_load_dwordx2 v[26:27], v8, s[60:63], s9 offen
        buffer_load_dwordx2 v[28:29], v8, s[60:63], s9 offen offset:512
        buffer_load_dword v30, v12, s[60:63], s9 offen offset:1024
        s_lshl_b32 s90, s8, 14
        s_lshl_b32 s85, s3, 12
        s_add_u32 s90, s90, s85
        s_add_u32 s90, s90, {WS_Q}
        s_waitcnt vmcnt(0)
        ''')
        self.tag_from(167)
        for i in range(5): self.unpack(120 + 2 * i, 26 + i)
        self.lds_wait(C_QOK, 1, sleep=8)
        loads = [f'buffer_load_dwordx4 v[{40+4*n}:{43+4*n}], v7, s[44:47], s90 offen offset:{1024*n} sc1' for n in range(4)]
        self.poll('qall', loads, [41 + 2 * i for i in range(8)], 8, tagged=True)
        a(f'''
        s_mul_i32 s90, s8, 5120
        s_add_u32 s90, s90, {WS_MODO}
        ''')
        loads = []
        for ch in range(3):
            b = 40 + 6 * ch
            loads += [f'buffer_load_dwordx2 v[{b}:{b+1}], v8, s[44:47], s90 offen offset:{1280*ch} sc1',
                      f'buffer_load_dwordx2 v[{b+2}:{b+3}], v8, s[44:47], s90 offen offset:{1280*ch + 512} sc1',
                      f'buffer_load_dword v{b+4}, v12, s[44:47], s90 offen offset:{1280*ch + 1024} sc1']
        self.poll('modo', loads, [40 + 6 * ch + i for ch in range(3) for i in range(5)], 8)
        for ch in range(3):
            for i in range(5): self.unpack(130 + 10 * ch + 2 * i, 40 + 6 * ch + i)
        for i in range(5):
            a(f'v_pk_add_f32 v[{150+2*i}:{151+2*i}], v[{150+2*i}:{151+2*i}], 1.0 op_sel_hi:[1,0]')
            a(f'v_cvt_pk_bf16_f32 v26, v{150+2*i}, v{151+2*i}')
            self.unpack(150 + 2 * i, 26)
        for i in range(10): a(f'v_mov_b32 v{16+i}, 0')
        a(f'''
        s_lshl_b32 s91, s8, 5
        s_lshl_b32 s85, s3, 3
        s_add_u32 s91, s91, s85
        s_mul_i32 s91, s91, 2560
        s_add_u32 s91, s91, {WS_P}
        s_mul_i32 s87, s3, 2560
        v_add_u32 v10, s87, v7
        v_add_u32 v11, s87, v8
        s_add_u32 s92, s9, {WS_H2}
        s_add_u32 s93, s9, {WS_X1}
        ''')
        self.stamp(2)
        self.lds_wait(C_PROG, 1, sleep=8)
        self.stamp(3)
        a(f'''
        s_mov_b32 s90, 0xff
        s_mov_b32 s89, {SPIN_LIMIT}
        v_and_b32 v34, 7, v2
        v_mul_u32_u24 v34, 2560, v34
        s_mov_b32 s86, 0
        L_p_poll:
        s_mov_b32 s95, s90
        s_cmp_lg_u32 s86, 0
        s_cbranch_scc1 L_p_fetch
        ds_read_b32 v14, v13 offset:{C_K2}
        s_waitcnt lgkmcnt(0)
        v_readfirstlane_b32 s88, v14
        s_cmp_ge_u32 s88, 8
        s_cselect_b32 s86, 1, 0
        s_cbranch_scc1 L_p_fetch
        s_sleep 4
        buffer_load_dword v35, v34, s[44:47], s91 offen offset:2556 sc1
        s_waitcnt vmcnt(0)
        v_cmp_ne_u32 vcc, -1, v35
        s_nop 1
        s_and_b32 s95, s90, vcc_lo
        s_cbranch_scc0 L_p_next
        L_p_fetch:
        s_bcnt1_i32_b32 s85, s90
        s_and_b32 s85, s85, s86
        s_bcnt1_i32_b32 s88, s90
        s_cmp_eq_u32 s88, s85
        s_cbranch_scc1 L_p_one
        ''')
        for g in range(8):
            b = 40 + 10 * g
            a(f'''
            s_bitcmp1_b32 s95, {g}
            s_cbranch_scc0 L_p_sk{g}
            s_add_u32 s85, s91, {2560*g}
            buffer_load_dwordx4 v[{b}:{b+3}], v7, s[44:47], s85 offen sc1
            buffer_load_dwordx4 v[{b+4}:{b+7}], v7, s[44:47], s85 offen offset:1024 sc1
            buffer_load_dwordx2 v[{b+8}:{b+9}], v8, s[44:47], s85 offen offset:2048 sc1
            L_p_sk{g}:
            ''')
        a('s_waitcnt vmcnt(0)')
        for g in range(8):
            b = 40 + 10 * g
            a(f'''
            s_bitcmp1_b32 s95, {g}
            s_cbranch_scc0 L_p_ck{g}
            v_max3_u32 v36, v{b}, v{b+1}, v{b+2}
            v_max3_u32 v37, v{b+3}, v{b+4}, v{b+5}
            v_max3_u32 v36, v36, v{b+6}, v{b+7}
            v_max3_u32 v37, v37, v{b+8}, v{b+9}
            v_max_u32 v36, v36, v37
            v_cmp_eq_u32 vcc, -1, v36
            s_cbranch_vccnz L_p_ck{g}
            s_bitset0_b32 s90, {g}
            ''')
            for i in range(5): a(f'v_pk_add_f32 v[{16+2*i}:{17+2*i}], v[{16+2*i}:{17+2*i}], v[{b+2*i}:{b+2*i+1}]')
            a(f'L_p_ck{g}:')
        a(f'''
        s_cmp_eq_u32 s90, 0
        s_cbranch_scc1 L_p_ok
        L_p_next:
        s_sub_u32 s89, s89, 1
        s_cbranch_scc0 L_p_poll
        s_branch L_p_ok
        L_p_one:
        s_ff1_i32_b32 s85, s90
        s_mul_i32 s85, s85, 2560
        s_add_u32 s85, s85, s91
        ''')
        one = ['buffer_load_dwordx4 v[110:113], v7, s[44:47], s85 offen sc1', 'buffer_load_dwordx4 v[114:117], v7, s[44:47], s85 offen offset:1024 sc1', 'buffer_load_dwordx2 v[118:119], v8, s[44:47], s85 offen offset:2048 sc1']
        if self.pipe:
            for l in one: a(l)
            a(f's_sleep {self.pipe}')
        a('L_p_one_l:')
        for l in one: a(l)
        a(f'''
        s_sub_u32 s89, s89, 1
        s_cbranch_scc1 L_p_ok
        s_waitcnt vmcnt({3 if self.pipe else 0})
        v_max3_u32 v36, v110, v111, v112
        v_max3_u32 v37, v113, v114, v115
        v_max3_u32 v36, v36, v116, v117
        v_max3_u32 v37, v37, v118, v119
        v_max_u32 v36, v36, v37
        v_cmp_eq_u32 vcc, -1, v36
        s_cbranch_vccnz L_p_one_l
        v_pk_add_f32 v[16:17], v[16:17], v[110:111]
        v_pk_add_f32 v[18:19], v[18:19], v[112:113]
        v_pk_add_f32 v[20:21], v[20:21], v[114:115]
        v_pk_add_f32 v[22:23], v[22:23], v[116:117]
        v_pk_add_f32 v[24:25], v[24:25], v[118:119]
        L_p_ok:
        ''')
        self.stamp(4)
        a(f'''
        ds_write_b128 v10, v[16:19] offset:{LW}
        ds_write_b128 v10, v[20:23] offset:{LW + 1024}
        ds_write_b64 v11, v[24:25] offset:{LW + 2048}
        ''')
        reads = []
        for w in range(4):
            b = 40 + 10 * w
            reads.append(f'ds_read_b128 v[{b}:{b+3}], v7 offset:{LW + 2560*w}')
            reads.append(f'ds_read_b128 v[{b+4}:{b+7}], v7 offset:{LW + 2560*w + 1024}')
            reads.append(f'ds_read_b64 v[{b+8}:{b+9}], v8 offset:{LW + 2560*w + 2048}')
        self.arrive2(C_A, 3, 'L_ctrl_end', reads)
        a('s_waitcnt lgkmcnt(0)')
        U = 40
        def P(r, i): return f'v[{r+2*i}:{r+2*i+1}]'
        for i in range(5): a(f'v_pk_add_f32 {P(40,i)}, {P(40,i)}, {P(50,i)}')
        for i in range(5): a(f'v_pk_add_f32 {P(60,i)}, {P(60,i)}, {P(70,i)}')
        for i in range(5): a(f'v_pk_add_f32 {P(40,i)}, {P(40,i)}, {P(60,i)}')
        def pk():
            for i in range(5): a(f'v_cvt_pk_bf16_f32 v{26+i}, v{U+2*i}, v{U+2*i+1}')
        def rnd(): self.rnd1(range(U, U + 10))
        rnd()
        for i in range(5): a(f'v_pk_mul_f32 {P(U,i)}, {P(U,i)}, {P(130,i)}')
        rnd()
        for i in range(5): a(f'v_pk_add_f32 {P(U,i)}, {P(U,i)}, {P(120,i)}')
        rnd()
        def mid():
            for i in range(5): a(f'v_cvt_pk_bf16_f32 v{160+i}, v{U+2*i}, v{U+2*i+1}')
            for i in range(5): a(f'v_pk_add_f32 {P(U,i)}, {P(U,i)}, s[96:97] op_sel_hi:[1,0] neg_lo:[0,1] neg_hi:[0,1]')
            rnd()
        self.ln_stats1(U, 32, 96, 98, mid)
        for i in range(5): a(f'v_pk_mul_f32 {P(U,i)}, {P(U,i)}, s[98:99] op_sel_hi:[1,0]')
        rnd()
        for i in range(5): a(f'v_pk_mul_f32 {P(U,i)}, {P(U,i)}, {P(150,i)}')
        rnd()
        for i in range(5): a(f'v_pk_add_f32 {P(U,i)}, {P(U,i)}, {P(140,i)}')
        pk()
        self.sanitize(range(26, 31))
        a(f'''
        buffer_store_dwordx2 v[26:27], v8, s[44:47], s92 offen sc1
        buffer_store_dwordx2 v[28:29], v8, s[44:47], s92 offen offset:512 sc1
        buffer_store_dword v30, v12, s[44:47], s92 offen offset:1024 sc1
        ''')
        self.sanitize(range(160, 165))
        a(f'''
        buffer_store_dwordx2 v[160:161], v8, s[44:47], s93 offen sc1
        buffer_store_dwordx2 v[162:163], v8, s[44:47], s93 offen offset:512 sc1
        buffer_store_dword v164, v12, s[44:47], s93 offen offset:1024 sc1
        L_ctrl_end:
        ''')
        self.stamp(11)
        a(f's_cmp_eq_u32 s7, {R_DOWN}\ns_cbranch_scc1 L_ctrl_fin\ns_cmp_eq_u32 s7, {R_FFN}\ns_cbranch_scc1 L_ctrl_fin\ns_cmp_eq_u32 s7, {R_RED}\ns_cbranch_scc1 L_ctrl_fin')
        a('L_share:')
        if 't' in self.abl: a('s_branch L_ctrl_fin')
        if self.late: self.prefetch_late('e')
        a(f's_cmp_eq_u32 s7, {R_DOWN}\ns_cbranch_scc1 L_role_down\ns_cmp_eq_u32 s7, {R_FFN}\ns_cbranch_scc1 L_role_ffn\ns_cmp_eq_u32 s7, {R_RED}\ns_cbranch_scc1 L_role_red')
        if self.help2:
            assert self.bar
            self.prefetch_late2()
        a('L_ctrl_fin:')
        self.stamp_flush()
        self.diag_end()
        a('s_endpgm')

    def stream(self):
        a = self.a
        self.tail_code = []
        self.cur_cls = 0
        WK, WV = self.WK, self.WV
        NV = 12
        def wmap(n):
            if self.smf: return 2 * (n // 10) + (n & 1), (n % 10) // 2
            return n // 5, n % 5
        KV = lambda t: 40 + 4 * t
        assert self.rotw == 1 and self.WK0 >= 2
        a(f'''
        s_sub_u32 s15, s3, 4             ; sw
        s_lshl_b32 s85, s15, {10 if self.ilv else 15}
        v_add_u32 v1, s85, v7
        s_mul_i32 s91, s2, {self.rot}
        {'' if self.ilv else 's_add_u32 s91, s91, s15'}
        s_and_b32 s91, s91, 31
        s_lshl_b32 s91, s91, {13 if self.ilv else 10}          ; rotation
        s_lshl_b32 s85, s2, 2
        s_add_u32 s85, s85, 3
        s_lshl_b32 s85, s85, 18
        s_mov_b32 s51, 0x20000
        s_lshl_b32 s50, s51, 1
        {'s_sub_u32 s90, s50, 1' if self.ilv else 's_movk_i32 s90, 0x7fff'}
        s_addk_i32 s91, {8192 if self.ilv else 1024}
        s_and_b32 s92, s91, s90
        s_addk_i32 s91, {-8192 if self.ilv else -1024}
        s_waitcnt lgkmcnt(0)
        s_add_u32 s48, s18, s85
        s_addc_u32 s49, s19, 0
        buffer_load_dwordx4 v[40:43], v1, s[48:51], s91 offen {self.nt('k')}
        buffer_load_dwordx4 v[44:47], v1, s[48:51], s92 offen {self.nt('k')}
        ''')
        for t in range(2, self.wki):
            a(f's_addk_i32 s92, {8192 if self.ilv else 1024}\ns_and_b32 s92, s92, s90\nbuffer_load_dwordx4 v[{40+4*t}:{43+4*t}], v1, s[48:51], s92 offen {self.nt("k")}')
        a(f'''
        s_add_u32 s52, s20, s85
        s_addc_u32 s53, s21, 0
        s_mov_b32 s54, 0x40000
        s_mov_b32 s55, 0x20000
        s_barrier
        ''')
        self.common2()
        self.srd(44, 42, WS_SIZE)
        if self.stamp_on: a('v_writelane_b32 v15, s98, 13')
        self.cur_cls = -1
        self.stamp(0)
        self.cur_cls = 0
        self.decode()
        for _ in range(self.sdelay): a('s_sleep 32')
        if self.hold > 1: a(f's_cmp_eq_u32 s7, {R_Q}\ns_cbranch_scc1 L_hold')
        if 'r' in self.abl: a('s_branch L_nohold')
        a(f's_cmp_lg_u32 s7, {R_G1}\ns_cbranch_scc1 L_nohold')
        self.srd(56, 34, 10240); self.srd(60, 16, 10240)
        a('s_mul_i32 s90, s15, 1280\nv_lshlrev_b32 v12, 2, v2')
        for n in range(5): a(f'buffer_load_dword v{80+n}, v12, s[56:59], s90 offen offset:{256*n}')
        for n in range(5): a(f'buffer_load_dword v{86+n}, v12, s[60:63], s90 offen offset:{256*n}')
        if self.cxfirst: self.signal(C_CX)
        a(f'''
        s_mul_i32 s90, s15, {ACTS}
        s_add_u32 s90, s90, {L_ACT}
        v_add_u32 v12, s90, v12
        s_mov_b32 s85, {LOG2E | 0x80000000}
        s_waitcnt vmcnt(5)
        ''')
        self.stamp(9)
        for i in range(5): self.unpack(100 + 2 * i, 80 + i)
        for i in range(10): a(f'v_mul_f32 v{112+i}, s85, v{100+i}')
        for i in range(10): a(f'v_exp_f32 v{112+i}, v{112+i}')
        for i in range(10): a(f'v_add_f32 v{112+i}, 1.0, v{112+i}')
        for i in range(10): a(f'v_rcp_f32 v{112+i}, v{112+i}')
        for i in range(10): a(f'v_mul_f32 v{100+i}, v{100+i}, v{112+i}')
        for i in range(5): a(f'v_cvt_pk_bf16_f32 v{80+i}, v{100+2*i}, v{101+2*i}')
        for i in range(5): a(f'ds_write_b32 v12, v{80+i} offset:{256*i}')
        a('s_waitcnt vmcnt(0)')
        self.ln_stats(86, 100, 112, 90, 92)
        a(f'''
        v_mov_b32 v28, s90
        v_mov_b32 v29, s92
        s_lshl_b32 s85, s15, 3
        v_add_u32 v30, s85, v13
        ds_write_b64 v30, v[28:29] offset:{L_STAT}
        ''')
        self.signal(C_ACT)
        a('L_hold:')
        if self.hold: self.lds_wait(C_GO, 4, sleep=2)
        a('L_nohold:')
        q = [f'K{t}' for t in range(self.wki)]
        def wait_for(name):
            i = len(q) - 1 - q[::-1].index(name)
            n = len(q) - 1 - i
            a(f's_waitcnt vmcnt({min(n, 63)})')
        def ld(t, slot, srd, nm):
            a(f's_add_u32 s92, s91, {t*(8192 if self.ilv else 1024)}\ns_and_b32 s92, s92, {0x3ffff if self.ilv else 0x7fff}')
            a(f'buffer_load_dwordx4 v[{KV(slot)}:{KV(slot)+3}], v1, {srd}, s92 offen {self.nt(nm[0].lower())}')
            q.append(nm)
        qloads = ['buffer_load_dwordx4 v[4:7], v12, s[44:47], s93 offen sc1', 'buffer_load_dwordx4 v[16:19], v12, s[44:47], s93 offen offset:16 sc1']
        for t in range(1, 32):
            wk = WK if t >= self.wk_sw else self.WK0
            if t >= wk and t >= self.wki:
                if self.WKL > wk and t >= self.wkl_sw:
                    L = a.label('L_kw')
                    a(f's_waitcnt vmcnt({self.WKL-1})\ns_cbranch_vccnz {L}\ns_waitcnt vmcnt({wk-1})\n{L}:')
                else: a(f's_waitcnt vmcnt({wk-1})')
            if t == self.WK0: self.stamp(8)
            if t == self.pfl_t: self.signal(C_PROGW)
            if t == self.pf1_t: self.signal(C_PF)
            if t == self.pf2_t: self.signal(C_PF2)
            if t >= self.wki: ld(t, t, 's[48:51]', f'K{t}')
            if t == self.WK0 - 1:
                a(f'''
                v_mov_b32 v3, 0
                buffer_load_dword v35, v3, s[44:47], 0 offen sc1
                v_and_b32 v3, 15, v2
                v_lshlrev_b32 v12, 5, v3             ; Q voffset
                s_lshl_b32 s93, s2, 9
                s_add_u32 s93, s93, {WS_Q}
                v_mov_b32 v16, 0xffff
                v_mov_b32 v17, s84
                ''')
                q.append('E')
                for r in range(4):
                    a(f'''
                    v_cmp_eq_u32 vcc, {2*r}, v3
                    v_cndmask_b32 v{8+r}, 0, v16, vcc
                    v_cmp_eq_u32 vcc, {2*r+1}, v3
                    v_cndmask_b32 v{8+r}, v{8+r}, v17, vcc
                    ''')
                a(f'''
                s_mov_b32 s96, 0xcccccccc
                s_mov_b32 s97, 0xcccccccc
                s_mov_b32 s98, 0xaaaaaaaa
                s_mov_b32 s99, 0xaaaaaaaa
                s_mul_i32 s85, s14, 163840
                s_add_u32 s56, s24, s85
                s_addc_u32 s57, s25, 0
                s_mov_b32 s58, 163840
                s_mov_b32 s59, 0x20000
                v_lshrrev_b32 v34, 4, v2
                v_mul_u32_u24 v34, 5120, v34
                v_lshl_add_u32 v34, v3, 4, v34
                s_mul_i32 s85, s15, 20480
                v_add_u32 v34, s85, v34
                s_lshr_b32 s85, {self.lagmask}, s7
                s_bitcmp1_b32 s85, 0
                s_cselect_b64 vcc, -1, 0
                ''')
            if t >= self.st0 and (t - self.st0) % self.stp == 0 and (t - self.st0) // self.stp < self.nst:
                n = (t - self.st0) // self.stp
                if n == 6 and 'r' not in self.abl:
                    a(f's_cmp_lg_u32 s7, {R_G1}\ns_cbranch_scc1 L_stg_ok')
                    self.lds_wait(C_A, 4, sleep=1)
                    a('L_stg_ok:')
                a(f's_lshl_b32 s85, s15, 10\ns_add_u32 m0, s85, {LST + 8192*n}\ns_movk_i32 s85, {wmap(n)[0] * 1280 + wmap(n)[1] * 256}')
                a(f'buffer_load_dwordx4 v34, s[56:59], s85 offen {self.nt("o")} lds')
                q.append(f'S{n}')
            if t == 12:
                self.tag_from(35)
            if t == self.rk:
                self.srd(64, 40, 256)
                a(f'''
                v_mov_b32 v37, 1
                v_mov_b32 v38, 0
                s_mov_b64 exec, 1
                s_cmp_eq_u32 s15, 0
                s_cbranch_scc1 L_rk_at
                buffer_load_dword v37, v38, s[64:67], 0 offen offset:128
                s_branch L_rk_dn
                L_rk_at:
                buffer_atomic_add v37, v38, s[64:67], 0 offen sc0 sc1
                L_rk_dn:
                s_mov_b64 exec, -1
                ''')
                q.append('RK')
            if t == self.qpos:
                for l in qloads: a(l)
                q.append('Q0'); q.append('Q1')
        self.stamp(1)
        wait_for('Q1')
        a(f'''
        s_mov_b32 s89, {SPIN_LIMIT}
        s_mov_b32 s63, 0
        L_q_chk:
        v_xor_b32 v20, s94, v5
        v_xor_b32 v21, s94, v7
        v_xor_b32 v22, s94, v17
        v_xor_b32 v23, s94, v19
        v_or_b32 v20, v20, v21
        v_or3_b32 v20, v20, v22, v23
        v_cmp_ne_u32 vcc, 0, v20
        {'s_branch L_q_ok' if 'r' in self.abl or 'q' in self.abl else ''}
        s_cbranch_vccz L_q_ok
        s_cmp_ge_u32 s63, {self.vpf * 8192}
        s_cbranch_scc1 L_q_nopf
        ''')
        if self.ilv:
            a('''
            s_lshl_b32 s85, s63, 3
            s_add_u32 s85, s85, s91
            v_lshrrev_b32 v38, 3, v2
            v_lshl_add_u32 v38, v38, 13, s85
            v_and_b32 v38, 0x3ffff, v38
            v_and_b32 v39, 7, v2
            v_lshl_add_u32 v38, v39, 7, v38
            s_lshl_b32 s85, s15, 10
            ''')
        else:
            a('''
            s_add_u32 s85, s91, s63
            v_lshl_add_u32 v38, v2, 7, s85
            v_and_b32 v38, 0x7fff, v38
            s_lshl_b32 s85, s15, 15
            ''')
        a(f'''
        buffer_load_dword v39, v38, s[52:55], s85 offen
        s_addk_i32 s63, 8192
        L_q_nopf:
        {qloads[0]}
        {qloads[1]}
        s_waitcnt vmcnt(0)
        s_sub_u32 s89, s89, 1
        s_cbranch_scc0 L_q_chk
        L_q_ok:
        v_mov_b32 v5, v6
        v_mov_b32 v6, v16
        v_mov_b32 v7, v18
        ''')
        self.signal(C_QOK)
        self.stamp(2)
        D = 20
        st = dict(V=0, W=self.nst)
        def ldwo(n):
            tp, c = wmap(n)
            so = ['0', 's60', 's61', 's62'][tp]
            if 'w' in self.abl: return
            a(f'buffer_load_dwordx4 v[{KV(NV+n)}:{KV(NV+n)+3}], v34, s[56:59], {so} offen offset:{256*c} {self.nt("o")}')
            q.append(f'W{n}')
        def pre(g, free):
            for ch in self.pre[g]:
                if ch == 'V':
                    assert st['V'] < NV and st['V'] <= free
                    ld(st['V'], st['V'], 's[52:55]', f"V{st['V']}"); st['V'] += 1
                else:
                    assert NV + st['W'] <= free
                    ldwo(st['W']); st['W'] += 1
        a('s_movk_i32 s60, 1280\ns_movk_i32 s61, 2560\ns_movk_i32 s62, 3840')
        for g in range(8):
            wait_for(f'K{4*g+3}')
            for i in range(4):
                for k in range(4):
                    t = 4 * g + k
                    a(f'v_dot2_f32_bf16 v{D+k}, v{KV(t)+i}, v{4+i}, {"0" if i == 0 else "v%d" % (D+k)}')
            pre(g, 4 * g + 3)
            a(f'v_add_f32_dpp v24, v{D}, v{D} row_ror:8 row_mask:0xf bank_mask:0x3')
            a(f'v_add_f32_dpp v25, v{D+2}, v{D+2} row_ror:8 row_mask:0xf bank_mask:0x3')
            a(f'v_add_f32_dpp v24, v{D+1}, v{D+1} row_ror:8 row_mask:0xf bank_mask:0xc')
            a(f'v_add_f32_dpp v25, v{D+3}, v{D+3} row_ror:8 row_mask:0xf bank_mask:0xc')
            r2 = 26 + (g & 1)
            a(f'v_add_f32_dpp v{r2}, v24, v24 row_shl:4 row_mask:0xf bank_mask:0x5')
            a(f'v_add_f32_dpp v{r2}, v25, v25 row_shr:4 row_mask:0xf bank_mask:0xa')
            if g & 1:
                r3 = 28 + ((g >> 1) & 1)
                a(f'v_add_f32_dpp v30, v26, v26 quad_perm:[2,3,0,1] row_mask:0xf bank_mask:0xf')
                a(f'v_add_f32_dpp v31, v27, v27 quad_perm:[2,3,0,1] row_mask:0xf bank_mask:0xf')
                a(f'v_cndmask_b32 v{r3}, v30, v31, s[96:97]')
            if (g & 3) == 3:
                a(f'v_add_f32_dpp v30, v28, v28 quad_perm:[1,0,3,2] row_mask:0xf bank_mask:0xf')
                a(f'v_add_f32_dpp v31, v29, v29 quad_perm:[1,0,3,2] row_mask:0xf bank_mask:0xf')
                a(f'v_cndmask_b32 v{32 + (g >> 2)}, v30, v31, s[98:99]')
        a(f'''
        v_cvt_pk_bf16_f32 v20, v32, v33
        s_mov_b32 s86, 0x3db504f3
        ''')
        self.unpack(32, 20)
        a('v_pk_mul_f32 v[32:33], v[32:33], s[86:87] op_sel_hi:[1,0]\nv_cvt_pk_bf16_f32 v20, v32, v33')
        self.unpack(32, 20)
        a('v_max_f32 v20, v32, v33')
        self.wave_red(20, 'max')
        a(f'''
        v_readlane_b32 s86, v20, 63              ; m_w
        s_mov_b32 s90, {LOG2E}
        v_subrev_f32 v20, s86, v32
        v_subrev_f32 v21, s86, v33
        v_mul_f32 v20, s90, v20
        v_mul_f32 v21, s90, v21
        v_exp_f32 v20, v20
        v_exp_f32 v21, v21
        v_add_f32 v21, v20, v21
        ''')
        self.wave_red(21)
        a(f'''
        v_mov_b32 v20, s86
        s_lshl_b32 s85, s15, 3
        v_add_u32 v22, s85, v13
        s_mov_b32 exec_lo, 0
        s_mov_b32 exec_hi, 0x80000000
        ds_write_b64 v22, v[20:21] offset:{L_SM}
        s_mov_b64 exec, -1
        ''')
        if self.rk >= 0:
            a(f's_cmp_lg_u32 s15, 0\ns_cbranch_scc1 L_rk_nw\ns_mov_b64 exec, 1\nds_write_b32 v13, v37 offset:{L_RANK}\ns_mov_b64 exec, -1\nL_rk_nw:')
        if self.nst:
            a(f's_lshl_b32 s85, s15, 10\ns_add_u32 s85, s85, {LST}\nv_lshl_add_u32 v36, v2, 4, s85\nv_add_u32 v37, 32768, v36')
            for n in range(self.nst):
                a(f'ds_read_b128 v[{KV(NV+n)}:{KV(NV+n)+3}], v{36 if n < 4 else 37} offset:{8192*(n if n < 4 else n - 4)}')
        self.stamp(3)
        self.signal(C_SM)
        pre(8, 31)
        self.lds_wait(C_SM, 8)
        self.stamp(4)
        a(f'''
        v_and_b32 v22, 7, v2
        v_lshl_add_u32 v22, v22, 3, v13
        ds_read_b64 v[20:21], v22 offset:{L_SM}
        s_lshr_b32 s63, {self.lagv}, s7
        s_and_b32 s63, s63, 1
        s_waitcnt lgkmcnt(0)
        v_max_f32_dpp v22, v20, v20 row_ror:4 row_mask:0xf bank_mask:0xf
        v_max_f32_dpp v22, v22, v22 row_ror:2 row_mask:0xf bank_mask:0xf
        v_max_f32_dpp v22, v22, v22 row_ror:1 row_mask:0xf bank_mask:0xf
        v_sub_f32 v20, v20, v22
        v_mul_f32 v20, s90, v20
        v_exp_f32 v20, v20
        v_sub_f32 v32, v32, v22
        v_sub_f32 v33, v33, v22
        v_mul_f32 v21, v21, v20
        v_mul_f32 v32, s90, v32
        v_mul_f32 v33, s90, v33
        v_add_f32_dpp v21, v21, v21 row_ror:4 row_mask:0xf bank_mask:0xf
        v_exp_f32 v32, v32
        v_exp_f32 v33, v33
        v_add_f32_dpp v21, v21, v21 row_ror:2 row_mask:0xf bank_mask:0xf
        v_add_f32_dpp v21, v21, v21 row_ror:1 row_mask:0xf bank_mask:0xf
        v_rcp_f32 v21, v21
        v_mul_f32 v32, v32, v21
        v_mul_f32 v33, v33, v21
        v_cvt_pk_bf16_f32 v32, v32, v32
        v_cvt_pk_bf16_f32 v33, v33, v33
        ''')
        issued = st['V']; nwo = st['W']
        for t in range(32):
            A = 20 + 4 * (t & 1)
            for r in range(4):
                a(f'v_and_b32_dpp v{A+r}, v{32 + (t >> 4)}, v{8+r} row_newbcast:{bitrev4(t & 15)} row_mask:0xf bank_mask:0xf')
            wait_for(f'V{t}')
            a(f'v_mfma_f32_16x16x32_bf16 v[16:19], v[{A}:{A+3}], v[{KV(t % NV)}:{KV(t % NV)+3}], {"0" if t == 0 else "v[16:19]"}')
            if not self.lagv:
                while t + (WV if t < self.wv_sw else self.WV2) >= issued and issued < 32:
                    ld(issued, issued % NV, 's[52:55]', f'V{issued}'); issued += 1
            else:
                wbig = max(self.WVc, WV if t < self.wv_sw else self.WV2)
                while t + wbig >= issued and issued < 32:
                    wa = WV if issued - WV < self.wv_sw else self.WV2
                    if issued - wa > t:
                        L = a.label('L_vw')
                        a(f's_cmp_lg_u32 s63, 0\ns_cbranch_scc1 {L}')
                        wait_for(f'V{issued - wa}')
                        a(f'{L}:')
                    ld(issued, issued % NV, 's[52:55]', f'V{issued}'); issued += 1
            if t >= self.wo_start:
                for _ in range(self.wo_per):
                    if nwo < 20: ldwo(nwo); nwo += 1
            if t == self.prog_t: self.signal(C_PROG)
            if t + 32 == self.pfl_t: self.signal(C_PROGW)
            if t == self.red_direct: self.signal(C_K2)
            if t == self.vi_t: self.signal(C_VI)
            if self.smf and 24 <= t < 28:
                for r in range(72 + 4 * (t - 24), 76 + 4 * (t - 24)): a(f'v_mov_b32 v{r}, 0')
            if t == self.setup_t:
                a(f'''
                v_lshlrev_b32 v7, 4, v2
                v_and_b32 v3, 15, v2
                v_lshrrev_b32 v4, 4, v2
                v_lshlrev_b32 v5, 5, v3
                v_lshl_add_u32 v5, v4, 4, v5          ; (8j+4s')*4
                s_lshl_b32 s85, s15, 9
                s_add_u32 s85, s85, {L_OP}
                v_add_u32 v6, s85, v5
                s_mul_i32 s85, s15, 2560
                s_add_u32 s85, s85, {L_WP}
                v_add_u32 v5, s85, v7
                v_add_u32 v36, {LST}, v7
                v_cmp_gt_u32 vcc, 32, v2
                v_cndmask_b32 v5, v36, v5, vcc
                s_lshl_b32 s85, s15, 6
                s_add_u32 s85, s85, {L_OP}
                v_lshl_add_u32 v4, v4, 4, s85
                ''')
                if self.smf:
                    a(f'''
                    v_bfe_u32 v3, v2, 4, 1
                    v_lshlrev_b32 v4, 5, v3
                    v_and_b32 v3, 1, v2
                    v_lshl_add_u32 v4, v3, 4, v4          ; + (q&1)*4
                    v_bfe_u32 v3, v2, 1, 1
                    v_lshl_add_u32 v4, v3, 3, v4          ; + (q>>1)*2
                    v_lshrrev_b32 v3, 5, v2
                    v_lshl_add_u32 v4, v3, 2, v4          ; + (sA>>1)
                    v_bfe_u32 v3, v2, 2, 2
                    v_lshl_add_u32 v4, v3, 10, v4
                    v_add_u32 v4, s85, v4
                    v_mov_b32 v37, 0xffff
                    v_cmp_eq_u32 vcc, 0, v3
                    v_cndmask_b32 v38, 0, v37, vcc        ; Ma
                    v_cmp_eq_u32 vcc, 1, v3
                    v_cndmask_b32 v39, 0, v37, vcc        ; Mb
                    v_and_b32 v3, 3, v2
                    v_mul_u32_u24 v37, 0x5555, v3
                    ''')
                    for r in [28, 29, 30, 31]: a(f'v_mov_b32 v{r}, 0')
                elif self.olp:
                    a('''
                    v_and_b32 v3, 3, v2
                    v_lshl_add_u32 v4, v3, 2, v4          ; + tp*4
                    v_bfe_u32 v3, v2, 2, 2
                    v_lshl_add_u32 v4, v3, 10, v4         ; + pair*2*512
                    ''')
                if self.oadd:
                    a(f'''
                    v_lshl_add_u32 v6, v2, 2, v13
                    v_lshrrev_b32 v4, 5, v2               ; s>>1
                    v_bfe_u32 v3, v2, 4, 1                ; s&1
                    v_lshl_add_u32 v4, v3, 4, v4
                    s_lshl_b32 s85, s15, 1
                    v_add_u32 v4, s85, v4
                    v_lshl_add_u32 v4, v4, 2, v13
                    ''')
                a(f'''
                v_bfe_u32 v35, v2, 1, 4
                v_and_b32 v36, 1, v2
                v_lshl_add_u32 v35, v36, 4, v35
                v_lshlrev_b32 v35, 4, v35
                v_lshrrev_b32 v36, 5, v2
                v_mul_u32_u24 v36, 10240, v36
                s_lshl_b32 s85, s15, 9
                s_add_u32 s86, s85, {L_WP}
                v_add3_u32 v35, v35, v36, s86
                s_mul_i32 s87, s2, 2560
                s_add_u32 s87, s87, s85
                s_add_u32 s87, s87, {WS_P}
                ''')
        assert nwo == 20
        a(f'''
        s_mov_b32 exec_hi, 0
        ''')
        if self.oadd:
            for r in range(4): a(f'ds_add_f32 v6, v{16+r} offset:{0x200 + 128*r}')
        else: a('ds_write_b128 v6, v[16:19]')
        a('s_mov_b64 exec, -1')
        self.stamp(5)
        if self.cyc: a('s_memtime s[64:65]\ns_memrealtime s[74:75]')
        if self.gthr:
            a(f's_cmp_lg_u32 s15, 7\ns_cbranch_scc1 L_nogc\ns_lshl_b32 s85, s2, 7\ns_add_u32 s85, s85, {WS_F}')
            a('s_mov_b64 exec, 1\nv_mov_b32 v12, 0\nv_mov_b32 v14, s94\nbuffer_store_dword v14, v12, s[44:47], s85 offen sc1\ns_mov_b64 exec, -1\nL_nogc:')
        rd1 = [f'ds_read_b128 v[{40+4*w}:{43+4*w}], v4 offset:{512*w}' for w in range(8)]
        if self.olp: rd1 = ['ds_read2_b32 v[40:41], v4 offset0:0 offset1:128']
        if self.oadd: rd1 = ['ds_read2_b32 v[40:41], v4 offset0:128 offset1:160', 'ds_read2_b32 v[42:43], v4 offset0:192 offset1:224']
        if self.bar:
            a(f's_cmp_eq_u32 s7, {R_RED}\ns_cbranch_scc1 L_s1_spin\ns_waitcnt lgkmcnt(0)\ns_barrier\nL_tail_dry:')
            for r in rd1: a(r)
            a('s_waitcnt lgkmcnt(0)\nL_s1_done:')
            self.tail_code.append(('L_s1_spin', lambda: (self.signal(C_PV), self.wait2(C_PV, 8, rd1), a('s_branch L_s1_done'))))
        else:
            self.signal(C_PV)
            self.wait2(C_PV, 8, rd1)
        if self.cyc: a('s_memtime s[66:67]')
        if self.olp:
            a('''
            v_add_f32 v40, v40, v41
            v_add_f32_dpp v40, v40, v40 row_ror:4 row_mask:0xf bank_mask:0xf
            v_add_f32_dpp v40, v40, v40 row_ror:8 row_mask:0xf bank_mask:0xf
            v_cvt_pk_bf16_f32 v40, v40, v40
            ''')
        else:
            if not self.oadd: self.sum_partials(40, [40 + 4 * i for i in range(8)])
            for r in range(4): a(f'v_cvt_pk_bf16_f32 v{40+r}, v{40+r}, v{40+r}')
        assert q[-1] == 'V31'
        if self.cyc: a('s_memtime s[68:69]')
        self.stamp(6)
        def wr(c): a(f'ds_write_b128 v5, v[{60+4*c}:{63+4*c}] offset:{512*c}')
        def mf(tp, c):
            d = 60 + 4 * c; b = KV(NV + 5 * tp + c)
            a(f'v_mfma_f32_16x16x32_bf16 v[{d}:{d+3}], v[{44+4*tp}:{47+4*tp}], v[{b}:{b+3}], {"0" if tp == 0 else "v[%d:%d]" % (d, d+3)}')
        def ands(tp):
            for r in range(4):
                if self.olp: a(f'v_and_b32_dpp v{44+4*tp+r}, v40, v{8+r} quad_perm:[{tp},{tp},{tp},{tp}] row_mask:0xf bank_mask:0xf')
                else: a(f'v_and_b32 v{44+4*tp+r}, v{40+tp}, v{8+r}')
        if self.smf:
            acc = [72, 76, 80, 84, 28]
            def wr(c): a(f'ds_write_b128 v5, v[{acc[c]}:{acc[c]+3}] offset:{512*c}')
            for P in range(2):
                for r in range(4):
                    qq = 2 * P + (r >> 1)
                    a(f'v_and_b32_dpp v{20+4*P+r}, v40, v{38 + (r & 1)} quad_perm:[{qq},{qq},{qq},{qq}] row_mask:0xf bank_mask:0xf')
            for P in range(2):
                for c in range(5):
                    b = KV(NV + 10 * P + 2 * c)
                    a(f'v_smfmac_f32_16x16x64_bf16 v[{acc[c]}:{acc[c]+3}], v[{20+4*P}:{23+4*P}], v[{b}:{b+7}], v37')
            for c in range(5): wr(c)
        elif self.mo == 0:
            for c in range(5):
                for tp in range(4):
                    if c == 0: ands(tp)
                    mf(tp, c)
                if c >= 2: wr(c - 2)
            wr(3); wr(4)
        elif self.mo == 1:
            ands(0)
            for tp in range(4):
                for c in range(5):
                    mf(tp, c)
                    if c == 1 and tp < 3: ands(tp + 1)
            for c in range(5): wr(c)
        else:
            ands(0)
            for tp in range(4):
                for c in range(3):
                    mf(tp, c)
                    if c == 0 and tp < 3: ands(tp + 1)
            for tp in range(4):
                for c in (3, 4): mf(tp, c)
                if tp >= 1: wr(tp - 1)
            wr(3); wr(4)
        if self.cyc: a('s_memtime s[70:71]')
        rd2 = [f'ds_read_b128 v[{40+4*w}:{43+4*w}], v35 offset:{2560*w}' for w in range(4)]
        if self.bar:
            if self.dry: a('s_cbranch_execz L_s2_skip')
            a(f's_cmp_eq_u32 s7, {R_RED}\ns_cbranch_scc1 L_s2_spin\ns_waitcnt lgkmcnt(0)\ns_barrier')
            a('s_cmp_ge_u32 s15, 5\ns_cbranch_scc1 L_stream_end')
            a('L_s2_skip:')
            for r in rd2: a(r)
            a('s_waitcnt lgkmcnt(0)\nL_s2_done:')
            self.tail_code.append(('L_s2_spin', lambda: (self.signal(C_WO), a('s_cmp_ge_u32 s15, 5\ns_cbranch_scc1 L_stream_end'), self.wait2(C_WO, 8, rd2), a('s_branch L_s2_done'))))
        else:
            self.signal(C_WO)
            a('s_cmp_ge_u32 s15, 5\ns_cbranch_scc1 L_stream_end')
            self.wait2(C_WO, 8, rd2)
        if self.cyc: a('s_memtime s[72:73]')
        self.stamp(7)
        self.sum_partials(40, [40, 44, 48, 52])
        for i in range(4): a(f'v_mov_b32 v{44+i}, v{40+i}')
        for i in range(4): a(f'v_permlane32_swap_b32 v{40+i}, v{44+i}')
        a('v_pk_add_f32 v[40:41], v[40:41], v[44:45]\nv_pk_add_f32 v[42:43], v[42:43], v[46:47]')
        self.sanitize(range(40, 44))
        if self.dry: a('s_cbranch_execz L_dry_ret')
        a('''
        s_mov_b32 exec_hi, 0
        buffer_store_dwordx4 v[40:43], v7, s[44:47], s87 offen sc1
        s_mov_b64 exec, -1
        ''')
        if self.cyc:
            a('s_memtime s[76:77]\ns_memrealtime s[78:79]\ns_waitcnt lgkmcnt(0)')
            for i, r in enumerate((66, 68, 70, 72, 76)): a(f's_sub_u32 s{r}, s{r}, s64\nv_writelane_b32 v15, s{r}, {6+i}')
            a('s_sub_u32 s78, s78, s74\nv_writelane_b32 v15, s78, 12')
        self.signal(C_DONE)
        a('L_stream_end:')
        self.stamp(10)
        self.stamp_flush()
        self.diag_end()
        a('L_end:\ns_endpgm')
        for lab, fn in self.tail_code:
            a(lab + ':'); fn()

    def build(self):
        self.prologue(); self.stream(); self.control(); self.a('L_code_end:')
        kn = NAME + '_kernel'
        body = '\n'.join(fix_hazards(self.a.l)) + '\n'
        hdr = open('cdna_kernels/' + NAME + '.s.ref').read().split('; Override launch')[0]
        return hdr + header([f'; @launch grid=(256,1,1) block=(768,1,1) lds={LDS_SIZE}']) + kernel_start(kn) + body + '.section .rodata,"a"\n' + descriptor(kn, vgpr=168, sgpr=102, accum=168)

if __name__ == '__main__':
    import argparse
    from collections import Counter
    rs = [role_of(w) for w in range(256)]
    for r, n in ((R_G1, 20), (R_DOWN, 40), (R_FFN, 54), (R_Q, 64), (R_MOD, 40), (R_RED, 8)):
        assert sorted(i for rr, i in rs if rr == r) == list(range(n)), r
    ap = argparse.ArgumentParser()
    ap.add_argument('-o', default='k.s'); ap.add_argument('--stamp', action='store_true')
    for p, d in (('WK', 3), ('WV', 4), ('rot', 3), ('rotw', 1), ('qpos', 28), ('prog_t', 22), ('progw_t', -1), ('WD', 20), ('wo_start', 0), ('wo_per', 1), ('sdelay', 0), ('WK0', 3), ('wk_sw', 16), ('k2_t', -1), ('WV2', 8), ('wv_sw', 12), ('hold', 1), ('pf', 1), ('WKL', 4), ('wkl_sw', 6), ('lagmask', 2), ('pfb', 1), ('cpf', 1), ('diag_until', 0), ('diag_xcc', 0), ('diag_role', -1), ('diag_cls', -1), ('diag_idx', -1), ('nMf', 0), ('nMd', 0), ('vi_t', -1), ('nEf', 0), ('nEd', 0), ('late', 0), ('pfl_t', 8), ('psleep', 0), ('light', 0), ('hdelay', 0), ('rk', -1), ('lagv', 0), ('h1probe', 0), ('cxfirst', 1), ('tlbw', 0), ('rotm', 1), ('ilv', 0), ('gthr', 0), ('help2', 0), ('setup_t', 14), ('ddelay', 0), ('smf', 1), ('olp', 1), ('mo', 2), ('dry', 0), ('oadd', 0), ('bar', 1), ('cyc', 0), ('pipe', 0), ('wki', 2), ('pf1_t', 5), ('allsh', 0), ('pf2_t', 10), ('nst', 9), ('st0', 4), ('stp', 3), ('vpf', 3), ('rth1', 128), ('rth2', 208), ('WVa', 2), ('WVb', 4), ('WVc', 8), ('trig', 0), ('trsh', 0), ('red_direct', 27), ('WDM', 20), ('k2_n', 8)):
        ap.add_argument('--' + p, type=int, default=d)
    ap.add_argument('--pre', default='V,V,V,V,V,V,V,V,W')
    ap.add_argument('--ntp', default='kv')
    ap.add_argument('--abl', default='')
    ap.add_argument('--outf', default='')
    args = ap.parse_args()
    kw = dict(vars(args)); o = kw.pop('o')
    open(o, 'w').write(G(**kw).build())
```

```python
import sys
from asmlib import *
import gen as G1mod
from gen import bitrev4, LOG2E, SPIN_LIMIT

WS_E = 0
WS_H1 = 0x1000
WS_Q = 0x8000
SB2 = 0x28000
WS_H2 = SB2; WS_X1 = SB2 + 0x3000; WS_HID = SB2 + 0x6000; WS_MODO = SB2 + 0xD000
WS_P = 0x50000
WS_F = 0xF0000
WS_STAMP = 0x100000
WS_SIZE = 0x200000
LW = 0; LM = 0x14000; L_OP = 0x15000; L_WP = 0x23000; LST = 0x16000; LDS_SIZE = 0x28000
C_A, C_SM, C_PV, C_WO, C_QOK, C_PROG, C_PROGW, C_GO, C_DONE, C_K2, C_ACT, C_PF, C_PF2, C_CX, C_VI = [4 * i for i in range(15)]
L_STAT = 0x40; L_SM = 0x100; L_RANK = 0x3c
L_ACT = L_WP; ACTS = 1344
R_G1, R_DOWN, R_FFN, R_Q, R_MOD, R_RED = 1, 2, 3, 4, 5, 6

def role_of(wg):
    x = wg & 7; u = wg >> 3
    if u < 2: return R_G1, 2 * x + u
    if u < 6:
        k = u - 2
        e = EXTRA.get((x, k >> 1))
        if e is None: return 0, 0
        return e[0], e[0] * 16 + 2 * e[1] + (k & 1)
    if u < 14: return R_Q, 8 * x + u - 6
    if u < 19: return R_MOD, 5 * x + u - 14
    if u < 25: return R_FFN, 6 * x + u - 19
    if u < 29: return R_DOWN, 4 * x + u - 25
    if u == 29: return R_RED, x
    return 0, 0
EXTRA = {(0, 0): (R_DOWN, 0), (0, 1): (R_DOWN, 1), (2, 0): (R_DOWN, 2), (2, 1): (R_DOWN, 3),
         (4, 0): (R_FFN, 0), (4, 1): (R_FFN, 1), (6, 0): (R_G1, 0), (6, 1): (R_FFN, 2), (1, 0): (R_G1, 1)}

DOC = '''; ---------------------------------------------------------------------------------------------
; ---------------------------------------------------------------------------------------------
'''

class G(G1mod.G):
    def __init__(self, stamp=False, WK=3, WV=3, rot=3, rotw=1, qpos=25, prog_t=22, progw_t=-1, WD=4, wo_start=0, wo_per=1, sdelay=0, WK0=2, wk_sw=16, k2_t=6, WV2=6, wv_sw=16, hold=1, pf=1, WKL=6, wkl_sw=6, lagmask=0x72, diag_xcc=0, diag_role=-1, diag_until=0, diag_cls=-1, diag_idx=-1, ntp='kv', cpf=1, pfb=1, nMf=0, nMd=0, vi_t=29, nEf=8, nEd=6, late=1, pfl_t=8, light=0, psleep=0, outf='', abl='', nst=0, st0=5, stp=3, allsh=0, pf1_t=4, pf2_t=9, wki=2, pipe=0, cyc=0, bar=0, oadd=0, dry=0, mo=0, olp=0, smf=0, ddelay=0, setup_t=14, help2=0, gthr=0, otouch=1, premerge=1, ilv=0, rotm=1, tlbw=1, cxfirst=1, vpf=3, h1probe=1, lagv=0, rk=-1, rth1=128, rth2=208, WVa=2, WVb=4, WVc=8, hdelay=0, trig=0, trsh=0, red_direct=27, WDM=2, k2_n=8, pre='V,V,VV,VW,VWW,VWW,VVW,VWW,VVWW'):
        self.sdelay = sdelay; self.WK0 = WK0; self.wk_sw = wk_sw; self.k2_t = k2_t; self.WV2 = WV2; self.wv_sw = wv_sw; self.hold = hold; self.pf = pf; self.late = late; self.pfl_t = pfl_t; self.psleep = psleep; self.light = light; self.light_set = (0, 11, 5) if light == 1 else (0, 11); self.hdelay = hdelay; self.rk = rk; self.lagv = lagv; self.h1probe = h1probe; self.cxfirst = cxfirst; self.tlbw = tlbw; self.rotm = rotm; self.ilv = ilv; self.premerge = premerge; self.otouch = otouch; self.gthr = gthr; self.help2 = help2; self.setup_t = setup_t; self.ddelay = ddelay; self.smf = smf; self.olp = olp; self.mo = mo; self.dry = dry; self.oadd = oadd; self.bar = bar; self.cyc = cyc; self.pipe = pipe; self.wki = wki; self.pf1_t = pf1_t; self.allsh = allsh; self.pf2_t = pf2_t; self.nst = nst; self.st0 = st0; self.stp = stp; self.abl = abl; self.outf = outf.replace('_', ' '); self.vpf = vpf; self.rth1 = rth1; self.rth2 = rth2; self.WVa = WVa; self.WVb = WVb; self.WVc = WVc; self.trig = trig; self.trsh = trsh; self.red_direct = red_direct; self.pfb = pfb; self.cpf = cpf; self.ntp = ntp; self.cur_nt = 'nt'; self.diag_until = diag_until; self.diag_xcc = diag_xcc; self.diag_role = diag_role; self.diag_cls = diag_cls; self.diag_idx = diag_idx; self.cur_cls = -1; self.nEf = nEf; self.nMf = nMf; self.nMd = nMd; self.vi_t = vi_t; self.nEd = nEd; self.WKL = WKL; self.wkl_sw = wkl_sw; self.lagmask = lagmask; self.WDM = WDM; self.k2_n = k2_n; self.pre = pre.split(',')
        self.a = Asm(); self.stamp_on = stamp
        self.WK = WK; self.WV = WV; self.rot = rot; self.rotw = rotw; self.qpos = qpos; self.prog_t = prog_t
        self.progw_t = progw_t; self.WD = WD; self.wo_start = wo_start; self.wo_per = wo_per

    def stamp(self, i):
        if self.diag_until and i == self.diag_idx and (self.cur_cls == self.diag_cls or (self.cur_cls == 99 and self.diag_cls > 0)):
            if self.cur_cls == 99:
                L = self.a.label('L_ds')
                self.a(f's_cmp_lg_u32 s7, {self.diag_cls}\ns_cbranch_scc1 {L}\ns_memrealtime s[100:101]\ns_waitcnt lgkmcnt(0)\n{L}:')
            elif self.diag_role >= 0:
                L = self.a.label('L_ds')
                self.a(f's_cmp_lg_u32 s7, {self.diag_role}\ns_cbranch_scc1 {L}\ns_memrealtime s[100:101]\ns_waitcnt lgkmcnt(0)\n{L}:')
            else:
                self.a('s_memrealtime s[100:101]\ns_waitcnt lgkmcnt(0)')
        if self.light and i not in self.light_set: return
        super().stamp(i)

    def diag_end(self):
        if self.diag_until:
            L = self.a.label('L_diag')
            if self.diag_xcc:
                self.a('s_getreg_b32 s97, hwreg(HW_REG_XCC_ID)\ns_sub_u32 s97, s97, s2\ns_and_b32 s97, s97, 7')
                if self.diag_xcc == 2: self.a('s_sub_u32 s97, 7, s97')
                self.a('s_mul_i32 s97, s97, 400\ns_add_u32 s100, s100, s97')
            self.a(f'{L}:\ns_sleep 1\ns_memrealtime s[98:99]\ns_waitcnt lgkmcnt(0)\ns_sub_u32 s98, s98, s100\ns_cmp_lt_i32 s98, {self.diag_until*100}\ns_cbranch_scc1 {L}')

    def ln_stats1(self, U, T, s_m, s_rs, mid=None):
        a = self.a
        a(f'v_readlane_b32 s86, v{U}, 0')
        for i in range(5):
            a(f'v_pk_add_f32 v[{T+4}:{T+5}], v[{U+2*i}:{U+2*i+1}], s[86:87] op_sel_hi:[1,0] neg_lo:[0,1] neg_hi:[0,1]')
            if i == 0:
                a(f'v_pk_mul_f32 v[{T+2}:{T+3}], v[{T+4}:{T+5}], v[{T+4}:{T+5}]')
                a(f'v_add_f32 v{T}, v{T+4}, v{T+5}')
            else:
                a(f'v_pk_fma_f32 v[{T+2}:{T+3}], v[{T+4}:{T+5}], v[{T+4}:{T+5}], v[{T+2}:{T+3}]')
                a(f'v_add_f32 v{T+1}, v{T+4}, v{T+5}\nv_add_f32 v{T}, v{T}, v{T+1}')
        a(f'v_add_f32 v{T+1}, v{T+2}, v{T+3}')
        for m in ('row_ror:8 row_mask:0xf', 'row_ror:4 row_mask:0xf', 'row_ror:2 row_mask:0xf', 'row_ror:1 row_mask:0xf', 'row_bcast:15 row_mask:0xa', 'row_bcast:31 row_mask:0xc'):
            for v in (T, T + 1): a(f'v_add_f32_dpp v{v}, v{v}, v{v} {m} bank_mask:0xf')
        a(f'''
        v_mul_f32 v{T}, 0x3acccccd, v{T}
        v_mul_f32 v{T+1}, 0x3acccccd, v{T+1}
        v_fma_f32 v{T+1}, -v{T}, v{T}, v{T+1}
        v_add_f32 v{T}, s86, v{T}
        v_max_f32 v{T+1}, 0, v{T+1}
        v_cvt_pk_bf16_f32 v{T}, 0, v{T}
        v_cvt_pk_bf16_f32 v{T+1}, 0, v{T+1}
        v_readlane_b32 s{s_m}, v{T}, 63
        v_add_f32 v{T+1}, 0x3727c5ac, v{T+1}
        v_cvt_pk_bf16_f32 v{T+1}, 0, v{T+1}
        v_sqrt_f32 v{T+1}, v{T+1}
        v_cvt_pk_bf16_f32 v{T+1}, 0, v{T+1}
        v_rcp_f32 v{T+1}, v{T+1}
        s_nop 0
        v_readlane_b32 s{s_rs}, v{T+1}, 63
        ''')
        if mid: mid()

    def signal(self, cnt):
        self.a(f'''
        s_mov_b64 exec, 1
        v_mov_b32 v14, 1
        ds_add_u32 v13, v14 offset:{cnt}
        s_mov_b64 exec, -1
        ''')

    def arrive2(self, cnt, last, skip, reads):
        a = self.a
        a(f'''
        s_mov_b64 exec, 1
        v_mov_b32 v14, 1
        ds_add_rtn_u32 v14, v13, v14 offset:{cnt}
        s_mov_b64 exec, -1
        ''')
        for r in reads: a(r)
        a(f'''
        s_waitcnt lgkmcnt({min(len(reads), 15)})
        v_readfirstlane_b32 s88, v14
        s_cmp_lg_u32 s88, {last}
        s_cbranch_scc1 {skip}
        ''')

    def wait2(self, cnt, target, reads):
        a = self.a
        L = a.label('L_w2'); D = a.label('L_w2d'); R = a.label('L_w2r')
        a(f'ds_read_b32 v14, v13 offset:{cnt}')
        for r in reads: a(r)
        a(f'''
        s_mov_b32 s89, {SPIN_LIMIT * 16}
        s_waitcnt lgkmcnt({len(reads)})
        v_readfirstlane_b32 s88, v14
        s_cmp_ge_u32 s88, {target}
        s_cbranch_scc1 {D}
        {L}:
        ds_read_b32 v14, v13 offset:{cnt}
        s_sub_u32 s89, s89, 1
        s_cbranch_scc1 {R}
        s_waitcnt lgkmcnt(0)
        v_readfirstlane_b32 s88, v14
        s_cmp_lt_u32 s88, {target}
        s_cbranch_scc1 {L}
        {R}:
        ''')
        for r in reads: a(r)
        a(f'{D}:\ns_waitcnt lgkmcnt(0)')

    def rnd1(self, regs):
        for r in regs: self.a(f'v_cvt_pk_bf16_f32 v{r}, 0, v{r}')
    def round4(self, v, t):
        self.rnd1(range(v, v + 4))
    def bf1(self, v):
        self.rnd1([v])

    def tag_from(self, v):
        self.a(f'''
        v_readfirstlane_b32 s94, v{v}
        s_mul_i32 s94, s94, 1664525
        s_add_u32 s94, s94, 1013904223
        ''')

    def poll(self, name, loads, check, sleep, tagged=False, lanemask=False, pipe=0):
        a = self.a
        a(f's_mov_b32 s89, {SPIN_LIMIT}')
        if pipe:
            for l in loads: a(l)
            a(f's_sleep {pipe}')
        a(f'L_{name}_poll:')
        for l in loads: a(l)
        a(f's_waitcnt vmcnt({len(loads) if pipe else 0})')
        if tagged:
            for i in range(0, len(check), 2):
                a(f'v_xor_b32 v36, s94, v{check[i]}\nv_xor_b32 v37, s94, v{check[i+1]}')
                a('v_or_b32 v38, v36, v37' if i == 0 else 'v_or3_b32 v38, v38, v36, v37')
            a('v_cmp_ne_u32 vcc, 0, v38')
        else:
            c = list(check)
            if len(c) % 2 == 0:
                a(f'v_max_u32 v38, v{c[0]}, v{c[1]}'); c = c[2:]
            else:
                a(f'v_max3_u32 v38, v{c[0]}, v{c[1]}, v{c[2]}'); c = c[3:]
            for i in range(0, len(c), 2): a(f'v_max3_u32 v38, v38, v{c[i]}, v{c[i+1]}')
            a('v_cmp_eq_u32 vcc, -1, v38')
        a(f'''
        s_cbranch_vccz L_{name}_ok
        {"s_mov_b64 exec, vcc" if lanemask else ""}
        {"s_sleep %d" % sleep if sleep else ""}
        s_sub_u32 s89, s89, 1
        s_cbranch_scc0 L_{name}_poll
        L_{name}_ok:
        {"s_mov_b64 exec, -1" if lanemask else ""}
        ''')

    def prologue(self):
        a = self.a
        a(f'''
        s_load_dwordx16 s[16:31], s[0:1], 0
        {'s_memrealtime s[100:101]' if self.diag_until else ''}
        {'s_memrealtime s[98:99]' if self.stamp_on else ''}
        v_lshrrev_b32 v1, 6, v0
        s_getpc_b64 s[86:87]
        L_pc0:
        v_readfirstlane_b32 s3, v1
        v_lshlrev_b32 v3, 7, v0
        s_cmpk_ge_u32 s2, 256
        s_cbranch_scc1 L_end
        v_min_u32 v3, L_code_end-L_pc0-4, v3
        v_and_b32 v2, 63, v0
        {'global_load_dword v161, v3, s[86:87]' if self.cpf else ''}
        s_load_dwordx8 s[32:39], s[0:1], 64
        s_load_dwordx4 s[40:43], s[0:1], 96
        v_lshlrev_b32 v7, 4, v2          ; lane*16
        s_cmp_lt_u32 s3, 4
        s_cbranch_scc1 L_control
        ''')

    def common2(self):
        a = self.a
        a(f'''
        v_mov_b32 v13, {LM}
        s_mov_b32 s84, 0xffff0000
        v_mov_b32 v15, 0
        s_lshr_b32 s13, s2, 5            ; b
        s_and_b32 s14, s2, 31            ; h
        ''')

    def decode(self):
        a = self.a
        ext = 0
        for (x, kh), (r, idx) in EXTRA.items(): ext |= (r | idx << 2) << (4 * (2 * x + kh))
        a(f'''
        s_and_b32 s4, s2, 7              ; x
        s_lshr_b32 s5, s2, 3             ; u
        s_mov_b32 s7, 0
        s_mov_b32 s8, 0
        ''')
        for lo, hi, role, mul in ((0, 2, R_G1, 2), (6, 14, R_Q, 8), (14, 19, R_MOD, 5), (19, 25, R_FFN, 6), (25, 29, R_DOWN, 4), (29, 30, R_RED, 1)):
            a(f'''
            s_sub_u32 s9, s5, {lo}
            s_mul_i32 s10, s4, {mul}
            s_add_u32 s10, s10, s9
            s_cmp_lt_u32 s9, {hi-lo}
            s_cselect_b32 s7, {role}, s7
            s_cselect_b32 s8, s10, s8
            ''')
        a(f'''
        s_sub_u32 s9, s5, 2              ; extras
        s_lshr_b32 s10, s9, 1
        s_and_b32 s10, s10, 1
        s_lshl_b32 s11, s4, 1
        s_add_u32 s10, s10, s11
        s_lshl_b32 s10, s10, 2
        s_mov_b32 s86, {ext & 0xffffffff}
        s_mov_b32 s87, {ext >> 32}
        s_lshr_b64 s[86:87], s[86:87], s10
        s_and_b32 s10, s86, 3            ; role
        s_bfe_u32 s11, s86, 0x20002      ; idx
        s_lshl_b32 s11, s11, 1
        s_lshl_b32 s12, s10, 4
        s_add_u32 s11, s11, s12
        s_and_b32 s12, s9, 1
        s_add_u32 s11, s11, s12
        s_cmp_lt_u32 s9, 4
        s_cselect_b32 s7, s10, s7
        s_cselect_b32 s8, s11, s8
        s_sub_u32 s9, s5, 19
        s_cmp_lt_u32 s9, 10
        s_cselect_b32 s6, s9, 99
        s_sub_u32 s10, s5, 20
        s_cmp_ge_u32 s5, 30
        s_cselect_b32 s6, s10, s6
        s_sub_u32 s9, s5, 2
        s_add_u32 s10, s9, 12
        s_cmp_lt_u32 s9, 4
        s_cselect_b32 s6, s10, s6
        ''')

    def nt(self, c): return 'nt' if c in self.ntp else ''
    def pfld(self, v, srd, so): self.a(f'buffer_load_dword v160, v{v}, {srd}, {so} offen {self.cur_nt}')

    def prefetch(self):
        a = self.a
        self.cur_nt = self.nt('m')
        self.srd(64, 36, 640 * 7680)
        a(f'''
        s_mov_b32 s90, s6
        s_cmp_ge_u32 s90, 16
        s_cbranch_scc1 L_pf_done
        s_lshl_b32 s92, s4, 7
        s_cmp_lt_u32 s3, 2
        s_cbranch_scc1 L_pfA
        s_cmp_eq_u32 s4, 6
        s_cselect_b32 s92, 1024, 0
        s_cmp_eq_u32 s4, 1
        s_cselect_b32 s92, 1152, s92
        s_cmp_eq_u32 s92, 0
        s_cbranch_scc1 L_pf_done
        L_pfA:
        s_lshl_b32 s90, s90, 1
        s_and_b32 s91, s3, 1
        s_add_u32 s90, s90, s91
        s_mul_i32 s91, s90, {20*7680}
        s_add_u32 s92, s92, s91
        v_lshrrev_b32 v16, 1, v2
        v_min_u32 v16, 19, v16
        v_mul_u32_u24 v16, 7680, v16
        v_and_b32 v17, 1, v2
        v_mul_u32_u24 v17, 1280, v17
        v_add_u32 v16, v16, v17
        ''')
        self.pfld(16, 's[64:67]', 's92')
        a('L_pf_done:')

    def prefetch_b(self, sfx):
        a = self.a
        a(f'''
        {'s_cmp_ge_u32 s6, 16' if not self.allsh else 's_bitcmp1_b32 s3, 0'}
        s_cbranch_scc1 L_pb_done
        {'s_mul_i32 s90, s6, 40' if not self.allsh else 's_mul_i32 s90, s5, 20'}
        s_and_b32 s91, s3, 1
        s_mul_i32 s91, s91, 24
        s_add_u32 s90, s90, s91
        v_lshrrev_b32 v16, 3, v2
        v_and_b32 v17, 7, v2
        s_cmp_lt_u32 s3, 2
        s_cbranch_scc1 L_pb3
        ''')
        self.cur_nt = self.nt('q')
        self.srd(64, 22, 640 * 8192)
        a(f'''
        v_lshlrev_b32 v17, 7, v17
        v_lshl_add_u32 v18, v16, 13, v17
        s_lshl_b32 s91, s90, 13
        s_lshl_b32 s92, s4, 10
        s_add_u32 s92, s92, s91
        s_mov_b32 s91, {8*8192}
        s_branch L_pb4
        L_pb3:
        ''')
        self.srd(64, 36, 640 * 7680)
        a(f'''
        v_min_u32 v17, 4, v17
        v_lshlrev_b32 v17, 7, v17
        v_mul_u32_u24 v18, 7680, v16
        v_add_u32 v18, v18, v17
        s_mul_i32 s91, s90, 7680
        s_mul_i32 s92, s4, 640
        s_add_u32 s92, s92, 2560
        s_add_u32 s92, s92, s91
        s_mov_b32 s91, {8*7680}
        ''')
        if 'm' in self.abl: a('s_branch L_pb_done')
        self.lds_wait(C_PF, 1, sleep=2)
        a('L_pb4:')
        self.pfld(18, 's[64:67]', 's92'); a('s_add_u32 s92, s92, s91')
        self.pfld(18, 's[64:67]', 's92'); a('s_add_u32 s92, s92, s91')
        a('s_bitcmp1_b32 s3, 0\ns_cbranch_scc1 L_pb_done')
        self.pfld(18, 's[64:67]', 's92')
        a('L_pb_done:')

    def prefetch_late(self, sfx):
        a = self.a
        self.cur_nt = self.nt('f')
        a(f's_cmp_ge_u32 s6, 16\ns_cbranch_scc1 L_pl_done{sfx}')
        a(f's_cmp_lg_u32 s3, 0\ns_cbranch_scc1 L_pl1{sfx}')
        self.srd(68, 32, 1728 * 1280)
        a(f'''
        v_min_u32 v16, 53, v2
        v_mul_u32_u24 v16, 1280, v16
        s_mul_i32 s91, s6, {108*1280}
        s_lshl_b32 s92, s4, 7
        s_add_u32 s92, s92, s91
        s_lshl_b32 s93, s4, 6
        s_add_u32 s93, s93, 1024
        s_add_u32 s93, s93, s91
        ''')
        self.lds_wait(C_PROGW, 1, sleep=4)
        self.pfld(16, 's[68:71]', 's92')
        a(f's_add_u32 s92, s92, {54*1280}\ns_waitcnt vmcnt(0)')
        self.pfld(16, 's[68:71]', 's92')
        a(f'''
        s_and_b32 s92, s4, 5
        s_cmp_lg_u32 s92, 0
        s_cbranch_scc1 L_pl_done{sfx}
        s_waitcnt vmcnt(0)
        ''')
        self.pfld(16, 's[68:71]', 's93')
        a(f's_add_u32 s93, s93, {54*1280}\ns_waitcnt vmcnt(0)')
        self.pfld(16, 's[68:71]', 's93')
        a(f's_branch L_pl_done{sfx}\nL_pl1{sfx}:')
        self.srd(64, 28, 640 * 3456); self.srd(68, 30, 640 * 3456)
        a(f'''
        s_mul_i32 s92, s4, 3
        s_mov_b32 s91, s92
        s_mov_b32 s93, s92
        s_cmp_eq_u32 s4, 4
        s_cselect_b32 s91, 24, s91
        s_cselect_b32 s93, 25, s93
        s_cmp_eq_u32 s4, 6
        s_cselect_b32 s91, 26, s91
        v_and_b32 v17, 7, v2
        v_min_u32 v18, 2, v17
        v_add_u32 v18, s92, v18
        v_mov_b32 v19, s91
        v_cmp_eq_u32 vcc, 3, v17
        v_cndmask_b32 v18, v18, v19, vcc
        v_mov_b32 v19, s93
        v_cmp_eq_u32 vcc, 4, v17
        v_cndmask_b32 v18, v18, v19, vcc
        v_lshlrev_b32 v17, 7, v18
        v_lshrrev_b32 v16, 3, v2
        v_mul_u32_u24 v18, 3456, v16
        v_add_u32 v18, v18, v17
        s_mul_i32 s92, s6, 5
        s_add_u32 s92, s92, s3
        s_sub_u32 s92, s92, 1
        s_mul_i32 s92, s92, {8*3456}
        ''')
        self.lds_wait(C_PROGW, 1, sleep=4)
        self.pfld(18, 's[64:67]', 's92'); self.pfld(18, 's[68:71]', 's92')
        a(f's_cmp_eq_u32 s3, 3\ns_cbranch_scc1 L_pl_done{sfx}\ns_add_u32 s92, s92, {24*3456}\ns_waitcnt vmcnt(0)')
        self.pfld(18, 's[64:67]', 's92'); self.pfld(18, 's[68:71]', 's92')
        a(f'L_pl_done{sfx}:')

    def gwait(self):
        if not self.gthr: return
        a = self.a
        nm = a.label('gw')
        a(f'''
        v_min_u32 v20, {self.gthr - 1}, v2
        v_mul_u32_u24 v20, 37, v20
        s_add_u32 s57, s2, 37
        v_add_u32 v20, s57, v20
        v_and_b32 v20, 255, v20
        v_lshlrev_b32 v20, 7, v20
        s_mov_b32 s56, {WS_F}
        s_waitcnt vmcnt(0)
        ''')
        self.tag_from(167)
        self.poll(nm, ['buffer_load_dword v21, v20, s[44:47], s56 offen sc1'], [21, 21], 2, tagged=True, lanemask=True)

    def prefetch_late2(self):
        a = self.a
        self.cur_nt = self.nt('f')
        a(f'''
        s_sub_u32 s90, s5, 4
        s_cmp_lt_u32 s5, 2
        s_cselect_b32 s90, s5, s90       ; u<2 -> u ; u in [6,19) -> u-4 (2..14)
        s_cmp_eq_u32 s5, 30
        s_cselect_b32 s90, 15, s90
        s_cselect_b32 s91, 0, s6
        s_cmp_lt_u32 s91, 16
        s_cselect_b32 s91, 1, 0
        s_cmp_eq_u32 s5, 30
        s_cselect_b32 s91, 0, s91
        s_cmp_lg_u32 s91, 0
        s_cbranch_scc1 L_ctrl_fin
        s_cmp_eq_u32 s3, 0
        s_cbranch_scc1 L_ctrl_fin
        ''')
        self.srd(64, 28, 640 * 3456); self.srd(68, 30, 640 * 3456)
        a(f'''
        s_mul_i32 s92, s4, 3
        s_mov_b32 s91, s92
        s_mov_b32 s93, s92
        s_cmp_eq_u32 s4, 4
        s_cselect_b32 s91, 24, s91
        s_cselect_b32 s93, 25, s93
        s_cmp_eq_u32 s4, 6
        s_cselect_b32 s91, 26, s91
        v_and_b32 v17, 7, v2
        v_min_u32 v18, 2, v17
        v_add_u32 v18, s92, v18
        v_mov_b32 v19, s91
        v_cmp_eq_u32 vcc, 3, v17
        v_cndmask_b32 v18, v18, v19, vcc
        v_mov_b32 v19, s93
        v_cmp_eq_u32 vcc, 4, v17
        v_cndmask_b32 v18, v18, v19, vcc
        v_lshlrev_b32 v17, 7, v18
        v_lshrrev_b32 v16, 3, v2
        v_mul_u32_u24 v18, 3456, v16
        v_add_u32 v18, v18, v17
        s_lshr_b32 s92, s90, 2
        s_mul_i32 s92, s92, 160
        s_and_b32 s91, s90, 3
        s_mul_i32 s91, s91, 24
        s_add_u32 s92, s92, s91
        s_lshl_b32 s91, s3, 3
        s_add_u32 s92, s92, s91
        s_add_u32 s92, s92, 56           ; + 64 - 8
        s_mul_i32 s92, s92, 3456
        s_barrier
        {'s_barrier' if self.help2 == 1 else ''}
        ''')
        if self.help2 == 1: self.lds_wait(C_DONE, 5)
        self.gwait()
        self.pfld(18, 's[64:67]', 's92'); self.pfld(18, 's[68:71]', 's92')

    def dma640_setup(self, rot=False):
        a = self.a
        a(f'''
        v_lshrrev_b32 v16, 3, v2
        s_mul_i32 s85, s3, 160
        {'s_add_u32 s85, s85, s53' if rot else ''}
        v_add_u32 v16, s85, v16
        v_mul_lo_u32 v16, s52, v16
        v_and_b32 v17, 3, v2
        v_lshl_add_u32 v16, v17, 4, v16
        v_mov_b32 v17, 0
        v_mov_b32 v18, s48
        v_mov_b32 v19, s49
        v_mov_b32 v20, s50
        v_mov_b32 v21, s51
        v_and_b32 v22, 4, v2
        v_cmp_ne_u32 vcc, 0, v22
        v_cndmask_b32 v18, v18, v20, vcc
        v_cndmask_b32 v19, v19, v21, vcc
        v_lshl_add_u64 v[4:5], v[16:17], 0, v[18:19]
        s_lshl_b32 s54, s52, 3
        s_mov_b32 s55, 0
        ''')
    def dma640_issue(self, lo, hi, WD=99, rot=False):
        a = self.a
        for n in range(lo, hi):
            a(f's_add_u32 m0, s87, {LW + 1024*n}')
            if n >= WD: a(f's_waitcnt vmcnt({WD-1})')
            a(f'global_load_lds_dwordx4 v[4:5], off {self.cur_nt}')
            if n < 19: a(f'v_lshl_add_u64 v[4:5], v[4:5], 0, {"s[96:97]" if rot and n == 7 else "s[92:93]" if rot and n == 3 and self.help2 else "s[54:55]"}')
    def dma640(self, WD):
        self.dma640_setup(); self.dma640_issue(0, 20, WD)

    def wfrags640(self, younger=None):
        a = self.a
        for n in range(5):
            if younger is not None: a(f's_waitcnt vmcnt({younger + 4 * (4 - n)})')
            for T in range(4):
                b = 40 + 16 * n + 4 * T
                a(f'ds_read_b64_tr_b16 v[{b}:{b+1}], v9 offset:{LW + 4096*n + 32*T}')
                a(f'ds_read_b64_tr_b16 v[{b+2}:{b+3}], v9 offset:{LW + 4096*n + 32*T + 512}')
            a('s_waitcnt lgkmcnt(0)')

    def mfma640(self, skip, extra=()):
        a = self.a
        def mf(T, n):
            d = 16 + 4 * T; b = 40 + 16 * n + 4 * T
            a(f'v_mfma_f32_16x16x32_bf16 v[{d}:{d+3}], v[{b}:{b+3}], v[{120+4*n}:{123+4*n}], {"0" if n == 0 else "v[%d:%d]" % (d, d+3)}')
        def wr(T): a(f'ds_write_b128 v10, v[{16+4*T}:{19+4*T}] offset:{LW + 1024*T}')
        if self.mo == 0:
            for T in range(4):
                for n in range(5): mf(T, n)
                if T >= 2: wr(T - 2)
            wr(2); wr(3)
        elif self.mo == 1:
            for n in range(5):
                for T in range(4): mf(T, n)
            for T in range(4): wr(T)
        else:
            for n in range(5):
                for T in (0, 1): mf(T, n)
            for n in range(5):
                for T in (2, 3): mf(T, n)
                if n >= 3: wr(n - 3)
            wr(2); wr(3)
        reads = []
        for w in range(4):
            reads.append(f'ds_read_b128 v[{40+4*w}:{43+4*w}], v11 offset:{LW + 20480*w}')
            reads.append(f'ds_read_b128 v[{56+4*w}:{59+4*w}], v11 offset:{LW + 20480*w + 2048}')
        self.arrive2(C_A, 3, skip, reads + list(extra))

    def red640(self):
        self.a('s_waitcnt lgkmcnt(0)')
        self.sum_partials(40, [40, 44, 48, 52]); self.sum_partials(56, [56, 60, 64, 68])

    def silu(self, ns=range(5)):
        a = self.a
        a(f's_mov_b32 s85, {LOG2E | 0x80000000}')
        for n in ns:
            b = 120 + 4 * n
            for i in range(4): self.unpack(16 + 2 * i, b + i)
            for i in range(8): a(f'v_mul_f32 v{24+i}, s85, v{16+i}')
            for i in range(8): a(f'v_exp_f32 v{24+i}, v{24+i}')
            for i in range(8): a(f'v_add_f32 v{24+i}, 1.0, v{24+i}')
            for i in range(8): a(f'v_rcp_f32 v{24+i}, v{24+i}')
            for i in range(8): a(f'v_mul_f32 v{16+i}, v{16+i}, v{24+i}')
            for i in range(4): a(f'v_cvt_pk_bf16_f32 v{b+i}, v{16+2*i}, v{17+2*i}')

    def add64(self, d, base, off):
        self.a(f's_add_u32 s{d}, s{base}, {off}\ns_addc_u32 s{d+1}, s{base+1}, 0')

    def control(self):
        a = self.a
        CL = '; ' if 'c' in self.abl else ''
        a('L_control:\ns_setprio 3')
        self.common2()
        a('v_add_u32 v14, v7, v13\nv_mov_b32 v16, 0\nv_mov_b32 v17, 0\nv_mov_b32 v18, 0\nv_mov_b32 v19, 0\nds_write_b128 v14, v[16:19]')
        self.decode()
        a('s_waitcnt lgkmcnt(0)\ns_barrier')
        self.srd(44, 42, WS_SIZE)
        if self.stamp_on: a('v_writelane_b32 v15, s98, 13')
        self.cur_cls = -1
        self.stamp(0)
        self.cur_cls = 99
        if 'r' in self.abl: a('s_branch L_ctrl_fin')
        if self.tlbw:
            a(f'''
            s_cmp_lg_u32 s3, 3
            s_cbranch_scc1 L_notlb
            v_mov_b32 v3, 0
            s_lshl_b32 s85, s2, 2
            s_add_u32 s85, s85, 3
            s_lshl_b32 s85, s85, 18
            s_add_u32 s56, s20, s85
            s_addc_u32 s57, s21, 0
            s_mul_i32 s85, s14, 163840
            s_add_u32 s58, s24, s85
            s_addc_u32 s59, s25, 0
            v_mov_b32 v4, 163836
            s_mov_b64 exec, 1
            global_load_dword v162, v3, s[56:57]
            global_load_dword v162, v3, s[58:59]
            global_load_dword v162, v4, s[58:59]
            global_load_dword v162, v3, s[38:39]
            s_mov_b64 exec, -1
            L_notlb:
            ''')
        if self.pf: self.prefetch()
        if self.pfb:
            a(f's_cmp_eq_u32 s7, {R_G1}\ns_cbranch_scc1 L_pb_done')
            self.prefetch_b('')
        if self.dry:
            a(f'''
            s_cmp_lg_u32 s3, 1
            s_cbranch_scc1 L_dry_done
            s_cmp_eq_u32 s7, {R_G1}
            s_cbranch_scc1 L_dry_done
            v_mov_b32 v4, 0
            v_mov_b32 v5, 0
            v_mov_b32 v35, 0
            s_mov_b64 exec, 0
            s_branch L_tail_dry
            L_dry_ret:
            s_waitcnt lgkmcnt(0)
            s_mov_b64 exec, -1
            L_dry_done:
            ''')
        a(f'''
        v_mov_b32 v3, 0
        buffer_load_dword v167, v3, s[44:47], 0 offen sc1
        s_mul_i32 s87, s3, 20480
        v_lshrrev_b32 v16, 4, v2         ; s
        v_bfe_u32 v17, v2, 2, 2          ; r4
        v_and_b32 v18, 3, v2             ; c
        v_lshl_add_u32 v19, v16, 3, v17  ; 8s+r4
        v_lshlrev_b32 v9, 7, v19
        v_lshl_add_u32 v9, v18, 3, v9
        v_add_u32 v9, s87, v9
        v_add_u32 v10, s87, v7
        v_and_b32 v17, 7, v2             ; b
        v_bfe_u32 v18, v2, 3, 1          ; t
        v_lshlrev_b32 v11, 8, v16
        v_lshl_add_u32 v11, v17, 4, v11
        v_lshl_add_u32 v11, v18, 10, v11
        v_mul_u32_u24 v19, 1280, v17
        v_lshl_add_u32 v6, v16, 4, v19
        v_lshlrev_b32 v8, 5, v18
        v_lshl_add_u32 v8, v16, 3, v8    ; (16t+4s')*2 bytes
        v_lshlrev_b32 v12, 2, v2         ; lane*4
        s_cmp_eq_u32 s7, {R_Q}
        s_cbranch_scc1 L_role_q
        s_cmp_eq_u32 s7, 0
        s_cbranch_scc1 L_share
        s_cmp_eq_u32 s7, {R_FFN}
        s_cbranch_scc1 L_share
        s_cmp_eq_u32 s7, {R_DOWN}
        s_cbranch_scc1 L_share
        s_cmp_eq_u32 s7, {R_RED}
        s_cbranch_scc1 L_share
        ''')
        self.cur_nt = self.nt('m')
        a(f'''
        s_movk_i32 s52, 7680
        s_cmp_eq_u32 s7, {R_G1}
        s_cbranch_scc1 L_role_g1
        ''')
        if 'm' in self.abl or 'M' in self.abl: a('s_branch L_ctrl_fin')
        self.srd(56, 34, 10240)
        a('s_mul_i32 s85, s3, 320')
        for n in range(5):
            a(f'buffer_load_dwordx4 v[{120+4*n}:{123+4*n}], v6, s[56:59], s85 offen offset:{64*n}')
        a(f'''
        s_lshl_b32 s9, s8, 7
        s_add_u32 s9, s9, 2560
        s_add_u32 s48, s36, s9
        s_addc_u32 s49, s37, 0
        s_add_u32 s50, s48, 64
        s_addc_u32 s51, s49, 0
        s_waitcnt vmcnt(0)
        ''')
        self.silu()
        if self.pfb: self.lds_wait(C_PF2, 1, sleep=2)
        self.dma640(self.WDM)
        a('s_waitcnt vmcnt(0)')
        self.stamp(2)
        self.wfrags640()
        self.mfma640('L_ctrl_end')
        a(f'''
        v_and_b32 v22, 7, v2
        v_mul_u32_u24 v22, 5120, v22
        v_add_u32 v22, v22, v8
        s_lshl_b32 s90, s8, 7
        s_add_u32 s90, s90, {WS_MODO}
        ''')
        self.red640()
        self.pack4(24, 40); self.pack4(26, 56)
        self.sanitize([24, 25, 26, 27])
        self.lds_wait(C_QOK, 1, sleep=8)
        a(f'''
        buffer_store_dwordx2 v[24:25], v22, s[44:47], s90 offen sc1
        buffer_store_dwordx2 v[26:27], v22, s[44:47], s90 offen offset:64 sc1
        s_branch L_ctrl_end
        L_role_g1:
        s_lshl_b32 s9, s8, 6
        s_add_u32 s48, s36, s9
        s_addc_u32 s49, s37, 0
        s_add_u32 s50, s48, 1280
        s_addc_u32 s51, s49, 0
        v_add_u32 v34, v19, v8
        ''')
        self.dma640_setup()
        if self.cxfirst: self.lds_wait(C_CX, 8)
        self.stamp(6)
        self.dma640_issue(0, 20)
        self.srd(60, 16, 10240)
        a(f'''
        buffer_load_dwordx2 v[150:151], v34, s[60:63], s9 offen
        s_lshl_b32 s85, s8, 2
        s_add_u32 s85, s85, s3
        s_lshl_b32 s85, s85, 11
        s_add_u32 s85, s85, {SB2}
        v_mov_b32 v152, -1
        v_mov_b32 v153, -1
        v_mov_b32 v154, -1
        v_mov_b32 v155, -1
        {CL}buffer_store_dwordx4 v[152:155], v7, s[44:47], s85 offen sc1
        {CL}buffer_store_dwordx4 v[152:155], v7, s[44:47], s85 offen offset:1024 sc1
        v_and_b32 v16, 7, v2
        v_mul_u32_u24 v16, {ACTS}, v16
        v_lshrrev_b32 v17, 4, v2
        v_lshl_add_u32 v16, v17, 4, v16
        s_mul_i32 s85, s3, 320
        s_add_u32 s85, s85, {L_ACT}
        v_add_u32 v35, s85, v16
        ''')
        self.signal(C_GO)
        self.stamp(1)
        self.lds_wait(C_ACT, 8)
        for n in range(5): a(f'ds_read_b128 v[{120+4*n}:{123+4*n}], v35 offset:{64*n}')
        self.stamp(3)
        self.wfrags640(younger=3)
        self.tag_from(167)
        a('s_waitcnt vmcnt(0)')
        self.stamp(2)
        self.mfma640('L_ctrl_end')
        a(f'''
        v_and_b32 v22, 7, v2
        v_lshl_add_u32 v23, v22, 3, v13
        ds_read_b64 v[36:37], v23 offset:{L_STAT}
        ''')
        self.red640()
        self.pack4(24, 40); self.pack4(26, 56)
        self.unpack4(56, 26)
        a('v_pk_add_f32 v[56:57], v[56:57], 1.0 op_sel_hi:[1,0]\nv_pk_add_f32 v[58:59], v[58:59], 1.0 op_sel_hi:[1,0]')
        self.round4(56, 26)
        self.unpack4(40, 24)
        self.unpack4(44, 150)
        for i in range(4): a(f'v_sub_f32 v{44+i}, v{44+i}, v36')
        self.round4(44, 28)
        for i in range(4): a(f'v_mul_f32 v{44+i}, v{44+i}, v37')
        self.round4(44, 28)
        a('v_pk_mul_f32 v[44:45], v[44:45], v[56:57]\nv_pk_mul_f32 v[46:47], v[46:47], v[58:59]')
        self.round4(44, 28)
        a('v_pk_add_f32 v[44:45], v[44:45], v[40:41]\nv_pk_add_f32 v[46:47], v[46:47], v[42:43]')
        a(f'''
        v_cvt_pk_bf16_f32 v28, v44, v45
        v_cvt_pk_bf16_f32 v30, v46, v47
        v_mov_b32 v29, s94
        v_mov_b32 v31, s94
        v_lshlrev_b32 v22, 4, v22               ; b*16
        v_lshl_add_u32 v22, v8, 4, v22          ; + (16t+4s')*32 = t*512 + s'*128
        s_lshl_b32 s85, s8, 10
        s_add_u32 s85, s85, {WS_H1}
        buffer_store_dwordx4 v[28:31], v22, s[44:47], s85 offen sc1
        s_branch L_ctrl_end
        ''')
        self.cur_nt = self.nt('q')
        a(f'''
        L_role_q:
        {'s_branch L_ctrl_fin' if 'q' in self.abl else ''}
        s_lshl_b32 s9, s8, 7
        s_add_u32 s48, s22, s9
        s_addc_u32 s49, s23, 0
        s_add_u32 s50, s48, 64
        s_addc_u32 s51, s49, 0
        s_movk_i32 s52, 8192
        ''')
        if self.pfb: self.lds_wait(C_PF, 1, sleep=2)
        self.dma640(99)
        a(f'''
        s_and_b32 s85, s8, 1
        s_lshl_b32 s85, s85, 2
        s_add_u32 s85, s85, s3
        s_lshl_b32 s85, s85, 5
        s_lshr_b32 s86, s8, 1
        s_add_u32 s85, s85, s86
        s_mul_i32 s85, s85, 2560
        s_add_u32 s85, s85, {WS_P}
        v_mov_b32 v152, -1
        v_mov_b32 v153, -1
        v_mov_b32 v154, -1
        v_mov_b32 v155, -1
        v_lshlrev_b32 v19, 3, v2
        {CL}buffer_store_dwordx4 v[152:155], v7, s[44:47], s85 offen sc1
        {CL}buffer_store_dwordx4 v[152:155], v7, s[44:47], s85 offen offset:1024 sc1
        {CL}buffer_store_dwordx2 v[152:153], v19, s[44:47], s85 offen offset:2048 sc1
        ''')
        self.signal(C_GO)
        a('s_waitcnt vmcnt(0)')
        self.stamp(2)
        self.tag_from(167)
        self.wfrags640()
        a(f'''
        s_mul_i32 s90, s3, 5120
        s_add_u32 s90, s90, {WS_H1}
        s_add_u32 s91, s90, 4096
        ''')
        self.stamp(3)
        if self.h1probe:
            a('v_min_u32 v34, 4, v2\nv_lshlrev_b32 v34, 10, v34')
            self.poll('h1p', ['buffer_load_dword v35, v34, s[44:47], s90 offen offset:1020 sc1'], [35, 35], 2, tagged=True)
        loads = [f'buffer_load_dwordx4 v[{120+4*n}:{123+4*n}], v7, s[44:47], s{90 if n < 4 else 91} offen offset:{1024*(n%4)} sc1' for n in range(5)]
        self.poll('h1', loads, [121 + 2 * i for i in range(10)], 4, tagged=True)
        self.stamp(4)
        for n in range(5):
            b = 120 + 4 * n
            a(f'v_mov_b32_dpp v{b+3}, v{b+2} row_ror:8 row_mask:0xf bank_mask:0xf')
            a(f'v_mov_b32 v{b+1}, v{b+2}')
            a(f'v_mov_b32_dpp v{b+2}, v{b} row_ror:8 row_mask:0xf bank_mask:0xf')
        self.mfma640('L_ctrl_end')
        a(f'''
        v_and_b32 v22, 7, v2
        v_lshlrev_b32 v22, 14, v22              ; b*32*512
        v_lshl_add_u32 v22, v8, 1, v22          ; + col*4
        s_lshl_b32 s85, s8, 8                   ; h*512 + half*256
        s_add_u32 s85, s85, {WS_Q}
        v_mov_b32 v29, s94
        v_mov_b32 v31, s94
        v_mov_b32 v33, s94
        v_mov_b32 v35, s94
        ''')
        self.red640()
        a(f'''
        v_cvt_pk_bf16_f32 v28, v40, v41
        v_cvt_pk_bf16_f32 v30, v42, v43
        v_cvt_pk_bf16_f32 v32, v56, v57
        v_cvt_pk_bf16_f32 v34, v58, v59
        buffer_store_dwordx4 v[28:31], v22, s[44:47], s85 offen sc1
        buffer_store_dwordx4 v[32:35], v22, s[44:47], s85 offen offset:128 sc1
        s_branch L_ctrl_end
        ''')
        self.cur_nt = self.nt('f')
        a(f'''
        L_role_ffn:
        s_lshl_b32 s9, s8, 6
        s_add_u32 s48, s28, s9
        s_addc_u32 s49, s29, 0
        s_add_u32 s50, s30, s9
        s_addc_u32 s51, s31, 0
        s_movk_i32 s52, 3456
        ''')
        if self.help2:
            a(f'''
            s_movk_i32 s96, {8*3456}
            s_mov_b32 s92, s96
            s_mov_b32 s93, 0
            s_bitcmp1_b32 s8, 0
            s_cselect_b32 s53, 32, 0
            s_cselect_b32 s92, {(-56*3456) & 0xffffffff}, s92
            s_cselect_b32 s93, -1, 0
            s_cselect_b32 s96, {40*3456}, s96
            s_mov_b32 s97, 0
            s_cselect_b32 s98, 64, 0
            s_cselect_b32 s99, -64, 0
            ''')
        else:
            a(f'''
            s_bitcmp1_b32 s8, 0
            {'' if self.rotm else 's_cmp_eq_u32 s8, 999'}
            s_cselect_b32 s53, 96, 0
            s_cselect_b32 s96, {(-152*3456) & 0xffffffff}, 0
            s_cselect_b32 s97, -1, 0
            s_cselect_b32 s98, 192, 0
            s_cselect_b32 s99, -128, 0
            s_cbranch_scc1 L_ffn_r
            s_movk_i32 s96, {8*3456}
            L_ffn_r:
            ''')
        self.dma640_setup(rot=True)
        self.dma640_issue(0, self.nEf, 1, rot=True)
        if self.nMf:
            self.lds_wait(C_VI, 8, sleep=2)
            self.dma640_issue(self.nEf, self.nEf + self.nMf, rot=True)
        if self.bar: a('s_barrier\ns_barrier')
        self.lds_wait(C_DONE, 5, sleep=0 if self.bar else 2)
        self.gwait()
        self.dma640_issue(self.nEf + self.nMf, 20, rot=True)
        self.wfrags640(younger=0)
        self.stamp(2)
        a(f'''
        s_mul_i32 s90, s3, 320
        s_add_u32 s90, s90, {WS_H2}
        v_lshrrev_b32 v33, 3, v2                ; row
        v_and_b32 v35, 7, v2                    ; piece
        v_mul_u32_u24 v6, 1280, v33
        v_and_b32 v34, 3, v35
        v_lshl_add_u32 v34, v34, 4, v6
        v_lshl_add_u32 v6, v35, 4, v6
        v_mul_u32_u24 v3, 400, v33
        v_lshl_add_u32 v3, v35, 4, v3
        s_add_u32 s85, s87, {LW + 8192}
        v_add_u32 v3, s85, v3
        v_mul_u32_u24 v4, 400, v35
        v_lshrrev_b32 v33, 4, v2
        v_lshl_add_u32 v4, v33, 4, v4
        v_add_u32 v4, s85, v4
        v_mov_b32 v12, v4
        v_add_u32 v5, s99, v4
        v_add_u32 v4, s98, v4
        v_and_b32 v32, 7, v2
        v_lshlrev_b32 v32, 4, v32
        v_bfe_u32 v33, v2, 3, 1
        v_lshl_add_u32 v32, v33, 8, v32
        v_bfe_u32 v33, v2, 5, 1
        v_lshl_add_u32 v32, v33, 7, v32
        s_lshl_b32 s91, s8, 9
        s_add_u32 s91, s91, {WS_HID}
        ''')
        a('s_waitcnt lgkmcnt(0)')
        self.stamp(3)
        loads = ['buffer_load_dwordx4 v[140:143], v6, s[44:47], s90 offen sc1',
                 'buffer_load_dwordx4 v[144:147], v6, s[44:47], s90 offen offset:128 sc1',
                 'buffer_load_dwordx4 v[148:151], v34, s[44:47], s90 offen offset:256 sc1']
        self.poll('h2', loads, list(range(140, 152)), self.psleep, lanemask=True, pipe=self.pipe)
        self.stamp(4)
        for n in range(3): a(f'ds_write_b128 v3, v[{140+4*n}:{143+4*n}] offset:{128*n}')
        for n in range(5): a(f'ds_read_b128 v[{120+4*n}:{123+4*n}], v{([4, 5, 12, 12, 12] if self.help2 else [4, 4, 5, 5, 5])[n]} offset:{64*n}')
        a('s_waitcnt lgkmcnt(0)')
        self.mfma640('L_ctrl_end')
        self.red640()
        self.round4(40, 28); self.round4(56, 30)
        for i in range(4):
            a(f'v_cmp_lt_f32 vcc, 0, v{40+i}\nv_cndmask_b32 v{20+i}, 0, 1.0, vcc')
        a('v_pk_mul_f32 v[40:41], v[40:41], v[20:21]\nv_pk_mul_f32 v[42:43], v[42:43], v[22:23]')
        a('v_pk_mul_f32 v[40:41], v[40:41], v[56:57]\nv_pk_mul_f32 v[42:43], v[42:43], v[58:59]')
        self.pack4(28, 40); self.sanitize([28, 29])
        a(f'''
        v_mov_b32 v30, v28
        v_mov_b32 v31, v29
        v_permlane16_swap_b32 v28, v30
        v_permlane16_swap_b32 v29, v31
        s_mov_b32 exec_lo, 0xffff
        s_mov_b32 exec_hi, 0xffff
        buffer_store_dwordx4 v[28:31], v32, s[44:47], s91 offen sc1
        s_mov_b64 exec, -1
        ''')
        if self.stamp_on and not self.light:
            self.stamp(7); a('s_waitcnt vmcnt(0)'); self.stamp(8)
        a('s_branch L_ctrl_end')
        a('L_role_down:')
        self.srd(72, 32, 1728 * 1280); self.srd(80, 38, 10240)
        a(f'''
        s_add_u32 s76, s42, {WS_HID}
        s_addc_u32 s77, s43, 0
        s_mov_b32 s78, {27*1024}
        s_mov_b32 s79, 0x20000
        v_lshrrev_b32 v16, 1, v2
        v_mul_u32_u24 v4, 1280, v16
        v_and_b32 v16, 1, v2
        v_lshl_add_u32 v4, v16, 4, v4
        s_mul_i32 s85, s3, {7*64*1280}
        s_lshl_b32 s9, s8, 5
        s_add_u32 s85, s85, s9
        s_mul_i32 s87, s3, 14336
        ''')
        a(f's_and_b32 s48, s8, {3 if self.rotm else 0}\ns_lshl_b32 s48, s48, 11')
        for n in range(1, 7):
            a(f's_add_u32 s{48+n}, s{47+n}, 1024\ns_cmp_ge_u32 s{48+n}, 7168\ns_cselect_b32 s{48+n}, 0, s{48+n}')
        if self.otouch: a('v_mov_b32 v16, 0\nbuffer_load_dword v162, v16, s[80:83], 0 offen')
        for n in range(14):
            if n == self.nEd and self.nMd: self.lds_wait(C_VI, 8, sleep=2)
            if n == self.nEd + self.nMd:
                if self.bar: a('s_barrier\ns_barrier')
                self.lds_wait(C_DONE, 5, sleep=0 if self.bar else 2)
                self.gwait()
                if self.ddelay: a(f's_sleep {self.ddelay}')
            if n % 2 == 0: a(f's_mul_i32 s55, s{48+n//2}, 80\ns_add_u32 s55, s55, s85')
            else: a(f's_add_u32 s55, s55, {32*1280}')
            a(f's_add_u32 m0, s87, {LW + 1024*n}')
            if n < self.nEd: a(f's_waitcnt vmcnt(0)')
            a(f'buffer_load_dwordx4 v4, s[72:75], s55 offen {self.nt("f")} lds')
        a(f'''
        v_lshrrev_b32 v16, 4, v2         ; s
        v_bfe_u32 v17, v2, 2, 2          ; r4
        v_lshl_add_u32 v19, v16, 3, v17
        v_lshlrev_b32 v9, 5, v19
        v_bfe_u32 v17, v2, 1, 1
        v_lshl_add_u32 v9, v17, 10, v9
        v_and_b32 v17, 1, v2
        v_lshl_add_u32 v9, v17, 3, v9
        v_add_u32 v9, s87, v9
        v_add_u32 v10, s87, v7
        v_and_b32 v17, 7, v2             ; b
        v_bfe_u32 v18, v2, 3, 1          ; a / half
        v_lshlrev_b32 v3, 7, v16
        v_lshl_add_u32 v3, v17, 4, v3
        v_lshl_add_u32 v3, v18, 9, v3
        s_mul_i32 s86, s3, 7168
        v_add_u32 v3, s86, v3
        v_and_b32 v16, 1, v16            ; s'
        v_lshlrev_b32 v11, 8, v16
        v_lshl_add_u32 v11, v17, 4, v11
        v_lshl_add_u32 v11, v18, 10, v11
        v_lshlrev_b32 v8, 4, v18
        v_lshl_add_u32 v8, v16, 3, v8    ; (8a+4s')*2
        v_mul_u32_u24 v5, 5120, v17
        v_add_u32 v5, v5, v8
        v_mul_u32_u24 v6, 1280, v17
        v_add_u32 v6, v6, v8
        s_add_u32 s90, s9, {WS_MODO + 3840}
        s_add_u32 s91, s9, {WS_X1}
        s_movk_i32 s92, 4096
        ''')
        for n in range(7):
            a(f's_waitcnt vmcnt({12 - 2*n})')
            for ac in range(2):
                b = 40 + 8 * n + 4 * ac
                a(f'ds_read_b64_tr_b16 v[{b}:{b+1}], v9 offset:{LW + 2048*n + 16*ac}')
                a(f'ds_read_b64_tr_b16 v[{b+2}:{b+3}], v9 offset:{LW + 2048*n + 16*ac + 128}')
            if n % 2: a('s_waitcnt lgkmcnt(0)')
        self.stamp(2)
        self.tag_from(167)
        a('s_waitcnt lgkmcnt(0)')
        self.poll('gb', ['buffer_load_dwordx2 v[32:33], v5, s[44:47], s90 offen sc1'], [32, 33], 4)
        self.unpack4(140, 32)
        self.stamp(3)
        self.poll('x1', ['buffer_load_dwordx2 v[32:33], v6, s[44:47], s91 offen sc1'], [32, 33], 1, lanemask=True)
        self.unpack4(144, 32)
        self.stamp(5)
        if self.hdelay: a(f's_sleep {self.hdelay}')
        for i in range(8): a(f'v_mov_b32 v{16+i}, 0')
        def hld(n): return f'buffer_load_dwordx4 v[{104+4*n}:{107+4*n}], v3, s[76:79], s{48+n} offen sc1'
        if self.trig:
            a(f'''
            s_mov_b32 s89, {SPIN_LIMIT}
            v_lshlrev_b32 v34, {9 + self.trsh}, v2
            v_add_u32 v34, s86, v34
            s_mov_b64 exec, {(1 << (12 >> self.trsh)) - 1}
            L_hd_trig:
            buffer_load_dword v35, v34, s[76:79], 0 offen offset:508 sc1
            s_sub_u32 s89, s89, 1
            s_cbranch_scc1 L_hd_go
            s_waitcnt vmcnt(0)
            v_cmp_ne_u32 vcc, -1, v35
            s_nop 1
            s_bcnt1_i32_b32 s85, vcc_lo
            s_cmp_lt_u32 s85, {self.trig}
            s_cbranch_scc1 L_hd_trig
            L_hd_go:
            s_mov_b64 exec, -1
            s_waitcnt vmcnt(0)
            ''')
            self.stamp(7)
        NH = 4 if 'h' in self.abl else 2 if 'H' in self.abl else 7
        a(f's_mov_b32 s90, {(1 << NH) - 1}\ns_mov_b32 s89, {SPIN_LIMIT}\nv_mov_b32 v34, 0')
        for n in range(NH): a(hld(n))
        a('L_hid_poll:')
        for n in range(NH):
            b = 104 + 4 * n
            a(f'''
            s_waitcnt vmcnt({NH-1})
            s_bitcmp1_b32 s90, {n}
            s_cbranch_scc0 L_hd_dm{n}
            v_max3_u32 v36, v{b}, v{b+1}, v{b+2}
            v_max_u32 v36, v36, v{b+3}
            v_cmp_eq_u32 vcc, -1, v36
            s_cbranch_vccz L_hd_ok{n}
            {hld(n)}
            s_branch L_hd_nx{n}
            L_hd_ok{n}:
            v_mfma_f32_16x16x32_bf16 v[16:19], v[{40+8*n}:{43+8*n}], v[{b}:{b+3}], v[16:19]
            v_mfma_f32_16x16x32_bf16 v[20:23], v[{44+8*n}:{47+8*n}], v[{b}:{b+3}], v[20:23]
            s_bitset0_b32 s90, {n}
            s_cmp_eq_u32 s90, 0
            s_cbranch_scc1 L_hid_ok
            L_hd_dm{n}:
            buffer_load_dword v35, v34, s[76:79], 0 offen
            L_hd_nx{n}:
            ''')
        a(f'''
        s_sub_u32 s89, s89, 1
        s_cbranch_scc0 L_hid_poll
        L_hid_ok:
        s_nop 7
        ''')
        self.stamp(4)
        if self.stamp_on and not self.light: a(f's_sub_u32 s96, {SPIN_LIMIT}, s89\nv_writelane_b32 v15, s96, 12')
        a(f'ds_write_b128 v10, v[16:19] offset:{LW}\nds_write_b128 v10, v[20:23] offset:{LW + 1024}')
        reads = []
        for w in range(4):
            reads.append(f'ds_read_b128 v[{40+8*w}:{43+8*w}], v11 offset:{LW + 14336*w}')
            reads.append(f'ds_read_b128 v[{44+8*w}:{47+8*w}], v11 offset:{LW + 14336*w + 640}')
        self.arrive2(C_A, 3, 'L_ctrl_end', reads)
        a('s_waitcnt lgkmcnt(0)')
        self.sum_partials(40, [40 + 4 * i for i in range(8)])
        self.round4(40, 28)
        a('v_pk_mul_f32 v[40:41], v[40:41], v[140:141]\nv_pk_mul_f32 v[42:43], v[42:43], v[142:143]')
        self.round4(40, 28)
        a('v_pk_add_f32 v[40:41], v[40:41], v[144:145]\nv_pk_add_f32 v[42:43], v[42:43], v[146:147]')
        self.pack4(28, 40)
        a(f'''
        s_mov_b32 exec_hi, 0
        buffer_store_dwordx2 v[28:29], v6, s[80:83], s9 offen {self.outf}
        s_cmp_lg_u32 s8, 0
        s_cbranch_scc1 L_noepoch
        s_mov_b64 exec, 1
        v_mov_b32 v20, 0
        v_mov_b32 v21, s94
        buffer_store_dword v21, v20, s[44:47], 0 offen sc1
        L_noepoch:
        s_mov_b64 exec, -1
        s_branch L_ctrl_end
        ''')
        a('L_role_red:')
        self.srd(60, 16, 10240)
        a(f'''
        v_lshlrev_b32 v8, 3, v2          ; lane*8
        s_mul_i32 s9, s8, 1280
        buffer_load_dwordx2 v[26:27], v8, s[60:63], s9 offen
        buffer_load_dwordx2 v[28:29], v8, s[60:63], s9 offen offset:512
        buffer_load_dword v30, v12, s[60:63], s9 offen offset:1024
        s_lshl_b32 s90, s8, 14
        s_lshl_b32 s85, s3, 12
        s_add_u32 s90, s90, s85
        s_add_u32 s90, s90, {WS_Q}
        s_waitcnt vmcnt(0)
        ''')
        self.tag_from(167)
        for i in range(5): self.unpack(120 + 2 * i, 26 + i)
        self.lds_wait(C_QOK, 1, sleep=8)
        loads = [f'buffer_load_dwordx4 v[{40+4*n}:{43+4*n}], v7, s[44:47], s90 offen offset:{1024*n} sc1' for n in range(4)]
        self.poll('qall', loads, [41 + 2 * i for i in range(8)], 8, tagged=True)
        a(f'''
        s_mul_i32 s90, s8, 5120
        s_add_u32 s90, s90, {WS_MODO}
        ''')
        loads = []
        for ch in range(3):
            b = 40 + 6 * ch
            loads += [f'buffer_load_dwordx2 v[{b}:{b+1}], v8, s[44:47], s90 offen offset:{1280*ch} sc1',
                      f'buffer_load_dwordx2 v[{b+2}:{b+3}], v8, s[44:47], s90 offen offset:{1280*ch + 512} sc1',
                      f'buffer_load_dword v{b+4}, v12, s[44:47], s90 offen offset:{1280*ch + 1024} sc1']
        self.poll('modo', loads, [40 + 6 * ch + i for ch in range(3) for i in range(5)], 8)
        for ch in range(3):
            for i in range(5): self.unpack(130 + 10 * ch + 2 * i, 40 + 6 * ch + i)
        for i in range(5):
            a(f'v_pk_add_f32 v[{150+2*i}:{151+2*i}], v[{150+2*i}:{151+2*i}], 1.0 op_sel_hi:[1,0]')
            a(f'v_cvt_pk_bf16_f32 v26, v{150+2*i}, v{151+2*i}')
            self.unpack(150 + 2 * i, 26)
        for i in range(10): a(f'v_mov_b32 v{16+i}, 0')
        a(f'''
        s_lshl_b32 s91, s8, 5
        s_lshl_b32 s85, s3, 3
        s_add_u32 s91, s91, s85
        s_mul_i32 s91, s91, 2560
        s_add_u32 s91, s91, {WS_P}
        s_mul_i32 s87, s3, 2560
        v_add_u32 v10, s87, v7
        v_add_u32 v11, s87, v8
        s_add_u32 s92, s9, {WS_H2}
        s_add_u32 s93, s9, {WS_X1}
        ''')
        self.stamp(2)
        self.lds_wait(C_PROG, 1, sleep=8)
        self.stamp(3)
        a(f'''
        s_mov_b32 s90, 0xff
        s_mov_b32 s89, {SPIN_LIMIT}
        v_and_b32 v34, 7, v2
        v_mul_u32_u24 v34, 2560, v34
        s_mov_b32 s86, 0
        L_p_poll:
        s_mov_b32 s95, s90
        s_cmp_lg_u32 s86, 0
        s_cbranch_scc1 L_p_fetch
        ds_read_b32 v14, v13 offset:{C_K2}
        s_waitcnt lgkmcnt(0)
        v_readfirstlane_b32 s88, v14
        s_cmp_ge_u32 s88, 8
        s_cselect_b32 s86, 1, 0
        s_cbranch_scc1 L_p_fetch
        s_sleep 4
        buffer_load_dword v35, v34, s[44:47], s91 offen offset:2556 sc1
        s_waitcnt vmcnt(0)
        v_cmp_ne_u32 vcc, -1, v35
        s_nop 1
        s_and_b32 s95, s90, vcc_lo
        s_cbranch_scc0 L_p_next
        L_p_fetch:
        s_bcnt1_i32_b32 s85, s90
        s_and_b32 s85, s85, s86
        s_bcnt1_i32_b32 s88, s90
        s_cmp_eq_u32 s88, s85
        s_cbranch_scc1 L_p_one
        ''')
        for g in range(8):
            b = 40 + 10 * g
            a(f'''
            s_bitcmp1_b32 s95, {g}
            s_cbranch_scc0 L_p_sk{g}
            s_add_u32 s85, s91, {2560*g}
            buffer_load_dwordx4 v[{b}:{b+3}], v7, s[44:47], s85 offen sc1
            buffer_load_dwordx4 v[{b+4}:{b+7}], v7, s[44:47], s85 offen offset:1024 sc1
            buffer_load_dwordx2 v[{b+8}:{b+9}], v8, s[44:47], s85 offen offset:2048 sc1
            L_p_sk{g}:
            ''')
        a('s_waitcnt vmcnt(0)')
        for g in range(8):
            b = 40 + 10 * g
            a(f'''
            s_bitcmp1_b32 s95, {g}
            s_cbranch_scc0 L_p_ck{g}
            v_max3_u32 v36, v{b}, v{b+1}, v{b+2}
            v_max3_u32 v37, v{b+3}, v{b+4}, v{b+5}
            v_max3_u32 v36, v36, v{b+6}, v{b+7}
            v_max3_u32 v37, v37, v{b+8}, v{b+9}
            v_max_u32 v36, v36, v37
            v_cmp_eq_u32 vcc, -1, v36
            s_cbranch_vccnz L_p_ck{g}
            s_bitset0_b32 s90, {g}
            ''')
            for i in range(5): a(f'v_pk_add_f32 v[{16+2*i}:{17+2*i}], v[{16+2*i}:{17+2*i}], v[{b+2*i}:{b+2*i+1}]')
            a(f'L_p_ck{g}:')
        a(f'''
        s_cmp_eq_u32 s90, 0
        s_cbranch_scc1 L_p_ok
        L_p_next:
        s_sub_u32 s89, s89, 1
        s_cbranch_scc0 L_p_poll
        s_branch L_p_ok
        L_p_one:
        s_ff1_i32_b32 s85, s90
        s_mul_i32 s85, s85, 2560
        s_add_u32 s85, s85, s91
        ''')
        one = ['buffer_load_dwordx4 v[110:113], v7, s[44:47], s85 offen sc1', 'buffer_load_dwordx4 v[114:117], v7, s[44:47], s85 offen offset:1024 sc1', 'buffer_load_dwordx2 v[118:119], v8, s[44:47], s85 offen offset:2048 sc1']
        if self.pipe:
            for l in one: a(l)
            a(f's_sleep {self.pipe}')
        if self.premerge:
            for k in range(3):
                a(f's_add_u32 s88, s3, {k+1}\ns_and_b32 s88, s88, 3\ns_mul_i32 s88, s88, 2560\nv_add_u32 v{100+2*k}, s88, v7\nv_add_u32 v{101+2*k}, s88, v8')
            a('s_mov_b32 s95, 0')
        a('L_p_one_l:')
        for l in one: a(l)
        a('s_sub_u32 s89, s89, 1\ns_cbranch_scc1 L_p_ok')
        if self.premerge:
            a(f'''
            s_cmp_lg_u32 s95, 0
            s_cbranch_scc1 L_p_one_w
            ds_read_b32 v14, v13 offset:{C_A}
            s_waitcnt lgkmcnt(0)
            v_readfirstlane_b32 s88, v14
            s_cmp_lg_u32 s88, 3
            s_cbranch_scc1 L_p_one_w
            s_mov_b32 s95, 1
            ''')
            for k in range(3):
                b = 40 + 10 * k
                a(f'ds_read_b128 v[{b}:{b+3}], v{100+2*k} offset:{LW}\nds_read_b128 v[{b+4}:{b+7}], v{100+2*k} offset:{LW + 1024}\nds_read_b64 v[{b+8}:{b+9}], v{101+2*k} offset:{LW + 2048}')
            a('s_waitcnt lgkmcnt(0)')
            for k in range(3):
                for i in range(5): a(f'v_pk_add_f32 v[{16+2*i}:{17+2*i}], v[{16+2*i}:{17+2*i}], v[{40+10*k+2*i}:{41+10*k+2*i}]')
            a('L_p_one_w:')
        a(f'''
        s_waitcnt vmcnt({3 if self.pipe else 0})
        v_max3_u32 v36, v110, v111, v112
        v_max3_u32 v37, v113, v114, v115
        v_max3_u32 v36, v36, v116, v117
        v_max3_u32 v37, v37, v118, v119
        v_max_u32 v36, v36, v37
        v_cmp_eq_u32 vcc, -1, v36
        s_cbranch_vccnz L_p_one_l
        ''')
        if self.premerge:
            a('s_cmp_eq_u32 s95, 0\ns_cbranch_scc1 L_p_one_n')
            for i in range(5): a(f'v_pk_add_f32 v[{40+2*i}:{41+2*i}], v[{16+2*i}:{17+2*i}], v[{110+2*i}:{111+2*i}]')
            self.stamp(4)
            a('s_branch L_red_epi\nL_p_one_n:')
        a(f'''
        v_pk_add_f32 v[16:17], v[16:17], v[110:111]
        v_pk_add_f32 v[18:19], v[18:19], v[112:113]
        v_pk_add_f32 v[20:21], v[20:21], v[114:115]
        v_pk_add_f32 v[22:23], v[22:23], v[116:117]
        v_pk_add_f32 v[24:25], v[24:25], v[118:119]
        L_p_ok:
        ''')
        self.stamp(4)
        a(f'''
        ds_write_b128 v10, v[16:19] offset:{LW}
        ds_write_b128 v10, v[20:23] offset:{LW + 1024}
        ds_write_b64 v11, v[24:25] offset:{LW + 2048}
        ''')
        reads = []
        for w in range(4):
            b = 40 + 10 * w
            reads.append(f'ds_read_b128 v[{b}:{b+3}], v7 offset:{LW + 2560*w}')
            reads.append(f'ds_read_b128 v[{b+4}:{b+7}], v7 offset:{LW + 2560*w + 1024}')
            reads.append(f'ds_read_b64 v[{b+8}:{b+9}], v8 offset:{LW + 2560*w + 2048}')
        self.arrive2(C_A, 3, 'L_ctrl_end', reads)
        a('s_waitcnt lgkmcnt(0)')
        U = 40
        def P(r, i): return f'v[{r+2*i}:{r+2*i+1}]'
        for i in range(5): a(f'v_pk_add_f32 {P(40,i)}, {P(40,i)}, {P(50,i)}')
        for i in range(5): a(f'v_pk_add_f32 {P(60,i)}, {P(60,i)}, {P(70,i)}')
        for i in range(5): a(f'v_pk_add_f32 {P(40,i)}, {P(40,i)}, {P(60,i)}')
        a('L_red_epi:')
        def pk():
            for i in range(5): a(f'v_cvt_pk_bf16_f32 v{26+i}, v{U+2*i}, v{U+2*i+1}')
        def rnd(): self.rnd1(range(U, U + 10))
        rnd()
        for i in range(5): a(f'v_pk_mul_f32 {P(U,i)}, {P(U,i)}, {P(130,i)}')
        rnd()
        for i in range(5): a(f'v_pk_add_f32 {P(U,i)}, {P(U,i)}, {P(120,i)}')
        rnd()
        def mid():
            for i in range(5): a(f'v_cvt_pk_bf16_f32 v{160+i}, v{U+2*i}, v{U+2*i+1}')
            for i in range(5): a(f'v_pk_add_f32 {P(U,i)}, {P(U,i)}, s[96:97] op_sel_hi:[1,0] neg_lo:[0,1] neg_hi:[0,1]')
            rnd()
        self.ln_stats1(U, 32, 96, 98, mid)
        for i in range(5): a(f'v_pk_mul_f32 {P(U,i)}, {P(U,i)}, s[98:99] op_sel_hi:[1,0]')
        rnd()
        for i in range(5): a(f'v_pk_mul_f32 {P(U,i)}, {P(U,i)}, {P(150,i)}')
        rnd()
        for i in range(5): a(f'v_pk_add_f32 {P(U,i)}, {P(U,i)}, {P(140,i)}')
        pk()
        self.sanitize(range(26, 31))
        a(f'''
        buffer_store_dwordx2 v[26:27], v8, s[44:47], s92 offen sc1
        buffer_store_dwordx2 v[28:29], v8, s[44:47], s92 offen offset:512 sc1
        buffer_store_dword v30, v12, s[44:47], s92 offen offset:1024 sc1
        ''')
        self.sanitize(range(160, 165))
        a(f'''
        buffer_store_dwordx2 v[160:161], v8, s[44:47], s93 offen sc1
        buffer_store_dwordx2 v[162:163], v8, s[44:47], s93 offen offset:512 sc1
        buffer_store_dword v164, v12, s[44:47], s93 offen offset:1024 sc1
        L_ctrl_end:
        ''')
        self.stamp(11)
        a(f's_cmp_eq_u32 s7, {R_DOWN}\ns_cbranch_scc1 L_ctrl_fin\ns_cmp_eq_u32 s7, {R_FFN}\ns_cbranch_scc1 L_ctrl_fin\ns_cmp_eq_u32 s7, {R_RED}\ns_cbranch_scc1 L_ctrl_fin')
        a('L_share:')
        if 't' in self.abl: a('s_branch L_ctrl_fin')
        if self.late: self.prefetch_late('e')
        a(f's_cmp_eq_u32 s7, {R_DOWN}\ns_cbranch_scc1 L_role_down\ns_cmp_eq_u32 s7, {R_FFN}\ns_cbranch_scc1 L_role_ffn\ns_cmp_eq_u32 s7, {R_RED}\ns_cbranch_scc1 L_role_red')
        if self.help2:
            assert self.bar
            self.prefetch_late2()
        a('L_ctrl_fin:')
        self.stamp_flush()
        self.diag_end()
        a('s_endpgm')

    def stream(self):
        a = self.a
        self.tail_code = []
        self.cur_cls = 0
        WK, WV = self.WK, self.WV
        NV = 12
        def wmap(n):
            if self.smf: return 2 * (n // 10) + (n & 1), (n % 10) // 2
            return n // 5, n % 5
        KV = lambda t: 40 + 4 * t
        assert self.rotw == 1 and self.WK0 >= 2
        a(f'''
        s_sub_u32 s15, s3, 4             ; sw
        s_lshl_b32 s85, s15, {10 if self.ilv else 15}
        v_add_u32 v1, s85, v7
        s_mul_i32 s91, s2, {self.rot}
        {'' if self.ilv else 's_add_u32 s91, s91, s15'}
        s_and_b32 s91, s91, 31
        s_lshl_b32 s91, s91, {13 if self.ilv else 10}          ; rotation
        s_lshl_b32 s85, s2, 2
        s_add_u32 s85, s85, 3
        s_lshl_b32 s85, s85, 18
        s_mov_b32 s51, 0x20000
        s_lshl_b32 s50, s51, 1
        {'s_sub_u32 s90, s50, 1' if self.ilv else 's_movk_i32 s90, 0x7fff'}
        s_addk_i32 s91, {8192 if self.ilv else 1024}
        s_and_b32 s92, s91, s90
        s_addk_i32 s91, {-8192 if self.ilv else -1024}
        s_waitcnt lgkmcnt(0)
        s_add_u32 s48, s18, s85
        s_addc_u32 s49, s19, 0
        buffer_load_dwordx4 v[40:43], v1, s[48:51], s91 offen {self.nt('k')}
        buffer_load_dwordx4 v[44:47], v1, s[48:51], s92 offen {self.nt('k')}
        ''')
        for t in range(2, self.wki):
            a(f's_addk_i32 s92, {8192 if self.ilv else 1024}\ns_and_b32 s92, s92, s90\nbuffer_load_dwordx4 v[{40+4*t}:{43+4*t}], v1, s[48:51], s92 offen {self.nt("k")}')
        a(f'''
        s_add_u32 s52, s20, s85
        s_addc_u32 s53, s21, 0
        s_mov_b32 s54, 0x40000
        s_mov_b32 s55, 0x20000
        s_barrier
        ''')
        self.common2()
        self.srd(44, 42, WS_SIZE)
        if self.stamp_on: a('v_writelane_b32 v15, s98, 13')
        self.cur_cls = -1
        self.stamp(0)
        self.cur_cls = 0
        self.decode()
        for _ in range(self.sdelay): a('s_sleep 32')
        if self.hold > 1: a(f's_cmp_eq_u32 s7, {R_Q}\ns_cbranch_scc1 L_hold')
        if 'r' in self.abl: a('s_branch L_nohold')
        a(f's_cmp_lg_u32 s7, {R_G1}\ns_cbranch_scc1 L_nohold')
        self.srd(56, 34, 10240); self.srd(60, 16, 10240)
        a('s_mul_i32 s90, s15, 1280\nv_lshlrev_b32 v12, 2, v2')
        for n in range(5): a(f'buffer_load_dword v{80+n}, v12, s[56:59], s90 offen offset:{256*n}')
        for n in range(5): a(f'buffer_load_dword v{86+n}, v12, s[60:63], s90 offen offset:{256*n}')
        if self.cxfirst: self.signal(C_CX)
        a(f'''
        s_mul_i32 s90, s15, {ACTS}
        s_add_u32 s90, s90, {L_ACT}
        v_add_u32 v12, s90, v12
        s_mov_b32 s85, {LOG2E | 0x80000000}
        s_waitcnt vmcnt(5)
        ''')
        self.stamp(9)
        for i in range(5): self.unpack(100 + 2 * i, 80 + i)
        for i in range(10): a(f'v_mul_f32 v{112+i}, s85, v{100+i}')
        for i in range(10): a(f'v_exp_f32 v{112+i}, v{112+i}')
        for i in range(10): a(f'v_add_f32 v{112+i}, 1.0, v{112+i}')
        for i in range(10): a(f'v_rcp_f32 v{112+i}, v{112+i}')
        for i in range(10): a(f'v_mul_f32 v{100+i}, v{100+i}, v{112+i}')
        for i in range(5): a(f'v_cvt_pk_bf16_f32 v{80+i}, v{100+2*i}, v{101+2*i}')
        for i in range(5): a(f'ds_write_b32 v12, v{80+i} offset:{256*i}')
        a('s_waitcnt vmcnt(0)')
        self.ln_stats(86, 100, 112, 90, 92)
        a(f'''
        v_mov_b32 v28, s90
        v_mov_b32 v29, s92
        s_lshl_b32 s85, s15, 3
        v_add_u32 v30, s85, v13
        ds_write_b64 v30, v[28:29] offset:{L_STAT}
        ''')
        self.signal(C_ACT)
        a('L_hold:')
        if self.hold: self.lds_wait(C_GO, 4, sleep=2)
        a('L_nohold:')
        q = [f'K{t}' for t in range(self.wki)]
        def wait_for(name):
            i = len(q) - 1 - q[::-1].index(name)
            n = len(q) - 1 - i
            a(f's_waitcnt vmcnt({min(n, 63)})')
        def ld(t, slot, srd, nm):
            a(f's_add_u32 s92, s91, {t*(8192 if self.ilv else 1024)}\ns_and_b32 s92, s92, {0x3ffff if self.ilv else 0x7fff}')
            a(f'buffer_load_dwordx4 v[{KV(slot)}:{KV(slot)+3}], v1, {srd}, s92 offen {self.nt(nm[0].lower())}')
            q.append(nm)
        qloads = ['buffer_load_dwordx4 v[4:7], v12, s[44:47], s93 offen sc1', 'buffer_load_dwordx4 v[16:19], v12, s[44:47], s93 offen offset:16 sc1']
        for t in range(1, 32):
            wk = WK if t >= self.wk_sw else self.WK0
            if t >= wk and t >= self.wki:
                if self.WKL > wk and t >= self.wkl_sw:
                    L = a.label('L_kw')
                    a(f's_waitcnt vmcnt({self.WKL-1})\ns_cbranch_vccnz {L}\ns_waitcnt vmcnt({wk-1})\n{L}:')
                else: a(f's_waitcnt vmcnt({wk-1})')
            if t == self.WK0: self.stamp(8)
            if t == self.pfl_t: self.signal(C_PROGW)
            if t == self.pf1_t: self.signal(C_PF)
            if t == self.pf2_t: self.signal(C_PF2)
            if t >= self.wki: ld(t, t, 's[48:51]', f'K{t}')
            if t == self.WK0 - 1:
                a(f'''
                v_mov_b32 v3, 0
                buffer_load_dword v35, v3, s[44:47], 0 offen sc1
                v_and_b32 v3, 15, v2
                v_lshlrev_b32 v12, 5, v3             ; Q voffset
                s_lshl_b32 s93, s2, 9
                s_add_u32 s93, s93, {WS_Q}
                v_mov_b32 v16, 0xffff
                v_mov_b32 v17, s84
                ''')
                q.append('E')
                for r in range(4):
                    a(f'''
                    v_cmp_eq_u32 vcc, {2*r}, v3
                    v_cndmask_b32 v{8+r}, 0, v16, vcc
                    v_cmp_eq_u32 vcc, {2*r+1}, v3
                    v_cndmask_b32 v{8+r}, v{8+r}, v17, vcc
                    ''')
                a(f'''
                s_mov_b32 s96, 0xcccccccc
                s_mov_b32 s97, 0xcccccccc
                s_mov_b32 s98, 0xaaaaaaaa
                s_mov_b32 s99, 0xaaaaaaaa
                s_mul_i32 s85, s14, 163840
                s_add_u32 s56, s24, s85
                s_addc_u32 s57, s25, 0
                s_mov_b32 s58, 163840
                s_mov_b32 s59, 0x20000
                v_lshrrev_b32 v34, 4, v2
                v_mul_u32_u24 v34, 5120, v34
                v_lshl_add_u32 v34, v3, 4, v34
                s_mul_i32 s85, s15, 20480
                v_add_u32 v34, s85, v34
                s_lshr_b32 s85, {self.lagmask}, s7
                s_bitcmp1_b32 s85, 0
                s_cselect_b64 vcc, -1, 0
                ''')
            if t >= self.st0 and (t - self.st0) % self.stp == 0 and (t - self.st0) // self.stp < self.nst:
                n = (t - self.st0) // self.stp
                if n == 6 and 'r' not in self.abl:
                    a(f's_cmp_lg_u32 s7, {R_G1}\ns_cbranch_scc1 L_stg_ok')
                    self.lds_wait(C_A, 4, sleep=1)
                    a('L_stg_ok:')
                a(f's_lshl_b32 s85, s15, 10\ns_add_u32 m0, s85, {LST + 8192*n}\ns_movk_i32 s85, {wmap(n)[0] * 1280 + wmap(n)[1] * 256}')
                a(f'buffer_load_dwordx4 v34, s[56:59], s85 offen {self.nt("o")} lds')
                q.append(f'S{n}')
            if t == 12:
                self.tag_from(35)
            if t == self.rk:
                self.srd(64, 40, 256)
                a(f'''
                v_mov_b32 v37, 1
                v_mov_b32 v38, 0
                s_mov_b64 exec, 1
                s_cmp_eq_u32 s15, 0
                s_cbranch_scc1 L_rk_at
                buffer_load_dword v37, v38, s[64:67], 0 offen offset:128
                s_branch L_rk_dn
                L_rk_at:
                buffer_atomic_add v37, v38, s[64:67], 0 offen sc0 sc1
                L_rk_dn:
                s_mov_b64 exec, -1
                ''')
                q.append('RK')
            if t == self.qpos:
                for l in qloads: a(l)
                q.append('Q0'); q.append('Q1')
        self.stamp(1)
        wait_for('Q1')
        a(f'''
        s_mov_b32 s89, {SPIN_LIMIT}
        s_mov_b32 s63, 0
        L_q_chk:
        v_xor_b32 v20, s94, v5
        v_xor_b32 v21, s94, v7
        v_xor_b32 v22, s94, v17
        v_xor_b32 v23, s94, v19
        v_or_b32 v20, v20, v21
        v_or3_b32 v20, v20, v22, v23
        v_cmp_ne_u32 vcc, 0, v20
        {'s_branch L_q_ok' if 'r' in self.abl or 'q' in self.abl else ''}
        s_cbranch_vccz L_q_ok
        s_cmp_ge_u32 s63, {self.vpf * 8192}
        s_cbranch_scc1 L_q_nopf
        ''')
        if self.ilv:
            a('''
            s_lshl_b32 s85, s63, 3
            s_add_u32 s85, s85, s91
            v_lshrrev_b32 v38, 3, v2
            v_lshl_add_u32 v38, v38, 13, s85
            v_and_b32 v38, 0x3ffff, v38
            v_and_b32 v39, 7, v2
            v_lshl_add_u32 v38, v39, 7, v38
            s_lshl_b32 s85, s15, 10
            ''')
        else:
            a('''
            s_add_u32 s85, s91, s63
            v_lshl_add_u32 v38, v2, 7, s85
            v_and_b32 v38, 0x7fff, v38
            s_lshl_b32 s85, s15, 15
            ''')
        a(f'''
        buffer_load_dword v39, v38, s[52:55], s85 offen
        s_addk_i32 s63, 8192
        L_q_nopf:
        {qloads[0]}
        {qloads[1]}
        s_waitcnt vmcnt(0)
        s_sub_u32 s89, s89, 1
        s_cbranch_scc0 L_q_chk
        L_q_ok:
        v_mov_b32 v5, v6
        v_mov_b32 v6, v16
        v_mov_b32 v7, v18
        ''')
        self.signal(C_QOK)
        self.stamp(2)
        D = 20
        st = dict(V=0, W=self.nst)
        def ldwo(n):
            tp, c = wmap(n)
            so = ['0', 's60', 's61', 's62'][tp]
            if 'w' in self.abl: return
            a(f'buffer_load_dwordx4 v[{KV(NV+n)}:{KV(NV+n)+3}], v34, s[56:59], {so} offen offset:{256*c} {self.nt("o")}')
            q.append(f'W{n}')
        def pre(g, free):
            for ch in self.pre[g]:
                if ch == 'V':
                    assert st['V'] < NV and st['V'] <= free
                    ld(st['V'], st['V'], 's[52:55]', f"V{st['V']}"); st['V'] += 1
                else:
                    assert NV + st['W'] <= free
                    ldwo(st['W']); st['W'] += 1
        a('s_movk_i32 s60, 1280\ns_movk_i32 s61, 2560\ns_movk_i32 s62, 3840')
        for g in range(8):
            wait_for(f'K{4*g+3}')
            for i in range(4):
                for k in range(4):
                    t = 4 * g + k
                    a(f'v_dot2_f32_bf16 v{D+k}, v{KV(t)+i}, v{4+i}, {"0" if i == 0 else "v%d" % (D+k)}')
            pre(g, 4 * g + 3)
            a(f'v_add_f32_dpp v24, v{D}, v{D} row_ror:8 row_mask:0xf bank_mask:0x3')
            a(f'v_add_f32_dpp v25, v{D+2}, v{D+2} row_ror:8 row_mask:0xf bank_mask:0x3')
            a(f'v_add_f32_dpp v24, v{D+1}, v{D+1} row_ror:8 row_mask:0xf bank_mask:0xc')
            a(f'v_add_f32_dpp v25, v{D+3}, v{D+3} row_ror:8 row_mask:0xf bank_mask:0xc')
            r2 = 26 + (g & 1)
            a(f'v_add_f32_dpp v{r2}, v24, v24 row_shl:4 row_mask:0xf bank_mask:0x5')
            a(f'v_add_f32_dpp v{r2}, v25, v25 row_shr:4 row_mask:0xf bank_mask:0xa')
            if g & 1:
                r3 = 28 + ((g >> 1) & 1)
                a(f'v_add_f32_dpp v30, v26, v26 quad_perm:[2,3,0,1] row_mask:0xf bank_mask:0xf')
                a(f'v_add_f32_dpp v31, v27, v27 quad_perm:[2,3,0,1] row_mask:0xf bank_mask:0xf')
                a(f'v_cndmask_b32 v{r3}, v30, v31, s[96:97]')
            if (g & 3) == 3:
                a(f'v_add_f32_dpp v30, v28, v28 quad_perm:[1,0,3,2] row_mask:0xf bank_mask:0xf')
                a(f'v_add_f32_dpp v31, v29, v29 quad_perm:[1,0,3,2] row_mask:0xf bank_mask:0xf')
                a(f'v_cndmask_b32 v{32 + (g >> 2)}, v30, v31, s[98:99]')
        a(f'''
        v_cvt_pk_bf16_f32 v20, v32, v33
        s_mov_b32 s86, 0x3db504f3
        ''')
        self.unpack(32, 20)
        a('v_pk_mul_f32 v[32:33], v[32:33], s[86:87] op_sel_hi:[1,0]\nv_cvt_pk_bf16_f32 v20, v32, v33')
        self.unpack(32, 20)
        a('v_max_f32 v20, v32, v33')
        self.wave_red(20, 'max')
        a(f'''
        v_readlane_b32 s86, v20, 63              ; m_w
        s_mov_b32 s90, {LOG2E}
        v_subrev_f32 v20, s86, v32
        v_subrev_f32 v21, s86, v33
        v_mul_f32 v20, s90, v20
        v_mul_f32 v21, s90, v21
        v_exp_f32 v20, v20
        v_exp_f32 v21, v21
        v_add_f32 v21, v20, v21
        ''')
        self.wave_red(21)
        a(f'''
        v_mov_b32 v20, s86
        s_lshl_b32 s85, s15, 3
        v_add_u32 v22, s85, v13
        s_mov_b32 exec_lo, 0
        s_mov_b32 exec_hi, 0x80000000
        ds_write_b64 v22, v[20:21] offset:{L_SM}
        s_mov_b64 exec, -1
        ''')
        if self.rk >= 0:
            a(f's_cmp_lg_u32 s15, 0\ns_cbranch_scc1 L_rk_nw\ns_mov_b64 exec, 1\nds_write_b32 v13, v37 offset:{L_RANK}\ns_mov_b64 exec, -1\nL_rk_nw:')
        if self.nst:
            a(f's_lshl_b32 s85, s15, 10\ns_add_u32 s85, s85, {LST}\nv_lshl_add_u32 v36, v2, 4, s85\nv_add_u32 v37, 32768, v36')
            for n in range(self.nst):
                a(f'ds_read_b128 v[{KV(NV+n)}:{KV(NV+n)+3}], v{36 if n < 4 else 37} offset:{8192*(n if n < 4 else n - 4)}')
        self.stamp(3)
        self.signal(C_SM)
        pre(8, 31)
        self.lds_wait(C_SM, 8)
        self.stamp(4)
        a(f'''
        v_and_b32 v22, 7, v2
        v_lshl_add_u32 v22, v22, 3, v13
        ds_read_b64 v[20:21], v22 offset:{L_SM}
        s_lshr_b32 s63, {self.lagv}, s7
        s_and_b32 s63, s63, 1
        s_waitcnt lgkmcnt(0)
        v_max_f32_dpp v22, v20, v20 row_ror:4 row_mask:0xf bank_mask:0xf
        v_max_f32_dpp v22, v22, v22 row_ror:2 row_mask:0xf bank_mask:0xf
        v_max_f32_dpp v22, v22, v22 row_ror:1 row_mask:0xf bank_mask:0xf
        v_sub_f32 v20, v20, v22
        v_mul_f32 v20, s90, v20
        v_exp_f32 v20, v20
        v_sub_f32 v32, v32, v22
        v_sub_f32 v33, v33, v22
        v_mul_f32 v21, v21, v20
        v_mul_f32 v32, s90, v32
        v_mul_f32 v33, s90, v33
        v_add_f32_dpp v21, v21, v21 row_ror:4 row_mask:0xf bank_mask:0xf
        v_exp_f32 v32, v32
        v_exp_f32 v33, v33
        v_add_f32_dpp v21, v21, v21 row_ror:2 row_mask:0xf bank_mask:0xf
        v_add_f32_dpp v21, v21, v21 row_ror:1 row_mask:0xf bank_mask:0xf
        v_rcp_f32 v21, v21
        v_mul_f32 v32, v32, v21
        v_mul_f32 v33, v33, v21
        v_cvt_pk_bf16_f32 v32, v32, v32
        v_cvt_pk_bf16_f32 v33, v33, v33
        ''')
        issued = st['V']; nwo = st['W']
        for t in range(32):
            A = 20 + 4 * (t & 1)
            for r in range(4):
                a(f'v_and_b32_dpp v{A+r}, v{32 + (t >> 4)}, v{8+r} row_newbcast:{bitrev4(t & 15)} row_mask:0xf bank_mask:0xf')
            wait_for(f'V{t}')
            a(f'v_mfma_f32_16x16x32_bf16 v[16:19], v[{A}:{A+3}], v[{KV(t % NV)}:{KV(t % NV)+3}], {"0" if t == 0 else "v[16:19]"}')
            if not self.lagv:
                while t + (WV if t < self.wv_sw else self.WV2) >= issued and issued < 32:
                    ld(issued, issued % NV, 's[52:55]', f'V{issued}'); issued += 1
            else:
                wbig = max(self.WVc, WV if t < self.wv_sw else self.WV2)
                while t + wbig >= issued and issued < 32:
                    wa = WV if issued - WV < self.wv_sw else self.WV2
                    if issued - wa > t:
                        L = a.label('L_vw')
                        a(f's_cmp_lg_u32 s63, 0\ns_cbranch_scc1 {L}')
                        wait_for(f'V{issued - wa}')
                        a(f'{L}:')
                    ld(issued, issued % NV, 's[52:55]', f'V{issued}'); issued += 1
            if t >= self.wo_start:
                for _ in range(self.wo_per):
                    if nwo < 20: ldwo(nwo); nwo += 1
            if t == self.prog_t: self.signal(C_PROG)
            if t + 32 == self.pfl_t: self.signal(C_PROGW)
            if t == self.red_direct: self.signal(C_K2)
            if t == self.vi_t: self.signal(C_VI)
            if self.smf and 24 <= t < 28:
                for r in range(72 + 4 * (t - 24), 76 + 4 * (t - 24)): a(f'v_mov_b32 v{r}, 0')
            if t == self.setup_t:
                a(f'''
                v_lshlrev_b32 v7, 4, v2
                v_and_b32 v3, 15, v2
                v_lshrrev_b32 v4, 4, v2
                v_lshlrev_b32 v5, 5, v3
                v_lshl_add_u32 v5, v4, 4, v5          ; (8j+4s')*4
                s_lshl_b32 s85, s15, 9
                s_add_u32 s85, s85, {L_OP}
                v_add_u32 v6, s85, v5
                s_mul_i32 s85, s15, 2560
                s_add_u32 s85, s85, {L_WP}
                v_add_u32 v5, s85, v7
                v_add_u32 v36, {LST}, v7
                v_cmp_gt_u32 vcc, 32, v2
                v_cndmask_b32 v5, v36, v5, vcc
                s_lshl_b32 s85, s15, 6
                s_add_u32 s85, s85, {L_OP}
                v_lshl_add_u32 v4, v4, 4, s85
                ''')
                if self.smf:
                    a(f'''
                    v_bfe_u32 v3, v2, 4, 1
                    v_lshlrev_b32 v4, 5, v3
                    v_and_b32 v3, 1, v2
                    v_lshl_add_u32 v4, v3, 4, v4          ; + (q&1)*4
                    v_bfe_u32 v3, v2, 1, 1
                    v_lshl_add_u32 v4, v3, 3, v4          ; + (q>>1)*2
                    v_lshrrev_b32 v3, 5, v2
                    v_lshl_add_u32 v4, v3, 2, v4          ; + (sA>>1)
                    v_bfe_u32 v3, v2, 2, 2
                    v_lshl_add_u32 v4, v3, 10, v4
                    v_add_u32 v4, s85, v4
                    v_mov_b32 v37, 0xffff
                    v_cmp_eq_u32 vcc, 0, v3
                    v_cndmask_b32 v38, 0, v37, vcc        ; Ma
                    v_cmp_eq_u32 vcc, 1, v3
                    v_cndmask_b32 v39, 0, v37, vcc        ; Mb
                    v_and_b32 v3, 3, v2
                    v_mul_u32_u24 v37, 0x5555, v3
                    ''')
                    for r in [28, 29, 30, 31]: a(f'v_mov_b32 v{r}, 0')
                elif self.olp:
                    a('''
                    v_and_b32 v3, 3, v2
                    v_lshl_add_u32 v4, v3, 2, v4          ; + tp*4
                    v_bfe_u32 v3, v2, 2, 2
                    v_lshl_add_u32 v4, v3, 10, v4         ; + pair*2*512
                    ''')
                if self.oadd:
                    a(f'''
                    v_lshl_add_u32 v6, v2, 2, v13
                    v_lshrrev_b32 v4, 5, v2               ; s>>1
                    v_bfe_u32 v3, v2, 4, 1                ; s&1
                    v_lshl_add_u32 v4, v3, 4, v4
                    s_lshl_b32 s85, s15, 1
                    v_add_u32 v4, s85, v4
                    v_lshl_add_u32 v4, v4, 2, v13
                    ''')
                a(f'''
                v_bfe_u32 v35, v2, 1, 4
                v_and_b32 v36, 1, v2
                v_lshl_add_u32 v35, v36, 4, v35
                v_lshlrev_b32 v35, 4, v35
                v_lshrrev_b32 v36, 5, v2
                v_mul_u32_u24 v36, 10240, v36
                s_lshl_b32 s85, s15, 9
                s_add_u32 s86, s85, {L_WP}
                v_add3_u32 v35, v35, v36, s86
                s_mul_i32 s87, s2, 2560
                s_add_u32 s87, s87, s85
                s_add_u32 s87, s87, {WS_P}
                ''')
        assert nwo == 20
        a(f'''
        s_mov_b32 exec_hi, 0
        ''')
        if self.oadd:
            for r in range(4): a(f'ds_add_f32 v6, v{16+r} offset:{0x200 + 128*r}')
        else: a('ds_write_b128 v6, v[16:19]')
        a('s_mov_b64 exec, -1')
        self.stamp(5)
        if self.cyc: a('s_memtime s[64:65]\ns_memrealtime s[74:75]')
        if self.gthr:
            a(f's_cmp_lg_u32 s15, 7\ns_cbranch_scc1 L_nogc\ns_lshl_b32 s85, s2, 7\ns_add_u32 s85, s85, {WS_F}')
            a('s_mov_b64 exec, 1\nv_mov_b32 v12, 0\nv_mov_b32 v14, s94\nbuffer_store_dword v14, v12, s[44:47], s85 offen sc1\ns_mov_b64 exec, -1\nL_nogc:')
        rd1 = [f'ds_read_b128 v[{40+4*w}:{43+4*w}], v4 offset:{512*w}' for w in range(8)]
        if self.olp: rd1 = ['ds_read2_b32 v[40:41], v4 offset0:0 offset1:128']
        if self.oadd: rd1 = ['ds_read2_b32 v[40:41], v4 offset0:128 offset1:160', 'ds_read2_b32 v[42:43], v4 offset0:192 offset1:224']
        if self.bar:
            a(f's_cmp_eq_u32 s7, {R_RED}\ns_cbranch_scc1 L_s1_spin\ns_waitcnt lgkmcnt(0)\ns_barrier\nL_tail_dry:')
            for r in rd1: a(r)
            a('s_waitcnt lgkmcnt(0)\nL_s1_done:')
            self.tail_code.append(('L_s1_spin', lambda: (self.signal(C_PV), self.wait2(C_PV, 8, rd1), a('s_branch L_s1_done'))))
        else:
            self.signal(C_PV)
            self.wait2(C_PV, 8, rd1)
        if self.cyc: a('s_memtime s[66:67]')
        if self.olp:
            a('''
            v_add_f32 v40, v40, v41
            v_add_f32_dpp v40, v40, v40 row_ror:4 row_mask:0xf bank_mask:0xf
            v_add_f32_dpp v40, v40, v40 row_ror:8 row_mask:0xf bank_mask:0xf
            v_cvt_pk_bf16_f32 v40, v40, v40
            ''')
        else:
            if not self.oadd: self.sum_partials(40, [40 + 4 * i for i in range(8)])
            for r in range(4): a(f'v_cvt_pk_bf16_f32 v{40+r}, v{40+r}, v{40+r}')
        assert q[-1] == 'V31'
        if self.cyc: a('s_memtime s[68:69]')
        self.stamp(6)
        def wr(c): a(f'ds_write_b128 v5, v[{60+4*c}:{63+4*c}] offset:{512*c}')
        def mf(tp, c):
            d = 60 + 4 * c; b = KV(NV + 5 * tp + c)
            a(f'v_mfma_f32_16x16x32_bf16 v[{d}:{d+3}], v[{44+4*tp}:{47+4*tp}], v[{b}:{b+3}], {"0" if tp == 0 else "v[%d:%d]" % (d, d+3)}')
        def ands(tp):
            for r in range(4):
                if self.olp: a(f'v_and_b32_dpp v{44+4*tp+r}, v40, v{8+r} quad_perm:[{tp},{tp},{tp},{tp}] row_mask:0xf bank_mask:0xf')
                else: a(f'v_and_b32 v{44+4*tp+r}, v{40+tp}, v{8+r}')
        if self.smf:
            acc = [72, 76, 80, 84, 28]
            def wr(c): a(f'ds_write_b128 v5, v[{acc[c]}:{acc[c]+3}] offset:{512*c}')
            for P in range(2):
                for r in range(4):
                    qq = 2 * P + (r >> 1)
                    a(f'v_and_b32_dpp v{20+4*P+r}, v40, v{38 + (r & 1)} quad_perm:[{qq},{qq},{qq},{qq}] row_mask:0xf bank_mask:0xf')
            for P in range(2):
                for c in range(5):
                    b = KV(NV + 10 * P + 2 * c)
                    a(f'v_smfmac_f32_16x16x64_bf16 v[{acc[c]}:{acc[c]+3}], v[{20+4*P}:{23+4*P}], v[{b}:{b+7}], v37')
            for c in range(5): wr(c)
        elif self.mo == 0:
            for c in range(5):
                for tp in range(4):
                    if c == 0: ands(tp)
                    mf(tp, c)
                if c >= 2: wr(c - 2)
            wr(3); wr(4)
        elif self.mo == 1:
            ands(0)
            for tp in range(4):
                for c in range(5):
                    mf(tp, c)
                    if c == 1 and tp < 3: ands(tp + 1)
            for c in range(5): wr(c)
        else:
            ands(0)
            for tp in range(4):
                for c in range(3):
                    mf(tp, c)
                    if c == 0 and tp < 3: ands(tp + 1)
            for tp in range(4):
                for c in (3, 4): mf(tp, c)
                if tp >= 1: wr(tp - 1)
            wr(3); wr(4)
        if self.cyc: a('s_memtime s[70:71]')
        rd2 = [f'ds_read_b128 v[{40+4*w}:{43+4*w}], v35 offset:{2560*w}' for w in range(4)]
        if self.bar:
            if self.dry: a('s_cbranch_execz L_s2_skip')
            a(f's_cmp_eq_u32 s7, {R_RED}\ns_cbranch_scc1 L_s2_spin\ns_waitcnt lgkmcnt(0)\ns_barrier')
            a('s_cmp_ge_u32 s15, 5\ns_cbranch_scc1 L_stream_end')
            a('L_s2_skip:')
            for r in rd2: a(r)
            a('s_waitcnt lgkmcnt(0)\nL_s2_done:')
            self.tail_code.append(('L_s2_spin', lambda: (self.signal(C_WO), a('s_cmp_ge_u32 s15, 5\ns_cbranch_scc1 L_stream_end'), self.wait2(C_WO, 8, rd2), a('s_branch L_s2_done'))))
        else:
            self.signal(C_WO)
            a('s_cmp_ge_u32 s15, 5\ns_cbranch_scc1 L_stream_end')
            self.wait2(C_WO, 8, rd2)
        if self.cyc: a('s_memtime s[72:73]')
        self.stamp(7)
        self.sum_partials(40, [40, 44, 48, 52])
        for i in range(4): a(f'v_mov_b32 v{44+i}, v{40+i}')
        for i in range(4): a(f'v_permlane32_swap_b32 v{40+i}, v{44+i}')
        a('v_pk_add_f32 v[40:41], v[40:41], v[44:45]\nv_pk_add_f32 v[42:43], v[42:43], v[46:47]')
        self.sanitize(range(40, 44))
        if self.dry: a('s_cbranch_execz L_dry_ret')
        a('''
        s_mov_b32 exec_hi, 0
        buffer_store_dwordx4 v[40:43], v7, s[44:47], s87 offen sc1
        s_mov_b64 exec, -1
        ''')
        if self.cyc:
            a('s_memtime s[76:77]\ns_memrealtime s[78:79]\ns_waitcnt lgkmcnt(0)')
            for i, r in enumerate((66, 68, 70, 72, 76)): a(f's_sub_u32 s{r}, s{r}, s64\nv_writelane_b32 v15, s{r}, {6+i}')
            a('s_sub_u32 s78, s78, s74\nv_writelane_b32 v15, s78, 12')
        self.signal(C_DONE)
        a('L_stream_end:')
        self.stamp(10)
        self.stamp_flush()
        self.diag_end()
        a('L_end:\ns_endpgm')
        for lab, fn in self.tail_code:
            a(lab + ':'); fn()

    def build(self):
        self.prologue(); self.stream(); self.control(); self.a('L_code_end:')
        kn = NAME + '_kernel'
        body = '\n'.join(fix_hazards(self.a.l)) + '\n'
        hdr = open('cdna_kernels/' + NAME + '.s.ref').read().split('; Override launch')[0]
        return hdr + header([f'; @launch grid=(256,1,1) block=(768,1,1) lds={LDS_SIZE}']) + DOC + kernel_start(kn) + body + '.section .rodata,"a"\n' + descriptor(kn, vgpr=168, sgpr=102, accum=168)

if __name__ == '__main__':
    import argparse
    from collections import Counter
    rs = [role_of(w) for w in range(256)]
    for r, n in ((R_G1, 20), (R_DOWN, 40), (R_FFN, 54), (R_Q, 64), (R_MOD, 40), (R_RED, 8)):
        assert sorted(i for rr, i in rs if rr == r) == list(range(n)), r
    ap = argparse.ArgumentParser()
    ap.add_argument('-o', default='k.s'); ap.add_argument('--stamp', action='store_true')
    for p, d in (('WK', 3), ('WV', 4), ('rot', 3), ('rotw', 1), ('qpos', 28), ('prog_t', 22), ('progw_t', -1), ('WD', 20), ('wo_start', 0), ('wo_per', 1), ('sdelay', 0), ('WK0', 3), ('wk_sw', 16), ('k2_t', -1), ('WV2', 8), ('wv_sw', 12), ('hold', 1), ('pf', 1), ('WKL', 4), ('wkl_sw', 6), ('lagmask', 2), ('pfb', 1), ('cpf', 1), ('diag_until', 0), ('diag_xcc', 0), ('diag_role', -1), ('diag_cls', -1), ('diag_idx', -1), ('nMf', 0), ('nMd', 0), ('vi_t', -1), ('nEf', 0), ('nEd', 0), ('late', 0), ('pfl_t', 8), ('psleep', 0), ('light', 0), ('hdelay', 0), ('rk', -1), ('lagv', 0), ('h1probe', 0), ('cxfirst', 1), ('tlbw', 0), ('rotm', 1), ('ilv', 0), ('premerge', 0), ('otouch', 0), ('gthr', 0), ('help2', 0), ('setup_t', 14), ('ddelay', 0), ('smf', 1), ('olp', 1), ('mo', 2), ('dry', 0), ('oadd', 0), ('bar', 1), ('cyc', 0), ('pipe', 0), ('wki', 2), ('pf1_t', 5), ('allsh', 0), ('pf2_t', 10), ('nst', 9), ('st0', 4), ('stp', 3), ('vpf', 3), ('rth1', 128), ('rth2', 208), ('WVa', 2), ('WVb', 4), ('WVc', 8), ('trig', 0), ('trsh', 0), ('red_direct', 27), ('WDM', 20), ('k2_n', 8)):
        ap.add_argument('--' + p, type=int, default=d)
    ap.add_argument('--pre', default='V,V,V,V,V,V,V,V,W')
    ap.add_argument('--ntp', default='kv')
    ap.add_argument('--abl', default='')
    ap.add_argument('--outf', default='')
    args = ap.parse_args()
    kw = dict(vars(args)); o = kw.pop('o')
    open(o, 'w').write(G(**kw).build())
```

```python
import sys
from asmlib import *
import gen as G1mod
from gen import bitrev4, LOG2E, SPIN_LIMIT

WS_E = 0
WS_H1 = 0x1000
WS_Q = 0x8000
SB2 = 0x28000
WS_H2 = SB2; WS_X1 = SB2 + 0x3000; WS_HID = SB2 + 0x6000; WS_MODO = SB2 + 0xD000
WS_P = 0x50000
WS_F = 0xF0000
WS_STAMP = 0x100000
WS_SIZE = 0x200000
LW = 0; LM = 0x14000; L_OP = 0x15000; L_WP = 0x23000; LST = 0x16000; LDS_SIZE = 0x28000
C_A, C_SM, C_PV, C_WO, C_QOK, C_PROG, C_PROGW, C_GO, C_DONE, C_K2, C_ACT, C_PF, C_PF2, C_CX, C_VI = [4 * i for i in range(15)]
L_STAT = 0x40; L_SM = 0x100; L_RANK = 0x3c
L_ACT = L_WP; ACTS = 1344
R_G1, R_DOWN, R_FFN, R_Q, R_MOD, R_RED = 1, 2, 3, 4, 5, 6

def role_of(wg):
    x = wg & 7; u = wg >> 3
    if u < 2: return R_G1, 2 * x + u
    if u < 6:
        k = u - 2
        e = EXTRA.get((x, k >> 1))
        if e is None: return 0, 0
        return e[0], e[0] * 16 + 2 * e[1] + (k & 1)
    if u < 14: return R_Q, 8 * x + u - 6
    if u < 19: return R_MOD, 5 * x + u - 14
    if u < 25: return R_FFN, 6 * x + u - 19
    if u < 29: return R_DOWN, 4 * x + u - 25
    if u == 29: return R_RED, x
    return 0, 0
EXTRA = {(0, 0): (R_DOWN, 0), (0, 1): (R_DOWN, 1), (2, 0): (R_DOWN, 2), (2, 1): (R_DOWN, 3),
         (4, 0): (R_FFN, 0), (4, 1): (R_FFN, 1), (6, 0): (R_G1, 0), (6, 1): (R_FFN, 2), (1, 0): (R_G1, 1)}

DOC = '''; ---------------------------------------------------------------------------------------------
; ---------------------------------------------------------------------------------------------
'''

class G(G1mod.G):
    def __init__(self, stamp=False, WK=3, WV=3, rot=3, rotw=1, qpos=25, prog_t=22, progw_t=-1, WD=4, wo_start=0, wo_per=1, sdelay=0, WK0=2, wk_sw=16, k2_t=6, WV2=6, wv_sw=16, hold=1, pf=1, WKL=6, wkl_sw=6, lagmask=0x72, diag_xcc=0, diag_role=-1, diag_until=0, diag_cls=-1, diag_idx=-1, ntp='kv', cpf=1, pfb=1, nMf=0, nMd=0, vi_t=29, nEf=8, nEd=6, late=1, pfl_t=8, light=0, psleep=0, outf='', abl='', nst=0, st0=5, stp=3, allsh=0, pf1_t=4, pf2_t=9, wki=2, pipe=0, cyc=0, bar=0, oadd=0, dry=0, mo=0, olp=0, smf=0, ddelay=0, setup_t=14, help2=0, gthr=0, otouch=1, premerge=1, c4=0, aK=0, aK2=2, aKL=4, aV=2, aV2=6, ffn2=0, ilv=0, rotm=1, tlbw=1, cxfirst=1, vpf=3, h1probe=1, lagv=0, rk=-1, rth1=128, rth2=208, WVa=2, WVb=4, WVc=8, hdelay=0, trig=0, trsh=0, red_direct=27, WDM=2, k2_n=8, pre='V,V,VV,VW,VWW,VWW,VVW,VWW,VVWW'):
        self.sdelay = sdelay; self.WK0 = WK0; self.wk_sw = wk_sw; self.k2_t = k2_t; self.WV2 = WV2; self.wv_sw = wv_sw; self.hold = hold; self.pf = pf; self.late = late; self.pfl_t = pfl_t; self.psleep = psleep; self.light = light; self.light_set = (0, 11, 5) if light == 1 else (0, 11); self.hdelay = hdelay; self.rk = rk; self.lagv = lagv; self.h1probe = h1probe; self.cxfirst = cxfirst; self.tlbw = tlbw; self.rotm = rotm; self.ilv = ilv; self.ffn2 = ffn2; self.c4 = c4; self.aK = aK; self.aK2 = aK2; self.aKL = aKL; self.aV = aV; self.aV2 = aV2; self.premerge = premerge; self.otouch = otouch; self.gthr = gthr; self.help2 = help2; self.setup_t = setup_t; self.ddelay = ddelay; self.smf = smf; self.olp = olp; self.mo = mo; self.dry = dry; self.oadd = oadd; self.bar = bar; self.cyc = cyc; self.pipe = pipe; self.wki = wki; self.pf1_t = pf1_t; self.allsh = allsh; self.pf2_t = pf2_t; self.nst = nst; self.st0 = st0; self.stp = stp; self.abl = abl; self.outf = outf.replace('_', ' '); self.vpf = vpf; self.rth1 = rth1; self.rth2 = rth2; self.WVa = WVa; self.WVb = WVb; self.WVc = WVc; self.trig = trig; self.trsh = trsh; self.red_direct = red_direct; self.pfb = pfb; self.cpf = cpf; self.ntp = ntp; self.cur_nt = 'nt'; self.diag_until = diag_until; self.diag_xcc = diag_xcc; self.diag_role = diag_role; self.diag_cls = diag_cls; self.diag_idx = diag_idx; self.cur_cls = -1; self.nEf = nEf; self.nMf = nMf; self.nMd = nMd; self.vi_t = vi_t; self.nEd = nEd; self.WKL = WKL; self.wkl_sw = wkl_sw; self.lagmask = lagmask; self.WDM = WDM; self.k2_n = k2_n; self.pre = pre.split(',')
        self.a = Asm(); self.stamp_on = stamp
        self.WK = WK; self.WV = WV; self.rot = rot; self.rotw = rotw; self.qpos = qpos; self.prog_t = prog_t
        self.progw_t = progw_t; self.WD = WD; self.wo_start = wo_start; self.wo_per = wo_per

    def stamp(self, i):
        if self.diag_until and i == self.diag_idx and (self.cur_cls == self.diag_cls or (self.cur_cls == 99 and self.diag_cls > 0)):
            if self.cur_cls == 99:
                L = self.a.label('L_ds')
                self.a(f's_cmp_lg_u32 s7, {self.diag_cls}\ns_cbranch_scc1 {L}\ns_memrealtime s[100:101]\ns_waitcnt lgkmcnt(0)\n{L}:')
            elif self.diag_role >= 0:
                L = self.a.label('L_ds')
                self.a(f's_cmp_lg_u32 s7, {self.diag_role}\ns_cbranch_scc1 {L}\ns_memrealtime s[100:101]\ns_waitcnt lgkmcnt(0)\n{L}:')
            else:
                self.a('s_memrealtime s[100:101]\ns_waitcnt lgkmcnt(0)')
        if self.light and i not in self.light_set: return
        super().stamp(i)

    def diag_end(self):
        if self.diag_until:
            L = self.a.label('L_diag')
            if self.diag_xcc:
                self.a('s_getreg_b32 s97, hwreg(HW_REG_XCC_ID)\ns_sub_u32 s97, s97, s2\ns_and_b32 s97, s97, 7')
                if self.diag_xcc == 2: self.a('s_sub_u32 s97, 7, s97')
                self.a('s_mul_i32 s97, s97, 400\ns_add_u32 s100, s100, s97')
            self.a(f'{L}:\ns_sleep 1\ns_memrealtime s[98:99]\ns_waitcnt lgkmcnt(0)\ns_sub_u32 s98, s98, s100\ns_cmp_lt_i32 s98, {self.diag_until*100}\ns_cbranch_scc1 {L}')

    def ln_stats1(self, U, T, s_m, s_rs, mid=None):
        a = self.a
        a(f'v_readlane_b32 s86, v{U}, 0')
        for i in range(5):
            a(f'v_pk_add_f32 v[{T+4}:{T+5}], v[{U+2*i}:{U+2*i+1}], s[86:87] op_sel_hi:[1,0] neg_lo:[0,1] neg_hi:[0,1]')
            if i == 0:
                a(f'v_pk_mul_f32 v[{T+2}:{T+3}], v[{T+4}:{T+5}], v[{T+4}:{T+5}]')
                a(f'v_add_f32 v{T}, v{T+4}, v{T+5}')
            else:
                a(f'v_pk_fma_f32 v[{T+2}:{T+3}], v[{T+4}:{T+5}], v[{T+4}:{T+5}], v[{T+2}:{T+3}]')
                a(f'v_add_f32 v{T+1}, v{T+4}, v{T+5}\nv_add_f32 v{T}, v{T}, v{T+1}')
        a(f'v_add_f32 v{T+1}, v{T+2}, v{T+3}')
        for m in ('row_ror:8 row_mask:0xf', 'row_ror:4 row_mask:0xf', 'row_ror:2 row_mask:0xf', 'row_ror:1 row_mask:0xf', 'row_bcast:15 row_mask:0xa', 'row_bcast:31 row_mask:0xc'):
            for v in (T, T + 1): a(f'v_add_f32_dpp v{v}, v{v}, v{v} {m} bank_mask:0xf')
        a(f'''
        v_mul_f32 v{T}, 0x3acccccd, v{T}
        v_mul_f32 v{T+1}, 0x3acccccd, v{T+1}
        v_fma_f32 v{T+1}, -v{T}, v{T}, v{T+1}
        v_add_f32 v{T}, s86, v{T}
        v_max_f32 v{T+1}, 0, v{T+1}
        v_cvt_pk_bf16_f32 v{T}, 0, v{T}
        v_cvt_pk_bf16_f32 v{T+1}, 0, v{T+1}
        v_readlane_b32 s{s_m}, v{T}, 63
        v_add_f32 v{T+1}, 0x3727c5ac, v{T+1}
        v_cvt_pk_bf16_f32 v{T+1}, 0, v{T+1}
        v_sqrt_f32 v{T+1}, v{T+1}
        v_cvt_pk_bf16_f32 v{T+1}, 0, v{T+1}
        v_rcp_f32 v{T+1}, v{T+1}
        s_nop 0
        v_readlane_b32 s{s_rs}, v{T+1}, 63
        ''')
        if mid: mid()

    def signal(self, cnt):
        self.a(f'''
        s_mov_b64 exec, 1
        v_mov_b32 v14, 1
        ds_add_u32 v13, v14 offset:{cnt}
        s_mov_b64 exec, -1
        ''')

    def arrive2(self, cnt, last, skip, reads):
        a = self.a
        a(f'''
        s_mov_b64 exec, 1
        v_mov_b32 v14, 1
        ds_add_rtn_u32 v14, v13, v14 offset:{cnt}
        s_mov_b64 exec, -1
        ''')
        for r in reads: a(r)
        a(f'''
        s_waitcnt lgkmcnt({min(len(reads), 15)})
        v_readfirstlane_b32 s88, v14
        s_cmp_lg_u32 s88, {last}
        s_cbranch_scc1 {skip}
        ''')

    def wait2(self, cnt, target, reads):
        a = self.a
        L = a.label('L_w2'); D = a.label('L_w2d'); R = a.label('L_w2r')
        a(f'ds_read_b32 v14, v13 offset:{cnt}')
        for r in reads: a(r)
        a(f'''
        s_mov_b32 s89, {SPIN_LIMIT * 16}
        s_waitcnt lgkmcnt({len(reads)})
        v_readfirstlane_b32 s88, v14
        s_cmp_ge_u32 s88, {target}
        s_cbranch_scc1 {D}
        {L}:
        ds_read_b32 v14, v13 offset:{cnt}
        s_sub_u32 s89, s89, 1
        s_cbranch_scc1 {R}
        s_waitcnt lgkmcnt(0)
        v_readfirstlane_b32 s88, v14
        s_cmp_lt_u32 s88, {target}
        s_cbranch_scc1 {L}
        {R}:
        ''')
        for r in reads: a(r)
        a(f'{D}:\ns_waitcnt lgkmcnt(0)')

    def rnd1(self, regs):
        for r in regs: self.a(f'v_cvt_pk_bf16_f32 v{r}, 0, v{r}')
    def round4(self, v, t):
        self.rnd1(range(v, v + 4))
    def bf1(self, v):
        self.rnd1([v])

    def tag_from(self, v):
        self.a(f'''
        v_readfirstlane_b32 s94, v{v}
        s_mul_i32 s94, s94, 1664525
        s_add_u32 s94, s94, 1013904223
        ''')

    def poll(self, name, loads, check, sleep, tagged=False, lanemask=False, pipe=0):
        a = self.a
        a(f's_mov_b32 s89, {SPIN_LIMIT}')
        if pipe:
            for l in loads: a(l)
            a(f's_sleep {pipe}')
        a(f'L_{name}_poll:')
        for l in loads: a(l)
        a(f's_waitcnt vmcnt({len(loads) if pipe else 0})')
        if tagged:
            for i in range(0, len(check), 2):
                a(f'v_xor_b32 v36, s94, v{check[i]}\nv_xor_b32 v37, s94, v{check[i+1]}')
                a('v_or_b32 v38, v36, v37' if i == 0 else 'v_or3_b32 v38, v38, v36, v37')
            a('v_cmp_ne_u32 vcc, 0, v38')
        else:
            c = list(check)
            if len(c) % 2 == 0:
                a(f'v_max_u32 v38, v{c[0]}, v{c[1]}'); c = c[2:]
            else:
                a(f'v_max3_u32 v38, v{c[0]}, v{c[1]}, v{c[2]}'); c = c[3:]
            for i in range(0, len(c), 2): a(f'v_max3_u32 v38, v38, v{c[i]}, v{c[i+1]}')
            a('v_cmp_eq_u32 vcc, -1, v38')
        a(f'''
        s_cbranch_vccz L_{name}_ok
        {"s_mov_b64 exec, vcc" if lanemask else ""}
        {"s_sleep %d" % sleep if sleep else ""}
        s_sub_u32 s89, s89, 1
        s_cbranch_scc0 L_{name}_poll
        L_{name}_ok:
        {"s_mov_b64 exec, -1" if lanemask else ""}
        ''')

    def prologue(self):
        a = self.a
        a(f'''
        s_load_dwordx16 s[16:31], s[0:1], 0
        {'s_memrealtime s[100:101]' if self.diag_until else ''}
        {'s_memrealtime s[98:99]' if self.stamp_on else ''}
        v_lshrrev_b32 v1, 6, v0
        s_getpc_b64 s[86:87]
        L_pc0:
        v_readfirstlane_b32 s3, v1
        v_lshlrev_b32 v3, 7, v0
        s_cmpk_ge_u32 s2, 256
        s_cbranch_scc1 L_end
        v_min_u32 v3, L_code_end-L_pc0-4, v3
        v_and_b32 v2, 63, v0
        {'global_load_dword v161, v3, s[86:87]' if self.cpf else ''}
        s_load_dwordx8 s[32:39], s[0:1], 64
        s_load_dwordx4 s[40:43], s[0:1], 96
        v_lshlrev_b32 v7, 4, v2          ; lane*16
        s_cmp_lt_u32 s3, 4
        s_cbranch_scc1 L_control
        ''')

    def common2(self):
        a = self.a
        a(f'''
        v_mov_b32 v13, {LM}
        s_mov_b32 s84, 0xffff0000
        v_mov_b32 v15, 0
        s_lshr_b32 s13, s2, 5            ; b
        s_and_b32 s14, s2, 31            ; h
        ''')

    def decode(self):
        a = self.a
        ext = 0
        for (x, kh), (r, idx) in EXTRA.items(): ext |= (r | idx << 2) << (4 * (2 * x + kh))
        a(f'''
        s_and_b32 s4, s2, 7              ; x
        s_lshr_b32 s5, s2, 3             ; u
        s_mov_b32 s7, 0
        s_mov_b32 s8, 0
        ''')
        for lo, hi, role, mul in ((0, 2, R_G1, 2), (6, 14, R_Q, 8), (14, 19, R_MOD, 5), (19, 25, R_FFN, 6), (25, 29, R_DOWN, 4), (29, 30, R_RED, 1)):
            a(f'''
            s_sub_u32 s9, s5, {lo}
            s_mul_i32 s10, s4, {mul}
            s_add_u32 s10, s10, s9
            s_cmp_lt_u32 s9, {hi-lo}
            s_cselect_b32 s7, {role}, s7
            s_cselect_b32 s8, s10, s8
            ''')
        a(f'''
        s_sub_u32 s9, s5, 2              ; extras
        s_lshr_b32 s10, s9, 1
        s_and_b32 s10, s10, 1
        s_lshl_b32 s11, s4, 1
        s_add_u32 s10, s10, s11
        s_lshl_b32 s10, s10, 2
        s_mov_b32 s86, {ext & 0xffffffff}
        s_mov_b32 s87, {ext >> 32}
        s_lshr_b64 s[86:87], s[86:87], s10
        s_and_b32 s10, s86, 3            ; role
        s_bfe_u32 s11, s86, 0x20002      ; idx
        s_lshl_b32 s11, s11, 1
        s_lshl_b32 s12, s10, 4
        s_add_u32 s11, s11, s12
        s_and_b32 s12, s9, 1
        s_add_u32 s11, s11, s12
        s_cmp_lt_u32 s9, 4
        s_cselect_b32 s7, s10, s7
        s_cselect_b32 s8, s11, s8
        s_sub_u32 s9, s5, 19
        s_cmp_lt_u32 s9, 10
        s_cselect_b32 s6, s9, 99
        s_sub_u32 s10, s5, 20
        s_cmp_ge_u32 s5, 30
        s_cselect_b32 s6, s10, s6
        s_sub_u32 s9, s5, 2
        s_add_u32 s10, s9, 12
        s_cmp_lt_u32 s9, 4
        s_cselect_b32 s6, s10, s6
        ''')

    def nt(self, c): return 'nt' if c in self.ntp else ''
    def pfld(self, v, srd, so): self.a(f'buffer_load_dword v160, v{v}, {srd}, {so} offen {self.cur_nt}')

    def prefetch(self):
        a = self.a
        self.cur_nt = self.nt('m')
        self.srd(64, 36, 640 * 7680)
        a(f'''
        s_mov_b32 s90, s6
        s_cmp_ge_u32 s90, 16
        s_cbranch_scc1 L_pf_done
        s_lshl_b32 s92, s4, 7
        s_cmp_lt_u32 s3, 2
        s_cbranch_scc1 L_pfA
        s_cmp_eq_u32 s4, 6
        s_cselect_b32 s92, 1024, 0
        s_cmp_eq_u32 s4, 1
        s_cselect_b32 s92, 1152, s92
        s_cmp_eq_u32 s92, 0
        s_cbranch_scc1 L_pf_done
        L_pfA:
        s_lshl_b32 s90, s90, 1
        s_and_b32 s91, s3, 1
        s_add_u32 s90, s90, s91
        s_mul_i32 s91, s90, {20*7680}
        s_add_u32 s92, s92, s91
        v_lshrrev_b32 v16, 1, v2
        v_min_u32 v16, 19, v16
        v_mul_u32_u24 v16, 7680, v16
        v_and_b32 v17, 1, v2
        v_mul_u32_u24 v17, 1280, v17
        v_add_u32 v16, v16, v17
        ''')
        self.pfld(16, 's[64:67]', 's92')
        a('L_pf_done:')

    def prefetch_b(self, sfx):
        a = self.a
        a(f'''
        {'s_cmp_ge_u32 s6, 16' if not self.allsh else 's_bitcmp1_b32 s3, 0'}
        s_cbranch_scc1 L_pb_done
        {'s_mul_i32 s90, s6, 40' if not self.allsh else 's_mul_i32 s90, s5, 20'}
        s_and_b32 s91, s3, 1
        s_mul_i32 s91, s91, 24
        s_add_u32 s90, s90, s91
        v_lshrrev_b32 v16, 3, v2
        v_and_b32 v17, 7, v2
        s_cmp_lt_u32 s3, 2
        s_cbranch_scc1 L_pb3
        ''')
        self.cur_nt = self.nt('q')
        self.srd(64, 22, 640 * 8192)
        a(f'''
        v_lshlrev_b32 v17, 7, v17
        v_lshl_add_u32 v18, v16, 13, v17
        s_lshl_b32 s91, s90, 13
        s_lshl_b32 s92, s4, 10
        s_add_u32 s92, s92, s91
        s_mov_b32 s91, {8*8192}
        s_branch L_pb4
        L_pb3:
        ''')
        self.srd(64, 36, 640 * 7680)
        a(f'''
        v_min_u32 v17, 4, v17
        v_lshlrev_b32 v17, 7, v17
        v_mul_u32_u24 v18, 7680, v16
        v_add_u32 v18, v18, v17
        s_mul_i32 s91, s90, 7680
        s_mul_i32 s92, s4, 640
        s_add_u32 s92, s92, 2560
        s_add_u32 s92, s92, s91
        s_mov_b32 s91, {8*7680}
        ''')
        if 'm' in self.abl: a('s_branch L_pb_done')
        self.lds_wait(C_PF, 1, sleep=2)
        a('L_pb4:')
        self.pfld(18, 's[64:67]', 's92'); a('s_add_u32 s92, s92, s91')
        self.pfld(18, 's[64:67]', 's92'); a('s_add_u32 s92, s92, s91')
        a('s_bitcmp1_b32 s3, 0\ns_cbranch_scc1 L_pb_done')
        self.pfld(18, 's[64:67]', 's92')
        a('L_pb_done:')

    def prefetch_late(self, sfx):
        a = self.a
        self.cur_nt = self.nt('f')
        a(f's_cmp_ge_u32 s6, 16\ns_cbranch_scc1 L_pl_done{sfx}')
        a(f's_cmp_lg_u32 s3, 0\ns_cbranch_scc1 L_pl1{sfx}')
        self.srd(68, 32, 1728 * 1280)
        a(f'''
        v_min_u32 v16, 53, v2
        v_mul_u32_u24 v16, 1280, v16
        s_mul_i32 s91, s6, {108*1280}
        s_lshl_b32 s92, s4, 7
        s_add_u32 s92, s92, s91
        s_lshl_b32 s93, s4, 6
        s_add_u32 s93, s93, 1024
        s_add_u32 s93, s93, s91
        ''')
        self.lds_wait(C_PROGW, 1, sleep=4)
        self.pfld(16, 's[68:71]', 's92')
        a(f's_add_u32 s92, s92, {54*1280}\ns_waitcnt vmcnt(0)')
        self.pfld(16, 's[68:71]', 's92')
        a(f'''
        s_and_b32 s92, s4, 5
        s_cmp_lg_u32 s92, 0
        s_cbranch_scc1 L_pl_done{sfx}
        s_waitcnt vmcnt(0)
        ''')
        self.pfld(16, 's[68:71]', 's93')
        a(f's_add_u32 s93, s93, {54*1280}\ns_waitcnt vmcnt(0)')
        self.pfld(16, 's[68:71]', 's93')
        a(f's_branch L_pl_done{sfx}\nL_pl1{sfx}:')
        self.srd(64, 28, 640 * 3456); self.srd(68, 30, 640 * 3456)
        a(f'''
        s_mul_i32 s92, s4, 3
        s_mov_b32 s91, s92
        s_mov_b32 s93, s92
        s_cmp_eq_u32 s4, 4
        s_cselect_b32 s91, 24, s91
        s_cselect_b32 s93, 25, s93
        s_cmp_eq_u32 s4, 6
        s_cselect_b32 s91, 26, s91
        v_and_b32 v17, 7, v2
        v_min_u32 v18, 2, v17
        v_add_u32 v18, s92, v18
        v_mov_b32 v19, s91
        v_cmp_eq_u32 vcc, 3, v17
        v_cndmask_b32 v18, v18, v19, vcc
        v_mov_b32 v19, s93
        v_cmp_eq_u32 vcc, 4, v17
        v_cndmask_b32 v18, v18, v19, vcc
        v_lshlrev_b32 v17, 7, v18
        v_lshrrev_b32 v16, 3, v2
        v_mul_u32_u24 v18, 3456, v16
        v_add_u32 v18, v18, v17
        s_mul_i32 s92, s6, 5
        s_add_u32 s92, s92, s3
        s_sub_u32 s92, s92, 1
        s_mul_i32 s92, s92, {8*3456}
        ''')
        self.lds_wait(C_PROGW, 1, sleep=4)
        self.pfld(18, 's[64:67]', 's92'); self.pfld(18, 's[68:71]', 's92')
        a(f's_cmp_eq_u32 s3, 3\ns_cbranch_scc1 L_pl_done{sfx}\ns_add_u32 s92, s92, {24*3456}\ns_waitcnt vmcnt(0)')
        self.pfld(18, 's[64:67]', 's92'); self.pfld(18, 's[68:71]', 's92')
        a(f'L_pl_done{sfx}:')

    def gwait(self):
        if not self.gthr: return
        a = self.a
        nm = a.label('gw')
        a(f'''
        v_min_u32 v20, {self.gthr - 1}, v2
        v_mul_u32_u24 v20, 37, v20
        s_add_u32 s57, s2, 37
        v_add_u32 v20, s57, v20
        v_and_b32 v20, 255, v20
        v_lshlrev_b32 v20, 7, v20
        s_mov_b32 s56, {WS_F}
        s_waitcnt vmcnt(0)
        ''')
        self.tag_from(167)
        self.poll(nm, ['buffer_load_dword v21, v20, s[44:47], s56 offen sc1'], [21, 21], 2, tagged=True, lanemask=True)

    def ffn1_body(self):
        a = self.a
        self.wfrags640(younger=0)
        self.stamp(2)
        a(f'''
        s_mul_i32 s90, s3, 320
        s_add_u32 s90, s90, {WS_H2}
        v_lshrrev_b32 v33, 3, v2                ; row
        v_and_b32 v35, 7, v2                    ; piece
        v_mul_u32_u24 v6, 1280, v33
        v_and_b32 v34, 3, v35
        v_lshl_add_u32 v34, v34, 4, v6
        v_lshl_add_u32 v6, v35, 4, v6
        v_mul_u32_u24 v3, 400, v33
        v_lshl_add_u32 v3, v35, 4, v3
        s_add_u32 s85, s87, {LW + 8192}
        v_add_u32 v3, s85, v3
        v_mul_u32_u24 v4, 400, v35
        v_lshrrev_b32 v33, 4, v2
        v_lshl_add_u32 v4, v33, 4, v4
        v_add_u32 v4, s85, v4
        v_mov_b32 v12, v4
        v_add_u32 v5, s99, v4
        v_add_u32 v4, s98, v4
        v_and_b32 v32, 7, v2
        v_lshlrev_b32 v32, 4, v32
        v_bfe_u32 v33, v2, 3, 1
        v_lshl_add_u32 v32, v33, 8, v32
        v_bfe_u32 v33, v2, 5, 1
        v_lshl_add_u32 v32, v33, 7, v32
        s_lshl_b32 s91, s8, 9
        s_add_u32 s91, s91, {WS_HID}
        ''')
        a('s_waitcnt lgkmcnt(0)')
        self.stamp(3)
        loads = ['buffer_load_dwordx4 v[140:143], v6, s[44:47], s90 offen sc1',
                 'buffer_load_dwordx4 v[144:147], v6, s[44:47], s90 offen offset:128 sc1',
                 'buffer_load_dwordx4 v[148:151], v34, s[44:47], s90 offen offset:256 sc1']
        self.poll('h2', loads, list(range(140, 152)), self.psleep, lanemask=True, pipe=self.pipe)
        self.stamp(4)
        for n in range(3): a(f'ds_write_b128 v3, v[{140+4*n}:{143+4*n}] offset:{128*n}')
        for n in range(5): a(f'ds_read_b128 v[{120+4*n}:{123+4*n}], v{([4, 5, 12, 12, 12] if self.help2 else [4, 4, 5, 5, 5])[n]} offset:{64*n}')
        self.mfma640('L_ctrl_end', lg=True)
        self.red640()
        self.round4(40, 28); self.round4(56, 30)
        for i in range(4): a(f'v_cmp_lt_f32 s[{64+2*i}:{65+2*i}], 0, v{40+i}')
        for i in range(4): a(f'v_cndmask_b32 v{20+i}, 0, 1.0, s[{64+2*i}:{65+2*i}]')
        a('v_pk_mul_f32 v[40:41], v[40:41], v[20:21]\nv_pk_mul_f32 v[42:43], v[42:43], v[22:23]')
        a('v_pk_mul_f32 v[40:41], v[40:41], v[56:57]\nv_pk_mul_f32 v[42:43], v[42:43], v[58:59]')
        self.pack4(28, 40)
        a(f'''
        v_min_u32 v30, -2, v28
        v_min_u32 v31, -2, v29
        v_min_u32 v28, -2, v28
        v_min_u32 v29, -2, v29
        v_permlane16_swap_b32 v28, v30
        v_permlane16_swap_b32 v29, v31
        s_mov_b32 exec_lo, 0xffff
        s_mov_b32 exec_hi, 0xffff
        buffer_store_dwordx4 v[28:31], v32, s[44:47], s91 offen sc1
        s_mov_b64 exec, -1
        ''')
        if self.stamp_on and not self.light:
            self.stamp(7); a('s_waitcnt vmcnt(0)'); self.stamp(8)
        a('s_branch L_ctrl_end')

    def ffn2_body(self):
        a = self.a
        assert self.bar and not self.help2
        a(f'''
        v_lshrrev_b32 v16, 4, v2                ; s
        v_bfe_u32 v17, v2, 2, 2
        v_lshl_add_u32 v17, v16, 3, v17
        v_lshlrev_b32 v9, 7, v17                ; (8s+r4)*128
        v_bfe_u32 v17, v2, 1, 1
        v_lshl_add_u32 v9, v17, 6, v9
        v_and_b32 v17, 1, v2
        v_lshl_add_u32 v9, v17, 3, v9
        s_lshl_b32 s85, s3, 4
        v_add_u32 v9, s85, v9
        v_add_u32 v10, {2*20480}, v9
        s_mul_i32 s90, s3, 320
        s_add_u32 s90, s90, {WS_H2}
        v_lshrrev_b32 v33, 3, v2                ; row
        v_and_b32 v35, 7, v2                    ; piece
        v_mul_u32_u24 v6, 1280, v33
        v_and_b32 v34, 3, v35
        v_lshl_add_u32 v34, v34, 4, v6
        v_lshl_add_u32 v6, v35, 4, v6
        v_mul_u32_u24 v3, 400, v33
        v_lshl_add_u32 v3, v35, 4, v3
        s_mul_i32 s85, s3, 3200
        s_add_u32 s85, s85, {LST + 4096}
        v_add_u32 v3, s85, v3
        v_mul_u32_u24 v11, 400, v35
        v_lshl_add_u32 v11, v16, 4, v11
        v_add_u32 v11, {LST + 4096}, v11
        v_add_u32 v12, s99, v11
        v_add_u32 v11, s98, v11
        v_lshlrev_b32 v32, 4, v35
        s_lshl_b32 s91, s8, 9
        s_lshl_b32 s85, s3, 7
        s_add_u32 s91, s91, s85
        s_add_u32 s91, s91, {WS_HID}
        ''')
        for n in range(5):
            a(f's_waitcnt vmcnt({4 * (4 - n)})\ns_barrier')
            for w in range(4):
                b = 40 + 16 * n + 4 * w
                base = 9 if w < 2 else 10; o = LW + 20480 * (w & 1) + 4096 * n
                a(f'ds_read_b64_tr_b16 v[{b}:{b+1}], v{base} offset:{o}')
                a(f'ds_read_b64_tr_b16 v[{b+2}:{b+3}], v{base} offset:{o + 512}')
            a('s_waitcnt lgkmcnt(0)')
        self.stamp(2); self.stamp(3)
        loads = ['buffer_load_dwordx4 v[156:159], v6, s[44:47], s90 offen sc1',
                 'buffer_load_dwordx4 v[160:163], v6, s[44:47], s90 offen offset:128 sc1',
                 'buffer_load_dwordx4 v[164:167], v34, s[44:47], s90 offen offset:256 sc1']
        self.poll('h2b', loads, list(range(156, 168)), self.psleep, lanemask=True)
        self.stamp(4)
        for n in range(3): a(f'ds_write_b128 v3, v[{156+4*n}:{159+4*n}] offset:{128*n}')
        a('s_waitcnt lgkmcnt(0)\ns_barrier')
        order = [(n, w) for n in range(5) for w in range(4)]
        R = 9
        def rd(i):
            n, w = order[i]; x = 120 + 4 * (i % R)
            a(f'ds_read_b128 v[{x}:{x+3}], v{11 if n < 2 else 12} offset:{3200*w + 64*n}')
        for i in range(R): rd(i)
        for i in range(20):
            n, w = order[i]; x = 120 + 4 * (i % R); b = 40 + 16 * n + 4 * w; d = 16 + 4 * (i & 1)
            a(f's_waitcnt lgkmcnt({min(i + R, 20) - i - 1})')
            a(f'v_mfma_f32_16x16x32_bf16 v[{d}:{d+3}], v[{b}:{b+3}], v[{x}:{x+3}], {"0" if i < 2 else "v[%d:%d]" % (d, d+3)}')
            if i + R < 20: rd(i + R)
        a('v_pk_add_f32 v[16:17], v[16:17], v[20:21]\nv_pk_add_f32 v[18:19], v[18:19], v[22:23]')
        for i in range(4): a(f'v_cvt_pk_bf16_f32 v{20+i}, 0, v{16+i}')
        for i in range(4): a(f'v_cvt_pk_bf16_f32 v{16+i}, 0, v{16+i}')
        for i in range(4): a(f'v_permlane32_swap_b32 v{16+i}, v{20+i}')
        for i in range(4): a(f'v_cmp_lt_f32 s[{64+2*i}:{65+2*i}], 0, v{16+i}')
        for i in range(4): a(f'v_cndmask_b32 v{24+i}, 0, 1.0, s[{64+2*i}:{65+2*i}]')
        a('v_pk_mul_f32 v[16:17], v[16:17], v[24:25]\nv_pk_mul_f32 v[18:19], v[18:19], v[26:27]')
        a('v_pk_mul_f32 v[16:17], v[16:17], v[20:21]\nv_pk_mul_f32 v[18:19], v[18:19], v[22:23]')
        self.pack4(28, 16)
        a(f'''
        v_min_u32 v30, -2, v28
        v_min_u32 v31, -2, v29
        v_min_u32 v28, -2, v28
        v_min_u32 v29, -2, v29
        v_permlane16_swap_b32 v28, v30
        v_permlane16_swap_b32 v29, v31
        s_mov_b64 exec, 0xff
        buffer_store_dwordx4 v[28:31], v32, s[44:47], s91 offen sc1
        s_mov_b64 exec, -1
        ''')
        if self.stamp_on and not self.light:
            self.stamp(7); a('s_waitcnt vmcnt(0)'); self.stamp(8)
        a('s_branch L_ctrl_end')

    def prefetch_late2(self):
        a = self.a
        self.cur_nt = self.nt('f')
        a(f'''
        s_sub_u32 s90, s5, 4
        s_cmp_lt_u32 s5, 2
        s_cselect_b32 s90, s5, s90       ; u<2 -> u ; u in [6,19) -> u-4 (2..14)
        s_cmp_eq_u32 s5, 30
        s_cselect_b32 s90, 15, s90
        s_cselect_b32 s91, 0, s6
        s_cmp_lt_u32 s91, 16
        s_cselect_b32 s91, 1, 0
        s_cmp_eq_u32 s5, 30
        s_cselect_b32 s91, 0, s91
        s_cmp_lg_u32 s91, 0
        s_cbranch_scc1 L_ctrl_fin
        s_cmp_eq_u32 s3, 0
        s_cbranch_scc1 L_ctrl_fin
        ''')
        self.srd(64, 28, 640 * 3456); self.srd(68, 30, 640 * 3456)
        a(f'''
        s_mul_i32 s92, s4, 3
        s_mov_b32 s91, s92
        s_mov_b32 s93, s92
        s_cmp_eq_u32 s4, 4
        s_cselect_b32 s91, 24, s91
        s_cselect_b32 s93, 25, s93
        s_cmp_eq_u32 s4, 6
        s_cselect_b32 s91, 26, s91
        v_and_b32 v17, 7, v2
        v_min_u32 v18, 2, v17
        v_add_u32 v18, s92, v18
        v_mov_b32 v19, s91
        v_cmp_eq_u32 vcc, 3, v17
        v_cndmask_b32 v18, v18, v19, vcc
        v_mov_b32 v19, s93
        v_cmp_eq_u32 vcc, 4, v17
        v_cndmask_b32 v18, v18, v19, vcc
        v_lshlrev_b32 v17, 7, v18
        v_lshrrev_b32 v16, 3, v2
        v_mul_u32_u24 v18, 3456, v16
        v_add_u32 v18, v18, v17
        s_lshr_b32 s92, s90, 2
        s_mul_i32 s92, s92, 160
        s_and_b32 s91, s90, 3
        s_mul_i32 s91, s91, 24
        s_add_u32 s92, s92, s91
        s_lshl_b32 s91, s3, 3
        s_add_u32 s92, s92, s91
        s_add_u32 s92, s92, 56           ; + 64 - 8
        s_mul_i32 s92, s92, 3456
        s_barrier
        {'s_barrier' if self.help2 == 1 else ''}
        ''')
        if self.help2 == 1: self.lds_wait(C_DONE, 5)
        self.gwait()
        self.pfld(18, 's[64:67]', 's92'); self.pfld(18, 's[68:71]', 's92')

    def dma640_setup(self, rot=False):
        a = self.a
        a(f'''
        v_lshrrev_b32 v16, 3, v2
        s_mul_i32 s85, s3, 160
        {'s_add_u32 s85, s85, s53' if rot else ''}
        v_add_u32 v16, s85, v16
        v_mul_lo_u32 v16, s52, v16
        v_and_b32 v17, 3, v2
        v_lshl_add_u32 v16, v17, 4, v16
        v_mov_b32 v17, 0
        v_mov_b32 v18, s48
        v_mov_b32 v19, s49
        v_mov_b32 v20, s50
        v_mov_b32 v21, s51
        v_and_b32 v22, 4, v2
        v_cmp_ne_u32 vcc, 0, v22
        v_cndmask_b32 v18, v18, v20, vcc
        v_cndmask_b32 v19, v19, v21, vcc
        v_lshl_add_u64 v[4:5], v[16:17], 0, v[18:19]
        s_lshl_b32 s54, s52, 3
        s_mov_b32 s55, 0
        ''')
    def dma640_issue(self, lo, hi, WD=99, rot=False):
        a = self.a
        for n in range(lo, hi):
            a(f's_add_u32 m0, s87, {LW + 1024*n}')
            if n >= WD: a(f's_waitcnt vmcnt({WD-1})')
            a(f'global_load_lds_dwordx4 v[4:5], off {self.cur_nt}')
            if n < 19: a(f'v_lshl_add_u64 v[4:5], v[4:5], 0, {"s[96:97]" if rot and n == 7 else "s[92:93]" if rot and n == 3 and self.help2 else "s[54:55]"}')
    def dma640(self, WD):
        self.dma640_setup(); self.dma640_issue(0, 20, WD)

    def wfrags640(self, younger=None):
        a = self.a
        for n in range(5):
            if younger is not None: a(f's_waitcnt vmcnt({younger + 4 * (4 - n)})')
            for T in range(4):
                b = 40 + 16 * n + 4 * T
                a(f'ds_read_b64_tr_b16 v[{b}:{b+1}], v9 offset:{LW + 4096*n + 32*T}')
                a(f'ds_read_b64_tr_b16 v[{b+2}:{b+3}], v9 offset:{LW + 4096*n + 32*T + 512}')
            a('s_waitcnt lgkmcnt(0)')

    def mfma640(self, skip, extra=(), lg=False):
        a = self.a
        if lg and self.mo != 2: a('s_waitcnt lgkmcnt(0)')
        def mf(T, n):
            d = 16 + 4 * T; b = 40 + 16 * n + 4 * T
            a(f'v_mfma_f32_16x16x32_bf16 v[{d}:{d+3}], v[{b}:{b+3}], v[{120+4*n}:{123+4*n}], {"0" if n == 0 else "v[%d:%d]" % (d, d+3)}')
        def wr(T): a(f'ds_write_b128 v10, v[{16+4*T}:{19+4*T}] offset:{LW + 1024*T}')
        if self.mo == 0:
            for T in range(4):
                for n in range(5): mf(T, n)
                if T >= 2: wr(T - 2)
            wr(2); wr(3)
        elif self.mo == 1:
            for n in range(5):
                for T in range(4): mf(T, n)
            for T in range(4): wr(T)
        else:
            for n in range(5):
                if lg: a(f's_waitcnt lgkmcnt({4 - n})')
                for T in (0, 1): mf(T, n)
            for n in range(5):
                for T in (2, 3): mf(T, n)
                if n >= 3: wr(n - 3)
            wr(2); wr(3)
        reads = []
        for w in range(4):
            reads.append(f'ds_read_b128 v[{40+4*w}:{43+4*w}], v11 offset:{LW + 20480*w}')
            reads.append(f'ds_read_b128 v[{56+4*w}:{59+4*w}], v11 offset:{LW + 20480*w + 2048}')
        self.arrive2(C_A, 3, skip, reads + list(extra))

    def red640(self):
        self.a('s_waitcnt lgkmcnt(0)')
        self.sum_partials(40, [40, 44, 48, 52]); self.sum_partials(56, [56, 60, 64, 68])

    def silu(self, ns=range(5)):
        a = self.a
        a(f's_mov_b32 s85, {LOG2E | 0x80000000}')
        for n in ns:
            b = 120 + 4 * n
            for i in range(4): self.unpack(16 + 2 * i, b + i)
            for i in range(8): a(f'v_mul_f32 v{24+i}, s85, v{16+i}')
            for i in range(8): a(f'v_exp_f32 v{24+i}, v{24+i}')
            for i in range(8): a(f'v_add_f32 v{24+i}, 1.0, v{24+i}')
            for i in range(8): a(f'v_rcp_f32 v{24+i}, v{24+i}')
            for i in range(8): a(f'v_mul_f32 v{16+i}, v{16+i}, v{24+i}')
            for i in range(4): a(f'v_cvt_pk_bf16_f32 v{b+i}, v{16+2*i}, v{17+2*i}')

    def add64(self, d, base, off):
        self.a(f's_add_u32 s{d}, s{base}, {off}\ns_addc_u32 s{d+1}, s{base+1}, 0')

    def control(self):
        a = self.a
        CL = '; ' if 'c' in self.abl else ''
        a('L_control:\ns_setprio 3')
        self.common2()
        a('v_add_u32 v14, v7, v13\nv_mov_b32 v16, 0\nv_mov_b32 v17, 0\nv_mov_b32 v18, 0\nv_mov_b32 v19, 0\nds_write_b128 v14, v[16:19]')
        self.decode()
        a('s_waitcnt lgkmcnt(0)\ns_barrier')
        self.srd(44, 42, WS_SIZE)
        if self.stamp_on: a('v_writelane_b32 v15, s98, 13')
        self.cur_cls = -1
        self.stamp(0)
        self.cur_cls = 99
        if 'r' in self.abl: a('s_branch L_ctrl_fin')
        if self.tlbw:
            a(f'''
            s_cmp_lg_u32 s3, 3
            s_cbranch_scc1 L_notlb
            v_mov_b32 v3, 0
            s_lshl_b32 s85, s2, 2
            s_add_u32 s85, s85, 3
            s_lshl_b32 s85, s85, 18
            s_add_u32 s56, s20, s85
            s_addc_u32 s57, s21, 0
            s_mul_i32 s85, s14, 163840
            s_add_u32 s58, s24, s85
            s_addc_u32 s59, s25, 0
            v_mov_b32 v4, 163836
            s_mov_b64 exec, 1
            global_load_dword v162, v3, s[56:57]
            global_load_dword v162, v3, s[58:59]
            global_load_dword v162, v4, s[58:59]
            global_load_dword v162, v3, s[38:39]
            s_mov_b64 exec, -1
            L_notlb:
            ''')
        if self.pf: self.prefetch()
        if self.pfb:
            a(f's_cmp_eq_u32 s7, {R_G1}\ns_cbranch_scc1 L_pb_done')
            self.prefetch_b('')
        if self.dry:
            a(f'''
            s_cmp_lg_u32 s3, 1
            s_cbranch_scc1 L_dry_done
            s_cmp_eq_u32 s7, {R_G1}
            s_cbranch_scc1 L_dry_done
            v_mov_b32 v4, 0
            v_mov_b32 v5, 0
            v_mov_b32 v35, 0
            s_mov_b64 exec, 0
            s_branch L_tail_dry
            L_dry_ret:
            s_waitcnt lgkmcnt(0)
            s_mov_b64 exec, -1
            L_dry_done:
            ''')
        a(f'''
        v_mov_b32 v3, 0
        buffer_load_dword v167, v3, s[44:47], 0 offen sc1
        s_mul_i32 s87, s3, 20480
        v_lshrrev_b32 v16, 4, v2         ; s
        v_bfe_u32 v17, v2, 2, 2          ; r4
        v_and_b32 v18, 3, v2             ; c
        v_lshl_add_u32 v19, v16, 3, v17  ; 8s+r4
        v_lshlrev_b32 v9, 7, v19
        v_lshl_add_u32 v9, v18, 3, v9
        v_add_u32 v9, s87, v9
        v_add_u32 v10, s87, v7
        v_and_b32 v17, 7, v2             ; b
        v_bfe_u32 v18, v2, 3, 1          ; t
        v_lshlrev_b32 v11, 8, v16
        v_lshl_add_u32 v11, v17, 4, v11
        v_lshl_add_u32 v11, v18, 10, v11
        v_mul_u32_u24 v19, 1280, v17
        v_lshl_add_u32 v6, v16, 4, v19
        v_lshlrev_b32 v8, 5, v18
        v_lshl_add_u32 v8, v16, 3, v8    ; (16t+4s')*2 bytes
        v_lshlrev_b32 v12, 2, v2         ; lane*4
        s_cmp_eq_u32 s7, {R_Q}
        s_cbranch_scc1 L_role_q
        s_cmp_eq_u32 s7, 0
        s_cbranch_scc1 L_share
        s_cmp_eq_u32 s7, {R_FFN}
        s_cbranch_scc1 L_share
        s_cmp_eq_u32 s7, {R_DOWN}
        s_cbranch_scc1 L_share
        s_cmp_eq_u32 s7, {R_RED}
        s_cbranch_scc1 L_share
        ''')
        self.cur_nt = self.nt('m')
        a(f'''
        s_movk_i32 s52, 7680
        s_cmp_eq_u32 s7, {R_G1}
        s_cbranch_scc1 L_role_g1
        ''')
        if 'm' in self.abl or 'M' in self.abl: a('s_branch L_ctrl_fin')
        self.srd(56, 34, 10240)
        a('s_mul_i32 s85, s3, 320')
        for n in range(5):
            a(f'buffer_load_dwordx4 v[{120+4*n}:{123+4*n}], v6, s[56:59], s85 offen offset:{64*n}')
        a(f'''
        s_lshl_b32 s9, s8, 7
        s_add_u32 s9, s9, 2560
        s_add_u32 s48, s36, s9
        s_addc_u32 s49, s37, 0
        s_add_u32 s50, s48, 64
        s_addc_u32 s51, s49, 0
        s_waitcnt vmcnt(0)
        ''')
        self.silu()
        if self.pfb: self.lds_wait(C_PF2, 1, sleep=2)
        self.dma640(self.WDM)
        a('s_waitcnt vmcnt(0)')
        self.stamp(2)
        self.wfrags640()
        self.mfma640('L_ctrl_end')
        a(f'''
        v_and_b32 v22, 7, v2
        v_mul_u32_u24 v22, 5120, v22
        v_add_u32 v22, v22, v8
        s_lshl_b32 s90, s8, 7
        s_add_u32 s90, s90, {WS_MODO}
        ''')
        self.red640()
        self.pack4(24, 40); self.pack4(26, 56)
        self.sanitize([24, 25, 26, 27])
        self.lds_wait(C_QOK, 1, sleep=8)
        a(f'''
        buffer_store_dwordx2 v[24:25], v22, s[44:47], s90 offen sc1
        buffer_store_dwordx2 v[26:27], v22, s[44:47], s90 offen offset:64 sc1
        s_branch L_ctrl_end
        L_role_g1:
        s_lshl_b32 s9, s8, 6
        s_add_u32 s48, s36, s9
        s_addc_u32 s49, s37, 0
        s_add_u32 s50, s48, 1280
        s_addc_u32 s51, s49, 0
        v_add_u32 v34, v19, v8
        ''')
        self.dma640_setup()
        if self.cxfirst: self.lds_wait(C_CX, 8)
        self.stamp(6)
        self.dma640_issue(0, 20)
        self.srd(60, 16, 10240)
        a(f'''
        buffer_load_dwordx2 v[150:151], v34, s[60:63], s9 offen
        s_lshl_b32 s85, s8, 2
        s_add_u32 s85, s85, s3
        s_lshl_b32 s85, s85, 11
        s_add_u32 s85, s85, {SB2}
        v_mov_b32 v152, -1
        v_mov_b32 v153, -1
        v_mov_b32 v154, -1
        v_mov_b32 v155, -1
        {CL}buffer_store_dwordx4 v[152:155], v7, s[44:47], s85 offen sc1
        {CL}buffer_store_dwordx4 v[152:155], v7, s[44:47], s85 offen offset:1024 sc1
        v_and_b32 v16, 7, v2
        v_mul_u32_u24 v16, {ACTS}, v16
        v_lshrrev_b32 v17, 4, v2
        v_lshl_add_u32 v16, v17, 4, v16
        s_mul_i32 s85, s3, 320
        s_add_u32 s85, s85, {L_ACT}
        v_add_u32 v35, s85, v16
        ''')
        self.signal(C_GO)
        self.stamp(1)
        self.lds_wait(C_ACT, 8)
        for n in range(5): a(f'ds_read_b128 v[{120+4*n}:{123+4*n}], v35 offset:{64*n}')
        self.stamp(3)
        self.wfrags640(younger=3)
        self.tag_from(167)
        a('s_waitcnt vmcnt(0)')
        self.stamp(2)
        self.mfma640('L_ctrl_end')
        a(f'''
        v_and_b32 v22, 7, v2
        v_lshl_add_u32 v23, v22, 3, v13
        ds_read_b64 v[36:37], v23 offset:{L_STAT}
        ''')
        self.red640()
        self.pack4(24, 40); self.pack4(26, 56)
        self.unpack4(56, 26)
        a('v_pk_add_f32 v[56:57], v[56:57], 1.0 op_sel_hi:[1,0]\nv_pk_add_f32 v[58:59], v[58:59], 1.0 op_sel_hi:[1,0]')
        self.round4(56, 26)
        self.unpack4(40, 24)
        self.unpack4(44, 150)
        for i in range(4): a(f'v_sub_f32 v{44+i}, v{44+i}, v36')
        self.round4(44, 28)
        for i in range(4): a(f'v_mul_f32 v{44+i}, v{44+i}, v37')
        self.round4(44, 28)
        a('v_pk_mul_f32 v[44:45], v[44:45], v[56:57]\nv_pk_mul_f32 v[46:47], v[46:47], v[58:59]')
        self.round4(44, 28)
        a('v_pk_add_f32 v[44:45], v[44:45], v[40:41]\nv_pk_add_f32 v[46:47], v[46:47], v[42:43]')
        a(f'''
        v_cvt_pk_bf16_f32 v28, v44, v45
        v_cvt_pk_bf16_f32 v30, v46, v47
        v_mov_b32 v29, s94
        v_mov_b32 v31, s94
        v_lshlrev_b32 v22, 4, v22               ; b*16
        v_lshl_add_u32 v22, v8, 4, v22          ; + (16t+4s')*32 = t*512 + s'*128
        s_lshl_b32 s85, s8, 10
        s_add_u32 s85, s85, {WS_H1}
        buffer_store_dwordx4 v[28:31], v22, s[44:47], s85 offen sc1
        s_branch L_ctrl_end
        ''')
        self.cur_nt = self.nt('q')
        a(f'''
        L_role_q:
        {'s_branch L_ctrl_fin' if 'q' in self.abl else ''}
        s_lshl_b32 s9, s8, 7
        s_add_u32 s48, s22, s9
        s_addc_u32 s49, s23, 0
        s_add_u32 s50, s48, 64
        s_addc_u32 s51, s49, 0
        s_movk_i32 s52, 8192
        ''')
        if self.pfb: self.lds_wait(C_PF, 1, sleep=2)
        self.dma640(99)
        a(f'''
        s_and_b32 s85, s8, 1
        s_lshl_b32 s85, s85, 2
        s_add_u32 s85, s85, s3
        s_lshl_b32 s85, s85, 5
        s_lshr_b32 s86, s8, 1
        s_add_u32 s85, s85, s86
        s_mul_i32 s85, s85, 2560
        s_add_u32 s85, s85, {WS_P}
        v_mov_b32 v152, -1
        v_mov_b32 v153, -1
        v_mov_b32 v154, -1
        v_mov_b32 v155, -1
        v_lshlrev_b32 v19, 3, v2
        {CL}buffer_store_dwordx4 v[152:155], v7, s[44:47], s85 offen sc1
        {CL}buffer_store_dwordx4 v[152:155], v7, s[44:47], s85 offen offset:1024 sc1
        {CL}buffer_store_dwordx2 v[152:153], v19, s[44:47], s85 offen offset:2048 sc1
        ''')
        self.signal(C_GO)
        a('s_waitcnt vmcnt(0)')
        self.stamp(2)
        self.tag_from(167)
        self.wfrags640()
        a(f'''
        s_mul_i32 s90, s3, 5120
        s_add_u32 s90, s90, {WS_H1}
        s_add_u32 s91, s90, 4096
        ''')
        self.stamp(3)
        if self.h1probe:
            a('v_min_u32 v34, 4, v2\nv_lshlrev_b32 v34, 10, v34')
            self.poll('h1p', ['buffer_load_dword v35, v34, s[44:47], s90 offen offset:1020 sc1'], [35, 35], 2, tagged=True)
        loads = [f'buffer_load_dwordx4 v[{120+4*n}:{123+4*n}], v7, s[44:47], s{90 if n < 4 else 91} offen offset:{1024*(n%4)} sc1' for n in range(5)]
        self.poll('h1', loads, [121 + 2 * i for i in range(10)], 4, tagged=True)
        self.stamp(4)
        for n in range(5):
            b = 120 + 4 * n
            a(f'v_mov_b32_dpp v{b+3}, v{b+2} row_ror:8 row_mask:0xf bank_mask:0xf')
            a(f'v_mov_b32 v{b+1}, v{b+2}')
            a(f'v_mov_b32_dpp v{b+2}, v{b} row_ror:8 row_mask:0xf bank_mask:0xf')
        self.mfma640('L_ctrl_end')
        a(f'''
        v_and_b32 v22, 7, v2
        v_lshlrev_b32 v22, 14, v22              ; b*32*512
        v_lshl_add_u32 v22, v8, 1, v22          ; + col*4
        s_lshl_b32 s85, s8, 8                   ; h*512 + half*256
        s_add_u32 s85, s85, {WS_Q}
        v_mov_b32 v29, s94
        v_mov_b32 v31, s94
        v_mov_b32 v33, s94
        v_mov_b32 v35, s94
        ''')
        self.red640()
        a(f'''
        v_cvt_pk_bf16_f32 v28, v40, v41
        v_cvt_pk_bf16_f32 v30, v42, v43
        v_cvt_pk_bf16_f32 v32, v56, v57
        v_cvt_pk_bf16_f32 v34, v58, v59
        buffer_store_dwordx4 v[28:31], v22, s[44:47], s85 offen sc1
        buffer_store_dwordx4 v[32:35], v22, s[44:47], s85 offen offset:128 sc1
        s_branch L_ctrl_end
        ''')
        self.cur_nt = self.nt('f')
        a(f'''
        L_role_ffn:
        s_lshl_b32 s9, s8, 6
        s_add_u32 s48, s28, s9
        s_addc_u32 s49, s29, 0
        s_add_u32 s50, s30, s9
        s_addc_u32 s51, s31, 0
        s_movk_i32 s52, 3456
        ''')
        if self.help2:
            a(f'''
            s_movk_i32 s96, {8*3456}
            s_mov_b32 s92, s96
            s_mov_b32 s93, 0
            s_bitcmp1_b32 s8, 0
            s_cselect_b32 s53, 32, 0
            s_cselect_b32 s92, {(-56*3456) & 0xffffffff}, s92
            s_cselect_b32 s93, -1, 0
            s_cselect_b32 s96, {40*3456}, s96
            s_mov_b32 s97, 0
            s_cselect_b32 s98, 64, 0
            s_cselect_b32 s99, -64, 0
            ''')
        else:
            a(f'''
            s_bitcmp1_b32 s8, 0
            {'' if self.rotm else 's_cmp_eq_u32 s8, 999'}
            s_cselect_b32 s53, 96, 0
            s_cselect_b32 s96, {(-152*3456) & 0xffffffff}, 0
            s_cselect_b32 s97, -1, 0
            s_cselect_b32 s98, 192, 0
            s_cselect_b32 s99, -128, 0
            s_cbranch_scc1 L_ffn_r
            s_movk_i32 s96, {8*3456}
            L_ffn_r:
            ''')
        self.dma640_setup(rot=True)
        self.dma640_issue(0, self.nEf, 1, rot=True)
        if self.nMf:
            self.lds_wait(C_VI, 8, sleep=2)
            self.dma640_issue(self.nEf, self.nEf + self.nMf, rot=True)
        if self.bar: a('s_barrier\ns_barrier')
        self.lds_wait(C_DONE, 5, sleep=0 if self.bar else 2)
        self.gwait()
        self.dma640_issue(self.nEf + self.nMf, 20, rot=True)
        if self.ffn2:
            self.ffn2_body()
        if not self.ffn2:
            self.ffn1_body()
        a('L_role_down:')
        self.srd(72, 32, 1728 * 1280); self.srd(80, 38, 10240)
        a(f'''
        s_add_u32 s76, s42, {WS_HID}
        s_addc_u32 s77, s43, 0
        s_mov_b32 s78, {27*1024}
        s_mov_b32 s79, 0x20000
        v_lshrrev_b32 v16, 1, v2
        v_mul_u32_u24 v4, 1280, v16
        v_and_b32 v16, 1, v2
        v_lshl_add_u32 v4, v16, 4, v4
        s_mul_i32 s85, s3, {7*64*1280}
        s_lshl_b32 s9, s8, 5
        s_add_u32 s85, s85, s9
        s_mul_i32 s87, s3, 14336
        ''')
        a(f's_and_b32 s48, s8, {3 if self.rotm else 0}\ns_lshl_b32 s48, s48, 11')
        for n in range(1, 7):
            a(f's_add_u32 s{48+n}, s{47+n}, 1024\ns_cmp_ge_u32 s{48+n}, 7168\ns_cselect_b32 s{48+n}, 0, s{48+n}')
        if self.otouch: a('v_mov_b32 v16, 0\nbuffer_load_dword v162, v16, s[80:83], 0 offen')
        for n in range(14):
            if n == self.nEd and self.nMd: self.lds_wait(C_VI, 8, sleep=2)
            if n == self.nEd + self.nMd:
                if self.bar: a('s_barrier\ns_barrier')
                self.lds_wait(C_DONE, 5, sleep=0 if self.bar else 2)
                self.gwait()
                if self.ddelay: a(f's_sleep {self.ddelay}')
            if n % 2 == 0: a(f's_mul_i32 s55, s{48+n//2}, 80\ns_add_u32 s55, s55, s85')
            else: a(f's_add_u32 s55, s55, {32*1280}')
            a(f's_add_u32 m0, s87, {LW + 1024*n}')
            if n < self.nEd: a(f's_waitcnt vmcnt(0)')
            a(f'buffer_load_dwordx4 v4, s[72:75], s55 offen {self.nt("f")} lds')
        a(f'''
        v_lshrrev_b32 v16, 4, v2         ; s
        v_bfe_u32 v17, v2, 2, 2          ; r4
        v_lshl_add_u32 v19, v16, 3, v17
        v_lshlrev_b32 v9, 5, v19
        v_bfe_u32 v17, v2, 1, 1
        v_lshl_add_u32 v9, v17, 10, v9
        v_and_b32 v17, 1, v2
        v_lshl_add_u32 v9, v17, 3, v9
        v_add_u32 v9, s87, v9
        v_add_u32 v10, s87, v7
        v_and_b32 v17, 7, v2             ; b
        v_bfe_u32 v18, v2, 3, 1          ; a / half
        v_lshlrev_b32 v3, 7, v16
        v_lshl_add_u32 v3, v17, 4, v3
        v_lshl_add_u32 v3, v18, 9, v3
        s_mul_i32 s86, s3, 7168
        v_add_u32 v3, s86, v3
        v_and_b32 v16, 1, v16            ; s'
        v_lshlrev_b32 v11, 8, v16
        v_lshl_add_u32 v11, v17, 4, v11
        v_lshl_add_u32 v11, v18, 10, v11
        v_lshlrev_b32 v8, 4, v18
        v_lshl_add_u32 v8, v16, 3, v8    ; (8a+4s')*2
        v_mul_u32_u24 v5, 5120, v17
        v_add_u32 v5, v5, v8
        v_mul_u32_u24 v6, 1280, v17
        v_add_u32 v6, v6, v8
        s_add_u32 s90, s9, {WS_MODO + 3840}
        s_add_u32 s91, s9, {WS_X1}
        s_movk_i32 s92, 4096
        ''')
        for n in range(7):
            a(f's_waitcnt vmcnt({12 - 2*n})')
            for ac in range(2):
                b = 40 + 8 * n + 4 * ac
                a(f'ds_read_b64_tr_b16 v[{b}:{b+1}], v9 offset:{LW + 2048*n + 16*ac}')
                a(f'ds_read_b64_tr_b16 v[{b+2}:{b+3}], v9 offset:{LW + 2048*n + 16*ac + 128}')
            if n % 2: a('s_waitcnt lgkmcnt(0)')
        self.stamp(2)
        self.tag_from(167)
        a('s_waitcnt lgkmcnt(0)')
        self.poll('gb', ['buffer_load_dwordx2 v[32:33], v5, s[44:47], s90 offen sc1'], [32, 33], 4)
        self.unpack4(140, 32)
        self.stamp(3)
        self.poll('x1', ['buffer_load_dwordx2 v[32:33], v6, s[44:47], s91 offen sc1'], [32, 33], 1, lanemask=True)
        self.unpack4(144, 32)
        self.stamp(5)
        if self.hdelay: a(f's_sleep {self.hdelay}')
        for i in range(8): a(f'v_mov_b32 v{16+i}, 0')
        def hld(n): return f'buffer_load_dwordx4 v[{104+4*n}:{107+4*n}], v3, s[76:79], s{48+n} offen sc1'
        if self.trig:
            a(f'''
            s_mov_b32 s89, {SPIN_LIMIT}
            v_lshlrev_b32 v34, {9 + self.trsh}, v2
            v_add_u32 v34, s86, v34
            s_mov_b64 exec, {(1 << (12 >> self.trsh)) - 1}
            L_hd_trig:
            buffer_load_dword v35, v34, s[76:79], 0 offen offset:508 sc1
            s_sub_u32 s89, s89, 1
            s_cbranch_scc1 L_hd_go
            s_waitcnt vmcnt(0)
            v_cmp_ne_u32 vcc, -1, v35
            s_nop 1
            s_bcnt1_i32_b32 s85, vcc_lo
            s_cmp_lt_u32 s85, {self.trig}
            s_cbranch_scc1 L_hd_trig
            L_hd_go:
            s_mov_b64 exec, -1
            s_waitcnt vmcnt(0)
            ''')
            self.stamp(7)
        NH = 4 if 'h' in self.abl else 2 if 'H' in self.abl else 7
        a(f's_mov_b32 s90, {(1 << NH) - 1}\ns_mov_b32 s89, {SPIN_LIMIT}\nv_mov_b32 v34, 0')
        for n in range(NH): a(hld(n))
        a('L_hid_poll:')
        for n in range(NH):
            b = 104 + 4 * n
            a(f'''
            s_waitcnt vmcnt({NH-1})
            s_bitcmp1_b32 s90, {n}
            s_cbranch_scc0 L_hd_dm{n}
            v_max3_u32 v36, v{b}, v{b+1}, v{b+2}
            v_max_u32 v36, v36, v{b+3}
            v_cmp_eq_u32 vcc, -1, v36
            s_cbranch_vccz L_hd_ok{n}
            {hld(n)}
            s_branch L_hd_nx{n}
            L_hd_ok{n}:
            v_mfma_f32_16x16x32_bf16 v[16:19], v[{40+8*n}:{43+8*n}], v[{b}:{b+3}], v[16:19]
            v_mfma_f32_16x16x32_bf16 v[20:23], v[{44+8*n}:{47+8*n}], v[{b}:{b+3}], v[20:23]
            s_bitset0_b32 s90, {n}
            s_cmp_eq_u32 s90, 0
            s_cbranch_scc1 L_hid_ok
            L_hd_dm{n}:
            buffer_load_dword v35, v34, s[76:79], 0 offen
            L_hd_nx{n}:
            ''')
        a(f'''
        s_sub_u32 s89, s89, 1
        s_cbranch_scc0 L_hid_poll
        L_hid_ok:
        s_nop 7
        ''')
        self.stamp(4)
        if self.stamp_on and not self.light: a(f's_sub_u32 s96, {SPIN_LIMIT}, s89\nv_writelane_b32 v15, s96, 12')
        a(f'ds_write_b128 v10, v[16:19] offset:{LW}\nds_write_b128 v10, v[20:23] offset:{LW + 1024}')
        reads = []
        for w in range(4):
            reads.append(f'ds_read_b128 v[{40+8*w}:{43+8*w}], v11 offset:{LW + 14336*w}')
            reads.append(f'ds_read_b128 v[{44+8*w}:{47+8*w}], v11 offset:{LW + 14336*w + 640}')
        self.arrive2(C_A, 3, 'L_ctrl_end', reads)
        a('s_waitcnt lgkmcnt(0)')
        self.sum_partials(40, [40 + 4 * i for i in range(8)])
        self.round4(40, 28)
        a('v_pk_mul_f32 v[40:41], v[40:41], v[140:141]\nv_pk_mul_f32 v[42:43], v[42:43], v[142:143]')
        self.round4(40, 28)
        a('v_pk_add_f32 v[40:41], v[40:41], v[144:145]\nv_pk_add_f32 v[42:43], v[42:43], v[146:147]')
        self.pack4(28, 40)
        a(f'''
        s_mov_b32 exec_hi, 0
        buffer_store_dwordx2 v[28:29], v6, s[80:83], s9 offen {self.outf}
        s_cmp_lg_u32 s8, 0
        s_cbranch_scc1 L_noepoch
        s_mov_b64 exec, 1
        v_mov_b32 v20, 0
        v_mov_b32 v21, s94
        buffer_store_dword v21, v20, s[44:47], 0 offen sc1
        L_noepoch:
        s_mov_b64 exec, -1
        s_branch L_ctrl_end
        ''')
        a('L_role_red:')
        self.srd(60, 16, 10240)
        a(f'''
        v_lshlrev_b32 v8, 3, v2          ; lane*8
        s_mul_i32 s9, s8, 1280
        buffer_load_dwordx2 v[26:27], v8, s[60:63], s9 offen
        buffer_load_dwordx2 v[28:29], v8, s[60:63], s9 offen offset:512
        buffer_load_dword v30, v12, s[60:63], s9 offen offset:1024
        s_lshl_b32 s90, s8, 14
        s_lshl_b32 s85, s3, 12
        s_add_u32 s90, s90, s85
        s_add_u32 s90, s90, {WS_Q}
        s_waitcnt vmcnt(0)
        ''')
        self.tag_from(167)
        for i in range(5): self.unpack(120 + 2 * i, 26 + i)
        self.lds_wait(C_QOK, 1, sleep=8)
        loads = [f'buffer_load_dwordx4 v[{40+4*n}:{43+4*n}], v7, s[44:47], s90 offen offset:{1024*n} sc1' for n in range(4)]
        self.poll('qall', loads, [41 + 2 * i for i in range(8)], 8, tagged=True)
        a(f'''
        s_mul_i32 s90, s8, 5120
        s_add_u32 s90, s90, {WS_MODO}
        ''')
        loads = []
        for ch in range(3):
            b = 40 + 6 * ch
            loads += [f'buffer_load_dwordx2 v[{b}:{b+1}], v8, s[44:47], s90 offen offset:{1280*ch} sc1',
                      f'buffer_load_dwordx2 v[{b+2}:{b+3}], v8, s[44:47], s90 offen offset:{1280*ch + 512} sc1',
                      f'buffer_load_dword v{b+4}, v12, s[44:47], s90 offen offset:{1280*ch + 1024} sc1']
        self.poll('modo', loads, [40 + 6 * ch + i for ch in range(3) for i in range(5)], 8)
        for ch in range(3):
            for i in range(5): self.unpack(130 + 10 * ch + 2 * i, 40 + 6 * ch + i)
        for i in range(5):
            a(f'v_pk_add_f32 v[{150+2*i}:{151+2*i}], v[{150+2*i}:{151+2*i}], 1.0 op_sel_hi:[1,0]')
            a(f'v_cvt_pk_bf16_f32 v26, v{150+2*i}, v{151+2*i}')
            self.unpack(150 + 2 * i, 26)
        for i in range(10): a(f'v_mov_b32 v{16+i}, 0')
        a(f'''
        s_lshl_b32 s91, s8, 5
        s_lshl_b32 s85, s3, 3
        s_add_u32 s91, s91, s85
        s_mul_i32 s91, s91, 2560
        s_add_u32 s91, s91, {WS_P}
        s_mul_i32 s87, s3, 2560
        v_add_u32 v10, s87, v7
        v_add_u32 v11, s87, v8
        s_add_u32 s92, s9, {WS_H2}
        s_add_u32 s93, s9, {WS_X1}
        ''')
        self.stamp(2)
        self.lds_wait(C_PROG, 1, sleep=8)
        self.stamp(3)
        a(f'''
        s_mov_b32 s90, 0xff
        s_mov_b32 s89, {SPIN_LIMIT}
        v_and_b32 v34, 7, v2
        v_mul_u32_u24 v34, 2560, v34
        s_mov_b32 s86, 0
        L_p_poll:
        s_mov_b32 s95, s90
        s_cmp_lg_u32 s86, 0
        s_cbranch_scc1 L_p_fetch
        ds_read_b32 v14, v13 offset:{C_K2}
        s_waitcnt lgkmcnt(0)
        v_readfirstlane_b32 s88, v14
        s_cmp_ge_u32 s88, 8
        s_cselect_b32 s86, 1, 0
        s_cbranch_scc1 L_p_fetch
        s_sleep 4
        buffer_load_dword v35, v34, s[44:47], s91 offen offset:2556 sc1
        s_waitcnt vmcnt(0)
        v_cmp_ne_u32 vcc, -1, v35
        s_nop 1
        s_and_b32 s95, s90, vcc_lo
        s_cbranch_scc0 L_p_next
        L_p_fetch:
        s_bcnt1_i32_b32 s85, s90
        s_and_b32 s85, s85, s86
        s_bcnt1_i32_b32 s88, s90
        s_cmp_eq_u32 s88, s85
        s_cbranch_scc1 L_p_one
        ''')
        for g in range(8):
            b = 40 + 10 * g
            a(f'''
            s_bitcmp1_b32 s95, {g}
            s_cbranch_scc0 L_p_sk{g}
            s_add_u32 s85, s91, {2560*g}
            buffer_load_dwordx4 v[{b}:{b+3}], v7, s[44:47], s85 offen sc1
            buffer_load_dwordx4 v[{b+4}:{b+7}], v7, s[44:47], s85 offen offset:1024 sc1
            buffer_load_dwordx2 v[{b+8}:{b+9}], v8, s[44:47], s85 offen offset:2048 sc1
            L_p_sk{g}:
            ''')
        a('s_waitcnt vmcnt(0)')
        for g in range(8):
            b = 40 + 10 * g
            a(f'''
            s_bitcmp1_b32 s95, {g}
            s_cbranch_scc0 L_p_ck{g}
            v_max3_u32 v36, v{b}, v{b+1}, v{b+2}
            v_max3_u32 v37, v{b+3}, v{b+4}, v{b+5}
            v_max3_u32 v36, v36, v{b+6}, v{b+7}
            v_max3_u32 v37, v37, v{b+8}, v{b+9}
            v_max_u32 v36, v36, v37
            v_cmp_eq_u32 vcc, -1, v36
            s_cbranch_vccnz L_p_ck{g}
            s_bitset0_b32 s90, {g}
            ''')
            for i in range(5): a(f'v_pk_add_f32 v[{16+2*i}:{17+2*i}], v[{16+2*i}:{17+2*i}], v[{b+2*i}:{b+2*i+1}]')
            a(f'L_p_ck{g}:')
        a(f'''
        s_cmp_eq_u32 s90, 0
        s_cbranch_scc1 L_p_ok
        L_p_next:
        s_sub_u32 s89, s89, 1
        s_cbranch_scc0 L_p_poll
        s_branch L_p_ok
        L_p_one:
        s_ff1_i32_b32 s85, s90
        s_mul_i32 s85, s85, 2560
        s_add_u32 s85, s85, s91
        ''')
        one = ['buffer_load_dwordx4 v[110:113], v7, s[44:47], s85 offen sc1', 'buffer_load_dwordx4 v[114:117], v7, s[44:47], s85 offen offset:1024 sc1', 'buffer_load_dwordx2 v[118:119], v8, s[44:47], s85 offen offset:2048 sc1']
        if self.pipe:
            for l in one: a(l)
            a(f's_sleep {self.pipe}')
        if self.premerge:
            for k in range(3):
                a(f's_add_u32 s88, s3, {k+1}\ns_and_b32 s88, s88, 3\ns_mul_i32 s88, s88, 2560\nv_add_u32 v{100+2*k}, s88, v7\nv_add_u32 v{101+2*k}, s88, v8')
            a('s_mov_b32 s95, 0')
        a('L_p_one_l:')
        for l in one: a(l)
        a('s_sub_u32 s89, s89, 1\ns_cbranch_scc1 L_p_ok')
        if self.premerge:
            a(f'''
            s_cmp_lg_u32 s95, 0
            s_cbranch_scc1 L_p_one_w
            ds_read_b32 v14, v13 offset:{C_A}
            s_waitcnt lgkmcnt(0)
            v_readfirstlane_b32 s88, v14
            s_cmp_lg_u32 s88, 3
            s_cbranch_scc1 L_p_one_w
            s_mov_b32 s95, 1
            ''')
            for k in range(3):
                b = 40 + 10 * k
                a(f'ds_read_b128 v[{b}:{b+3}], v{100+2*k} offset:{LW}\nds_read_b128 v[{b+4}:{b+7}], v{100+2*k} offset:{LW + 1024}\nds_read_b64 v[{b+8}:{b+9}], v{101+2*k} offset:{LW + 2048}')
            a('s_waitcnt lgkmcnt(0)')
            for k in range(3):
                for i in range(5): a(f'v_pk_add_f32 v[{16+2*i}:{17+2*i}], v[{16+2*i}:{17+2*i}], v[{40+10*k+2*i}:{41+10*k+2*i}]')
            a('L_p_one_w:')
        a(f'''
        s_waitcnt vmcnt({3 if self.pipe else 0})
        v_max3_u32 v36, v110, v111, v112
        v_max3_u32 v37, v113, v114, v115
        v_max3_u32 v36, v36, v116, v117
        v_max3_u32 v37, v37, v118, v119
        v_max_u32 v36, v36, v37
        v_cmp_eq_u32 vcc, -1, v36
        s_cbranch_vccnz L_p_one_l
        ''')
        if self.premerge:
            a('s_cmp_eq_u32 s95, 0\ns_cbranch_scc1 L_p_one_n')
            for i in range(5): a(f'v_pk_add_f32 v[{40+2*i}:{41+2*i}], v[{16+2*i}:{17+2*i}], v[{110+2*i}:{111+2*i}]')
            self.stamp(4)
            a('s_branch L_red_epi\nL_p_one_n:')
        a(f'''
        v_pk_add_f32 v[16:17], v[16:17], v[110:111]
        v_pk_add_f32 v[18:19], v[18:19], v[112:113]
        v_pk_add_f32 v[20:21], v[20:21], v[114:115]
        v_pk_add_f32 v[22:23], v[22:23], v[116:117]
        v_pk_add_f32 v[24:25], v[24:25], v[118:119]
        L_p_ok:
        ''')
        self.stamp(4)
        a(f'''
        ds_write_b128 v10, v[16:19] offset:{LW}
        ds_write_b128 v10, v[20:23] offset:{LW + 1024}
        ds_write_b64 v11, v[24:25] offset:{LW + 2048}
        ''')
        reads = []
        for w in range(4):
            b = 40 + 10 * w
            reads.append(f'ds_read_b128 v[{b}:{b+3}], v7 offset:{LW + 2560*w}')
            reads.append(f'ds_read_b128 v[{b+4}:{b+7}], v7 offset:{LW + 2560*w + 1024}')
            reads.append(f'ds_read_b64 v[{b+8}:{b+9}], v8 offset:{LW + 2560*w + 2048}')
        self.arrive2(C_A, 3, 'L_ctrl_end', reads)
        a('s_waitcnt lgkmcnt(0)')
        U = 40
        def P(r, i): return f'v[{r+2*i}:{r+2*i+1}]'
        for i in range(5): a(f'v_pk_add_f32 {P(40,i)}, {P(40,i)}, {P(50,i)}')
        for i in range(5): a(f'v_pk_add_f32 {P(60,i)}, {P(60,i)}, {P(70,i)}')
        for i in range(5): a(f'v_pk_add_f32 {P(40,i)}, {P(40,i)}, {P(60,i)}')
        a('L_red_epi:')
        def pk():
            for i in range(5): a(f'v_cvt_pk_bf16_f32 v{26+i}, v{U+2*i}, v{U+2*i+1}')
        def rnd(): self.rnd1(range(U, U + 10))
        rnd()
        for i in range(5): a(f'v_pk_mul_f32 {P(U,i)}, {P(U,i)}, {P(130,i)}')
        rnd()
        for i in range(5): a(f'v_pk_add_f32 {P(U,i)}, {P(U,i)}, {P(120,i)}')
        rnd()
        def mid():
            for i in range(5): a(f'v_cvt_pk_bf16_f32 v{160+i}, v{U+2*i}, v{U+2*i+1}')
            for i in range(5): a(f'v_pk_add_f32 {P(U,i)}, {P(U,i)}, s[96:97] op_sel_hi:[1,0] neg_lo:[0,1] neg_hi:[0,1]')
            rnd()
        self.ln_stats1(U, 32, 96, 98, mid)
        for i in range(5): a(f'v_pk_mul_f32 {P(U,i)}, {P(U,i)}, s[98:99] op_sel_hi:[1,0]')
        rnd()
        for i in range(5): a(f'v_pk_mul_f32 {P(U,i)}, {P(U,i)}, {P(150,i)}')
        rnd()
        for i in range(5): a(f'v_pk_add_f32 {P(U,i)}, {P(U,i)}, {P(140,i)}')
        pk()
        self.sanitize(range(26, 31))
        a(f'''
        buffer_store_dwordx2 v[26:27], v8, s[44:47], s92 offen sc1
        buffer_store_dwordx2 v[28:29], v8, s[44:47], s92 offen offset:512 sc1
        buffer_store_dword v30, v12, s[44:47], s92 offen offset:1024 sc1
        ''')
        self.sanitize(range(160, 165))
        a(f'''
        buffer_store_dwordx2 v[160:161], v8, s[44:47], s93 offen sc1
        buffer_store_dwordx2 v[162:163], v8, s[44:47], s93 offen offset:512 sc1
        buffer_store_dword v164, v12, s[44:47], s93 offen offset:1024 sc1
        L_ctrl_end:
        ''')
        self.stamp(11)
        a(f's_cmp_eq_u32 s7, {R_DOWN}\ns_cbranch_scc1 L_ctrl_fin\ns_cmp_eq_u32 s7, {R_FFN}\ns_cbranch_scc1 L_ctrl_fin\ns_cmp_eq_u32 s7, {R_RED}\ns_cbranch_scc1 L_ctrl_fin')
        a('L_share:')
        if 't' in self.abl: a('s_branch L_ctrl_fin')
        if self.late: self.prefetch_late('e')
        a(f's_cmp_eq_u32 s7, {R_DOWN}\ns_cbranch_scc1 L_role_down\ns_cmp_eq_u32 s7, {R_FFN}\ns_cbranch_scc1 L_role_ffn\ns_cmp_eq_u32 s7, {R_RED}\ns_cbranch_scc1 L_role_red')
        if self.help2:
            assert self.bar
            self.prefetch_late2()
        a('L_ctrl_fin:')
        self.stamp_flush()
        self.diag_end()
        a('s_endpgm')

    def stream(self):
        a = self.a
        self.tail_code = []
        self.cur_cls = 0
        WK, WV = self.WK, self.WV
        NV = 12
        def wmap(n):
            if self.smf: return 2 * (n // 10) + (n & 1), (n % 10) // 2
            return n // 5, n % 5
        KV = lambda t: 40 + 4 * t
        if self.c4:
            self.wki = 4; self.WK0 = 4
            a(f'''
            s_sub_u32 s15, s3, 4             ; sw
            s_lshl_b32 s85, s15, 12
            v_add_u32 v1, s85, v7
            s_lshl_b32 s85, s2, 2
            s_add_u32 s85, s85, 3
            s_lshl_b32 s85, s85, 18
            s_mov_b32 s51, 0x20000
            s_lshl_b32 s50, s51, 1
            s_waitcnt lgkmcnt(0)
            s_add_u32 s48, s18, s85
            s_addc_u32 s49, s19, 0
            ''')
            for t in range(4): a(f'buffer_load_dwordx4 v[{40+4*t}:{43+4*t}], v1, s[48:51], 0 offen offset:{1024*t} {self.nt("k")}')
        else:
            assert self.rotw == 1 and self.WK0 >= 2
            a(f'''
            s_sub_u32 s15, s3, 4             ; sw
            s_lshl_b32 s85, s15, {10 if self.ilv else 15}
            v_add_u32 v1, s85, v7
            s_mul_i32 s91, s2, {self.rot}
            {'' if self.ilv else 's_add_u32 s91, s91, s15'}
            s_and_b32 s91, s91, 31
            s_lshl_b32 s91, s91, {13 if self.ilv else 10}          ; rotation
            s_lshl_b32 s85, s2, 2
            s_add_u32 s85, s85, 3
            s_lshl_b32 s85, s85, 18
            s_mov_b32 s51, 0x20000
            s_lshl_b32 s50, s51, 1
            {'s_sub_u32 s90, s50, 1' if self.ilv else 's_movk_i32 s90, 0x7fff'}
            s_addk_i32 s91, {8192 if self.ilv else 1024}
            s_and_b32 s92, s91, s90
            s_addk_i32 s91, {-8192 if self.ilv else -1024}
            s_waitcnt lgkmcnt(0)
            s_add_u32 s48, s18, s85
            s_addc_u32 s49, s19, 0
            buffer_load_dwordx4 v[40:43], v1, s[48:51], s91 offen {self.nt('k')}
            buffer_load_dwordx4 v[44:47], v1, s[48:51], s92 offen {self.nt('k')}
            ''')
            for t in range(2, self.wki):
                a(f's_addk_i32 s92, {8192 if self.ilv else 1024}\ns_and_b32 s92, s92, s90\nbuffer_load_dwordx4 v[{40+4*t}:{43+4*t}], v1, s[48:51], s92 offen {self.nt("k")}')
        a(f'''
        s_add_u32 s52, s20, s85
        s_addc_u32 s53, s21, 0
        s_mov_b32 s54, 0x40000
        s_mov_b32 s55, 0x20000
        s_barrier
        ''')
        self.common2()
        self.srd(44, 42, WS_SIZE)
        if self.stamp_on: a('v_writelane_b32 v15, s98, 13')
        self.cur_cls = -1
        self.stamp(0)
        self.cur_cls = 0
        self.decode()
        for _ in range(self.sdelay): a('s_sleep 32')
        if self.hold > 1: a(f's_cmp_eq_u32 s7, {R_Q}\ns_cbranch_scc1 L_hold')
        if 'r' in self.abl: a('s_branch L_nohold')
        a(f's_cmp_lg_u32 s7, {R_G1}\ns_cbranch_scc1 L_nohold')
        self.srd(56, 34, 10240); self.srd(60, 16, 10240)
        a('s_mul_i32 s90, s15, 1280\nv_lshlrev_b32 v12, 2, v2')
        for n in range(5): a(f'buffer_load_dword v{80+n}, v12, s[56:59], s90 offen offset:{256*n}')
        for n in range(5): a(f'buffer_load_dword v{86+n}, v12, s[60:63], s90 offen offset:{256*n}')
        if self.cxfirst: self.signal(C_CX)
        a(f'''
        s_mul_i32 s90, s15, {ACTS}
        s_add_u32 s90, s90, {L_ACT}
        v_add_u32 v12, s90, v12
        s_mov_b32 s85, {LOG2E | 0x80000000}
        s_waitcnt vmcnt(5)
        ''')
        self.stamp(9)
        for i in range(5): self.unpack(100 + 2 * i, 80 + i)
        for i in range(10): a(f'v_mul_f32 v{112+i}, s85, v{100+i}')
        for i in range(10): a(f'v_exp_f32 v{112+i}, v{112+i}')
        for i in range(10): a(f'v_add_f32 v{112+i}, 1.0, v{112+i}')
        for i in range(10): a(f'v_rcp_f32 v{112+i}, v{112+i}')
        for i in range(10): a(f'v_mul_f32 v{100+i}, v{100+i}, v{112+i}')
        for i in range(5): a(f'v_cvt_pk_bf16_f32 v{80+i}, v{100+2*i}, v{101+2*i}')
        for i in range(5): a(f'ds_write_b32 v12, v{80+i} offset:{256*i}')
        a('s_waitcnt vmcnt(0)')
        self.ln_stats(86, 100, 112, 90, 92)
        a(f'''
        v_mov_b32 v28, s90
        v_mov_b32 v29, s92
        s_lshl_b32 s85, s15, 3
        v_add_u32 v30, s85, v13
        ds_write_b64 v30, v[28:29] offset:{L_STAT}
        ''')
        self.signal(C_ACT)
        a('L_hold:')
        if self.hold: self.lds_wait(C_GO, 4, sleep=2)
        a('L_nohold:')
        q = [f'K{t}' for t in range(self.wki)]
        def wait_for(name):
            i = len(q) - 1 - q[::-1].index(name)
            n = len(q) - 1 - i
            a(f's_waitcnt vmcnt({min(n, 63)})')
        def ld(t, slot, srd, nm):
            if self.c4:
                if t % 4 == 0: a(f's_mov_b32 s92, {(t >> 2) * 32768}')
                a(f'buffer_load_dwordx4 v[{KV(slot)}:{KV(slot)+3}], v1, {srd}, s92 offen offset:{(t & 3) * 1024} {self.nt(nm[0].lower())}')
            else:
                a(f's_add_u32 s92, s91, {t*(8192 if self.ilv else 1024)}\ns_and_b32 s92, s92, {0x3ffff if self.ilv else 0x7fff}')
                a(f'buffer_load_dwordx4 v[{KV(slot)}:{KV(slot)+3}], v1, {srd}, s92 offen {self.nt(nm[0].lower())}')
            q.append(nm)
        qloads = ['buffer_load_dwordx4 v[4:7], v12, s[44:47], s93 offen sc1', 'buffer_load_dwordx4 v[16:19], v12, s[44:47], s93 offen offset:16 sc1']
        for t in range(1, 32):
            wk = WK if t >= self.wk_sw else self.WK0
            if self.c4:
                if t >= 4 and t % 4 == 0:
                    ak = self.aK if t < self.wk_sw else self.aK2
                    if self.aKL > ak and t >= 8:
                        L = a.label('L_kw')
                        wait_for(f'K{t - 1 - self.aKL}'); a(f's_cbranch_vccnz {L}'); wait_for(f'K{t - 1 - ak}'); a(f'{L}:')
                    else: wait_for(f'K{t - 1 - ak}')
            elif t >= wk and t >= self.wki:
                if self.WKL > wk and t >= self.wkl_sw:
                    L = a.label('L_kw')
                    a(f's_waitcnt vmcnt({self.WKL-1})\ns_cbranch_vccnz {L}\ns_waitcnt vmcnt({wk-1})\n{L}:')
                else: a(f's_waitcnt vmcnt({wk-1})')
            if t == self.WK0: self.stamp(8)
            if t == self.pfl_t: self.signal(C_PROGW)
            if t == self.pf1_t: self.signal(C_PF)
            if t == self.pf2_t: self.signal(C_PF2)
            if t >= self.wki: ld(t, t, 's[48:51]', f'K{t}')
            if t == self.WK0 - 1:
                a(f'''
                v_mov_b32 v3, 0
                buffer_load_dword v35, v3, s[44:47], 0 offen sc1
                v_and_b32 v3, 15, v2
                v_lshlrev_b32 v12, 5, v3             ; Q voffset
                s_lshl_b32 s93, s2, 9
                s_add_u32 s93, s93, {WS_Q}
                v_mov_b32 v16, 0xffff
                v_mov_b32 v17, s84
                ''')
                q.append('E')
                for r in range(4):
                    a(f'''
                    v_cmp_eq_u32 vcc, {2*r}, v3
                    v_cndmask_b32 v{8+r}, 0, v16, vcc
                    v_cmp_eq_u32 vcc, {2*r+1}, v3
                    v_cndmask_b32 v{8+r}, v{8+r}, v17, vcc
                    ''')
                a(f'''
                s_mov_b32 s96, 0xcccccccc
                s_mov_b32 s97, 0xcccccccc
                s_mov_b32 s98, 0xaaaaaaaa
                s_mov_b32 s99, 0xaaaaaaaa
                s_mul_i32 s85, s14, 163840
                s_add_u32 s56, s24, s85
                s_addc_u32 s57, s25, 0
                s_mov_b32 s58, 163840
                s_mov_b32 s59, 0x20000
                v_lshrrev_b32 v34, 4, v2
                v_mul_u32_u24 v34, 5120, v34
                v_lshl_add_u32 v34, v3, 4, v34
                s_mul_i32 s85, s15, 20480
                v_add_u32 v34, s85, v34
                s_lshr_b32 s85, {self.lagmask}, s7
                s_bitcmp1_b32 s85, 0
                s_cselect_b64 vcc, -1, 0
                ''')
            if self.c4: stl = {7: [0], 11: [1, 2], 15: [3], 19: [4, 5], 23: [6, 7], 27: [8]}.get(t, [])
            else: stl = [(t - self.st0) // self.stp] if t >= self.st0 and (t - self.st0) % self.stp == 0 else []
            for n in [n for n in stl if n < self.nst]:
                if n == 6 and 'r' not in self.abl:
                    a(f's_cmp_lg_u32 s7, {R_G1}\ns_cbranch_scc1 L_stg_ok')
                    self.lds_wait(C_A, 4, sleep=1)
                    a('L_stg_ok:')
                a(f's_lshl_b32 s85, s15, 10\ns_add_u32 m0, s85, {LST + 8192*n}\ns_movk_i32 s85, {wmap(n)[0] * 1280 + wmap(n)[1] * 256}')
                a(f'buffer_load_dwordx4 v34, s[56:59], s85 offen {self.nt("o")} lds')
                q.append(f'S{n}')
            if t == (19 if self.c4 else 12):
                self.tag_from(35)
            if t == self.rk:
                self.srd(64, 40, 256)
                a(f'''
                v_mov_b32 v37, 1
                v_mov_b32 v38, 0
                s_mov_b64 exec, 1
                s_cmp_eq_u32 s15, 0
                s_cbranch_scc1 L_rk_at
                buffer_load_dword v37, v38, s[64:67], 0 offen offset:128
                s_branch L_rk_dn
                L_rk_at:
                buffer_atomic_add v37, v38, s[64:67], 0 offen sc0 sc1
                L_rk_dn:
                s_mov_b64 exec, -1
                ''')
                q.append('RK')
            if t == self.qpos:
                for l in qloads: a(l)
                q.append('Q0'); q.append('Q1')
        self.stamp(1)
        wait_for('Q1')
        a(f'''
        s_mov_b32 s89, {SPIN_LIMIT}
        s_mov_b32 s63, 0
        L_q_chk:
        v_xor_b32 v20, s94, v5
        v_xor_b32 v21, s94, v7
        v_xor_b32 v22, s94, v17
        v_xor_b32 v23, s94, v19
        v_or_b32 v20, v20, v21
        v_or3_b32 v20, v20, v22, v23
        v_cmp_ne_u32 vcc, 0, v20
        {'s_branch L_q_ok' if 'r' in self.abl or 'q' in self.abl else ''}
        s_cbranch_vccz L_q_ok
        s_cmp_ge_u32 s63, {self.vpf * 8192}
        s_cbranch_scc1 L_q_nopf
        ''')
        if self.c4:
            a('''
            s_lshl_b32 s85, s63, 3
            v_lshrrev_b32 v38, 5, v2
            v_lshl_add_u32 v38, v38, 15, s85
            v_and_b32 v39, 31, v2
            v_lshl_add_u32 v38, v39, 7, v38
            s_lshl_b32 s85, s15, 12
            ''')
        elif self.ilv:
            a('''
            s_lshl_b32 s85, s63, 3
            s_add_u32 s85, s85, s91
            v_lshrrev_b32 v38, 3, v2
            v_lshl_add_u32 v38, v38, 13, s85
            v_and_b32 v38, 0x3ffff, v38
            v_and_b32 v39, 7, v2
            v_lshl_add_u32 v38, v39, 7, v38
            s_lshl_b32 s85, s15, 10
            ''')
        else:
            a('''
            s_add_u32 s85, s91, s63
            v_lshl_add_u32 v38, v2, 7, s85
            v_and_b32 v38, 0x7fff, v38
            s_lshl_b32 s85, s15, 15
            ''')
        a(f'''
        buffer_load_dword v39, v38, s[52:55], s85 offen
        s_addk_i32 s63, 8192
        L_q_nopf:
        {qloads[0]}
        {qloads[1]}
        s_waitcnt vmcnt(0)
        s_sub_u32 s89, s89, 1
        s_cbranch_scc0 L_q_chk
        L_q_ok:
        v_mov_b32 v5, v6
        v_mov_b32 v6, v16
        v_mov_b32 v7, v18
        ''')
        self.signal(C_QOK)
        self.stamp(2)
        D = 20
        st = dict(V=0, W=self.nst)
        def ldwo(n):
            tp, c = wmap(n)
            so = ['0', 's60', 's61', 's62'][tp]
            if 'w' in self.abl: return
            a(f'buffer_load_dwordx4 v[{KV(NV+n)}:{KV(NV+n)+3}], v34, s[56:59], {so} offen offset:{256*c} {self.nt("o")}')
            q.append(f'W{n}')
        def pre(g, free):
            for ch in self.pre[g]:
                if ch == 'V':
                    assert st['V'] < NV and st['V'] <= free
                    ld(st['V'], st['V'], 's[52:55]', f"V{st['V']}"); st['V'] += 1
                else:
                    assert NV + st['W'] <= free
                    ldwo(st['W']); st['W'] += 1
        a('s_movk_i32 s60, 1280\ns_movk_i32 s61, 2560\ns_movk_i32 s62, 3840')
        for g in range(8):
            wait_for(f'K{4*g+3}')
            for i in range(4):
                for k in range(4):
                    t = 4 * g + k
                    a(f'v_dot2_f32_bf16 v{D+k}, v{KV(t)+i}, v{4+i}, {"0" if i == 0 else "v%d" % (D+k)}')
            pre(g, 4 * g + 3)
            a(f'v_add_f32_dpp v24, v{D}, v{D} row_ror:8 row_mask:0xf bank_mask:0x3')
            a(f'v_add_f32_dpp v25, v{D+2}, v{D+2} row_ror:8 row_mask:0xf bank_mask:0x3')
            a(f'v_add_f32_dpp v24, v{D+1}, v{D+1} row_ror:8 row_mask:0xf bank_mask:0xc')
            a(f'v_add_f32_dpp v25, v{D+3}, v{D+3} row_ror:8 row_mask:0xf bank_mask:0xc')
            r2 = 26 + (g & 1)
            a(f'v_add_f32_dpp v{r2}, v24, v24 row_shl:4 row_mask:0xf bank_mask:0x5')
            a(f'v_add_f32_dpp v{r2}, v25, v25 row_shr:4 row_mask:0xf bank_mask:0xa')
            if g & 1:
                r3 = 28 + ((g >> 1) & 1)
                a(f'v_add_f32_dpp v30, v26, v26 quad_perm:[2,3,0,1] row_mask:0xf bank_mask:0xf')
                a(f'v_add_f32_dpp v31, v27, v27 quad_perm:[2,3,0,1] row_mask:0xf bank_mask:0xf')
                a(f'v_cndmask_b32 v{r3}, v30, v31, s[96:97]')
            if (g & 3) == 3:
                a(f'v_add_f32_dpp v30, v28, v28 quad_perm:[1,0,3,2] row_mask:0xf bank_mask:0xf')
                a(f'v_add_f32_dpp v31, v29, v29 quad_perm:[1,0,3,2] row_mask:0xf bank_mask:0xf')
                a(f'v_cndmask_b32 v{32 + (g >> 2)}, v30, v31, s[98:99]')
        a(f'''
        v_cvt_pk_bf16_f32 v20, v32, v33
        s_mov_b32 s86, 0x3db504f3
        ''')
        self.unpack(32, 20)
        a('v_pk_mul_f32 v[32:33], v[32:33], s[86:87] op_sel_hi:[1,0]\nv_cvt_pk_bf16_f32 v20, v32, v33')
        self.unpack(32, 20)
        a('v_max_f32 v20, v32, v33')
        self.wave_red(20, 'max')
        a(f'''
        v_readlane_b32 s86, v20, 63              ; m_w
        s_mov_b32 s90, {LOG2E}
        v_subrev_f32 v20, s86, v32
        v_subrev_f32 v21, s86, v33
        v_mul_f32 v20, s90, v20
        v_mul_f32 v21, s90, v21
        v_exp_f32 v20, v20
        v_exp_f32 v21, v21
        v_add_f32 v21, v20, v21
        ''')
        self.wave_red(21)
        a(f'''
        v_mov_b32 v20, s86
        s_lshl_b32 s85, s15, 3
        v_add_u32 v22, s85, v13
        s_mov_b32 exec_lo, 0
        s_mov_b32 exec_hi, 0x80000000
        ds_write_b64 v22, v[20:21] offset:{L_SM}
        s_mov_b64 exec, -1
        ''')
        if self.rk >= 0:
            a(f's_cmp_lg_u32 s15, 0\ns_cbranch_scc1 L_rk_nw\ns_mov_b64 exec, 1\nds_write_b32 v13, v37 offset:{L_RANK}\ns_mov_b64 exec, -1\nL_rk_nw:')
        if self.nst:
            a(f's_lshl_b32 s85, s15, 10\ns_add_u32 s85, s85, {LST}\nv_lshl_add_u32 v36, v2, 4, s85\nv_add_u32 v37, 32768, v36')
            for n in range(self.nst):
                a(f'ds_read_b128 v[{KV(NV+n)}:{KV(NV+n)+3}], v{36 if n < 4 else 37} offset:{8192*(n if n < 4 else n - 4)}')
        self.stamp(3)
        self.signal(C_SM)
        pre(8, 31)
        self.lds_wait(C_SM, 8)
        self.stamp(4)
        a(f'''
        v_and_b32 v22, 7, v2
        v_lshl_add_u32 v22, v22, 3, v13
        ds_read_b64 v[20:21], v22 offset:{L_SM}
        s_lshr_b32 s63, {self.lagv}, s7
        s_and_b32 s63, s63, 1
        s_waitcnt lgkmcnt(0)
        v_max_f32_dpp v22, v20, v20 row_ror:4 row_mask:0xf bank_mask:0xf
        v_max_f32_dpp v22, v22, v22 row_ror:2 row_mask:0xf bank_mask:0xf
        v_max_f32_dpp v22, v22, v22 row_ror:1 row_mask:0xf bank_mask:0xf
        v_sub_f32 v20, v20, v22
        v_mul_f32 v20, s90, v20
        v_exp_f32 v20, v20
        v_sub_f32 v32, v32, v22
        v_sub_f32 v33, v33, v22
        v_mul_f32 v21, v21, v20
        v_mul_f32 v32, s90, v32
        v_mul_f32 v33, s90, v33
        v_add_f32_dpp v21, v21, v21 row_ror:4 row_mask:0xf bank_mask:0xf
        v_exp_f32 v32, v32
        v_exp_f32 v33, v33
        v_add_f32_dpp v21, v21, v21 row_ror:2 row_mask:0xf bank_mask:0xf
        v_add_f32_dpp v21, v21, v21 row_ror:1 row_mask:0xf bank_mask:0xf
        v_rcp_f32 v21, v21
        v_mul_f32 v32, v32, v21
        v_mul_f32 v33, v33, v21
        v_cvt_pk_bf16_f32 v32, v32, v32
        v_cvt_pk_bf16_f32 v33, v33, v33
        ''')
        issued = st['V']; nwo = st['W']
        for t in range(32):
            A = 20 + 4 * (t & 1)
            for r in range(4):
                a(f'v_and_b32_dpp v{A+r}, v{32 + (t >> 4)}, v{8+r} row_newbcast:{bitrev4(t & 15)} row_mask:0xf bank_mask:0xf')
            wait_for(f'V{t}')
            a(f'v_mfma_f32_16x16x32_bf16 v[16:19], v[{A}:{A+3}], v[{KV(t % NV)}:{KV(t % NV)+3}], {"0" if t == 0 else "v[16:19]"}')
            if self.c4:
                av = self.aV if t < self.wv_sw else self.aV2
                while issued < 32 and t >= issued - 1 - av:
                    assert issued % 4 == 0 and t >= issued - 9
                    for k in range(4): ld(issued + k, (issued + k) % NV, 's[52:55]', f'V{issued + k}')
                    issued += 4
            elif not self.lagv:
                while t + (WV if t < self.wv_sw else self.WV2) >= issued and issued < 32:
                    ld(issued, issued % NV, 's[52:55]', f'V{issued}'); issued += 1
            else:
                wbig = max(self.WVc, WV if t < self.wv_sw else self.WV2)
                while t + wbig >= issued and issued < 32:
                    wa = WV if issued - WV < self.wv_sw else self.WV2
                    if issued - wa > t:
                        L = a.label('L_vw')
                        a(f's_cmp_lg_u32 s63, 0\ns_cbranch_scc1 {L}')
                        wait_for(f'V{issued - wa}')
                        a(f'{L}:')
                    ld(issued, issued % NV, 's[52:55]', f'V{issued}'); issued += 1
            if t >= self.wo_start:
                for _ in range(self.wo_per):
                    if nwo < 20: ldwo(nwo); nwo += 1
            if t == self.prog_t: self.signal(C_PROG)
            if t + 32 == self.pfl_t: self.signal(C_PROGW)
            if t == self.red_direct: self.signal(C_K2)
            if t == self.vi_t: self.signal(C_VI)
            if self.smf and 24 <= t < 28:
                for r in range(72 + 4 * (t - 24), 76 + 4 * (t - 24)): a(f'v_mov_b32 v{r}, 0')
            if t == self.setup_t:
                a(f'''
                v_lshlrev_b32 v7, 4, v2
                v_and_b32 v3, 15, v2
                v_lshrrev_b32 v4, 4, v2
                v_lshlrev_b32 v5, 5, v3
                v_lshl_add_u32 v5, v4, 4, v5          ; (8j+4s')*4
                s_lshl_b32 s85, s15, 9
                s_add_u32 s85, s85, {L_OP}
                v_add_u32 v6, s85, v5
                s_mul_i32 s85, s15, 2560
                s_add_u32 s85, s85, {L_WP}
                v_add_u32 v5, s85, v7
                v_add_u32 v36, {LST}, v7
                v_cmp_gt_u32 vcc, 32, v2
                v_cndmask_b32 v5, v36, v5, vcc
                s_lshl_b32 s85, s15, 6
                s_add_u32 s85, s85, {L_OP}
                v_lshl_add_u32 v4, v4, 4, s85
                ''')
                if self.smf:
                    a(f'''
                    v_bfe_u32 v3, v2, 4, 1
                    v_lshlrev_b32 v4, 5, v3
                    v_and_b32 v3, 1, v2
                    v_lshl_add_u32 v4, v3, 4, v4          ; + (q&1)*4
                    v_bfe_u32 v3, v2, 1, 1
                    v_lshl_add_u32 v4, v3, 3, v4          ; + (q>>1)*2
                    v_lshrrev_b32 v3, 5, v2
                    v_lshl_add_u32 v4, v3, 2, v4          ; + (sA>>1)
                    v_bfe_u32 v3, v2, 2, 2
                    v_lshl_add_u32 v4, v3, 10, v4
                    v_add_u32 v4, s85, v4
                    v_mov_b32 v37, 0xffff
                    v_cmp_eq_u32 vcc, 0, v3
                    v_cndmask_b32 v38, 0, v37, vcc        ; Ma
                    v_cmp_eq_u32 vcc, 1, v3
                    v_cndmask_b32 v39, 0, v37, vcc        ; Mb
                    v_and_b32 v3, 3, v2
                    v_mul_u32_u24 v37, 0x5555, v3
                    ''')
                    for r in [28, 29, 30, 31]: a(f'v_mov_b32 v{r}, 0')
                elif self.olp:
                    a('''
                    v_and_b32 v3, 3, v2
                    v_lshl_add_u32 v4, v3, 2, v4          ; + tp*4
                    v_bfe_u32 v3, v2, 2, 2
                    v_lshl_add_u32 v4, v3, 10, v4         ; + pair*2*512
                    ''')
                if self.oadd:
                    a(f'''
                    v_lshl_add_u32 v6, v2, 2, v13
                    v_lshrrev_b32 v4, 5, v2               ; s>>1
                    v_bfe_u32 v3, v2, 4, 1                ; s&1
                    v_lshl_add_u32 v4, v3, 4, v4
                    s_lshl_b32 s85, s15, 1
                    v_add_u32 v4, s85, v4
                    v_lshl_add_u32 v4, v4, 2, v13
                    ''')
                a(f'''
                v_bfe_u32 v35, v2, 1, 4
                v_and_b32 v36, 1, v2
                v_lshl_add_u32 v35, v36, 4, v35
                v_lshlrev_b32 v35, 4, v35
                v_lshrrev_b32 v36, 5, v2
                v_mul_u32_u24 v36, 10240, v36
                s_lshl_b32 s85, s15, 9
                s_add_u32 s86, s85, {L_WP}
                v_add3_u32 v35, v35, v36, s86
                s_mul_i32 s87, s2, 2560
                s_add_u32 s87, s87, s85
                s_add_u32 s87, s87, {WS_P}
                ''')
        assert nwo == 20
        a(f'''
        s_mov_b32 exec_hi, 0
        ''')
        if self.oadd:
            for r in range(4): a(f'ds_add_f32 v6, v{16+r} offset:{0x200 + 128*r}')
        else: a('ds_write_b128 v6, v[16:19]')
        a('s_mov_b64 exec, -1')
        self.stamp(5)
        if self.cyc: a('s_memtime s[64:65]\ns_memrealtime s[74:75]')
        if self.gthr:
            a(f's_cmp_lg_u32 s15, 7\ns_cbranch_scc1 L_nogc\ns_lshl_b32 s85, s2, 7\ns_add_u32 s85, s85, {WS_F}')
            a('s_mov_b64 exec, 1\nv_mov_b32 v12, 0\nv_mov_b32 v14, s94\nbuffer_store_dword v14, v12, s[44:47], s85 offen sc1\ns_mov_b64 exec, -1\nL_nogc:')
        rd1 = [f'ds_read_b128 v[{40+4*w}:{43+4*w}], v4 offset:{512*w}' for w in range(8)]
        if self.olp: rd1 = ['ds_read2_b32 v[40:41], v4 offset0:0 offset1:128']
        if self.oadd: rd1 = ['ds_read2_b32 v[40:41], v4 offset0:128 offset1:160', 'ds_read2_b32 v[42:43], v4 offset0:192 offset1:224']
        if self.bar:
            a(f's_cmp_eq_u32 s7, {R_RED}\ns_cbranch_scc1 L_s1_spin\ns_waitcnt lgkmcnt(0)\ns_barrier\nL_tail_dry:')
            for r in rd1: a(r)
            a('s_waitcnt lgkmcnt(0)\nL_s1_done:')
            self.tail_code.append(('L_s1_spin', lambda: (self.signal(C_PV), self.wait2(C_PV, 8, rd1), a('s_branch L_s1_done'))))
        else:
            self.signal(C_PV)
            self.wait2(C_PV, 8, rd1)
        if self.cyc: a('s_memtime s[66:67]')
        if self.olp:
            a('''
            v_add_f32 v40, v40, v41
            v_add_f32_dpp v40, v40, v40 row_ror:4 row_mask:0xf bank_mask:0xf
            v_add_f32_dpp v40, v40, v40 row_ror:8 row_mask:0xf bank_mask:0xf
            v_cvt_pk_bf16_f32 v40, v40, v40
            ''')
        else:
            if not self.oadd: self.sum_partials(40, [40 + 4 * i for i in range(8)])
            for r in range(4): a(f'v_cvt_pk_bf16_f32 v{40+r}, v{40+r}, v{40+r}')
        assert q[-1] == 'V31'
        if self.cyc: a('s_memtime s[68:69]')
        self.stamp(6)
        def wr(c): a(f'ds_write_b128 v5, v[{60+4*c}:{63+4*c}] offset:{512*c}')
        def mf(tp, c):
            d = 60 + 4 * c; b = KV(NV + 5 * tp + c)
            a(f'v_mfma_f32_16x16x32_bf16 v[{d}:{d+3}], v[{44+4*tp}:{47+4*tp}], v[{b}:{b+3}], {"0" if tp == 0 else "v[%d:%d]" % (d, d+3)}')
        def ands(tp):
            for r in range(4):
                if self.olp: a(f'v_and_b32_dpp v{44+4*tp+r}, v40, v{8+r} quad_perm:[{tp},{tp},{tp},{tp}] row_mask:0xf bank_mask:0xf')
                else: a(f'v_and_b32 v{44+4*tp+r}, v{40+tp}, v{8+r}')
        if self.smf:
            acc = [72, 76, 80, 84, 28]
            def wr(c): a(f'ds_write_b128 v5, v[{acc[c]}:{acc[c]+3}] offset:{512*c}')
            for P in range(2):
                for r in range(4):
                    qq = 2 * P + (r >> 1)
                    a(f'v_and_b32_dpp v{20+4*P+r}, v40, v{38 + (r & 1)} quad_perm:[{qq},{qq},{qq},{qq}] row_mask:0xf bank_mask:0xf')
            for P in range(2):
                for c in range(5):
                    b = KV(NV + 10 * P + 2 * c)
                    a(f'v_smfmac_f32_16x16x64_bf16 v[{acc[c]}:{acc[c]+3}], v[{20+4*P}:{23+4*P}], v[{b}:{b+7}], v37')
            for c in range(5): wr(c)
        elif self.mo == 0:
            for c in range(5):
                for tp in range(4):
                    if c == 0: ands(tp)
                    mf(tp, c)
                if c >= 2: wr(c - 2)
            wr(3); wr(4)
        elif self.mo == 1:
            ands(0)
            for tp in range(4):
                for c in range(5):
                    mf(tp, c)
                    if c == 1 and tp < 3: ands(tp + 1)
            for c in range(5): wr(c)
        else:
            ands(0)
            for tp in range(4):
                for c in range(3):
                    mf(tp, c)
                    if c == 0 and tp < 3: ands(tp + 1)
            for tp in range(4):
                for c in (3, 4): mf(tp, c)
                if tp >= 1: wr(tp - 1)
            wr(3); wr(4)
        if self.cyc: a('s_memtime s[70:71]')
        rd2 = [f'ds_read_b128 v[{40+4*w}:{43+4*w}], v35 offset:{2560*w}' for w in range(4)]
        if self.bar:
            if self.dry: a('s_cbranch_execz L_s2_skip')
            a(f's_cmp_eq_u32 s7, {R_RED}\ns_cbranch_scc1 L_s2_spin\ns_waitcnt lgkmcnt(0)\ns_barrier')
            a('s_cmp_ge_u32 s15, 5\ns_cbranch_scc1 L_stream_end')
            a('L_s2_skip:')
            for r in rd2: a(r)
            a('s_waitcnt lgkmcnt(0)\nL_s2_done:')
            self.tail_code.append(('L_s2_spin', lambda: (self.signal(C_WO), a('s_cmp_ge_u32 s15, 5\ns_cbranch_scc1 L_stream_end'), self.wait2(C_WO, 8, rd2), a('s_branch L_s2_done'))))
        else:
            self.signal(C_WO)
            a('s_cmp_ge_u32 s15, 5\ns_cbranch_scc1 L_stream_end')
            self.wait2(C_WO, 8, rd2)
        if self.cyc: a('s_memtime s[72:73]')
        self.stamp(7)
        self.sum_partials(40, [40, 44, 48, 52])
        for i in range(4): a(f'v_mov_b32 v{44+i}, v{40+i}')
        for i in range(4): a(f'v_permlane32_swap_b32 v{40+i}, v{44+i}')
        a('v_pk_add_f32 v[40:41], v[40:41], v[44:45]\nv_pk_add_f32 v[42:43], v[42:43], v[46:47]')
        self.sanitize(range(40, 44))
        if self.dry: a('s_cbranch_execz L_dry_ret')
        a('''
        s_mov_b32 exec_hi, 0
        buffer_store_dwordx4 v[40:43], v7, s[44:47], s87 offen sc1
        s_mov_b64 exec, -1
        ''')
        if self.cyc:
            a('s_memtime s[76:77]\ns_memrealtime s[78:79]\ns_waitcnt lgkmcnt(0)')
            for i, r in enumerate((66, 68, 70, 72, 76)): a(f's_sub_u32 s{r}, s{r}, s64\nv_writelane_b32 v15, s{r}, {6+i}')
            a('s_sub_u32 s78, s78, s74\nv_writelane_b32 v15, s78, 12')
        self.signal(C_DONE)
        a('L_stream_end:')
        self.stamp(10)
        self.stamp_flush()
        self.diag_end()
        a('L_end:\ns_endpgm')
        for lab, fn in self.tail_code:
            a(lab + ':'); fn()

    def build(self):
        self.prologue(); self.stream(); self.control(); self.a('L_code_end:')
        kn = NAME + '_kernel'
        body = '\n'.join(fix_hazards(self.a.l)) + '\n'
        hdr = open('cdna_kernels/' + NAME + '.s.ref').read().split('; Override launch')[0]
        return hdr + header([f'; @launch grid=(256,1,1) block=(768,1,1) lds={LDS_SIZE}']) + DOC + kernel_start(kn) + body + '.section .rodata,"a"\n' + descriptor(kn, vgpr=168, sgpr=102, accum=168)

if __name__ == '__main__':
    import argparse
    from collections import Counter
    rs = [role_of(w) for w in range(256)]
    for r, n in ((R_G1, 20), (R_DOWN, 40), (R_FFN, 54), (R_Q, 64), (R_MOD, 40), (R_RED, 8)):
        assert sorted(i for rr, i in rs if rr == r) == list(range(n)), r
    ap = argparse.ArgumentParser()
    ap.add_argument('-o', default='k.s'); ap.add_argument('--stamp', action='store_true')
    for p, d in (('WK', 3), ('WV', 4), ('rot', 3), ('rotw', 1), ('qpos', 28), ('prog_t', 22), ('progw_t', -1), ('WD', 20), ('wo_start', 0), ('wo_per', 1), ('sdelay', 0), ('WK0', 3), ('wk_sw', 16), ('k2_t', -1), ('WV2', 8), ('wv_sw', 12), ('hold', 1), ('pf', 1), ('WKL', 4), ('wkl_sw', 6), ('lagmask', 2), ('pfb', 1), ('cpf', 1), ('diag_until', 0), ('diag_xcc', 0), ('diag_role', -1), ('diag_cls', -1), ('diag_idx', -1), ('nMf', 0), ('nMd', 0), ('vi_t', -1), ('nEf', 0), ('nEd', 0), ('late', 0), ('pfl_t', -1), ('psleep', 0), ('light', 0), ('hdelay', 0), ('rk', -1), ('lagv', 0), ('h1probe', 0), ('cxfirst', 1), ('tlbw', 0), ('rotm', 1), ('ilv', 0), ('ffn2', 0), ('c4', 0), ('aK', 0), ('aK2', 2), ('aKL', 4), ('aV', 2), ('aV2', 6), ('premerge', 0), ('otouch', 0), ('gthr', 0), ('help2', 0), ('setup_t', 14), ('ddelay', 0), ('smf', 1), ('olp', 1), ('mo', 2), ('dry', 0), ('oadd', 0), ('bar', 1), ('cyc', 0), ('pipe', 0), ('wki', 2), ('pf1_t', 5), ('allsh', 0), ('pf2_t', 10), ('nst', 9), ('st0', 4), ('stp', 3), ('vpf', 3), ('rth1', 128), ('rth2', 208), ('WVa', 2), ('WVb', 4), ('WVc', 8), ('trig', 0), ('trsh', 0), ('red_direct', 27), ('WDM', 20), ('k2_n', 8)):
        ap.add_argument('--' + p, type=int, default=d)
    ap.add_argument('--pre', default='V,V,V,V,V,V,V,V,W')
    ap.add_argument('--ntp', default='kv')
    ap.add_argument('--abl', default='')
    ap.add_argument('--outf', default='')
    args = ap.parse_args()
    kw = dict(vars(args)); o = kw.pop('o')
    open(o, 'w').write(G(**kw).build())
```

```python
import sys
from asmlib import *
import gen as G1mod
from gen import bitrev4, LOG2E, SPIN_LIMIT

WS_E = 0
WS_H1 = 0x1000
WS_Q = 0x8000
SB2 = 0x28000
WS_H2 = SB2; WS_X1 = SB2 + 0x3000; WS_HID = SB2 + 0x6000; WS_MODO = SB2 + 0xD000
WS_P = 0x50000
WS_F = 0xF0000
WS_STAMP = 0x100000
WS_SIZE = 0x200000
LW = 0; LM = 0x14000; L_OP = 0x15000; L_WP = 0x23000; LST = 0x16000; LDS_SIZE = 0x28000
C_A, C_SM, C_PV, C_WO, C_QOK, C_PROG, C_PROGW, C_GO, C_DONE, C_K2, C_ACT, C_PF, C_PF2, C_CX, C_VI = [4 * i for i in range(15)]
L_STAT = 0x40; L_SM = 0x100; L_RANK = 0x3c
L_ACT = L_WP; ACTS = 1344
R_G1, R_DOWN, R_FFN, R_Q, R_MOD, R_RED = 1, 2, 3, 4, 5, 6

def role_of(wg):
    x = wg & 7; u = wg >> 3
    if u < 2: return R_G1, 2 * x + u
    if u < 6:
        k = u - 2
        e = EXTRA.get((x, k >> 1))
        if e is None: return 0, 0
        return e[0], e[0] * 16 + 2 * e[1] + (k & 1)
    if u < 14: return R_Q, 8 * x + u - 6
    if u < 19: return R_MOD, 5 * x + u - 14
    if u < 25: return R_FFN, 6 * x + u - 19
    if u < 29: return R_DOWN, 4 * x + u - 25
    if u == 29: return R_RED, x
    return 0, 0
EXTRA = {(0, 0): (R_DOWN, 0), (0, 1): (R_DOWN, 1), (2, 0): (R_DOWN, 2), (2, 1): (R_DOWN, 3),
         (4, 0): (R_FFN, 0), (4, 1): (R_FFN, 1), (6, 0): (R_G1, 0), (6, 1): (R_FFN, 2), (1, 0): (R_G1, 1)}

DOC = '''; ---------------------------------------------------------------------------------------------
; ---------------------------------------------------------------------------------------------
'''

class G(G1mod.G):
    def __init__(self, stamp=False, WK=3, WV=3, rot=3, rotw=1, qpos=25, prog_t=22, progw_t=-1, WD=4, wo_start=0, wo_per=1, sdelay=0, WK0=2, wk_sw=16, k2_t=6, WV2=6, wv_sw=16, hold=1, pf=1, WKL=6, wkl_sw=6, lagmask=0x72, diag_xcc=0, diag_role=-1, diag_until=0, diag_cls=-1, diag_idx=-1, ntp='kv', cpf=1, pfb=1, nMf=0, nMd=0, vi_t=29, nEf=8, nEd=6, late=1, pfl_t=8, light=0, psleep=0, outf='', abl='', nst=0, st0=5, stp=3, allsh=0, pf1_t=4, pf2_t=9, wki=2, pipe=0, cyc=0, bar=0, oadd=0, dry=0, mo=0, olp=0, smf=0, ddelay=0, setup_t=14, help2=0, gthr=0, otouch=1, premerge=1, c4=0, aK=0, aK2=2, aKL=4, aV=2, aV2=6, ffn2=0, stlb=0, wmask=0, pk3=0, ilv=0, rotm=1, tlbw=1, cxfirst=1, vpf=3, h1probe=1, lagv=0, rk=-1, rth1=128, rth2=208, WVa=2, WVb=4, WVc=8, hdelay=0, trig=0, trsh=0, red_direct=27, WDM=2, k2_n=8, pre='V,V,VV,VW,VWW,VWW,VVW,VWW,VVWW'):
        self.sdelay = sdelay; self.WK0 = WK0; self.wk_sw = wk_sw; self.k2_t = k2_t; self.WV2 = WV2; self.wv_sw = wv_sw; self.hold = hold; self.pf = pf; self.late = late; self.pfl_t = pfl_t; self.psleep = psleep; self.light = light; self.light_set = (0, 11, 5) if light == 1 else (0, 11); self.hdelay = hdelay; self.rk = rk; self.lagv = lagv; self.h1probe = h1probe; self.cxfirst = cxfirst; self.tlbw = tlbw; self.rotm = rotm; self.ilv = ilv; self.pk3 = pk3; self.wmask = wmask; self.stlb = stlb; self.ffn2 = ffn2; self.c4 = c4; self.aK = aK; self.aK2 = aK2; self.aKL = aKL; self.aV = aV; self.aV2 = aV2; self.premerge = premerge; self.otouch = otouch; self.gthr = gthr; self.help2 = help2; self.setup_t = setup_t; self.ddelay = ddelay; self.smf = smf; self.olp = olp; self.mo = mo; self.dry = dry; self.oadd = oadd; self.bar = bar; self.cyc = cyc; self.pipe = pipe; self.wki = wki; self.pf1_t = pf1_t; self.allsh = allsh; self.pf2_t = pf2_t; self.nst = nst; self.st0 = st0; self.stp = stp; self.abl = abl; self.outf = outf.replace('_', ' '); self.vpf = vpf; self.rth1 = rth1; self.rth2 = rth2; self.WVa = WVa; self.WVb = WVb; self.WVc = WVc; self.trig = trig; self.trsh = trsh; self.red_direct = red_direct; self.pfb = pfb; self.cpf = cpf; self.ntp = ntp; self.cur_nt = 'nt'; self.diag_until = diag_until; self.diag_xcc = diag_xcc; self.diag_role = diag_role; self.diag_cls = diag_cls; self.diag_idx = diag_idx; self.cur_cls = -1; self.nEf = nEf; self.nMf = nMf; self.nMd = nMd; self.vi_t = vi_t; self.nEd = nEd; self.WKL = WKL; self.wkl_sw = wkl_sw; self.lagmask = lagmask; self.WDM = WDM; self.k2_n = k2_n; self.pre = pre.split(',')
        self.a = Asm(); self.stamp_on = stamp
        self.WK = WK; self.WV = WV; self.rot = rot; self.rotw = rotw; self.qpos = qpos; self.prog_t = prog_t
        self.progw_t = progw_t; self.WD = WD; self.wo_start = wo_start; self.wo_per = wo_per

    def stamp(self, i):
        if self.diag_until and i == self.diag_idx and (self.cur_cls == self.diag_cls or (self.cur_cls == 99 and self.diag_cls > 0)):
            if self.cur_cls == 99:
                L = self.a.label('L_ds')
                self.a(f's_cmp_lg_u32 s7, {self.diag_cls}\ns_cbranch_scc1 {L}\ns_memrealtime s[100:101]\ns_waitcnt lgkmcnt(0)\n{L}:')
            elif self.diag_role >= 0:
                L = self.a.label('L_ds')
                self.a(f's_cmp_lg_u32 s7, {self.diag_role}\ns_cbranch_scc1 {L}\ns_memrealtime s[100:101]\ns_waitcnt lgkmcnt(0)\n{L}:')
            else:
                self.a('s_memrealtime s[100:101]\ns_waitcnt lgkmcnt(0)')
        if self.light and i not in self.light_set: return
        super().stamp(i)

    def diag_end(self):
        if self.diag_until:
            L = self.a.label('L_diag')
            if self.diag_xcc:
                self.a('s_getreg_b32 s97, hwreg(HW_REG_XCC_ID)\ns_sub_u32 s97, s97, s2\ns_and_b32 s97, s97, 7')
                if self.diag_xcc == 2: self.a('s_sub_u32 s97, 7, s97')
                self.a('s_mul_i32 s97, s97, 400\ns_add_u32 s100, s100, s97')
            self.a(f'{L}:\ns_sleep 1\ns_memrealtime s[98:99]\ns_waitcnt lgkmcnt(0)\ns_sub_u32 s98, s98, s100\ns_cmp_lt_i32 s98, {self.diag_until*100}\ns_cbranch_scc1 {L}')

    def ln_stats1(self, U, T, s_m, s_rs, mid=None):
        a = self.a
        a(f'v_readlane_b32 s86, v{U}, 0')
        for i in range(5):
            a(f'v_pk_add_f32 v[{T+4}:{T+5}], v[{U+2*i}:{U+2*i+1}], s[86:87] op_sel_hi:[1,0] neg_lo:[0,1] neg_hi:[0,1]')
            if i == 0:
                a(f'v_pk_mul_f32 v[{T+2}:{T+3}], v[{T+4}:{T+5}], v[{T+4}:{T+5}]')
                a(f'v_add_f32 v{T}, v{T+4}, v{T+5}')
            else:
                a(f'v_pk_fma_f32 v[{T+2}:{T+3}], v[{T+4}:{T+5}], v[{T+4}:{T+5}], v[{T+2}:{T+3}]')
                a(f'v_add_f32 v{T+1}, v{T+4}, v{T+5}\nv_add_f32 v{T}, v{T}, v{T+1}')
        a(f'v_add_f32 v{T+1}, v{T+2}, v{T+3}')
        for m in ('row_ror:8 row_mask:0xf', 'row_ror:4 row_mask:0xf', 'row_ror:2 row_mask:0xf', 'row_ror:1 row_mask:0xf', 'row_bcast:15 row_mask:0xa', 'row_bcast:31 row_mask:0xc'):
            for v in (T, T + 1): a(f'v_add_f32_dpp v{v}, v{v}, v{v} {m} bank_mask:0xf')
        a(f'''
        v_mul_f32 v{T}, 0x3acccccd, v{T}
        v_mul_f32 v{T+1}, 0x3acccccd, v{T+1}
        v_fma_f32 v{T+1}, -v{T}, v{T}, v{T+1}
        v_add_f32 v{T}, s86, v{T}
        v_max_f32 v{T+1}, 0, v{T+1}
        v_cvt_pk_bf16_f32 v{T}, 0, v{T}
        v_cvt_pk_bf16_f32 v{T+1}, 0, v{T+1}
        v_readlane_b32 s{s_m}, v{T}, 63
        v_add_f32 v{T+1}, 0x3727c5ac, v{T+1}
        v_cvt_pk_bf16_f32 v{T+1}, 0, v{T+1}
        v_sqrt_f32 v{T+1}, v{T+1}
        v_cvt_pk_bf16_f32 v{T+1}, 0, v{T+1}
        v_rcp_f32 v{T+1}, v{T+1}
        s_nop 0
        v_readlane_b32 s{s_rs}, v{T+1}, 63
        ''')
        if mid: mid()

    def signal(self, cnt):
        self.a(f'''
        s_mov_b64 exec, 1
        v_mov_b32 v14, 1
        ds_add_u32 v13, v14 offset:{cnt}
        s_mov_b64 exec, -1
        ''')

    def arrive2(self, cnt, last, skip, reads):
        a = self.a
        a(f'''
        s_mov_b64 exec, 1
        v_mov_b32 v14, 1
        ds_add_rtn_u32 v14, v13, v14 offset:{cnt}
        s_mov_b64 exec, -1
        ''')
        for r in reads: a(r)
        a(f'''
        s_waitcnt lgkmcnt({min(len(reads), 15)})
        v_readfirstlane_b32 s88, v14
        s_cmp_lg_u32 s88, {last}
        s_cbranch_scc1 {skip}
        ''')

    def wait2(self, cnt, target, reads):
        a = self.a
        L = a.label('L_w2'); D = a.label('L_w2d'); R = a.label('L_w2r')
        a(f'ds_read_b32 v14, v13 offset:{cnt}')
        for r in reads: a(r)
        a(f'''
        s_mov_b32 s89, {SPIN_LIMIT * 16}
        s_waitcnt lgkmcnt({len(reads)})
        v_readfirstlane_b32 s88, v14
        s_cmp_ge_u32 s88, {target}
        s_cbranch_scc1 {D}
        {L}:
        ds_read_b32 v14, v13 offset:{cnt}
        s_sub_u32 s89, s89, 1
        s_cbranch_scc1 {R}
        s_waitcnt lgkmcnt(0)
        v_readfirstlane_b32 s88, v14
        s_cmp_lt_u32 s88, {target}
        s_cbranch_scc1 {L}
        {R}:
        ''')
        for r in reads: a(r)
        a(f'{D}:\ns_waitcnt lgkmcnt(0)')

    def rnd1(self, regs):
        for r in regs: self.a(f'v_cvt_pk_bf16_f32 v{r}, 0, v{r}')
    def round4(self, v, t):
        self.rnd1(range(v, v + 4))
    def bf1(self, v):
        self.rnd1([v])

    def tag_from(self, v):
        self.a(f'''
        v_readfirstlane_b32 s94, v{v}
        s_mul_i32 s94, s94, 1664525
        s_add_u32 s94, s94, 1013904223
        ''')

    def poll(self, name, loads, check, sleep, tagged=False, lanemask=False, pipe=0):
        a = self.a
        a(f's_mov_b32 s89, {SPIN_LIMIT}')
        if pipe:
            for l in loads: a(l)
            a(f's_sleep {pipe}')
        a(f'L_{name}_poll:')
        for l in loads: a(l)
        a(f's_waitcnt vmcnt({len(loads) if pipe else 0})')
        if tagged:
            for i in range(0, len(check), 2):
                a(f'v_xor_b32 v36, s94, v{check[i]}\nv_xor_b32 v37, s94, v{check[i+1]}')
                a('v_or_b32 v38, v36, v37' if i == 0 else 'v_or3_b32 v38, v38, v36, v37')
            a('v_cmp_ne_u32 vcc, 0, v38')
        else:
            c = list(check)
            if len(c) % 2 == 0:
                a(f'v_max_u32 v38, v{c[0]}, v{c[1]}'); c = c[2:]
            else:
                a(f'v_max3_u32 v38, v{c[0]}, v{c[1]}, v{c[2]}'); c = c[3:]
            for i in range(0, len(c), 2): a(f'v_max3_u32 v38, v38, v{c[i]}, v{c[i+1]}')
            a('v_cmp_eq_u32 vcc, -1, v38')
        a(f'''
        s_cbranch_vccz L_{name}_ok
        {"s_mov_b64 exec, vcc" if lanemask else ""}
        {"s_sleep %d" % sleep if sleep else ""}
        s_sub_u32 s89, s89, 1
        s_cbranch_scc0 L_{name}_poll
        L_{name}_ok:
        {"s_mov_b64 exec, -1" if lanemask else ""}
        ''')

    def prologue(self):
        a = self.a
        a(f'''
        s_load_dwordx16 s[16:31], s[0:1], 0
        {'s_memrealtime s[100:101]' if self.diag_until else ''}
        {'s_memrealtime s[98:99]' if self.stamp_on else ''}
        v_lshrrev_b32 v1, 6, v0
        s_getpc_b64 s[86:87]
        L_pc0:
        v_readfirstlane_b32 s3, v1
        v_lshlrev_b32 v3, 7, v0
        s_cmpk_ge_u32 s2, 256
        s_cbranch_scc1 L_end
        v_min_u32 v3, L_code_end-L_pc0-4, v3
        v_and_b32 v2, 63, v0
        {'global_load_dword v161, v3, s[86:87]' if self.cpf else ''}
        s_load_dwordx8 s[32:39], s[0:1], 64
        s_load_dwordx4 s[40:43], s[0:1], 96
        v_lshlrev_b32 v7, 4, v2          ; lane*16
        s_cmp_lt_u32 s3, 4
        s_cbranch_scc1 L_control
        ''')

    def common2(self):
        a = self.a
        a(f'''
        v_mov_b32 v13, {LM}
        s_mov_b32 s84, 0xffff0000
        v_mov_b32 v15, 0
        s_lshr_b32 s13, s2, 5            ; b
        s_and_b32 s14, s2, 31            ; h
        ''')

    def decode(self):
        a = self.a
        ext = 0
        for (x, kh), (r, idx) in EXTRA.items(): ext |= (r | idx << 2) << (4 * (2 * x + kh))
        a(f'''
        s_and_b32 s4, s2, 7              ; x
        s_lshr_b32 s5, s2, 3             ; u
        s_mov_b32 s7, 0
        s_mov_b32 s8, 0
        ''')
        for lo, hi, role, mul in ((0, 2, R_G1, 2), (6, 14, R_Q, 8), (14, 19, R_MOD, 5), (19, 25, R_FFN, 6), (25, 29, R_DOWN, 4), (29, 30, R_RED, 1)):
            a(f'''
            s_sub_u32 s9, s5, {lo}
            s_mul_i32 s10, s4, {mul}
            s_add_u32 s10, s10, s9
            s_cmp_lt_u32 s9, {hi-lo}
            s_cselect_b32 s7, {role}, s7
            s_cselect_b32 s8, s10, s8
            ''')
        a(f'''
        s_sub_u32 s9, s5, 2              ; extras
        s_lshr_b32 s10, s9, 1
        s_and_b32 s10, s10, 1
        s_lshl_b32 s11, s4, 1
        s_add_u32 s10, s10, s11
        s_lshl_b32 s10, s10, 2
        s_mov_b32 s86, {ext & 0xffffffff}
        s_mov_b32 s87, {ext >> 32}
        s_lshr_b64 s[86:87], s[86:87], s10
        s_and_b32 s10, s86, 3            ; role
        s_bfe_u32 s11, s86, 0x20002      ; idx
        s_lshl_b32 s11, s11, 1
        s_lshl_b32 s12, s10, 4
        s_add_u32 s11, s11, s12
        s_and_b32 s12, s9, 1
        s_add_u32 s11, s11, s12
        s_cmp_lt_u32 s9, 4
        s_cselect_b32 s7, s10, s7
        s_cselect_b32 s8, s11, s8
        s_sub_u32 s9, s5, 19
        s_cmp_lt_u32 s9, 10
        s_cselect_b32 s6, s9, 99
        s_sub_u32 s10, s5, 20
        s_cmp_ge_u32 s5, 30
        s_cselect_b32 s6, s10, s6
        s_sub_u32 s9, s5, 2
        s_add_u32 s10, s9, 12
        s_cmp_lt_u32 s9, 4
        s_cselect_b32 s6, s10, s6
        ''')

    def nt(self, c): return 'nt' if c in self.ntp else ''
    def pfld(self, v, srd, so): self.a(f'buffer_load_dword v160, v{v}, {srd}, {so} offen {self.cur_nt}')

    def prefetch(self):
        a = self.a
        self.cur_nt = self.nt('m')
        self.srd(64, 36, 640 * 7680)
        a(f'''
        s_mov_b32 s90, s6
        s_cmp_ge_u32 s90, 16
        s_cbranch_scc1 L_pf_done
        s_lshl_b32 s92, s4, 7
        s_cmp_lt_u32 s3, 2
        s_cbranch_scc1 L_pfA
        s_cmp_eq_u32 s4, 6
        s_cselect_b32 s92, 1024, 0
        s_cmp_eq_u32 s4, 1
        s_cselect_b32 s92, 1152, s92
        s_cmp_eq_u32 s92, 0
        s_cbranch_scc1 L_pf_done
        L_pfA:
        s_lshl_b32 s90, s90, 1
        s_and_b32 s91, s3, 1
        s_add_u32 s90, s90, s91
        s_mul_i32 s91, s90, {20*7680}
        s_add_u32 s92, s92, s91
        v_lshrrev_b32 v16, 1, v2
        v_min_u32 v16, 19, v16
        v_mul_u32_u24 v16, 7680, v16
        v_and_b32 v17, 1, v2
        v_mul_u32_u24 v17, 1280, v17
        v_add_u32 v16, v16, v17
        ''')
        self.pfld(16, 's[64:67]', 's92')
        a('L_pf_done:')

    def prefetch_b(self, sfx):
        a = self.a
        a(f'''
        {'s_cmp_ge_u32 s6, 16' if not self.allsh else 's_bitcmp1_b32 s3, 0'}
        s_cbranch_scc1 L_pb_done
        {'s_mul_i32 s90, s6, 40' if not self.allsh else 's_mul_i32 s90, s5, 20'}
        s_and_b32 s91, s3, 1
        s_mul_i32 s91, s91, 24
        s_add_u32 s90, s90, s91
        v_lshrrev_b32 v16, 3, v2
        v_and_b32 v17, 7, v2
        s_cmp_lt_u32 s3, 2
        s_cbranch_scc1 L_pb3
        ''')
        self.cur_nt = self.nt('q')
        self.srd(64, 22, 640 * 8192)
        a(f'''
        v_lshlrev_b32 v17, 7, v17
        v_lshl_add_u32 v18, v16, 13, v17
        s_lshl_b32 s91, s90, 13
        s_lshl_b32 s92, s4, 10
        s_add_u32 s92, s92, s91
        s_mov_b32 s91, {8*8192}
        s_branch L_pb4
        L_pb3:
        ''')
        self.srd(64, 36, 640 * 7680)
        a(f'''
        v_min_u32 v17, 4, v17
        v_lshlrev_b32 v17, 7, v17
        v_mul_u32_u24 v18, 7680, v16
        v_add_u32 v18, v18, v17
        s_mul_i32 s91, s90, 7680
        s_mul_i32 s92, s4, 640
        s_add_u32 s92, s92, 2560
        s_add_u32 s92, s92, s91
        s_mov_b32 s91, {8*7680}
        ''')
        if 'm' in self.abl: a('s_branch L_pb_done')
        self.lds_wait(C_PF, 1, sleep=2)
        a('L_pb4:')
        self.pfld(18, 's[64:67]', 's92'); a('s_add_u32 s92, s92, s91')
        self.pfld(18, 's[64:67]', 's92'); a('s_add_u32 s92, s92, s91')
        a('s_bitcmp1_b32 s3, 0\ns_cbranch_scc1 L_pb_done')
        self.pfld(18, 's[64:67]', 's92')
        a('L_pb_done:')

    def prefetch_late(self, sfx):
        a = self.a
        self.cur_nt = self.nt('f')
        a(f's_cmp_ge_u32 s6, 16\ns_cbranch_scc1 L_pl_done{sfx}')
        a(f's_cmp_lg_u32 s3, 0\ns_cbranch_scc1 L_pl1{sfx}')
        self.srd(68, 32, 1728 * 1280)
        a(f'''
        v_min_u32 v16, 53, v2
        v_mul_u32_u24 v16, 1280, v16
        s_mul_i32 s91, s6, {108*1280}
        s_lshl_b32 s92, s4, 7
        s_add_u32 s92, s92, s91
        s_lshl_b32 s93, s4, 6
        s_add_u32 s93, s93, 1024
        s_add_u32 s93, s93, s91
        ''')
        self.lds_wait(C_PROGW, 1, sleep=4)
        self.pfld(16, 's[68:71]', 's92')
        a(f's_add_u32 s92, s92, {54*1280}\ns_waitcnt vmcnt(0)')
        self.pfld(16, 's[68:71]', 's92')
        a(f'''
        s_and_b32 s92, s4, 5
        s_cmp_lg_u32 s92, 0
        s_cbranch_scc1 L_pl_done{sfx}
        s_waitcnt vmcnt(0)
        ''')
        self.pfld(16, 's[68:71]', 's93')
        a(f's_add_u32 s93, s93, {54*1280}\ns_waitcnt vmcnt(0)')
        self.pfld(16, 's[68:71]', 's93')
        a(f's_branch L_pl_done{sfx}\nL_pl1{sfx}:')
        self.srd(64, 28, 640 * 3456); self.srd(68, 30, 640 * 3456)
        a(f'''
        s_mul_i32 s92, s4, 3
        s_mov_b32 s91, s92
        s_mov_b32 s93, s92
        s_cmp_eq_u32 s4, 4
        s_cselect_b32 s91, 24, s91
        s_cselect_b32 s93, 25, s93
        s_cmp_eq_u32 s4, 6
        s_cselect_b32 s91, 26, s91
        v_and_b32 v17, 7, v2
        v_min_u32 v18, 2, v17
        v_add_u32 v18, s92, v18
        v_mov_b32 v19, s91
        v_cmp_eq_u32 vcc, 3, v17
        v_cndmask_b32 v18, v18, v19, vcc
        v_mov_b32 v19, s93
        v_cmp_eq_u32 vcc, 4, v17
        v_cndmask_b32 v18, v18, v19, vcc
        v_lshlrev_b32 v17, 7, v18
        v_lshrrev_b32 v16, 3, v2
        v_mul_u32_u24 v18, 3456, v16
        v_add_u32 v18, v18, v17
        s_mul_i32 s92, s6, 5
        s_add_u32 s92, s92, s3
        s_sub_u32 s92, s92, 1
        s_mul_i32 s92, s92, {8*3456}
        ''')
        self.lds_wait(C_PROGW, 1, sleep=4)
        self.pfld(18, 's[64:67]', 's92'); self.pfld(18, 's[68:71]', 's92')
        a(f's_cmp_eq_u32 s3, 3\ns_cbranch_scc1 L_pl_done{sfx}\ns_add_u32 s92, s92, {24*3456}\ns_waitcnt vmcnt(0)')
        self.pfld(18, 's[64:67]', 's92'); self.pfld(18, 's[68:71]', 's92')
        a(f'L_pl_done{sfx}:')

    def gwait(self):
        if not self.gthr: return
        a = self.a
        nm = a.label('gw')
        a(f'''
        v_min_u32 v20, {self.gthr - 1}, v2
        v_mul_u32_u24 v20, 37, v20
        s_add_u32 s57, s2, 37
        v_add_u32 v20, s57, v20
        v_and_b32 v20, 255, v20
        v_lshlrev_b32 v20, 7, v20
        s_mov_b32 s56, {WS_F}
        s_waitcnt vmcnt(0)
        ''')
        self.tag_from(167)
        self.poll(nm, ['buffer_load_dword v21, v20, s[44:47], s56 offen sc1'], [21, 21], 2, tagged=True, lanemask=True)

    def ffn1_body(self):
        a = self.a
        self.wfrags640(younger=0)
        self.stamp(2)
        a(f'''
        s_mul_i32 s90, s3, 320
        s_add_u32 s90, s90, {WS_H2}
        v_lshrrev_b32 v33, 3, v2                ; row
        v_and_b32 v35, 7, v2                    ; piece
        v_mul_u32_u24 v6, 1280, v33
        v_and_b32 v34, 3, v35
        v_lshl_add_u32 v34, v34, 4, v6
        v_lshl_add_u32 v6, v35, 4, v6
        v_mul_u32_u24 v3, 400, v33
        v_lshl_add_u32 v3, v35, 4, v3
        s_add_u32 s85, s87, {LW + 8192}
        v_add_u32 v3, s85, v3
        v_mul_u32_u24 v4, 400, v35
        v_lshrrev_b32 v33, 4, v2
        v_lshl_add_u32 v4, v33, 4, v4
        v_add_u32 v4, s85, v4
        v_mov_b32 v12, v4
        v_add_u32 v5, s99, v4
        v_add_u32 v4, s98, v4
        v_and_b32 v32, 7, v2
        v_lshlrev_b32 v32, 4, v32
        v_bfe_u32 v33, v2, 3, 1
        v_lshl_add_u32 v32, v33, 8, v32
        v_bfe_u32 v33, v2, 5, 1
        v_lshl_add_u32 v32, v33, 7, v32
        s_lshl_b32 s91, s8, 9
        s_add_u32 s91, s91, {WS_HID}
        ''')
        a('s_waitcnt lgkmcnt(0)')
        self.stamp(3)
        loads = ['buffer_load_dwordx4 v[140:143], v6, s[44:47], s90 offen sc1',
                 'buffer_load_dwordx4 v[144:147], v6, s[44:47], s90 offen offset:128 sc1',
                 'buffer_load_dwordx4 v[148:151], v34, s[44:47], s90 offen offset:256 sc1']
        self.poll('h2', loads, list(range(140, 152)), self.psleep, lanemask=True, pipe=self.pipe)
        self.stamp(4)
        for n in range(3): a(f'ds_write_b128 v3, v[{140+4*n}:{143+4*n}] offset:{128*n}')
        for n in range(5): a(f'ds_read_b128 v[{120+4*n}:{123+4*n}], v{([4, 5, 12, 12, 12] if self.help2 else [4, 4, 5, 5, 5])[n]} offset:{64*n}')
        self.mfma640('L_ctrl_end', lg=True)
        self.red640()
        self.round4(40, 28); self.round4(56, 30)
        for i in range(4): a(f'v_cmp_lt_f32 s[{64+2*i}:{65+2*i}], 0, v{40+i}')
        for i in range(4): a(f'v_cndmask_b32 v{20+i}, 0, 1.0, s[{64+2*i}:{65+2*i}]')
        a('v_pk_mul_f32 v[40:41], v[40:41], v[20:21]\nv_pk_mul_f32 v[42:43], v[42:43], v[22:23]')
        a('v_pk_mul_f32 v[40:41], v[40:41], v[56:57]\nv_pk_mul_f32 v[42:43], v[42:43], v[58:59]')
        self.pack4(28, 40)
        a(f'''
        v_min_u32 v30, -2, v28
        v_min_u32 v31, -2, v29
        v_min_u32 v28, -2, v28
        v_min_u32 v29, -2, v29
        v_permlane16_swap_b32 v28, v30
        v_permlane16_swap_b32 v29, v31
        s_mov_b32 exec_lo, 0xffff
        s_mov_b32 exec_hi, 0xffff
        buffer_store_dwordx4 v[28:31], v32, s[44:47], s91 offen sc1
        s_mov_b64 exec, -1
        ''')
        if self.stamp_on and not self.light:
            self.stamp(7); a('s_waitcnt vmcnt(0)'); self.stamp(8)
        a('s_branch L_ctrl_end')

    def ffn2_body(self):
        a = self.a
        assert self.bar and not self.help2
        a(f'''
        v_lshrrev_b32 v16, 4, v2                ; s
        v_bfe_u32 v17, v2, 2, 2
        v_lshl_add_u32 v17, v16, 3, v17
        v_lshlrev_b32 v9, 7, v17                ; (8s+r4)*128
        v_bfe_u32 v17, v2, 1, 1
        v_lshl_add_u32 v9, v17, 6, v9
        v_and_b32 v17, 1, v2
        v_lshl_add_u32 v9, v17, 3, v9
        s_lshl_b32 s85, s3, 4
        v_add_u32 v9, s85, v9
        v_add_u32 v10, {2*20480}, v9
        s_mul_i32 s90, s3, 320
        s_add_u32 s90, s90, {WS_H2}
        v_lshrrev_b32 v33, 3, v2                ; row
        v_and_b32 v35, 7, v2                    ; piece
        v_mul_u32_u24 v6, 1280, v33
        v_and_b32 v34, 3, v35
        v_lshl_add_u32 v34, v34, 4, v6
        v_lshl_add_u32 v6, v35, 4, v6
        v_mul_u32_u24 v3, 400, v33
        v_lshl_add_u32 v3, v35, 4, v3
        s_mul_i32 s85, s3, 3200
        s_add_u32 s85, s85, {LST + 4096}
        v_add_u32 v3, s85, v3
        v_mul_u32_u24 v11, 400, v35
        v_lshl_add_u32 v11, v16, 4, v11
        v_add_u32 v11, {LST + 4096}, v11
        v_add_u32 v12, s99, v11
        v_add_u32 v11, s98, v11
        v_lshlrev_b32 v32, 4, v35
        s_lshl_b32 s91, s8, 9
        s_lshl_b32 s85, s3, 7
        s_add_u32 s91, s91, s85
        s_add_u32 s91, s91, {WS_HID}
        ''')
        for n in range(5):
            a(f's_waitcnt vmcnt({4 * (4 - n)})\ns_barrier')
            for w in range(4):
                b = 40 + 16 * n + 4 * w
                base = 9 if w < 2 else 10; o = LW + 20480 * (w & 1) + 4096 * n
                a(f'ds_read_b64_tr_b16 v[{b}:{b+1}], v{base} offset:{o}')
                a(f'ds_read_b64_tr_b16 v[{b+2}:{b+3}], v{base} offset:{o + 512}')
            a('s_waitcnt lgkmcnt(0)')
        self.stamp(2); self.stamp(3)
        loads = ['buffer_load_dwordx4 v[156:159], v6, s[44:47], s90 offen sc1',
                 'buffer_load_dwordx4 v[160:163], v6, s[44:47], s90 offen offset:128 sc1',
                 'buffer_load_dwordx4 v[164:167], v34, s[44:47], s90 offen offset:256 sc1']
        self.poll('h2b', loads, list(range(156, 168)), self.psleep, lanemask=True)
        self.stamp(4)
        for n in range(3): a(f'ds_write_b128 v3, v[{156+4*n}:{159+4*n}] offset:{128*n}')
        a('s_waitcnt lgkmcnt(0)\ns_barrier')
        order = [(n, w) for n in range(5) for w in range(4)]
        R = 9
        def rd(i):
            n, w = order[i]; x = 120 + 4 * (i % R)
            a(f'ds_read_b128 v[{x}:{x+3}], v{11 if n < 2 else 12} offset:{3200*w + 64*n}')
        for i in range(R): rd(i)
        for i in range(20):
            n, w = order[i]; x = 120 + 4 * (i % R); b = 40 + 16 * n + 4 * w; d = 16 + 4 * (i & 1)
            a(f's_waitcnt lgkmcnt({min(i + R, 20) - i - 1})')
            a(f'v_mfma_f32_16x16x32_bf16 v[{d}:{d+3}], v[{b}:{b+3}], v[{x}:{x+3}], {"0" if i < 2 else "v[%d:%d]" % (d, d+3)}')
            if i + R < 20: rd(i + R)
        a('v_pk_add_f32 v[16:17], v[16:17], v[20:21]\nv_pk_add_f32 v[18:19], v[18:19], v[22:23]')
        for i in range(4): a(f'v_cvt_pk_bf16_f32 v{20+i}, 0, v{16+i}')
        for i in range(4): a(f'v_cvt_pk_bf16_f32 v{16+i}, 0, v{16+i}')
        for i in range(4): a(f'v_permlane32_swap_b32 v{16+i}, v{20+i}')
        for i in range(4): a(f'v_cmp_lt_f32 s[{64+2*i}:{65+2*i}], 0, v{16+i}')
        for i in range(4): a(f'v_cndmask_b32 v{24+i}, 0, 1.0, s[{64+2*i}:{65+2*i}]')
        a('v_pk_mul_f32 v[16:17], v[16:17], v[24:25]\nv_pk_mul_f32 v[18:19], v[18:19], v[26:27]')
        a('v_pk_mul_f32 v[16:17], v[16:17], v[20:21]\nv_pk_mul_f32 v[18:19], v[18:19], v[22:23]')
        self.pack4(28, 16)
        a(f'''
        v_min_u32 v30, -2, v28
        v_min_u32 v31, -2, v29
        v_min_u32 v28, -2, v28
        v_min_u32 v29, -2, v29
        v_permlane16_swap_b32 v28, v30
        v_permlane16_swap_b32 v29, v31
        s_mov_b64 exec, 0xff
        buffer_store_dwordx4 v[28:31], v32, s[44:47], s91 offen sc1
        s_mov_b64 exec, -1
        ''')
        if self.stamp_on and not self.light:
            self.stamp(7); a('s_waitcnt vmcnt(0)'); self.stamp(8)
        a('s_branch L_ctrl_end')

    def prefetch_late2(self):
        a = self.a
        self.cur_nt = self.nt('f')
        a(f'''
        s_sub_u32 s90, s5, 4
        s_cmp_lt_u32 s5, 2
        s_cselect_b32 s90, s5, s90       ; u<2 -> u ; u in [6,19) -> u-4 (2..14)
        s_cmp_eq_u32 s5, 30
        s_cselect_b32 s90, 15, s90
        s_cselect_b32 s91, 0, s6
        s_cmp_lt_u32 s91, 16
        s_cselect_b32 s91, 1, 0
        s_cmp_eq_u32 s5, 30
        s_cselect_b32 s91, 0, s91
        s_cmp_lg_u32 s91, 0
        s_cbranch_scc1 L_ctrl_fin
        s_cmp_eq_u32 s3, 0
        s_cbranch_scc1 L_ctrl_fin
        ''')
        self.srd(64, 28, 640 * 3456); self.srd(68, 30, 640 * 3456)
        a(f'''
        s_mul_i32 s92, s4, 3
        s_mov_b32 s91, s92
        s_mov_b32 s93, s92
        s_cmp_eq_u32 s4, 4
        s_cselect_b32 s91, 24, s91
        s_cselect_b32 s93, 25, s93
        s_cmp_eq_u32 s4, 6
        s_cselect_b32 s91, 26, s91
        v_and_b32 v17, 7, v2
        v_min_u32 v18, 2, v17
        v_add_u32 v18, s92, v18
        v_mov_b32 v19, s91
        v_cmp_eq_u32 vcc, 3, v17
        v_cndmask_b32 v18, v18, v19, vcc
        v_mov_b32 v19, s93
        v_cmp_eq_u32 vcc, 4, v17
        v_cndmask_b32 v18, v18, v19, vcc
        v_lshlrev_b32 v17, 7, v18
        v_lshrrev_b32 v16, 3, v2
        v_mul_u32_u24 v18, 3456, v16
        v_add_u32 v18, v18, v17
        s_lshr_b32 s92, s90, 2
        s_mul_i32 s92, s92, 160
        s_and_b32 s91, s90, 3
        s_mul_i32 s91, s91, 24
        s_add_u32 s92, s92, s91
        s_lshl_b32 s91, s3, 3
        s_add_u32 s92, s92, s91
        s_add_u32 s92, s92, 56           ; + 64 - 8
        s_mul_i32 s92, s92, 3456
        s_barrier
        {'s_barrier' if self.help2 == 1 else ''}
        ''')
        if self.help2 == 1: self.lds_wait(C_DONE, 5)
        self.gwait()
        self.pfld(18, 's[64:67]', 's92'); self.pfld(18, 's[68:71]', 's92')

    def dma640_setup(self, rot=False):
        a = self.a
        a(f'''
        v_lshrrev_b32 v16, 3, v2
        s_mul_i32 s85, s3, 160
        {'s_add_u32 s85, s85, s53' if rot else ''}
        v_add_u32 v16, s85, v16
        v_mul_lo_u32 v16, s52, v16
        v_and_b32 v17, 3, v2
        v_lshl_add_u32 v16, v17, 4, v16
        v_mov_b32 v17, 0
        v_mov_b32 v18, s48
        v_mov_b32 v19, s49
        v_mov_b32 v20, s50
        v_mov_b32 v21, s51
        v_and_b32 v22, 4, v2
        v_cmp_ne_u32 vcc, 0, v22
        v_cndmask_b32 v18, v18, v20, vcc
        v_cndmask_b32 v19, v19, v21, vcc
        v_lshl_add_u64 v[4:5], v[16:17], 0, v[18:19]
        s_lshl_b32 s54, s52, 3
        s_mov_b32 s55, 0
        ''')
    def dma640_issue(self, lo, hi, WD=99, rot=False):
        a = self.a
        for n in range(lo, hi):
            a(f's_add_u32 m0, s87, {LW + 1024*n}')
            if n >= WD: a(f's_waitcnt vmcnt({WD-1})')
            a(f'global_load_lds_dwordx4 v[4:5], off {self.cur_nt}')
            if n < 19: a(f'v_lshl_add_u64 v[4:5], v[4:5], 0, {"s[96:97]" if rot and n == 7 else "s[92:93]" if rot and n == 3 and self.help2 else "s[54:55]"}')
    def dma640(self, WD):
        self.dma640_setup(); self.dma640_issue(0, 20, WD)

    def wfrags640(self, younger=None):
        a = self.a
        for n in range(5):
            if younger is not None: a(f's_waitcnt vmcnt({younger + 4 * (4 - n)})')
            for T in range(4):
                b = 40 + 16 * n + 4 * T
                a(f'ds_read_b64_tr_b16 v[{b}:{b+1}], v9 offset:{LW + 4096*n + 32*T}')
                a(f'ds_read_b64_tr_b16 v[{b+2}:{b+3}], v9 offset:{LW + 4096*n + 32*T + 512}')
            a('s_waitcnt lgkmcnt(0)')

    def mfma640(self, skip, extra=(), lg=False):
        a = self.a
        if lg and self.mo != 2: a('s_waitcnt lgkmcnt(0)')
        def mf(T, n):
            d = 16 + 4 * T; b = 40 + 16 * n + 4 * T
            a(f'v_mfma_f32_16x16x32_bf16 v[{d}:{d+3}], v[{b}:{b+3}], v[{120+4*n}:{123+4*n}], {"0" if n == 0 else "v[%d:%d]" % (d, d+3)}')
        def wr(T): a(f'ds_write_b128 v10, v[{16+4*T}:{19+4*T}] offset:{LW + 1024*T}')
        if self.mo == 0:
            for T in range(4):
                for n in range(5): mf(T, n)
                if T >= 2: wr(T - 2)
            wr(2); wr(3)
        elif self.mo == 1:
            for n in range(5):
                for T in range(4): mf(T, n)
            for T in range(4): wr(T)
        else:
            for n in range(5):
                if lg: a(f's_waitcnt lgkmcnt({4 - n})')
                for T in (0, 1): mf(T, n)
            for n in range(5):
                for T in (2, 3): mf(T, n)
                if n >= 3: wr(n - 3)
            wr(2); wr(3)
        reads = []
        for w in range(4):
            reads.append(f'ds_read_b128 v[{40+4*w}:{43+4*w}], v11 offset:{LW + 20480*w}')
            reads.append(f'ds_read_b128 v[{56+4*w}:{59+4*w}], v11 offset:{LW + 20480*w + 2048}')
        self.arrive2(C_A, 3, skip, reads + list(extra))

    def red640(self):
        self.a('s_waitcnt lgkmcnt(0)')
        self.sum_partials(40, [40, 44, 48, 52]); self.sum_partials(56, [56, 60, 64, 68])

    def silu(self, ns=range(5)):
        a = self.a
        a(f's_mov_b32 s85, {LOG2E | 0x80000000}')
        for n in ns:
            b = 120 + 4 * n
            for i in range(4): self.unpack(16 + 2 * i, b + i)
            for i in range(8): a(f'v_mul_f32 v{24+i}, s85, v{16+i}')
            for i in range(8): a(f'v_exp_f32 v{24+i}, v{24+i}')
            for i in range(8): a(f'v_add_f32 v{24+i}, 1.0, v{24+i}')
            for i in range(8): a(f'v_rcp_f32 v{24+i}, v{24+i}')
            for i in range(8): a(f'v_mul_f32 v{16+i}, v{16+i}, v{24+i}')
            for i in range(4): a(f'v_cvt_pk_bf16_f32 v{b+i}, v{16+2*i}, v{17+2*i}')

    def add64(self, d, base, off):
        self.a(f's_add_u32 s{d}, s{base}, {off}\ns_addc_u32 s{d+1}, s{base+1}, 0')

    def control(self):
        a = self.a
        CL = '; ' if 'c' in self.abl else ''
        a('L_control:\ns_setprio 3')
        self.common2()
        a('v_add_u32 v14, v7, v13\nv_mov_b32 v16, 0\nv_mov_b32 v17, 0\nv_mov_b32 v18, 0\nv_mov_b32 v19, 0\nds_write_b128 v14, v[16:19]')
        self.decode()
        a('s_waitcnt lgkmcnt(0)\ns_barrier')
        self.srd(44, 42, WS_SIZE)
        if self.stamp_on: a('v_writelane_b32 v15, s98, 13')
        self.cur_cls = -1
        self.stamp(0)
        self.cur_cls = 99
        if 'r' in self.abl: a('s_branch L_ctrl_fin')
        if self.tlbw:
            a(f'''
            s_cmp_lg_u32 s3, 3
            s_cbranch_scc1 L_notlb
            v_mov_b32 v3, 0
            s_lshl_b32 s85, s2, 2
            s_add_u32 s85, s85, 3
            s_lshl_b32 s85, s85, 18
            s_add_u32 s56, s20, s85
            s_addc_u32 s57, s21, 0
            s_mul_i32 s85, s14, 163840
            s_add_u32 s58, s24, s85
            s_addc_u32 s59, s25, 0
            v_mov_b32 v4, 163836
            s_mov_b64 exec, 1
            global_load_dword v162, v3, s[56:57]
            global_load_dword v162, v3, s[58:59]
            global_load_dword v162, v4, s[58:59]
            global_load_dword v162, v3, s[38:39]
            s_mov_b64 exec, -1
            L_notlb:
            ''')
        if self.pf: self.prefetch()
        if self.pfb:
            a(f's_cmp_eq_u32 s7, {R_G1}\ns_cbranch_scc1 L_pb_done')
            self.prefetch_b('')
        if self.dry:
            a(f'''
            s_cmp_lg_u32 s3, 1
            s_cbranch_scc1 L_dry_done
            s_cmp_eq_u32 s7, {R_G1}
            s_cbranch_scc1 L_dry_done
            v_mov_b32 v4, 0
            v_mov_b32 v5, 0
            v_mov_b32 v35, 0
            s_mov_b64 exec, 0
            s_branch L_tail_dry
            L_dry_ret:
            s_waitcnt lgkmcnt(0)
            s_mov_b64 exec, -1
            L_dry_done:
            ''')
        a(f'''
        v_mov_b32 v3, 0
        buffer_load_dword v167, v3, s[44:47], 0 offen sc1
        s_mul_i32 s87, s3, 20480
        v_lshrrev_b32 v16, 4, v2         ; s
        v_bfe_u32 v17, v2, 2, 2          ; r4
        v_and_b32 v18, 3, v2             ; c
        v_lshl_add_u32 v19, v16, 3, v17  ; 8s+r4
        v_lshlrev_b32 v9, 7, v19
        v_lshl_add_u32 v9, v18, 3, v9
        v_add_u32 v9, s87, v9
        v_add_u32 v10, s87, v7
        v_and_b32 v17, 7, v2             ; b
        v_bfe_u32 v18, v2, 3, 1          ; t
        v_lshlrev_b32 v11, 8, v16
        v_lshl_add_u32 v11, v17, 4, v11
        v_lshl_add_u32 v11, v18, 10, v11
        v_mul_u32_u24 v19, 1280, v17
        v_lshl_add_u32 v6, v16, 4, v19
        v_lshlrev_b32 v8, 5, v18
        v_lshl_add_u32 v8, v16, 3, v8    ; (16t+4s')*2 bytes
        v_lshlrev_b32 v12, 2, v2         ; lane*4
        s_cmp_eq_u32 s7, {R_Q}
        s_cbranch_scc1 L_role_q
        s_cmp_eq_u32 s7, 0
        s_cbranch_scc1 L_share
        s_cmp_eq_u32 s7, {R_FFN}
        s_cbranch_scc1 L_share
        s_cmp_eq_u32 s7, {R_DOWN}
        s_cbranch_scc1 L_share
        s_cmp_eq_u32 s7, {R_RED}
        s_cbranch_scc1 L_share
        ''')
        self.cur_nt = self.nt('m')
        a(f'''
        s_movk_i32 s52, 7680
        s_cmp_eq_u32 s7, {R_G1}
        s_cbranch_scc1 L_role_g1
        ''')
        if 'm' in self.abl or 'M' in self.abl: a('s_branch L_ctrl_fin')
        self.srd(56, 34, 10240)
        a('s_mul_i32 s85, s3, 320')
        for n in range(5):
            a(f'buffer_load_dwordx4 v[{120+4*n}:{123+4*n}], v6, s[56:59], s85 offen offset:{64*n}')
        a(f'''
        s_lshl_b32 s9, s8, 7
        s_add_u32 s9, s9, 2560
        s_add_u32 s48, s36, s9
        s_addc_u32 s49, s37, 0
        s_add_u32 s50, s48, 64
        s_addc_u32 s51, s49, 0
        s_waitcnt vmcnt(0)
        ''')
        self.silu()
        if self.pfb: self.lds_wait(C_PF2, 1, sleep=2)
        self.dma640(self.WDM)
        a('s_waitcnt vmcnt(0)')
        self.stamp(2)
        self.wfrags640()
        self.mfma640('L_ctrl_end')
        a(f'''
        v_and_b32 v22, 7, v2
        v_mul_u32_u24 v22, 5120, v22
        v_add_u32 v22, v22, v8
        s_lshl_b32 s90, s8, 7
        s_add_u32 s90, s90, {WS_MODO}
        ''')
        self.red640()
        self.pack4(24, 40); self.pack4(26, 56)
        self.sanitize([24, 25, 26, 27])
        self.lds_wait(C_QOK, 1, sleep=8)
        a(f'''
        buffer_store_dwordx2 v[24:25], v22, s[44:47], s90 offen sc1
        buffer_store_dwordx2 v[26:27], v22, s[44:47], s90 offen offset:64 sc1
        s_branch L_ctrl_end
        L_role_g1:
        s_lshl_b32 s9, s8, 6
        s_add_u32 s48, s36, s9
        s_addc_u32 s49, s37, 0
        s_add_u32 s50, s48, 1280
        s_addc_u32 s51, s49, 0
        v_add_u32 v34, v19, v8
        ''')
        self.dma640_setup()
        if self.cxfirst: self.lds_wait(C_CX, 8)
        self.stamp(6)
        self.dma640_issue(0, 20)
        self.srd(60, 16, 10240)
        a(f'''
        buffer_load_dwordx2 v[150:151], v34, s[60:63], s9 offen
        s_lshl_b32 s85, s8, 2
        s_add_u32 s85, s85, s3
        s_lshl_b32 s85, s85, 11
        s_add_u32 s85, s85, {SB2}
        v_mov_b32 v152, -1
        v_mov_b32 v153, -1
        v_mov_b32 v154, -1
        v_mov_b32 v155, -1
        {CL}buffer_store_dwordx4 v[152:155], v7, s[44:47], s85 offen sc1
        {CL}buffer_store_dwordx4 v[152:155], v7, s[44:47], s85 offen offset:1024 sc1
        v_and_b32 v16, 7, v2
        v_mul_u32_u24 v16, {ACTS}, v16
        v_lshrrev_b32 v17, 4, v2
        v_lshl_add_u32 v16, v17, 4, v16
        s_mul_i32 s85, s3, 320
        s_add_u32 s85, s85, {L_ACT}
        v_add_u32 v35, s85, v16
        ''')
        self.signal(C_GO)
        self.stamp(1)
        self.lds_wait(C_ACT, 8)
        for n in range(5): a(f'ds_read_b128 v[{120+4*n}:{123+4*n}], v35 offset:{64*n}')
        self.stamp(3)
        self.wfrags640(younger=3)
        self.tag_from(167)
        a('s_waitcnt vmcnt(0)')
        self.stamp(2)
        self.mfma640('L_ctrl_end')
        a(f'''
        v_and_b32 v22, 7, v2
        v_lshl_add_u32 v23, v22, 3, v13
        ds_read_b64 v[36:37], v23 offset:{L_STAT}
        ''')
        self.red640()
        self.pack4(24, 40); self.pack4(26, 56)
        self.unpack4(56, 26)
        a('v_pk_add_f32 v[56:57], v[56:57], 1.0 op_sel_hi:[1,0]\nv_pk_add_f32 v[58:59], v[58:59], 1.0 op_sel_hi:[1,0]')
        self.round4(56, 26)
        self.unpack4(40, 24)
        self.unpack4(44, 150)
        for i in range(4): a(f'v_sub_f32 v{44+i}, v{44+i}, v36')
        self.round4(44, 28)
        for i in range(4): a(f'v_mul_f32 v{44+i}, v{44+i}, v37')
        self.round4(44, 28)
        a('v_pk_mul_f32 v[44:45], v[44:45], v[56:57]\nv_pk_mul_f32 v[46:47], v[46:47], v[58:59]')
        self.round4(44, 28)
        a('v_pk_add_f32 v[44:45], v[44:45], v[40:41]\nv_pk_add_f32 v[46:47], v[46:47], v[42:43]')
        a(f'''
        v_cvt_pk_bf16_f32 v28, v44, v45
        v_cvt_pk_bf16_f32 v30, v46, v47
        v_mov_b32 v29, s94
        v_mov_b32 v31, s94
        v_lshlrev_b32 v22, 4, v22               ; b*16
        v_lshl_add_u32 v22, v8, 4, v22          ; + (16t+4s')*32 = t*512 + s'*128
        s_lshl_b32 s85, s8, 10
        s_add_u32 s85, s85, {WS_H1}
        buffer_store_dwordx4 v[28:31], v22, s[44:47], s85 offen sc1
        s_branch L_ctrl_end
        ''')
        self.cur_nt = self.nt('q')
        a(f'''
        L_role_q:
        {'s_branch L_ctrl_fin' if 'q' in self.abl else ''}
        s_lshl_b32 s9, s8, 7
        s_add_u32 s48, s22, s9
        s_addc_u32 s49, s23, 0
        s_add_u32 s50, s48, 64
        s_addc_u32 s51, s49, 0
        s_movk_i32 s52, 8192
        ''')
        if self.pfb: self.lds_wait(C_PF, 1, sleep=2)
        self.dma640(99)
        a(f'''
        s_and_b32 s85, s8, 1
        s_lshl_b32 s85, s85, 2
        s_add_u32 s85, s85, s3
        s_lshl_b32 s85, s85, 5
        s_lshr_b32 s86, s8, 1
        s_add_u32 s85, s85, s86
        s_mul_i32 s85, s85, 2560
        s_add_u32 s85, s85, {WS_P}
        v_mov_b32 v152, -1
        v_mov_b32 v153, -1
        v_mov_b32 v154, -1
        v_mov_b32 v155, -1
        v_lshlrev_b32 v19, 3, v2
        {CL}buffer_store_dwordx4 v[152:155], v7, s[44:47], s85 offen sc1
        {CL}buffer_store_dwordx4 v[152:155], v7, s[44:47], s85 offen offset:1024 sc1
        {CL}buffer_store_dwordx2 v[152:153], v19, s[44:47], s85 offen offset:2048 sc1
        ''')
        self.signal(C_GO)
        a('s_waitcnt vmcnt(0)')
        self.stamp(2)
        self.tag_from(167)
        self.wfrags640()
        a(f'''
        s_mul_i32 s90, s3, 5120
        s_add_u32 s90, s90, {WS_H1}
        s_add_u32 s91, s90, 4096
        ''')
        self.stamp(3)
        if self.h1probe:
            a('v_min_u32 v34, 4, v2\nv_lshlrev_b32 v34, 10, v34')
            self.poll('h1p', ['buffer_load_dword v35, v34, s[44:47], s90 offen offset:1020 sc1'], [35, 35], 2, tagged=True)
        loads = [f'buffer_load_dwordx4 v[{120+4*n}:{123+4*n}], v7, s[44:47], s{90 if n < 4 else 91} offen offset:{1024*(n%4)} sc1' for n in range(5)]
        self.poll('h1', loads, [121 + 2 * i for i in range(10)], 4, tagged=True)
        self.stamp(4)
        for n in range(5):
            b = 120 + 4 * n
            a(f'v_mov_b32_dpp v{b+3}, v{b+2} row_ror:8 row_mask:0xf bank_mask:0xf')
            a(f'v_mov_b32 v{b+1}, v{b+2}')
            a(f'v_mov_b32_dpp v{b+2}, v{b} row_ror:8 row_mask:0xf bank_mask:0xf')
        self.mfma640('L_ctrl_end')
        a(f'''
        v_and_b32 v22, 7, v2
        v_lshlrev_b32 v22, 14, v22              ; b*32*512
        v_lshl_add_u32 v22, v8, 1, v22          ; + col*4
        s_lshl_b32 s85, s8, 8                   ; h*512 + half*256
        s_add_u32 s85, s85, {WS_Q}
        v_mov_b32 v29, s94
        v_mov_b32 v31, s94
        v_mov_b32 v33, s94
        v_mov_b32 v35, s94
        ''')
        self.red640()
        a(f'''
        v_cvt_pk_bf16_f32 v28, v40, v41
        v_cvt_pk_bf16_f32 v30, v42, v43
        v_cvt_pk_bf16_f32 v32, v56, v57
        v_cvt_pk_bf16_f32 v34, v58, v59
        buffer_store_dwordx4 v[28:31], v22, s[44:47], s85 offen sc1
        buffer_store_dwordx4 v[32:35], v22, s[44:47], s85 offen offset:128 sc1
        s_branch L_ctrl_end
        ''')
        self.cur_nt = self.nt('f')
        a(f'''
        L_role_ffn:
        s_lshl_b32 s9, s8, 6
        s_add_u32 s48, s28, s9
        s_addc_u32 s49, s29, 0
        s_add_u32 s50, s30, s9
        s_addc_u32 s51, s31, 0
        s_movk_i32 s52, 3456
        ''')
        if self.help2:
            a(f'''
            s_movk_i32 s96, {8*3456}
            s_mov_b32 s92, s96
            s_mov_b32 s93, 0
            s_bitcmp1_b32 s8, 0
            s_cselect_b32 s53, 32, 0
            s_cselect_b32 s92, {(-56*3456) & 0xffffffff}, s92
            s_cselect_b32 s93, -1, 0
            s_cselect_b32 s96, {40*3456}, s96
            s_mov_b32 s97, 0
            s_cselect_b32 s98, 64, 0
            s_cselect_b32 s99, -64, 0
            ''')
        else:
            a(f'''
            s_bitcmp1_b32 s8, 0
            {'' if self.rotm else 's_cmp_eq_u32 s8, 999'}
            s_cselect_b32 s53, 96, 0
            s_cselect_b32 s96, {(-152*3456) & 0xffffffff}, 0
            s_cselect_b32 s97, -1, 0
            s_cselect_b32 s98, 192, 0
            s_cselect_b32 s99, -128, 0
            s_cbranch_scc1 L_ffn_r
            s_movk_i32 s96, {8*3456}
            L_ffn_r:
            ''')
        if self.stlb & 2:
            a(f'''
            s_mul_i32 s56, s3, {160*3456}
            s_load_dword s57, s[48:49], s56
            s_load_dword s58, s[50:51], s56
            s_add_u32 s56, s56, {159*3456}
            s_load_dword s59, s[48:49], s56
            s_load_dword s60, s[50:51], s56
            s_waitcnt lgkmcnt(0)
            ''')
        self.dma640_setup(rot=True)
        self.dma640_issue(0, self.nEf, 1, rot=True)
        if self.nMf:
            self.lds_wait(C_VI, 8, sleep=2)
            self.dma640_issue(self.nEf, self.nEf + self.nMf, rot=True)
        if self.bar: a('s_barrier\ns_barrier')
        self.lds_wait(C_DONE, 5, sleep=0 if self.bar else 2)
        self.gwait()
        self.dma640_issue(self.nEf + self.nMf, 20, rot=True)
        if self.ffn2:
            self.ffn2_body()
        if not self.ffn2:
            self.ffn1_body()
        a('L_role_down:')
        self.srd(72, 32, 1728 * 1280); self.srd(80, 38, 10240)
        a(f'''
        s_add_u32 s76, s42, {WS_HID}
        s_addc_u32 s77, s43, 0
        s_mov_b32 s78, {27*1024}
        s_mov_b32 s79, 0x20000
        v_lshrrev_b32 v16, 1, v2
        v_mul_u32_u24 v4, 1280, v16
        v_and_b32 v16, 1, v2
        v_lshl_add_u32 v4, v16, 4, v4
        s_mul_i32 s85, s3, {7*64*1280}
        s_lshl_b32 s9, s8, 5
        s_add_u32 s85, s85, s9
        s_mul_i32 s87, s3, 14336
        ''')
        a(f's_and_b32 s48, s8, {3 if self.rotm else 0}\ns_lshl_b32 s48, s48, 11')
        for n in range(1, 7):
            a(f's_add_u32 s{48+n}, s{47+n}, 1024\ns_cmp_ge_u32 s{48+n}, 7168\ns_cselect_b32 s{48+n}, 0, s{48+n}')
        if self.stlb & 2:
            a(f'''
            s_mul_i32 s56, s3, {575*1280}
            s_load_dword s57, s[32:33], s56
            s_load_dword s58, s[38:39], 0
            s_waitcnt lgkmcnt(0)
            ''')
        if self.otouch: a('v_mov_b32 v16, 0\nbuffer_load_dword v162, v16, s[80:83], 0 offen')
        for n in range(14):
            if n == self.nEd and self.nMd: self.lds_wait(C_VI, 8, sleep=2)
            if n == self.nEd + self.nMd:
                if self.bar: a('s_barrier\ns_barrier')
                self.lds_wait(C_DONE, 5, sleep=0 if self.bar else 2)
                self.gwait()
                if self.ddelay: a(f's_sleep {self.ddelay}')
            if n % 2 == 0: a(f's_mul_i32 s55, s{48+n//2}, 80\ns_add_u32 s55, s55, s85')
            else: a(f's_add_u32 s55, s55, {32*1280}')
            a(f's_add_u32 m0, s87, {LW + 1024*n}')
            if n < self.nEd: a(f's_waitcnt vmcnt(0)')
            a(f'buffer_load_dwordx4 v4, s[72:75], s55 offen {self.nt("f")} lds')
        a(f'''
        v_lshrrev_b32 v16, 4, v2         ; s
        v_bfe_u32 v17, v2, 2, 2          ; r4
        v_lshl_add_u32 v19, v16, 3, v17
        v_lshlrev_b32 v9, 5, v19
        v_bfe_u32 v17, v2, 1, 1
        v_lshl_add_u32 v9, v17, 10, v9
        v_and_b32 v17, 1, v2
        v_lshl_add_u32 v9, v17, 3, v9
        v_add_u32 v9, s87, v9
        v_add_u32 v10, s87, v7
        v_and_b32 v17, 7, v2             ; b
        v_bfe_u32 v18, v2, 3, 1          ; a / half
        v_lshlrev_b32 v3, 7, v16
        v_lshl_add_u32 v3, v17, 4, v3
        v_lshl_add_u32 v3, v18, 9, v3
        s_mul_i32 s86, s3, 7168
        v_add_u32 v3, s86, v3
        v_and_b32 v16, 1, v16            ; s'
        v_lshlrev_b32 v11, 8, v16
        v_lshl_add_u32 v11, v17, 4, v11
        v_lshl_add_u32 v11, v18, 10, v11
        v_lshlrev_b32 v8, 4, v18
        v_lshl_add_u32 v8, v16, 3, v8    ; (8a+4s')*2
        v_mul_u32_u24 v5, 5120, v17
        v_add_u32 v5, v5, v8
        v_mul_u32_u24 v6, 1280, v17
        v_add_u32 v6, v6, v8
        s_add_u32 s90, s9, {WS_MODO + 3840}
        s_add_u32 s91, s9, {WS_X1}
        s_movk_i32 s92, 4096
        ''')
        for n in range(7):
            a(f's_waitcnt vmcnt({12 - 2*n})')
            for ac in range(2):
                b = 40 + 8 * n + 4 * ac
                a(f'ds_read_b64_tr_b16 v[{b}:{b+1}], v9 offset:{LW + 2048*n + 16*ac}')
                a(f'ds_read_b64_tr_b16 v[{b+2}:{b+3}], v9 offset:{LW + 2048*n + 16*ac + 128}')
            if n % 2: a('s_waitcnt lgkmcnt(0)')
        self.stamp(2)
        self.tag_from(167)
        a('s_waitcnt lgkmcnt(0)')
        self.poll('gb', ['buffer_load_dwordx2 v[32:33], v5, s[44:47], s90 offen sc1'], [32, 33], 4)
        self.unpack4(140, 32)
        self.stamp(3)
        self.poll('x1', ['buffer_load_dwordx2 v[32:33], v6, s[44:47], s91 offen sc1'], [32, 33], 1, lanemask=True)
        self.unpack4(144, 32)
        self.stamp(5)
        if self.hdelay: a(f's_sleep {self.hdelay}')
        for i in range(8): a(f'v_mov_b32 v{16+i}, 0')
        def hld(n): return f'buffer_load_dwordx4 v[{104+4*n}:{107+4*n}], v3, s[76:79], s{48+n} offen sc1'
        if self.trig:
            a(f'''
            s_mov_b32 s89, {SPIN_LIMIT}
            v_lshlrev_b32 v34, {9 + self.trsh}, v2
            v_add_u32 v34, s86, v34
            s_mov_b64 exec, {(1 << (12 >> self.trsh)) - 1}
            L_hd_trig:
            buffer_load_dword v35, v34, s[76:79], 0 offen offset:508 sc1
            s_sub_u32 s89, s89, 1
            s_cbranch_scc1 L_hd_go
            s_waitcnt vmcnt(0)
            v_cmp_ne_u32 vcc, -1, v35
            s_nop 1
            s_bcnt1_i32_b32 s85, vcc_lo
            s_cmp_lt_u32 s85, {self.trig}
            s_cbranch_scc1 L_hd_trig
            L_hd_go:
            s_mov_b64 exec, -1
            s_waitcnt vmcnt(0)
            ''')
            self.stamp(7)
        NH = 4 if 'h' in self.abl else 2 if 'H' in self.abl else 7
        a(f's_mov_b32 s90, {(1 << NH) - 1}\ns_mov_b32 s89, {SPIN_LIMIT}\nv_mov_b32 v34, 0')
        for n in range(NH): a(hld(n))
        a('L_hid_poll:')
        for n in range(NH):
            b = 104 + 4 * n
            a(f'''
            s_waitcnt vmcnt({NH-1})
            s_bitcmp1_b32 s90, {n}
            s_cbranch_scc0 L_hd_dm{n}
            v_max3_u32 v36, v{b}, v{b+1}, v{b+2}
            v_max_u32 v36, v36, v{b+3}
            v_cmp_eq_u32 vcc, -1, v36
            s_cbranch_vccz L_hd_ok{n}
            {hld(n)}
            s_branch L_hd_nx{n}
            L_hd_ok{n}:
            v_mfma_f32_16x16x32_bf16 v[16:19], v[{40+8*n}:{43+8*n}], v[{b}:{b+3}], v[16:19]
            v_mfma_f32_16x16x32_bf16 v[20:23], v[{44+8*n}:{47+8*n}], v[{b}:{b+3}], v[20:23]
            s_bitset0_b32 s90, {n}
            s_cmp_eq_u32 s90, 0
            s_cbranch_scc1 L_hid_ok
            L_hd_dm{n}:
            buffer_load_dword v35, v34, s[76:79], 0 offen
            L_hd_nx{n}:
            ''')
        a(f'''
        s_sub_u32 s89, s89, 1
        s_cbranch_scc0 L_hid_poll
        L_hid_ok:
        s_nop 7
        ''')
        self.stamp(4)
        if self.stamp_on and not self.light: a(f's_sub_u32 s96, {SPIN_LIMIT}, s89\nv_writelane_b32 v15, s96, 12')
        a(f'ds_write_b128 v10, v[16:19] offset:{LW}\nds_write_b128 v10, v[20:23] offset:{LW + 1024}')
        reads = []
        for w in range(4):
            reads.append(f'ds_read_b128 v[{40+8*w}:{43+8*w}], v11 offset:{LW + 14336*w}')
            reads.append(f'ds_read_b128 v[{44+8*w}:{47+8*w}], v11 offset:{LW + 14336*w + 640}')
        self.arrive2(C_A, 3, 'L_ctrl_end', reads)
        a('s_waitcnt lgkmcnt(0)')
        self.sum_partials(40, [40 + 4 * i for i in range(8)])
        self.round4(40, 28)
        a('v_pk_mul_f32 v[40:41], v[40:41], v[140:141]\nv_pk_mul_f32 v[42:43], v[42:43], v[142:143]')
        self.round4(40, 28)
        a('v_pk_add_f32 v[40:41], v[40:41], v[144:145]\nv_pk_add_f32 v[42:43], v[42:43], v[146:147]')
        self.pack4(28, 40)
        a(f'''
        s_mov_b32 exec_hi, 0
        buffer_store_dwordx2 v[28:29], v6, s[80:83], s9 offen {self.outf}
        s_cmp_lg_u32 s8, 0
        s_cbranch_scc1 L_noepoch
        s_mov_b64 exec, 1
        v_mov_b32 v20, 0
        v_mov_b32 v21, s94
        buffer_store_dword v21, v20, s[44:47], 0 offen sc1
        L_noepoch:
        s_mov_b64 exec, -1
        s_branch L_ctrl_end
        ''')
        a('L_role_red:')
        self.srd(60, 16, 10240)
        a(f'''
        v_lshlrev_b32 v8, 3, v2          ; lane*8
        s_mul_i32 s9, s8, 1280
        buffer_load_dwordx2 v[26:27], v8, s[60:63], s9 offen
        buffer_load_dwordx2 v[28:29], v8, s[60:63], s9 offen offset:512
        buffer_load_dword v30, v12, s[60:63], s9 offen offset:1024
        s_lshl_b32 s90, s8, 14
        s_lshl_b32 s85, s3, 12
        s_add_u32 s90, s90, s85
        s_add_u32 s90, s90, {WS_Q}
        s_waitcnt vmcnt(0)
        ''')
        self.tag_from(167)
        for i in range(5): self.unpack(120 + 2 * i, 26 + i)
        self.lds_wait(C_QOK, 1, sleep=8)
        loads = [f'buffer_load_dwordx4 v[{40+4*n}:{43+4*n}], v7, s[44:47], s90 offen offset:{1024*n} sc1' for n in range(4)]
        self.poll('qall', loads, [41 + 2 * i for i in range(8)], 8, tagged=True)
        a(f'''
        s_mul_i32 s90, s8, 5120
        s_add_u32 s90, s90, {WS_MODO}
        ''')
        loads = []
        for ch in range(3):
            b = 40 + 6 * ch
            loads += [f'buffer_load_dwordx2 v[{b}:{b+1}], v8, s[44:47], s90 offen offset:{1280*ch} sc1',
                      f'buffer_load_dwordx2 v[{b+2}:{b+3}], v8, s[44:47], s90 offen offset:{1280*ch + 512} sc1',
                      f'buffer_load_dword v{b+4}, v12, s[44:47], s90 offen offset:{1280*ch + 1024} sc1']
        self.poll('modo', loads, [40 + 6 * ch + i for ch in range(3) for i in range(5)], 8)
        for ch in range(3):
            for i in range(5): self.unpack(130 + 10 * ch + 2 * i, 40 + 6 * ch + i)
        for i in range(5):
            a(f'v_pk_add_f32 v[{150+2*i}:{151+2*i}], v[{150+2*i}:{151+2*i}], 1.0 op_sel_hi:[1,0]')
            a(f'v_cvt_pk_bf16_f32 v26, v{150+2*i}, v{151+2*i}')
            self.unpack(150 + 2 * i, 26)
        for i in range(10): a(f'v_mov_b32 v{16+i}, 0')
        a(f'''
        s_lshl_b32 s91, s8, 5
        s_lshl_b32 s85, s3, 3
        s_add_u32 s91, s91, s85
        s_mul_i32 s91, s91, 2560
        s_add_u32 s91, s91, {WS_P}
        s_mul_i32 s87, s3, 2560
        v_add_u32 v10, s87, v7
        v_add_u32 v11, s87, v8
        s_add_u32 s92, s9, {WS_H2}
        s_add_u32 s93, s9, {WS_X1}
        ''')
        self.stamp(2)
        self.lds_wait(C_PROG, 1, sleep=8)
        self.stamp(3)
        a(f'''
        s_mov_b32 s90, 0xff
        s_mov_b32 s89, {SPIN_LIMIT}
        v_and_b32 v34, 7, v2
        v_mul_u32_u24 v34, 2560, v34
        s_mov_b32 s86, 0
        L_p_poll:
        s_mov_b32 s95, s90
        s_cmp_lg_u32 s86, 0
        s_cbranch_scc1 L_p_fetch
        ds_read_b32 v14, v13 offset:{C_K2}
        s_waitcnt lgkmcnt(0)
        v_readfirstlane_b32 s88, v14
        s_cmp_ge_u32 s88, 8
        s_cselect_b32 s86, 1, 0
        s_cbranch_scc1 L_p_fetch
        s_sleep 4
        buffer_load_dword v35, v34, s[44:47], s91 offen offset:2556 sc1
        s_waitcnt vmcnt(0)
        v_cmp_ne_u32 vcc, -1, v35
        s_nop 1
        s_and_b32 s95, s90, vcc_lo
        s_cbranch_scc0 L_p_next
        L_p_fetch:
        s_bcnt1_i32_b32 s85, s90
        s_and_b32 s85, s85, s86
        s_bcnt1_i32_b32 s88, s90
        s_cmp_eq_u32 s88, s85
        s_cbranch_scc1 L_p_one
        ''')
        for g in range(8):
            b = 40 + 10 * g
            a(f'''
            s_bitcmp1_b32 s95, {g}
            s_cbranch_scc0 L_p_sk{g}
            s_add_u32 s85, s91, {2560*g}
            buffer_load_dwordx4 v[{b}:{b+3}], v7, s[44:47], s85 offen sc1
            buffer_load_dwordx4 v[{b+4}:{b+7}], v7, s[44:47], s85 offen offset:1024 sc1
            buffer_load_dwordx2 v[{b+8}:{b+9}], v8, s[44:47], s85 offen offset:2048 sc1
            L_p_sk{g}:
            ''')
        a('s_waitcnt vmcnt(0)')
        for g in range(8):
            b = 40 + 10 * g
            a(f'''
            s_bitcmp1_b32 s95, {g}
            s_cbranch_scc0 L_p_ck{g}
            v_max3_u32 v36, v{b}, v{b+1}, v{b+2}
            v_max3_u32 v37, v{b+3}, v{b+4}, v{b+5}
            v_max3_u32 v36, v36, v{b+6}, v{b+7}
            v_max3_u32 v37, v37, v{b+8}, v{b+9}
            v_max_u32 v36, v36, v37
            v_cmp_eq_u32 vcc, -1, v36
            s_cbranch_vccnz L_p_ck{g}
            s_bitset0_b32 s90, {g}
            ''')
            for i in range(5): a(f'v_pk_add_f32 v[{16+2*i}:{17+2*i}], v[{16+2*i}:{17+2*i}], v[{b+2*i}:{b+2*i+1}]')
            a(f'L_p_ck{g}:')
        a(f'''
        s_cmp_eq_u32 s90, 0
        s_cbranch_scc1 L_p_ok
        L_p_next:
        s_sub_u32 s89, s89, 1
        s_cbranch_scc0 L_p_poll
        s_branch L_p_ok
        L_p_one:
        s_ff1_i32_b32 s85, s90
        s_mul_i32 s85, s85, 2560
        s_add_u32 s85, s85, s91
        ''')
        one = ['buffer_load_dwordx4 v[110:113], v7, s[44:47], s85 offen sc1', 'buffer_load_dwordx4 v[114:117], v7, s[44:47], s85 offen offset:1024 sc1', 'buffer_load_dwordx2 v[118:119], v8, s[44:47], s85 offen offset:2048 sc1']
        if self.pipe:
            for l in one: a(l)
            a(f's_sleep {self.pipe}')
        if self.premerge:
            for k in range(3):
                a(f's_add_u32 s88, s3, {k+1}\ns_and_b32 s88, s88, 3\ns_mul_i32 s88, s88, 2560\nv_add_u32 v{100+2*k}, s88, v7\nv_add_u32 v{101+2*k}, s88, v8')
            a('s_mov_b32 s95, 0')
        a('L_p_one_l:')
        for l in one: a(l)
        a('s_sub_u32 s89, s89, 1\ns_cbranch_scc1 L_p_ok')
        if self.premerge:
            a(f'''
            s_cmp_lg_u32 s95, 0
            s_cbranch_scc1 L_p_one_w
            ds_read_b32 v14, v13 offset:{C_A}
            s_waitcnt lgkmcnt(0)
            v_readfirstlane_b32 s88, v14
            s_cmp_lg_u32 s88, 3
            s_cbranch_scc1 L_p_one_w
            s_mov_b32 s95, 1
            ''')
            for k in range(3):
                b = 40 + 10 * k
                a(f'ds_read_b128 v[{b}:{b+3}], v{100+2*k} offset:{LW}\nds_read_b128 v[{b+4}:{b+7}], v{100+2*k} offset:{LW + 1024}\nds_read_b64 v[{b+8}:{b+9}], v{101+2*k} offset:{LW + 2048}')
            a('s_waitcnt lgkmcnt(0)')
            for k in range(3):
                for i in range(5): a(f'v_pk_add_f32 v[{16+2*i}:{17+2*i}], v[{16+2*i}:{17+2*i}], v[{40+10*k+2*i}:{41+10*k+2*i}]')
            a('L_p_one_w:')
        a(f'''
        s_waitcnt vmcnt({3 if self.pipe else 0})
        v_max3_u32 v36, v110, v111, v112
        v_max3_u32 v37, v113, v114, v115
        v_max3_u32 v36, v36, v116, v117
        v_max3_u32 v37, v37, v118, v119
        v_max_u32 v36, v36, v37
        v_cmp_eq_u32 vcc, -1, v36
        s_cbranch_vccnz L_p_one_l
        ''')
        if self.premerge:
            a('s_cmp_eq_u32 s95, 0\ns_cbranch_scc1 L_p_one_n')
            for i in range(5): a(f'v_pk_add_f32 v[{40+2*i}:{41+2*i}], v[{16+2*i}:{17+2*i}], v[{110+2*i}:{111+2*i}]')
            self.stamp(4)
            a('s_branch L_red_epi\nL_p_one_n:')
        a(f'''
        v_pk_add_f32 v[16:17], v[16:17], v[110:111]
        v_pk_add_f32 v[18:19], v[18:19], v[112:113]
        v_pk_add_f32 v[20:21], v[20:21], v[114:115]
        v_pk_add_f32 v[22:23], v[22:23], v[116:117]
        v_pk_add_f32 v[24:25], v[24:25], v[118:119]
        L_p_ok:
        ''')
        self.stamp(4)
        a(f'''
        ds_write_b128 v10, v[16:19] offset:{LW}
        ds_write_b128 v10, v[20:23] offset:{LW + 1024}
        ds_write_b64 v11, v[24:25] offset:{LW + 2048}
        ''')
        reads = []
        for w in range(4):
            b = 40 + 10 * w
            reads.append(f'ds_read_b128 v[{b}:{b+3}], v7 offset:{LW + 2560*w}')
            reads.append(f'ds_read_b128 v[{b+4}:{b+7}], v7 offset:{LW + 2560*w + 1024}')
            reads.append(f'ds_read_b64 v[{b+8}:{b+9}], v8 offset:{LW + 2560*w + 2048}')
        self.arrive2(C_A, 3, 'L_ctrl_end', reads)
        a('s_waitcnt lgkmcnt(0)')
        U = 40
        def P(r, i): return f'v[{r+2*i}:{r+2*i+1}]'
        for i in range(5): a(f'v_pk_add_f32 {P(40,i)}, {P(40,i)}, {P(50,i)}')
        for i in range(5): a(f'v_pk_add_f32 {P(60,i)}, {P(60,i)}, {P(70,i)}')
        for i in range(5): a(f'v_pk_add_f32 {P(40,i)}, {P(40,i)}, {P(60,i)}')
        a('L_red_epi:')
        def pk():
            for i in range(5): a(f'v_cvt_pk_bf16_f32 v{26+i}, v{U+2*i}, v{U+2*i+1}')
        def rnd(): self.rnd1(range(U, U + 10))
        rnd()
        for i in range(5): a(f'v_pk_mul_f32 {P(U,i)}, {P(U,i)}, {P(130,i)}')
        rnd()
        for i in range(5): a(f'v_pk_add_f32 {P(U,i)}, {P(U,i)}, {P(120,i)}')
        rnd()
        def mid():
            for i in range(5): a(f'v_cvt_pk_bf16_f32 v{160+i}, v{U+2*i}, v{U+2*i+1}')
            for i in range(5): a(f'v_pk_add_f32 {P(U,i)}, {P(U,i)}, s[96:97] op_sel_hi:[1,0] neg_lo:[0,1] neg_hi:[0,1]')
            rnd()
        self.ln_stats1(U, 32, 96, 98, mid)
        for i in range(5): a(f'v_pk_mul_f32 {P(U,i)}, {P(U,i)}, s[98:99] op_sel_hi:[1,0]')
        rnd()
        for i in range(5): a(f'v_pk_mul_f32 {P(U,i)}, {P(U,i)}, {P(150,i)}')
        rnd()
        for i in range(5): a(f'v_pk_add_f32 {P(U,i)}, {P(U,i)}, {P(140,i)}')
        pk()
        self.sanitize(range(26, 31))
        a(f'''
        buffer_store_dwordx2 v[26:27], v8, s[44:47], s92 offen sc1
        buffer_store_dwordx2 v[28:29], v8, s[44:47], s92 offen offset:512 sc1
        buffer_store_dword v30, v12, s[44:47], s92 offen offset:1024 sc1
        ''')
        self.sanitize(range(160, 165))
        a(f'''
        buffer_store_dwordx2 v[160:161], v8, s[44:47], s93 offen sc1
        buffer_store_dwordx2 v[162:163], v8, s[44:47], s93 offen offset:512 sc1
        buffer_store_dword v164, v12, s[44:47], s93 offen offset:1024 sc1
        L_ctrl_end:
        ''')
        self.stamp(11)
        a(f's_cmp_eq_u32 s7, {R_DOWN}\ns_cbranch_scc1 L_ctrl_fin\ns_cmp_eq_u32 s7, {R_FFN}\ns_cbranch_scc1 L_ctrl_fin\ns_cmp_eq_u32 s7, {R_RED}\ns_cbranch_scc1 L_ctrl_fin')
        a('L_share:')
        if 't' in self.abl: a('s_branch L_ctrl_fin')
        if self.late: self.prefetch_late('e')
        a(f's_cmp_eq_u32 s7, {R_DOWN}\ns_cbranch_scc1 L_role_down\ns_cmp_eq_u32 s7, {R_FFN}\ns_cbranch_scc1 L_role_ffn\ns_cmp_eq_u32 s7, {R_RED}\ns_cbranch_scc1 L_role_red')
        if self.help2:
            assert self.bar
            self.prefetch_late2()
        a('L_ctrl_fin:')
        self.stamp_flush()
        self.diag_end()
        a('s_endpgm')

    def stream(self):
        a = self.a
        self.tail_code = []
        self.cur_cls = 0
        WK, WV = self.WK, self.WV
        NV = 12
        def wmap(n):
            if self.smf: return 2 * (n // 10) + (n & 1), (n % 10) // 2
            return n // 5, n % 5
        KV = lambda t: 40 + 4 * t
        if self.c4:
            self.wki = 4; self.WK0 = 4
            a(f'''
            s_sub_u32 s15, s3, 4             ; sw
            s_lshl_b32 s85, s15, 12
            v_add_u32 v1, s85, v7
            s_lshl_b32 s85, s2, 2
            s_add_u32 s85, s85, 3
            s_lshl_b32 s85, s85, 18
            s_mov_b32 s51, 0x20000
            s_lshl_b32 s50, s51, 1
            s_waitcnt lgkmcnt(0)
            s_add_u32 s48, s18, s85
            s_addc_u32 s49, s19, 0
            ''')
            for t in range(4): a(f'buffer_load_dwordx4 v[{40+4*t}:{43+4*t}], v1, s[48:51], 0 offen offset:{1024*t} {self.nt("k")}')
        else:
            assert self.rotw == 1 and self.WK0 >= 2
            a(f'''
            s_sub_u32 s15, s3, 4             ; sw
            s_lshl_b32 s85, s15, {10 if self.ilv else 15}
            v_add_u32 v1, s85, v7
            s_mul_i32 s91, s2, {self.rot}
            {'' if self.ilv else 's_add_u32 s91, s91, s15'}
            s_and_b32 s91, s91, 31
            s_lshl_b32 s91, s91, {13 if self.ilv else 10}          ; rotation
            s_lshl_b32 s85, s2, 2
            s_add_u32 s85, s85, 3
            s_lshl_b32 s85, s85, 18
            s_mov_b32 s51, 0x20000
            s_lshl_b32 s50, s51, 1
            {'s_sub_u32 s90, s50, 1' if self.ilv else 's_movk_i32 s90, 0x7fff'}
            s_addk_i32 s91, {8192 if self.ilv else 1024}
            s_and_b32 s92, s91, s90
            s_addk_i32 s91, {-8192 if self.ilv else -1024}
            s_waitcnt lgkmcnt(0)
            s_add_u32 s48, s18, s85
            s_addc_u32 s49, s19, 0
            buffer_load_dwordx4 v[40:43], v1, s[48:51], s91 offen {self.nt('k')}
            buffer_load_dwordx4 v[44:47], v1, s[48:51], s92 offen {self.nt('k')}
            ''')
            for t in range(2, self.wki):
                a(f's_addk_i32 s92, {8192 if self.ilv else 1024}\ns_and_b32 s92, s92, s90\nbuffer_load_dwordx4 v[{40+4*t}:{43+4*t}], v1, s[48:51], s92 offen {self.nt("k")}')
        a(f'''
        s_add_u32 s52, s20, s85
        s_addc_u32 s53, s21, 0
        s_mov_b32 s54, 0x40000
        s_mov_b32 s55, 0x20000
        s_barrier
        ''')
        self.common2()
        self.srd(44, 42, WS_SIZE)
        if self.stamp_on: a('v_writelane_b32 v15, s98, 13')
        self.cur_cls = -1
        self.stamp(0)
        self.cur_cls = 0
        self.decode()
        for _ in range(self.sdelay): a('s_sleep 32')
        if self.hold > 1: a(f's_cmp_eq_u32 s7, {R_Q}\ns_cbranch_scc1 L_hold')
        if 'r' in self.abl: a('s_branch L_nohold')
        a(f's_cmp_lg_u32 s7, {R_G1}\ns_cbranch_scc1 L_nohold')
        self.srd(56, 34, 10240); self.srd(60, 16, 10240)
        a('s_mul_i32 s90, s15, 1280\nv_lshlrev_b32 v12, 2, v2')
        for n in range(5): a(f'buffer_load_dword v{80+n}, v12, s[56:59], s90 offen offset:{256*n}')
        for n in range(5): a(f'buffer_load_dword v{86+n}, v12, s[60:63], s90 offen offset:{256*n}')
        if self.cxfirst: self.signal(C_CX)
        a(f'''
        s_mul_i32 s90, s15, {ACTS}
        s_add_u32 s90, s90, {L_ACT}
        v_add_u32 v12, s90, v12
        s_mov_b32 s85, {LOG2E | 0x80000000}
        s_waitcnt vmcnt(5)
        ''')
        self.stamp(9)
        for i in range(5): self.unpack(100 + 2 * i, 80 + i)
        for i in range(10): a(f'v_mul_f32 v{112+i}, s85, v{100+i}')
        for i in range(10): a(f'v_exp_f32 v{112+i}, v{112+i}')
        for i in range(10): a(f'v_add_f32 v{112+i}, 1.0, v{112+i}')
        for i in range(10): a(f'v_rcp_f32 v{112+i}, v{112+i}')
        for i in range(10): a(f'v_mul_f32 v{100+i}, v{100+i}, v{112+i}')
        for i in range(5): a(f'v_cvt_pk_bf16_f32 v{80+i}, v{100+2*i}, v{101+2*i}')
        for i in range(5): a(f'ds_write_b32 v12, v{80+i} offset:{256*i}')
        a('s_waitcnt vmcnt(0)')
        self.ln_stats(86, 100, 112, 90, 92)
        a(f'''
        v_mov_b32 v28, s90
        v_mov_b32 v29, s92
        s_lshl_b32 s85, s15, 3
        v_add_u32 v30, s85, v13
        ds_write_b64 v30, v[28:29] offset:{L_STAT}
        ''')
        self.signal(C_ACT)
        a('L_hold:')
        if self.hold: self.lds_wait(C_GO, 4, sleep=2)
        a('L_nohold:')
        q = [f'K{t}' for t in range(self.wki)]
        def wait_for(name):
            i = len(q) - 1 - q[::-1].index(name)
            n = len(q) - 1 - i
            a(f's_waitcnt vmcnt({min(n, 63)})')
        def ld(t, slot, srd, nm):
            if self.c4:
                if t % 4 == 0: a(f's_mov_b32 s92, {(t >> 2) * 32768}')
                a(f'buffer_load_dwordx4 v[{KV(slot)}:{KV(slot)+3}], v1, {srd}, s92 offen offset:{(t & 3) * 1024} {self.nt(nm[0].lower())}')
            else:
                a(f's_add_u32 s92, s91, {t*(8192 if self.ilv else 1024)}\ns_and_b32 s92, s92, {0x3ffff if self.ilv else 0x7fff}')
                a(f'buffer_load_dwordx4 v[{KV(slot)}:{KV(slot)+3}], v1, {srd}, s92 offen {self.nt(nm[0].lower())}')
            q.append(nm)
        qloads = ['buffer_load_dwordx4 v[4:7], v12, s[44:47], s93 offen sc1', 'buffer_load_dwordx4 v[16:19], v12, s[44:47], s93 offen offset:16 sc1']
        for t in range(1, 32):
            wk = WK if t >= self.wk_sw else self.WK0
            if self.c4:
                if t >= 4 and t % 4 == 0:
                    ak = self.aK if t < self.wk_sw else self.aK2
                    if self.aKL > ak and t >= 8:
                        L = a.label('L_kw')
                        wait_for(f'K{t - 1 - self.aKL}'); a(f's_cbranch_vccnz {L}'); wait_for(f'K{t - 1 - ak}'); a(f'{L}:')
                    else: wait_for(f'K{t - 1 - ak}')
            elif t >= wk and t >= self.wki:
                if self.WKL > wk and t >= self.wkl_sw:
                    L = a.label('L_kw')
                    a(f's_waitcnt vmcnt({self.WKL-1})\ns_cbranch_vccnz {L}\ns_waitcnt vmcnt({wk-1})\n{L}:')
                else: a(f's_waitcnt vmcnt({wk-1})')
            if t == self.WK0: self.stamp(8)
            if t == self.pfl_t: self.signal(C_PROGW)
            if t == self.pf1_t: self.signal(C_PF)
            if t == self.pf2_t: self.signal(C_PF2)
            if t >= self.wki: ld(t, t, 's[48:51]', f'K{t}')
            if t == self.WK0 - 1:
                a(f'''
                v_mov_b32 v3, 0
                buffer_load_dword v35, v3, s[44:47], 0 offen sc1
                v_and_b32 v3, 15, v2
                v_lshlrev_b32 v12, 5, v3             ; Q voffset
                s_lshl_b32 s93, s2, 9
                s_add_u32 s93, s93, {WS_Q}
                v_mov_b32 v16, 0xffff
                v_mov_b32 v17, s84
                ''')
                q.append('E')
                for r in range(4):
                    a(f'''
                    v_cmp_eq_u32 vcc, {2*r}, v3
                    v_cndmask_b32 v{8+r}, 0, v16, vcc
                    v_cmp_eq_u32 vcc, {2*r+1}, v3
                    v_cndmask_b32 v{8+r}, v{8+r}, v17, vcc
                    ''')
                a(f'''
                s_mov_b32 s96, 0xcccccccc
                s_mov_b32 s97, 0xcccccccc
                s_mov_b32 s98, 0xaaaaaaaa
                s_mov_b32 s99, 0xaaaaaaaa
                s_mul_i32 s85, s14, 163840
                s_add_u32 s56, s24, s85
                s_addc_u32 s57, s25, 0
                s_mov_b32 s58, 163840
                s_mov_b32 s59, 0x20000
                v_lshrrev_b32 v34, 4, v2
                v_mul_u32_u24 v34, 5120, v34
                v_lshl_add_u32 v34, v3, 4, v34
                s_mul_i32 s85, s15, 20480
                v_add_u32 v34, s85, v34
                s_lshr_b32 s85, {self.lagmask}, s7
                s_bitcmp1_b32 s85, 0
                s_cselect_b64 vcc, -1, 0
                ''')
            if self.c4: stl = {7: [0], 11: [1, 2], 15: [3], 19: [4, 5], 23: [6, 7], 27: [8]}.get(t, [])
            else: stl = [(t - self.st0) // self.stp] if t >= self.st0 and (t - self.st0) % self.stp == 0 else []
            for n in [n for n in stl if n < self.nst]:
                if n == 6 and 'r' not in self.abl:
                    a(f's_cmp_lg_u32 s7, {R_G1}\ns_cbranch_scc1 L_stg_ok')
                    self.lds_wait(C_A, 4, sleep=1)
                    a('L_stg_ok:')
                a(f's_lshl_b32 s85, s15, 10\ns_add_u32 m0, s85, {LST + 8192*n}\ns_movk_i32 s85, {wmap(n)[0] * 1280 + wmap(n)[1] * 256}')
                a(f'buffer_load_dwordx4 v34, s[56:59], s85 offen {self.nt("o")} lds')
                q.append(f'S{n}')
            if self.stlb & 1 and t == 8:
                a('s_load_dword s63, s[52:53], 0')
            if t == (19 if self.c4 else 12):
                self.tag_from(35)
            if t == self.rk:
                self.srd(64, 40, 256)
                a(f'''
                v_mov_b32 v37, 1
                v_mov_b32 v38, 0
                s_mov_b64 exec, 1
                s_cmp_eq_u32 s15, 0
                s_cbranch_scc1 L_rk_at
                buffer_load_dword v37, v38, s[64:67], 0 offen offset:128
                s_branch L_rk_dn
                L_rk_at:
                buffer_atomic_add v37, v38, s[64:67], 0 offen sc0 sc1
                L_rk_dn:
                s_mov_b64 exec, -1
                ''')
                q.append('RK')
            if t == self.qpos:
                for l in qloads: a(l)
                q.append('Q0'); q.append('Q1')
        self.stamp(1)
        wait_for('Q1')
        a(f'''
        s_mov_b32 s89, {SPIN_LIMIT}
        s_waitcnt lgkmcnt(0)
        s_mov_b32 s63, 0
        L_q_chk:
        v_xor_b32 v20, s94, v5
        v_xor_b32 v21, s94, v7
        v_xor_b32 v22, s94, v17
        v_xor_b32 v23, s94, v19
        v_or_b32 v20, v20, v21
        v_or3_b32 v20, v20, v22, v23
        v_cmp_ne_u32 vcc, 0, v20
        {'s_branch L_q_ok' if 'r' in self.abl or 'q' in self.abl else ''}
        s_cbranch_vccz L_q_ok
        s_cmp_ge_u32 s63, {self.vpf * 8192}
        s_cbranch_scc1 L_q_nopf
        ''')
        if self.c4:
            a('''
            s_lshl_b32 s85, s63, 3
            v_lshrrev_b32 v38, 5, v2
            v_lshl_add_u32 v38, v38, 15, s85
            v_and_b32 v39, 31, v2
            v_lshl_add_u32 v38, v39, 7, v38
            s_lshl_b32 s85, s15, 12
            ''')
        elif self.ilv:
            a('''
            s_lshl_b32 s85, s63, 3
            s_add_u32 s85, s85, s91
            v_lshrrev_b32 v38, 3, v2
            v_lshl_add_u32 v38, v38, 13, s85
            v_and_b32 v38, 0x3ffff, v38
            v_and_b32 v39, 7, v2
            v_lshl_add_u32 v38, v39, 7, v38
            s_lshl_b32 s85, s15, 10
            ''')
        else:
            a('''
            s_add_u32 s85, s91, s63
            v_lshl_add_u32 v38, v2, 7, s85
            v_and_b32 v38, 0x7fff, v38
            s_lshl_b32 s85, s15, 15
            ''')
        a(f'''
        buffer_load_dword v39, v38, s[52:55], s85 offen
        s_addk_i32 s63, 8192
        L_q_nopf:
        {qloads[0]}
        {qloads[1]}
        s_waitcnt vmcnt(0)
        s_sub_u32 s89, s89, 1
        s_cbranch_scc0 L_q_chk
        L_q_ok:
        v_mov_b32 v5, v6
        v_mov_b32 v6, v16
        v_mov_b32 v7, v18
        ''')
        self.signal(C_QOK)
        self.stamp(2)
        D = 20
        st = dict(V=0, W=self.nst)
        def ldwo(n):
            tp, c = wmap(n)
            so = ['0', 's60', 's61', 's62'][tp]
            if 'w' in self.abl: return
            a(f'buffer_load_dwordx4 v[{KV(NV+n)}:{KV(NV+n)+3}], v34, s[56:59], {so} offen offset:{256*c} {self.nt("o")}')
            q.append(f'W{n}')
        def pre(g, free):
            for ch in self.pre[g]:
                if ch == 'V':
                    assert st['V'] < NV and st['V'] <= free
                    ld(st['V'], st['V'], 's[52:55]', f"V{st['V']}"); st['V'] += 1
                else:
                    assert NV + st['W'] <= free
                    ldwo(st['W']); st['W'] += 1
        a('s_movk_i32 s60, 1280\ns_movk_i32 s61, 2560\ns_movk_i32 s62, 3840')
        for g in range(8):
            wait_for(f'K{4*g+3}')
            for i in range(4):
                for k in range(4):
                    t = 4 * g + k
                    a(f'v_dot2_f32_bf16 v{D+k}, v{KV(t)+i}, v{4+i}, {"0" if i == 0 else "v%d" % (D+k)}')
            pre(g, 4 * g + 3)
            a(f'v_add_f32_dpp v24, v{D}, v{D} row_ror:8 row_mask:0xf bank_mask:0x3')
            a(f'v_add_f32_dpp v25, v{D+2}, v{D+2} row_ror:8 row_mask:0xf bank_mask:0x3')
            a(f'v_add_f32_dpp v24, v{D+1}, v{D+1} row_ror:8 row_mask:0xf bank_mask:0xc')
            a(f'v_add_f32_dpp v25, v{D+3}, v{D+3} row_ror:8 row_mask:0xf bank_mask:0xc')
            r2 = 26 + (g & 1)
            a(f'v_add_f32_dpp v{r2}, v24, v24 row_shl:4 row_mask:0xf bank_mask:0x5')
            a(f'v_add_f32_dpp v{r2}, v25, v25 row_shr:4 row_mask:0xf bank_mask:0xa')
            if g & 1:
                r3 = 28 + ((g >> 1) & 1)
                a(f'v_add_f32_dpp v30, v26, v26 quad_perm:[2,3,0,1] row_mask:0xf bank_mask:0xf')
                a(f'v_add_f32_dpp v31, v27, v27 quad_perm:[2,3,0,1] row_mask:0xf bank_mask:0xf')
                a(f'v_cndmask_b32 v{r3}, v30, v31, s[96:97]')
            if (g & 3) == 3:
                a(f'v_add_f32_dpp v30, v28, v28 quad_perm:[1,0,3,2] row_mask:0xf bank_mask:0xf')
                a(f'v_add_f32_dpp v31, v29, v29 quad_perm:[1,0,3,2] row_mask:0xf bank_mask:0xf')
                a(f'v_cndmask_b32 v{32 + (g >> 2)}, v30, v31, s[98:99]')
        a(f'''
        v_cvt_pk_bf16_f32 v20, v32, v33
        s_mov_b32 s86, 0x3db504f3
        ''')
        self.unpack(32, 20)
        a('v_pk_mul_f32 v[32:33], v[32:33], s[86:87] op_sel_hi:[1,0]\nv_cvt_pk_bf16_f32 v20, v32, v33')
        self.unpack(32, 20)
        a('v_max_f32 v20, v32, v33')
        self.wave_red(20, 'max')
        a(f'''
        v_readlane_b32 s86, v20, 63              ; m_w
        s_mov_b32 s90, {LOG2E}
        v_subrev_f32 v20, s86, v32
        v_subrev_f32 v21, s86, v33
        v_mul_f32 v20, s90, v20
        v_mul_f32 v21, s90, v21
        v_exp_f32 v20, v20
        v_exp_f32 v21, v21
        v_add_f32 v21, v20, v21
        ''')
        self.wave_red(21)
        a(f'''
        v_mov_b32 v20, s86
        s_lshl_b32 s85, s15, 3
        v_add_u32 v22, s85, v13
        s_mov_b32 exec_lo, 0
        s_mov_b32 exec_hi, 0x80000000
        ds_write_b64 v22, v[20:21] offset:{L_SM}
        s_mov_b64 exec, -1
        ''')
        if self.rk >= 0:
            a(f's_cmp_lg_u32 s15, 0\ns_cbranch_scc1 L_rk_nw\ns_mov_b64 exec, 1\nds_write_b32 v13, v37 offset:{L_RANK}\ns_mov_b64 exec, -1\nL_rk_nw:')
        if self.nst:
            a(f's_lshl_b32 s85, s15, 10\ns_add_u32 s85, s85, {LST}\nv_lshl_add_u32 v36, v2, 4, s85\nv_add_u32 v37, 32768, v36')
            for n in range(self.nst):
                a(f'ds_read_b128 v[{KV(NV+n)}:{KV(NV+n)+3}], v{36 if n < 4 else 37} offset:{8192*(n if n < 4 else n - 4)}')
        self.stamp(3)
        self.signal(C_SM)
        pre(8, 31)
        self.lds_wait(C_SM, 8)
        self.stamp(4)
        a(f'''
        v_and_b32 v22, 7, v2
        v_lshl_add_u32 v22, v22, 3, v13
        ds_read_b64 v[20:21], v22 offset:{L_SM}
        s_lshr_b32 s63, {self.lagv}, s7
        s_and_b32 s63, s63, 1
        s_waitcnt lgkmcnt(0)
        v_max_f32_dpp v22, v20, v20 row_ror:4 row_mask:0xf bank_mask:0xf
        v_max_f32_dpp v22, v22, v22 row_ror:2 row_mask:0xf bank_mask:0xf
        v_max_f32_dpp v22, v22, v22 row_ror:1 row_mask:0xf bank_mask:0xf
        v_sub_f32 v20, v20, v22
        v_mul_f32 v20, s90, v20
        v_exp_f32 v20, v20
        v_sub_f32 v32, v32, v22
        v_sub_f32 v33, v33, v22
        v_mul_f32 v21, v21, v20
        v_mul_f32 v32, s90, v32
        v_mul_f32 v33, s90, v33
        v_add_f32_dpp v21, v21, v21 row_ror:4 row_mask:0xf bank_mask:0xf
        v_exp_f32 v32, v32
        v_exp_f32 v33, v33
        v_add_f32_dpp v21, v21, v21 row_ror:2 row_mask:0xf bank_mask:0xf
        v_add_f32_dpp v21, v21, v21 row_ror:1 row_mask:0xf bank_mask:0xf
        v_rcp_f32 v21, v21
        v_mul_f32 v32, v32, v21
        v_mul_f32 v33, v33, v21
        v_cvt_pk_bf16_f32 v32, v32, v32
        v_cvt_pk_bf16_f32 v33, v33, v33
        ''')
        issued = st['V']; nwo = st['W']
        for t in range(32):
            A = 20 + 4 * (t & 1)
            for r in range(4):
                a(f'v_and_b32_dpp v{A+r}, v{32 + (t >> 4)}, v{8+r} row_newbcast:{bitrev4(t & 15)} row_mask:0xf bank_mask:0xf')
            wait_for(f'V{t}')
            a(f'v_mfma_f32_16x16x32_bf16 v[16:19], v[{A}:{A+3}], v[{KV(t % NV)}:{KV(t % NV)+3}], {"0" if t == 0 else "v[16:19]"}')
            if self.c4:
                av = self.aV if t < self.wv_sw else self.aV2
                while issued < 32 and t >= issued - 1 - av:
                    assert issued % 4 == 0 and t >= issued - 9
                    for k in range(4): ld(issued + k, (issued + k) % NV, 's[52:55]', f'V{issued + k}')
                    issued += 4
            elif not self.lagv:
                while t + (WV if t < self.wv_sw else self.WV2) >= issued and issued < 32:
                    ld(issued, issued % NV, 's[52:55]', f'V{issued}'); issued += 1
            else:
                wbig = max(self.WVc, WV if t < self.wv_sw else self.WV2)
                while t + wbig >= issued and issued < 32:
                    wa = WV if issued - WV < self.wv_sw else self.WV2
                    if issued - wa > t:
                        L = a.label('L_vw')
                        a(f's_cmp_lg_u32 s63, 0\ns_cbranch_scc1 {L}')
                        wait_for(f'V{issued - wa}')
                        a(f'{L}:')
                    ld(issued, issued % NV, 's[52:55]', f'V{issued}'); issued += 1
            if t >= self.wo_start:
                for _ in range(self.wo_per):
                    if nwo < 20: ldwo(nwo); nwo += 1
            if t == self.prog_t: self.signal(C_PROG)
            if t + 32 == self.pfl_t: self.signal(C_PROGW)
            if t == self.red_direct: self.signal(C_K2)
            if t == self.vi_t: self.signal(C_VI)
            if self.smf and 24 <= t < 28:
                for r in range(72 + 4 * (t - 24), 76 + 4 * (t - 24)): a(f'v_mov_b32 v{r}, 0')
            if t == self.setup_t:
                a(f'''
                v_lshlrev_b32 v7, 4, v2
                v_and_b32 v3, 15, v2
                v_lshrrev_b32 v4, 4, v2
                v_lshlrev_b32 v5, 5, v3
                v_lshl_add_u32 v5, v4, 4, v5          ; (8j+4s')*4
                s_lshl_b32 s85, s15, 9
                s_add_u32 s85, s85, {L_OP}
                v_add_u32 v6, s85, v5
                s_mul_i32 s85, s15, 2560
                s_add_u32 s85, s85, {L_WP}
                v_add_u32 v5, s85, v7
                v_add_u32 v36, {LST}, v7
                v_cmp_gt_u32 vcc, 32, v2
                {'' if self.pk3 else 'v_cndmask_b32 v5, v36, v5, vcc'}
                s_lshl_b32 s85, s15, 6
                s_add_u32 s85, s85, {L_OP}
                v_lshl_add_u32 v4, v4, 4, s85
                ''')
                if self.smf:
                    a(f'''
                    v_bfe_u32 v3, v2, 4, 1
                    v_lshlrev_b32 v4, 5, v3
                    v_and_b32 v3, 1, v2
                    v_lshl_add_u32 v4, v3, 4, v4          ; + (q&1)*4
                    v_bfe_u32 v3, v2, 1, 1
                    v_lshl_add_u32 v4, v3, 3, v4          ; + (q>>1)*2
                    v_lshrrev_b32 v3, 5, v2
                    v_lshl_add_u32 v4, v3, 2, v4          ; + (sA>>1)
                    v_bfe_u32 v3, v2, 2, 2
                    v_lshl_add_u32 v4, v3, 10, v4
                    v_add_u32 v4, s85, v4
                    v_mov_b32 v37, 0xffff
                    v_cmp_eq_u32 vcc, 0, v3
                    v_cndmask_b32 v38, 0, v37, vcc        ; Ma
                    v_cmp_eq_u32 vcc, 1, v3
                    v_cndmask_b32 v39, 0, v37, vcc        ; Mb
                    v_cmp_eq_u32 vcc, 2, v3
                    v_cndmask_b32 v12, 0, v37, vcc        ; Mc
                    v_cmp_eq_u32 vcc, 3, v3
                    v_cndmask_b32 v0, 0, v37, vcc         ; Md
                    v_and_b32 v3, 3, v2
                    v_mul_u32_u24 v37, 0x5555, v3
                    ''')
                    for r in [28, 29, 30, 31]: a(f'v_mov_b32 v{r}, 0')
                elif self.olp:
                    a('''
                    v_and_b32 v3, 3, v2
                    v_lshl_add_u32 v4, v3, 2, v4          ; + tp*4
                    v_bfe_u32 v3, v2, 2, 2
                    v_lshl_add_u32 v4, v3, 10, v4         ; + pair*2*512
                    ''')
                if self.oadd:
                    a(f'''
                    v_lshl_add_u32 v6, v2, 2, v13
                    v_lshrrev_b32 v4, 5, v2               ; s>>1
                    v_bfe_u32 v3, v2, 4, 1                ; s&1
                    v_lshl_add_u32 v4, v3, 4, v4
                    s_lshl_b32 s85, s15, 1
                    v_add_u32 v4, s85, v4
                    v_lshl_add_u32 v4, v4, 2, v13
                    ''')
                a(f'''
                v_bfe_u32 v35, v2, 1, 4
                v_and_b32 v36, 1, v2
                v_lshl_add_u32 v35, v36, 4, v35
                v_lshlrev_b32 v35, 4, v35
                v_lshrrev_b32 v36, 5, v2
                v_mul_u32_u24 v36, 10240, v36
                s_lshl_b32 s85, s15, 9
                s_add_u32 s86, s85, {L_WP}
                v_add3_u32 v35, v35, v36, s86
                s_mul_i32 s87, s2, 2560
                s_add_u32 s87, s87, s85
                s_add_u32 s87, s87, {WS_P}
                ''')
        assert nwo == 20
        a(f'''
        s_mov_b32 exec_hi, 0
        ''')
        if self.oadd:
            for r in range(4): a(f'ds_add_f32 v6, v{16+r} offset:{0x200 + 128*r}')
        else: a('ds_write_b128 v6, v[16:19]')
        a('s_mov_b64 exec, -1')
        self.stamp(5)
        if self.cyc: a('s_memtime s[64:65]\ns_memrealtime s[74:75]')
        if self.gthr:
            a(f's_cmp_lg_u32 s15, 7\ns_cbranch_scc1 L_nogc\ns_lshl_b32 s85, s2, 7\ns_add_u32 s85, s85, {WS_F}')
            a('s_mov_b64 exec, 1\nv_mov_b32 v12, 0\nv_mov_b32 v14, s94\nbuffer_store_dword v14, v12, s[44:47], s85 offen sc1\ns_mov_b64 exec, -1\nL_nogc:')
        rd1 = [f'ds_read_b128 v[{40+4*w}:{43+4*w}], v4 offset:{512*w}' for w in range(8)]
        if self.olp: rd1 = ['ds_read2_b32 v[40:41], v4 offset0:0 offset1:128']
        if self.oadd: rd1 = ['ds_read2_b32 v[40:41], v4 offset0:128 offset1:160', 'ds_read2_b32 v[42:43], v4 offset0:192 offset1:224']
        if self.bar:
            a(f's_cmp_eq_u32 s7, {R_RED}\ns_cbranch_scc1 L_s1_spin\ns_waitcnt lgkmcnt(0)\ns_barrier\nL_tail_dry:')
            for r in rd1: a(r)
            a('s_waitcnt lgkmcnt(0)\nL_s1_done:')
            self.tail_code.append(('L_s1_spin', lambda: (self.signal(C_PV), self.wait2(C_PV, 8, rd1), a('s_branch L_s1_done'))))
        else:
            self.signal(C_PV)
            self.wait2(C_PV, 8, rd1)
        if self.cyc: a('s_memtime s[66:67]')
        if self.olp:
            a('''
            v_add_f32 v40, v40, v41
            v_add_f32_dpp v40, v40, v40 row_ror:4 row_mask:0xf bank_mask:0xf
            v_add_f32_dpp v40, v40, v40 row_ror:8 row_mask:0xf bank_mask:0xf
            v_cvt_pk_bf16_f32 v40, v40, v40
            ''')
        else:
            if not self.oadd: self.sum_partials(40, [40 + 4 * i for i in range(8)])
            for r in range(4): a(f'v_cvt_pk_bf16_f32 v{40+r}, v{40+r}, v{40+r}')
        assert q[-1] == 'V31'
        if self.cyc: a('s_memtime s[68:69]')
        self.stamp(6)
        def wr(c): a(f'ds_write_b128 v5, v[{60+4*c}:{63+4*c}] offset:{512*c}')
        def mf(tp, c):
            d = 60 + 4 * c; b = KV(NV + 5 * tp + c)
            a(f'v_mfma_f32_16x16x32_bf16 v[{d}:{d+3}], v[{44+4*tp}:{47+4*tp}], v[{b}:{b+3}], {"0" if tp == 0 else "v[%d:%d]" % (d, d+3)}')
        def ands(tp):
            for r in range(4):
                if self.olp: a(f'v_and_b32_dpp v{44+4*tp+r}, v40, v{8+r} quad_perm:[{tp},{tp},{tp},{tp}] row_mask:0xf bank_mask:0xf')
                else: a(f'v_and_b32 v{44+4*tp+r}, v{40+tp}, v{8+r}')
        if self.smf and self.pk3:
            acc = [72, 72, 76, 76, 80]
            def ands(base, P, ma, mb):
                for r in range(4):
                    qq = 2 * P + (r >> 1)
                    a(f'v_and_b32_dpp v{base+4*P+r}, v40, v{mb if r & 1 else ma} quad_perm:[{qq},{qq},{qq},{qq}] row_mask:0xf bank_mask:0xf')
            def sm(P, c):
                b = KV(NV + 10 * P + 2 * c); A = (44 if c & 1 else 20) + 4 * P
                a(f'v_smfmac_f32_16x16x64_bf16 v[{acc[c]}:{acc[c]+3}], v[{A}:{A+3}], v[{b}:{b+7}], v37')
            ands(20, 0, 38, 39); ands(20, 1, 38, 39)
            sm(0, 4); sm(0, 0); ands(44, 0, 12, 0); sm(1, 4); sm(0, 2); ands(44, 1, 12, 0); sm(1, 0); sm(1, 2)
            sm(0, 1); sm(0, 3)
            a('s_mov_b32 exec_hi, 0\nds_write_b128 v5, v[80:83] offset:2048\ns_mov_b32 exec_hi, -1')
            sm(1, 1); sm(1, 3)
            a('ds_write_b128 v5, v[72:75]\nds_write_b128 v5, v[76:79] offset:1024')
        elif self.smf:
            acc = [72, 76, 80, 84, 28]
            def wr(c): a(f'ds_write_b128 v5, v[{acc[c]}:{acc[c]+3}] offset:{512*c}')
            for P in range(2):
                for r in range(4):
                    qq = 2 * P + (r >> 1)
                    a(f'v_and_b32_dpp v{20+4*P+r}, v40, v{38 + (r & 1)} quad_perm:[{qq},{qq},{qq},{qq}] row_mask:0xf bank_mask:0xf')
            for P in range(2):
                for c in range(5):
                    b = KV(NV + 10 * P + 2 * c)
                    a(f'v_smfmac_f32_16x16x64_bf16 v[{acc[c]}:{acc[c]+3}], v[{20+4*P}:{23+4*P}], v[{b}:{b+7}], v37')
            if self.wmask: a('s_mov_b32 exec_hi, 0')
            for c in range(5): wr(c)
            if self.wmask: a('s_mov_b32 exec_hi, -1')
        elif self.mo == 0:
            for c in range(5):
                for tp in range(4):
                    if c == 0: ands(tp)
                    mf(tp, c)
                if c >= 2: wr(c - 2)
            wr(3); wr(4)
        elif self.mo == 1:
            ands(0)
            for tp in range(4):
                for c in range(5):
                    mf(tp, c)
                    if c == 1 and tp < 3: ands(tp + 1)
            for c in range(5): wr(c)
        else:
            ands(0)
            for tp in range(4):
                for c in range(3):
                    mf(tp, c)
                    if c == 0 and tp < 3: ands(tp + 1)
            for tp in range(4):
                for c in (3, 4): mf(tp, c)
                if tp >= 1: wr(tp - 1)
            wr(3); wr(4)
        if self.cyc: a('s_memtime s[70:71]')
        rd2 = [f'ds_read_b128 v[{40+4*w}:{43+4*w}], v35 offset:{2560*w}' for w in range(4)]
        if self.bar:
            if self.dry: a('s_cbranch_execz L_s2_skip')
            a(f's_cmp_eq_u32 s7, {R_RED}\ns_cbranch_scc1 L_s2_spin\ns_waitcnt lgkmcnt(0)\ns_barrier')
            a('s_cmp_ge_u32 s15, 5\ns_cbranch_scc1 L_stream_end')
            a('L_s2_skip:')
            for r in rd2: a(r)
            a('s_waitcnt lgkmcnt(0)\nL_s2_done:')
            self.tail_code.append(('L_s2_spin', lambda: (self.signal(C_WO), a('s_cmp_ge_u32 s15, 5\ns_cbranch_scc1 L_stream_end'), self.wait2(C_WO, 8, rd2), a('s_branch L_s2_done'))))
        else:
            self.signal(C_WO)
            a('s_cmp_ge_u32 s15, 5\ns_cbranch_scc1 L_stream_end')
            self.wait2(C_WO, 8, rd2)
        if self.cyc: a('s_memtime s[72:73]')
        self.stamp(7)
        self.sum_partials(40, [40, 44, 48, 52])
        for i in range(4): a(f'v_mov_b32 v{44+i}, v{40+i}')
        for i in range(4): a(f'v_permlane32_swap_b32 v{40+i}, v{44+i}')
        a('v_pk_add_f32 v[40:41], v[40:41], v[44:45]\nv_pk_add_f32 v[42:43], v[42:43], v[46:47]')
        self.sanitize(range(40, 44))
        if self.dry: a('s_cbranch_execz L_dry_ret')
        a('''
        s_mov_b32 exec_hi, 0
        buffer_store_dwordx4 v[40:43], v7, s[44:47], s87 offen sc1
        s_mov_b64 exec, -1
        ''')
        if self.cyc:
            a('s_memtime s[76:77]\ns_memrealtime s[78:79]\ns_waitcnt lgkmcnt(0)')
            for i, r in enumerate((66, 68, 70, 72, 76)): a(f's_sub_u32 s{r}, s{r}, s64\nv_writelane_b32 v15, s{r}, {6+i}')
            a('s_sub_u32 s78, s78, s74\nv_writelane_b32 v15, s78, 12')
        self.signal(C_DONE)
        a('L_stream_end:')
        self.stamp(10)
        self.stamp_flush()
        self.diag_end()
        a('L_end:\ns_endpgm')
        for lab, fn in self.tail_code:
            a(lab + ':'); fn()

    def build(self):
        self.prologue(); self.stream(); self.control(); self.a('L_code_end:')
        kn = NAME + '_kernel'
        body = '\n'.join(fix_hazards(self.a.l)) + '\n'
        hdr = open('cdna_kernels/' + NAME + '.s.ref').read().split('; Override launch')[0]
        return hdr + header([f'; @launch grid=(256,1,1) block=(768,1,1) lds={LDS_SIZE}']) + DOC + kernel_start(kn) + body + '.section .rodata,"a"\n' + descriptor(kn, vgpr=168, sgpr=102, accum=168)

if __name__ == '__main__':
    import argparse
    from collections import Counter
    rs = [role_of(w) for w in range(256)]
    for r, n in ((R_G1, 20), (R_DOWN, 40), (R_FFN, 54), (R_Q, 64), (R_MOD, 40), (R_RED, 8)):
        assert sorted(i for rr, i in rs if rr == r) == list(range(n)), r
    ap = argparse.ArgumentParser()
    ap.add_argument('-o', default='k.s'); ap.add_argument('--stamp', action='store_true')
    for p, d in (('WK', 3), ('WV', 4), ('rot', 3), ('rotw', 1), ('qpos', 28), ('prog_t', 22), ('progw_t', -1), ('WD', 20), ('wo_start', 0), ('wo_per', 1), ('sdelay', 0), ('WK0', 3), ('wk_sw', 16), ('k2_t', -1), ('WV2', 8), ('wv_sw', 12), ('hold', 1), ('pf', 1), ('WKL', 4), ('wkl_sw', 6), ('lagmask', 2), ('pfb', 1), ('cpf', 1), ('diag_until', 0), ('diag_xcc', 0), ('diag_role', -1), ('diag_cls', -1), ('diag_idx', -1), ('nMf', 0), ('nMd', 0), ('vi_t', -1), ('nEf', 0), ('nEd', 0), ('late', 0), ('pfl_t', -1), ('psleep', 0), ('light', 0), ('hdelay', 0), ('rk', -1), ('lagv', 0), ('h1probe', 0), ('cxfirst', 1), ('tlbw', 0), ('rotm', 1), ('ilv', 0), ('pk3', 1), ('wmask', 0), ('stlb', 0), ('ffn2', 0), ('c4', 0), ('aK', 0), ('aK2', 2), ('aKL', 4), ('aV', 2), ('aV2', 6), ('premerge', 0), ('otouch', 0), ('gthr', 0), ('help2', 0), ('setup_t', 14), ('ddelay', 0), ('smf', 1), ('olp', 1), ('mo', 2), ('dry', 0), ('oadd', 0), ('bar', 1), ('cyc', 0), ('pipe', 0), ('wki', 2), ('pf1_t', 5), ('allsh', 0), ('pf2_t', 10), ('nst', 9), ('st0', 4), ('stp', 3), ('vpf', 3), ('rth1', 128), ('rth2', 208), ('WVa', 2), ('WVb', 4), ('WVc', 8), ('trig', 0), ('trsh', 0), ('red_direct', 27), ('WDM', 20), ('k2_n', 8)):
        ap.add_argument('--' + p, type=int, default=d)
    ap.add_argument('--pre', default='V,V,V,V,V,V,V,V,W')
    ap.add_argument('--ntp', default='kv')
    ap.add_argument('--abl', default='')
    ap.add_argument('--outf', default='')
    args = ap.parse_args()
    kw = dict(vars(args)); o = kw.pop('o')
    open(o, 'w').write(G(**kw).build())
```
